```python
import torch

def _softmax(x, axis=-1):
    return torch.softmax(x, dim=axis)

def _gelu(x):
    return torch.nn.functional.gelu(x, approximate='tanh')

def _silu(x):
    return torch.nn.functional.silu(x)

def _sigmoid(x):
    return torch.sigmoid(x)

def _layernorm(x, axis=-1, eps=1e-05):
    m = x.mean(dim=axis, keepdim=True)
    v = x.var(dim=axis, keepdim=True, unbiased=False)
    return (x - m) / torch.sqrt(v + eps)

def _scatter_add(tgt, idx, src, axis=0):
    return tgt.clone().index_add_(axis, idx, src)

def _segment_sum(src, seg, n):
    out = torch.zeros((n,) + src.shape[1:], dtype=src.dtype)
    return out.index_add_(0, seg, src)

def _pad(x, pw):
    flat = tuple((v for pair in reversed(pw) for v in pair))
    return torch.nn.functional.pad(x, flat)
kernel_name = 'parallel_sum__memory_aug_recurrent_mem_tr__geglu_ffn__prompt'

def setup_inputs():

    _w = lambda a: (lambda t: t.to(torch.bfloat16) if t.is_floating_point() else t)(torch.as_tensor(a))

    def _A_setup():
        B, S, Dm = (1, 2048, 512)
        H, Dh = (32, 128)
        M, seg = (8, 32)
        seg = min(seg, S)
        S = S // seg * seg
        return {'x': _w((lambda *s: torch.randn(*s, dtype=torch.bfloat16) * 0.05)(B, S, Dm)), 'mem0': _w((lambda *s: torch.randn(*s, dtype=torch.bfloat16) * 1.6)(B, M, Dm)), 'Wq': _w((lambda *s: torch.randn(*s, dtype=torch.bfloat16) * 0.8)(Dm, H, Dh) * Dm ** (-0.5)), 'Wk': _w((lambda *s: torch.randn(*s, dtype=torch.bfloat16) * 0.8)(Dm, H, Dh) * Dm ** (-0.5)), 'Wv': _w((lambda *s: torch.randn(*s, dtype=torch.bfloat16) * 1.6)(Dm, H, Dh) * Dm ** (-0.5)), 'Wo': _w((lambda *s: torch.randn(*s, dtype=torch.bfloat16) * 1.6)(H, Dh, Dm) * (H * Dh) ** (-0.5)), 'seg_len': seg}
    _A_in = _A_setup()

    def _B_setup():
        B, S, D, F = (1, 2048, 512, 1376)
        return {'x': _w((lambda *s: torch.randn(*s, dtype=torch.bfloat16) * 0.05)(B, S, D)), 'w_gate': _w((lambda *s: torch.randn(*s, dtype=torch.bfloat16) * 0.05)(D, F)), 'w_up': _w((lambda *s: torch.randn(*s, dtype=torch.bfloat16) * 0.05)(D, F)), 'w_down': _w((lambda *s: torch.randn(*s, dtype=torch.bfloat16) * 0.05)(F, D))}
    _B_in = _B_setup()
    return {'A_x': _A_in['x'], 'A_mem0': _A_in['mem0'], 'A_Wq': _A_in['Wq'], 'A_Wk': _A_in['Wk'], 'A_Wv': _A_in['Wv'], 'A_Wo': _A_in['Wo'], 'A_seg_len': _A_in['seg_len'], 'B_x': _B_in['x'], 'B_w_gate': _B_in['w_gate'], 'B_w_up': _B_in['w_up'], 'B_w_down': _B_in['w_down']}

def reference(A_x, A_mem0, A_Wq, A_Wk, A_Wv, A_Wo, A_seg_len, B_x, B_w_gate, B_w_up, B_w_down):

    def _A_ref(x, mem0, Wq, Wk, Wv, Wo, seg_len):
        B, S, Dm = x.shape
        H, Dh = (Wq.shape[1], Wq.shape[2])
        M = mem0.shape[1]
        scale = Dh ** (-0.5)
        n_seg = S // seg_len
        L = M + seg_len
        idx = torch.arange(L)
        mask = (idx[:, None] < M) | (idx[:, None] >= idx[None, :])
        mem = mem0
        outs = []
        for s in range(n_seg):
            xs = x[:, s * seg_len:(s + 1) * seg_len, :].clone()
            h = torch.concatenate([mem, xs], axis=1)
            q = torch.einsum('btd,dhe->bhte', h, Wq)
            k = torch.einsum('btd,dhe->bhte', h, Wk)
            v = torch.einsum('btd,dhe->bhte', h, Wv)
            scores = torch.einsum('bhqe,bhke->bhqk', q, k) * scale
            scores = torch.where(mask[None, None], scores, -1000000000.0)
            p = _softmax(scores, axis=-1)
            o = torch.einsum('bhqk,bhke->bhqe', p, v)
            o = torch.einsum('bhte,hed->btd', o, Wo)
            mem = o[:, :M, :].clone()
            outs.append(o[:, M:, :])
        return torch.concatenate(outs, axis=1)

    def _B_ref(x, w_gate, w_up, w_down):
        return _gelu(x @ w_gate) * (x @ w_up) @ w_down
    x = A_x
    xn = _layernorm(x, axis=-1)
    return x + _A_ref(xn, A_mem0, A_Wq, A_Wk, A_Wv, A_Wo, A_seg_len) + _B_ref(xn, B_w_gate, B_w_up, B_w_down)
```

```python
import re

def _regs(tok):
    tok = tok.strip()
    neg = tok.lstrip('-')
    m = re.fullmatch(r'(?:abs\()?([vas])(\d+)\)?', neg)
    if m: return {(m.group(1), int(m.group(2)))}
    m = re.fullmatch(r'(?:abs\()?([vas])\[(\d+):(\d+)\]\)?', neg)
    if m: return {(m.group(1), i) for i in range(int(m.group(2)), int(m.group(3)) + 1)}
    if neg == 'vcc': return {('s', 'vcc')}
    if neg == 'exec': return {('s', 'exec')}
    if neg == 'm0': return {('s', 'm0')}
    return set()

TRANS = ('v_exp_f32', 'v_log_f32', 'v_rcp_f32', 'v_rsq_f32', 'v_sqrt_f32', 'v_sin_f32', 'v_cos_f32')

class Ins:
    def __init__(self, text):
        self.text = text
        t = text.split(';')[0].strip()
        self.op = t.split()[0] if t else ''
        rest = t[len(self.op):].strip()
        ops = [o.strip() for o in re.split(r',(?![^\[]*\])', rest)] if rest else []
        self.mods = ''
        if ops:
            parts = ops[-1].split()
            if len(parts) > 1:
                ops[-1] = parts[0]; self.mods = ' '.join(parts[1:])
        self.ops = ops
        op = self.op
        self.kind = 'other'
        self.w = set(); self.r = set(); self.srcc = set(); self.ab = set(); self.passes = 0
        self.storedata = set()
        R = [_regs(o) for o in ops]
        if op.startswith('v_mfma') or op.startswith('v_smfmac'):
            self.kind = 'mfma'
            self.passes = 8 if '32x32' in op else 4
            self.w = R[0]; self.ab = R[1] | R[2]
            if op.startswith('v_smfmac'):
                self.srcc = R[0]; self.ab |= R[3]
            else:
                self.srcc = R[3]
            self.r = self.ab | self.srcc
        elif op.startswith('v_'):
            self.kind = 'valu'
            if op.startswith('v_cmp'):
                self.w = R[0]; self.r = set().union(*R[1:])
                if op.startswith('v_cmpx'): self.w |= {('s', 'exec')}
            elif op.startswith('v_permlane') and 'swap' in op:
                self.w = R[0] | R[1]; self.r = R[0] | R[1]
            elif op.startswith(('v_add_co', 'v_sub_co', 'v_addc_co')):
                self.w = R[0] | R[1]; self.r = set().union(*R[2:])
            elif op == 'v_nop':
                pass
            else:
                self.w = R[0]; self.r = set().union(*R[1:]) if len(R) > 1 else set()
                if op.startswith(('v_fmac', 'v_dot2c', 'v_pk_fmac')): self.r |= R[0]
                if '_dpp' in op or 'row_' in self.mods or 'quad_perm' in self.mods: self.r |= R[0]
        elif op.startswith('ds_'):
            self.kind = 'ds'
            if op.startswith('ds_read') or 'permute' in op or 'swizzle' in op:
                self.w = R[0]; self.r = set().union(*R[1:])
            else:
                self.r = set().union(*R)
        elif op.startswith(('buffer_', 'global_')):
            self.kind = 'vmem'
            lds = ' lds' in (' ' + self.mods) or '_lds_' in op
            if op in ('buffer_wbl2', 'buffer_inv'):
                pass
            elif lds:
                self.r = set().union(*R) | {('s', 'm0')}; self.isdma = True
            elif 'load' in op:
                self.w = R[0]; self.r = set().union(*R[1:])
            elif 'atomic' in op:
                self.r = set().union(*R)
                if 'sc0' in self.mods: self.w = R[0]
            else:
                self.r = set().union(*R)
                if 'x4' in op or 'x3' in op:
                    self.storedata = R[0] if op.startswith('buffer_') else R[1]
        elif op.startswith('s_'):
            self.kind = 'salu'
            if op.startswith(('s_cmp', 's_cbranch', 's_branch', 's_waitcnt', 's_barrier', 's_nop', 's_sleep', 's_endpgm', 's_setprio', 's_bitcmp')):
                self.r = set().union(*R) if R else set()
            else:
                self.w = R[0] if R else set(); self.r = set().union(*R[1:]) if len(R) > 1 else set()
                if 'saveexec' in op: self.w |= {('s', 'exec')}
        self.states = 1
        if op == 's_nop': self.states = int(ops[0], 0) + 1
        self.isdma = getattr(self, 'isdma', False)
        self.dpp = self.kind == 'valu' and ('_dpp' in op or 'row_' in self.mods or 'quad_perm' in self.mods)

def vec(s): return {x for x in s if x[0] in 'va'}
def sca(s): return {x for x in s if x[0] == 's'}

def required(p, c):
    n = 0
    if p.kind == 'valu':
        pw = vec(p.w); ps = sca(p.w)
        if c.kind == 'mfma' and pw & c.r: n = max(n, 2)
        if c.kind == 'valu':
            if c.op.startswith('v_permlane') and pw & c.r: n = max(n, 2)
            if c.dpp and pw & c.r: n = max(n, 2)
            if c.op.startswith(('v_readlane', 'v_readfirstlane')) and pw & c.r: n = max(n, 1)
            if p.op.split('_e')[0] in TRANS and not c.op.split('_e')[0] in TRANS and pw & c.r: n = max(n, 1)
            if ps & c.r: n = max(n, 2)
            if ps & c.r and c.op.startswith(('v_readlane', 'v_writelane')): n = max(n, 4)
            if ('s', 'exec') in ps:
                if c.dpp: n = max(n, 5)
                if c.op.startswith(('v_readlane', 'v_readfirstlane', 'v_writelane', 'v_permlane')): n = max(n, 4)
        if c.kind == 'mfma' and ('s', 'exec') in ps: n = max(n, 4)
        if c.kind == 'vmem' and ps & c.r: n = max(n, 5)
        if p.op.split('_e')[0] in TRANS and c.kind in ('ds', 'vmem', 'mfma') and pw & c.r: n = max(n, 2)
        if c.kind == 'salu' and ps & c.r and not c.op.startswith('s_cbranch'): n = max(n, 1)
    if p.kind == 'mfma':
        full = {4: 8, 8: 12}[p.passes]; over = {4: 6, 8: 10}[p.passes]; war = {4: 3, 8: 7}[p.passes]
        if c.kind == 'mfma':
            if p.w & c.ab: n = max(n, full)
            if p.w & c.srcc:
                same = (p.w == c.srcc and p.op == c.op)
                if not same: n = max(n, over)
            elif p.w & c.w: n = max(n, over)
        elif c.kind in ('valu', 'ds', 'vmem'):
            if p.w & (c.r | c.w): n = max(n, full)
            if c.kind == 'valu' and p.srcc & c.w: n = max(n, war)
    if p.kind == 'salu' and ('s', 'm0') in p.w and c.isdma: n = max(n, 1)
    if p.kind == 'vmem' and p.storedata and vec(c.w) & p.storedata: n = max(n, 2)
    return n

class Asm:
    def __init__(self):
        self.items = []
        self.lds_q = []
        self.nops = 0
    def raw(self, s): self.items.append(s)
    def label(self, s):
        self.items.append(s + ':')
    def __call__(self, text):
        for line in text.split('\n'):
            t = line.strip()
            if not t: continue
            if t.startswith(';') or t.startswith('.') or t.endswith(':'):
                self.items.append(t); continue
            self.items.append(Ins(t))
    def ds(self, text, tag=None):
        self(text); self.lds_q.append(tag)
    def wait_lds(self, *tags):
        idx = max((i for i, t in enumerate(self.lds_q) if t in tags), default=None)
        if idx is None: return
        n = len(self.lds_q) - 1 - idx
        self(f's_waitcnt lgkmcnt({min(n, 15)})')
        self.lds_q = self.lds_q[idx + 1:] if n <= 15 else self.lds_q[-15:]
    def wait_lds_all(self):
        self('s_waitcnt lgkmcnt(0)'); self.lds_q = []
    def text(self):
        out = []; hist = []
        for it in self.items:
            if isinstance(it, str):
                out.append(it if (it.endswith(':') or it.startswith('.') or it.startswith(';')) else '  ' + it)
                continue
            need = 0; dist = 0; distm = 0
            for p in reversed(hist):
                r = required(p, it)
                d = distm if p.kind == 'mfma' else dist
                if r - d > need: need = r - d
                dist += p.states
                distm += 3 if (p.kind == 'mfma' and '16x16x16' not in p.op) else p.states
                if dist > 20: break
            while need > 0:
                k = min(need, 16)
                nop = Ins(f's_nop {k-1}'); out.append('  ' + nop.text + '  ; auto'); hist.append(nop); need -= k; self.nops += 1
            out.append('  ' + it.text); hist.append(it)
            if it.op in ('s_branch', 's_endpgm'): hist = []
            if len(hist) > 40: hist = hist[-30:]
        return '\n'.join(out) + '\n'
```

```python
import sys, math, struct
sys.path.insert(0, 'dev')
from asmlib import Asm

FLAGS = 0x0000000
MEMB  = 0x0070000
PARTB = 0x0100000
GMEMB = 0x0180000
XFB   = 0x0200000
QFB   = 0x1000000
KVB   = 0x2000000
OFB   = 0x4000000
HFB   = 0x5000000
WS_BYTES = 0x10000000
DBG_TICKET = 0
DBG_CHAINCNT = 64
DBG_GATE = 128
F_XN = 0x2000; F_H = 0x4000; F_O = 0x6000

def f32bits(x): return struct.unpack('<I', struct.pack('<f', x))[0]

def vr(b, n=4): return f'v[{b}:{b+n-1}]'

def srd(A, s, ptr_lo, nbytes):
    A(f'''s_mov_b32 s{s}, s{ptr_lo}
s_and_b32 s{s+1}, s{ptr_lo+1}, 0xffff
s_mov_b32 s{s+2}, {nbytes}
s_mov_b32 s{s+3}, 0x20000''')

def wait_cnt(A, lbl, srdn, voff, soff, target, vt, sleep=0):
    A(f'''{lbl}:
buffer_load_dword v{vt}, v{voff}, s[{srdn}:{srdn+3}], {soff} offen sc1
s_waitcnt vmcnt(0)
v_readfirstlane_b32 s36, v{vt}
s_cmp_ge_u32 s36, {target}
s_cbranch_scc1 {lbl}_ok
{f"s_sleep {sleep}" if sleep else ""}
s_sub_u32 s35, s35, 1
s_cbranch_scc0 {lbl}
s_mov_b32 s35, 0
{lbl}_ok:''')

def wait_dbg(A, lbl, off, target, vt, va):
    A(f'v_mov_b32 v{va}, {off}')
    wait_cnt(A, lbl, 12, va, 0, target, vt, sleep=2)

L_MEM = 0; L_OQK = 8192; L_KV = 16384; L_W = 49152; L_WSZ = 28672
V_L16, V_IDX, V_PST, V_SELV, V_MST, V_QW, V_TR, V_B0, V_B1, V_B2, V_B3, V_WV = range(12)
T0, T1, T2, T3 = 12, 13, 14, 15
M = [16 + 4 * i for i in range(8)]
AQ0, AQ1, AK0, AK1, AV0, AV1 = 48, 52, 56, 60, 64, 68
P = [72 + 8 * i for i in range(5)]
VB = [V_B0, V_B1, V_B2, V_B3]

def chain_frag_map():
    units = [(m, t) for m in 'qkv' for t in range(8)] + [('o', k, u) for k in range(4) for u in range(2)]
    backed = [('q', 0), ('k', 0), ('v', 0), ('o', 0, 0), ('o', 0, 1), ('o', 2, 1), ('o', 3, 1)]
    res = [u for u in units if u not in backed]
    order = res + backed
    loc = {}
    regs = [f'a[{8*i}:{8*i+7}]' for i in range(32)] + [f'v[{112+8*i}:{112+8*i+7}]' for i in range(18)]
    k = 0
    for u in res:
        for T in range(2):
            loc[u + (T,)] = ('reg', regs[k]); k += 1
    assert k == 50
    for i, u in enumerate(backed):
        for T in range(2):
            loc[u + (T,)] = ('lds', i, T)
    return loc, order

def sub(reg, lo, n):
    c = reg[0]; b = int(reg[2:reg.index(':')])
    return f'{c}[{b+lo}:{b+lo+n-1}]'

def emit_chain(A, sc='', tag='c', nsteps=63, gate=False, stamps=False, dB0=0, dB1=0, dA=0, ring=1, nokv=0):
    loc, order = chain_frag_map()
    sc = (' ' + sc) if sc else ''
    A(f'''
s_load_dwordx4 s[16:19], s[0:1], 16
s_load_dwordx4 s[24:27], s[0:1], 32
s_load_dwordx2 s[4:5], s[0:1], 8
v_and_b32 v20, 63, v0                 ; lane
v_lshlrev_b32 v{V_L16}, 4, v20
s_waitcnt lgkmcnt(0)
s_mov_b32 s20, s18
s_and_b32 s21, s19, 0xffff
s_mov_b32 s22, 0x400000
s_mov_b32 s23, 0x20000
s_and_b32 s17, s17, 0xffff
s_mov_b32 s18, 0x400000
s_mov_b32 s19, 0x20000
s_mov_b32 s28, s26
s_and_b32 s29, s27, 0xffff
s_mov_b32 s30, 0x400000
s_mov_b32 s31, 0x20000
s_and_b32 s25, s25, 0xffff
s_mov_b32 s26, 0x400000
s_mov_b32 s27, 0x20000
''')
    srd(A, 84, 4, 8192)
    A(f'''
s_mov_b32 s35, 4000000
s_lshl_b32 s36, s32, 11                ; w*2048
v_add_u32 v{V_B0}, s36, v{V_L16}
v_xor_b32 v{V_B1}, 2048, v{V_B0}
v_xor_b32 v{V_B2}, 4096, v{V_B0}
v_xor_b32 v{V_B3}, 6144, v{V_B0}
s_add_u32 s54, s36, {MEMB}             ; sMemRd
s_mov_b32 s55, {MEMB + 8192}           ; sMemWr
s_mov_b32 s56, {GMEMB}
s_mul_i32 s52, s32, {L_WSZ}
s_add_u32 s52, s52, {L_W}
s_mul_i32 s53, s32, 12288
v_add_u32 v{V_WV}, s52, v{V_L16}
v_and_b32 v21, 8, v20
v_cmp_eq_u32 vcc, 0, v21
v_mov_b32 v22, 0xeeee
v_mov_b32 v23, 0x4444
v_cndmask_b32 v{V_IDX}, v22, v23, vcc
s_mov_b32 s80, 0x00ff00ff
s_mov_b32 s81, 0x00ff00ff
v_lshrrev_b32 v21, 5, v20
v_bfe_u32 v22, v20, 2, 2
v_lshl_add_u32 v21, v21, 2, v22
v_lshlrev_b32 v21, 12, v21
v_bfe_u32 v22, v20, 4, 1
v_lshl_add_u32 v21, v22, 6, v21
v_and_b32 v22, 3, v20
v_lshl_add_u32 v21, v22, 4, v21
s_lshl_b32 s36, s32, 15
s_lshl_b32 s37, s33, 7
s_add_u32 s36, s36, s37
v_add_u32 v{V_PST}, s36, v21
s_mov_b32 s58, {PARTB}
s_mov_b32 s59, {PARTB + 0x20000}
s_mov_b32 s60, {PARTB + 0x40000}
s_mov_b32 s61, {PARTB + 0x60000}
s_and_b32 s36, s32, 1
s_lshl_b32 s36, s36, 5
s_add_u32 s36, s36, s33                ; G
s_lshl_b32 s37, s36, 12
s_add_u32 s62, s37, {PARTB}
s_add_u32 s63, s37, {PARTB + 0x40000}
v_lshrrev_b32 v21, 4, v20
v_bfe_u32 v22, v20, 2, 1
v_lshl_add_u32 v21, v21, 1, v22
v_lshlrev_b32 v23, 4, v21
v_and_b32 v22, 3, v20
v_lshl_add_u32 v23, v22, 2, v23
s_lshl_b32 s37, s36, 7
v_add_u32 v{V_MST}, s37, v23
v_lshlrev_b32 v24, 10, v21
v_lshl_add_u32 v24, v22, 1, v24
s_lshr_b32 s38, s33, 3
s_lshl_b32 s38, s38, 8
s_and_b32 s39, s32, 1
s_lshl_b32 s39, s39, 7
s_add_u32 s38, s38, s39
s_and_b32 s39, s33, 7
s_lshl_b32 s39, s39, 3
s_add_u32 s38, s38, s39
buffer_load_ushort v38, v24, s[84:87], s38 offen
buffer_load_ushort v39, v24, s[84:87], s38 offen offset:64
; reset region: G2=32*(w>>1)+h, half (w&1)
s_lshr_b32 s38, s32, 1
s_lshl_b32 s38, s38, 5
s_add_u32 s38, s38, s33
s_lshl_b32 s38, s38, 12
s_and_b32 s39, s32, 1
s_lshl_b32 s39, s39, 11
s_add_u32 s38, s38, s39
s_add_u32 s64, s38, {PARTB}
s_add_u32 s65, s38, {PARTB + 0x40000}
s_lshl_b32 s38, s32, 12
s_add_u32 s66, s38, {L_KV}
s_add_u32 s67, s38, {L_KV + 16384}
s_lshl_b32 s39, s33, 14
s_add_u32 s38, s38, s39
s_add_u32 s57, s38, {KVB}
s_mov_b32 s68, {f32bits(128 ** -0.5 * math.log2(math.e))}
v_lshrrev_b32 v21, 5, v20
v_and_b32 v22, 15, v20
v_lshl_add_u32 v21, v21, 4, v22
v_lshlrev_b32 v21, 4, v21
v_bfe_u32 v22, v20, 4, 1
v_lshl_add_u32 v21, v22, 3, v21
s_lshl_b32 s38, s32, 11
v_add_u32 v{V_QW}, s38, v21
v_lshrrev_b32 v21, 2, v20
v_lshlrev_b32 v21, 4, v21
v_and_b32 v22, 1, v20
v_lshl_add_u32 v{V_TR}, v22, 3, v21
v_and_b32 v21, 3, v20
v_mov_b32 v22, 0
v_mov_b32 v23, 0x3f80
v_cmp_eq_u32 vcc, 0, v21
v_cndmask_b32 v22, v22, v23, vcc
v_mov_b32 v23, 0x3f800000
v_cmp_eq_u32 vcc, 1, v21
v_cndmask_b32 v{V_SELV}, v22, v23, vcc
s_mov_b32 s72, 0x000f000f
s_mov_b32 s73, 0x000f000f
s_mov_b32 s74, 0x00f000f0
s_mov_b32 s75, 0x00f000f0
s_mov_b32 s76, 0x0f000f00
s_mov_b32 s77, 0x0f000f00
s_mov_b32 s78, 0xf000f000
s_mov_b32 s79, 0xf000f000
s_mov_b32 s82, -1
s_mov_b32 s83, 0
v_mov_b32 v28, -1
v_mov_b32 v29, -1
v_mov_b32 v30, -1
v_mov_b32 v31, -1
buffer_store_dwordx4 v[28:31], v{V_L16}, s[8:11], s64 offen{sc}
buffer_store_dwordx4 v[28:31], v{V_L16}, s[8:11], s64 offen offset:1024{sc}
buffer_store_dwordx4 v[28:31], v{V_L16}, s[8:11], s65 offen{sc}
buffer_store_dwordx4 v[28:31], v{V_L16}, s[8:11], s65 offen offset:1024{sc}
v_lshrrev_b32 v21, 3, v20
v_lshlrev_b32 v21, 13, v21
v_and_b32 v22, 7, v20
v_lshl_add_u32 v21, v22, 4, v21
v_add_u32 v21, s37, v21
s_cmp_ge_u32 s32, 2
s_cbranch_scc1 {tag}_init_g
''')
    for i in range(8):
        A(f's_mov_b32 s38, {MEMB + i * 65536}\nbuffer_store_dwordx4 v[28:31], v21, s[8:11], s38 offen{sc}')
    A(f'''s_waitcnt vmcnt(0)
v_lshl_or_b32 v{T3}, v39, 16, v38
s_mov_b32 s38, {MEMB}
s_mov_b64 exec, s[80:81]
buffer_store_dword v{T3}, v{V_MST}, s[8:11], s38 offen{sc}
s_mov_b64 exec, -1
s_branch {tag}_init_done
{tag}_init_g:''')
    for i in range(8):
        A(f's_mov_b32 s38, {GMEMB + i * 65536}\nbuffer_store_dwordx4 v[28:31], v21, s[8:11], s38 offen sc1')
    A(f'{tag}_init_done:')
    A(f'''
v_bfe_u32 v21, v20, 4, 1               ; g>>1
v_bfe_u32 v22, v20, 3, 1               ; g&1
v_bfe_u32 v23, v20, 2, 1               ; R>>1
v_bfe_u32 v24, v20, 1, 1               ; R&1
v_and_b32 v25, 1, v20                  ; p
v_lshrrev_b32 v26, 5, v20              ; T
v_lshlrev_b32 v27, 3, v21
v_lshl_add_u32 v27, v22, 1, v27
v_lshl_add_u32 v27, v23, 2, v27
v_lshl_add_u32 v27, v24, 5, v27
v_lshlrev_b32 v27, 13, v27
v_lshl_add_u32 v27, v26, 5, v27
v_lshl_add_u32 v32, v25, 4, v27
v_lshlrev_b32 v27, 4, v22
v_lshl_add_u32 v27, v21, 2, v27
v_add_u32 v27, v27, v24
v_lshlrev_b32 v27, 10, v27
v_lshl_add_u32 v27, v26, 6, v27
v_lshl_add_u32 v27, v23, 5, v27
v_lshl_add_u32 v33, v25, 4, v27
v_lshlrev_b32 v27, 3, v20
v_add_u32 v34, s52, v27
v_add_u32 v35, s53, v27
s_lshl_b32 s36, s33, 8
s_lshl_b32 s37, s32, 6
s_add_u32 s36, s36, s37                ; h*256+w*64
s_lshl_b32 s37, s32, 1
''')
    for tau in range(8):
        A(f'''s_xor_b32 s38, s37, {tau}
s_and_b32 s39, s38, 3
s_lshl_b32 s39, s39, 20
s_lshr_b32 s38, s38, 2
s_lshl_b32 s38, s38, 19
s_add_u32 s38, s38, s39
s_add_u32 s{40+tau}, s38, s36''')
    A('s_lshl_b32 s36, s33, 17\ns_lshl_b32 s37, s32, 8\ns_add_u32 s36, s36, s37')
    for k in range(4):
        A(f's_xor_b32 s38, s32, {k}\ns_lshl_b32 s38, s38, 15\ns_add_u32 s{48+k}, s38, s36')
    def slot(n): return (n + 5) % 10
    def issue(n):
        u = order[n]; sl = slot(n)
        for mp in range(4):
            if sl < 7: A(f's_add_u32 m0, s52, {sl*4096 + mp*1024}')
            else: A(f's_add_u32 m0, s53, {(sl-7)*4096 + mp*1024}')
            if u[0] == 'o':
                A(f's_add_u32 s38, s{48+u[1]}, {(8*(mp>>1)+2*(mp&1))*1024 + 128*u[2]}')
                A('buffer_load_dwordx4 v33, s[28:31], s38 offen lds')
            else:
                base = {'q': 16, 'k': 20, 'v': 24}[u[0]]
                A(f's_add_u32 s38, s{40+u[1]}, {(16*(mp>>1)+(mp&1))*8192}')
                A(f'buffer_load_dwordx4 v32, s[{base}:{base+3}], s38 offen lds')
    DEPTH = 9
    for n in range(DEPTH): issue(n)
    for n in range(32):
        u = order[n]; sl = slot(n)
        later = min(31, n + DEPTH - 1) - n
        A(f's_waitcnt vmcnt({4*later})')
        if n == 0:
            A(f'''s_mov_b64 exec, 1
v_mov_b32 v36, 1
v_mov_b32 v37, {DBG_CHAINCNT}
buffer_atomic_add v36, v37, s[12:15], 0 offen
s_mov_b64 exec, -1''')
        av = 34 if sl < 7 else 35
        off = (sl if sl < 7 else sl - 7) * 4096
        for T in range(2):
            l = loc[u + (T,)]
            dst = l[1] if l[0] == 'reg' else f'v[{40+8*T}:{47+8*T}]'
            for mp in range(4):
                A(f'ds_read_b64_tr_b16 {sub(dst, 2*mp, 2)}, v{av} offset:{off + mp*1024 + T*512}')
        if loc[u + (0,)][0] == 'lds':
            assert loc[u + (0,)][1] == sl
            A('s_waitcnt lgkmcnt(0)')
            for T in range(2):
                for hf in range(2):
                    A(f'ds_write_b128 v{V_WV}, {vr(40+8*T+4*hf)} offset:{sl*4096 + T*2048 + hf*1024}')
            A('s_waitcnt lgkmcnt(0)')
        if n + DEPTH < 32:
            A('s_waitcnt lgkmcnt(8)')
            issue(n + DEPTH)
    A('s_waitcnt lgkmcnt(0)\ns_barrier')
    wait_dbg(A, f'{tag}_wreg', DBG_CHAINCNT, 128, 36, 37)
    if gate: wait_dbg(A, f'{tag}_wgate', DBG_GATE, 4, 36, 37)
    A('''
s_mov_b64 s[70:71], 0
s_mov_b32 s34, 0
''')
    def pool_load(dst8, frag, tg):
        l = loc[frag]; assert l[0] == 'lds'
        for hf in range(2):
            A.ds(f'ds_read_b128 {vr(dst8 + 4*hf)}, v{V_WV} offset:{l[1]*4096 + l[2]*2048 + hf*1024}', tg)
    def kv_ready(lbl, sreg_step_plus):
        A(f'''s_bitcmp1_b64 s[70:71], s36
s_cbranch_scc0 {lbl}_slow
{lbl}_ok:''')
    def kv_slow(lbl):
        A(f'''{lbl}_slow:
v_lshrrev_b32 v{T0}, 2, v{V_L16}
s_lshl_b32 s37, s33, 8
buffer_load_dword v{T1}, v{T0}, s[8:11], s37 offen sc1
s_waitcnt vmcnt(0)
v_cmp_le_u32 s[70:71], 4, v{T1}
s_nop 1
s_bitcmp1_b64 s[70:71], s36
s_cbranch_scc1 {lbl}_ok
s_sub_u32 s35, s35, 1
s_cbranch_scc0 {lbl}_slow
s_mov_b32 s35, 0
s_branch {lbl}_ok''')
    def kv_dma(par):
        A(f's_mov_b32 m0, s{66+par}')
        for i in range(4):
            A(f'buffer_load_dwordx4 v{V_L16}, s[8:11], s57 offen offset:{i*1024} sc1 lds')
        A(f's_add_u32 s57, s57, {32*16384}')
    poolmap = {('q', 0, 0): P[0], ('q', 0, 1): P[1], ('k', 0, 0): P[2], ('k', 0, 1): P[3], ('v', 0, 0): P[4], ('v', 0, 1): M[6],
               ('o', 0, 0, 0): P[0], ('o', 0, 0, 1): P[1], ('o', 0, 1, 0): P[2], ('o', 0, 1, 1): P[3],
               ('o', 2, 1, 0): P[0], ('o', 2, 1, 1): P[1], ('o', 3, 1, 0): P[2], ('o', 3, 1, 1): P[3]}
    def prep_next():
        z = list(range(AQ0, AV1 + 4, 2))
        for i, f in enumerate([('v', 0, 1), ('v', 0, 0), ('q', 0, 0), ('q', 0, 1), ('k', 0, 0), ('k', 0, 1)]):
            pool_load(poolmap[f], f, 'pi')
            for r in z[2*i:2*i+2]: A(f'v_mov_b64 v[{r}:{r+1}], 0')
    def delay(n):
        while n > 0:
            k = min(n, 16); A(f's_nop {k-1}'); n -= k
    A('s_mov_b32 s36, 0')
    kv_ready(f'{tag}_kv0', None)
    kv_dma(0)
    prep_next()
    A.wait_lds_all()
    slow = [f'{tag}_kv0']
    acc = {('q', 0): AQ0, ('q', 1): AQ1, ('k', 0): AK0, ('k', 1): AK1, ('v', 0): AV0, ('v', 1): AV1}
    def wreg(frag):
        l = loc[frag]
        return l[1] if l[0] == 'reg' else vr(poolmap[frag], 8)
    def SM(m, tau, T): A(f'v_smfmac_f32_16x16x64_bf16 {vr(acc[(m,T)])}, {vr(M[tau])}, {wreg((m,tau,T))}, v{V_IDX}')
    STP = [40,42,44,46,48,50,52,84,86,88,90,92,94,100]
    cur = {'par': 0}
    def stamp(i):
        if stamps and cur['par'] == 0: A(f's_memtime s[{STP[i]}:{STP[i]+1}]')

    def wrap(r): return f's_bitset0_b32 {r}, 15\n' if ring else ''
    def step(par):
        t = f'{tag}{par}'
        KOFF = L_KV + par * 16384; VOFF = KOFF + 8192
        A(f'{t}_top:')
        cur['par'] = par
        stamp(0)
        A(f'''{t}_pollA:
buffer_load_dwordx4 {vr(M[0])}, v{V_L16}, s[8:11], s54 offen sc1
buffer_load_dwordx4 {vr(M[1])}, v{V_L16}, s[8:11], s54 offen offset:1024 sc1
s_waitcnt vmcnt(1)
ds_write_b128 v{V_B0}, {vr(M[0])} offset:{L_MEM}
v_max3_u32 v{T0}, v{M[0]}, v{M[0]+1}, v{M[0]+2}
s_waitcnt vmcnt(0)
ds_write_b128 v{V_B0}, {vr(M[1])} offset:{L_MEM+1024}
v_max3_u32 v{T0}, v{T0}, v{M[0]+3}, v{M[1]}
v_max3_u32 v{T0}, v{T0}, v{M[1]+1}, v{M[1]+2}
v_max_u32 v{T0}, v{T0}, v{M[1]+3}
v_cmp_eq_u32 vcc, -1, v{T0}
s_cbranch_vccnz {t}_reA
{t}_okA:''')
        A.lds_q = []
        stamp(1)
        KX = {(tt, k): P[k] + 4 * (tt - 1) for tt in (1, 2) for k in range(4)}
        QF = [AQ0, AQ1, M[0], M[1]]
        KM = [M[2], M[3], M[4], M[5]]
        VX = [P[4], P[4] + 4]
        def ldKX(tt, k): A.ds(f'ds_read_b128 {vr(KX[(tt,k)])}, v{V_L16} offset:{KOFF + (tt-1)*4096 + k*1024}', 'kx')
        def ldVX(T): A.ds(f'ds_read_b128 {vr(VX[T])}, v{V_B0} offset:{VOFF + T*1024}', 'kx')
        def ldQF(k):
            for hf in range(2): A.ds(f'ds_read_b64_tr_b16 {vr(QF[k]+2*hf,2)}, v{V_TR} offset:{L_OQK + k*2048 + 1024 + hf*256}', f'qf{k}')
        def ldKM(k):
            for hf in range(2): A.ds(f'ds_read_b64_tr_b16 {vr(KM[k]+2*hf,2)}, v{V_TR} offset:{L_OQK + k*2048 + 1536 + hf*256}', f'km{k}')
        def fold(a0, a1, t0):
            ops = []
            for r in range(4): ops.append(f'v_permlane32_swap_b32 v{a0+r}, v{a1+r}')
            for r in range(4): ops.append(f'v_add_f32 v{a0+r}, v{a0+r}, v{a1+r}')
            ops.append(f'v_cvt_pk_bf16_f32 v{t0}, v{a0}, v{a0+1}')
            ops.append(f'v_cvt_pk_bf16_f32 v{t0+1}, v{a0+2}, v{a0+3}')
            return ops
        sms = [('v', 0, 1), ('v', 0, 0), ('q', 0, 0), ('q', 0, 1), ('k', 0, 0), ('k', 0, 1)]
        sms += [(m, 1, T) for m in 'qkv' for T in (0, 1)]
        sms += [(m, tau, T) for m in 'qkv' for tau in range(2, 8) for T in (0, 1)]
        pre = {i: [] for i in range(48)}; post = {i: [] for i in range(48)}
        def b1():
            A('s_waitcnt lgkmcnt(0)\ns_barrier')
            stamp(2)
        post[2].append(b1)
        for tau in range(2, 8):
            post[tau].append(lambda tau=tau: A.ds(f'ds_read_b128 {vr(M[tau])}, v{VB[tau>>1]} offset:{L_MEM + (tau&1)*1024}', f'm{tau}'))
        def rep():
            A(f'''s_cmp_ge_u32 s32, 2
s_cbranch_scc1 {t}_norep
s_mov_b64 exec, s[80:81]
buffer_store_dword v{T3}, v{V_MST}, s[8:11], s56 offen sc1
s_add_u32 s36, s55, 8192
{wrap('s36')}buffer_store_dword v{P[4]}, v{V_MST}, s[8:11], s36 offen{sc}
s_mov_b64 exec, -1
{t}_norep:''')
            A(f's_cmp_eq_u32 s34, {nsteps}\ns_cbranch_scc1 {tag}_done')
        post[8].append(rep)
        post[3].append(lambda: A(f'v_mov_b64 v[{P[4]}:{P[4]+1}], -1'))
        post[4].append(lambda: A(f'v_mov_b64 v[{P[4]+2}:{P[4]+3}], -1'))
        post[11].append(lambda: A(f'buffer_store_dwordx4 {vr(P[4])}, v{V_L16}, s[8:11], s{64+(par^1)} offen{sc}'))
        post[15].append(lambda: A(f'buffer_store_dwordx4 {vr(P[4])}, v{V_L16}, s[8:11], s{64+(par^1)} offen offset:1024{sc}'))
        def kvchk():
            A('s_add_u32 s36, s34, 1')
            kv_ready(f'{t}_kv', None); slow.append(f'{t}_kv')
            A(f's_mov_b32 m0, s{66+(par^1)}')
        post[17].append(kvchk)
        for i in range(4):
            post[19 + 4 * i].append(lambda i=i: A(f'buffer_load_dwordx4 v{V_L16}, s[8:11], s57 offen offset:{i*1024} sc1 lds'))
        post[32].append(lambda: A(f's_add_u32 s57, s57, {0 if nokv else 32*16384}'))
        pre[12].append(lambda: A.wait_lds('m2'))
        pre[14].append(lambda: A.wait_lds('m7'))
        kxs = [(tt, k) for k in range(4) for tt in (1, 2)]
        for i, pos in enumerate([12, 13, 14, 16, 18, 20, 21, 22]): post[pos].append(lambda i=i: ldKX(*kxs[i]))
        post[24].append(lambda: ldVX(0)); post[25].append(lambda: ldVX(1))
        post[11].append(lambda: stamp(3)); post[23].append(lambda: stamp(4)); post[35].append(lambda: stamp(5))
        for i, op in enumerate(fold(AQ0, AQ1, T0)): post[26 + i].append(lambda op=op: A(op))
        post[36].append(lambda: A.ds(f'ds_write_b64 v{V_QW}, v[{T0}:{T1}] offset:{L_OQK+1024}', 'qw'))
        for i, op in enumerate(fold(AK0, AK1, T2)): post[38 + i // 2].append(lambda op=op: A(op))
        post[43].append(lambda: A.ds(f'ds_write_b64 v{V_QW}, v[{T2}:{T3}] offset:{L_OQK+1536}', 'kw'))
        pre[43].append(lambda: (A.wait_lds('qw'), A('s_barrier')))
        for k in range(4): post[44 + k].append(lambda k=k: ldQF(k))
        for i, f in enumerate(sms):
            for fn in pre[i]: fn()
            SM(*f)
            for fn in post[i]: fn()
        stamp(6)
        ST = {1: AK0, 2: AK1, 0: M[6]}
        VM = M[7]; ONES = M[2]; ONE2 = M[3]; PM = M[3] + 2; PB = M[4]; LS = M[5]; O = [AV0, AV1]
        def MF(d, a, b, c): A(f'v_mfma_f32_16x16x32_bf16 {vr(d)}, {vr(a)}, {vr(b)}, {c}')
        def MF16(d, a, b): A(f'v_mfma_f32_16x16x16_bf16 {vr(d)}, {vr(a,2)}, {vr(b,2)}, {vr(d)}')
        def plh(f, hf, tg):
            l = loc[f]
            A.ds(f'ds_read_b128 {vr(poolmap[f] + 4*hf)}, v{V_WV} offset:{l[1]*4096 + l[2]*2048 + hf*1024}', tg)
        o0 = [('o', 0, a >> 1, a & 1) for a in range(4)]
        for k in range(4):
            A.wait_lds(f'qf{k}')
            if k == 0: A('s_barrier')
            MF(ST[1], KX[(1, k)], QF[k], '0' if k == 0 else vr(ST[1]))
            if k < 2: ldKM(2 * k)
            if k == 2: A(f'v_cvt_pk_bf16_f32 v{VM}, v{AV0}, v{AV0+1}\nv_cvt_pk_bf16_f32 v{VM+1}, v{AV0+2}, v{AV0+3}')
            if k == 3: plh(o0[0], 0, 'piii')
            MF(ST[2], KX[(2, k)], QF[k], '0' if k == 0 else vr(ST[2]))
            if k < 2: ldKM(2 * k + 1)
            if k == 2: A(f'v_cvt_pk_bf16_f32 v{VM+2}, v{AV1}, v{AV1+1}\nv_cvt_pk_bf16_f32 v{VM+3}, v{AV1+2}, v{AV1+3}')
            if k == 3: plh(o0[0], 1, 'piii')
        WA = QF
        A.wait_lds('km3')
        for k in range(4):
            MF(ST[0], KM[k], QF[k], '0' if k == 0 else vr(ST[0]))
            if k == 0: A(f'v_mov_b32 v{ONES}, 0x3f803f80\nv_mov_b32 v{ONES+1}, 0x3f803f80')
            if k == 1: A(f'v_mov_b32 v{ONES+2}, 0x3f803f80\nv_mov_b32 v{ONES+3}, 0x3f803f80')
            if k == 2:
                A(f'v_max3_f32 v{T0}, v{ST[1]}, v{ST[1]+1}, v{ST[1]+2}')
                A(f'v_max3_f32 v{T1}, v{ST[1]+3}, v{ST[2]}, v{ST[2]+1}')
        stamp(7)
        def z(a): A(f'v_mov_b64 v[{a}:{a+1}], 0\nv_mov_b64 v[{a+2}:{a+3}], 0')
        A(f'v_max3_f32 v{T0}, v{T0}, v{ST[2]+2}, v{ST[2]+3}')
        plh(o0[1], 0, 'piii')
        A(f'v_cndmask_b32 v{ONE2}, 0, v{ONES}, s[82:83]\nv_cndmask_b32 v{ONE2+1}, 0, v{ONES}, s[82:83]')
        z(WA[0]); z(WA[1])
        A(f'''v_max3_f32 v{T1}, v{T1}, v{ST[0]}, v{ST[0]+1}
v_max3_f32 v{T0}, v{T0}, v{ST[0]+2}, v{ST[0]+3}
v_max_f32 v{T0}, v{T0}, v{T1}
v_mov_b32 v{T1}, v{T0}''')
        z(WA[2])
        A(f'''v_permlane32_swap_b32 v{T0}, v{T1}
v_max_f32 v{T0}, v{T0}, v{T1}
v_mov_b32 v{T1}, v{T0}''')
        z(WA[3])
        A(f'''v_permlane16_swap_b32 v{T0}, v{T1}
v_max_f32 v{T0}, v{T0}, v{T1}
v_mul_f32 v{T0}, s68, v{T0}''')
        rest = [(o0[1], 1), (o0[2], 0), (o0[2], 1), (o0[3], 0), (o0[3], 1)]
        def expo(base):
            for r in range(4): A(f'v_fma_f32 v{base+r}, v{base+r}, s68, -v{T0}')
            for r in range(4):
                A(f'v_exp_f32 v{base+r}, v{base+r}')
                if r & 1 and rest: plh(*rest.pop(0), 'piii')
        expo(ST[1]); expo(ST[2])
        plh(*rest.pop(0), 'piii')
        A(f'''v_cvt_pk_bf16_f32 v{PB}, v{ST[1]}, v{ST[1]+1}
v_cvt_pk_bf16_f32 v{PB+1}, v{ST[1]+2}, v{ST[1]+3}
v_cvt_pk_bf16_f32 v{PB+2}, v{ST[2]}, v{ST[2]+1}
v_cvt_pk_bf16_f32 v{PB+3}, v{ST[2]+2}, v{ST[2]+3}''')
        b = ST[0]
        A(f'v_fma_f32 v{b}, v{b}, s68, -v{T0}\nv_fma_f32 v{b+1}, v{b+1}, s68, -v{T0}')
        MF(LS, ONES, PB, '0')
        A(f'v_fma_f32 v{b+2}, v{b+2}, s68, -v{T0}\nv_fma_f32 v{b+3}, v{b+3}, s68, -v{T0}')
        MF(O[0], VX[0], PB, '0')
        A(f'v_exp_f32 v{b}, v{b}')
        MF(O[1], VX[1], PB, '0')
        A(f'''v_exp_f32 v{b+1}, v{b+1}
v_exp_f32 v{b+2}, v{b+2}
v_exp_f32 v{b+3}, v{b+3}
v_cvt_pk_bf16_f32 v{PM}, v{b}, v{b+1}
v_cvt_pk_bf16_f32 v{PM+1}, v{b+2}, v{b+3}''')
        A('s_waitcnt vmcnt(0)')
        MF16(LS, ONE2, PM); MF16(O[0], VM, PM); MF16(O[1], VM + 2, PM)
        stamp(8)
        OF = [AK0, AK1, M[6], M[4]]
        A(f'v_rcp_f32 v{T0}, v{LS}')
        for T in range(2):
            for r in range(4): A(f'v_mul_f32 v{O[T]+r}, v{O[T]+r}, v{T0}')
            A(f'v_cvt_pk_bf16_f32 v{OF[0]+2*T}, v{O[T]}, v{O[T]+1}\nv_cvt_pk_bf16_f32 v{OF[0]+2*T+1}, v{O[T]+2}, v{O[T]+3}')
        A.ds(f'ds_write_b128 v{V_B0}, {vr(OF[0])} offset:{L_OQK}', 'ow')
        stamp(9)
        def SO(k, a): A(f'v_smfmac_f32_16x16x64_bf16 {vr(WA[a])}, {vr(OF[k])}, {wreg(("o",k,a>>1,a&1))}, v{V_IDX}')
        A.wait_lds('piii')
        SO(0, 0); SO(0, 1); SO(0, 2); SO(0, 3)
        A.wait_lds('ow'); A('s_barrier')
        for k in range(1, 4): A.ds(f'ds_read_b128 {vr(OF[k])}, v{VB[k]} offset:{L_OQK}', f'o{k}')
        late = [(('o', k, 1, T), hf) for k in (2, 3) for T in (0, 1) for hf in (0, 1)]
        plh(*late.pop(0), 'piv'); plh(*late.pop(0), 'piv')
        for k in range(1, 4):
            A.wait_lds(f'o{k}')
            SO(k, 0); plh(*late.pop(0), 'piv' if k == 1 else 'pv')
            SO(k, 1); plh(*late.pop(0), 'piv' if k == 1 else 'pv')
        PK = [AV0, AV1]
        n = 0
        for k in range(1, 4):
            if k == 2: A.wait_lds('piv')
            if k == 3: A.wait_lds('pv')
            for a in (2, 3):
                SO(k, a); n += 1
                if n >= 3:
                    r = n - 3
                    A(f'v_cvt_pk_bf16_f32 v{PK[0]+r}, v{WA[0]+r}, v{WA[1]+r}')
        A(f'buffer_store_dwordx4 {vr(PK[0])}, v{V_PST}, s[8:11], s{58+2*par} offen{sc}')
        for r in range(4): A(f'v_cvt_pk_bf16_f32 v{PK[1]+r}, v{WA[2]+r}, v{WA[3]+r}')
        A(f'buffer_store_dwordx4 {vr(PK[1])}, v{V_PST}, s[8:11], s{58+2*par+1} offen{sc}')
        stamp(10)
        prep_next()
        A(f'''s_add_u32 s54, s54, 8192
{wrap('s54')}s_add_u32 s56, s56, 8192
s_add_u32 s34, s34, 1
s_cmp_ge_u32 s32, 2
s_cbranch_scc1 {t}_nored''')
        R = [M[2], M[3], M[4], M[5]]; SEL = M[0]; RA = M[1]
        for q in range(4): A(f'v_cndmask_b32 v{SEL+q}, 0, v{V_SELV}, s[{72+2*q}:{73+2*q}]')
        delay(dB0)
        if dB1:
            A(f's_cmp_eq_u32 s32, 0\ns_cbranch_scc1 {t}_pollB')
            delay(dB1)
        stamp(11)
        A(f'{t}_pollB:')
        for i in range(4): A(f'buffer_load_dwordx4 {vr(R[i])}, v{V_L16}, s[8:11], s{62+par} offen offset:{i*1024} sc1')
        for i in range(4):
            r = R[i]
            A(f's_waitcnt vmcnt({3-i})')
            A(f'v_mfma_f32_16x16x32_bf16 {vr(RA)}, {vr(SEL)}, {vr(r)}, {"0" if i==0 else vr(RA)}')
            if i == 0: A(f'v_max3_u32 v{T0}, v{r}, v{r+1}, v{r+2}\nv_max_u32 v{T0}, v{T0}, v{r+3}')
            else: A(f'v_max3_u32 v{T0}, v{T0}, v{r}, v{r+1}\nv_max3_u32 v{T0}, v{T0}, v{r+2}, v{r+3}')
        A(f'''v_cmp_eq_u32 vcc, -1, v{T0}
v_add_f32_dpp v{RA}, v{RA}, v{RA} row_ror:8 row_mask:0xf bank_mask:0xf
v_add_f32_dpp v{RA+1}, v{RA+1}, v{RA+1} row_ror:8 row_mask:0xf bank_mask:0xf
v_cvt_pk_bf16_f32 v{T3}, v{RA}, v{RA+1}
s_cbranch_vccnz {t}_reB
{t}_okB:
s_mov_b64 exec, s[80:81]
buffer_store_dword v{T3}, v{V_MST}, s[8:11], s55 offen{sc}
s_mov_b64 exec, -1
{t}_nored:''')
        stamp(12)
        A(f'''s_add_u32 s55, s55, 8192
{wrap('s55')}s_waitcnt lgkmcnt(0)
s_barrier''')
        delay(dA)
        stamp(13)
        A.lds_q = []
    step(0); step(1)
    A(f's_branch {tag}0_top')
    for par in range(2):
        t = f'{tag}{par}'
        for x in 'AB':
            A(f'''{t}_re{x}:
s_sub_u32 s35, s35, 1
s_cbranch_scc0 {t}_poll{x}
s_mov_b32 s35, 0
s_branch {t}_ok{x}''')
    for l in slow: kv_slow(l)
    A(f'{tag}_done:')

def kd(name, vgpr=512, accum=256):
    return f'''
.amdhsa_kernel {name}
  .amdhsa_next_free_vgpr {vgpr}
  .amdhsa_next_free_sgpr 102
  .amdhsa_accum_offset {accum}
  .amdhsa_group_segment_fixed_size 0
  .amdhsa_kernarg_size 112
  .amdhsa_user_sgpr_count 2
  .amdhsa_user_sgpr_kernarg_segment_ptr 1
  .amdhsa_system_sgpr_workgroup_id_x 1
.end_amdhsa_kernel
'''

def common_entry(A):
    A(f'''
s_load_dwordx4 s[4:7], s[0:1], 96
s_getreg_b32 s3, hwreg(HW_REG_XCC_ID)
s_and_b32 s3, s3, 0xf
v_lshrrev_b32 v1, 6, v0
v_readfirstlane_b32 s32, v1
s_waitcnt lgkmcnt(0)''')
    srd(A, 12, 4, 256)
    srd(A, 8, 6, WS_BYTES)

def gen_chain_test(stamps=False, **kw):
    A = Asm()
    A.raw('; @launch kernel=chain_kernel grid=(256,1,1) block=(256,1,1) lds=163840')
    A.raw('.amdgcn_target "amdgcn-amd-amdhsa--gfx950"')
    A.raw('.text\n.globl chain_kernel\n.p2align 8\n.type chain_kernel,@function')
    A.label('chain_kernel')
    A('s_cmp_ge_u32 s2, 256\ns_cbranch_scc1 L_end')
    common_entry(A)
    A('''s_cmp_lg_u32 s3, 0
s_cbranch_scc1 L_end
s_memtime s[96:97]
v_mov_b32 v3, 0
v_mov_b32 v4, 1
s_cmp_lg_u32 s32, 0
s_cbranch_scc1 L_noticket
s_mov_b64 exec, 1
buffer_atomic_add v4, v3, s[12:15], 0 offen sc0
s_waitcnt vmcnt(0)
ds_write_b32 v3, v4
s_waitcnt lgkmcnt(0)
s_mov_b64 exec, -1
L_noticket:
s_barrier
ds_read_b32 v4, v3
s_waitcnt lgkmcnt(0)
v_readfirstlane_b32 s33, v4
s_barrier
s_cmp_ge_u32 s33, 32
s_cbranch_scc1 L_end''')
    emit_chain(A, stamps=stamps, **kw)
    if stamps:
        A('s_waitcnt lgkmcnt(0)')
        for i, r in enumerate([40,42,44,46,48,50,52,84,86,88,90,92,94,100,96,35]): A(f'v_mov_b32 v{20+i}, s{r}')
        A('''s_lshl_b32 s36, s33, 2
s_add_u32 s36, s36, s32
s_lshl_b32 s36, s36, 6
s_add_u32 s36, s36, 0x8000
v_mov_b32 v40, s36
s_mov_b64 exec, 1
buffer_store_dwordx4 v[20:23], v40, s[8:11], 0 offen
buffer_store_dwordx4 v[24:27], v40, s[8:11], 0 offen offset:16
buffer_store_dwordx4 v[28:31], v40, s[8:11], 0 offen offset:32
buffer_store_dwordx4 v[32:35], v40, s[8:11], 0 offen offset:48
s_mov_b64 exec, -1''')
    A('''s_memtime s[98:99]
s_waitcnt lgkmcnt(0)
s_sub_u32 s98, s98, s96
v_mov_b32 v20, s98
v_mov_b32 v21, s35
s_lshl_b32 s36, s33, 2
s_add_u32 s36, s36, s32
s_cmp_ge_u32 s36, 16
s_cbranch_scc1 L_end
s_lshl_b32 s36, s36, 3
s_add_u32 s36, s36, 128
v_mov_b32 v22, s36
s_mov_b64 exec, 1
buffer_store_dwordx2 v[20:21], v22, s[12:15], 0 offen
L_end:
s_endpgm''')
    A.raw('.section .rodata,"a"\n.p2align 6')
    A.raw(kd('chain_kernel'))
    return A.text()

if __name__ == '__main__':
    open('chain.s', 'w').write(gen_chain_test())
    open('chain_st.s', 'w').write(gen_chain_test(stamps=True))
```

```python
import math
from gen import *

W_L16, W_LANE, W_TR, W_VO = 0, 1, 2, 3

def ar(b, n=4): return f'a[{b}:{b+n-1}]'

def worker_setup(A):
    A(f'''v_and_b32 v{W_LANE}, 63, v0
v_lshlrev_b32 v{W_L16}, 4, v{W_LANE}
s_mul_i32 s52, s32, 40960
v_lshlrev_b32 v{W_TR}, 3, v{W_LANE}
v_add_u32 v{W_TR}, s52, v{W_TR}
s_mov_b32 s35, 1000000''')

def load_units(A, units, depth=9):
    n_u = len(units)
    def issue(n):
        sl = n % 10
        for mp, (sr, sb, c) in enumerate(units[n][0]):
            A(f's_add_u32 m0, s52, {sl*4096 + mp*1024}')
            A(f's_add_u32 s38, s{sb}, {c}')
            A(f'buffer_load_dwordx4 v{W_VO}, s[{sr}:{sr+3}], s38 offen lds')
    for n in range(min(depth, n_u)): issue(n)
    for n in range(n_u):
        later = min(n_u - 1, n + depth - 1) - n
        A(f's_waitcnt vmcnt({4*later})')
        for T in range(2):
            for mp in range(4):
                A(f'ds_read_b64_tr_b16 {units[n][1][mp][T]}, v{W_TR} offset:{(n%10)*4096 + mp*1024 + T*512}')
        if n + depth < n_u:
            A('s_waitcnt lgkmcnt(8)')
            issue(n + depth)
    A('s_waitcnt lgkmcnt(0)\ns_barrier')

def lane_bits(A):
    A(f'''v_bfe_u32 v21, v{W_LANE}, 4, 1
v_bfe_u32 v22, v{W_LANE}, 3, 1
v_bfe_u32 v23, v{W_LANE}, 2, 1
v_bfe_u32 v24, v{W_LANE}, 1, 1
v_and_b32 v25, 1, v{W_LANE}
v_lshrrev_b32 v26, 5, v{W_LANE}''')

def voff_dmap(A, stride):
    lane_bits(A)
    A(f'''v_lshlrev_b32 v27, 3, v21
v_lshl_add_u32 v27, v22, 1, v27
v_lshl_add_u32 v27, v23, 2, v27
v_lshl_add_u32 v27, v24, 5, v27
v_mul_u32_u24 v27, {stride}, v27
v_lshl_add_u32 v27, v26, 5, v27
v_lshl_add_u32 v{W_VO}, v25, 4, v27''')

def drow(t, mp): return 128 * (t & 3) + 64 * (t >> 2) + 16 * (mp >> 1) + (mp & 1)

def atomic_flag(A, soff, vtmp):
    A(f'''s_mov_b64 exec, 1
v_mov_b32 v{vtmp}, 1
v_mov_b32 v{vtmp+1}, 0
buffer_atomic_add v{vtmp}, v{vtmp+1}, s[8:11], {soff} offen sc1
s_mov_b64 exec, -1''')

def emit_init(A):
    A(f'''v_mov_b32 v16, 0
v_mov_b32 v17, 0
v_mov_b32 v18, 0
v_mov_b32 v19, 0
s_lshl_b32 s36, s32, 13
s_add_u32 s37, s36, 4096''')
    for i in range(8):
        A(f'buffer_store_dwordx4 v[16:19], v{W_L16}, s[8:11], s{36 + (i>>2)} offen offset:{(i&3)*1024} sc1')
    A(f'''s_waitcnt vmcnt(0)
s_mov_b64 exec, 1
v_mov_b32 v16, 1
v_mov_b32 v17, {DBG_GATE}
buffer_atomic_add v16, v17, s[12:15], 0 offen sc1
s_mov_b64 exec, -1''')

def emit_ln(A, sseg, gate=True):
    A('s_load_dwordx2 s[4:5], s[0:1], 0\ns_waitcnt lgkmcnt(0)')
    srd(A, 16, 4, 0x200000)
    RAW = 16; X = 48
    A(f'''v_lshlrev_b32 v4, 7, v{W_LANE}
s_lshl_b32 s36, s{sseg}, 15
s_lshl_b32 s37, s32, 13
s_add_u32 s36, s36, s37''')
    for i in range(8): A(f'buffer_load_dwordx4 {vr(RAW+4*i)}, v4, s[16:19], s36 offen offset:{16*i}')
    A(f'''v_bfe_u32 v5, v{W_LANE}, 1, 2
v_and_b32 v6, 1, v{W_LANE}
v_lshl_add_u32 v5, v6, 2, v5
v_lshlrev_b32 v5, 11, v5
v_lshrrev_b32 v6, 3, v{W_LANE}
v_lshl_add_u32 v5, v6, 4, v5
s_lshl_b32 s36, s{sseg}, 15
s_lshr_b32 s37, s32, 1
s_lshl_b32 s37, s37, 14
s_add_u32 s36, s36, s37
s_and_b32 s37, s32, 1
s_lshl_b32 s37, s37, 7
s_add_u32 s36, s36, s37
s_add_u32 s39, s36, {XFB}
s_mov_b32 s38, 0xffff0000''')
    for i in range(8):
        A(f's_waitcnt vmcnt({7-i})')
        for q in range(4):
            d = 4 * i + q
            A(f'v_lshlrev_b32 v{X+2*d}, 16, v{RAW+d}\nv_and_b32 v{X+2*d+1}, s38, v{RAW+d}')
    def red8(r):
        A(f'''v_add_f32_dpp v{r}, v{r}, v{r} quad_perm:[1,0,3,2] row_mask:0xf bank_mask:0xf
v_add_f32_dpp v{r}, v{r}, v{r} quad_perm:[2,3,0,1] row_mask:0xf bank_mask:0xf
v_add_f32_dpp v{r}, v{r}, v{r} row_half_mirror row_mask:0xf bank_mask:0xf''')
    for a in range(4): A(f'v_add_f32 v{8+a}, v{X+a}, v{X+4+a}')
    for c in range(8, 64): A(f'v_add_f32 v{8+(c&3)}, v{8+(c&3)}, v{X+c}')
    A('v_add_f32 v8, v8, v9\nv_add_f32 v10, v10, v11\nv_add_f32 v8, v8, v10')
    red8(8)
    A(f'v_mul_f32 v7, {f32bits(1/512)}, v8')
    for a in range(4): A(f'v_mov_b32 v{8+a}, 0')
    for c in range(64):
        A(f'v_sub_f32 v{12+(c&3)}, v{X+c}, v7\nv_fmac_f32 v{8+(c&3)}, v{12+(c&3)}, v{12+(c&3)}')
    A('v_add_f32 v8, v8, v9\nv_add_f32 v10, v10, v11\nv_add_f32 v8, v8, v10')
    red8(8)
    A(f'''v_mul_f32 v8, {f32bits(1/512)}, v8
v_cvt_pk_bf16_f32 v9, v7, v8
v_lshlrev_b32 v7, 16, v9
v_and_b32 v8, s38, v9
v_add_f32 v8, {f32bits(1e-5)}, v8
v_cvt_pk_bf16_f32 v8, v8, v8
v_and_b32 v8, s38, v8
v_sqrt_f32 v8, v8
v_cvt_pk_bf16_f32 v8, v8, v8
v_and_b32 v8, s38, v8
v_rcp_f32 v8, v8''')
    for hi in range(2):
        for g in range(4):
            b = 16 * hi + 8 * (g >> 1) + 2 * (g & 1)
            o = RAW + 4 * (4 * hi + g)
            for q, c in enumerate((b, b + 4, b + 1, b + 5)):
                lo, hh = X + c, X + c + 32
                A(f'''v_sub_f32 v{lo}, v{lo}, v7
v_sub_f32 v{hh}, v{hh}, v7
v_cvt_pk_bf16_f32 v{hh}, v{lo}, v{hh}
v_lshlrev_b32 v{lo}, 16, v{hh}
v_and_b32 v{hh}, s38, v{hh}
v_mul_f32 v{lo}, v{lo}, v8
v_mul_f32 v{hh}, v{hh}, v8
v_cvt_pk_bf16_f32 v{o+q}, v{lo}, v{hh}''')
            A(f'buffer_store_dwordx4 {vr(o)}, v5, s[8:11], s39 offen offset:{hi*1024+g*256} sc1')
    if gate: wait_dbg(A, 'ln_gate', DBG_GATE, 4, 8, 9)
    else: A('s_waitcnt vmcnt(0)')
    A(f's_lshl_b32 s36, s{sseg}, 7\ns_add_u32 s36, s36, {FLAGS+F_XN}')
    atomic_flag(A, 's36', 8)

def wait_all_xn(A, lbl, gate=True):
    if gate: wait_dbg(A, f'{lbl}_gate', DBG_GATE, 4, 8, 9)
    A(f'''v_lshlrev_b32 v8, 7, v{W_LANE}
s_mov_b32 s37, {FLAGS+F_XN}
{lbl}:
buffer_load_dword v9, v8, s[8:11], s37 offen sc1
s_waitcnt vmcnt(0)
v_cmp_gt_u32 vcc, 4, v9
s_cbranch_vccz {lbl}_ok
s_sleep 2
s_sub_u32 s35, s35, 1
s_cbranch_scc0 {lbl}
s_mov_b32 s35, 0
{lbl}_ok:''')

def xf_loop(A, tag, stride, nst, mfmas, epilogue, flag_soff, active=None):
    XV = 4; XA = [[8, 12], [16, 20]]
    def dma(seg):
        A(f'''s_min_u32 s36, s{seg}, 63
s_lshl_b32 s36, s36, 15
s_add_u32 s36, s36, s42
s_add_u32 s37, s36, 4096
s_mov_b32 m0, s43''')
        for i in range(4): A(f'buffer_load_dwordx4 v{W_L16}, s[8:11], s36 offen offset:{i*1024} sc1 lds')
        A('s_add_u32 m0, s43, 4096')
        for i in range(4): A(f'buffer_load_dwordx4 v{W_L16}, s[8:11], s37 offen offset:{i*1024} sc1 lds')
        A('s_xor_b32 s43, s43, 0x8000')
    A(f'''s_lshl_b32 s43, s32, 13
s_add_u32 s42, s43, {XFB}
v_mov_b32 v{XV}, v{W_L16}
s_mov_b32 s44, -1''')
    dma(40)
    A(f'''s_waitcnt vmcnt(0)
{tag}_top:
s_barrier
s_add_u32 s41, s40, {stride}''')
    dma(41)
    if active: A(f's_cmp_eq_u32 s{active}, 0\ns_cbranch_scc1 {tag}_skip')
    def rd(ks):
        for tt in range(2): A.ds(f'ds_read_b128 {vr(XA[ks&1][tt])}, v{XV} offset:{tt*16384 + ks*1024}', f'x{ks}')
    A.lds_q = []
    rd(0)
    for ks in range(16):
        A.wait_lds(f'x{ks}')
        if ks < 15: rd(ks + 1)
        mfmas(ks, XA[ks & 1])
        if ks == 13:
            A(f's_waitcnt vmcnt(0)\ns_cmp_lt_i32 s44, 0\ns_cbranch_scc1 {tag}_noflag')
            flag_soff(44); atomic_flag(A, 's36', 6)
            A(f'{tag}_noflag:')
    epilogue()
    A(f'''s_mov_b32 s44, s40
{tag}_next:
v_xor_b32 v{XV}, 0x8000, v{XV}
s_mov_b32 s40, s41
s_cmp_lt_u32 s40, 64
s_cbranch_scc1 {tag}_top
s_waitcnt vmcnt(0)''')
    if active: A(f's_cmp_eq_u32 s{active}, 0\ns_cbranch_scc1 {tag}_end')
    flag_soff(44); atomic_flag(A, 's36', 6)
    if active:
        A(f's_branch {tag}_end\n{tag}_skip:\ns_waitcnt vmcnt(0)\ns_branch {tag}_next')
    A(f'{tag}_end:\ns_barrier')

def MFd(A, d, a, b, c): A(f'v_mfma_f32_16x16x32_bf16 {d}, {a}, {b}, {c}')

def qkv_frag(m, t, T):
    i = 2 * t + T
    return {'k': f'a[{8*i}:{8*i+7}]', 'v': f'a[{128+8*i}:{128+8*i+7}]', 'q': f'v[{128+8*i}:{128+8*i+7}]'}[m]

def emit_qkv(A, gate=True):
    A('''s_load_dwordx4 s[16:19], s[0:1], 16
s_load_dwordx2 s[24:25], s[0:1], 32
s_waitcnt lgkmcnt(0)
s_mov_b32 s20, s18
s_and_b32 s21, s19, 0xffff
s_mov_b32 s22, 0x400000
s_mov_b32 s23, 0x20000
s_and_b32 s17, s17, 0xffff
s_mov_b32 s18, 0x400000
s_mov_b32 s19, 0x20000
s_and_b32 s25, s25, 0xffff
s_mov_b32 s26, 0x400000
s_mov_b32 s27, 0x20000
s_lshl_b32 s45, s33, 8
s_lshl_b32 s37, s32, 6
s_add_u32 s45, s45, s37''')
    voff_dmap(A, 8192)
    units = []
    for t in range(8):
        for m in 'kvq':
            sr = {'q': 16, 'k': 20, 'v': 24}[m]
            units.append(([(sr, 45, drow(t, mp) * 8192) for mp in range(4)],
                          [[sub(qkv_frag(m, t, T), 2 * mp, 2) for T in range(2)] for mp in range(4)]))
    load_units(A, units)
    wait_all_xn(A, 'qkv_xn', gate)
    ACC = 24; PKB = 72
    def acc(m, T, tt): return ACC + 4 * ('qkv'.index(m) * 4 + T * 2 + tt)
    def mfmas(ks, XA):
        for m in 'qkv':
            for T in range(2):
                w = sub(qkv_frag(m, ks >> 1, T), 4 * (ks & 1), 4)
                for tt in range(2):
                    d = vr(acc(m, T, tt)); c = '0' if ks == 0 else d
                    if m == 'v': MFd(A, d, vr(XA[tt]), w, c)
                    else: MFd(A, d, w, vr(XA[tt]), c)
    def epi():
        A(f'''s_lshl_b32 s36, s40, 5
s_add_u32 s36, s36, s33
s_lshl_b32 s37, s36, 14
s_lshl_b32 s36, s36, 13
s_lshl_b32 s38, s32, 10
s_add_u32 s36, s36, s38
s_add_u32 s36, s36, {QFB}
s_add_u32 s46, s36, 4096
s_add_u32 s39, s37, s38
s_add_u32 s39, s39, {KVB}
s_add_u32 s47, s39, 4096
s_add_u32 s37, s39, s38
s_add_u32 s37, s37, 8192''')
        def pk(o, a, b):
            A(f'''v_cvt_pk_bf16_f32 v{o}, v{a}, v{a+1}
v_cvt_pk_bf16_f32 v{o+1}, v{a+2}, v{a+3}
v_cvt_pk_bf16_f32 v{o+2}, v{b}, v{b+1}
v_cvt_pk_bf16_f32 v{o+3}, v{b+2}, v{b+3}''')
        n = 0
        for m, so in (('q', (36, 46)), ('k', (39, 47))):
            for tt in range(2):
                o = PKB + 4 * n; n += 1
                pk(o, acc(m, 0, tt), acc(m, 1, tt))
                A(f'buffer_store_dwordx4 {vr(o)}, v{W_L16}, s[8:11], s{so[tt]} offen sc1')
        for T in range(2):
            o = PKB + 4 * n; n += 1
            pk(o, acc('v', T, 0), acc('v', T, 1))
            A(f'buffer_store_dwordx4 {vr(o)}, v{W_L16}, s[8:11], s37 offen offset:{T*1024} sc1')
    def fl(seg): A(f's_lshl_b32 s36, s33, 8\ns_lshl_b32 s37, s{seg}, 2\ns_add_u32 s36, s36, s37')
    xf_loop(A, 'qkv', 7, 6, mfmas, epi, fl)

def emit_gu(A, nsets):
    A('''s_load_dwordx4 s[16:19], s[0:1], 64
s_waitcnt lgkmcnt(0)
s_mov_b32 s20, s18
s_and_b32 s21, s19, 0xffff
s_mov_b32 s22, 1409024
s_mov_b32 s23, 0x20000
s_and_b32 s17, s17, 0xffff
s_mov_b32 s18, 1409024
s_mov_b32 s19, 0x20000
s_lshl_b32 s49, s48, 2
s_add_u32 s49, s49, s32
s_cmp_lt_u32 s49, 43
s_cselect_b32 s50, 1, 0
s_min_u32 s49, s49, 42
s_lshl_b32 s45, s49, 6''')
    voff_dmap(A, 2752)
    def frag(m, t, T):
        i = 2 * t + T; b = 128 * 'gu'.index(m) + 8 * i
        return f'a[{b}:{b+7}]'
    units = []
    for t in range(8):
        for m in 'gu':
            units.append(([({'g': 16, 'u': 20}[m], 45, drow(t, mp) * 2752) for mp in range(4)],
                          [[sub(frag(m, t, T), 2 * mp, 2) for T in range(2)] for mp in range(4)]))
    load_units(A, units)
    ACC = 24; PKB = 72
    def acc(m, T, tt): return ACC + 4 * ('gu'.index(m) * 4 + T * 2 + tt)
    def mfmas(ks, XA):
        for m in 'gu':
            for T in range(2):
                w = sub(frag(m, ks >> 1, T), 4 * (ks & 1), 4)
                for tt in range(2):
                    d = vr(acc(m, T, tt)); c = '0' if ks == 0 else d
                    MFd(A, d, w, vr(XA[tt]), c)
    c1 = -2 * math.sqrt(2 / math.pi) * math.log2(math.e); c2 = c1 * 0.044715
    def epi():
        A(f'''s_mul_i32 s36, s40, {2*44*1024}
s_lshl_b32 s37, s49, 10
s_add_u32 s36, s36, s37
s_add_u32 s36, s36, {HFB}
s_add_u32 s37, s36, {44*1024}
s_mov_b32 s38, {f32bits(c2)}
v_mov_b32 v56, {f32bits(c1)}''')
        for tt in range(2):
            for T in range(2):
                g = acc('g', T, tt); u = acc('u', T, tt); t = 60
                for r in range(4): A(f'v_mul_f32 v{t+r}, v{g+r}, v{g+r}')
                for r in range(4): A(f'v_fma_f32 v{t+r}, v{t+r}, s38, v56')
                for r in range(4): A(f'v_mul_f32 v{t+r}, v{t+r}, v{g+r}')
                for r in range(4): A(f'v_exp_f32 v{t+r}, v{t+r}')
                for r in range(4): A(f'v_mul_f32 v{g+r}, v{g+r}, v{u+r}')
                for r in range(4): A(f'v_add_f32 v{t+r}, 1.0, v{t+r}')
                for r in range(4): A(f'v_rcp_f32 v{t+r}, v{t+r}')
                for r in range(4): A(f'v_mul_f32 v{g+r}, v{g+r}, v{t+r}')
                o = PKB + 4 * tt + 2 * T
                A(f'v_cvt_pk_bf16_f32 v{o}, v{g}, v{g+1}\nv_cvt_pk_bf16_f32 v{o+1}, v{g+2}, v{g+3}')
            A(f'buffer_store_dwordx4 {vr(PKB+4*tt)}, v{W_L16}, s[8:11], s{36+tt} offen sc1')
    def fl(seg): A(f's_lshl_b32 s36, s{seg}, 7\ns_add_u32 s36, s36, {FLAGS+F_H}')
    xf_loop(A, 'gu', nsets, 2, mfmas, epi, fl, active=50)

def emit_att(A, stride):
    IDX, QW, TRA, B0, TMP = 4, 5, 6, 7, 8
    MF_ = [16 + 4 * i for i in range(8)]
    AK = [48, 52]; AV = [56, 60]
    KX = lambda tt, k: 64 + 16 * tt + 4 * k
    QX = lambda tt, k: 96 + 16 * tt + 4 * k
    VX = [128, 132]; KM = [136 + 4 * k for k in range(4)]
    S = {(0, 0): 152, (0, 1): 156, (1, 0): 160, (1, 1): 164, (1, 2): 168}
    PB = [172, 176]; PM = [180, 182]; VM = 184; ONES = 188; ONE2 = 192; NEG = 194
    LS = [196, 200]; O = lambda tt, T: 204 + 8 * tt + 4 * T
    OFR = [220, 224]
    L_M = 0; L_K = 8192
    A(f'''v_and_b32 v21, 8, v{W_LANE}
v_cmp_eq_u32 vcc, 0, v21
v_mov_b32 v22, 0xeeee
v_mov_b32 v23, 0x4444
v_cndmask_b32 v{IDX}, v22, v23, vcc
v_lshrrev_b32 v21, 5, v{W_LANE}
v_and_b32 v22, 15, v{W_LANE}
v_lshl_add_u32 v21, v21, 4, v22
v_lshlrev_b32 v21, 4, v21
v_bfe_u32 v22, v{W_LANE}, 4, 1
v_lshl_add_u32 v21, v22, 3, v21
s_lshl_b32 s38, s32, 9
v_add_u32 v{QW}, s38, v21
v_lshrrev_b32 v21, 2, v{W_LANE}
v_lshlrev_b32 v21, 4, v21
v_and_b32 v22, 1, v{W_LANE}
v_lshl_add_u32 v{TRA}, v22, 3, v21
s_lshl_b32 s53, s32, 11
v_add_u32 v{B0}, s53, v{W_L16}
s_mov_b32 s68, {f32bits(128 ** -0.5 * math.log2(math.e))}
v_mov_b32 v{ONES}, 0x3f803f80
v_mov_b32 v{ONES+1}, 0x3f803f80
v_mov_b32 v{ONES+2}, 0x3f803f80
v_mov_b32 v{ONES+3}, 0x3f803f80
s_mov_b32 s82, -1
s_mov_b32 s83, 0
v_cndmask_b32 v{ONE2}, 0, v{ONES}, s[82:83]
v_cndmask_b32 v{ONE2+1}, 0, v{ONES}, s[82:83]
v_mov_b32 v{NEG}, 0xf149f2ca
v_mov_b32 v{PB[0]+2}, 0
v_mov_b32 v{PB[0]+3}, 0
v_lshrrev_b32 v21, 4, v{W_LANE}
v_lshlrev_b32 v21, 2, v21
v_and_b32 v22, 15, v{W_LANE}''')
    for r in range(4):
        A(f'v_add_u32 v23, {r}, v21\nv_cmp_le_u32 s[{72+2*r}:{73+2*r}], v23, v22')
    wait_dbg(A, 'att_wreg', DBG_CHAINCNT, 128, 8, 9)
    A(f'''att_top:
s_lshl_b32 s37, s33, 8
s_lshl_b32 s38, s40, 2
s_add_u32 s37, s37, s38
v_mov_b32 v9, 0''')
    wait_cnt(A, 'att_kv', 8, 9, 's37', 4, 8, sleep=2)
    A(f'''s_lshl_b32 s36, s40, 5
s_add_u32 s36, s36, s33
s_lshl_b32 s37, s36, 14
s_lshl_b32 s36, s36, 13
s_add_u32 s36, s36, {QFB}
s_add_u32 s38, s36, 4096
s_add_u32 s37, s37, {KVB}
s_add_u32 s39, s37, 4096
s_add_u32 s46, s37, 8192''')
    for tt in range(2):
        for k in range(4):
            A(f'buffer_load_dwordx4 {vr(KX(tt,k))}, v{W_L16}, s[8:11], s{(37,39)[tt]} offen offset:{k*1024} sc1')
            A(f'buffer_load_dwordx4 {vr(QX(tt,k))}, v{W_L16}, s[8:11], s{(36,38)[tt]} offen offset:{k*1024} sc1')
    for T in range(2): A(f'buffer_load_dwordx4 {vr(VX[T])}, v{B0}, s[8:11], s46 offen offset:{T*1024} sc1')
    for a in AK + AV: A(f'v_mov_b64 v[{a}:{a+1}], 0\nv_mov_b64 v[{a+2}:{a+3}], 0')
    A('s_waitcnt vmcnt(0)')
    for k in range(4):
        for key in ((0, 1), (1, 1), (1, 2)):
            d = vr(S[key]); MFd(A, d, vr(KX(key[1] - 1, k)), vr(QX(key[0], k)), '0' if k == 0 else d)
    A(f'''s_lshl_b32 s47, s40, 13
s_add_u32 s47, s47, {GMEMB}
att_poll:
buffer_load_dwordx4 {vr(MF_[0])}, v{B0}, s[8:11], s47 offen sc1
buffer_load_dwordx4 {vr(MF_[1])}, v{B0}, s[8:11], s47 offen offset:1024 sc1
s_waitcnt vmcnt(0)
v_max3_u32 v8, v16, v17, v18
v_max3_u32 v8, v8, v19, v20
v_max3_u32 v8, v8, v21, v22
v_max_u32 v8, v8, v23
v_cmp_eq_u32 vcc, -1, v8
s_cbranch_vccz att_ok
s_sleep 1
s_sub_u32 s35, s35, 1
s_cbranch_scc0 att_poll
s_mov_b32 s35, 0
att_ok:
ds_write_b128 v{B0}, {vr(MF_[0])} offset:{L_M}
ds_write_b128 v{B0}, {vr(MF_[1])} offset:{L_M+1024}
s_waitcnt lgkmcnt(0)
s_barrier''')
    A.lds_q = []
    for t in range(8): A.ds(f'ds_read_b128 {vr(MF_[t])}, v{W_L16} offset:{L_M + t*1024}', f'm{t}')
    def SM(acc, t, m, T): A(f'v_smfmac_f32_16x16x64_bf16 {vr(acc)}, {vr(MF_[t])}, {qkv_frag(m,t,T)}, v{IDX}')
    for t in range(8):
        A.wait_lds(f'm{t}')
        SM(AK[0], t, 'k', 0); SM(AK[1], t, 'k', 1)
    fold = [f'v_permlane32_swap_b32 v{AK[0]+r}, v{AK[1]+r}' for r in range(4)] + [f'v_add_f32 v{AK[0]+r}, v{AK[0]+r}, v{AK[1]+r}' for r in range(4)]
    fold += [f'v_cvt_pk_bf16_f32 v8, v{AK[0]}, v{AK[0]+1}', f'v_cvt_pk_bf16_f32 v9, v{AK[0]+2}, v{AK[0]+3}']
    n = 0
    for t in range(8):
        for T in range(2):
            SM(AV[T], t, 'v', T); n += 1
            if 3 <= n <= 7: A(fold[2*(n-3)]); A(fold[2*(n-3)+1])
            if n == 8: A.ds(f'ds_write_b64 v{QW}, v[8:9] offset:{L_K}', 'kw')
            if n == 12:
                A.wait_lds('kw'); A('s_barrier')
            if n >= 13:
                k = n - 13
                for hf in range(2): A.ds(f'ds_read_b64_tr_b16 {vr(KM[k]+2*hf,2)}, v{TRA} offset:{L_K + k*512 + hf*256}', f'km{k}')
    for key in ((0, 1), (1, 2)):
        for r in range(4): A(f'v_cndmask_b32 v{S[key]+r}, v{NEG}, v{S[key]+r}, s[{72+2*r}:{73+2*r}]')
    for k in range(4):
        A.wait_lds(f'km{k}')
        for tt in range(2):
            d = vr(S[(tt, 0)]); MFd(A, d, vr(KM[k]), vr(QX(tt, k)), '0' if k == 0 else d)
    for T in range(2):
        A(f'v_cvt_pk_bf16_f32 v{VM+2*T}, v{AV[T]}, v{AV[T]+1}\nv_cvt_pk_bf16_f32 v{VM+2*T+1}, v{AV[T]+2}, v{AV[T]+3}')
    A(f'''s_lshl_b32 s36, s40, 18
s_lshl_b32 s37, s33, 12
s_add_u32 s36, s36, s37
s_lshl_b32 s37, s32, 10
s_add_u32 s36, s36, s37
s_add_u32 s36, s36, {OFB}
s_add_u32 s37, s36, 0x20000''')
    for tt in range(2):
        regs = [S[k] + r for k in S if k[0] == tt for r in range(4)]
        m = 8 + 2 * tt; t1 = m + 1
        A(f'v_max3_f32 v{m}, v{regs[0]}, v{regs[1]}, v{regs[2]}')
        i = 3
        while i + 1 < len(regs):
            A(f'v_max3_f32 v{m}, v{m}, v{regs[i]}, v{regs[i+1]}'); i += 2
        A(f'''v_max_f32 v{m}, v{m}, v{regs[i]}
v_mov_b32 v{t1}, v{m}
v_permlane32_swap_b32 v{m}, v{t1}
v_max_f32 v{m}, v{m}, v{t1}
v_mov_b32 v{t1}, v{m}
v_permlane16_swap_b32 v{m}, v{t1}
v_max_f32 v{m}, v{m}, v{t1}
v_mul_f32 v{m}, s68, v{m}''')
        for r in regs: A(f'v_fma_f32 v{r}, v{r}, s68, -v{m}')
        for r in regs: A(f'v_exp_f32 v{r}, v{r}')
        for key in S:
            if key[0] != tt: continue
            o = PM[tt] if key[1] == 0 else PB[tt] + 2 * (key[1] - 1)
            A(f'v_cvt_pk_bf16_f32 v{o}, v{S[key]}, v{S[key]+1}\nv_cvt_pk_bf16_f32 v{o+1}, v{S[key]+2}, v{S[key]+3}')
        MFd(A, vr(LS[tt]), vr(ONES), vr(PB[tt]), '0')
        for T in range(2): MFd(A, vr(O(tt, T)), vr(VX[T]), vr(PB[tt]), '0')
        A(f'v_mfma_f32_16x16x16_bf16 {vr(LS[tt])}, {vr(ONE2,2)}, {vr(PM[tt],2)}, {vr(LS[tt])}')
        for T in range(2): A(f'v_mfma_f32_16x16x16_bf16 {vr(O(tt,T))}, {vr(VM+2*T,2)}, {vr(PM[tt],2)}, {vr(O(tt,T))}')
    for tt in range(2):
        A(f'v_rcp_f32 v12, v{LS[tt]}')
        for T in range(2):
            o = O(tt, T)
            for r in range(4): A(f'v_mul_f32 v{o+r}, v{o+r}, v12')
            A(f'v_cvt_pk_bf16_f32 v{OFR[tt]+2*T}, v{o}, v{o+1}\nv_cvt_pk_bf16_f32 v{OFR[tt]+2*T+1}, v{o+2}, v{o+3}')
        A(f'buffer_store_dwordx4 {vr(OFR[tt])}, v{W_L16}, s[8:11], s{36+tt} offen sc1')
    A(f'''s_waitcnt vmcnt(0)
s_barrier
s_cmp_lg_u32 s32, 0
s_cbranch_scc1 att_nf
s_lshl_b32 s36, s40, 7
s_add_u32 s36, s36, {FLAGS+F_O}''')
    atomic_flag(A, 's36', 8)
    A(f'''att_nf:
s_add_u32 s40, s40, {stride}
s_cmp_lt_u32 s40, 64
s_cbranch_scc1 att_top''')

def emit_out(A, nsets):
    A('''s_load_dwordx2 s[4:5], s[0:1], 40
s_load_dwordx4 s[20:23], s[0:1], 80
s_load_dwordx2 s[6:7], s[0:1], 0
s_waitcnt lgkmcnt(0)''')
    srd(A, 16, 4, 0x400000)
    srd(A, 24, 22, 0x200000)
    A('s_and_b32 s21, s21, 0xffff\ns_mov_b32 s22, 1409024\ns_mov_b32 s23, 0x20000')
    srd(A, 28, 6, 0x200000)
    A(f'''v_bfe_u32 v21, v{W_LANE}, 1, 4
v_lshlrev_b32 v21, 10, v21
v_lshrrev_b32 v22, 5, v{W_LANE}
v_lshl_add_u32 v21, v22, 5, v21
v_and_b32 v22, 1, v{W_LANE}
v_lshl_add_u32 v{W_VO}, v22, 4, v21
s_lshl_b32 s37, s48, 6
s_lshl_b32 s45, s32, 20
s_add_u32 s45, s45, s37
s_lshl_b32 s46, s32, 15
s_add_u32 s46, s46, s37''')
    def wo(ks, T): return ar(8 * ks + 4 * T)
    def wd(i, T): return vr(168 + 8 * i + 4 * T)
    units = []
    for u in range(6):
        dm = []; de = []
        for mp in range(4):
            i = 2 * u + (mp >> 1); m2 = mp & 1
            dm.append((20, 46, (128 * i + 16 * m2) * 1024))
            de.append([sub(wd(i, T) if i < 11 else vr(32 + 4 * T), 2 * m2, 2) for T in range(2)])
        units.append((dm, de))
    for u in range(16):
        dm = []; de = []
        for mp in range(4):
            ks = 2 * u + (mp >> 1); m2 = mp & 1
            dm.append((16, 45, (32 * ks + 16 * m2) * 1024))
            de.append([sub(wo(ks, T), 2 * m2, 2) for T in range(2)])
        units.append((dm, de))
    load_units(A, units)
    ACC = [16, 20]; XR = 24; BF = 32; RW = 4; OA = 5
    A(f'''s_lshl_b32 s36, s32, 11
v_add_u32 v{RW}, s36, v{W_L16}
v_and_b32 v21, 15, v{W_LANE}
v_lshlrev_b32 v21, 10, v21
v_lshrrev_b32 v22, 4, v{W_LANE}
v_lshl_add_u32 v21, v22, 3, v21
s_lshl_b32 s36, s48, 6
s_lshl_b32 s37, s32, 5
s_add_u32 s36, s36, s37
v_add_u32 v{OA}, s36, v21
s_lshl_b32 s36, s32, 10
v_add_u32 v6, s36, v{W_L16}
v_mov_b32 v9, 0
out_top:
s_lshr_b32 s41, s40, 1
s_lshl_b32 s42, s41, 7
s_cmp_lg_u32 s32, 0
s_cbranch_scc1 out_h_ok
s_add_u32 s37, s42, {FLAGS+F_H}''')
    wait_cnt(A, 'out_h', 8, 9, 's37', 43, 8, sleep=2)
    A(f'''s_barrier
s_mul_i32 s43, s40, {44*1024}
s_add_u32 s43, s43, {HFB}''')
    for i in range(11):
        A(f's_add_u32 s36, s32, {4*i}\ns_min_u32 s36, s36, 42\ns_lshl_b32 s36, s36, 10\ns_add_u32 s36, s36, s43')
        A(f'buffer_load_dwordx4 {vr(BF+4*i)}, v{W_L16}, s[8:11], s36 offen sc1')
    A(f's_lshl_b32 s44, s40, 14\nbuffer_load_dwordx2 {vr(XR,2)}, v{OA}, s[28:31], s44 offen')
    for i in range(11):
        A(f's_waitcnt vmcnt({11-i})')
        for T in range(2): MFd(A, vr(ACC[T]), wd(i, T), vr(BF + 4 * i), '0' if i == 0 else vr(ACC[T]))
    A(f'''s_cmp_lg_u32 s32, 0
s_cbranch_scc1 out_o_ok
s_add_u32 s37, s42, {FLAGS+F_O}''')
    wait_cnt(A, 'out_o', 8, 9, 's37', 32, 8, sleep=1)
    A(f'''s_barrier
s_lshl_b32 s36, s40, 17
s_lshl_b32 s37, s32, 15
s_add_u32 s36, s36, s37
s_add_u32 s36, s36, {OFB}''')
    for i in range(32):
        A(f'buffer_load_dwordx4 {vr(BF+4*i)}, v{W_L16}, s[8:11], s36 offen offset:{(i&3)*1024} sc1')
        if i & 3 == 3: A('s_add_u32 s36, s36, 4096')
    for i in range(32):
        A(f's_waitcnt vmcnt({31-i})')
        for T in range(2): MFd(A, vr(ACC[T]), wo(i, T), vr(BF + 4 * i), vr(ACC[T]))
    A(f'''ds_write_b128 v{RW}, {vr(ACC[0])}
ds_write_b128 v{RW}, {vr(ACC[1])} offset:1024
s_waitcnt lgkmcnt(0)
s_barrier
s_cmp_ge_u32 s32, 2
s_cbranch_scc1 out_next''')
    for w in range(4): A(f'ds_read_b128 {vr(BF+4*w)}, v6 offset:{w*2048}')
    A(f'''v_lshlrev_b32 v26, 16, v{XR}
v_and_b32 v27, 0xffff0000, v{XR}
v_lshlrev_b32 v28, 16, v{XR+1}
v_and_b32 v29, 0xffff0000, v{XR+1}
s_waitcnt lgkmcnt(0)''')
    for r in range(4):
        A(f'v_add_f32 v{BF+r}, v{BF+r}, v{BF+4+r}\nv_add_f32 v{BF+8+r}, v{BF+8+r}, v{BF+12+r}')
    for r in range(4):
        A(f'v_add_f32 v{BF+r}, v{BF+r}, v{BF+8+r}\nv_add_f32 v{BF+r}, v{BF+r}, v{26+r}')
    A(f'''v_cvt_pk_bf16_f32 v30, v{BF}, v{BF+1}
v_cvt_pk_bf16_f32 v31, v{BF+2}, v{BF+3}
buffer_store_dwordx2 v[30:31], v{OA}, s[24:27], s44 offen
out_next:
s_add_u32 s40, s40, {nsets}
s_cmp_lt_u32 s40, 128
s_cbranch_scc1 out_top''')

NAME = 'parallel_sum__memory_aug_recurrent_mem_tr__geglu_ffn__prompt_kernel'

def gen_full(**ckw):
    A = Asm()
    A.raw(f'; @launch kernel={NAME} grid=(256,1,1) block=(256,1,1) lds=163840')
    A.raw('.amdgcn_target "amdgcn-amd-amdhsa--gfx950"')
    A.raw(f'.text\n.globl {NAME}\n.p2align 8\n.type {NAME},@function')
    A.label(NAME)
    A('s_cmp_ge_u32 s2, 256\ns_cbranch_scc1 L_end')
    common_entry(A)
    A('''s_lshl_b32 s36, s3, 2
v_mov_b32 v3, s36
v_mov_b32 v4, 1
v_mov_b32 v5, 0
s_cmp_lg_u32 s32, 0
s_cbranch_scc1 L_noticket
s_mov_b64 exec, 1
buffer_atomic_add v4, v3, s[12:15], 0 offen sc0 sc1
s_waitcnt vmcnt(0)
ds_write_b32 v5, v4
s_waitcnt lgkmcnt(0)
s_mov_b64 exec, -1
L_noticket:
s_barrier
ds_read_b32 v4, v5
s_waitcnt lgkmcnt(0)
v_readfirstlane_b32 s33, v4
s_barrier
s_cmp_ge_u32 s33, 32
s_cbranch_scc1 L_end
s_cmp_ge_u32 s3, 8
s_cbranch_scc1 L_end
s_cmp_lg_u32 s3, 0
s_cbranch_scc1 L_worker''')
    emit_chain(A, gate=True, **ckw)
    A('s_endpgm\nL_worker:')
    worker_setup(A)
    A('''s_sub_u32 s88, s3, 1
s_lshl_b32 s88, s88, 5
s_add_u32 s88, s88, s33          ; wi
s_mul_i32 s33, s88, 9363
s_lshr_b32 s33, s33, 16          ; h = wi/7
s_mul_i32 s36, s33, 7
s_sub_u32 s89, s88, s36          ; r = wi%7
s_cmp_lg_u32 s88, 0
s_cbranch_scc1 L_noinit''')
    emit_init(A)
    A('''L_noinit:
s_cmp_lt_u32 s89, 5
s_cbranch_scc1 L_noln
s_lshl_b32 s90, s33, 1
s_add_u32 s90, s90, s89
s_sub_u32 s90, s90, 5''')
    emit_ln(A, 90)
    A('L_noln:\ns_mov_b32 s40, s89')
    emit_qkv(A)
    A('''s_cmp_lt_u32 s89, 5
s_cbranch_scc1 L_gu
s_sub_u32 s40, s89, 5''')
    emit_att(A, 2)
    A('''s_endpgm
L_gu:
s_mul_i32 s90, s33, 5
s_add_u32 s90, s90, s89          ; oi
s_cmp_ge_u32 s90, 154
s_cbranch_scc1 L_out
s_mul_i32 s40, s90, 5958
s_lshr_b32 s40, s40, 16
s_mul_i32 s36, s40, 11
s_sub_u32 s48, s90, s36''')
    emit_gu(A, 14)
    A('''L_out:
s_lshr_b32 s40, s90, 4
s_and_b32 s48, s90, 15''')
    emit_out(A, 10)
    A('L_end:\ns_endpgm')
    A.raw('.section .rodata,"a"\n.p2align 6')
    A.raw(kd(NAME))
    return A.text()

if __name__ == '__main__':
    assert all((w * 9363) >> 16 == w // 7 for w in range(224)) and all((w * 5958) >> 16 == w // 11 for w in range(160))
    hdr = open('parallel_sum__memory_aug_recurrent_mem_tr__geglu_ffn__prompt.s.ref').read().split('; Override')[0]
    open('full.s', 'w').write(hdr + gen_full(dB0=32, dB1=24, dA=32))
```

```python
import sys, math, struct
sys.path.insert(0, 'dev')
from asmlib import Asm

FLAGS = 0x0000000
MEMB  = 0x0070000
PARTB = 0x0100000
GMEMB = 0x0080000
XFB   = 0x0200000
QFB   = 0x1000000
KVB   = 0x2000000
OFB   = 0x4000000
HFB   = 0x5000000
WS_BYTES = 0x10000000
DBG_TICKET = 0
DBG_CHAINCNT = 64
DBG_GATE = 128
F_XN = 0x2000; F_H = 0x4000; F_O = 0x6000

def f32bits(x): return struct.unpack('<I', struct.pack('<f', x))[0]

def vr(b, n=4): return f'v[{b}:{b+n-1}]'

def srd(A, s, ptr_lo, nbytes):
    A(f'''s_mov_b32 s{s}, s{ptr_lo}
s_and_b32 s{s+1}, s{ptr_lo+1}, 0xffff
s_mov_b32 s{s+2}, {nbytes}
s_mov_b32 s{s+3}, 0x20000''')

PROFB = 0x6000000
PROF = {'on': False, 'n': 0}
def prof(A, idx, vt=None, sidx=None, cyc=False):
    if not PROF['on']: return
    PROF['n'] += 1; l = f"prof_{PROF['n']}"
    A(f'''s_cmp_lg_u32 s32, 0
s_cbranch_scc1 {l}
s_memrealtime s[92:93]
s_memtime s[100:101]
s_waitcnt lgkmcnt(0)
{"s_bitcmp1_b32 s33, 0" + chr(10) + "s_cselect_b32 s92, s100, s92" if cyc else ""}
s_mov_b64 exec, 1
v_mov_b32 v{vt}, s92
v_mov_b32 v{vt+1}, 0''')
    if sidx is None: A(f's_add_u32 s94, s91, {idx*4}')
    else: A(f's_lshl_b32 s94, s{sidx}, 2\ns_add_u32 s94, s94, s91\ns_add_u32 s94, s94, {idx*4}')
    A(f'''buffer_store_dword v{vt}, v{vt+1}, s[8:11], s94 offen
s_mov_b64 exec, -1
{l}:''')

def wait_cnt(A, lbl, srdn, voff, soff, target, vt, sleep=0):
    A(f'''{lbl}:
buffer_load_dword v{vt}, v{voff}, s[{srdn}:{srdn+3}], {soff} offen sc1
s_waitcnt vmcnt(0)
v_readfirstlane_b32 s36, v{vt}
s_cmp_ge_u32 s36, {target}
s_cbranch_scc1 {lbl}_ok
{f"s_sleep {sleep}" if sleep else ""}
s_sub_u32 s35, s35, 1
s_cbranch_scc0 {lbl}
s_mov_b32 s35, 0
{lbl}_ok:''')

def wait_dbg(A, lbl, off, target, vt, va):
    A(f'v_mov_b32 v{va}, {off}')
    wait_cnt(A, lbl, 12, va, 0, target, vt, sleep=2)

L_MEM = 0; L_OQK = 8192; L_KV = 16384; L_W = 49152; L_WSZ = 28672
V_L16, V_IDX, V_PST, V_SELV, V_MST, V_QW, V_TR, V_B0, V_B1, V_B2, V_B3, V_WV = range(12)
T0, T1, T2, T3 = 12, 13, 14, 15
M = [16, 20, 24, 36, 28, 40, 32, 44]
AQ0, AQ1, AK0, AK1, AV0, AV1 = 48, 52, 56, 60, 64, 68
P = [72 + 8 * i for i in range(5)]
VB = [V_B0, V_B1, V_B2, V_B3]


def chain_frag_map():
    units = [(m, t) for m in 'qkv' for t in range(8)] + [('o', k, u) for k in range(4) for u in range(2)]
    backed = [('q', 0), ('k', 0), ('v', 0), ('q', 1), ('k', 1), ('o', 2, 1), ('o', 3, 1)]
    res = [u for u in units if u not in backed]
    order = [('o', k, u) for k in range(4) for u in range(2)] + [(m, t) for m in 'vkq' for t in (4, 6, 5, 7, 1, 3, 0, 2)]
    loc = {}
    regs = [f'a[{8*i}:{8*i+7}]' for i in range(32)] + [f'v[{112+8*i}:{112+8*i+7}]' for i in range(18)]
    k = 0
    for u in res:
        for T in range(2):
            loc[u + (T,)] = ('reg', regs[k]); k += 1
    assert k == 50
    for i, u in enumerate(backed):
        for T in range(2):
            loc[u + (T,)] = ('lds', i, T)
    return loc, order

def sub(reg, lo, n):
    c = reg[0]; b = int(reg[2:reg.index(':')])
    return f'{c}[{b+lo}:{b+lo+n-1}]'

def emit_chain(A, sc='', tag='c', nsteps=63, gate=False, stamps=False, dB0=0, dB1=0, dA=0, nokv=0, nocomm=0, stsel=None, abl=(),
               prepos=14, depth=5, early1=1, nB=2, gB=0, dmapos=(0, 3, 6, 9), respos=(20, 25), reppos=17, b1pos=4, pf='sc1', dm='sc1', b3k=2, kfs=8, b2pos=42):
    loc, order = chain_frag_map()
    sc = (' ' + sc) if sc else ''
    A(f"""
s_load_dwordx4 s[16:19], s[0:1], 16
s_load_dwordx4 s[24:27], s[0:1], 32
s_load_dwordx2 s[4:5], s[0:1], 8
v_and_b32 v20, 63, v0                 ; lane
v_lshlrev_b32 v{V_L16}, 4, v20
s_mul_i32 s52, s32, {L_WSZ}
s_add_u32 s52, s52, {L_W}
s_mul_i32 s53, s32, 12288
v_bfe_u32 v21, v20, 4, 1               ; g>>1
v_bfe_u32 v22, v20, 3, 1               ; g&1
v_bfe_u32 v23, v20, 2, 1               ; R>>1
v_bfe_u32 v24, v20, 1, 1               ; R&1
v_and_b32 v25, 1, v20                  ; p
v_lshrrev_b32 v26, 5, v20              ; T
v_lshlrev_b32 v27, 3, v21
v_lshl_add_u32 v27, v22, 1, v27
v_lshl_add_u32 v27, v23, 2, v27
v_lshl_add_u32 v27, v24, 5, v27
v_lshlrev_b32 v27, 13, v27
v_lshl_add_u32 v27, v26, 5, v27
v_lshl_add_u32 v32, v25, 4, v27
v_lshlrev_b32 v27, 4, v22
v_lshl_add_u32 v27, v21, 2, v27
v_add_u32 v27, v27, v24
v_lshlrev_b32 v27, 10, v27
v_lshl_add_u32 v27, v26, 6, v27
v_lshl_add_u32 v27, v23, 5, v27
v_lshl_add_u32 v33, v25, 4, v27
v_lshlrev_b32 v27, 3, v20
v_add_u32 v34, s52, v27
v_add_u32 v35, s53, v27
s_lshl_b32 s36, s33, 8
s_lshl_b32 s37, s32, 6
s_add_u32 s36, s36, s37                ; h*256+w*64
s_lshl_b32 s37, s32, 1
""")
    for tau in range(8):
        A(f's_xor_b32 s38, s37, {tau}\ns_lshl_b32 s38, s38, 19\ns_add_u32 s{40+tau}, s38, s36')
    A('s_lshl_b32 s36, s33, 17\ns_lshl_b32 s37, s32, 8\ns_add_u32 s36, s36, s37')
    for k in range(4):
        A(f's_xor_b32 s38, s32, {k}\ns_lshl_b32 s38, s38, 15\ns_add_u32 s{48+k}, s38, s36')
    A(f"""
s_lshr_b32 s36, s33, 3
s_lshl_b32 s36, s36, 4
s_and_b32 s37, s32, 1
s_lshl_b32 s37, s37, 3
s_add_u32 s36, s36, s37
s_and_b32 s39, s33, 7
s_add_u32 s37, s36, s39
s_lshl_b32 s61, s37, 7                 ; Gm*128
v_lshrrev_b32 v21, 4, v20
v_bfe_u32 v22, v20, 2, 1
v_lshl_add_u32 v21, v21, 1, v22
v_lshlrev_b32 v23, 4, v21
v_and_b32 v22, 3, v20
v_lshl_add_u32 v23, v22, 2, v23
v_add_u32 v{V_MST}, s61, v23
v_lshlrev_b32 v24, 10, v21
v_lshl_add_u32 v24, v22, 1, v24
s_lshl_b32 s36, s36, 4
s_lshl_b32 s39, s39, 3
s_add_u32 s39, s36, s39
s_waitcnt lgkmcnt(0)
s_mov_b32 s20, s18
s_and_b32 s21, s19, 0xffff
s_mov_b32 s22, 0x400000
s_mov_b32 s23, 0x20000
s_and_b32 s17, s17, 0xffff
s_mov_b32 s18, 0x400000
s_mov_b32 s19, 0x20000
s_mov_b32 s28, s26
s_and_b32 s29, s27, 0xffff
s_mov_b32 s30, 0x400000
s_mov_b32 s31, 0x20000
s_and_b32 s25, s25, 0xffff
s_mov_b32 s26, 0x400000
s_mov_b32 s27, 0x20000
""")
    srd(A, 84, 4, 8192)
    A('buffer_load_ushort v38, v24, s[84:87], s39 offen\nbuffer_load_ushort v39, v24, s[84:87], s39 offen offset:64')
    NU = len(order)
    fin = {n: loc[order[n] + (0,)][1] for n in range(NU) if loc[order[n] + (0,)][0] == 'lds'}
    slot_of = {}; issue_at = {}; busy = {}; state = {'nxt': 0}
    def try_issue(now):
        while state['nxt'] < NU and state['nxt'] - now <= depth:
            nxt = state['nxt']
            if nxt in fin: cand = [fin[nxt]] if fin[nxt] not in busy else []
            else:
                soon = {fin[m] for m in fin if nxt < m <= nxt + depth + 1}
                cand = [s_ for s_ in (7, 8, 9, 0, 1, 2, 3, 4, 5, 6) if s_ not in busy and s_ not in soon]
            if not cand: break
            busy[cand[0]] = nxt; slot_of[nxt] = cand[0]; issue_at[nxt] = now; state['nxt'] += 1
    try_issue(-1)
    for n in range(NU):
        if n >= 1 and (n - 1) not in fin: del busy[slot_of[n - 1]]
        try_issue(n)
        assert n + 1 >= NU or (n + 1) in slot_of, n
    def issue(n):
        u = order[n]; sl = slot_of[n]
        for mp in range(4):
            if sl < 7: A(f's_add_u32 m0, s52, {sl*4096 + mp*1024}')
            else: A(f's_add_u32 m0, s53, {(sl-7)*4096 + mp*1024}')
            if u[0] == 'o':
                A(f's_add_u32 s38, s{48+u[1]}, {(8*(mp>>1)+2*(mp&1))*1024 + 128*u[2]}')
                A('buffer_load_dwordx4 v33, s[28:31], s38 offen lds')
            else:
                base = {'q': 16, 'k': 20, 'v': 24}[u[0]]
                A(f's_add_u32 s38, s{40+u[1]}, {(16*(mp>>1)+(mp&1))*8192}')
                A(f'buffer_load_dwordx4 v32, s[{base}:{base+3}], s38 offen lds')
    npre = 0
    for m in range(NU):
        if issue_at[m] == -1: issue(m); npre += 4
    A(f"""
s_mov_b32 s35, 4000000
s_lshl_b32 s36, s32, 11                ; w*2048
v_add_u32 v{V_B0}, s36, v{V_L16}
v_xor_b32 v{V_B1}, 2048, v{V_B0}
v_xor_b32 v{V_B2}, 4096, v{V_B0}
v_xor_b32 v{V_B3}, 6144, v{V_B0}
s_add_u32 s54, s36, {MEMB}             ; sMemRd
s_mov_b32 s55, {MEMB + 8192}           ; sMemWr
s_mov_b32 s56, {GMEMB}
v_add_u32 v{V_WV}, s52, v{V_L16}
v_and_b32 v21, 8, v20
v_cmp_eq_u32 vcc, 0, v21
v_mov_b32 v22, 0xeeee
v_mov_b32 v23, 0x4444
v_cndmask_b32 v{V_IDX}, v22, v23, vcc
s_mov_b32 s80, 0x00ff00ff
s_mov_b32 s81, 0x00ff00ff
v_lshrrev_b32 v21, 5, v20
v_bfe_u32 v22, v20, 2, 2
v_lshl_add_u32 v21, v21, 2, v22
v_lshlrev_b32 v21, 12, v21
v_bfe_u32 v22, v20, 4, 1
v_lshl_add_u32 v21, v22, 6, v21
v_and_b32 v22, 3, v20
v_lshl_add_u32 v21, v22, 4, v21
s_lshl_b32 s36, s32, 15
s_lshl_b32 s37, s33, 7
s_add_u32 s36, s36, s37
v_add_u32 v{V_PST}, s36, v21
s_mov_b32 s60, 0                       ; part slot offset
s_mov_b32 s58, {PARTB}
s_mov_b32 s59, {PARTB + 0x20000}
; reducer G = 32*(w&1)+h
s_and_b32 s36, s32, 1
s_lshl_b32 s36, s36, 5
s_add_u32 s36, s36, s33
s_lshl_b32 s37, s36, 12
s_add_u32 s62, s37, {PARTB}
s_mov_b32 s63, s62
; reset region: G2=32*(w>>1)+h, half (w&1)
s_lshr_b32 s38, s32, 1
s_lshl_b32 s38, s38, 5
s_add_u32 s38, s38, s33
s_lshl_b32 s38, s38, 12
s_and_b32 s39, s32, 1
s_lshl_b32 s39, s39, 11
s_add_u32 s38, s38, s39
s_add_u32 s65, s38, {PARTB}
s_lshl_b32 s38, s32, 12
s_add_u32 s66, s38, {L_KV}
s_add_u32 s67, s38, {L_KV + 16384}
s_lshl_b32 s39, s33, 20
s_add_u32 s38, s38, s39
s_add_u32 s57, s38, {KVB}
s_mov_b32 s68, {f32bits(128 ** -0.5 * math.log2(math.e))}
v_lshrrev_b32 v21, 5, v20
v_and_b32 v22, 15, v20
v_lshl_add_u32 v21, v21, 4, v22
v_lshlrev_b32 v21, 4, v21
v_bfe_u32 v22, v20, 4, 1
v_lshl_add_u32 v21, v22, 3, v21
s_lshl_b32 s38, s32, 11
v_add_u32 v{V_QW}, s38, v21
v_lshrrev_b32 v21, 2, v20
v_lshlrev_b32 v21, 4, v21
v_and_b32 v22, 1, v20
v_lshl_add_u32 v{V_TR}, v22, 3, v21
; selector value and masks: i=l&15 ; val=(i&3)==0?0x3f80:(i&3)==1?0x3f800000:0 ; mask q: (i>>2)==q
v_and_b32 v21, 3, v20
v_mov_b32 v22, 0
v_mov_b32 v23, 0x3f80
v_cmp_eq_u32 vcc, 0, v21
v_cndmask_b32 v22, v22, v23, vcc
v_mov_b32 v23, 0x3f800000
v_cmp_eq_u32 vcc, 1, v21
v_cndmask_b32 v{V_SELV}, v22, v23, vcc
s_mov_b32 s72, 0x000f000f
s_mov_b32 s73, 0x000f000f
s_mov_b32 s74, 0x00f000f0
s_mov_b32 s75, 0x00f000f0
s_mov_b32 s76, 0x0f000f00
s_mov_b32 s77, 0x0f000f00
s_mov_b32 s78, 0xf000f000
s_mov_b32 s79, 0xf000f000
s_mov_b32 s82, -1
s_mov_b32 s83, 0
s_waitcnt vmcnt({npre})
v_lshl_or_b32 v{T3}, v39, 16, v38
v_mov_b32 v28, -1
v_mov_b32 v29, -1
v_mov_b32 v30, -1
v_mov_b32 v31, -1
buffer_store_dwordx4 v[28:31], v{V_L16}, s[8:11], s65 offen{sc}
buffer_store_dwordx4 v[28:31], v{V_L16}, s[8:11], s65 offen offset:1024{sc}
s_add_u32 s64, s65, 0x40000
buffer_store_dwordx4 v[28:31], v{V_L16}, s[8:11], s64 offen{sc}
buffer_store_dwordx4 v[28:31], v{V_L16}, s[8:11], s64 offen offset:1024{sc}
s_add_u32 s64, s65, 0x80000
buffer_store_dwordx4 v[28:31], v{V_L16}, s[8:11], s64 offen{sc}
buffer_store_dwordx4 v[28:31], v{V_L16}, s[8:11], s64 offen offset:1024{sc}
s_add_u32 s64, s65, 0xc0000
v_lshrrev_b32 v21, 3, v20
v_lshlrev_b32 v21, 13, v21
v_and_b32 v22, 7, v20
v_lshl_add_u32 v21, v22, 4, v21
v_add_u32 v21, s61, v21
s_cmp_ge_u32 s32, 2
s_cbranch_scc1 {tag}_init_g
s_mov_b32 s38, {MEMB}
s_mov_b64 exec, 0xffffff00
buffer_store_dwordx4 v[28:31], v21, s[8:11], s38 offen{sc}
s_mov_b64 exec, s[80:81]
buffer_store_dword v{T3}, v{V_MST}, s[8:11], s38 offen{sc}
s_mov_b64 exec, -1
s_branch {tag}_init_done
{tag}_init_g:""")
    for i in range(8):
        A(f's_mov_b32 s38, {GMEMB + i * 65536}\nbuffer_store_dwordx4 v[28:31], v21, s[8:11], s38 offen sc1')
    A(f'{tag}_init_done:')
    for n in range(NU):
        u = order[n]; sl = slot_of[n]
        later = sum(1 for m in range(n + 1, NU) if issue_at[m] < n)
        A(f's_waitcnt vmcnt({0 if n == 0 else 4*later})')
        if n == 0:
            A(f"""s_mov_b64 exec, 1
v_mov_b32 v36, 1
v_mov_b32 v37, {DBG_CHAINCNT}
buffer_atomic_add v36, v37, s[12:15], 0 offen sc1
s_mov_b64 exec, -1""")
        av = 34 if sl < 7 else 35
        off = (sl if sl < 7 else sl - 7) * 4096
        for T in range(2):
            l = loc[u + (T,)]
            dst = l[1] if l[0] == 'reg' else f'v[{40+8*T}:{47+8*T}]'
            for mp in range(4):
                A(f'ds_read_b64_tr_b16 {sub(dst, 2*mp, 2)}, v{av} offset:{off + mp*1024 + T*512}')
        todo = [m for m in range(NU) if issue_at[m] == n]
        if todo:
            A('s_waitcnt lgkmcnt(8)')
            for m in todo: issue(m)
        if n in fin:
            A('s_waitcnt lgkmcnt(0)')
            for T in range(2):
                for hf in range(2):
                    A(f'ds_write_b128 v{V_WV}, {vr(40+8*T+4*hf)} offset:{sl*4096 + T*2048 + hf*1024}')
            A('s_waitcnt lgkmcnt(0)')
    A('s_waitcnt lgkmcnt(0)\ns_barrier')
    prof(A, 1, 36)
    wait_dbg(A, f'{tag}_wreg', DBG_CHAINCNT, 128, 36, 37)
    if gate: wait_dbg(A, f'{tag}_wgate', DBG_GATE, 4, 36, 37)
    A('s_mov_b64 s[70:71], 0\ns_mov_b32 s86, 0x3f803f80\ns_mov_b32 s87, 0x3f803f80\ns_mov_b32 s34, 0')
    poolmap = {('q', 0, 0): AK0, ('q', 0, 1): AV0, ('k', 0, 0): M[2], ('k', 0, 1): M[6], ('v', 0, 0): M[5], ('v', 0, 1): P[0],
               ('q', 1, 0): P[1], ('q', 1, 1): P[2], ('k', 1, 0): P[3], ('k', 1, 1): P[4],
               ('o', 2, 1, 0): P[0], ('o', 2, 1, 1): P[1], ('o', 3, 1, 0): P[2], ('o', 3, 1, 1): P[3]}
    def plh(f, hf, tg):
        l = loc[f]
        A.ds(f'ds_read_b128 {vr(poolmap[f] + 4*hf)}, v{V_WV} offset:{l[1]*4096 + l[2]*2048 + hf*1024}', tg)
    def pool_load(f, tg): plh(f, 0, tg); plh(f, 1, tg)
    def kv_ready(lbl):
        A(f's_bitcmp1_b64 s[70:71], s36\ns_cbranch_scc0 {lbl}_slow\n{lbl}_ok:')
    def kv_slow(lbl):
        A(f"""{lbl}_slow:
v_lshrrev_b32 v{T0}, 2, v{V_L16}
s_lshl_b32 s37, s33, 8
buffer_load_dword v{T1}, v{T0}, s[8:11], s37 offen sc1
s_waitcnt vmcnt(0)
v_cmp_le_u32 s[70:71], 4, v{T1}
s_nop 1
s_bitcmp1_b64 s[70:71], s36
s_cbranch_scc1 {lbl}_ok
s_sub_u32 s35, s35, 1
s_cbranch_scc0 {lbl}_slow
s_mov_b32 s35, 0
s_branch {lbl}_ok""")
    def prep_a(mid=None):
        fr = [('v', 0, 1), ('q', 1, 0), ('q', 1, 1), ('k', 1, 0), ('k', 1, 1), ('k', 0, 0), ('k', 0, 1), ('q', 0, 0), ('q', 0, 1)]
        for i, f in enumerate(fr):
            pool_load(f, 'pi')
            if mid and i in mid: mid[i]()
    def prep_b():
        pool_load(('v', 0, 0), 'pi')
    def zq():
        for r in range(AQ0, AQ1 + 4, 2): A(f'v_mov_b64 v[{r}:{r+1}], 0')
    def delay(n):
        while n > 0:
            k = min(n, 16); A(f's_nop {k-1}'); n -= k
    prof(A, 2, 36)
    if PROF['on']: A('s_memtime s[96:97]')
    slow = []
    for i in range(3):
        A(f's_mov_b32 s36, {i}'); kv_ready(f'{tag}_kv{i}'); slow.append(f'{tag}_kv{i}')
    A('s_mov_b32 m0, s66')
    for i in range(4): A(f'buffer_load_dwordx4 v{V_L16}, s[8:11], s57 offen offset:{i*1024} sc1 lds')
    A('s_add_u32 s57, s57, 16384')
    prep_a()
    A.wait_lds_all()
    acc = {('q', 0): AQ0, ('q', 1): AQ1, ('k', 0): AK0, ('k', 1): AK1, ('v', 0): AV0, ('v', 1): AV1}
    def wreg(frag):
        l = loc[frag]
        return l[1] if l[0] == 'reg' else vr(poolmap[frag], 8)
    def SM(m, tau, T): A(f'v_smfmac_f32_16x16x64_bf16 {vr(acc[(m,T)])}, {vr(M[tau])}, {wreg((m,tau,T))}, v{V_IDX}')
    STP = [40,42,44,46,48,50,52,84,98,88,90,92,94,100]
    cur = {'par': 0}
    def stamp(i):
        if stamps == 'rt':
            if (cur['par'] == 1 and i >= 9) or (cur['par'] == 0 and i <= 2): A(f's_memrealtime s[{STP[i]}:{STP[i]+1}]')
        elif stamps and cur['par'] == 0 and (stsel is None or i in stsel): A(f's_memtime s[{STP[i]}:{STP[i]+1}]')
    def wrap(r): return f's_bitset0_b32 {r}, 15\n'
    retry = {}; lates = []
    def step(par):
        t = f'{tag}{par}'
        KOFF = L_KV + par * 16384; VOFF = KOFF + 8192
        A(f'{t}_top:')
        cur['par'] = par
        stamp(0)
        def ldA():
            for u in range(2): A(f'buffer_load_dwordx4 {vr(M[u])}, v{V_L16}, s[8:11], s54 offen offset:{u*1024} sc1')
        retry[f'{t}A'] = ldA
        A(f's_mov_b32 m0, s{66+(par^1)}')
        if nocomm:
            prep_b(); zq(); A(f's_waitcnt lgkmcnt(0)\ns_branch {t}_okA')
        ldA()
        prep_b()
        A(f"""{t}_chkA:
s_waitcnt vmcnt(1)
ds_write_b128 v{V_B0}, {vr(M[0])} offset:{L_MEM}
s_waitcnt vmcnt(0)
ds_write_b128 v{V_B0}, {vr(M[1])} offset:{L_MEM+1024}
v_max3_u32 v{T0}, v{M[0]}, v{M[0]+1}, v{M[0]+2}
v_max3_u32 v{T1}, v{M[0]+3}, v{M[1]}, v{M[1]+1}
v_max3_u32 v{T0}, v{T0}, v{M[1]+2}, v{M[1]+3}
v_mov_b64 v[{AQ0}:{AQ0+1}], 0
v_max_u32 v{T0}, v{T0}, v{T1}
v_mov_b64 v[{AQ0+2}:{AQ0+3}], 0
v_cmp_eq_u32 vcc, -1, v{T0}
v_mov_b64 v[{AQ1}:{AQ1+1}], 0
v_mov_b64 v[{AQ1+2}:{AQ1+3}], 0
s_cbranch_vccnz {t}_reA
{t}_okA:
s_waitcnt lgkmcnt(2)""")
        A.lds_q = []
        stamp(1)
        KX = {(tt, k): P[k] + 4 * (tt - 1) for tt in (1, 2) for k in range(4)}
        QF = [AQ0, AQ1, M[0], M[1]]
        KM = [M[2], M[4], M[6], M[3]]
        VX = [P[4], P[4] + 4]
        def ldM(tau): A.ds(f'ds_read_b128 {vr(M[tau])}, v{VB[tau>>1]} offset:{L_MEM + (tau&1)*1024}', f'm{tau}')
        def ldKX(tt, k): A.ds(f'ds_read_b128 {vr(KX[(tt,k)])}, v{V_L16} offset:{KOFF + (tt-1)*4096 + k*1024}', 'kx')
        def ldVX(T): A.ds(f'ds_read_b128 {vr(VX[T])}, v{V_B0} offset:{VOFF + T*1024}', 'kx')
        def ldQF(k):
            for hf in range(2): A.ds(f'ds_read_b64_tr_b16 {vr(QF[k]+2*hf,2)}, v{V_TR} offset:{L_OQK + k*2048 + 1024 + hf*256}', f'qf{k}')
        def ldKM(k):
            for hf in range(2): A.ds(f'ds_read_b64_tr_b16 {vr(KM[k]+2*hf,2)}, v{V_TR} offset:{L_OQK + k*2048 + 1536 + hf*256}', f'km{k}')
        def fold(a0, a1, t0):
            ops = []
            for r in range(4): ops.append(f'v_permlane32_swap_b32 v{a0+r}, v{a1+r}')
            for r in range(4): ops.append(f'v_add_f32 v{a0+r}, v{a0+r}, v{a1+r}')
            ops.append(f'v_cvt_pk_bf16_f32 v{t0}, v{a0}, v{a0+1}')
            ops.append(f'v_cvt_pk_bf16_f32 v{t0+1}, v{a0+2}, v{a0+3}')
            return ops
        two = lambda m, tau: [(m, tau, 0), (m, tau, 1)]
        sms = []
        for tau in (0, 1): sms += two('q', tau) + two('k', tau) + two('v', tau)
        for m in 'qkv':
            for tau in (2, 4, 6, 3, 5, 7): sms += two(m, tau)
        assert len(sms) == 48 and len(set(sms)) == 48
        pre = {i: [] for i in range(48)}; post = {i: [] for i in range(48)}
        for i, r in enumerate((AK0, AK1, AV0, AV1)):
            post[i].append(lambda r=r: A(f'v_mov_b64 v[{r}:{r+1}], 0\nv_mov_b64 v[{r+2}:{r+3}], 0'))
        def b1():
            A('s_waitcnt lgkmcnt(0)\ns_barrier')
            stamp(2)
        post[b1pos].append(b1)
        for i, tau in enumerate((2, 4, 6, 3, 5, 7)): post[b1pos + i].append(lambda tau=tau: ldM(tau))
        pre[12].append(lambda: A.wait_lds('m4')); pre[16].append(lambda: A.wait_lds('m7'))
        kxs = [(tt, k) for k in range(4) for tt in (1, 2)]
        for i, pos in enumerate([11, 12, 13, 15, 16, 18, 19, 21]): post[pos].append(lambda i=i: ldKX(*kxs[i]))
        post[22].append(lambda: ldVX(0)); post[23].append(lambda: ldVX(1))
        def rep():
            A(f"""s_cbranch_scc1 {t}_norep
s_mov_b64 exec, s[80:81]
buffer_store_dword v{T3}, v{V_MST}, s[8:11], s56 offen sc1
s_mov_b64 exec, -1
{t}_norep:""")
        for i, pos in enumerate(dmapos): post[pos].append(lambda i=i: A(f'buffer_load_dwordx4 v{V_L16}, s[8:11], s57 offen offset:{i*1024} {dm} lds'))
        if pf is not None:
            post[prepos - 1].append(lambda: A(f'v_lshlrev_b32 v{T1}, 2, v{V_L16}\ns_add_u32 s36, s57, 16384'))
            post[prepos].append(lambda: A(f'buffer_load_dword v{T2}, v{T1}, s[8:11], s36 offen {pf}'))
        post[reppos - 1].append(lambda: A('s_cmp_ge_u32 s32, 2'))
        post[reppos].append(rep)
        post[reppos + 1].append(lambda: prof(A, 16, T0, 34, cyc=True))
        post[respos[0] - 2].append(lambda: A(f'v_mov_b64 v[{M[0]}:{M[0]+1}], -1'))
        post[respos[0] - 1].append(lambda: A(f'v_mov_b64 v[{M[0]+2}:{M[0]+3}], -1'))
        assert respos[0] - 2 >= 6
        post[respos[0]].append(lambda: A(f'buffer_store_dwordx4 {vr(M[0])}, v{V_L16}, s[8:11], s64 offen{sc}'))
        post[respos[1]].append(lambda: A(f'buffer_store_dwordx4 {vr(M[0])}, v{V_L16}, s[8:11], s64 offen offset:1024{sc}'))
        post[11].append(lambda: stamp(3)); post[23].append(lambda: stamp(4)); post[35].append(lambda: stamp(5))
        for i, op in enumerate(fold(AQ0, AQ1, T0)): post[26 + i].append(lambda op=op: A(op))
        post[36].append(lambda: A.ds(f'ds_write_b64 v{V_QW}, v[{T0}:{T1}] offset:{L_OQK+1024}', 'qw'))
        for i, op in enumerate(fold(AK0, AK1, T0)): post[38 + (i * kfs) // 10].append(lambda op=op: A(op))
        post[38 + kfs].append(lambda: A.ds(f'ds_write_b64 v{V_QW}, v[{T0}:{T1}] offset:{L_OQK+1536}', 'kw'))
        pre[b2pos].append(lambda: (A.wait_lds('qw'), A('s_barrier')))
        qpos = [p_ for p_ in range(b2pos, 48) if p_ != 38 + kfs][:4]
        for k, pos in enumerate(qpos): post[pos].append(lambda k=k: ldQF(k))
        for i, f in enumerate(sms):
            for fn in pre[i]: fn()
            SM(*f)
            n0 = len(A.items)
            for fn in post[i]: fn()
            gap = A.items[n0:]
            if not any(isinstance(x, str) for x in gap):
                A.items[n0:] = [x for x in gap if x.kind != 'valu'] + [x for x in gap if x.kind == 'valu']
        stamp(6)
        ST = {1: AK0, 2: AK1, 0: M[5]}
        VM = M[7]; ONES = KM[0]; ONE2 = KM[1]; PM = KM[1] + 2; PB = KM[2]; LS = KM[3]; O = [AV0, AV1]
        def MF(d, a, b, c): A(f'v_mfma_f32_16x16x32_bf16 {vr(d)}, {vr(a)}, {vr(b)}, {c}')
        def MF16(d, a, b): A(f'v_mfma_f32_16x16x16_bf16 {vr(d)}, {vr(a,2)}, {vr(b,2)}, {vr(d)}')
        late = [(('o', k, 1, T), hf) for k in (2, 3) for T in (0, 1) for hf in (0, 1)]
        vmc = [f'v_cvt_pk_bf16_f32 v{VM+i}, v{(AV0,AV1)[i>>1]+2*(i&1)}, v{(AV0,AV1)[i>>1]+2*(i&1)+1}' for i in range(4)]
        n = 0
        for k in range(4):
            A.wait_lds(f'qf{k}')
            if k == b3k:
                A.wait_lds('kw'); A('s_barrier')
            for tt in (1, 2):
                MF(ST[tt], KX[(tt, k)], QF[k], '0' if k == 0 else vr(ST[tt]))
                if 2 * b3k <= n < 2 * b3k + 4: ldKM(n - 2 * b3k)
                elif n >= 2: plh(*late.pop(0), 'piii')
                if vmc and n >= 2 and not (2 * b3k <= n < 2 * b3k + 4 and len(vmc) <= 2): A(vmc.pop(0))
                n += 1
        WA = QF
        def z(a): A(f'v_mov_b64 v[{a}:{a+1}], 0\nv_mov_b64 v[{a+2}:{a+3}], 0')
        for k in range(4):
            A.wait_lds(f'km{k}')
            MF(ST[0], KM[k], QF[k], '0' if k == 0 else vr(ST[0]))
            plh(*late.pop(0), 'piii')
            if k == 0: A(f'v_mov_b64 v[{ONES}:{ONES+1}], s[86:87]')
            if k == 1: A(f'v_max3_f32 v{T0}, v{ST[1]}, v{ST[1]+1}, v{ST[1]+2}')
            if k == 2: A(f'v_max3_f32 v{T1}, v{ST[1]+3}, v{ST[2]}, v{ST[2]+1}')
            if k == 3: A(f'v_max3_f32 v{T0}, v{T0}, v{ST[2]+2}, v{ST[2]+3}')
            if vmc and k < 2: A(vmc.pop(0))
        assert not vmc
        stamp(7)
        A(f"""v_max_f32 v{T0}, v{T0}, v{T1}
v_mov_b32 v{T1}, v{T0}
v_mov_b64 v[{ONES+2}:{ONES+3}], s[86:87]
v_cndmask_b32 v{ONE2}, 0, v{ONES}, s[82:83]
v_permlane32_swap_b32 v{T0}, v{T1}
v_cndmask_b32 v{ONE2+1}, 0, v{ONES}, s[82:83]
v_max3_f32 v{T0}, v{T0}, v{T1}, v{ST[0]}
v_max3_f32 v{T1}, v{ST[0]+1}, v{ST[0]+2}, v{ST[0]+3}
v_max_f32 v{T0}, v{T0}, v{T1}
v_mov_b32 v{T1}, v{T0}""")
        z(WA[0])
        A(f"""v_permlane16_swap_b32 v{T0}, v{T1}
v_max_f32 v{T0}, v{T0}, v{T1}
v_mul_f32 v{T0}, s68, v{T0}""")
        for base in (ST[1], ST[2]):
            for r in range(4): A(f'v_fma_f32 v{base+r}, v{base+r}, s68, -v{T0}')
        for base in (ST[1], ST[2]):
            for r in range(4): A(f'v_exp_f32 v{base+r}, v{base+r}')
        b = ST[0]
        A(f"""v_cvt_pk_bf16_f32 v{PB}, v{ST[1]}, v{ST[1]+1}
v_cvt_pk_bf16_f32 v{PB+1}, v{ST[1]+2}, v{ST[1]+3}
v_cvt_pk_bf16_f32 v{PB+2}, v{ST[2]}, v{ST[2]+1}
v_cvt_pk_bf16_f32 v{PB+3}, v{ST[2]+2}, v{ST[2]+3}
v_fma_f32 v{b}, v{b}, s68, -v{T0}
v_fma_f32 v{b+1}, v{b+1}, s68, -v{T0}""")
        MF(LS, ONES, PB, '0')
        plh(*late.pop(0), 'piii')
        A(f'v_fma_f32 v{b+2}, v{b+2}, s68, -v{T0}\nv_fma_f32 v{b+3}, v{b+3}, s68, -v{T0}')
        MF(O[0], VX[0], PB, '0')
        plh(*late.pop(0), 'piii')
        A(f'v_exp_f32 v{b}, v{b}')
        MF(O[1], VX[1], PB, '0')
        A(f"""v_exp_f32 v{b+1}, v{b+1}
v_exp_f32 v{b+2}, v{b+2}
v_exp_f32 v{b+3}, v{b+3}
v_cvt_pk_bf16_f32 v{PM}, v{b}, v{b+1}
v_cvt_pk_bf16_f32 v{PM+1}, v{b+2}, v{b+3}""")
        z(WA[1])
        MF16(LS, ONE2, PM); z(WA[2]); MF16(O[0], VM, PM); z(WA[3]); MF16(O[1], VM + 2, PM)
        stamp(8)
        OF = [AK0, AK1, M[5], PB]
        A(f'v_rcp_f32 v{T0}, v{LS}')
        for T in range(2):
            for r in range(4): A(f'v_mul_f32 v{O[T]+r}, v{O[T]+r}, v{T0}')
            A(f'v_cvt_pk_bf16_f32 v{OF[0]+2*T}, v{O[T]}, v{O[T]+1}\nv_cvt_pk_bf16_f32 v{OF[0]+2*T+1}, v{O[T]+2}, v{O[T]+3}')
        A.ds(f'ds_write_b128 v{V_B0}, {vr(OF[0])} offset:{L_OQK}', 'ow')
        stamp(9)
        def SO(k, a): A(f'v_smfmac_f32_16x16x64_bf16 {vr(WA[a])}, {vr(OF[k])}, {wreg(("o",k,a>>1,a&1))}, v{V_IDX}')
        R = QF; SEL = M[7]; RA = M[5]
        selops = [f'v_cndmask_b32 v{SEL+q}, 0, v{V_SELV}, s[{72+2*q}:{73+2*q}]' for q in range(4)]
        for a in range(4):
            SO(0, a); A(selops[a])
        A('s_waitcnt lgkmcnt(0)\ns_barrier'); A.lds_q = []
        for k in range(1, 4): A.ds(f'ds_read_b128 {vr(OF[k])}, v{VB[k]} offset:{L_OQK}', f'o{k}')
        for k in range(1, 4):
            A.wait_lds(f'o{k}')
            SO(k, 0); SO(k, 1)
        PK = [AV0, AV1]
        n = 0
        for k in range(1, 4):
            for a in (2, 3):
                SO(k, a); n += 1
                if early1:
                    if n == 3:
                        for r in range(4): A(f'v_cvt_pk_bf16_f32 v{PK[0]+r}, v{WA[0]+r}, v{WA[1]+r}')
                    if n == 4: A(f'buffer_store_dwordx4 {vr(PK[0])}, v{V_PST}, s[8:11], s58 offen{sc}')
                elif n >= 3: A(f'v_cvt_pk_bf16_f32 v{PK[0]+n-3}, v{WA[0]+n-3}, v{WA[1]+n-3}')
        if not early1: A(f'buffer_store_dwordx4 {vr(PK[0])}, v{V_PST}, s[8:11], s58 offen{sc}')
        for r in range(4): A(f'v_cvt_pk_bf16_f32 v{PK[1]+r}, v{WA[2]+r}, v{WA[3]+r}')
        A(f'buffer_store_dwordx4 {vr(PK[1])}, v{V_PST}, s[8:11], s59 offen{sc}')
        stamp(10)
        def book():
            A(f"""s_add_u32 s54, s54, 8192
{wrap('s54')}s_add_u32 s56, s56, 8192
s_add_u32 s57, s57, {0 if nokv else 16384}
s_add_u32 s64, s65, s60
s_add_u32 s60, s60, 0x40000
s_and_b32 s60, s60, 0xc0000
s_add_u32 s58, s60, {PARTB}
s_add_u32 s59, s60, {PARTB + 0x20000}
s_add_u32 s34, s34, 1""")
        def ldB():
            for i in range(4): A(f'buffer_load_dwordx4 {vr(R[i])}, v{V_L16}, s[8:11], s62 offen offset:{i*1024} sc1')
        retry[f'{t}B'] = ldB
        if nocomm:
            prep_a(); book(); A(f's_branch {t}_join')
        A(f's_cmp_lg_u32 s32, 0\ns_cbranch_scc1 {t}_late')
        delay(dB0)
        stamp(11)
        ldB()
        prep_a({3: ldB} if nB == 2 else ({2: ldB, 5: ldB} if nB == 3 else None)); book()
        A(f"""{t}_chkB:
s_waitcnt vmcnt({4*(nB-1)})
v_max3_u32 v{T0}, v{R[0]+3}, v{R[1]+3}, v{R[2]+3}
v_max_u32 v{T0}, v{T0}, v{R[3]+3}
v_cmp_eq_u32 vcc, -1, v{T0}""")
        for i in range(4):
            A(f'v_mfma_f32_16x16x32_bf16 {vr(RA)}, {vr(SEL)}, {vr(R[i])}, {"0" if i==0 else vr(RA)}')
            if i == 1: A(f's_cbranch_vccnz {t}_reB')
        A(f"""v_cmp_u_f32 vcc, v{RA+2}, v{RA+2}
v_add_f32_dpp v{RA}, v{RA}, v{RA} row_ror:8 row_mask:0xf bank_mask:0xf
v_add_f32_dpp v{RA+1}, v{RA+1}, v{RA+1} row_ror:8 row_mask:0xf bank_mask:0xf
v_cvt_pk_bf16_f32 v{T3}, v{RA}, v{RA+1}
s_cbranch_vccnz {t}_nan
{t}_okB:
s_mov_b64 exec, s[80:81]
buffer_store_dword v{T3}, v{V_MST}, s[8:11], s55 offen{sc}
s_mov_b64 exec, -1
{t}_join:""")
        def nan_path(t=t, R=R, RA=RA, SEL=SEL, ldB=ldB):
            A(f'{t}_nan:')
            ldB()
            A('s_waitcnt vmcnt(0)')
            fl = [x for r in R for x in range(r, r + 4)]
            A(f'v_max3_u32 v{T0}, v{fl[0]}, v{fl[1]}, v{fl[2]}')
            for i in range(6): A(f'v_max3_u32 v{T0}, v{T0}, v{fl[3+2*i]}, v{fl[4+2*i]}')
            A(f"""v_max_u32 v{T0}, v{T0}, v{fl[15]}
v_cmp_eq_u32 vcc, -1, v{T0}
s_cbranch_vccz {t}_nan2
s_sub_u32 s35, s35, 1
s_cbranch_scc0 {t}_nan
s_mov_b32 s35, 0
{t}_nan2:""")
            for i in range(4):
                A(f'v_mfma_f32_16x16x32_bf16 {vr(RA)}, {vr(SEL)}, {vr(R[i])}, {"0" if i==0 else vr(RA)}')
            A(f"""v_add_f32_dpp v{RA}, v{RA}, v{RA} row_ror:8 row_mask:0xf bank_mask:0xf
v_add_f32_dpp v{RA+1}, v{RA+1}, v{RA+1} row_ror:8 row_mask:0xf bank_mask:0xf
v_cvt_pk_bf16_f32 v{T3}, v{RA}, v{RA+1}
s_branch {t}_okB""")
        lates.append(nan_path)
        def late_path(t=t):
            A(f'{t}_late:')
            prep_a(); book()
            A(f's_cmp_lg_u32 s32, 1\ns_cbranch_scc1 {t}_idle')
            delay(dB1); ldB()
            for i in range(nB - 1):
                delay(gB or 24); ldB()
            A(f"""s_branch {t}_chkB
{t}_idle:
s_add_u32 s36, s55, 16384
{wrap('s36')}v_mov_b32 v{T0}, -1
s_mov_b64 exec, s[80:81]
buffer_store_dword v{T0}, v{V_MST}, s[8:11], s36 offen{sc}
s_mov_b64 exec, -1
s_branch {t}_join""")
        lates.append(late_path)
        stamp(12)
        A(f"""s_cmp_eq_u32 s34, {nsteps}
s_cbranch_scc1 {tag}_done
s_add_u32 s62, s63, s60
s_add_u32 s55, s55, 8192
{wrap('s55')}s_add_u32 s36, s34, 2""")
        kv_ready(f'{t}_kv'); slow.append(f'{t}_kv')
        A('s_barrier')
        delay(dA)
        stamp(13)
        A.lds_q = []
    i0 = len(A.items)
    step(0); step(1)
    if abl:
        import re
        keep = A.items[:i0]
        for it in A.items[i0:]:
            if not isinstance(it, str) and any(re.search(p, it.text) for p in abl): continue
            keep.append(it)
        A.items = keep
    A(f's_branch {tag}0_top')
    for par in range(2):
        t = f'{tag}{par}'
        for x in 'AB':
            A(f'{t}_re{x}:\ns_sub_u32 s35, s35, 1\ns_cbranch_scc1 {t}_to{x}\ns_mov_b64 exec, vcc')
            retry[f'{t}{x}']()
            A(f's_mov_b64 exec, -1\ns_branch {t}_chk{x}\n{t}_to{x}:\ns_mov_b32 s35, 0\ns_nop 7\ns_branch {t}_{"nan" if x == "B" else "ok" + x}')
    for f in lates: f()
    for l in slow: kv_slow(l)
    A(f"""{tag}_done:
s_cmp_ge_u32 s32, 2
s_cbranch_scc1 {tag}_fin
s_mov_b64 exec, s[80:81]
buffer_store_dword v{T3}, v{V_MST}, s[8:11], s56 offen sc1
s_mov_b64 exec, -1
{tag}_fin:""")
    prof(A, 3, 36)
    if PROF['on']:
        A("""s_memtime s[92:93]
s_waitcnt lgkmcnt(0)
s_sub_u32 s92, s92, s96
v_mov_b32 v36, s92
v_mov_b32 v37, s35
s_lshl_b32 s94, s32, 3
s_add_u32 s94, s94, s91
v_mov_b32 v38, 0
s_mov_b64 exec, 1
buffer_store_dwordx2 v[36:37], v38, s[8:11], s94 offen offset:16
s_mov_b64 exec, -1""")

def kd(name, vgpr=512, accum=256):
    return f'''
.amdhsa_kernel {name}
  .amdhsa_next_free_vgpr {vgpr}
  .amdhsa_next_free_sgpr 102
  .amdhsa_accum_offset {accum}
  .amdhsa_group_segment_fixed_size 0
  .amdhsa_kernarg_size 112
  .amdhsa_user_sgpr_count 2
  .amdhsa_user_sgpr_kernarg_segment_ptr 1
  .amdhsa_system_sgpr_workgroup_id_x 1
.end_amdhsa_kernel
'''

def common_entry(A):
    A(f'''
s_load_dwordx4 s[4:7], s[0:1], 96
s_getreg_b32 s3, hwreg(HW_REG_XCC_ID)
s_and_b32 s3, s3, 0xf
v_lshrrev_b32 v1, 6, v0
v_readfirstlane_b32 s32, v1
s_waitcnt lgkmcnt(0)''')
    srd(A, 12, 4, 256)
    srd(A, 8, 6, WS_BYTES)

def gen_chain_test(stamps=False, **kw):
    A = Asm()
    A.raw('; @launch kernel=chain_kernel grid=(256,1,1) block=(256,1,1) lds=163840')
    A.raw('.amdgcn_target "amdgcn-amd-amdhsa--gfx950"')
    A.raw('.text\n.globl chain_kernel\n.p2align 8\n.type chain_kernel,@function')
    A.label('chain_kernel')
    A('s_cmp_ge_u32 s2, 256\ns_cbranch_scc1 L_end')
    common_entry(A)
    A('''s_cmp_lg_u32 s3, 0
s_cbranch_scc1 L_end
s_memtime s[96:97]
s_memrealtime s[6:7]
v_mov_b32 v3, 0
v_mov_b32 v4, 1
s_cmp_lg_u32 s32, 0
s_cbranch_scc1 L_noticket
s_mov_b64 exec, 1
buffer_atomic_add v4, v3, s[12:15], 0 offen sc0
s_waitcnt vmcnt(0)
ds_write_b32 v3, v4
s_waitcnt lgkmcnt(0)
s_mov_b64 exec, -1
L_noticket:
s_barrier
ds_read_b32 v4, v3
s_waitcnt lgkmcnt(0)
v_readfirstlane_b32 s33, v4
s_barrier
s_cmp_ge_u32 s33, 32
s_cbranch_scc1 L_end''')
    emit_chain(A, stamps=stamps, **kw)
    if stamps:
        A('s_waitcnt lgkmcnt(0)')
        for i, r in enumerate([40,42,44,46,48,50,52,84,98,88,90,92,94,100,96,35]): A(f'v_mov_b32 v{20+i}, s{r}')
        A('''s_lshl_b32 s36, s33, 2
s_add_u32 s36, s36, s32
s_lshl_b32 s36, s36, 6
s_add_u32 s36, s36, 0x8000
v_mov_b32 v40, s36
s_mov_b64 exec, 1
buffer_store_dwordx4 v[20:23], v40, s[8:11], 0 offen
buffer_store_dwordx4 v[24:27], v40, s[8:11], 0 offen offset:16
buffer_store_dwordx4 v[28:31], v40, s[8:11], 0 offen offset:32
buffer_store_dwordx4 v[32:35], v40, s[8:11], 0 offen offset:48
s_mov_b64 exec, -1''')
    A('''s_memtime s[98:99]
s_memrealtime s[4:5]
s_waitcnt lgkmcnt(0)
s_sub_u32 s98, s98, s96
s_sub_u32 s4, s4, s6
s_cmp_eq_u32 s33, 1
s_cselect_b32 s98, s4, s98
v_mov_b32 v20, s98
v_mov_b32 v21, s35
s_lshl_b32 s36, s33, 2
s_add_u32 s36, s36, s32
s_cmp_ge_u32 s36, 16
s_cbranch_scc1 L_end
s_lshl_b32 s36, s36, 3
s_add_u32 s36, s36, 128
v_mov_b32 v22, s36
s_mov_b64 exec, 1
buffer_store_dwordx2 v[20:21], v22, s[12:15], 0 offen
L_end:
s_endpgm''')
    A.raw('.section .rodata,"a"\n.p2align 6')
    A.raw(kd('chain_kernel'))
    return A.text()

if __name__ == '__main__':
    open('chain.s', 'w').write(gen_chain_test())
    open('chain_st.s', 'w').write(gen_chain_test(stamps=True))
```

```python
import math
from gen import *

W_L16, W_LANE, W_TR, W_VO = 0, 1, 2, 3

def ar(b, n=4): return f'a[{b}:{b+n-1}]'

def worker_setup(A):
    A(f'''v_and_b32 v{W_LANE}, 63, v0
v_lshlrev_b32 v{W_L16}, 4, v{W_LANE}
s_mul_i32 s52, s32, 40960
v_lshlrev_b32 v{W_TR}, 3, v{W_LANE}
v_add_u32 v{W_TR}, s52, v{W_TR}
s_mov_b32 s35, 1000000''')

def load_units(A, units, depth=9):
    n_u = len(units)
    def issue(n):
        sl = n % 10
        for mp, (sr, sb, c) in enumerate(units[n][0]):
            A(f's_add_u32 m0, s52, {sl*4096 + mp*1024}')
            A(f's_add_u32 s38, s{sb}, {c}')
            A(f'buffer_load_dwordx4 v{W_VO}, s[{sr}:{sr+3}], s38 offen lds')
    for n in range(min(depth, n_u)): issue(n)
    for n in range(n_u):
        later = min(n_u - 1, n + depth - 1) - n
        A(f's_waitcnt vmcnt({4*later})')
        for T in range(2):
            for mp in range(4):
                A(f'ds_read_b64_tr_b16 {units[n][1][mp][T]}, v{W_TR} offset:{(n%10)*4096 + mp*1024 + T*512}')
        if n + depth < n_u:
            A('s_waitcnt lgkmcnt(8)')
            issue(n + depth)
    A('s_waitcnt lgkmcnt(0)\ns_barrier')

def lane_bits(A):
    A(f'''v_bfe_u32 v21, v{W_LANE}, 4, 1
v_bfe_u32 v22, v{W_LANE}, 3, 1
v_bfe_u32 v23, v{W_LANE}, 2, 1
v_bfe_u32 v24, v{W_LANE}, 1, 1
v_and_b32 v25, 1, v{W_LANE}
v_lshrrev_b32 v26, 5, v{W_LANE}''')

def voff_dmap(A, stride):
    lane_bits(A)
    A(f'''v_lshlrev_b32 v27, 3, v21
v_lshl_add_u32 v27, v22, 1, v27
v_lshl_add_u32 v27, v23, 2, v27
v_lshl_add_u32 v27, v24, 5, v27
v_mul_u32_u24 v27, {stride}, v27
v_lshl_add_u32 v27, v26, 5, v27
v_lshl_add_u32 v{W_VO}, v25, 4, v27''')

def drow(t, mp): return 64 * t + 16 * (mp >> 1) + (mp & 1)

def atomic_flag(A, soff, vtmp):
    A(f'''s_mov_b64 exec, 1
v_mov_b32 v{vtmp}, 1
v_mov_b32 v{vtmp+1}, 0
buffer_atomic_add v{vtmp}, v{vtmp+1}, s[8:11], {soff} offen sc1
s_mov_b64 exec, -1''')

def emit_init(A):
    A(f'''v_mov_b32 v16, 0
v_mov_b32 v17, 0
v_mov_b32 v18, 0
v_mov_b32 v19, 0
s_lshl_b32 s36, s32, 13
s_add_u32 s37, s36, 4096''')
    for i in range(8):
        A(f'buffer_store_dwordx4 v[16:19], v{W_L16}, s[8:11], s{36 + (i>>2)} offen offset:{(i&3)*1024} sc1')
    A(f'''s_waitcnt vmcnt(0)
s_mov_b64 exec, 1
v_mov_b32 v16, 1
v_mov_b32 v17, {DBG_GATE}
buffer_atomic_add v16, v17, s[12:15], 0 offen sc1
s_mov_b64 exec, -1''')

def emit_ln(A, sseg, gate=True):
    A('s_load_dwordx2 s[4:5], s[0:1], 0\ns_waitcnt lgkmcnt(0)')
    srd(A, 16, 4, 0x200000)
    RAW = 16; X = 48
    A(f'''v_lshlrev_b32 v4, 7, v{W_LANE}
s_lshl_b32 s36, s{sseg}, 15
s_lshl_b32 s37, s32, 13
s_add_u32 s36, s36, s37''')
    for i in range(8): A(f'buffer_load_dwordx4 {vr(RAW+4*i)}, v4, s[16:19], s36 offen offset:{16*i}')
    A(f'''v_and_b32 v5, 7, v{W_LANE}
v_lshlrev_b32 v5, 11, v5
v_lshrrev_b32 v6, 3, v{W_LANE}
v_lshl_add_u32 v5, v6, 4, v5
s_lshl_b32 s36, s{sseg}, 15
s_lshr_b32 s37, s32, 1
s_lshl_b32 s37, s37, 14
s_add_u32 s36, s36, s37
s_and_b32 s37, s32, 1
s_lshl_b32 s37, s37, 7
s_add_u32 s36, s36, s37
s_add_u32 s39, s36, {XFB}
s_mov_b32 s38, 0xffff0000''')
    for i in range(8):
        A(f's_waitcnt vmcnt({7-i})')
        for q in range(4):
            d = 4 * i + q
            A(f'v_lshlrev_b32 v{X+2*d}, 16, v{RAW+d}\nv_and_b32 v{X+2*d+1}, s38, v{RAW+d}')
    def red8(r):
        A(f'''v_add_f32_dpp v{r}, v{r}, v{r} quad_perm:[1,0,3,2] row_mask:0xf bank_mask:0xf
v_add_f32_dpp v{r}, v{r}, v{r} quad_perm:[2,3,0,1] row_mask:0xf bank_mask:0xf
v_add_f32_dpp v{r}, v{r}, v{r} row_half_mirror row_mask:0xf bank_mask:0xf''')
    for a in range(4): A(f'v_add_f32 v{8+a}, v{X+a}, v{X+4+a}')
    for c in range(8, 64): A(f'v_add_f32 v{8+(c&3)}, v{8+(c&3)}, v{X+c}')
    A('v_add_f32 v8, v8, v9\nv_add_f32 v10, v10, v11\nv_add_f32 v8, v8, v10')
    red8(8)
    A(f'v_mul_f32 v7, {f32bits(1/512)}, v8')
    for a in range(4): A(f'v_mov_b32 v{8+a}, 0')
    for c in range(64):
        A(f'v_sub_f32 v{12+(c&3)}, v{X+c}, v7\nv_fmac_f32 v{8+(c&3)}, v{12+(c&3)}, v{12+(c&3)}')
    A('v_add_f32 v8, v8, v9\nv_add_f32 v10, v10, v11\nv_add_f32 v8, v8, v10')
    red8(8)
    A(f'''v_mul_f32 v8, {f32bits(1/512)}, v8
v_cvt_pk_bf16_f32 v9, v7, v8
v_lshlrev_b32 v7, 16, v9
v_and_b32 v8, s38, v9
v_add_f32 v8, {f32bits(1e-5)}, v8
v_cvt_pk_bf16_f32 v8, v8, v8
v_and_b32 v8, s38, v8
v_sqrt_f32 v8, v8
v_cvt_pk_bf16_f32 v8, v8, v8
v_and_b32 v8, s38, v8
v_rcp_f32 v8, v8''')
    for hi in range(2):
        for g in range(4):
            b = 16 * hi + 8 * (g >> 1) + 2 * (g & 1)
            o = RAW + 4 * (4 * hi + g)
            for q, c in enumerate((b, b + 4, b + 1, b + 5)):
                lo, hh = X + c, X + c + 32
                A(f'''v_sub_f32 v{lo}, v{lo}, v7
v_sub_f32 v{hh}, v{hh}, v7
v_cvt_pk_bf16_f32 v{hh}, v{lo}, v{hh}
v_lshlrev_b32 v{lo}, 16, v{hh}
v_and_b32 v{hh}, s38, v{hh}
v_mul_f32 v{lo}, v{lo}, v8
v_mul_f32 v{hh}, v{hh}, v8
v_cvt_pk_bf16_f32 v{o+q}, v{lo}, v{hh}''')
            A(f'buffer_store_dwordx4 {vr(o)}, v5, s[8:11], s39 offen offset:{hi*1024+g*256} sc1')
    if gate: wait_dbg(A, 'ln_gate', DBG_GATE, 4, 8, 9)
    else: A('s_waitcnt vmcnt(0)')
    A(f's_lshl_b32 s36, s{sseg}, 7\ns_add_u32 s36, s36, {FLAGS+F_XN}')
    atomic_flag(A, 's36', 8)

def wait_all_xn(A, lbl, gate=True):
    if gate: wait_dbg(A, f'{lbl}_gate', DBG_GATE, 4, 8, 9)
    A(f'''v_lshlrev_b32 v8, 7, v{W_LANE}
s_mov_b32 s37, {FLAGS+F_XN}
{lbl}:
buffer_load_dword v9, v8, s[8:11], s37 offen sc1
s_waitcnt vmcnt(0)
v_cmp_gt_u32 vcc, 4, v9
s_cbranch_vccz {lbl}_ok
s_sleep 2
s_sub_u32 s35, s35, 1
s_cbranch_scc0 {lbl}
s_mov_b32 s35, 0
{lbl}_ok:''')

def xf_loop(A, tag, stride, nst, mfmas, epilogue, flag_soff, active=None):
    XV = 4; XA = [[8, 12], [16, 20]]
    def dma(seg):
        A(f'''s_min_u32 s36, s{seg}, 63
s_lshl_b32 s36, s36, 15
s_add_u32 s36, s36, s42
s_add_u32 s37, s36, 4096
s_mov_b32 m0, s43''')
        for i in range(4): A(f'buffer_load_dwordx4 v{W_L16}, s[8:11], s36 offen offset:{i*1024} sc1 lds')
        A('s_add_u32 m0, s43, 4096')
        for i in range(4): A(f'buffer_load_dwordx4 v{W_L16}, s[8:11], s37 offen offset:{i*1024} sc1 lds')
        A('s_xor_b32 s43, s43, 0x8000')
    A(f'''s_lshl_b32 s43, s32, 13
s_add_u32 s42, s43, {XFB}
v_mov_b32 v{XV}, v{W_L16}
s_mov_b32 s44, -1''')
    dma(40)
    A(f'''s_waitcnt vmcnt(0)
{tag}_top:
s_barrier
s_add_u32 s41, s40, {stride}''')
    dma(41)
    if active: A(f's_cmp_eq_u32 s{active}, 0\ns_cbranch_scc1 {tag}_skip')
    def rd(ks):
        for tt in range(2): A.ds(f'ds_read_b128 {vr(XA[ks&1][tt])}, v{XV} offset:{tt*16384 + ks*1024}', f'x{ks}')
    A.lds_q = []
    rd(0)
    for ks in range(16):
        A.wait_lds(f'x{ks}')
        if ks < 15: rd(ks + 1)
        mfmas(ks, XA[ks & 1])
        if ks == 13:
            A(f's_waitcnt vmcnt(0)\ns_cmp_lt_i32 s44, 0\ns_cbranch_scc1 {tag}_noflag')
            flag_soff(44); atomic_flag(A, 's36', 6)
            A(f'{tag}_noflag:')
    epilogue()
    A(f'''s_mov_b32 s44, s40
{tag}_next:
v_xor_b32 v{XV}, 0x8000, v{XV}
s_mov_b32 s40, s41
s_cmp_lt_u32 s40, 64
s_cbranch_scc1 {tag}_top
s_waitcnt vmcnt(0)''')
    if active: A(f's_cmp_eq_u32 s{active}, 0\ns_cbranch_scc1 {tag}_end')
    flag_soff(44); atomic_flag(A, 's36', 6)
    if active:
        A(f's_branch {tag}_end\n{tag}_skip:\ns_waitcnt vmcnt(0)\ns_branch {tag}_next')
    A(f'{tag}_end:\ns_barrier')

def MFd(A, d, a, b, c): A(f'v_mfma_f32_16x16x32_bf16 {d}, {a}, {b}, {c}')

def qkv_frag(m, t, T):
    i = 2 * t + T
    return {'k': f'a[{8*i}:{8*i+7}]', 'v': f'a[{128+8*i}:{128+8*i+7}]', 'q': f'v[{128+8*i}:{128+8*i+7}]'}[m]

def emit_qkv(A, gate=True):
    A('''s_load_dwordx4 s[16:19], s[0:1], 16
s_load_dwordx2 s[24:25], s[0:1], 32
s_waitcnt lgkmcnt(0)
s_mov_b32 s20, s18
s_and_b32 s21, s19, 0xffff
s_mov_b32 s22, 0x400000
s_mov_b32 s23, 0x20000
s_and_b32 s17, s17, 0xffff
s_mov_b32 s18, 0x400000
s_mov_b32 s19, 0x20000
s_and_b32 s25, s25, 0xffff
s_mov_b32 s26, 0x400000
s_mov_b32 s27, 0x20000
s_lshl_b32 s45, s33, 8
s_lshl_b32 s37, s32, 6
s_add_u32 s45, s45, s37''')
    voff_dmap(A, 8192)
    units = []
    for t in range(8):
        for m in 'kvq':
            sr = {'q': 16, 'k': 20, 'v': 24}[m]
            units.append(([(sr, 45, drow(t, mp) * 8192) for mp in range(4)],
                          [[sub(qkv_frag(m, t, T), 2 * mp, 2) for T in range(2)] for mp in range(4)]))
    load_units(A, units)
    prof(A, 2, 36)
    wait_all_xn(A, 'qkv_xn', gate)
    prof(A, 3, 36)
    ACC = 24; PKB = 72
    def acc(m, T, tt): return ACC + 4 * ('qkv'.index(m) * 4 + T * 2 + tt)
    def mfmas(ks, XA):
        for m in 'qkv':
            for T in range(2):
                w = sub(qkv_frag(m, ks >> 1, T), 4 * (ks & 1), 4)
                for tt in range(2):
                    d = vr(acc(m, T, tt)); c = '0' if ks == 0 else d
                    if m == 'v': MFd(A, d, vr(XA[tt]), w, c)
                    else: MFd(A, d, w, vr(XA[tt]), c)
    def epi():
        A(f'''s_lshl_b32 s36, s33, 6
s_add_u32 s36, s36, s40
s_lshl_b32 s37, s36, 14
s_lshl_b32 s36, s36, 13
s_lshl_b32 s38, s32, 10
s_add_u32 s36, s36, s38
s_add_u32 s36, s36, {QFB}
s_add_u32 s46, s36, 4096
s_add_u32 s39, s37, s38
s_add_u32 s39, s39, {KVB}
s_add_u32 s47, s39, 4096
s_add_u32 s37, s39, s38
s_add_u32 s37, s37, 8192''')
        def pk(o, a, b):
            A(f'''v_cvt_pk_bf16_f32 v{o}, v{a}, v{a+1}
v_cvt_pk_bf16_f32 v{o+1}, v{a+2}, v{a+3}
v_cvt_pk_bf16_f32 v{o+2}, v{b}, v{b+1}
v_cvt_pk_bf16_f32 v{o+3}, v{b+2}, v{b+3}''')
        n = 0
        for m, so in (('q', (36, 46)), ('k', (39, 47))):
            for tt in range(2):
                o = PKB + 4 * n; n += 1
                pk(o, acc(m, 0, tt), acc(m, 1, tt))
                A(f'buffer_store_dwordx4 {vr(o)}, v{W_L16}, s[8:11], s{so[tt]} offen sc1')
        for T in range(2):
            o = PKB + 4 * n; n += 1
            pk(o, acc('v', T, 0), acc('v', T, 1))
            A(f'buffer_store_dwordx4 {vr(o)}, v{W_L16}, s[8:11], s37 offen offset:{T*1024} sc1')
    def fl(seg): A(f's_lshl_b32 s36, s33, 8\ns_lshl_b32 s37, s{seg}, 2\ns_add_u32 s36, s36, s37')
    xf_loop(A, 'qkv', 7, 6, mfmas, epi, fl)
    prof(A, 4, 36)

def emit_gu(A, nsets):
    A('''s_load_dwordx4 s[16:19], s[0:1], 64
s_waitcnt lgkmcnt(0)
s_mov_b32 s20, s18
s_and_b32 s21, s19, 0xffff
s_mov_b32 s22, 1409024
s_mov_b32 s23, 0x20000
s_and_b32 s17, s17, 0xffff
s_mov_b32 s18, 1409024
s_mov_b32 s19, 0x20000
s_lshl_b32 s49, s48, 2
s_add_u32 s49, s49, s32
s_cmp_lt_u32 s49, 43
s_cselect_b32 s50, 1, 0
s_min_u32 s49, s49, 42
s_lshl_b32 s45, s49, 6''')
    voff_dmap(A, 2752)
    def frag(m, t, T):
        i = 2 * t + T; b = 128 * 'gu'.index(m) + 8 * i
        return f'a[{b}:{b+7}]'
    units = []
    for t in range(8):
        for m in 'gu':
            units.append(([({'g': 16, 'u': 20}[m], 45, drow(t, mp) * 2752) for mp in range(4)],
                          [[sub(frag(m, t, T), 2 * mp, 2) for T in range(2)] for mp in range(4)]))
    load_units(A, units)
    prof(A, 5, 36)
    ACC = 24; PKB = 72
    def acc(m, T, tt): return ACC + 4 * ('gu'.index(m) * 4 + T * 2 + tt)
    def mfmas(ks, XA):
        for m in 'gu':
            for T in range(2):
                w = sub(frag(m, ks >> 1, T), 4 * (ks & 1), 4)
                for tt in range(2):
                    d = vr(acc(m, T, tt)); c = '0' if ks == 0 else d
                    MFd(A, d, w, vr(XA[tt]), c)
    c1 = -2 * math.sqrt(2 / math.pi) * math.log2(math.e); c2 = c1 * 0.044715
    def epi():
        A(f'''s_mul_i32 s36, s40, {2*44*1024}
s_lshl_b32 s37, s49, 10
s_add_u32 s36, s36, s37
s_add_u32 s36, s36, {HFB}
s_add_u32 s37, s36, {44*1024}
s_mov_b32 s38, {f32bits(c2)}
v_mov_b32 v56, {f32bits(c1)}''')
        for tt in range(2):
            for T in range(2):
                g = acc('g', T, tt); u = acc('u', T, tt); t = 60
                for r in range(4): A(f'v_mul_f32 v{t+r}, v{g+r}, v{g+r}')
                for r in range(4): A(f'v_fma_f32 v{t+r}, v{t+r}, s38, v56')
                for r in range(4): A(f'v_mul_f32 v{t+r}, v{t+r}, v{g+r}')
                for r in range(4): A(f'v_exp_f32 v{t+r}, v{t+r}')
                for r in range(4): A(f'v_mul_f32 v{g+r}, v{g+r}, v{u+r}')
                for r in range(4): A(f'v_add_f32 v{t+r}, 1.0, v{t+r}')
                for r in range(4): A(f'v_rcp_f32 v{t+r}, v{t+r}')
                for r in range(4): A(f'v_mul_f32 v{g+r}, v{g+r}, v{t+r}')
                o = PKB + 4 * tt + 2 * T
                A(f'v_cvt_pk_bf16_f32 v{o}, v{g}, v{g+1}\nv_cvt_pk_bf16_f32 v{o+1}, v{g+2}, v{g+3}')
            A(f'buffer_store_dwordx4 {vr(PKB+4*tt)}, v{W_L16}, s[8:11], s{36+tt} offen sc1')
    def fl(seg): A(f's_lshl_b32 s36, s{seg}, 7\ns_add_u32 s36, s36, {FLAGS+F_H}')
    xf_loop(A, 'gu', nsets, 2, mfmas, epi, fl, active=50)
    prof(A, 6, 36)

def emit_att(A, stride):
    IDX, QW, TRA, B0, TMP = 4, 5, 6, 7, 8
    MF_ = [16 + 4 * i for i in range(8)]
    AK = [48, 52]; AV = [56, 60]
    KX = lambda tt, k: 64 + 16 * tt + 4 * k
    QX = lambda tt, k: 96 + 16 * tt + 4 * k
    VX = [128, 132]; KM = [136 + 4 * k for k in range(4)]
    S = {(0, 0): 152, (0, 1): 156, (1, 0): 160, (1, 1): 164, (1, 2): 168}
    PB = [172, 176]; PM = [180, 182]; VM = 184; ONES = 188; ONE2 = 192; NEG = 194
    LS = [196, 200]; O = lambda tt, T: 204 + 8 * tt + 4 * T
    OFR = [220, 224]
    L_M = 0; L_K = 8192
    A(f'''v_and_b32 v21, 8, v{W_LANE}
v_cmp_eq_u32 vcc, 0, v21
v_mov_b32 v22, 0xeeee
v_mov_b32 v23, 0x4444
v_cndmask_b32 v{IDX}, v22, v23, vcc
v_lshrrev_b32 v21, 5, v{W_LANE}
v_and_b32 v22, 15, v{W_LANE}
v_lshl_add_u32 v21, v21, 4, v22
v_lshlrev_b32 v21, 4, v21
v_bfe_u32 v22, v{W_LANE}, 4, 1
v_lshl_add_u32 v21, v22, 3, v21
s_lshl_b32 s38, s32, 9
v_add_u32 v{QW}, s38, v21
v_lshrrev_b32 v21, 2, v{W_LANE}
v_lshlrev_b32 v21, 4, v21
v_and_b32 v22, 1, v{W_LANE}
v_lshl_add_u32 v{TRA}, v22, 3, v21
s_lshl_b32 s53, s32, 11
v_add_u32 v{B0}, s53, v{W_L16}
s_mov_b32 s68, {f32bits(128 ** -0.5 * math.log2(math.e))}
v_mov_b32 v{ONES}, 0x3f803f80
v_mov_b32 v{ONES+1}, 0x3f803f80
v_mov_b32 v{ONES+2}, 0x3f803f80
v_mov_b32 v{ONES+3}, 0x3f803f80
s_mov_b32 s82, -1
s_mov_b32 s83, 0
v_cndmask_b32 v{ONE2}, 0, v{ONES}, s[82:83]
v_cndmask_b32 v{ONE2+1}, 0, v{ONES}, s[82:83]
v_mov_b32 v{NEG}, 0xf149f2ca
v_mov_b32 v{PB[0]+2}, 0
v_mov_b32 v{PB[0]+3}, 0
v_lshrrev_b32 v21, 4, v{W_LANE}
v_lshlrev_b32 v21, 2, v21
v_and_b32 v22, 15, v{W_LANE}''')
    for r in range(4):
        A(f'v_add_u32 v23, {r}, v21\nv_cmp_le_u32 s[{72+2*r}:{73+2*r}], v23, v22')
    wait_dbg(A, 'att_wreg', DBG_CHAINCNT, 128, 8, 9)
    A(f'''att_top:
s_lshl_b32 s37, s33, 8
s_lshl_b32 s38, s40, 2
s_add_u32 s37, s37, s38
v_mov_b32 v9, 0''')
    wait_cnt(A, 'att_kv', 8, 9, 's37', 4, 8, sleep=2)
    A(f'''s_lshl_b32 s36, s33, 6
s_add_u32 s36, s36, s40
s_lshl_b32 s37, s36, 14
s_lshl_b32 s36, s36, 13
s_add_u32 s36, s36, {QFB}
s_add_u32 s38, s36, 4096
s_add_u32 s37, s37, {KVB}
s_add_u32 s39, s37, 4096
s_add_u32 s46, s37, 8192''')
    for tt in range(2):
        for k in range(4):
            A(f'buffer_load_dwordx4 {vr(KX(tt,k))}, v{W_L16}, s[8:11], s{(37,39)[tt]} offen offset:{k*1024} sc1')
            A(f'buffer_load_dwordx4 {vr(QX(tt,k))}, v{W_L16}, s[8:11], s{(36,38)[tt]} offen offset:{k*1024} sc1')
    for T in range(2): A(f'buffer_load_dwordx4 {vr(VX[T])}, v{B0}, s[8:11], s46 offen offset:{T*1024} sc1')
    for a in AK + AV: A(f'v_mov_b64 v[{a}:{a+1}], 0\nv_mov_b64 v[{a+2}:{a+3}], 0')
    A('s_waitcnt vmcnt(0)')
    for k in range(4):
        for key in ((0, 1), (1, 1), (1, 2)):
            d = vr(S[key]); MFd(A, d, vr(KX(key[1] - 1, k)), vr(QX(key[0], k)), '0' if k == 0 else d)
    A(f'''s_lshl_b32 s47, s40, 13
s_add_u32 s47, s47, {GMEMB}
att_poll:
buffer_load_dwordx4 {vr(MF_[0])}, v{B0}, s[8:11], s47 offen sc1
buffer_load_dwordx4 {vr(MF_[1])}, v{B0}, s[8:11], s47 offen offset:1024 sc1
s_waitcnt vmcnt(0)
v_max3_u32 v8, v16, v17, v18
v_max3_u32 v8, v8, v19, v20
v_max3_u32 v8, v8, v21, v22
v_max_u32 v8, v8, v23
v_cmp_eq_u32 vcc, -1, v8
s_cbranch_vccz att_ok
s_sleep 1
s_sub_u32 s35, s35, 1
s_cbranch_scc0 att_poll
s_mov_b32 s35, 0
att_ok:
ds_write_b128 v{B0}, {vr(MF_[0])} offset:{L_M}
ds_write_b128 v{B0}, {vr(MF_[1])} offset:{L_M+1024}
s_waitcnt lgkmcnt(0)
s_barrier''')
    A.lds_q = []
    for t in range(8): A.ds(f'ds_read_b128 {vr(MF_[t])}, v{W_L16} offset:{L_M + t*1024}', f'm{t}')
    def SM(acc, t, m, T): A(f'v_smfmac_f32_16x16x64_bf16 {vr(acc)}, {vr(MF_[t])}, {qkv_frag(m,t,T)}, v{IDX}')
    for t in range(8):
        A.wait_lds(f'm{t}')
        SM(AK[0], t, 'k', 0); SM(AK[1], t, 'k', 1)
    fold = [f'v_permlane32_swap_b32 v{AK[0]+r}, v{AK[1]+r}' for r in range(4)] + [f'v_add_f32 v{AK[0]+r}, v{AK[0]+r}, v{AK[1]+r}' for r in range(4)]
    fold += [f'v_cvt_pk_bf16_f32 v8, v{AK[0]}, v{AK[0]+1}', f'v_cvt_pk_bf16_f32 v9, v{AK[0]+2}, v{AK[0]+3}']
    n = 0
    for t in range(8):
        for T in range(2):
            SM(AV[T], t, 'v', T); n += 1
            if 3 <= n <= 7: A(fold[2*(n-3)]); A(fold[2*(n-3)+1])
            if n == 8: A.ds(f'ds_write_b64 v{QW}, v[8:9] offset:{L_K}', 'kw')
            if n == 12:
                A.wait_lds('kw'); A('s_barrier')
            if n >= 13:
                k = n - 13
                for hf in range(2): A.ds(f'ds_read_b64_tr_b16 {vr(KM[k]+2*hf,2)}, v{TRA} offset:{L_K + k*512 + hf*256}', f'km{k}')
    for key in ((0, 1), (1, 2)):
        for r in range(4): A(f'v_cndmask_b32 v{S[key]+r}, v{NEG}, v{S[key]+r}, s[{72+2*r}:{73+2*r}]')
    for k in range(4):
        A.wait_lds(f'km{k}')
        for tt in range(2):
            d = vr(S[(tt, 0)]); MFd(A, d, vr(KM[k]), vr(QX(tt, k)), '0' if k == 0 else d)
    for T in range(2):
        A(f'v_cvt_pk_bf16_f32 v{VM+2*T}, v{AV[T]}, v{AV[T]+1}\nv_cvt_pk_bf16_f32 v{VM+2*T+1}, v{AV[T]+2}, v{AV[T]+3}')
    A(f'''s_lshl_b32 s36, s40, 18
s_lshl_b32 s37, s33, 12
s_add_u32 s36, s36, s37
s_lshl_b32 s37, s32, 10
s_add_u32 s36, s36, s37
s_add_u32 s36, s36, {OFB}
s_add_u32 s37, s36, 0x20000''')
    for tt in range(2):
        regs = [S[k] + r for k in S if k[0] == tt for r in range(4)]
        m = 8 + 2 * tt; t1 = m + 1
        A(f'v_max3_f32 v{m}, v{regs[0]}, v{regs[1]}, v{regs[2]}')
        i = 3
        while i + 1 < len(regs):
            A(f'v_max3_f32 v{m}, v{m}, v{regs[i]}, v{regs[i+1]}'); i += 2
        A(f'''v_max_f32 v{m}, v{m}, v{regs[i]}
v_mov_b32 v{t1}, v{m}
v_permlane32_swap_b32 v{m}, v{t1}
v_max_f32 v{m}, v{m}, v{t1}
v_mov_b32 v{t1}, v{m}
v_permlane16_swap_b32 v{m}, v{t1}
v_max_f32 v{m}, v{m}, v{t1}
v_mul_f32 v{m}, s68, v{m}''')
        for r in regs: A(f'v_fma_f32 v{r}, v{r}, s68, -v{m}')
        for r in regs: A(f'v_exp_f32 v{r}, v{r}')
        for key in S:
            if key[0] != tt: continue
            o = PM[tt] if key[1] == 0 else PB[tt] + 2 * (key[1] - 1)
            A(f'v_cvt_pk_bf16_f32 v{o}, v{S[key]}, v{S[key]+1}\nv_cvt_pk_bf16_f32 v{o+1}, v{S[key]+2}, v{S[key]+3}')
        MFd(A, vr(LS[tt]), vr(ONES), vr(PB[tt]), '0')
        for T in range(2): MFd(A, vr(O(tt, T)), vr(VX[T]), vr(PB[tt]), '0')
        A(f'v_mfma_f32_16x16x16_bf16 {vr(LS[tt])}, {vr(ONE2,2)}, {vr(PM[tt],2)}, {vr(LS[tt])}')
        for T in range(2): A(f'v_mfma_f32_16x16x16_bf16 {vr(O(tt,T))}, {vr(VM+2*T,2)}, {vr(PM[tt],2)}, {vr(O(tt,T))}')
    for tt in range(2):
        A(f'v_rcp_f32 v12, v{LS[tt]}')
        for T in range(2):
            o = O(tt, T)
            for r in range(4): A(f'v_mul_f32 v{o+r}, v{o+r}, v12')
            A(f'v_cvt_pk_bf16_f32 v{OFR[tt]+2*T}, v{o}, v{o+1}\nv_cvt_pk_bf16_f32 v{OFR[tt]+2*T+1}, v{o+2}, v{o+3}')
        A(f'buffer_store_dwordx4 {vr(OFR[tt])}, v{W_L16}, s[8:11], s{36+tt} offen sc1')
    A(f'''s_waitcnt vmcnt(0)
s_barrier
s_cmp_lg_u32 s32, 0
s_cbranch_scc1 att_nf
s_lshl_b32 s36, s40, 7
s_add_u32 s36, s36, {FLAGS+F_O}''')
    atomic_flag(A, 's36', 8)
    A('att_nf:')
    prof(A, 16, 10, 40)
    A(f'''s_add_u32 s40, s40, {stride}
s_cmp_lt_u32 s40, 64
s_cbranch_scc1 att_top''')

def emit_out(A, nsets):
    A('''s_load_dwordx2 s[4:5], s[0:1], 40
s_load_dwordx4 s[20:23], s[0:1], 80
s_load_dwordx2 s[6:7], s[0:1], 0
s_waitcnt lgkmcnt(0)''')
    srd(A, 16, 4, 0x400000)
    srd(A, 24, 22, 0x200000)
    A('s_and_b32 s21, s21, 0xffff\ns_mov_b32 s22, 1409024\ns_mov_b32 s23, 0x20000')
    srd(A, 28, 6, 0x200000)
    A(f'''v_bfe_u32 v21, v{W_LANE}, 1, 4
v_lshlrev_b32 v21, 10, v21
v_lshrrev_b32 v22, 5, v{W_LANE}
v_lshl_add_u32 v21, v22, 5, v21
v_and_b32 v22, 1, v{W_LANE}
v_lshl_add_u32 v{W_VO}, v22, 4, v21
s_lshl_b32 s37, s48, 6
s_lshl_b32 s45, s32, 20
s_add_u32 s45, s45, s37
s_lshl_b32 s46, s32, 15
s_add_u32 s46, s46, s37''')
    def wo(ks, T): return ar(8 * ks + 4 * T)
    def wd(i, T): return vr(168 + 8 * i + 4 * T)
    units = []
    for u in range(6):
        dm = []; de = []
        for mp in range(4):
            i = 2 * u + (mp >> 1); m2 = mp & 1
            dm.append((20, 46, (128 * i + 16 * m2) * 1024))
            de.append([sub(wd(i, T) if i < 11 else vr(32 + 4 * T), 2 * m2, 2) for T in range(2)])
        units.append((dm, de))
    for u in range(16):
        dm = []; de = []
        for mp in range(4):
            ks = 2 * u + (mp >> 1); m2 = mp & 1
            dm.append((16, 45, (32 * ks + 16 * m2) * 1024))
            de.append([sub(wo(ks, T), 2 * m2, 2) for T in range(2)])
        units.append((dm, de))
    load_units(A, units)
    prof(A, 7, 36)
    ACC = [16, 20]; XR = 24; BF = 32; RW = 4; OA = 5
    A(f'''s_lshl_b32 s36, s32, 11
v_add_u32 v{RW}, s36, v{W_L16}
v_and_b32 v21, 15, v{W_LANE}
v_lshlrev_b32 v21, 10, v21
v_lshrrev_b32 v22, 4, v{W_LANE}
v_lshl_add_u32 v21, v22, 3, v21
s_lshl_b32 s36, s48, 6
s_lshl_b32 s37, s32, 5
s_add_u32 s36, s36, s37
v_add_u32 v{OA}, s36, v21
s_lshl_b32 s36, s32, 10
v_add_u32 v6, s36, v{W_L16}
v_mov_b32 v9, 0
out_top:
s_lshr_b32 s41, s40, 1
s_lshl_b32 s42, s41, 7
s_cmp_lg_u32 s32, 0
s_cbranch_scc1 out_h_ok
s_add_u32 s37, s42, {FLAGS+F_H}''')
    wait_cnt(A, 'out_h', 8, 9, 's37', 43, 8, sleep=2)
    A(f'''s_barrier
s_mul_i32 s43, s40, {44*1024}
s_add_u32 s43, s43, {HFB}''')
    for i in range(11):
        A(f's_add_u32 s36, s32, {4*i}\ns_min_u32 s36, s36, 42\ns_lshl_b32 s36, s36, 10\ns_add_u32 s36, s36, s43')
        A(f'buffer_load_dwordx4 {vr(BF+4*i)}, v{W_L16}, s[8:11], s36 offen sc1')
    A(f's_lshl_b32 s44, s40, 14\nbuffer_load_dwordx2 {vr(XR,2)}, v{OA}, s[28:31], s44 offen')
    for i in range(11):
        A(f's_waitcnt vmcnt({11-i})')
        for T in range(2): MFd(A, vr(ACC[T]), wd(i, T), vr(BF + 4 * i), '0' if i == 0 else vr(ACC[T]))
    A(f'''s_cmp_lg_u32 s32, 0
s_cbranch_scc1 out_o_ok
s_add_u32 s37, s42, {FLAGS+F_O}''')
    wait_cnt(A, 'out_o', 8, 9, 's37', 32, 8, sleep=1)
    A(f'''s_barrier
s_lshl_b32 s36, s40, 17
s_lshl_b32 s37, s32, 15
s_add_u32 s36, s36, s37
s_add_u32 s36, s36, {OFB}''')
    for i in range(32):
        A(f'buffer_load_dwordx4 {vr(BF+4*i)}, v{W_L16}, s[8:11], s36 offen offset:{(i&3)*1024} sc1')
        if i & 3 == 3: A('s_add_u32 s36, s36, 4096')
    for i in range(32):
        A(f's_waitcnt vmcnt({31-i})')
        for T in range(2): MFd(A, vr(ACC[T]), wo(i, T), vr(BF + 4 * i), vr(ACC[T]))
    A(f'''ds_write_b128 v{RW}, {vr(ACC[0])}
ds_write_b128 v{RW}, {vr(ACC[1])} offset:1024
s_waitcnt lgkmcnt(0)
s_barrier
s_cmp_ge_u32 s32, 2
s_cbranch_scc1 out_next''')
    for w in range(4): A(f'ds_read_b128 {vr(BF+4*w)}, v6 offset:{w*2048}')
    A(f'''v_lshlrev_b32 v26, 16, v{XR}
v_and_b32 v27, 0xffff0000, v{XR}
v_lshlrev_b32 v28, 16, v{XR+1}
v_and_b32 v29, 0xffff0000, v{XR+1}
s_waitcnt lgkmcnt(0)''')
    for r in range(4):
        A(f'v_add_f32 v{BF+r}, v{BF+r}, v{BF+4+r}\nv_add_f32 v{BF+8+r}, v{BF+8+r}, v{BF+12+r}')
    for r in range(4):
        A(f'v_add_f32 v{BF+r}, v{BF+r}, v{BF+8+r}\nv_add_f32 v{BF+r}, v{BF+r}, v{26+r}')
    A(f'''v_cvt_pk_bf16_f32 v30, v{BF}, v{BF+1}
v_cvt_pk_bf16_f32 v31, v{BF+2}, v{BF+3}
buffer_store_dwordx2 v[30:31], v{OA}, s[24:27], s44 offen
out_next:''')
    prof(A, 16, 10, 41)
    A(f'''s_add_u32 s40, s40, {nsets}
s_cmp_lt_u32 s40, 128
s_cbranch_scc1 out_top''')

NAME = 'parallel_sum__memory_aug_recurrent_mem_tr__geglu_ffn__prompt_kernel'

def gen_full(profile=False, **ckw):
    PROF['on'] = profile
    A = Asm()
    A.raw(f'; @launch kernel={NAME} grid=(256,1,1) block=(256,1,1) lds=163840')
    A.raw('.amdgcn_target "amdgcn-amd-amdhsa--gfx950"')
    A.raw(f'.text\n.globl {NAME}\n.p2align 8\n.type {NAME},@function')
    A.label(NAME)
    A('s_cmp_ge_u32 s2, 256\ns_cbranch_scc1 L_end')
    common_entry(A)
    A('''s_lshl_b32 s36, s3, 2
v_mov_b32 v3, s36
v_mov_b32 v4, 1
v_mov_b32 v5, 0
s_cmp_lg_u32 s32, 0
s_cbranch_scc1 L_noticket
s_mov_b64 exec, 1
buffer_atomic_add v4, v3, s[12:15], 0 offen sc0 sc1
s_waitcnt vmcnt(0)
ds_write_b32 v5, v4
s_waitcnt lgkmcnt(0)
s_mov_b64 exec, -1
L_noticket:
s_barrier
ds_read_b32 v4, v5
s_waitcnt lgkmcnt(0)
v_readfirstlane_b32 s33, v4
s_barrier
s_cmp_ge_u32 s33, 32
s_cbranch_scc1 L_end
s_cmp_ge_u32 s3, 8
s_cbranch_scc1 L_end
s_lshl_b32 s91, s3, 5
s_add_u32 s91, s91, s33
s_lshl_b32 s91, s91, 9
s_add_u32 s91, s91, 0x6000000''')
    prof(A, 0, 36)
    A('''s_cmp_lg_u32 s3, 0
s_cbranch_scc1 L_worker''')
    emit_chain(A, gate=True, **ckw)
    A('s_endpgm\nL_worker:')
    worker_setup(A)
    A('''s_sub_u32 s88, s3, 1
s_lshl_b32 s88, s88, 5
s_add_u32 s88, s88, s33          ; wi
s_mul_i32 s33, s88, 9363
s_lshr_b32 s33, s33, 16          ; h = wi/7
s_mul_i32 s36, s33, 7
s_sub_u32 s89, s88, s36          ; r = wi%7
s_cmp_lg_u32 s88, 0
s_cbranch_scc1 L_noinit''')
    emit_init(A)
    A('''L_noinit:
s_cmp_lt_u32 s89, 5
s_cbranch_scc1 L_noln
s_lshl_b32 s90, s33, 1
s_add_u32 s90, s90, s89
s_sub_u32 s90, s90, 5''')
    emit_ln(A, 90)
    A('L_noln:\ns_mov_b32 s40, s89')
    prof(A, 1, 36)
    emit_qkv(A)
    A('''s_cmp_lt_u32 s89, 5
s_cbranch_scc1 L_gu
s_sub_u32 s40, s89, 5''')
    emit_att(A, 2)
    A('''s_endpgm
L_gu:
s_mul_i32 s90, s33, 5
s_add_u32 s90, s90, s89          ; oi
s_cmp_ge_u32 s90, 154
s_cbranch_scc1 L_out
s_mul_i32 s40, s90, 5958
s_lshr_b32 s40, s40, 16
s_mul_i32 s36, s40, 11
s_sub_u32 s48, s90, s36''')
    emit_gu(A, 14)
    A('''L_out:
s_lshr_b32 s40, s90, 4
s_and_b32 s48, s90, 15''')
    emit_out(A, 10)
    A('L_end:\ns_endpgm')
    A.raw('.section .rodata,"a"\n.p2align 6')
    A.raw(kd(NAME))
    return A.text()

if __name__ == '__main__':
    assert all((w * 9363) >> 16 == w // 7 for w in range(224)) and all((w * 5958) >> 16 == w // 11 for w in range(160))
    hdr = open('parallel_sum__memory_aug_recurrent_mem_tr__geglu_ffn__prompt.s.ref').read().split('; Override')[0]
    kw = dict(dB0=40, dB1=16, dA=16, b3k=1, kfs=5)
    open('full.s', 'w').write(hdr + gen_full(**kw))
    open('full_prof.s', 'w').write(hdr + gen_full(profile=True, **kw))
```

```python
import sys, math, struct
sys.path.insert(0, 'dev')
from asmlib import Asm

FLAGS = 0x0000000
MEMB  = 0x0070000
PARTB = 0x0100000
GMEMB = 0x0080000
XFB   = 0x0200000
QFB   = 0x1000000
KVB   = 0x2000000
OFB   = 0x4000000
HFB   = 0x5000000
WS_BYTES = 0x10000000
DBG_TICKET = 0
DBG_CHAINCNT = 64
DBG_GATE = 128
F_XN = 0x2000; F_H = 0x4000; F_O = 0x6000

def f32bits(x): return struct.unpack('<I', struct.pack('<f', x))[0]

def vr(b, n=4): return f'v[{b}:{b+n-1}]'

def srd(A, s, ptr_lo, nbytes):
    A(f'''s_mov_b32 s{s}, s{ptr_lo}
s_and_b32 s{s+1}, s{ptr_lo+1}, 0xffff
s_mov_b32 s{s+2}, {nbytes}
s_mov_b32 s{s+3}, 0x20000''')

PROFB = 0x6000000
PROF = {'on': False, 'n': 0}
def prof(A, idx, vt=None, sidx=None, cyc=False, dbg=None):
    if PROF['on'] == 'dbg':
        if dbg is None: return
        PROF['n'] += 1; l = f"prof_{PROF['n']}"
        A(f'''s_cmp_lg_u32 s32, 0
s_cbranch_scc1 {l}
s_memrealtime s[92:93]
s_waitcnt lgkmcnt(0)
s_and_b32 s92, s92, 0x3fffffff
{"s_not_b32 s92, s92" if dbg == 8 else ""}
s_mov_b64 exec, 1
v_mov_b32 v{vt}, s92
v_mov_b32 v{vt+1}, {dbg*4}
buffer_atomic_umax v{vt}, v{vt+1}, s[12:15], 0 offen sc1
s_mov_b64 exec, -1
{l}:''')
        return
    if not PROF['on']: return
    PROF['n'] += 1; l = f"prof_{PROF['n']}"
    A(f'''s_cmp_lg_u32 s32, 0
s_cbranch_scc1 {l}
s_memrealtime s[92:93]
s_memtime s[100:101]
s_waitcnt lgkmcnt(0)
{"s_bitcmp1_b32 s33, 0" + chr(10) + "s_cselect_b32 s92, s100, s92" if cyc else ""}
s_mov_b64 exec, 1
v_mov_b32 v{vt}, s92
v_mov_b32 v{vt+1}, 0''')
    if sidx is None: A(f's_add_u32 s94, s91, {idx*4}')
    else: A(f's_lshl_b32 s94, s{sidx}, 2\ns_add_u32 s94, s94, s91\ns_add_u32 s94, s94, {idx*4}')
    A(f'''buffer_store_dword v{vt}, v{vt+1}, s[8:11], s94 offen
s_mov_b64 exec, -1
{l}:''')

def wait_cnt(A, lbl, srdn, voff, soff, target, vt, sleep=0):
    A(f'''{lbl}:
buffer_load_dword v{vt}, v{voff}, s[{srdn}:{srdn+3}], {soff} offen sc1
s_waitcnt vmcnt(0)
v_readfirstlane_b32 s36, v{vt}
s_cmp_ge_u32 s36, {target}
s_cbranch_scc1 {lbl}_ok
{f"s_sleep {sleep}" if sleep else ""}
s_sub_u32 s35, s35, 1
s_cbranch_scc0 {lbl}
s_mov_b32 s35, 0
{lbl}_ok:''')

def wait_dbg(A, lbl, off, target, vt, va):
    A(f'v_mov_b32 v{va}, {off}')
    wait_cnt(A, lbl, 12, va, 0, target, vt, sleep=2)

L_MEM = 0; L_OQK = 8192; L_KV = 16384; L_W = 49152; L_WSZ = 28672
V_L16, V_IDX, V_PST, V_SELV, V_MST, V_QW, V_TR, V_B0, V_B1, V_B2, V_B3, V_WV = range(12)
T0, T1, T2, T3 = 12, 13, 14, 15
M = [16, 20, 24, 36, 28, 40, 32, 44]
AQ0, AQ1, AK0, AK1, AV0, AV1 = 48, 52, 56, 60, 64, 68
P = [72 + 8 * i for i in range(5)]
VB = [V_B0, V_B1, V_B2, V_B3]


def chain_frag_map():
    units = [(m, t) for m in 'qkv' for t in range(8)] + [('o', k, u) for k in range(4) for u in range(2)]
    backed = [('q', 0), ('k', 0), ('v', 0), ('q', 1), ('k', 1), ('o', 2, 1), ('o', 3, 1)]
    res = [u for u in units if u not in backed]
    order = [('o', k, u) for k in range(4) for u in range(2)] + [(m, t) for m in 'vkq' for t in (4, 6, 5, 7, 1, 3, 0, 2)]
    loc = {}
    regs = [f'a[{8*i}:{8*i+7}]' for i in range(32)] + [f'v[{112+8*i}:{112+8*i+7}]' for i in range(18)]
    k = 0
    for u in res:
        for T in range(2):
            loc[u + (T,)] = ('reg', regs[k]); k += 1
    assert k == 50
    for i, u in enumerate(backed):
        for T in range(2):
            loc[u + (T,)] = ('lds', i, T)
    return loc, order

def sub(reg, lo, n):
    c = reg[0]; b = int(reg[2:reg.index(':')])
    return f'{c}[{b+lo}:{b+lo+n-1}]'

def emit_chain(A, sc='', tag='c', nsteps=63, gate=False, stamps=False, dB0=0, dB1=0, dA=0, nokv=0, nocomm=0, stsel=None, abl=(),
               prepos=14, depth=5, early1=1, nB=2, gB=0, dmapos=(0, 3, 6, 9), respos=(20, 25), reppos=17, b1pos=4, pf='sc1', dm='sc1', b3k=2, kfs=8, b2pos=42):
    loc, order = chain_frag_map()
    sc = (' ' + sc) if sc else ''
    A(f"""
s_load_dwordx4 s[16:19], s[0:1], 16
s_load_dwordx4 s[24:27], s[0:1], 32
s_load_dwordx2 s[4:5], s[0:1], 8
v_and_b32 v20, 63, v0                 ; lane
v_lshlrev_b32 v{V_L16}, 4, v20
s_mul_i32 s52, s32, {L_WSZ}
s_add_u32 s52, s52, {L_W}
s_mul_i32 s53, s32, 12288
v_bfe_u32 v21, v20, 4, 1               ; g>>1
v_bfe_u32 v22, v20, 3, 1               ; g&1
v_bfe_u32 v23, v20, 2, 1               ; R>>1
v_bfe_u32 v24, v20, 1, 1               ; R&1
v_and_b32 v25, 1, v20                  ; p
v_lshrrev_b32 v26, 5, v20              ; T
v_lshlrev_b32 v27, 3, v21
v_lshl_add_u32 v27, v22, 1, v27
v_lshl_add_u32 v27, v23, 2, v27
v_lshl_add_u32 v27, v24, 5, v27
v_lshlrev_b32 v27, 13, v27
v_lshl_add_u32 v27, v26, 5, v27
v_lshl_add_u32 v32, v25, 4, v27
v_lshlrev_b32 v27, 4, v22
v_lshl_add_u32 v27, v21, 2, v27
v_add_u32 v27, v27, v24
v_lshlrev_b32 v27, 10, v27
v_lshl_add_u32 v27, v26, 6, v27
v_lshl_add_u32 v27, v23, 5, v27
v_lshl_add_u32 v33, v25, 4, v27
v_lshlrev_b32 v27, 3, v20
v_add_u32 v34, s52, v27
v_add_u32 v35, s53, v27
s_lshl_b32 s36, s33, 8
s_lshl_b32 s37, s32, 6
s_add_u32 s36, s36, s37                ; h*256+w*64
s_lshl_b32 s37, s32, 1
""")
    for tau in range(8):
        A(f's_xor_b32 s38, s37, {tau}\ns_lshl_b32 s38, s38, 19\ns_add_u32 s{40+tau}, s38, s36')
    A('s_lshl_b32 s36, s33, 17\ns_lshl_b32 s37, s32, 8\ns_add_u32 s36, s36, s37')
    for k in range(4):
        A(f's_xor_b32 s38, s32, {k}\ns_lshl_b32 s38, s38, 15\ns_add_u32 s{48+k}, s38, s36')
    A(f"""
s_lshr_b32 s36, s33, 3
s_lshl_b32 s36, s36, 4
s_and_b32 s37, s32, 1
s_lshl_b32 s37, s37, 3
s_add_u32 s36, s36, s37
s_and_b32 s39, s33, 7
s_add_u32 s37, s36, s39
s_lshl_b32 s61, s37, 7                 ; Gm*128
v_lshrrev_b32 v21, 4, v20
v_bfe_u32 v22, v20, 2, 1
v_lshl_add_u32 v21, v21, 1, v22
v_lshlrev_b32 v23, 4, v21
v_and_b32 v22, 3, v20
v_lshl_add_u32 v23, v22, 2, v23
v_add_u32 v{V_MST}, s61, v23
v_lshlrev_b32 v24, 10, v21
v_lshl_add_u32 v24, v22, 1, v24
s_lshl_b32 s36, s36, 4
s_lshl_b32 s39, s39, 3
s_add_u32 s39, s36, s39
s_waitcnt lgkmcnt(0)
s_mov_b32 s20, s18
s_and_b32 s21, s19, 0xffff
s_mov_b32 s22, 0x400000
s_mov_b32 s23, 0x20000
s_and_b32 s17, s17, 0xffff
s_mov_b32 s18, 0x400000
s_mov_b32 s19, 0x20000
s_mov_b32 s28, s26
s_and_b32 s29, s27, 0xffff
s_mov_b32 s30, 0x400000
s_mov_b32 s31, 0x20000
s_and_b32 s25, s25, 0xffff
s_mov_b32 s26, 0x400000
s_mov_b32 s27, 0x20000
""")
    srd(A, 84, 4, 8192)
    A('buffer_load_ushort v38, v24, s[84:87], s39 offen\nbuffer_load_ushort v39, v24, s[84:87], s39 offen offset:64')
    NU = len(order)
    fin = {n: loc[order[n] + (0,)][1] for n in range(NU) if loc[order[n] + (0,)][0] == 'lds'}
    slot_of = {}; issue_at = {}; busy = {}; state = {'nxt': 0}
    def try_issue(now):
        while state['nxt'] < NU and state['nxt'] - now <= depth:
            nxt = state['nxt']
            if nxt in fin: cand = [fin[nxt]] if fin[nxt] not in busy else []
            else:
                soon = {fin[m] for m in fin if nxt < m <= nxt + depth + 1}
                cand = [s_ for s_ in (7, 8, 9, 0, 1, 2, 3, 4, 5, 6) if s_ not in busy and s_ not in soon]
            if not cand: break
            busy[cand[0]] = nxt; slot_of[nxt] = cand[0]; issue_at[nxt] = now; state['nxt'] += 1
    try_issue(-1)
    for n in range(NU):
        if n >= 1 and (n - 1) not in fin: del busy[slot_of[n - 1]]
        try_issue(n)
        assert n + 1 >= NU or (n + 1) in slot_of, n
    def issue(n):
        u = order[n]; sl = slot_of[n]
        for mp in range(4):
            if sl < 7: A(f's_add_u32 m0, s52, {sl*4096 + mp*1024}')
            else: A(f's_add_u32 m0, s53, {(sl-7)*4096 + mp*1024}')
            if u[0] == 'o':
                A(f's_add_u32 s38, s{48+u[1]}, {(8*(mp>>1)+2*(mp&1))*1024 + 128*u[2]}')
                A('buffer_load_dwordx4 v33, s[28:31], s38 offen lds')
            else:
                base = {'q': 16, 'k': 20, 'v': 24}[u[0]]
                A(f's_add_u32 s38, s{40+u[1]}, {(16*(mp>>1)+(mp&1))*8192}')
                A(f'buffer_load_dwordx4 v32, s[{base}:{base+3}], s38 offen lds')
    npre = 0
    for m in range(NU):
        if issue_at[m] == -1: issue(m); npre += 4
    A(f"""
s_mov_b32 s35, 4000000
s_lshl_b32 s36, s32, 11                ; w*2048
v_add_u32 v{V_B0}, s36, v{V_L16}
v_xor_b32 v{V_B1}, 2048, v{V_B0}
v_xor_b32 v{V_B2}, 4096, v{V_B0}
v_xor_b32 v{V_B3}, 6144, v{V_B0}
s_add_u32 s54, s36, {MEMB}             ; sMemRd
s_mov_b32 s55, {MEMB + 8192}           ; sMemWr
s_mov_b32 s56, {GMEMB}
v_add_u32 v{V_WV}, s52, v{V_L16}
v_and_b32 v21, 8, v20
v_cmp_eq_u32 vcc, 0, v21
v_mov_b32 v22, 0xeeee
v_mov_b32 v23, 0x4444
v_cndmask_b32 v{V_IDX}, v22, v23, vcc
s_mov_b32 s80, 0x00ff00ff
s_mov_b32 s81, 0x00ff00ff
v_lshrrev_b32 v21, 5, v20
v_bfe_u32 v22, v20, 2, 2
v_lshl_add_u32 v21, v21, 2, v22
v_lshlrev_b32 v21, 12, v21
v_bfe_u32 v22, v20, 4, 1
v_lshl_add_u32 v21, v22, 6, v21
v_and_b32 v22, 3, v20
v_lshl_add_u32 v21, v22, 4, v21
s_lshl_b32 s36, s32, 15
s_lshl_b32 s37, s33, 7
s_add_u32 s36, s36, s37
v_add_u32 v{V_PST}, s36, v21
s_mov_b32 s60, 0                       ; part slot offset
s_mov_b32 s58, {PARTB}
s_mov_b32 s59, {PARTB + 0x20000}
; reducer G = 32*(w&1)+h
s_and_b32 s36, s32, 1
s_lshl_b32 s36, s36, 5
s_add_u32 s36, s36, s33
s_lshl_b32 s37, s36, 12
s_add_u32 s62, s37, {PARTB}
s_mov_b32 s63, s62
; reset region: G2=32*(w>>1)+h, half (w&1)
s_lshr_b32 s38, s32, 1
s_lshl_b32 s38, s38, 5
s_add_u32 s38, s38, s33
s_lshl_b32 s38, s38, 12
s_and_b32 s39, s32, 1
s_lshl_b32 s39, s39, 11
s_add_u32 s38, s38, s39
s_add_u32 s65, s38, {PARTB}
s_lshl_b32 s38, s32, 12
s_add_u32 s66, s38, {L_KV}
s_add_u32 s67, s38, {L_KV + 16384}
s_lshl_b32 s39, s33, 20
s_add_u32 s38, s38, s39
s_add_u32 s57, s38, {KVB}
s_mov_b32 s68, {f32bits(128 ** -0.5 * math.log2(math.e))}
v_lshrrev_b32 v21, 5, v20
v_and_b32 v22, 15, v20
v_lshl_add_u32 v21, v21, 4, v22
v_lshlrev_b32 v21, 4, v21
v_bfe_u32 v22, v20, 4, 1
v_lshl_add_u32 v21, v22, 3, v21
s_lshl_b32 s38, s32, 11
v_add_u32 v{V_QW}, s38, v21
v_lshrrev_b32 v21, 2, v20
v_lshlrev_b32 v21, 4, v21
v_and_b32 v22, 1, v20
v_lshl_add_u32 v{V_TR}, v22, 3, v21
; selector value and masks: i=l&15 ; val=(i&3)==0?0x3f80:(i&3)==1?0x3f800000:0 ; mask q: (i>>2)==q
v_and_b32 v21, 3, v20
v_mov_b32 v22, 0
v_mov_b32 v23, 0x3f80
v_cmp_eq_u32 vcc, 0, v21
v_cndmask_b32 v22, v22, v23, vcc
v_mov_b32 v23, 0x3f800000
v_cmp_eq_u32 vcc, 1, v21
v_cndmask_b32 v{V_SELV}, v22, v23, vcc
s_mov_b32 s72, 0x000f000f
s_mov_b32 s73, 0x000f000f
s_mov_b32 s74, 0x00f000f0
s_mov_b32 s75, 0x00f000f0
s_mov_b32 s76, 0x0f000f00
s_mov_b32 s77, 0x0f000f00
s_mov_b32 s78, 0xf000f000
s_mov_b32 s79, 0xf000f000
s_mov_b32 s82, -1
s_mov_b32 s83, 0
s_waitcnt vmcnt({npre})
v_lshl_or_b32 v{T3}, v39, 16, v38
v_mov_b32 v28, -1
v_mov_b32 v29, -1
v_mov_b32 v30, -1
v_mov_b32 v31, -1
buffer_store_dwordx4 v[28:31], v{V_L16}, s[8:11], s65 offen{sc}
buffer_store_dwordx4 v[28:31], v{V_L16}, s[8:11], s65 offen offset:1024{sc}
s_add_u32 s64, s65, 0x40000
buffer_store_dwordx4 v[28:31], v{V_L16}, s[8:11], s64 offen{sc}
buffer_store_dwordx4 v[28:31], v{V_L16}, s[8:11], s64 offen offset:1024{sc}
s_add_u32 s64, s65, 0x80000
buffer_store_dwordx4 v[28:31], v{V_L16}, s[8:11], s64 offen{sc}
buffer_store_dwordx4 v[28:31], v{V_L16}, s[8:11], s64 offen offset:1024{sc}
s_add_u32 s64, s65, 0xc0000
v_lshrrev_b32 v21, 3, v20
v_lshlrev_b32 v21, 13, v21
v_and_b32 v22, 7, v20
v_lshl_add_u32 v21, v22, 4, v21
v_add_u32 v21, s61, v21
s_cmp_ge_u32 s32, 2
s_cbranch_scc1 {tag}_init_g
s_mov_b32 s38, {MEMB}
s_mov_b64 exec, 0xffffff00
buffer_store_dwordx4 v[28:31], v21, s[8:11], s38 offen{sc}
s_mov_b64 exec, s[80:81]
buffer_store_dword v{T3}, v{V_MST}, s[8:11], s38 offen{sc}
s_mov_b64 exec, -1
s_branch {tag}_init_done
{tag}_init_g:""")
    for i in range(8):
        A(f's_mov_b32 s38, {GMEMB + i * 65536}\nbuffer_store_dwordx4 v[28:31], v21, s[8:11], s38 offen sc1')
    A(f'{tag}_init_done:')
    for n in range(NU):
        u = order[n]; sl = slot_of[n]
        later = sum(1 for m in range(n + 1, NU) if issue_at[m] < n)
        A(f's_waitcnt vmcnt({0 if n == 0 else 4*later})')
        if n == 0:
            A(f"""s_mov_b64 exec, 1
v_mov_b32 v36, 1
v_mov_b32 v37, {DBG_CHAINCNT}
buffer_atomic_add v36, v37, s[12:15], 0 offen sc1
s_mov_b64 exec, -1""")
        av = 34 if sl < 7 else 35
        off = (sl if sl < 7 else sl - 7) * 4096
        for T in range(2):
            l = loc[u + (T,)]
            dst = l[1] if l[0] == 'reg' else f'v[{40+8*T}:{47+8*T}]'
            for mp in range(4):
                A(f'ds_read_b64_tr_b16 {sub(dst, 2*mp, 2)}, v{av} offset:{off + mp*1024 + T*512}')
        todo = [m for m in range(NU) if issue_at[m] == n]
        if todo:
            A('s_waitcnt lgkmcnt(8)')
            for m in todo: issue(m)
        if n in fin:
            A('s_waitcnt lgkmcnt(0)')
            for T in range(2):
                for hf in range(2):
                    A(f'ds_write_b128 v{V_WV}, {vr(40+8*T+4*hf)} offset:{sl*4096 + T*2048 + hf*1024}')
            A('s_waitcnt lgkmcnt(0)')
    A('s_waitcnt lgkmcnt(0)\ns_barrier')
    prof(A, 1, 36, dbg=9)
    wait_dbg(A, f'{tag}_wreg', DBG_CHAINCNT, 128, 36, 37)
    if gate: wait_dbg(A, f'{tag}_wgate', DBG_GATE, 4, 36, 37)
    A('s_mov_b64 s[70:71], 0\ns_mov_b32 s86, 0x3f803f80\ns_mov_b32 s87, 0x3f803f80\ns_mov_b32 s34, 0')
    poolmap = {('q', 0, 0): AK0, ('q', 0, 1): AV0, ('k', 0, 0): M[2], ('k', 0, 1): M[6], ('v', 0, 0): M[5], ('v', 0, 1): P[0],
               ('q', 1, 0): P[1], ('q', 1, 1): P[2], ('k', 1, 0): P[3], ('k', 1, 1): P[4],
               ('o', 2, 1, 0): P[0], ('o', 2, 1, 1): P[1], ('o', 3, 1, 0): P[2], ('o', 3, 1, 1): P[3]}
    def plh(f, hf, tg):
        l = loc[f]
        A.ds(f'ds_read_b128 {vr(poolmap[f] + 4*hf)}, v{V_WV} offset:{l[1]*4096 + l[2]*2048 + hf*1024}', tg)
    def pool_load(f, tg): plh(f, 0, tg); plh(f, 1, tg)
    def kv_ready(lbl):
        A(f's_bitcmp1_b64 s[70:71], s36\ns_cbranch_scc0 {lbl}_slow\n{lbl}_ok:')
    def kv_slow(lbl):
        A(f"""{lbl}_slow:
v_lshrrev_b32 v{T0}, 2, v{V_L16}
s_lshl_b32 s37, s33, 8
buffer_load_dword v{T1}, v{T0}, s[8:11], s37 offen sc1
s_waitcnt vmcnt(0)
v_cmp_le_u32 s[70:71], 4, v{T1}
s_nop 1
s_bitcmp1_b64 s[70:71], s36
s_cbranch_scc1 {lbl}_ok
s_sub_u32 s35, s35, 1
s_cbranch_scc0 {lbl}_slow
s_mov_b32 s35, 0
s_branch {lbl}_ok""")
    def prep_a(mid=None):
        fr = [('v', 0, 1), ('q', 1, 0), ('q', 1, 1), ('k', 1, 0), ('k', 1, 1), ('k', 0, 0), ('k', 0, 1), ('q', 0, 0), ('q', 0, 1)]
        for i, f in enumerate(fr):
            pool_load(f, 'pi')
            if mid and i in mid: mid[i]()
    def prep_b():
        pool_load(('v', 0, 0), 'pi')
    def zq():
        for r in range(AQ0, AQ1 + 4, 2): A(f'v_mov_b64 v[{r}:{r+1}], 0')
    def delay(n):
        while n > 0:
            k = min(n, 16); A(f's_nop {k-1}'); n -= k
    prof(A, 2, 36)
    if PROF['on'] is True: A('s_memtime s[96:97]')
    slow = []
    for i in range(3):
        A(f's_mov_b32 s36, {i}'); kv_ready(f'{tag}_kv{i}'); slow.append(f'{tag}_kv{i}')
    A('s_mov_b32 m0, s66')
    for i in range(4): A(f'buffer_load_dwordx4 v{V_L16}, s[8:11], s57 offen offset:{i*1024} sc1 lds')
    A('s_add_u32 s57, s57, 16384')
    prep_a()
    A.wait_lds_all()
    if PROF['on'] == 'dbg': prof(A, 0, T0, dbg=10)
    acc = {('q', 0): AQ0, ('q', 1): AQ1, ('k', 0): AK0, ('k', 1): AK1, ('v', 0): AV0, ('v', 1): AV1}
    def wreg(frag):
        l = loc[frag]
        return l[1] if l[0] == 'reg' else vr(poolmap[frag], 8)
    def SM(m, tau, T): A(f'v_smfmac_f32_16x16x64_bf16 {vr(acc[(m,T)])}, {vr(M[tau])}, {wreg((m,tau,T))}, v{V_IDX}')
    STP = [40,42,44,46,48,50,52,84,98,88,90,92,94,100]
    cur = {'par': 0}
    def stamp(i):
        if stamps == 'rt':
            if (cur['par'] == 1 and i >= 9) or (cur['par'] == 0 and i <= 2): A(f's_memrealtime s[{STP[i]}:{STP[i]+1}]')
        elif stamps and cur['par'] == 0 and (stsel is None or i in stsel): A(f's_memtime s[{STP[i]}:{STP[i]+1}]')
    def wrap(r): return f's_bitset0_b32 {r}, 15\n'
    retry = {}; lates = []
    def step(par):
        t = f'{tag}{par}'
        KOFF = L_KV + par * 16384; VOFF = KOFF + 8192
        A(f'{t}_top:')
        cur['par'] = par
        stamp(0)
        def ldA():
            for u in range(2): A(f'buffer_load_dwordx4 {vr(M[u])}, v{V_L16}, s[8:11], s54 offen offset:{u*1024} sc1')
        retry[f'{t}A'] = ldA
        A(f's_mov_b32 m0, s{66+(par^1)}')
        if nocomm:
            prep_b(); zq(); A(f's_waitcnt lgkmcnt(0)\ns_branch {t}_okA')
        ldA()
        prep_b()
        A(f"""{t}_chkA:
s_waitcnt vmcnt(1)
ds_write_b128 v{V_B0}, {vr(M[0])} offset:{L_MEM}
s_waitcnt vmcnt(0)
ds_write_b128 v{V_B0}, {vr(M[1])} offset:{L_MEM+1024}
v_max3_u32 v{T0}, v{M[0]}, v{M[0]+1}, v{M[0]+2}
v_max3_u32 v{T1}, v{M[0]+3}, v{M[1]}, v{M[1]+1}
v_max3_u32 v{T0}, v{T0}, v{M[1]+2}, v{M[1]+3}
v_mov_b64 v[{AQ0}:{AQ0+1}], 0
v_max_u32 v{T0}, v{T0}, v{T1}
v_mov_b64 v[{AQ0+2}:{AQ0+3}], 0
v_cmp_eq_u32 vcc, -1, v{T0}
v_mov_b64 v[{AQ1}:{AQ1+1}], 0
v_mov_b64 v[{AQ1+2}:{AQ1+3}], 0
s_cbranch_vccnz {t}_reA
{t}_okA:
s_waitcnt lgkmcnt(2)""")
        A.lds_q = []
        stamp(1)
        KX = {(tt, k): P[k] + 4 * (tt - 1) for tt in (1, 2) for k in range(4)}
        QF = [AQ0, AQ1, M[0], M[1]]
        KM = [M[2], M[4], M[6], M[3]]
        VX = [P[4], P[4] + 4]
        def ldM(tau): A.ds(f'ds_read_b128 {vr(M[tau])}, v{VB[tau>>1]} offset:{L_MEM + (tau&1)*1024}', f'm{tau}')
        def ldKX(tt, k): A.ds(f'ds_read_b128 {vr(KX[(tt,k)])}, v{V_L16} offset:{KOFF + (tt-1)*4096 + k*1024}', 'kx')
        def ldVX(T): A.ds(f'ds_read_b128 {vr(VX[T])}, v{V_B0} offset:{VOFF + T*1024}', 'kx')
        def ldQF(k):
            for hf in range(2): A.ds(f'ds_read_b64_tr_b16 {vr(QF[k]+2*hf,2)}, v{V_TR} offset:{L_OQK + k*2048 + 1024 + hf*256}', f'qf{k}')
        def ldKM(k):
            for hf in range(2): A.ds(f'ds_read_b64_tr_b16 {vr(KM[k]+2*hf,2)}, v{V_TR} offset:{L_OQK + k*2048 + 1536 + hf*256}', f'km{k}')
        def fold(a0, a1, t0):
            ops = []
            for r in range(4): ops.append(f'v_permlane32_swap_b32 v{a0+r}, v{a1+r}')
            for r in range(4): ops.append(f'v_add_f32 v{a0+r}, v{a0+r}, v{a1+r}')
            ops.append(f'v_cvt_pk_bf16_f32 v{t0}, v{a0}, v{a0+1}')
            ops.append(f'v_cvt_pk_bf16_f32 v{t0+1}, v{a0+2}, v{a0+3}')
            return ops
        two = lambda m, tau: [(m, tau, 0), (m, tau, 1)]
        sms = []
        for tau in (0, 1): sms += two('q', tau) + two('k', tau) + two('v', tau)
        for m in 'qkv':
            for tau in (2, 4, 6, 3, 5, 7): sms += two(m, tau)
        assert len(sms) == 48 and len(set(sms)) == 48
        pre = {i: [] for i in range(48)}; post = {i: [] for i in range(48)}
        for i, r in enumerate((AK0, AK1, AV0, AV1)):
            post[i].append(lambda r=r: A(f'v_mov_b64 v[{r}:{r+1}], 0\nv_mov_b64 v[{r+2}:{r+3}], 0'))
        def b1():
            A('s_waitcnt lgkmcnt(0)\ns_barrier')
            stamp(2)
        post[b1pos].append(b1)
        for i, tau in enumerate((2, 4, 6, 3, 5, 7)): post[b1pos + i].append(lambda tau=tau: ldM(tau))
        pre[12].append(lambda: A.wait_lds('m4')); pre[16].append(lambda: A.wait_lds('m7'))
        kxs = [(tt, k) for k in range(4) for tt in (1, 2)]
        for i, pos in enumerate([11, 12, 13, 15, 16, 18, 19, 21]): post[pos].append(lambda i=i: ldKX(*kxs[i]))
        post[22].append(lambda: ldVX(0)); post[23].append(lambda: ldVX(1))
        def rep():
            A(f"""s_cbranch_scc1 {t}_norep
s_mov_b64 exec, s[80:81]
buffer_store_dword v{T3}, v{V_MST}, s[8:11], s56 offen sc1
s_mov_b64 exec, -1
{t}_norep:""")
        for i, pos in enumerate(dmapos): post[pos].append(lambda i=i: A(f'buffer_load_dwordx4 v{V_L16}, s[8:11], s57 offen offset:{i*1024} {dm} lds'))
        if pf is not None:
            post[prepos - 1].append(lambda: A(f'v_lshlrev_b32 v{T1}, 2, v{V_L16}\ns_add_u32 s36, s57, 16384'))
            post[prepos].append(lambda: A(f'buffer_load_dword v{T2}, v{T1}, s[8:11], s36 offen {pf}'))
        post[reppos - 1].append(lambda: A('s_cmp_ge_u32 s32, 2'))
        post[reppos].append(rep)
        post[reppos + 1].append(lambda: prof(A, 16, T0, 34, cyc=True))
        post[respos[0] - 2].append(lambda: A(f'v_mov_b64 v[{M[0]}:{M[0]+1}], -1'))
        post[respos[0] - 1].append(lambda: A(f'v_mov_b64 v[{M[0]+2}:{M[0]+3}], -1'))
        assert respos[0] - 2 >= 6
        post[respos[0]].append(lambda: A(f'buffer_store_dwordx4 {vr(M[0])}, v{V_L16}, s[8:11], s64 offen{sc}'))
        post[respos[1]].append(lambda: A(f'buffer_store_dwordx4 {vr(M[0])}, v{V_L16}, s[8:11], s64 offen offset:1024{sc}'))
        post[11].append(lambda: stamp(3)); post[23].append(lambda: stamp(4)); post[35].append(lambda: stamp(5))
        for i, op in enumerate(fold(AQ0, AQ1, T0)): post[26 + i].append(lambda op=op: A(op))
        post[36].append(lambda: A.ds(f'ds_write_b64 v{V_QW}, v[{T0}:{T1}] offset:{L_OQK+1024}', 'qw'))
        for i, op in enumerate(fold(AK0, AK1, T0)): post[38 + (i * kfs) // 10].append(lambda op=op: A(op))
        post[38 + kfs].append(lambda: A.ds(f'ds_write_b64 v{V_QW}, v[{T0}:{T1}] offset:{L_OQK+1536}', 'kw'))
        pre[b2pos].append(lambda: (A.wait_lds('qw'), A('s_barrier')))
        qpos = [p_ for p_ in range(b2pos, 48) if p_ != 38 + kfs][:4]
        for k, pos in enumerate(qpos): post[pos].append(lambda k=k: ldQF(k))
        for i, f in enumerate(sms):
            for fn in pre[i]: fn()
            SM(*f)
            n0 = len(A.items)
            for fn in post[i]: fn()
            gap = A.items[n0:]
            if not any(isinstance(x, str) for x in gap):
                A.items[n0:] = [x for x in gap if x.kind != 'valu'] + [x for x in gap if x.kind == 'valu']
        stamp(6)
        ST = {1: AK0, 2: AK1, 0: M[5]}
        VM = M[7]; ONES = KM[0]; ONE2 = KM[1]; PM = KM[1] + 2; PB = KM[2]; LS = KM[3]; O = [AV0, AV1]
        def MF(d, a, b, c): A(f'v_mfma_f32_16x16x32_bf16 {vr(d)}, {vr(a)}, {vr(b)}, {c}')
        def MF16(d, a, b): A(f'v_mfma_f32_16x16x16_bf16 {vr(d)}, {vr(a,2)}, {vr(b,2)}, {vr(d)}')
        late = [(('o', k, 1, T), hf) for k in (2, 3) for T in (0, 1) for hf in (0, 1)]
        vmc = [f'v_cvt_pk_bf16_f32 v{VM+i}, v{(AV0,AV1)[i>>1]+2*(i&1)}, v{(AV0,AV1)[i>>1]+2*(i&1)+1}' for i in range(4)]
        n = 0
        for k in range(4):
            A.wait_lds(f'qf{k}')
            if k == b3k:
                A.wait_lds('kw'); A('s_barrier')
            for tt in (1, 2):
                MF(ST[tt], KX[(tt, k)], QF[k], '0' if k == 0 else vr(ST[tt]))
                if 2 * b3k <= n < 2 * b3k + 4: ldKM(n - 2 * b3k)
                elif n >= 2: plh(*late.pop(0), 'piii')
                if vmc and n >= 2 and not (2 * b3k <= n < 2 * b3k + 4 and len(vmc) <= 2): A(vmc.pop(0))
                n += 1
        WA = QF
        def z(a): A(f'v_mov_b64 v[{a}:{a+1}], 0\nv_mov_b64 v[{a+2}:{a+3}], 0')
        for k in range(4):
            A.wait_lds(f'km{k}')
            MF(ST[0], KM[k], QF[k], '0' if k == 0 else vr(ST[0]))
            plh(*late.pop(0), 'piii')
            if k == 0: A(f'v_mov_b64 v[{ONES}:{ONES+1}], s[86:87]')
            if k == 1: A(f'v_max3_f32 v{T0}, v{ST[1]}, v{ST[1]+1}, v{ST[1]+2}')
            if k == 2: A(f'v_max3_f32 v{T1}, v{ST[1]+3}, v{ST[2]}, v{ST[2]+1}')
            if k == 3: A(f'v_max3_f32 v{T0}, v{T0}, v{ST[2]+2}, v{ST[2]+3}')
            if vmc and k < 2: A(vmc.pop(0))
        assert not vmc
        stamp(7)
        A(f"""v_max_f32 v{T0}, v{T0}, v{T1}
v_mov_b32 v{T1}, v{T0}
v_mov_b64 v[{ONES+2}:{ONES+3}], s[86:87]
v_cndmask_b32 v{ONE2}, 0, v{ONES}, s[82:83]
v_permlane32_swap_b32 v{T0}, v{T1}
v_cndmask_b32 v{ONE2+1}, 0, v{ONES}, s[82:83]
v_max3_f32 v{T0}, v{T0}, v{T1}, v{ST[0]}
v_max3_f32 v{T1}, v{ST[0]+1}, v{ST[0]+2}, v{ST[0]+3}
v_max_f32 v{T0}, v{T0}, v{T1}
v_mov_b32 v{T1}, v{T0}""")
        z(WA[0])
        A(f"""v_permlane16_swap_b32 v{T0}, v{T1}
v_max_f32 v{T0}, v{T0}, v{T1}
v_mul_f32 v{T0}, s68, v{T0}""")
        for base in (ST[1], ST[2]):
            for r in range(4): A(f'v_fma_f32 v{base+r}, v{base+r}, s68, -v{T0}')
        for base in (ST[1], ST[2]):
            for r in range(4): A(f'v_exp_f32 v{base+r}, v{base+r}')
        b = ST[0]
        A(f"""v_cvt_pk_bf16_f32 v{PB}, v{ST[1]}, v{ST[1]+1}
v_cvt_pk_bf16_f32 v{PB+1}, v{ST[1]+2}, v{ST[1]+3}
v_cvt_pk_bf16_f32 v{PB+2}, v{ST[2]}, v{ST[2]+1}
v_cvt_pk_bf16_f32 v{PB+3}, v{ST[2]+2}, v{ST[2]+3}
v_fma_f32 v{b}, v{b}, s68, -v{T0}
v_fma_f32 v{b+1}, v{b+1}, s68, -v{T0}""")
        MF(LS, ONES, PB, '0')
        plh(*late.pop(0), 'piii')
        A(f'v_fma_f32 v{b+2}, v{b+2}, s68, -v{T0}\nv_fma_f32 v{b+3}, v{b+3}, s68, -v{T0}')
        MF(O[0], VX[0], PB, '0')
        plh(*late.pop(0), 'piii')
        A(f'v_exp_f32 v{b}, v{b}')
        MF(O[1], VX[1], PB, '0')
        A(f"""v_exp_f32 v{b+1}, v{b+1}
v_exp_f32 v{b+2}, v{b+2}
v_exp_f32 v{b+3}, v{b+3}
v_cvt_pk_bf16_f32 v{PM}, v{b}, v{b+1}
v_cvt_pk_bf16_f32 v{PM+1}, v{b+2}, v{b+3}""")
        z(WA[1])
        MF16(LS, ONE2, PM); z(WA[2]); MF16(O[0], VM, PM); z(WA[3]); MF16(O[1], VM + 2, PM)
        stamp(8)
        OF = [AK0, AK1, M[5], PB]
        A(f'v_rcp_f32 v{T0}, v{LS}')
        for T in range(2):
            for r in range(4): A(f'v_mul_f32 v{O[T]+r}, v{O[T]+r}, v{T0}')
            A(f'v_cvt_pk_bf16_f32 v{OF[0]+2*T}, v{O[T]}, v{O[T]+1}\nv_cvt_pk_bf16_f32 v{OF[0]+2*T+1}, v{O[T]+2}, v{O[T]+3}')
        A.ds(f'ds_write_b128 v{V_B0}, {vr(OF[0])} offset:{L_OQK}', 'ow')
        stamp(9)
        def SO(k, a): A(f'v_smfmac_f32_16x16x64_bf16 {vr(WA[a])}, {vr(OF[k])}, {wreg(("o",k,a>>1,a&1))}, v{V_IDX}')
        R = QF; SEL = M[7]; RA = M[5]
        selops = [f'v_cndmask_b32 v{SEL+q}, 0, v{V_SELV}, s[{72+2*q}:{73+2*q}]' for q in range(4)]
        for a in range(4):
            SO(0, a); A(selops[a])
        A('s_waitcnt lgkmcnt(0)\ns_barrier'); A.lds_q = []
        for k in range(1, 4): A.ds(f'ds_read_b128 {vr(OF[k])}, v{VB[k]} offset:{L_OQK}', f'o{k}')
        for k in range(1, 4):
            A.wait_lds(f'o{k}')
            SO(k, 0); SO(k, 1)
        PK = [AV0, AV1]
        n = 0
        for k in range(1, 4):
            for a in (2, 3):
                SO(k, a); n += 1
                if early1:
                    if n == 3:
                        for r in range(4): A(f'v_cvt_pk_bf16_f32 v{PK[0]+r}, v{WA[0]+r}, v{WA[1]+r}')
                    if n == 4: A(f'buffer_store_dwordx4 {vr(PK[0])}, v{V_PST}, s[8:11], s58 offen{sc}')
                elif n >= 3: A(f'v_cvt_pk_bf16_f32 v{PK[0]+n-3}, v{WA[0]+n-3}, v{WA[1]+n-3}')
        if not early1: A(f'buffer_store_dwordx4 {vr(PK[0])}, v{V_PST}, s[8:11], s58 offen{sc}')
        for r in range(4): A(f'v_cvt_pk_bf16_f32 v{PK[1]+r}, v{WA[2]+r}, v{WA[3]+r}')
        A(f'buffer_store_dwordx4 {vr(PK[1])}, v{V_PST}, s[8:11], s59 offen{sc}')
        stamp(10)
        def book():
            A(f"""s_add_u32 s54, s54, 8192
{wrap('s54')}s_add_u32 s56, s56, 8192
s_add_u32 s57, s57, {0 if nokv else 16384}
s_add_u32 s64, s65, s60
s_add_u32 s60, s60, 0x40000
s_and_b32 s60, s60, 0xc0000
s_add_u32 s58, s60, {PARTB}
s_add_u32 s59, s60, {PARTB + 0x20000}
s_add_u32 s34, s34, 1""")
        def ldB():
            for i in range(4): A(f'buffer_load_dwordx4 {vr(R[i])}, v{V_L16}, s[8:11], s62 offen offset:{i*1024} sc1')
        retry[f'{t}B'] = ldB
        if nocomm:
            prep_a(); book(); A(f's_branch {t}_join')
        A(f's_cmp_lg_u32 s32, 0\ns_cbranch_scc1 {t}_late')
        delay(dB0)
        stamp(11)
        ldB()
        prep_a({3: ldB} if nB == 2 else ({2: ldB, 5: ldB} if nB == 3 else None)); book()
        A(f"""{t}_chkB:
s_waitcnt vmcnt({4*(nB-1)})
v_max3_u32 v{T0}, v{R[0]+3}, v{R[1]+3}, v{R[2]+3}
v_max_u32 v{T0}, v{T0}, v{R[3]+3}
v_cmp_eq_u32 vcc, -1, v{T0}""")
        for i in range(4):
            A(f'v_mfma_f32_16x16x32_bf16 {vr(RA)}, {vr(SEL)}, {vr(R[i])}, {"0" if i==0 else vr(RA)}')
            if i == 1: A(f's_cbranch_vccnz {t}_reB')
        A(f"""v_cmp_u_f32 vcc, v{RA+2}, v{RA+2}
v_add_f32_dpp v{RA}, v{RA}, v{RA} row_ror:8 row_mask:0xf bank_mask:0xf
v_add_f32_dpp v{RA+1}, v{RA+1}, v{RA+1} row_ror:8 row_mask:0xf bank_mask:0xf
v_cvt_pk_bf16_f32 v{T3}, v{RA}, v{RA+1}
s_cbranch_vccnz {t}_nan
{t}_okB:
s_mov_b64 exec, s[80:81]
buffer_store_dword v{T3}, v{V_MST}, s[8:11], s55 offen{sc}
s_mov_b64 exec, -1
{t}_join:""")
        def nan_path(t=t, R=R, RA=RA, SEL=SEL, ldB=ldB):
            A(f'{t}_nan:')
            ldB()
            A('s_waitcnt vmcnt(0)')
            fl = [x for r in R for x in range(r, r + 4)]
            A(f'v_max3_u32 v{T0}, v{fl[0]}, v{fl[1]}, v{fl[2]}')
            for i in range(6): A(f'v_max3_u32 v{T0}, v{T0}, v{fl[3+2*i]}, v{fl[4+2*i]}')
            A(f"""v_max_u32 v{T0}, v{T0}, v{fl[15]}
v_cmp_eq_u32 vcc, -1, v{T0}
s_cbranch_vccz {t}_nan2
s_sub_u32 s35, s35, 1
s_cbranch_scc0 {t}_nan
s_mov_b32 s35, 0
{t}_nan2:""")
            for i in range(4):
                A(f'v_mfma_f32_16x16x32_bf16 {vr(RA)}, {vr(SEL)}, {vr(R[i])}, {"0" if i==0 else vr(RA)}')
            A(f"""v_add_f32_dpp v{RA}, v{RA}, v{RA} row_ror:8 row_mask:0xf bank_mask:0xf
v_add_f32_dpp v{RA+1}, v{RA+1}, v{RA+1} row_ror:8 row_mask:0xf bank_mask:0xf
v_cvt_pk_bf16_f32 v{T3}, v{RA}, v{RA+1}
s_branch {t}_okB""")
        lates.append(nan_path)
        def late_path(t=t):
            A(f'{t}_late:')
            prep_a(); book()
            A(f's_cmp_lg_u32 s32, 1\ns_cbranch_scc1 {t}_idle')
            delay(dB1); ldB()
            for i in range(nB - 1):
                delay(gB or 24); ldB()
            A(f"""s_branch {t}_chkB
{t}_idle:
; waves 2,3: sentinel into the mem slot two steps ahead of the one being published
s_add_u32 s36, s55, 16384
{wrap('s36')}v_mov_b32 v{T0}, -1
s_mov_b64 exec, s[80:81]
buffer_store_dword v{T0}, v{V_MST}, s[8:11], s36 offen{sc}
s_mov_b64 exec, -1
s_branch {t}_join""")
        lates.append(late_path)
        stamp(12)
        A(f"""s_cmp_eq_u32 s34, {nsteps}
s_cbranch_scc1 {tag}_done
s_add_u32 s62, s63, s60
s_add_u32 s55, s55, 8192
{wrap('s55')}s_add_u32 s36, s34, 2""")
        kv_ready(f'{t}_kv'); slow.append(f'{t}_kv')
        A('s_barrier')
        delay(dA)
        stamp(13)
        A.lds_q = []
    i0 = len(A.items)
    step(0); step(1)
    if abl:
        import re
        keep = A.items[:i0]
        for it in A.items[i0:]:
            if not isinstance(it, str) and any(re.search(p, it.text) for p in abl): continue
            keep.append(it)
        A.items = keep
    A(f's_branch {tag}0_top')
    for par in range(2):
        t = f'{tag}{par}'
        for x in 'AB':
            A(f'{t}_re{x}:\ns_sub_u32 s35, s35, 1\ns_cbranch_scc1 {t}_to{x}\ns_mov_b64 exec, vcc')
            retry[f'{t}{x}']()
            A(f's_mov_b64 exec, -1\ns_branch {t}_chk{x}\n{t}_to{x}:\ns_mov_b32 s35, 0\ns_nop 7\ns_branch {t}_{"nan" if x == "B" else "ok" + x}')
    for f in lates: f()
    for l in slow: kv_slow(l)
    A(f"""{tag}_done:
s_cmp_ge_u32 s32, 2
s_cbranch_scc1 {tag}_fin
s_mov_b64 exec, s[80:81]
buffer_store_dword v{T3}, v{V_MST}, s[8:11], s56 offen sc1
s_mov_b64 exec, -1
{tag}_fin:""")
    prof(A, 3, 36, dbg=11)
    if PROF['on'] is True:
        A("""s_memtime s[92:93]
s_waitcnt lgkmcnt(0)
s_sub_u32 s92, s92, s96
v_mov_b32 v36, s92
v_mov_b32 v37, s35
s_lshl_b32 s94, s32, 3
s_add_u32 s94, s94, s91
v_mov_b32 v38, 0
s_mov_b64 exec, 1
buffer_store_dwordx2 v[36:37], v38, s[8:11], s94 offen offset:16
s_mov_b64 exec, -1""")

def kd(name, vgpr=512, accum=256):
    return f'''
.amdhsa_kernel {name}
  .amdhsa_next_free_vgpr {vgpr}
  .amdhsa_next_free_sgpr 102
  .amdhsa_accum_offset {accum}
  .amdhsa_group_segment_fixed_size 0
  .amdhsa_kernarg_size 112
  .amdhsa_user_sgpr_count 2
  .amdhsa_user_sgpr_kernarg_segment_ptr 1
  .amdhsa_system_sgpr_workgroup_id_x 1
.end_amdhsa_kernel
'''

def common_entry(A):
    A(f'''
s_load_dwordx4 s[4:7], s[0:1], 96
s_getreg_b32 s3, hwreg(HW_REG_XCC_ID)
s_and_b32 s3, s3, 0xf
v_lshrrev_b32 v1, 6, v0
v_readfirstlane_b32 s32, v1
s_waitcnt lgkmcnt(0)''')
    srd(A, 12, 4, 256)
    srd(A, 8, 6, WS_BYTES)

def gen_chain_test(stamps=False, **kw):
    A = Asm()
    A.raw('; @launch kernel=chain_kernel grid=(256,1,1) block=(256,1,1) lds=163840')
    A.raw('.amdgcn_target "amdgcn-amd-amdhsa--gfx950"')
    A.raw('.text\n.globl chain_kernel\n.p2align 8\n.type chain_kernel,@function')
    A.label('chain_kernel')
    A('s_cmp_ge_u32 s2, 256\ns_cbranch_scc1 L_end')
    common_entry(A)
    A('''s_cmp_lg_u32 s3, 0
s_cbranch_scc1 L_end
s_memtime s[96:97]
s_memrealtime s[6:7]
v_mov_b32 v3, 0
v_mov_b32 v4, 1
s_cmp_lg_u32 s32, 0
s_cbranch_scc1 L_noticket
s_mov_b64 exec, 1
buffer_atomic_add v4, v3, s[12:15], 0 offen sc0
s_waitcnt vmcnt(0)
ds_write_b32 v3, v4
s_waitcnt lgkmcnt(0)
s_mov_b64 exec, -1
L_noticket:
s_barrier
ds_read_b32 v4, v3
s_waitcnt lgkmcnt(0)
v_readfirstlane_b32 s33, v4
s_barrier
s_cmp_ge_u32 s33, 32
s_cbranch_scc1 L_end''')
    emit_chain(A, stamps=stamps, **kw)
    if stamps:
        A('s_waitcnt lgkmcnt(0)')
        for i, r in enumerate([40,42,44,46,48,50,52,84,98,88,90,92,94,100,96,35]): A(f'v_mov_b32 v{20+i}, s{r}')
        A('''s_lshl_b32 s36, s33, 2
s_add_u32 s36, s36, s32
s_lshl_b32 s36, s36, 6
s_add_u32 s36, s36, 0x8000
v_mov_b32 v40, s36
s_mov_b64 exec, 1
buffer_store_dwordx4 v[20:23], v40, s[8:11], 0 offen
buffer_store_dwordx4 v[24:27], v40, s[8:11], 0 offen offset:16
buffer_store_dwordx4 v[28:31], v40, s[8:11], 0 offen offset:32
buffer_store_dwordx4 v[32:35], v40, s[8:11], 0 offen offset:48
s_mov_b64 exec, -1''')
    A('''s_memtime s[98:99]
s_memrealtime s[4:5]
s_waitcnt lgkmcnt(0)
s_sub_u32 s98, s98, s96
s_sub_u32 s4, s4, s6
s_cmp_eq_u32 s33, 1
s_cselect_b32 s98, s4, s98
v_mov_b32 v20, s98
v_mov_b32 v21, s35
s_lshl_b32 s36, s33, 2
s_add_u32 s36, s36, s32
s_cmp_ge_u32 s36, 16
s_cbranch_scc1 L_end
s_lshl_b32 s36, s36, 3
s_add_u32 s36, s36, 128
v_mov_b32 v22, s36
s_mov_b64 exec, 1
buffer_store_dwordx2 v[20:21], v22, s[12:15], 0 offen
L_end:
s_endpgm''')
    A.raw('.section .rodata,"a"\n.p2align 6')
    A.raw(kd('chain_kernel'))
    return A.text()

if __name__ == '__main__':
    open('chain.s', 'w').write(gen_chain_test())
    open('chain_st.s', 'w').write(gen_chain_test(stamps=True))
```

```python
import math
from gen import *

W_L16, W_LANE, W_TR, W_VO = 0, 1, 2, 3

def ar(b, n=4): return f'a[{b}:{b+n-1}]'

def worker_setup(A):
    A(f'''v_and_b32 v{W_LANE}, 63, v0
v_lshlrev_b32 v{W_L16}, 4, v{W_LANE}
s_mul_i32 s52, s32, 40960
v_lshlrev_b32 v{W_TR}, 3, v{W_LANE}
v_add_u32 v{W_TR}, s52, v{W_TR}
s_mov_b32 s35, 1000000''')

def load_units(A, units, depth=9):
    n_u = len(units)
    def issue(n):
        sl = n % 10
        for mp, (sr, sb, c) in enumerate(units[n][0]):
            A(f's_add_u32 m0, s52, {sl*4096 + mp*1024}')
            A(f's_add_u32 s38, s{sb}, {c}')
            A(f'buffer_load_dwordx4 v{W_VO}, s[{sr}:{sr+3}], s38 offen lds')
    for n in range(min(depth, n_u)): issue(n)
    for n in range(n_u):
        later = min(n_u - 1, n + depth - 1) - n
        A(f's_waitcnt vmcnt({4*later})')
        for T in range(2):
            for mp in range(4):
                A(f'ds_read_b64_tr_b16 {units[n][1][mp][T]}, v{W_TR} offset:{(n%10)*4096 + mp*1024 + T*512}')
        if n + depth < n_u:
            A('s_waitcnt lgkmcnt(8)')
            issue(n + depth)
    A('s_waitcnt lgkmcnt(0)\ns_barrier')

def lane_bits(A):
    A(f'''v_bfe_u32 v21, v{W_LANE}, 4, 1
v_bfe_u32 v22, v{W_LANE}, 3, 1
v_bfe_u32 v23, v{W_LANE}, 2, 1
v_bfe_u32 v24, v{W_LANE}, 1, 1
v_and_b32 v25, 1, v{W_LANE}
v_lshrrev_b32 v26, 5, v{W_LANE}''')

def voff_dmap(A, stride):
    lane_bits(A)
    A(f'''v_lshlrev_b32 v27, 3, v21
v_lshl_add_u32 v27, v22, 1, v27
v_lshl_add_u32 v27, v23, 2, v27
v_lshl_add_u32 v27, v24, 5, v27
v_mul_u32_u24 v27, {stride}, v27
v_lshl_add_u32 v27, v26, 5, v27
v_lshl_add_u32 v{W_VO}, v25, 4, v27''')

def drow(t, mp): return 64 * t + 16 * (mp >> 1) + (mp & 1)

def atomic_flag(A, soff, vtmp):
    A(f'''s_mov_b64 exec, 1
v_mov_b32 v{vtmp}, 1
v_mov_b32 v{vtmp+1}, 0
buffer_atomic_add v{vtmp}, v{vtmp+1}, s[8:11], {soff} offen sc1
s_mov_b64 exec, -1''')

def emit_init(A):
    A(f'''v_mov_b32 v16, 0
v_mov_b32 v17, 0
v_mov_b32 v18, 0
v_mov_b32 v19, 0
s_lshl_b32 s36, s32, 13
s_add_u32 s37, s36, 4096''')
    for i in range(8):
        A(f'buffer_store_dwordx4 v[16:19], v{W_L16}, s[8:11], s{36 + (i>>2)} offen offset:{(i&3)*1024} sc1')
    A(f'''s_waitcnt vmcnt(0)
s_mov_b64 exec, 1
v_mov_b32 v16, 1
v_mov_b32 v17, {DBG_GATE}
buffer_atomic_add v16, v17, s[12:15], 0 offen sc1
s_mov_b64 exec, -1''')

def emit_ln(A, sseg, gate=True):
    A('s_load_dwordx2 s[4:5], s[0:1], 0\ns_waitcnt lgkmcnt(0)')
    srd(A, 16, 4, 0x200000)
    RAW = 16; X = 48
    A(f'''v_lshlrev_b32 v4, 7, v{W_LANE}
s_lshl_b32 s36, s{sseg}, 15
s_lshl_b32 s37, s32, 13
s_add_u32 s36, s36, s37''')
    for i in range(8): A(f'buffer_load_dwordx4 {vr(RAW+4*i)}, v4, s[16:19], s36 offen offset:{16*i}')
    A(f'''v_and_b32 v5, 7, v{W_LANE}
v_lshlrev_b32 v5, 11, v5
v_lshrrev_b32 v6, 3, v{W_LANE}
v_lshl_add_u32 v5, v6, 4, v5
s_lshl_b32 s36, s{sseg}, 15
s_lshr_b32 s37, s32, 1
s_lshl_b32 s37, s37, 14
s_add_u32 s36, s36, s37
s_and_b32 s37, s32, 1
s_lshl_b32 s37, s37, 7
s_add_u32 s36, s36, s37
s_add_u32 s39, s36, {XFB}
s_mov_b32 s38, 0xffff0000''')
    for i in range(8):
        A(f's_waitcnt vmcnt({7-i})')
        for q in range(4):
            d = 4 * i + q
            A(f'v_lshlrev_b32 v{X+2*d}, 16, v{RAW+d}\nv_and_b32 v{X+2*d+1}, s38, v{RAW+d}')
    def red8(r):
        A(f'''v_add_f32_dpp v{r}, v{r}, v{r} quad_perm:[1,0,3,2] row_mask:0xf bank_mask:0xf
v_add_f32_dpp v{r}, v{r}, v{r} quad_perm:[2,3,0,1] row_mask:0xf bank_mask:0xf
v_add_f32_dpp v{r}, v{r}, v{r} row_half_mirror row_mask:0xf bank_mask:0xf''')
    for a in range(4): A(f'v_add_f32 v{8+a}, v{X+a}, v{X+4+a}')
    for c in range(8, 64): A(f'v_add_f32 v{8+(c&3)}, v{8+(c&3)}, v{X+c}')
    A('v_add_f32 v8, v8, v9\nv_add_f32 v10, v10, v11\nv_add_f32 v8, v8, v10')
    red8(8)
    A(f'v_mul_f32 v7, {f32bits(1/512)}, v8')
    for a in range(4): A(f'v_mov_b32 v{8+a}, 0')
    for c in range(64):
        A(f'v_sub_f32 v{12+(c&3)}, v{X+c}, v7\nv_fmac_f32 v{8+(c&3)}, v{12+(c&3)}, v{12+(c&3)}')
    A('v_add_f32 v8, v8, v9\nv_add_f32 v10, v10, v11\nv_add_f32 v8, v8, v10')
    red8(8)
    A(f'''v_mul_f32 v8, {f32bits(1/512)}, v8
v_cvt_pk_bf16_f32 v9, v7, v8
v_lshlrev_b32 v7, 16, v9
v_and_b32 v8, s38, v9
v_add_f32 v8, {f32bits(1e-5)}, v8
v_cvt_pk_bf16_f32 v8, v8, v8
v_and_b32 v8, s38, v8
v_sqrt_f32 v8, v8
v_cvt_pk_bf16_f32 v8, v8, v8
v_and_b32 v8, s38, v8
v_rcp_f32 v8, v8''')
    for hi in range(2):
        for g in range(4):
            b = 16 * hi + 8 * (g >> 1) + 2 * (g & 1)
            o = RAW + 4 * (4 * hi + g)
            for q, c in enumerate((b, b + 4, b + 1, b + 5)):
                lo, hh = X + c, X + c + 32
                A(f'''v_sub_f32 v{lo}, v{lo}, v7
v_sub_f32 v{hh}, v{hh}, v7
v_cvt_pk_bf16_f32 v{hh}, v{lo}, v{hh}
v_lshlrev_b32 v{lo}, 16, v{hh}
v_and_b32 v{hh}, s38, v{hh}
v_mul_f32 v{lo}, v{lo}, v8
v_mul_f32 v{hh}, v{hh}, v8
v_cvt_pk_bf16_f32 v{o+q}, v{lo}, v{hh}''')
            A(f'buffer_store_dwordx4 {vr(o)}, v5, s[8:11], s39 offen offset:{hi*1024+g*256} sc1')
    if gate: wait_dbg(A, 'ln_gate', DBG_GATE, 4, 8, 9)
    else: A('s_waitcnt vmcnt(0)')
    A(f's_lshl_b32 s36, s{sseg}, 7\ns_add_u32 s36, s36, {FLAGS+F_XN}')
    atomic_flag(A, 's36', 8)

def wait_all_xn(A, lbl, gate=True):
    if gate: wait_dbg(A, f'{lbl}_gate', DBG_GATE, 4, 8, 9)
    A(f'''v_lshlrev_b32 v8, 7, v{W_LANE}
s_mov_b32 s37, {FLAGS+F_XN}
{lbl}:
buffer_load_dword v9, v8, s[8:11], s37 offen sc1
s_waitcnt vmcnt(0)
v_cmp_gt_u32 vcc, 4, v9
s_cbranch_vccz {lbl}_ok
s_sleep 2
s_sub_u32 s35, s35, 1
s_cbranch_scc0 {lbl}
s_mov_b32 s35, 0
{lbl}_ok:''')

def xf_loop(A, tag, stride, nst, mfmas, epilogue, flag_soff, active=None):
    XV = 4; XA = [[8, 12], [16, 20]]
    def dma(seg):
        A(f'''s_min_u32 s36, s{seg}, 63
s_lshl_b32 s36, s36, 15
s_add_u32 s36, s36, s42
s_add_u32 s37, s36, 4096
s_mov_b32 m0, s43''')
        for i in range(4): A(f'buffer_load_dwordx4 v{W_L16}, s[8:11], s36 offen offset:{i*1024} sc1 lds')
        A('s_add_u32 m0, s43, 4096')
        for i in range(4): A(f'buffer_load_dwordx4 v{W_L16}, s[8:11], s37 offen offset:{i*1024} sc1 lds')
        A('s_xor_b32 s43, s43, 0x8000')
    A(f'''s_lshl_b32 s43, s32, 13
s_add_u32 s42, s43, {XFB}
v_mov_b32 v{XV}, v{W_L16}
s_mov_b32 s44, -1''')
    dma(40)
    A(f'''s_waitcnt vmcnt(0)
{tag}_top:
s_barrier
s_add_u32 s41, s40, {stride}''')
    dma(41)
    if active: A(f's_cmp_eq_u32 s{active}, 0\ns_cbranch_scc1 {tag}_skip')
    def rd(ks):
        for tt in range(2): A.ds(f'ds_read_b128 {vr(XA[ks&1][tt])}, v{XV} offset:{tt*16384 + ks*1024}', f'x{ks}')
    A.lds_q = []
    rd(0)
    for ks in range(16):
        A.wait_lds(f'x{ks}')
        if ks < 15: rd(ks + 1)
        mfmas(ks, XA[ks & 1])
        if ks == 13:
            A(f's_waitcnt vmcnt(0)\ns_cmp_lt_i32 s44, 0\ns_cbranch_scc1 {tag}_noflag')
            flag_soff(44); atomic_flag(A, 's36', 6)
            A(f'{tag}_noflag:')
    epilogue()
    A(f'''s_mov_b32 s44, s40
{tag}_next:
v_xor_b32 v{XV}, 0x8000, v{XV}
s_mov_b32 s40, s41
s_cmp_lt_u32 s40, 64
s_cbranch_scc1 {tag}_top
s_waitcnt vmcnt(0)''')
    if active: A(f's_cmp_eq_u32 s{active}, 0\ns_cbranch_scc1 {tag}_end')
    flag_soff(44); atomic_flag(A, 's36', 6)
    if active:
        A(f's_branch {tag}_end\n{tag}_skip:\ns_waitcnt vmcnt(0)\ns_branch {tag}_next')
    A(f'{tag}_end:\ns_barrier')

def MFd(A, d, a, b, c): A(f'v_mfma_f32_16x16x32_bf16 {d}, {a}, {b}, {c}')

def qkv_frag(m, t, T):
    i = 2 * t + T
    return {'k': f'a[{8*i}:{8*i+7}]', 'v': f'a[{128+8*i}:{128+8*i+7}]', 'q': f'v[{128+8*i}:{128+8*i+7}]'}[m]

def emit_qkv(A, gate=True):
    A('''s_load_dwordx4 s[16:19], s[0:1], 16
s_load_dwordx2 s[24:25], s[0:1], 32
s_waitcnt lgkmcnt(0)
s_mov_b32 s20, s18
s_and_b32 s21, s19, 0xffff
s_mov_b32 s22, 0x400000
s_mov_b32 s23, 0x20000
s_and_b32 s17, s17, 0xffff
s_mov_b32 s18, 0x400000
s_mov_b32 s19, 0x20000
s_and_b32 s25, s25, 0xffff
s_mov_b32 s26, 0x400000
s_mov_b32 s27, 0x20000
s_lshl_b32 s45, s33, 8
s_lshl_b32 s37, s32, 6
s_add_u32 s45, s45, s37''')
    voff_dmap(A, 8192)
    units = []
    for t in range(8):
        for m in 'kvq':
            sr = {'q': 16, 'k': 20, 'v': 24}[m]
            units.append(([(sr, 45, drow(t, mp) * 8192) for mp in range(4)],
                          [[sub(qkv_frag(m, t, T), 2 * mp, 2) for T in range(2)] for mp in range(4)]))
    load_units(A, units)
    prof(A, 2, 36, dbg=13)
    wait_all_xn(A, 'qkv_xn', gate)
    prof(A, 3, 36)
    ACC = 24; PKB = 72
    def acc(m, T, tt): return ACC + 4 * ('qkv'.index(m) * 4 + T * 2 + tt)
    def mfmas(ks, XA):
        for m in 'qkv':
            for T in range(2):
                w = sub(qkv_frag(m, ks >> 1, T), 4 * (ks & 1), 4)
                for tt in range(2):
                    d = vr(acc(m, T, tt)); c = '0' if ks == 0 else d
                    if m == 'v': MFd(A, d, vr(XA[tt]), w, c)
                    else: MFd(A, d, w, vr(XA[tt]), c)
    def epi():
        A(f'''s_lshl_b32 s36, s33, 6
s_add_u32 s36, s36, s40
s_lshl_b32 s37, s36, 14
s_lshl_b32 s36, s36, 13
s_lshl_b32 s38, s32, 10
s_add_u32 s36, s36, s38
s_add_u32 s36, s36, {QFB}
s_add_u32 s46, s36, 4096
s_add_u32 s39, s37, s38
s_add_u32 s39, s39, {KVB}
s_add_u32 s47, s39, 4096
s_add_u32 s37, s39, s38
s_add_u32 s37, s37, 8192''')
        def pk(o, a, b):
            A(f'''v_cvt_pk_bf16_f32 v{o}, v{a}, v{a+1}
v_cvt_pk_bf16_f32 v{o+1}, v{a+2}, v{a+3}
v_cvt_pk_bf16_f32 v{o+2}, v{b}, v{b+1}
v_cvt_pk_bf16_f32 v{o+3}, v{b+2}, v{b+3}''')
        n = 0
        for m, so in (('q', (36, 46)), ('k', (39, 47))):
            for tt in range(2):
                o = PKB + 4 * n; n += 1
                pk(o, acc(m, 0, tt), acc(m, 1, tt))
                A(f'buffer_store_dwordx4 {vr(o)}, v{W_L16}, s[8:11], s{so[tt]} offen sc1')
        for T in range(2):
            o = PKB + 4 * n; n += 1
            pk(o, acc('v', T, 0), acc('v', T, 1))
            A(f'buffer_store_dwordx4 {vr(o)}, v{W_L16}, s[8:11], s37 offen offset:{T*1024} sc1')
    def fl(seg): A(f's_lshl_b32 s36, s33, 8\ns_lshl_b32 s37, s{seg}, 2\ns_add_u32 s36, s36, s37')
    xf_loop(A, 'qkv', 7, 6, mfmas, epi, fl)
    prof(A, 4, 36, dbg=14)

def emit_gu(A, nsets):
    A('''s_load_dwordx4 s[16:19], s[0:1], 64
s_waitcnt lgkmcnt(0)
s_mov_b32 s20, s18
s_and_b32 s21, s19, 0xffff
s_mov_b32 s22, 1409024
s_mov_b32 s23, 0x20000
s_and_b32 s17, s17, 0xffff
s_mov_b32 s18, 1409024
s_mov_b32 s19, 0x20000
s_lshl_b32 s49, s48, 2
s_add_u32 s49, s49, s32
s_cmp_lt_u32 s49, 43
s_cselect_b32 s50, 1, 0
s_min_u32 s49, s49, 42
s_lshl_b32 s45, s49, 6''')
    voff_dmap(A, 2752)
    def frag(m, t, T):
        i = 2 * t + T; b = 128 * 'gu'.index(m) + 8 * i
        return f'a[{b}:{b+7}]'
    units = []
    for t in range(8):
        for m in 'gu':
            units.append(([({'g': 16, 'u': 20}[m], 45, drow(t, mp) * 2752) for mp in range(4)],
                          [[sub(frag(m, t, T), 2 * mp, 2) for T in range(2)] for mp in range(4)]))
    load_units(A, units)
    prof(A, 5, 36)
    ACC = 24; PKB = 72
    def acc(m, T, tt): return ACC + 4 * ('gu'.index(m) * 4 + T * 2 + tt)
    def mfmas(ks, XA):
        for m in 'gu':
            for T in range(2):
                w = sub(frag(m, ks >> 1, T), 4 * (ks & 1), 4)
                for tt in range(2):
                    d = vr(acc(m, T, tt)); c = '0' if ks == 0 else d
                    MFd(A, d, w, vr(XA[tt]), c)
    c1 = -2 * math.sqrt(2 / math.pi) * math.log2(math.e); c2 = c1 * 0.044715
    def epi():
        A(f'''s_mul_i32 s36, s40, {2*44*1024}
s_lshl_b32 s37, s49, 10
s_add_u32 s36, s36, s37
s_add_u32 s36, s36, {HFB}
s_add_u32 s37, s36, {44*1024}
s_mov_b32 s38, {f32bits(c2)}
v_mov_b32 v56, {f32bits(c1)}''')
        for tt in range(2):
            for T in range(2):
                g = acc('g', T, tt); u = acc('u', T, tt); t = 60
                for r in range(4): A(f'v_mul_f32 v{t+r}, v{g+r}, v{g+r}')
                for r in range(4): A(f'v_fma_f32 v{t+r}, v{t+r}, s38, v56')
                for r in range(4): A(f'v_mul_f32 v{t+r}, v{t+r}, v{g+r}')
                for r in range(4): A(f'v_exp_f32 v{t+r}, v{t+r}')
                for r in range(4): A(f'v_mul_f32 v{g+r}, v{g+r}, v{u+r}')
                for r in range(4): A(f'v_add_f32 v{t+r}, 1.0, v{t+r}')
                for r in range(4): A(f'v_rcp_f32 v{t+r}, v{t+r}')
                for r in range(4): A(f'v_mul_f32 v{g+r}, v{g+r}, v{t+r}')
                o = PKB + 4 * tt + 2 * T
                A(f'v_cvt_pk_bf16_f32 v{o}, v{g}, v{g+1}\nv_cvt_pk_bf16_f32 v{o+1}, v{g+2}, v{g+3}')
            A(f'buffer_store_dwordx4 {vr(PKB+4*tt)}, v{W_L16}, s[8:11], s{36+tt} offen sc1')
    def fl(seg): A(f's_lshl_b32 s36, s{seg}, 7\ns_add_u32 s36, s36, {FLAGS+F_H}')
    xf_loop(A, 'gu', nsets, 2, mfmas, epi, fl, active=50)
    prof(A, 6, 36)

def emit_att(A, stride):
    IDX, QW, TRA, B0, TMP = 4, 5, 6, 7, 8
    MF_ = [16 + 4 * i for i in range(8)]
    AK = [48, 52]; AV = [56, 60]
    KX = lambda tt, k: 64 + 16 * tt + 4 * k
    QX = lambda tt, k: 96 + 16 * tt + 4 * k
    VX = [128, 132]; KM = [136 + 4 * k for k in range(4)]
    S = {(0, 0): 152, (0, 1): 156, (1, 0): 160, (1, 1): 164, (1, 2): 168}
    PB = [172, 176]; PM = [180, 182]; VM = 184; ONES = 188; ONE2 = 192; NEG = 194
    LS = [196, 200]; O = lambda tt, T: 204 + 8 * tt + 4 * T
    OFR = [220, 224]
    L_M = 0; L_K = 8192
    A(f'''v_and_b32 v21, 8, v{W_LANE}
v_cmp_eq_u32 vcc, 0, v21
v_mov_b32 v22, 0xeeee
v_mov_b32 v23, 0x4444
v_cndmask_b32 v{IDX}, v22, v23, vcc
v_lshrrev_b32 v21, 5, v{W_LANE}
v_and_b32 v22, 15, v{W_LANE}
v_lshl_add_u32 v21, v21, 4, v22
v_lshlrev_b32 v21, 4, v21
v_bfe_u32 v22, v{W_LANE}, 4, 1
v_lshl_add_u32 v21, v22, 3, v21
s_lshl_b32 s38, s32, 9
v_add_u32 v{QW}, s38, v21
v_lshrrev_b32 v21, 2, v{W_LANE}
v_lshlrev_b32 v21, 4, v21
v_and_b32 v22, 1, v{W_LANE}
v_lshl_add_u32 v{TRA}, v22, 3, v21
s_lshl_b32 s53, s32, 11
v_add_u32 v{B0}, s53, v{W_L16}
s_mov_b32 s68, {f32bits(128 ** -0.5 * math.log2(math.e))}
v_mov_b32 v{ONES}, 0x3f803f80
v_mov_b32 v{ONES+1}, 0x3f803f80
v_mov_b32 v{ONES+2}, 0x3f803f80
v_mov_b32 v{ONES+3}, 0x3f803f80
s_mov_b32 s82, -1
s_mov_b32 s83, 0
v_cndmask_b32 v{ONE2}, 0, v{ONES}, s[82:83]
v_cndmask_b32 v{ONE2+1}, 0, v{ONES}, s[82:83]
v_mov_b32 v{NEG}, 0xf149f2ca
v_mov_b32 v{PB[0]+2}, 0
v_mov_b32 v{PB[0]+3}, 0
v_lshrrev_b32 v21, 4, v{W_LANE}
v_lshlrev_b32 v21, 2, v21
v_and_b32 v22, 15, v{W_LANE}''')
    for r in range(4):
        A(f'v_add_u32 v23, {r}, v21\nv_cmp_le_u32 s[{72+2*r}:{73+2*r}], v23, v22')
    wait_dbg(A, 'att_wreg', DBG_CHAINCNT, 128, 8, 9)
    A(f'''att_top:
s_lshl_b32 s37, s33, 8
s_lshl_b32 s38, s40, 2
s_add_u32 s37, s37, s38
v_mov_b32 v9, 0''')
    wait_cnt(A, 'att_kv', 8, 9, 's37', 4, 8, sleep=2)
    A(f'''s_lshl_b32 s36, s33, 6
s_add_u32 s36, s36, s40
s_lshl_b32 s37, s36, 14
s_lshl_b32 s36, s36, 13
s_add_u32 s36, s36, {QFB}
s_add_u32 s38, s36, 4096
s_add_u32 s37, s37, {KVB}
s_add_u32 s39, s37, 4096
s_add_u32 s46, s37, 8192''')
    for tt in range(2):
        for k in range(4):
            A(f'buffer_load_dwordx4 {vr(KX(tt,k))}, v{W_L16}, s[8:11], s{(37,39)[tt]} offen offset:{k*1024} sc1')
            A(f'buffer_load_dwordx4 {vr(QX(tt,k))}, v{W_L16}, s[8:11], s{(36,38)[tt]} offen offset:{k*1024} sc1')
    for T in range(2): A(f'buffer_load_dwordx4 {vr(VX[T])}, v{B0}, s[8:11], s46 offen offset:{T*1024} sc1')
    for a in AK + AV: A(f'v_mov_b64 v[{a}:{a+1}], 0\nv_mov_b64 v[{a+2}:{a+3}], 0')
    A('s_waitcnt vmcnt(0)')
    for k in range(4):
        for key in ((0, 1), (1, 1), (1, 2)):
            d = vr(S[key]); MFd(A, d, vr(KX(key[1] - 1, k)), vr(QX(key[0], k)), '0' if k == 0 else d)
    A(f'''s_lshl_b32 s47, s40, 13
s_add_u32 s47, s47, {GMEMB}
att_poll:
buffer_load_dwordx4 {vr(MF_[0])}, v{B0}, s[8:11], s47 offen sc1
buffer_load_dwordx4 {vr(MF_[1])}, v{B0}, s[8:11], s47 offen offset:1024 sc1
s_waitcnt vmcnt(0)
v_max3_u32 v8, v16, v17, v18
v_max3_u32 v8, v8, v19, v20
v_max3_u32 v8, v8, v21, v22
v_max_u32 v8, v8, v23
v_cmp_eq_u32 vcc, -1, v8
s_cbranch_vccz att_ok
s_sleep 1
s_sub_u32 s35, s35, 1
s_cbranch_scc0 att_poll
s_mov_b32 s35, 0
att_ok:
ds_write_b128 v{B0}, {vr(MF_[0])} offset:{L_M}
ds_write_b128 v{B0}, {vr(MF_[1])} offset:{L_M+1024}
s_waitcnt lgkmcnt(0)
s_barrier''')
    A.lds_q = []
    for t in range(8): A.ds(f'ds_read_b128 {vr(MF_[t])}, v{W_L16} offset:{L_M + t*1024}', f'm{t}')
    def SM(acc, t, m, T): A(f'v_smfmac_f32_16x16x64_bf16 {vr(acc)}, {vr(MF_[t])}, {qkv_frag(m,t,T)}, v{IDX}')
    for t in range(8):
        A.wait_lds(f'm{t}')
        SM(AK[0], t, 'k', 0); SM(AK[1], t, 'k', 1)
    fold = [f'v_permlane32_swap_b32 v{AK[0]+r}, v{AK[1]+r}' for r in range(4)] + [f'v_add_f32 v{AK[0]+r}, v{AK[0]+r}, v{AK[1]+r}' for r in range(4)]
    fold += [f'v_cvt_pk_bf16_f32 v8, v{AK[0]}, v{AK[0]+1}', f'v_cvt_pk_bf16_f32 v9, v{AK[0]+2}, v{AK[0]+3}']
    n = 0
    for t in range(8):
        for T in range(2):
            SM(AV[T], t, 'v', T); n += 1
            if 3 <= n <= 7: A(fold[2*(n-3)]); A(fold[2*(n-3)+1])
            if n == 8: A.ds(f'ds_write_b64 v{QW}, v[8:9] offset:{L_K}', 'kw')
            if n == 12:
                A.wait_lds('kw'); A('s_barrier')
            if n >= 13:
                k = n - 13
                for hf in range(2): A.ds(f'ds_read_b64_tr_b16 {vr(KM[k]+2*hf,2)}, v{TRA} offset:{L_K + k*512 + hf*256}', f'km{k}')
    for key in ((0, 1), (1, 2)):
        for r in range(4): A(f'v_cndmask_b32 v{S[key]+r}, v{NEG}, v{S[key]+r}, s[{72+2*r}:{73+2*r}]')
    for k in range(4):
        A.wait_lds(f'km{k}')
        for tt in range(2):
            d = vr(S[(tt, 0)]); MFd(A, d, vr(KM[k]), vr(QX(tt, k)), '0' if k == 0 else d)
    for T in range(2):
        A(f'v_cvt_pk_bf16_f32 v{VM+2*T}, v{AV[T]}, v{AV[T]+1}\nv_cvt_pk_bf16_f32 v{VM+2*T+1}, v{AV[T]+2}, v{AV[T]+3}')
    A(f'''s_lshl_b32 s36, s40, 18
s_lshl_b32 s37, s33, 12
s_add_u32 s36, s36, s37
s_lshl_b32 s37, s32, 10
s_add_u32 s36, s36, s37
s_add_u32 s36, s36, {OFB}
s_add_u32 s37, s36, 0x20000''')
    for tt in range(2):
        regs = [S[k] + r for k in S if k[0] == tt for r in range(4)]
        m = 8 + 2 * tt; t1 = m + 1
        A(f'v_max3_f32 v{m}, v{regs[0]}, v{regs[1]}, v{regs[2]}')
        i = 3
        while i + 1 < len(regs):
            A(f'v_max3_f32 v{m}, v{m}, v{regs[i]}, v{regs[i+1]}'); i += 2
        A(f'''v_max_f32 v{m}, v{m}, v{regs[i]}
v_mov_b32 v{t1}, v{m}
v_permlane32_swap_b32 v{m}, v{t1}
v_max_f32 v{m}, v{m}, v{t1}
v_mov_b32 v{t1}, v{m}
v_permlane16_swap_b32 v{m}, v{t1}
v_max_f32 v{m}, v{m}, v{t1}
v_mul_f32 v{m}, s68, v{m}''')
        for r in regs: A(f'v_fma_f32 v{r}, v{r}, s68, -v{m}')
        for r in regs: A(f'v_exp_f32 v{r}, v{r}')
        for key in S:
            if key[0] != tt: continue
            o = PM[tt] if key[1] == 0 else PB[tt] + 2 * (key[1] - 1)
            A(f'v_cvt_pk_bf16_f32 v{o}, v{S[key]}, v{S[key]+1}\nv_cvt_pk_bf16_f32 v{o+1}, v{S[key]+2}, v{S[key]+3}')
        MFd(A, vr(LS[tt]), vr(ONES), vr(PB[tt]), '0')
        for T in range(2): MFd(A, vr(O(tt, T)), vr(VX[T]), vr(PB[tt]), '0')
        A(f'v_mfma_f32_16x16x16_bf16 {vr(LS[tt])}, {vr(ONE2,2)}, {vr(PM[tt],2)}, {vr(LS[tt])}')
        for T in range(2): A(f'v_mfma_f32_16x16x16_bf16 {vr(O(tt,T))}, {vr(VM+2*T,2)}, {vr(PM[tt],2)}, {vr(O(tt,T))}')
    for tt in range(2):
        A(f'v_rcp_f32 v12, v{LS[tt]}')
        for T in range(2):
            o = O(tt, T)
            for r in range(4): A(f'v_mul_f32 v{o+r}, v{o+r}, v12')
            A(f'v_cvt_pk_bf16_f32 v{OFR[tt]+2*T}, v{o}, v{o+1}\nv_cvt_pk_bf16_f32 v{OFR[tt]+2*T+1}, v{o+2}, v{o+3}')
        A(f'buffer_store_dwordx4 {vr(OFR[tt])}, v{W_L16}, s[8:11], s{36+tt} offen sc1')
    A(f'''s_waitcnt vmcnt(0)
s_barrier
s_cmp_lg_u32 s32, 0
s_cbranch_scc1 att_nf
s_lshl_b32 s36, s40, 7
s_add_u32 s36, s36, {FLAGS+F_O}''')
    atomic_flag(A, 's36', 8)
    A('att_nf:')
    prof(A, 16, 10, 40)
    A(f'''s_add_u32 s40, s40, {stride}
s_cmp_lt_u32 s40, 64
s_cbranch_scc1 att_top''')

def emit_out(A, nsets):
    A('''s_load_dwordx2 s[4:5], s[0:1], 40
s_load_dwordx4 s[20:23], s[0:1], 80
s_load_dwordx2 s[6:7], s[0:1], 0
s_waitcnt lgkmcnt(0)''')
    srd(A, 16, 4, 0x400000)
    srd(A, 24, 22, 0x200000)
    A('s_and_b32 s21, s21, 0xffff\ns_mov_b32 s22, 1409024\ns_mov_b32 s23, 0x20000')
    srd(A, 28, 6, 0x200000)
    A(f'''v_bfe_u32 v21, v{W_LANE}, 1, 4
v_lshlrev_b32 v21, 10, v21
v_lshrrev_b32 v22, 5, v{W_LANE}
v_lshl_add_u32 v21, v22, 5, v21
v_and_b32 v22, 1, v{W_LANE}
v_lshl_add_u32 v{W_VO}, v22, 4, v21
s_lshl_b32 s37, s48, 6
s_lshl_b32 s45, s32, 20
s_add_u32 s45, s45, s37
s_lshl_b32 s46, s32, 15
s_add_u32 s46, s46, s37''')
    def wo(ks, T): return ar(8 * ks + 4 * T)
    def wd(i, T): return vr(168 + 8 * i + 4 * T)
    units = []
    for u in range(6):
        dm = []; de = []
        for mp in range(4):
            i = 2 * u + (mp >> 1); m2 = mp & 1
            dm.append((20, 46, (128 * i + 16 * m2) * 1024))
            de.append([sub(wd(i, T) if i < 11 else vr(32 + 4 * T), 2 * m2, 2) for T in range(2)])
        units.append((dm, de))
    for u in range(16):
        dm = []; de = []
        for mp in range(4):
            ks = 2 * u + (mp >> 1); m2 = mp & 1
            dm.append((16, 45, (32 * ks + 16 * m2) * 1024))
            de.append([sub(wo(ks, T), 2 * m2, 2) for T in range(2)])
        units.append((dm, de))
    load_units(A, units)
    prof(A, 7, 36, dbg=15)
    ACC = [16, 20]; XR = 24; BF = 32; RW = 4; OA = 5
    A(f'''s_lshl_b32 s36, s32, 11
v_add_u32 v{RW}, s36, v{W_L16}
v_and_b32 v21, 15, v{W_LANE}
v_lshlrev_b32 v21, 10, v21
v_lshrrev_b32 v22, 4, v{W_LANE}
v_lshl_add_u32 v21, v22, 3, v21
s_lshl_b32 s36, s48, 6
s_lshl_b32 s37, s32, 5
s_add_u32 s36, s36, s37
v_add_u32 v{OA}, s36, v21
s_lshl_b32 s36, s32, 10
v_add_u32 v6, s36, v{W_L16}
v_mov_b32 v9, 0
out_top:
s_lshr_b32 s41, s40, 1
s_lshl_b32 s42, s41, 7
s_cmp_lg_u32 s32, 0
s_cbranch_scc1 out_h_ok
s_add_u32 s37, s42, {FLAGS+F_H}''')
    wait_cnt(A, 'out_h', 8, 9, 's37', 43, 8, sleep=2)
    A(f'''s_barrier
s_mul_i32 s43, s40, {44*1024}
s_add_u32 s43, s43, {HFB}''')
    for i in range(11):
        A(f's_add_u32 s36, s32, {4*i}\ns_min_u32 s36, s36, 42\ns_lshl_b32 s36, s36, 10\ns_add_u32 s36, s36, s43')
        A(f'buffer_load_dwordx4 {vr(BF+4*i)}, v{W_L16}, s[8:11], s36 offen sc1')
    A(f's_lshl_b32 s44, s40, 14\nbuffer_load_dwordx2 {vr(XR,2)}, v{OA}, s[28:31], s44 offen')
    for i in range(11):
        A(f's_waitcnt vmcnt({11-i})')
        for T in range(2): MFd(A, vr(ACC[T]), wd(i, T), vr(BF + 4 * i), '0' if i == 0 else vr(ACC[T]))
    A(f'''s_cmp_lg_u32 s32, 0
s_cbranch_scc1 out_o_ok
s_add_u32 s37, s42, {FLAGS+F_O}''')
    wait_cnt(A, 'out_o', 8, 9, 's37', 32, 8, sleep=1)
    A(f'''s_barrier
s_lshl_b32 s36, s40, 17
s_lshl_b32 s37, s32, 15
s_add_u32 s36, s36, s37
s_add_u32 s36, s36, {OFB}''')
    for i in range(32):
        A(f'buffer_load_dwordx4 {vr(BF+4*i)}, v{W_L16}, s[8:11], s36 offen offset:{(i&3)*1024} sc1')
        if i & 3 == 3: A('s_add_u32 s36, s36, 4096')
    for i in range(32):
        A(f's_waitcnt vmcnt({31-i})')
        for T in range(2): MFd(A, vr(ACC[T]), wo(i, T), vr(BF + 4 * i), vr(ACC[T]))
    A(f'''ds_write_b128 v{RW}, {vr(ACC[0])}
ds_write_b128 v{RW}, {vr(ACC[1])} offset:1024
s_waitcnt lgkmcnt(0)
s_barrier
s_cmp_ge_u32 s32, 2
s_cbranch_scc1 out_next''')
    for w in range(4): A(f'ds_read_b128 {vr(BF+4*w)}, v6 offset:{w*2048}')
    A(f'''v_lshlrev_b32 v26, 16, v{XR}
v_and_b32 v27, 0xffff0000, v{XR}
v_lshlrev_b32 v28, 16, v{XR+1}
v_and_b32 v29, 0xffff0000, v{XR+1}
s_waitcnt lgkmcnt(0)''')
    for r in range(4):
        A(f'v_add_f32 v{BF+r}, v{BF+r}, v{BF+4+r}\nv_add_f32 v{BF+8+r}, v{BF+8+r}, v{BF+12+r}')
    for r in range(4):
        A(f'v_add_f32 v{BF+r}, v{BF+r}, v{BF+8+r}\nv_add_f32 v{BF+r}, v{BF+r}, v{26+r}')
    A(f'''v_cvt_pk_bf16_f32 v30, v{BF}, v{BF+1}
v_cvt_pk_bf16_f32 v31, v{BF+2}, v{BF+3}
buffer_store_dwordx2 v[30:31], v{OA}, s[24:27], s44 offen
out_next:''')
    prof(A, 16, 10, 41)
    A(f'''s_add_u32 s40, s40, {nsets}
s_cmp_lt_u32 s40, 128
s_cbranch_scc1 out_top''')

NAME = 'parallel_sum__memory_aug_recurrent_mem_tr__geglu_ffn__prompt_kernel'

def gen_full(profile=False, **ckw):
    PROF['on'] = profile
    A = Asm()
    A.raw(f'; @launch kernel={NAME} grid=(256,1,1) block=(256,1,1) lds=163840')
    A.raw('.amdgcn_target "amdgcn-amd-amdhsa--gfx950"')
    A.raw(f'.text\n.globl {NAME}\n.p2align 8\n.type {NAME},@function')
    A.label(NAME)
    A('s_cmp_ge_u32 s2, 256\ns_cbranch_scc1 L_end')
    common_entry(A)
    A('''s_lshl_b32 s36, s3, 2
v_mov_b32 v3, s36
v_mov_b32 v4, 1
v_mov_b32 v5, 0
s_cmp_lg_u32 s32, 0
s_cbranch_scc1 L_noticket
s_mov_b64 exec, 1
buffer_atomic_add v4, v3, s[12:15], 0 offen sc0 sc1
s_waitcnt vmcnt(0)
ds_write_b32 v5, v4
s_waitcnt lgkmcnt(0)
s_mov_b64 exec, -1
L_noticket:
s_barrier
ds_read_b32 v4, v5
s_waitcnt lgkmcnt(0)
v_readfirstlane_b32 s33, v4
s_barrier
s_cmp_ge_u32 s33, 32
s_cbranch_scc1 L_end
s_cmp_ge_u32 s3, 8
s_cbranch_scc1 L_end
s_lshl_b32 s91, s3, 5
s_add_u32 s91, s91, s33
s_lshl_b32 s91, s91, 9
s_add_u32 s91, s91, 0x6000000''')
    prof(A, 0, 36, dbg=8)
    A('''s_cmp_lg_u32 s3, 0
s_cbranch_scc1 L_worker''')
    emit_chain(A, gate=True, **ckw)
    A('s_endpgm\nL_worker:')
    worker_setup(A)
    A('''s_sub_u32 s88, s3, 1
s_lshl_b32 s88, s88, 5
s_add_u32 s88, s88, s33          ; wi
s_mul_i32 s33, s88, 9363
s_lshr_b32 s33, s33, 16          ; h = wi/7
s_mul_i32 s36, s33, 7
s_sub_u32 s89, s88, s36          ; r = wi%7
s_cmp_lg_u32 s88, 0
s_cbranch_scc1 L_noinit''')
    emit_init(A)
    A('''L_noinit:
s_cmp_lt_u32 s89, 5
s_cbranch_scc1 L_noln
s_lshl_b32 s90, s33, 1
s_add_u32 s90, s90, s89
s_sub_u32 s90, s90, 5''')
    emit_ln(A, 90)
    A('L_noln:\ns_mov_b32 s40, s89')
    prof(A, 1, 36)
    emit_qkv(A)
    A('''s_cmp_lt_u32 s89, 5
s_cbranch_scc1 L_gu
s_sub_u32 s40, s89, 5''')
    emit_att(A, 2)
    A('''s_endpgm
L_gu:
s_mul_i32 s90, s33, 5
s_add_u32 s90, s90, s89          ; oi
s_cmp_ge_u32 s90, 154
s_cbranch_scc1 L_out
s_mul_i32 s40, s90, 5958
s_lshr_b32 s40, s40, 16
s_mul_i32 s36, s40, 11
s_sub_u32 s48, s90, s36''')
    emit_gu(A, 14)
    A('''L_out:
s_lshr_b32 s40, s90, 4
s_and_b32 s48, s90, 15''')
    emit_out(A, 10)
    if PROF['on'] == 'dbg': prof(A, 0, 36, dbg=12)
    A('L_end:\ns_endpgm')
    A.raw('.section .rodata,"a"\n.p2align 6')
    A.raw(kd(NAME))
    return A.text()

if __name__ == '__main__':
    assert all((w * 9363) >> 16 == w // 7 for w in range(224)) and all((w * 5958) >> 16 == w // 11 for w in range(160))
    hdr = open('parallel_sum__memory_aug_recurrent_mem_tr__geglu_ffn__prompt.s.ref').read().split('; Override')[0]
    kw = dict(dB0=40, dB1=16, dA=16, b3k=1, kfs=5)
    open('full.s', 'w').write(hdr + gen_full(**kw))
    open('diag.s', 'w').write(hdr + gen_full(profile='dbg', **kw))
    open('full_prof.s', 'w').write(hdr + gen_full(profile=True, **kw))
```

```python
import math
from gen import *

W_L16, W_LANE, W_TR, W_VO = 0, 1, 2, 3

def ar(b, n=4): return f'a[{b}:{b+n-1}]'

def worker_setup(A):
    A(f'''v_and_b32 v{W_LANE}, 63, v0
v_lshlrev_b32 v{W_L16}, 4, v{W_LANE}
s_mul_i32 s52, s32, 40960
v_lshlrev_b32 v{W_TR}, 3, v{W_LANE}
v_add_u32 v{W_TR}, s52, v{W_TR}
s_mov_b32 s35, 1000000''')

def load_units(A, units, depth=9):
    n_u = len(units)
    def issue(n):
        sl = n % 10
        for mp, (sr, sb, c) in enumerate(units[n][0]):
            A(f's_add_u32 m0, s52, {sl*4096 + mp*1024}')
            A(f's_add_u32 s38, s{sb}, {c}')
            A(f'buffer_load_dwordx4 v{W_VO}, s[{sr}:{sr+3}], s38 offen lds')
    for n in range(min(depth, n_u)): issue(n)
    for n in range(n_u):
        later = min(n_u - 1, n + depth - 1) - n
        A(f's_waitcnt vmcnt({4*later})')
        for T in range(2):
            for mp in range(4):
                A(f'ds_read_b64_tr_b16 {units[n][1][mp][T]}, v{W_TR} offset:{(n%10)*4096 + mp*1024 + T*512}')
        if n + depth < n_u:
            A('s_waitcnt lgkmcnt(8)')
            issue(n + depth)
    A('s_waitcnt lgkmcnt(0)\ns_barrier')

def lane_bits(A):
    A(f'''v_bfe_u32 v21, v{W_LANE}, 4, 1
v_bfe_u32 v22, v{W_LANE}, 3, 1
v_bfe_u32 v23, v{W_LANE}, 2, 1
v_bfe_u32 v24, v{W_LANE}, 1, 1
v_and_b32 v25, 1, v{W_LANE}
v_lshrrev_b32 v26, 5, v{W_LANE}''')

def voff_dmap(A, stride):
    lane_bits(A)
    A(f'''v_lshlrev_b32 v27, 3, v21
v_lshl_add_u32 v27, v22, 1, v27
v_lshl_add_u32 v27, v23, 2, v27
v_lshl_add_u32 v27, v24, 5, v27
v_mul_u32_u24 v27, {stride}, v27
v_lshl_add_u32 v27, v26, 5, v27
v_lshl_add_u32 v{W_VO}, v25, 4, v27''')

def drow(t, mp): return 64 * t + 16 * (mp >> 1) + (mp & 1)

def atomic_flag(A, soff, vtmp):
    A(f'''s_mov_b64 exec, 1
v_mov_b32 v{vtmp}, 1
v_mov_b32 v{vtmp+1}, 0
buffer_atomic_add v{vtmp}, v{vtmp+1}, s[8:11], {soff} offen sc1
s_mov_b64 exec, -1''')

def emit_warm(A, pol='nt'):
    A('''s_load_dwordx4 s[16:19], s[0:1], 16
s_load_dwordx4 s[24:27], s[0:1], 32
s_mul_i32 s36, s33, 5
s_add_u32 s36, s36, s89
s_lshl_b32 s36, s36, 2
s_add_u32 s36, s36, s32
s_lshl_b32 s36, s36, 10
s_waitcnt lgkmcnt(0)
s_mov_b32 s20, s18
s_and_b32 s21, s19, 0xffff
s_mov_b32 s22, 0x400000
s_mov_b32 s23, 0x20000
s_and_b32 s17, s17, 0xffff
s_mov_b32 s18, 0x400000
s_mov_b32 s19, 0x20000
s_mov_b32 s28, s26
s_and_b32 s29, s27, 0xffff
s_mov_b32 s30, 0x400000
s_mov_b32 s31, 0x20000
s_and_b32 s25, s25, 0xffff
s_mov_b32 s26, 0x400000
s_mov_b32 s27, 0x20000''')
    n = 0
    for sr in (28, 24, 20, 16):
        for i in range(7):
            A(f's_add_u32 s37, s36, {i*640*1024}')
            A(f'buffer_load_dwordx4 v[{112+4*(n%4)}:{115+4*(n%4)}], v{W_L16}, s[{sr}:{sr+3}], s37 offen {pol}')
            n += 1

def emit_init(A):
    A(f'''v_mov_b32 v16, 0
v_mov_b32 v17, 0
v_mov_b32 v18, 0
v_mov_b32 v19, 0
s_lshl_b32 s36, s32, 13
s_add_u32 s37, s36, 4096''')
    for i in range(8):
        A(f'buffer_store_dwordx4 v[16:19], v{W_L16}, s[8:11], s{36 + (i>>2)} offen offset:{(i&3)*1024} sc1')
    A(f'''s_waitcnt vmcnt(0)
s_mov_b64 exec, 1
v_mov_b32 v16, 1
v_mov_b32 v17, {DBG_GATE}
buffer_atomic_add v16, v17, s[12:15], 0 offen sc1
s_mov_b64 exec, -1''')

def emit_ln(A, sseg, gate=True):
    A('s_load_dwordx2 s[4:5], s[0:1], 0\ns_waitcnt lgkmcnt(0)')
    srd(A, 16, 4, 0x200000)
    RAW = 16; X = 48
    A(f'''v_lshlrev_b32 v4, 7, v{W_LANE}
s_lshl_b32 s36, s{sseg}, 15
s_lshl_b32 s37, s32, 13
s_add_u32 s36, s36, s37''')
    for i in range(8): A(f'buffer_load_dwordx4 {vr(RAW+4*i)}, v4, s[16:19], s36 offen offset:{16*i}')
    A(f'''v_and_b32 v5, 7, v{W_LANE}
v_lshlrev_b32 v5, 11, v5
v_lshrrev_b32 v6, 3, v{W_LANE}
v_lshl_add_u32 v5, v6, 4, v5
s_lshl_b32 s36, s{sseg}, 15
s_lshr_b32 s37, s32, 1
s_lshl_b32 s37, s37, 14
s_add_u32 s36, s36, s37
s_and_b32 s37, s32, 1
s_lshl_b32 s37, s37, 7
s_add_u32 s36, s36, s37
s_add_u32 s39, s36, {XFB}
s_mov_b32 s38, 0xffff0000''')
    for i in range(8):
        A(f's_waitcnt vmcnt({7-i})')
        for q in range(4):
            d = 4 * i + q
            A(f'v_lshlrev_b32 v{X+2*d}, 16, v{RAW+d}\nv_and_b32 v{X+2*d+1}, s38, v{RAW+d}')
    def red8(r):
        A(f'''v_add_f32_dpp v{r}, v{r}, v{r} quad_perm:[1,0,3,2] row_mask:0xf bank_mask:0xf
v_add_f32_dpp v{r}, v{r}, v{r} quad_perm:[2,3,0,1] row_mask:0xf bank_mask:0xf
v_add_f32_dpp v{r}, v{r}, v{r} row_half_mirror row_mask:0xf bank_mask:0xf''')
    for a in range(4): A(f'v_add_f32 v{8+a}, v{X+a}, v{X+4+a}')
    for c in range(8, 64): A(f'v_add_f32 v{8+(c&3)}, v{8+(c&3)}, v{X+c}')
    A('v_add_f32 v8, v8, v9\nv_add_f32 v10, v10, v11\nv_add_f32 v8, v8, v10')
    red8(8)
    A(f'v_mul_f32 v7, {f32bits(1/512)}, v8')
    for a in range(4): A(f'v_mov_b32 v{8+a}, 0')
    for c in range(64):
        A(f'v_sub_f32 v{12+(c&3)}, v{X+c}, v7\nv_fmac_f32 v{8+(c&3)}, v{12+(c&3)}, v{12+(c&3)}')
    A('v_add_f32 v8, v8, v9\nv_add_f32 v10, v10, v11\nv_add_f32 v8, v8, v10')
    red8(8)
    A(f'''v_mul_f32 v8, {f32bits(1/512)}, v8
v_cvt_pk_bf16_f32 v9, v7, v8
v_lshlrev_b32 v7, 16, v9
v_and_b32 v8, s38, v9
v_add_f32 v8, {f32bits(1e-5)}, v8
v_cvt_pk_bf16_f32 v8, v8, v8
v_and_b32 v8, s38, v8
v_sqrt_f32 v8, v8
v_cvt_pk_bf16_f32 v8, v8, v8
v_and_b32 v8, s38, v8
v_rcp_f32 v8, v8''')
    for hi in range(2):
        for g in range(4):
            b = 16 * hi + 8 * (g >> 1) + 2 * (g & 1)
            o = RAW + 4 * (4 * hi + g)
            for q, c in enumerate((b, b + 4, b + 1, b + 5)):
                lo, hh = X + c, X + c + 32
                A(f'''v_sub_f32 v{lo}, v{lo}, v7
v_sub_f32 v{hh}, v{hh}, v7
v_cvt_pk_bf16_f32 v{hh}, v{lo}, v{hh}
v_lshlrev_b32 v{lo}, 16, v{hh}
v_and_b32 v{hh}, s38, v{hh}
v_mul_f32 v{lo}, v{lo}, v8
v_mul_f32 v{hh}, v{hh}, v8
v_cvt_pk_bf16_f32 v{o+q}, v{lo}, v{hh}''')
            A(f'buffer_store_dwordx4 {vr(o)}, v5, s[8:11], s39 offen offset:{hi*1024+g*256} sc1')
    if gate: wait_dbg(A, 'ln_gate', DBG_GATE, 4, 8, 9)
    else: A('s_waitcnt vmcnt(0)')
    A(f's_lshl_b32 s36, s{sseg}, 7\ns_add_u32 s36, s36, {FLAGS+F_XN}')
    atomic_flag(A, 's36', 8)

def wait_all_xn(A, lbl, gate=True):
    if gate: wait_dbg(A, f'{lbl}_gate', DBG_GATE, 4, 8, 9)
    A(f'''v_lshlrev_b32 v8, 7, v{W_LANE}
s_mov_b32 s37, {FLAGS+F_XN}
{lbl}:
buffer_load_dword v9, v8, s[8:11], s37 offen sc1
s_waitcnt vmcnt(0)
v_cmp_gt_u32 vcc, 4, v9
s_cbranch_vccz {lbl}_ok
s_sleep 2
s_sub_u32 s35, s35, 1
s_cbranch_scc0 {lbl}
s_mov_b32 s35, 0
{lbl}_ok:''')

def xf_loop(A, tag, stride, nst, mfmas, epilogue, flag_soff, active=None):
    XV = 4; XA = [[8, 12], [16, 20]]
    def dma(seg):
        A(f'''s_min_u32 s36, s{seg}, 63
s_lshl_b32 s36, s36, 15
s_add_u32 s36, s36, s42
s_add_u32 s37, s36, 4096
s_mov_b32 m0, s43''')
        for i in range(4): A(f'buffer_load_dwordx4 v{W_L16}, s[8:11], s36 offen offset:{i*1024} sc1 lds')
        A('s_add_u32 m0, s43, 4096')
        for i in range(4): A(f'buffer_load_dwordx4 v{W_L16}, s[8:11], s37 offen offset:{i*1024} sc1 lds')
        A('s_xor_b32 s43, s43, 0x8000')
    A(f'''s_lshl_b32 s43, s32, 13
s_add_u32 s42, s43, {XFB}
v_mov_b32 v{XV}, v{W_L16}
s_mov_b32 s44, -1''')
    dma(40)
    A(f'''s_waitcnt vmcnt(0)
{tag}_top:
s_barrier
s_add_u32 s41, s40, {stride}''')
    dma(41)
    if active: A(f's_cmp_eq_u32 s{active}, 0\ns_cbranch_scc1 {tag}_skip')
    def rd(ks):
        for tt in range(2): A.ds(f'ds_read_b128 {vr(XA[ks&1][tt])}, v{XV} offset:{tt*16384 + ks*1024}', f'x{ks}')
    A.lds_q = []
    rd(0)
    for ks in range(16):
        A.wait_lds(f'x{ks}')
        if ks < 15: rd(ks + 1)
        mfmas(ks, XA[ks & 1])
        if ks == 13:
            A(f's_waitcnt vmcnt(0)\ns_cmp_lt_i32 s44, 0\ns_cbranch_scc1 {tag}_noflag')
            flag_soff(44); atomic_flag(A, 's36', 6)
            A(f'{tag}_noflag:')
    epilogue()
    A(f'''s_mov_b32 s44, s40
{tag}_next:
v_xor_b32 v{XV}, 0x8000, v{XV}
s_mov_b32 s40, s41
s_cmp_lt_u32 s40, 64
s_cbranch_scc1 {tag}_top
s_waitcnt vmcnt(0)''')
    if active: A(f's_cmp_eq_u32 s{active}, 0\ns_cbranch_scc1 {tag}_end')
    flag_soff(44); atomic_flag(A, 's36', 6)
    if active:
        A(f's_branch {tag}_end\n{tag}_skip:\ns_waitcnt vmcnt(0)\ns_branch {tag}_next')
    A(f'{tag}_end:\ns_barrier')

def MFd(A, d, a, b, c): A(f'v_mfma_f32_16x16x32_bf16 {d}, {a}, {b}, {c}')

def qkv_frag(m, t, T):
    i = 2 * t + T
    return {'k': f'a[{8*i}:{8*i+7}]', 'v': f'a[{128+8*i}:{128+8*i+7}]', 'q': f'v[{128+8*i}:{128+8*i+7}]'}[m]

def emit_qkv(A, gate=True):
    A('''s_load_dwordx4 s[16:19], s[0:1], 16
s_load_dwordx2 s[24:25], s[0:1], 32
s_waitcnt lgkmcnt(0)
s_mov_b32 s20, s18
s_and_b32 s21, s19, 0xffff
s_mov_b32 s22, 0x400000
s_mov_b32 s23, 0x20000
s_and_b32 s17, s17, 0xffff
s_mov_b32 s18, 0x400000
s_mov_b32 s19, 0x20000
s_and_b32 s25, s25, 0xffff
s_mov_b32 s26, 0x400000
s_mov_b32 s27, 0x20000
s_lshl_b32 s45, s33, 8
s_lshl_b32 s37, s32, 6
s_add_u32 s45, s45, s37''')
    voff_dmap(A, 8192)
    units = []
    for t in range(8):
        for m in 'kvq':
            sr = {'q': 16, 'k': 20, 'v': 24}[m]
            units.append(([(sr, 45, drow(t, mp) * 8192) for mp in range(4)],
                          [[sub(qkv_frag(m, t, T), 2 * mp, 2) for T in range(2)] for mp in range(4)]))
    load_units(A, units)
    prof(A, 2, 36, dbg=13)
    wait_all_xn(A, 'qkv_xn', gate)
    prof(A, 3, 36)
    ACC = 24; PKB = 72
    def acc(m, T, tt): return ACC + 4 * ('qkv'.index(m) * 4 + T * 2 + tt)
    def mfmas(ks, XA):
        for m in 'qkv':
            for T in range(2):
                w = sub(qkv_frag(m, ks >> 1, T), 4 * (ks & 1), 4)
                for tt in range(2):
                    d = vr(acc(m, T, tt)); c = '0' if ks == 0 else d
                    if m == 'v': MFd(A, d, vr(XA[tt]), w, c)
                    else: MFd(A, d, w, vr(XA[tt]), c)
    def epi():
        A(f'''s_lshl_b32 s36, s33, 6
s_add_u32 s36, s36, s40
s_lshl_b32 s37, s36, 14
s_lshl_b32 s36, s36, 13
s_lshl_b32 s38, s32, 10
s_add_u32 s36, s36, s38
s_add_u32 s36, s36, {QFB}
s_add_u32 s46, s36, 4096
s_add_u32 s39, s37, s38
s_add_u32 s39, s39, {KVB}
s_add_u32 s47, s39, 4096
s_add_u32 s37, s39, s38
s_add_u32 s37, s37, 8192''')
        def pk(o, a, b):
            A(f'''v_cvt_pk_bf16_f32 v{o}, v{a}, v{a+1}
v_cvt_pk_bf16_f32 v{o+1}, v{a+2}, v{a+3}
v_cvt_pk_bf16_f32 v{o+2}, v{b}, v{b+1}
v_cvt_pk_bf16_f32 v{o+3}, v{b+2}, v{b+3}''')
        n = 0
        for m, so in (('q', (36, 46)), ('k', (39, 47))):
            for tt in range(2):
                o = PKB + 4 * n; n += 1
                pk(o, acc(m, 0, tt), acc(m, 1, tt))
                A(f'buffer_store_dwordx4 {vr(o)}, v{W_L16}, s[8:11], s{so[tt]} offen sc1')
        for T in range(2):
            o = PKB + 4 * n; n += 1
            pk(o, acc('v', T, 0), acc('v', T, 1))
            A(f'buffer_store_dwordx4 {vr(o)}, v{W_L16}, s[8:11], s37 offen offset:{T*1024} sc1')
    def fl(seg): A(f's_lshl_b32 s36, s33, 8\ns_lshl_b32 s37, s{seg}, 2\ns_add_u32 s36, s36, s37')
    xf_loop(A, 'qkv', 7, 6, mfmas, epi, fl)
    prof(A, 4, 36, dbg=14)

def emit_gu(A, nsets):
    A('''s_load_dwordx4 s[16:19], s[0:1], 64
s_waitcnt lgkmcnt(0)
s_mov_b32 s20, s18
s_and_b32 s21, s19, 0xffff
s_mov_b32 s22, 1409024
s_mov_b32 s23, 0x20000
s_and_b32 s17, s17, 0xffff
s_mov_b32 s18, 1409024
s_mov_b32 s19, 0x20000
s_lshl_b32 s49, s48, 2
s_add_u32 s49, s49, s32
s_cmp_lt_u32 s49, 43
s_cselect_b32 s50, 1, 0
s_min_u32 s49, s49, 42
s_lshl_b32 s45, s49, 6''')
    voff_dmap(A, 2752)
    def frag(m, t, T):
        i = 2 * t + T; b = 128 * 'gu'.index(m) + 8 * i
        return f'a[{b}:{b+7}]'
    units = []
    for t in range(8):
        for m in 'gu':
            units.append(([({'g': 16, 'u': 20}[m], 45, drow(t, mp) * 2752) for mp in range(4)],
                          [[sub(frag(m, t, T), 2 * mp, 2) for T in range(2)] for mp in range(4)]))
    load_units(A, units)
    prof(A, 5, 36)
    ACC = 24; PKB = 72
    def acc(m, T, tt): return ACC + 4 * ('gu'.index(m) * 4 + T * 2 + tt)
    def mfmas(ks, XA):
        for m in 'gu':
            for T in range(2):
                w = sub(frag(m, ks >> 1, T), 4 * (ks & 1), 4)
                for tt in range(2):
                    d = vr(acc(m, T, tt)); c = '0' if ks == 0 else d
                    MFd(A, d, w, vr(XA[tt]), c)
    c1 = -2 * math.sqrt(2 / math.pi) * math.log2(math.e); c2 = c1 * 0.044715
    def epi():
        A(f'''s_mul_i32 s36, s40, {2*44*1024}
s_lshl_b32 s37, s49, 10
s_add_u32 s36, s36, s37
s_add_u32 s36, s36, {HFB}
s_add_u32 s37, s36, {44*1024}
s_mov_b32 s38, {f32bits(c2)}
v_mov_b32 v56, {f32bits(c1)}''')
        for tt in range(2):
            for T in range(2):
                g = acc('g', T, tt); u = acc('u', T, tt); t = 60
                for r in range(4): A(f'v_mul_f32 v{t+r}, v{g+r}, v{g+r}')
                for r in range(4): A(f'v_fma_f32 v{t+r}, v{t+r}, s38, v56')
                for r in range(4): A(f'v_mul_f32 v{t+r}, v{t+r}, v{g+r}')
                for r in range(4): A(f'v_exp_f32 v{t+r}, v{t+r}')
                for r in range(4): A(f'v_mul_f32 v{g+r}, v{g+r}, v{u+r}')
                for r in range(4): A(f'v_add_f32 v{t+r}, 1.0, v{t+r}')
                for r in range(4): A(f'v_rcp_f32 v{t+r}, v{t+r}')
                for r in range(4): A(f'v_mul_f32 v{g+r}, v{g+r}, v{t+r}')
                o = PKB + 4 * tt + 2 * T
                A(f'v_cvt_pk_bf16_f32 v{o}, v{g}, v{g+1}\nv_cvt_pk_bf16_f32 v{o+1}, v{g+2}, v{g+3}')
            A(f'buffer_store_dwordx4 {vr(PKB+4*tt)}, v{W_L16}, s[8:11], s{36+tt} offen sc1')
    def fl(seg): A(f's_lshl_b32 s36, s{seg}, 7\ns_add_u32 s36, s36, {FLAGS+F_H}')
    xf_loop(A, 'gu', nsets, 2, mfmas, epi, fl, active=50)
    prof(A, 6, 36)

def emit_att(A, stride):
    IDX, QW, TRA, B0, TMP = 4, 5, 6, 7, 8
    MF_ = [16 + 4 * i for i in range(8)]
    AK = [48, 52]; AV = [56, 60]
    KX = lambda tt, k: 64 + 16 * tt + 4 * k
    QX = lambda tt, k: 96 + 16 * tt + 4 * k
    VX = [128, 132]; KM = [136 + 4 * k for k in range(4)]
    S = {(0, 0): 152, (0, 1): 156, (1, 0): 160, (1, 1): 164, (1, 2): 168}
    PB = [172, 176]; PM = [180, 182]; VM = 184; ONES = 188; ONE2 = 192; NEG = 194
    LS = [196, 200]; O = lambda tt, T: 204 + 8 * tt + 4 * T
    OFR = [220, 224]
    L_M = 0; L_K = 8192
    A(f'''v_and_b32 v21, 8, v{W_LANE}
v_cmp_eq_u32 vcc, 0, v21
v_mov_b32 v22, 0xeeee
v_mov_b32 v23, 0x4444
v_cndmask_b32 v{IDX}, v22, v23, vcc
v_lshrrev_b32 v21, 5, v{W_LANE}
v_and_b32 v22, 15, v{W_LANE}
v_lshl_add_u32 v21, v21, 4, v22
v_lshlrev_b32 v21, 4, v21
v_bfe_u32 v22, v{W_LANE}, 4, 1
v_lshl_add_u32 v21, v22, 3, v21
s_lshl_b32 s38, s32, 9
v_add_u32 v{QW}, s38, v21
v_lshrrev_b32 v21, 2, v{W_LANE}
v_lshlrev_b32 v21, 4, v21
v_and_b32 v22, 1, v{W_LANE}
v_lshl_add_u32 v{TRA}, v22, 3, v21
s_lshl_b32 s53, s32, 11
v_add_u32 v{B0}, s53, v{W_L16}
s_mov_b32 s68, {f32bits(128 ** -0.5 * math.log2(math.e))}
v_mov_b32 v{ONES}, 0x3f803f80
v_mov_b32 v{ONES+1}, 0x3f803f80
v_mov_b32 v{ONES+2}, 0x3f803f80
v_mov_b32 v{ONES+3}, 0x3f803f80
s_mov_b32 s82, -1
s_mov_b32 s83, 0
v_cndmask_b32 v{ONE2}, 0, v{ONES}, s[82:83]
v_cndmask_b32 v{ONE2+1}, 0, v{ONES}, s[82:83]
v_mov_b32 v{NEG}, 0xf149f2ca
v_mov_b32 v{PB[0]+2}, 0
v_mov_b32 v{PB[0]+3}, 0
v_lshrrev_b32 v21, 4, v{W_LANE}
v_lshlrev_b32 v21, 2, v21
v_and_b32 v22, 15, v{W_LANE}''')
    for r in range(4):
        A(f'v_add_u32 v23, {r}, v21\nv_cmp_le_u32 s[{72+2*r}:{73+2*r}], v23, v22')
    wait_dbg(A, 'att_wreg', DBG_CHAINCNT, 128, 8, 9)
    A(f'''att_top:
s_lshl_b32 s37, s33, 8
s_lshl_b32 s38, s40, 2
s_add_u32 s37, s37, s38
v_mov_b32 v9, 0''')
    wait_cnt(A, 'att_kv', 8, 9, 's37', 4, 8, sleep=2)
    A(f'''s_lshl_b32 s36, s33, 6
s_add_u32 s36, s36, s40
s_lshl_b32 s37, s36, 14
s_lshl_b32 s36, s36, 13
s_add_u32 s36, s36, {QFB}
s_add_u32 s38, s36, 4096
s_add_u32 s37, s37, {KVB}
s_add_u32 s39, s37, 4096
s_add_u32 s46, s37, 8192''')
    for tt in range(2):
        for k in range(4):
            A(f'buffer_load_dwordx4 {vr(KX(tt,k))}, v{W_L16}, s[8:11], s{(37,39)[tt]} offen offset:{k*1024} sc1')
            A(f'buffer_load_dwordx4 {vr(QX(tt,k))}, v{W_L16}, s[8:11], s{(36,38)[tt]} offen offset:{k*1024} sc1')
    for T in range(2): A(f'buffer_load_dwordx4 {vr(VX[T])}, v{B0}, s[8:11], s46 offen offset:{T*1024} sc1')
    for a in AK + AV: A(f'v_mov_b64 v[{a}:{a+1}], 0\nv_mov_b64 v[{a+2}:{a+3}], 0')
    A('s_waitcnt vmcnt(0)')
    for k in range(4):
        for key in ((0, 1), (1, 1), (1, 2)):
            d = vr(S[key]); MFd(A, d, vr(KX(key[1] - 1, k)), vr(QX(key[0], k)), '0' if k == 0 else d)
    A(f'''s_lshl_b32 s47, s40, 13
s_add_u32 s47, s47, {GMEMB}
att_poll:
buffer_load_dwordx4 {vr(MF_[0])}, v{B0}, s[8:11], s47 offen sc1
buffer_load_dwordx4 {vr(MF_[1])}, v{B0}, s[8:11], s47 offen offset:1024 sc1
s_waitcnt vmcnt(0)
v_max3_u32 v8, v16, v17, v18
v_max3_u32 v8, v8, v19, v20
v_max3_u32 v8, v8, v21, v22
v_max_u32 v8, v8, v23
v_cmp_eq_u32 vcc, -1, v8
s_cbranch_vccz att_ok
s_sleep 1
s_sub_u32 s35, s35, 1
s_cbranch_scc0 att_poll
s_mov_b32 s35, 0
att_ok:
ds_write_b128 v{B0}, {vr(MF_[0])} offset:{L_M}
ds_write_b128 v{B0}, {vr(MF_[1])} offset:{L_M+1024}
s_waitcnt lgkmcnt(0)
s_barrier''')
    A.lds_q = []
    for t in range(8): A.ds(f'ds_read_b128 {vr(MF_[t])}, v{W_L16} offset:{L_M + t*1024}', f'm{t}')
    def SM(acc, t, m, T): A(f'v_smfmac_f32_16x16x64_bf16 {vr(acc)}, {vr(MF_[t])}, {qkv_frag(m,t,T)}, v{IDX}')
    for t in range(8):
        A.wait_lds(f'm{t}')
        SM(AK[0], t, 'k', 0); SM(AK[1], t, 'k', 1)
    fold = [f'v_permlane32_swap_b32 v{AK[0]+r}, v{AK[1]+r}' for r in range(4)] + [f'v_add_f32 v{AK[0]+r}, v{AK[0]+r}, v{AK[1]+r}' for r in range(4)]
    fold += [f'v_cvt_pk_bf16_f32 v8, v{AK[0]}, v{AK[0]+1}', f'v_cvt_pk_bf16_f32 v9, v{AK[0]+2}, v{AK[0]+3}']
    n = 0
    for t in range(8):
        for T in range(2):
            SM(AV[T], t, 'v', T); n += 1
            if 3 <= n <= 7: A(fold[2*(n-3)]); A(fold[2*(n-3)+1])
            if n == 8: A.ds(f'ds_write_b64 v{QW}, v[8:9] offset:{L_K}', 'kw')
            if n == 12:
                A.wait_lds('kw'); A('s_barrier')
            if n >= 13:
                k = n - 13
                for hf in range(2): A.ds(f'ds_read_b64_tr_b16 {vr(KM[k]+2*hf,2)}, v{TRA} offset:{L_K + k*512 + hf*256}', f'km{k}')
    for key in ((0, 1), (1, 2)):
        for r in range(4): A(f'v_cndmask_b32 v{S[key]+r}, v{NEG}, v{S[key]+r}, s[{72+2*r}:{73+2*r}]')
    for k in range(4):
        A.wait_lds(f'km{k}')
        for tt in range(2):
            d = vr(S[(tt, 0)]); MFd(A, d, vr(KM[k]), vr(QX(tt, k)), '0' if k == 0 else d)
    for T in range(2):
        A(f'v_cvt_pk_bf16_f32 v{VM+2*T}, v{AV[T]}, v{AV[T]+1}\nv_cvt_pk_bf16_f32 v{VM+2*T+1}, v{AV[T]+2}, v{AV[T]+3}')
    A(f'''s_lshl_b32 s36, s40, 18
s_lshl_b32 s37, s33, 12
s_add_u32 s36, s36, s37
s_lshl_b32 s37, s32, 10
s_add_u32 s36, s36, s37
s_add_u32 s36, s36, {OFB}
s_add_u32 s37, s36, 0x20000''')
    for tt in range(2):
        regs = [S[k] + r for k in S if k[0] == tt for r in range(4)]
        m = 8 + 2 * tt; t1 = m + 1
        A(f'v_max3_f32 v{m}, v{regs[0]}, v{regs[1]}, v{regs[2]}')
        i = 3
        while i + 1 < len(regs):
            A(f'v_max3_f32 v{m}, v{m}, v{regs[i]}, v{regs[i+1]}'); i += 2
        A(f'''v_max_f32 v{m}, v{m}, v{regs[i]}
v_mov_b32 v{t1}, v{m}
v_permlane32_swap_b32 v{m}, v{t1}
v_max_f32 v{m}, v{m}, v{t1}
v_mov_b32 v{t1}, v{m}
v_permlane16_swap_b32 v{m}, v{t1}
v_max_f32 v{m}, v{m}, v{t1}
v_mul_f32 v{m}, s68, v{m}''')
        for r in regs: A(f'v_fma_f32 v{r}, v{r}, s68, -v{m}')
        for r in regs: A(f'v_exp_f32 v{r}, v{r}')
        for key in S:
            if key[0] != tt: continue
            o = PM[tt] if key[1] == 0 else PB[tt] + 2 * (key[1] - 1)
            A(f'v_cvt_pk_bf16_f32 v{o}, v{S[key]}, v{S[key]+1}\nv_cvt_pk_bf16_f32 v{o+1}, v{S[key]+2}, v{S[key]+3}')
        MFd(A, vr(LS[tt]), vr(ONES), vr(PB[tt]), '0')
        for T in range(2): MFd(A, vr(O(tt, T)), vr(VX[T]), vr(PB[tt]), '0')
        A(f'v_mfma_f32_16x16x16_bf16 {vr(LS[tt])}, {vr(ONE2,2)}, {vr(PM[tt],2)}, {vr(LS[tt])}')
        for T in range(2): A(f'v_mfma_f32_16x16x16_bf16 {vr(O(tt,T))}, {vr(VM+2*T,2)}, {vr(PM[tt],2)}, {vr(O(tt,T))}')
    for tt in range(2):
        A(f'v_rcp_f32 v12, v{LS[tt]}')
        for T in range(2):
            o = O(tt, T)
            for r in range(4): A(f'v_mul_f32 v{o+r}, v{o+r}, v12')
            A(f'v_cvt_pk_bf16_f32 v{OFR[tt]+2*T}, v{o}, v{o+1}\nv_cvt_pk_bf16_f32 v{OFR[tt]+2*T+1}, v{o+2}, v{o+3}')
        A(f'buffer_store_dwordx4 {vr(OFR[tt])}, v{W_L16}, s[8:11], s{36+tt} offen sc1')
    A(f'''s_waitcnt vmcnt(0)
s_barrier
s_cmp_lg_u32 s32, 0
s_cbranch_scc1 att_nf
s_lshl_b32 s36, s40, 7
s_add_u32 s36, s36, {FLAGS+F_O}''')
    atomic_flag(A, 's36', 8)
    A('att_nf:')
    prof(A, 16, 10, 40)
    A(f'''s_add_u32 s40, s40, {stride}
s_cmp_lt_u32 s40, 64
s_cbranch_scc1 att_top''')

def emit_out(A, nsets):
    A('''s_load_dwordx2 s[4:5], s[0:1], 40
s_load_dwordx4 s[20:23], s[0:1], 80
s_load_dwordx2 s[6:7], s[0:1], 0
s_waitcnt lgkmcnt(0)''')
    srd(A, 16, 4, 0x400000)
    srd(A, 24, 22, 0x200000)
    A('s_and_b32 s21, s21, 0xffff\ns_mov_b32 s22, 1409024\ns_mov_b32 s23, 0x20000')
    srd(A, 28, 6, 0x200000)
    A(f'''v_bfe_u32 v21, v{W_LANE}, 1, 4
v_lshlrev_b32 v21, 10, v21
v_lshrrev_b32 v22, 5, v{W_LANE}
v_lshl_add_u32 v21, v22, 5, v21
v_and_b32 v22, 1, v{W_LANE}
v_lshl_add_u32 v{W_VO}, v22, 4, v21
s_lshl_b32 s37, s48, 6
s_lshl_b32 s45, s32, 20
s_add_u32 s45, s45, s37
s_lshl_b32 s46, s32, 15
s_add_u32 s46, s46, s37''')
    def wo(ks, T): return ar(8 * ks + 4 * T)
    def wd(i, T): return vr(168 + 8 * i + 4 * T)
    units = []
    for u in range(6):
        dm = []; de = []
        for mp in range(4):
            i = 2 * u + (mp >> 1); m2 = mp & 1
            dm.append((20, 46, (128 * i + 16 * m2) * 1024))
            de.append([sub(wd(i, T) if i < 11 else vr(32 + 4 * T), 2 * m2, 2) for T in range(2)])
        units.append((dm, de))
    for u in range(16):
        dm = []; de = []
        for mp in range(4):
            ks = 2 * u + (mp >> 1); m2 = mp & 1
            dm.append((16, 45, (32 * ks + 16 * m2) * 1024))
            de.append([sub(wo(ks, T), 2 * m2, 2) for T in range(2)])
        units.append((dm, de))
    load_units(A, units)
    prof(A, 7, 36, dbg=15)
    ACC = [16, 20]; XR = 24; BF = 32; RW = 4; OA = 5
    A(f'''s_lshl_b32 s36, s32, 11
v_add_u32 v{RW}, s36, v{W_L16}
v_and_b32 v21, 15, v{W_LANE}
v_lshlrev_b32 v21, 10, v21
v_lshrrev_b32 v22, 4, v{W_LANE}
v_lshl_add_u32 v21, v22, 3, v21
s_lshl_b32 s36, s48, 6
s_lshl_b32 s37, s32, 5
s_add_u32 s36, s36, s37
v_add_u32 v{OA}, s36, v21
s_lshl_b32 s36, s32, 10
v_add_u32 v6, s36, v{W_L16}
v_mov_b32 v9, 0
out_top:
s_lshr_b32 s41, s40, 1
s_lshl_b32 s42, s41, 7
s_cmp_lg_u32 s32, 0
s_cbranch_scc1 out_h_ok
s_add_u32 s37, s42, {FLAGS+F_H}''')
    wait_cnt(A, 'out_h', 8, 9, 's37', 43, 8, sleep=2)
    A(f'''s_barrier
s_mul_i32 s43, s40, {44*1024}
s_add_u32 s43, s43, {HFB}''')
    for i in range(11):
        A(f's_add_u32 s36, s32, {4*i}\ns_min_u32 s36, s36, 42\ns_lshl_b32 s36, s36, 10\ns_add_u32 s36, s36, s43')
        A(f'buffer_load_dwordx4 {vr(BF+4*i)}, v{W_L16}, s[8:11], s36 offen sc1')
    A(f's_lshl_b32 s44, s40, 14\nbuffer_load_dwordx2 {vr(XR,2)}, v{OA}, s[28:31], s44 offen')
    for i in range(11):
        A(f's_waitcnt vmcnt({11-i})')
        for T in range(2): MFd(A, vr(ACC[T]), wd(i, T), vr(BF + 4 * i), '0' if i == 0 else vr(ACC[T]))
    A(f'''s_cmp_lg_u32 s32, 0
s_cbranch_scc1 out_o_ok
s_add_u32 s37, s42, {FLAGS+F_O}''')
    wait_cnt(A, 'out_o', 8, 9, 's37', 32, 8, sleep=1)
    A(f'''s_barrier
s_lshl_b32 s36, s40, 17
s_lshl_b32 s37, s32, 15
s_add_u32 s36, s36, s37
s_add_u32 s36, s36, {OFB}''')
    for i in range(32):
        A(f'buffer_load_dwordx4 {vr(BF+4*i)}, v{W_L16}, s[8:11], s36 offen offset:{(i&3)*1024} sc1')
        if i & 3 == 3: A('s_add_u32 s36, s36, 4096')
    for i in range(32):
        A(f's_waitcnt vmcnt({31-i})')
        for T in range(2): MFd(A, vr(ACC[T]), wo(i, T), vr(BF + 4 * i), vr(ACC[T]))
    A(f'''ds_write_b128 v{RW}, {vr(ACC[0])}
ds_write_b128 v{RW}, {vr(ACC[1])} offset:1024
s_waitcnt lgkmcnt(0)
s_barrier
s_cmp_ge_u32 s32, 2
s_cbranch_scc1 out_next''')
    for w in range(4): A(f'ds_read_b128 {vr(BF+4*w)}, v6 offset:{w*2048}')
    A(f'''v_lshlrev_b32 v26, 16, v{XR}
v_and_b32 v27, 0xffff0000, v{XR}
v_lshlrev_b32 v28, 16, v{XR+1}
v_and_b32 v29, 0xffff0000, v{XR+1}
s_waitcnt lgkmcnt(0)''')
    for r in range(4):
        A(f'v_add_f32 v{BF+r}, v{BF+r}, v{BF+4+r}\nv_add_f32 v{BF+8+r}, v{BF+8+r}, v{BF+12+r}')
    for r in range(4):
        A(f'v_add_f32 v{BF+r}, v{BF+r}, v{BF+8+r}\nv_add_f32 v{BF+r}, v{BF+r}, v{26+r}')
    A(f'''v_cvt_pk_bf16_f32 v30, v{BF}, v{BF+1}
v_cvt_pk_bf16_f32 v31, v{BF+2}, v{BF+3}
buffer_store_dwordx2 v[30:31], v{OA}, s[24:27], s44 offen
out_next:''')
    prof(A, 16, 10, 41)
    A(f'''s_add_u32 s40, s40, {nsets}
s_cmp_lt_u32 s40, 128
s_cbranch_scc1 out_top''')

NAME = 'parallel_sum__memory_aug_recurrent_mem_tr__geglu_ffn__prompt_kernel'

def gen_full(profile=False, warm=1, **ckw):
    PROF['on'] = profile
    A = Asm()
    A.raw(f'; @launch kernel={NAME} grid=(256,1,1) block=(256,1,1) lds=163840')
    A.raw('.amdgcn_target "amdgcn-amd-amdhsa--gfx950"')
    A.raw(f'.text\n.globl {NAME}\n.p2align 8\n.type {NAME},@function')
    A.label(NAME)
    A('s_cmp_ge_u32 s2, 256\ns_cbranch_scc1 L_end')
    common_entry(A)
    A('''s_lshl_b32 s36, s3, 2
v_mov_b32 v3, s36
v_mov_b32 v4, 1
v_mov_b32 v5, 0
s_cmp_lg_u32 s32, 0
s_cbranch_scc1 L_noticket
s_mov_b64 exec, 1
buffer_atomic_add v4, v3, s[12:15], 0 offen sc0 sc1
s_waitcnt vmcnt(0)
ds_write_b32 v5, v4
s_waitcnt lgkmcnt(0)
s_mov_b64 exec, -1
L_noticket:
s_barrier
ds_read_b32 v4, v5
s_waitcnt lgkmcnt(0)
v_readfirstlane_b32 s33, v4
s_barrier
s_cmp_ge_u32 s33, 32
s_cbranch_scc1 L_end
s_cmp_ge_u32 s3, 8
s_cbranch_scc1 L_end
s_lshl_b32 s91, s3, 5
s_add_u32 s91, s91, s33
s_lshl_b32 s91, s91, 9
s_add_u32 s91, s91, 0x6000000''')
    prof(A, 0, 36, dbg=8)
    A('''s_cmp_lg_u32 s3, 0
s_cbranch_scc1 L_worker''')
    emit_chain(A, gate=True, **ckw)
    A('s_endpgm\nL_worker:')
    worker_setup(A)
    A('''s_sub_u32 s88, s3, 1
s_lshl_b32 s88, s88, 5
s_add_u32 s88, s88, s33          ; wi
s_mul_i32 s33, s88, 9363
s_lshr_b32 s33, s33, 16          ; h = wi/7
s_mul_i32 s36, s33, 7
s_sub_u32 s89, s88, s36          ; r = wi%7
s_cmp_lg_u32 s88, 0
s_cbranch_scc1 L_noinit''')
    emit_init(A)
    A('L_noinit:')
    if warm:
        A('s_cmp_ge_u32 s89, 5\ns_cbranch_scc1 L_ln')
        emit_warm(A, '' if warm == 2 else 'nt')
        A('s_branch L_noln\nL_ln:')
    A('''s_cmp_lt_u32 s89, 5
s_cbranch_scc1 L_noln
s_lshl_b32 s90, s33, 1
s_add_u32 s90, s90, s89
s_sub_u32 s90, s90, 5''')
    emit_ln(A, 90)
    A('L_noln:\ns_mov_b32 s40, s89')
    prof(A, 1, 36)
    emit_qkv(A)
    A('''s_cmp_lt_u32 s89, 5
s_cbranch_scc1 L_gu
s_sub_u32 s40, s89, 5''')
    emit_att(A, 2)
    A('''s_endpgm
L_gu:
s_mul_i32 s90, s33, 5
s_add_u32 s90, s90, s89          ; oi
s_cmp_ge_u32 s90, 154
s_cbranch_scc1 L_out
s_mul_i32 s40, s90, 5958
s_lshr_b32 s40, s40, 16
s_mul_i32 s36, s40, 11
s_sub_u32 s48, s90, s36''')
    emit_gu(A, 14)
    A('''L_out:
s_lshr_b32 s40, s90, 4
s_and_b32 s48, s90, 15''')
    emit_out(A, 10)
    if PROF['on'] == 'dbg': prof(A, 0, 36, dbg=12)
    A('L_end:\ns_endpgm')
    A.raw('.section .rodata,"a"\n.p2align 6')
    A.raw(kd(NAME))
    return A.text()

if __name__ == '__main__':
    assert all((w * 9363) >> 16 == w // 7 for w in range(224)) and all((w * 5958) >> 16 == w // 11 for w in range(160))
    hdr = open('parallel_sum__memory_aug_recurrent_mem_tr__geglu_ffn__prompt.s.ref').read().split('; Override')[0]
    kw = dict(dB0=40, dB1=16, dA=16, b3k=1, kfs=5)
    open('full.s', 'w').write(hdr + gen_full(**kw))
    open('diag.s', 'w').write(hdr + gen_full(profile='dbg', **kw))
    open('diag2.s', 'w').write(hdr + gen_full(profile='dbg', warm=2, **kw))
    open('full_prof.s', 'w').write(hdr + gen_full(profile=True, **kw))
```

```python
import sys, math, struct
sys.path.insert(0, 'dev')
from asmlib import Asm

FLAGS = 0x0000000
MEMB  = 0x0070000
PARTB = 0x0100000
GMEMB = 0x0080000
XFB   = 0x0200000
QFB   = 0x1000000
KVB   = 0x2000000
OFB   = 0x4000000
HFB   = 0x5000000
WS_BYTES = 0x10000000
DBG_TICKET = 0
DBG_CHAINCNT = 192
DBG_GATE = 64
DBG_CTICKET = 128
F_XN = 0x2000; F_H = 0x4000; F_O = 0x6000

def f32bits(x): return struct.unpack('<I', struct.pack('<f', x))[0]

def vr(b, n=4): return f'v[{b}:{b+n-1}]'

def srd(A, s, ptr_lo, nbytes):
    A(f'''s_mov_b32 s{s}, s{ptr_lo}
s_and_b32 s{s+1}, s{ptr_lo+1}, 0xffff
s_mov_b32 s{s+2}, {nbytes}
s_mov_b32 s{s+3}, 0x20000''')

PROFB = 0x6000000
PROF = {'on': False, 'n': 0}
def prof(A, idx, vt=None, sidx=None, cyc=False, dbg=None):
    if PROF['on'] == 'dbg':
        if dbg is None: return
        PROF['n'] += 1; l = f"prof_{PROF['n']}"
        A(f'''s_cmp_lg_u32 s32, 0
s_cbranch_scc1 {l}
s_memrealtime s[92:93]
s_waitcnt lgkmcnt(0)
s_and_b32 s92, s92, 0x3fffffff
{"s_not_b32 s92, s92" if dbg == 8 else ""}
s_mov_b64 exec, 1
v_mov_b32 v{vt}, s92
v_mov_b32 v{vt+1}, {dbg*4}
buffer_atomic_umax v{vt}, v{vt+1}, s[12:15], 0 offen sc1
s_mov_b64 exec, -1
{l}:''')
        return
    if not PROF['on']: return
    PROF['n'] += 1; l = f"prof_{PROF['n']}"
    A(f'''s_cmp_lg_u32 s32, 0
s_cbranch_scc1 {l}
s_memrealtime s[92:93]
s_memtime s[100:101]
s_waitcnt lgkmcnt(0)
{"s_bitcmp1_b32 s33, 0" + chr(10) + "s_cselect_b32 s92, s100, s92" if cyc else ""}
s_mov_b64 exec, 1
v_mov_b32 v{vt}, s92
v_mov_b32 v{vt+1}, 0''')
    if sidx is None: A(f's_add_u32 s94, s91, {idx*4}')
    else: A(f's_lshl_b32 s94, s{sidx}, 2\ns_add_u32 s94, s94, s91\ns_add_u32 s94, s94, {idx*4}')
    A(f'''buffer_store_dword v{vt}, v{vt+1}, s[8:11], s94 offen
s_mov_b64 exec, -1
{l}:''')

def wait_cnt(A, lbl, srdn, voff, soff, target, vt, sleep=0):
    A(f'''{lbl}:
buffer_load_dword v{vt}, v{voff}, s[{srdn}:{srdn+3}], {soff} offen sc1
s_waitcnt vmcnt(0)
v_readfirstlane_b32 s36, v{vt}
s_cmp_ge_u32 s36, {target}
s_cbranch_scc1 {lbl}_ok
{f"s_sleep {sleep}" if sleep else ""}
s_sub_u32 s35, s35, 1
s_cbranch_scc0 {lbl}
s_mov_b32 s35, 0
{lbl}_ok:''')

def wait_dbg(A, lbl, off, target, vt, va):
    A(f'v_mov_b32 v{va}, {off}')
    wait_cnt(A, lbl, 12, va, 0, target, vt, sleep=2)

L_MEM = 0; L_OQK = 8192; L_KV = 16384; L_W = 49152; L_WSZ = 28672
V_L16, V_IDX, V_PST, V_SELV, V_MST, V_QW, V_TR, V_B0, V_B1, V_B2, V_B3, V_WV = range(12)
T0, T1, T2, T3 = 12, 13, 14, 15
M = [16, 20, 24, 36, 28, 40, 32, 44]
AQ0, AQ1, AK0, AK1, AV0, AV1 = 48, 52, 56, 60, 64, 68
P = [72 + 8 * i for i in range(5)]
VB = [V_B0, V_B1, V_B2, V_B3]


def chain_frag_map():
    units = [(m, t) for m in 'qkv' for t in range(8)] + [('o', k, u) for k in range(4) for u in range(2)]
    backed = [('q', 0), ('k', 0), ('v', 0), ('q', 1), ('k', 1), ('o', 2, 1), ('o', 3, 1)]
    res = [u for u in units if u not in backed]
    order = [('o', k, u) for k in range(4) for u in range(2)] + [(m, t) for m in 'vkq' for t in (4, 6, 5, 7, 1, 3, 0, 2)]
    loc = {}
    regs = [f'a[{8*i}:{8*i+7}]' for i in range(32)] + [f'v[{112+8*i}:{112+8*i+7}]' for i in range(18)]
    k = 0
    for u in res:
        for T in range(2):
            loc[u + (T,)] = ('reg', regs[k]); k += 1
    assert k == 50
    for i, u in enumerate(backed):
        for T in range(2):
            loc[u + (T,)] = ('lds', i, T)
    return loc, order

def sub(reg, lo, n):
    c = reg[0]; b = int(reg[2:reg.index(':')])
    return f'{c}[{b+lo}:{b+lo+n-1}]'

def emit_chain(A, sc='', tag='c', nsteps=63, gate=False, stamps=False, dB0=0, dB1=0, dA=0, nokv=0, nocomm=0, stsel=None, abl=(),
               prepos=14, depth=5, early1=1, nB=2, gB=0, dmapos=(0, 3, 6, 9), respos=(20, 25), reppos=17, b1pos=4, pf='sc1', dm='sc1', b3k=2, kfs=8, b2pos=42):
    loc, order = chain_frag_map()
    sc = (' ' + sc) if sc else ''
    A(f"""
s_load_dwordx4 s[16:19], s[0:1], 16
s_load_dwordx4 s[24:27], s[0:1], 32
s_load_dwordx2 s[4:5], s[0:1], 8
v_and_b32 v20, 63, v0                 ; lane
v_lshlrev_b32 v{V_L16}, 4, v20
s_mul_i32 s52, s32, {L_WSZ}
s_add_u32 s52, s52, {L_W}
s_mul_i32 s53, s32, 12288
v_bfe_u32 v21, v20, 4, 1               ; g>>1
v_bfe_u32 v22, v20, 3, 1               ; g&1
v_bfe_u32 v23, v20, 2, 1               ; R>>1
v_bfe_u32 v24, v20, 1, 1               ; R&1
v_and_b32 v25, 1, v20                  ; p
v_lshrrev_b32 v26, 5, v20              ; T
v_lshlrev_b32 v27, 3, v21
v_lshl_add_u32 v27, v22, 1, v27
v_lshl_add_u32 v27, v23, 2, v27
v_lshl_add_u32 v27, v24, 5, v27
v_lshlrev_b32 v27, 13, v27
v_lshl_add_u32 v27, v26, 5, v27
v_lshl_add_u32 v32, v25, 4, v27
v_lshlrev_b32 v27, 4, v22
v_lshl_add_u32 v27, v21, 2, v27
v_add_u32 v27, v27, v24
v_lshlrev_b32 v27, 10, v27
v_lshl_add_u32 v27, v26, 6, v27
v_lshl_add_u32 v27, v23, 5, v27
v_lshl_add_u32 v33, v25, 4, v27
v_lshlrev_b32 v27, 3, v20
v_add_u32 v34, s52, v27
v_add_u32 v35, s53, v27
s_lshl_b32 s36, s33, 8
s_lshl_b32 s37, s32, 6
s_add_u32 s36, s36, s37                ; h*256+w*64
s_lshl_b32 s37, s32, 1
""")
    for tau in range(8):
        A(f's_xor_b32 s38, s37, {tau}\ns_lshl_b32 s38, s38, 19\ns_add_u32 s{40+tau}, s38, s36')
    A('s_lshl_b32 s36, s33, 17\ns_lshl_b32 s37, s32, 8\ns_add_u32 s36, s36, s37')
    for k in range(4):
        A(f's_xor_b32 s38, s32, {k}\ns_lshl_b32 s38, s38, 15\ns_add_u32 s{48+k}, s38, s36')
    A(f"""
s_lshr_b32 s36, s33, 3
s_lshl_b32 s36, s36, 4
s_and_b32 s37, s32, 1
s_lshl_b32 s37, s37, 3
s_add_u32 s36, s36, s37
s_and_b32 s39, s33, 7
s_add_u32 s37, s36, s39
s_lshl_b32 s61, s37, 7                 ; Gm*128
v_lshrrev_b32 v21, 4, v20
v_bfe_u32 v22, v20, 2, 1
v_lshl_add_u32 v21, v21, 1, v22
v_lshlrev_b32 v23, 4, v21
v_and_b32 v22, 3, v20
v_lshl_add_u32 v23, v22, 2, v23
v_add_u32 v{V_MST}, s61, v23
v_lshlrev_b32 v24, 10, v21
v_lshl_add_u32 v24, v22, 1, v24
s_lshl_b32 s36, s36, 4
s_lshl_b32 s39, s39, 3
s_add_u32 s39, s36, s39
s_waitcnt lgkmcnt(0)
s_mov_b32 s20, s18
s_and_b32 s21, s19, 0xffff
s_mov_b32 s22, 0x400000
s_mov_b32 s23, 0x20000
s_and_b32 s17, s17, 0xffff
s_mov_b32 s18, 0x400000
s_mov_b32 s19, 0x20000
s_mov_b32 s28, s26
s_and_b32 s29, s27, 0xffff
s_mov_b32 s30, 0x400000
s_mov_b32 s31, 0x20000
s_and_b32 s25, s25, 0xffff
s_mov_b32 s26, 0x400000
s_mov_b32 s27, 0x20000
""")
    srd(A, 84, 4, 8192)
    A('buffer_load_ushort v38, v24, s[84:87], s39 offen\nbuffer_load_ushort v39, v24, s[84:87], s39 offen offset:64')
    NU = len(order)
    fin = {n: loc[order[n] + (0,)][1] for n in range(NU) if loc[order[n] + (0,)][0] == 'lds'}
    slot_of = {}; issue_at = {}; busy = {}; state = {'nxt': 0}
    def try_issue(now):
        while state['nxt'] < NU and state['nxt'] - now <= depth:
            nxt = state['nxt']
            if nxt in fin: cand = [fin[nxt]] if fin[nxt] not in busy else []
            else:
                soon = {fin[m] for m in fin if nxt < m <= nxt + depth + 1}
                cand = [s_ for s_ in (7, 8, 9, 0, 1, 2, 3, 4, 5, 6) if s_ not in busy and s_ not in soon]
            if not cand: break
            busy[cand[0]] = nxt; slot_of[nxt] = cand[0]; issue_at[nxt] = now; state['nxt'] += 1
    try_issue(-1)
    for n in range(NU):
        if n >= 1 and (n - 1) not in fin: del busy[slot_of[n - 1]]
        try_issue(n)
        assert n + 1 >= NU or (n + 1) in slot_of, n
    def issue(n):
        u = order[n]; sl = slot_of[n]
        for mp in range(4):
            if sl < 7: A(f's_add_u32 m0, s52, {sl*4096 + mp*1024}')
            else: A(f's_add_u32 m0, s53, {(sl-7)*4096 + mp*1024}')
            if u[0] == 'o':
                A(f's_add_u32 s38, s{48+u[1]}, {(8*(mp>>1)+2*(mp&1))*1024 + 128*u[2]}')
                A('buffer_load_dwordx4 v33, s[28:31], s38 offen lds')
            else:
                base = {'q': 16, 'k': 20, 'v': 24}[u[0]]
                A(f's_add_u32 s38, s{40+u[1]}, {(16*(mp>>1)+(mp&1))*8192}')
                A(f'buffer_load_dwordx4 v32, s[{base}:{base+3}], s38 offen lds')
    npre = 0
    for m in range(NU):
        if issue_at[m] == -1: issue(m); npre += 4
    A(f"""
s_mov_b32 s35, 4000000
s_lshl_b32 s36, s32, 11                ; w*2048
v_add_u32 v{V_B0}, s36, v{V_L16}
v_xor_b32 v{V_B1}, 2048, v{V_B0}
v_xor_b32 v{V_B2}, 4096, v{V_B0}
v_xor_b32 v{V_B3}, 6144, v{V_B0}
s_add_u32 s54, s36, {MEMB}             ; sMemRd
s_mov_b32 s55, {MEMB + 8192}           ; sMemWr
s_mov_b32 s56, {GMEMB}
v_add_u32 v{V_WV}, s52, v{V_L16}
v_and_b32 v21, 8, v20
v_cmp_eq_u32 vcc, 0, v21
v_mov_b32 v22, 0xeeee
v_mov_b32 v23, 0x4444
v_cndmask_b32 v{V_IDX}, v22, v23, vcc
s_mov_b32 s80, 0x00ff00ff
s_mov_b32 s81, 0x00ff00ff
v_lshrrev_b32 v21, 5, v20
v_bfe_u32 v22, v20, 2, 2
v_lshl_add_u32 v21, v21, 2, v22
v_lshlrev_b32 v21, 12, v21
v_bfe_u32 v22, v20, 4, 1
v_lshl_add_u32 v21, v22, 6, v21
v_and_b32 v22, 3, v20
v_lshl_add_u32 v21, v22, 4, v21
s_lshl_b32 s36, s32, 15
s_lshl_b32 s37, s33, 7
s_add_u32 s36, s36, s37
v_add_u32 v{V_PST}, s36, v21
s_mov_b32 s60, 0                       ; part slot offset
s_mov_b32 s58, {PARTB}
s_mov_b32 s59, {PARTB + 0x20000}
; reducer G = 32*(w&1)+h
s_and_b32 s36, s32, 1
s_lshl_b32 s36, s36, 5
s_add_u32 s36, s36, s33
s_lshl_b32 s37, s36, 12
s_add_u32 s62, s37, {PARTB}
s_mov_b32 s63, s62
; reset region: G2=32*(w>>1)+h, half (w&1)
s_lshr_b32 s38, s32, 1
s_lshl_b32 s38, s38, 5
s_add_u32 s38, s38, s33
s_lshl_b32 s38, s38, 12
s_and_b32 s39, s32, 1
s_lshl_b32 s39, s39, 11
s_add_u32 s38, s38, s39
s_add_u32 s65, s38, {PARTB}
s_lshl_b32 s38, s32, 12
s_add_u32 s66, s38, {L_KV}
s_add_u32 s67, s38, {L_KV + 16384}
s_lshl_b32 s39, s33, 20
s_add_u32 s38, s38, s39
s_add_u32 s57, s38, {KVB}
s_mov_b32 s68, {f32bits(128 ** -0.5 * math.log2(math.e))}
v_lshrrev_b32 v21, 5, v20
v_and_b32 v22, 15, v20
v_lshl_add_u32 v21, v21, 4, v22
v_lshlrev_b32 v21, 4, v21
v_bfe_u32 v22, v20, 4, 1
v_lshl_add_u32 v21, v22, 3, v21
s_lshl_b32 s38, s32, 11
v_add_u32 v{V_QW}, s38, v21
v_lshrrev_b32 v21, 2, v20
v_lshlrev_b32 v21, 4, v21
v_and_b32 v22, 1, v20
v_lshl_add_u32 v{V_TR}, v22, 3, v21
; selector value and masks: i=l&15 ; val=(i&3)==0?0x3f80:(i&3)==1?0x3f800000:0 ; mask q: (i>>2)==q
v_and_b32 v21, 3, v20
v_mov_b32 v22, 0
v_mov_b32 v23, 0x3f80
v_cmp_eq_u32 vcc, 0, v21
v_cndmask_b32 v22, v22, v23, vcc
v_mov_b32 v23, 0x3f800000
v_cmp_eq_u32 vcc, 1, v21
v_cndmask_b32 v{V_SELV}, v22, v23, vcc
s_mov_b32 s72, 0x000f000f
s_mov_b32 s73, 0x000f000f
s_mov_b32 s74, 0x00f000f0
s_mov_b32 s75, 0x00f000f0
s_mov_b32 s76, 0x0f000f00
s_mov_b32 s77, 0x0f000f00
s_mov_b32 s78, 0xf000f000
s_mov_b32 s79, 0xf000f000
s_mov_b32 s82, -1
s_mov_b32 s83, 0
s_waitcnt vmcnt({npre})
v_lshl_or_b32 v{T3}, v39, 16, v38
v_mov_b32 v28, -1
v_mov_b32 v29, -1
v_mov_b32 v30, -1
v_mov_b32 v31, -1
buffer_store_dwordx4 v[28:31], v{V_L16}, s[8:11], s65 offen{sc}
buffer_store_dwordx4 v[28:31], v{V_L16}, s[8:11], s65 offen offset:1024{sc}
s_add_u32 s64, s65, 0x40000
buffer_store_dwordx4 v[28:31], v{V_L16}, s[8:11], s64 offen{sc}
buffer_store_dwordx4 v[28:31], v{V_L16}, s[8:11], s64 offen offset:1024{sc}
s_add_u32 s64, s65, 0x80000
buffer_store_dwordx4 v[28:31], v{V_L16}, s[8:11], s64 offen{sc}
buffer_store_dwordx4 v[28:31], v{V_L16}, s[8:11], s64 offen offset:1024{sc}
s_add_u32 s64, s65, 0xc0000
v_lshrrev_b32 v21, 3, v20
v_lshlrev_b32 v21, 13, v21
v_and_b32 v22, 7, v20
v_lshl_add_u32 v21, v22, 4, v21
v_add_u32 v21, s61, v21
s_cmp_ge_u32 s32, 2
s_cbranch_scc1 {tag}_init_g
s_mov_b32 s38, {MEMB}
s_mov_b64 exec, 0xffffff00
buffer_store_dwordx4 v[28:31], v21, s[8:11], s38 offen{sc}
s_mov_b64 exec, s[80:81]
buffer_store_dword v{T3}, v{V_MST}, s[8:11], s38 offen{sc}
s_mov_b64 exec, -1
s_branch {tag}_init_done
{tag}_init_g:""")
    for i in range(8):
        A(f's_mov_b32 s38, {GMEMB + i * 65536}\nbuffer_store_dwordx4 v[28:31], v21, s[8:11], s38 offen sc1')
    A(f'{tag}_init_done:')
    for n in range(NU):
        u = order[n]; sl = slot_of[n]
        later = sum(1 for m in range(n + 1, NU) if issue_at[m] < n)
        A(f's_waitcnt vmcnt({0 if n == 0 else 4*later})')
        if n == 0:
            A(f"""s_mov_b64 exec, 1
v_mov_b32 v36, 1
v_mov_b32 v37, {DBG_CHAINCNT}
buffer_atomic_add v36, v37, s[12:15], 0 offen sc1
s_mov_b64 exec, -1""")
        av = 34 if sl < 7 else 35
        off = (sl if sl < 7 else sl - 7) * 4096
        for T in range(2):
            l = loc[u + (T,)]
            dst = l[1] if l[0] == 'reg' else f'v[{40+8*T}:{47+8*T}]'
            for mp in range(4):
                A(f'ds_read_b64_tr_b16 {sub(dst, 2*mp, 2)}, v{av} offset:{off + mp*1024 + T*512}')
        if n == NU - 10:
            A(f'v_mov_b32 v56, {DBG_CHAINCNT}\nv_mov_b32 v57, {DBG_GATE}')
            A('buffer_load_dword v58, v56, s[12:15], 0 offen sc1\nbuffer_load_dword v59, v57, s[12:15], 0 offen sc1')
        if n == NU - 3:
            assert issue_at[n] >= NU - 10
            A(f'''v_readfirstlane_b32 s4, v58
v_readfirstlane_b32 s5, v59
v_lshrrev_b32 v56, 2, v{V_L16}
s_lshl_b32 s37, s33, 8
buffer_load_dword v57, v56, s[8:11], s37 offen sc1''')
        todo = [m for m in range(NU) if issue_at[m] == n]
        if todo:
            A('s_waitcnt lgkmcnt(8)')
            for m in todo: issue(m)
        if n in fin:
            A('s_waitcnt lgkmcnt(0)')
            for T in range(2):
                for hf in range(2):
                    A(f'ds_write_b128 v{V_WV}, {vr(40+8*T+4*hf)} offset:{sl*4096 + T*2048 + hf*1024}')
            A('s_waitcnt lgkmcnt(0)')
    A('s_waitcnt lgkmcnt(0)\ns_barrier')
    prof(A, 1, 36, dbg=9)
    A(f"""s_waitcnt vmcnt(0)
v_cmp_le_u32 s[70:71], 4, v57
s_cmp_ge_u32 s4, 128
s_cbranch_scc1 {tag}_wreg_ok""")
    wait_dbg(A, f'{tag}_wreg', DBG_CHAINCNT, 128, 36, 37)
    if gate:
        A(f's_cmp_ge_u32 s5, 4\ns_cbranch_scc1 {tag}_wgate_ok\ns_mov_b64 s[70:71], 0')
        wait_dbg(A, f'{tag}_wgate', DBG_GATE, 4, 36, 37)
    A('s_mov_b32 s86, 0x3f803f80\ns_mov_b32 s87, 0x3f803f80\ns_mov_b32 s34, 0')
    poolmap = {('q', 0, 0): AK0, ('q', 0, 1): AV0, ('k', 0, 0): M[2], ('k', 0, 1): M[6], ('v', 0, 0): M[5], ('v', 0, 1): P[0],
               ('q', 1, 0): P[1], ('q', 1, 1): P[2], ('k', 1, 0): P[3], ('k', 1, 1): P[4],
               ('o', 2, 1, 0): P[0], ('o', 2, 1, 1): P[1], ('o', 3, 1, 0): P[2], ('o', 3, 1, 1): P[3]}
    def plh(f, hf, tg):
        l = loc[f]
        A.ds(f'ds_read_b128 {vr(poolmap[f] + 4*hf)}, v{V_WV} offset:{l[1]*4096 + l[2]*2048 + hf*1024}', tg)
    def pool_load(f, tg): plh(f, 0, tg); plh(f, 1, tg)
    def kv_ready(lbl):
        A(f's_bitcmp1_b64 s[70:71], s36\ns_cbranch_scc0 {lbl}_slow\n{lbl}_ok:')
    def kv_slow(lbl):
        A(f"""{lbl}_slow:
v_lshrrev_b32 v{T0}, 2, v{V_L16}
s_lshl_b32 s37, s33, 8
buffer_load_dword v{T1}, v{T0}, s[8:11], s37 offen sc1
s_waitcnt vmcnt(0)
v_cmp_le_u32 s[70:71], 4, v{T1}
s_nop 1
s_bitcmp1_b64 s[70:71], s36
s_cbranch_scc1 {lbl}_ok
s_sub_u32 s35, s35, 1
s_cbranch_scc0 {lbl}_slow
s_mov_b32 s35, 0
s_branch {lbl}_ok""")
    def prep_a(mid=None):
        fr = [('v', 0, 1), ('q', 1, 0), ('q', 1, 1), ('k', 1, 0), ('k', 1, 1), ('k', 0, 0), ('k', 0, 1), ('q', 0, 0), ('q', 0, 1)]
        for i, f in enumerate(fr):
            pool_load(f, 'pi')
            if mid and i in mid: mid[i]()
    def prep_b():
        pool_load(('v', 0, 0), 'pi')
    def zq():
        for r in range(AQ0, AQ1 + 4, 2): A(f'v_mov_b64 v[{r}:{r+1}], 0')
    def delay(n):
        while n > 0:
            k = min(n, 16); A(f's_nop {k-1}'); n -= k
    prof(A, 2, 36)
    if PROF['on'] is True: A('s_memtime s[96:97]')
    slow = []
    for i in range(3):
        A(f's_mov_b32 s36, {i}'); kv_ready(f'{tag}_kv{i}'); slow.append(f'{tag}_kv{i}')
    A('s_mov_b32 m0, s66')
    for i in range(4): A(f'buffer_load_dwordx4 v{V_L16}, s[8:11], s57 offen offset:{i*1024} sc1 lds')
    A('s_add_u32 s57, s57, 16384')
    prep_a()
    A.wait_lds_all()
    if PROF['on'] == 'dbg': prof(A, 0, T0, dbg=10)
    acc = {('q', 0): AQ0, ('q', 1): AQ1, ('k', 0): AK0, ('k', 1): AK1, ('v', 0): AV0, ('v', 1): AV1}
    def wreg(frag):
        l = loc[frag]
        return l[1] if l[0] == 'reg' else vr(poolmap[frag], 8)
    def SM(m, tau, T): A(f'v_smfmac_f32_16x16x64_bf16 {vr(acc[(m,T)])}, {vr(M[tau])}, {wreg((m,tau,T))}, v{V_IDX}')
    STP = [40,42,44,46,48,50,52,84,98,88,90,92,94,100]
    cur = {'par': 0}
    def stamp(i):
        if stamps == 'rt':
            if (cur['par'] == 1 and i >= 9) or (cur['par'] == 0 and i <= 2): A(f's_memrealtime s[{STP[i]}:{STP[i]+1}]')
        elif stamps and cur['par'] == 0 and (stsel is None or i in stsel): A(f's_memtime s[{STP[i]}:{STP[i]+1}]')
    def wrap(r): return f's_bitset0_b32 {r}, 15\n'
    retry = {}; lates = []
    def step(par):
        t = f'{tag}{par}'
        KOFF = L_KV + par * 16384; VOFF = KOFF + 8192
        A(f'{t}_top:')
        cur['par'] = par
        stamp(0)
        def ldA():
            for u in range(2): A(f'buffer_load_dwordx4 {vr(M[u])}, v{V_L16}, s[8:11], s54 offen offset:{u*1024} sc1')
        retry[f'{t}A'] = ldA
        A(f's_mov_b32 m0, s{66+(par^1)}')
        if nocomm:
            prep_b(); zq(); A(f's_waitcnt lgkmcnt(0)\ns_branch {t}_okA')
        ldA()
        prep_b()
        A(f"""{t}_chkA:
s_waitcnt vmcnt(1)
ds_write_b128 v{V_B0}, {vr(M[0])} offset:{L_MEM}
s_waitcnt vmcnt(0)
ds_write_b128 v{V_B0}, {vr(M[1])} offset:{L_MEM+1024}
v_max3_u32 v{T0}, v{M[0]}, v{M[0]+1}, v{M[0]+2}
v_max3_u32 v{T1}, v{M[0]+3}, v{M[1]}, v{M[1]+1}
v_max3_u32 v{T0}, v{T0}, v{M[1]+2}, v{M[1]+3}
v_mov_b64 v[{AQ0}:{AQ0+1}], 0
v_max_u32 v{T0}, v{T0}, v{T1}
v_mov_b64 v[{AQ0+2}:{AQ0+3}], 0
v_cmp_eq_u32 vcc, -1, v{T0}
v_mov_b64 v[{AQ1}:{AQ1+1}], 0
v_mov_b64 v[{AQ1+2}:{AQ1+3}], 0
s_cbranch_vccnz {t}_reA
{t}_okA:
s_waitcnt lgkmcnt(2)""")
        A.lds_q = []
        stamp(1)
        KX = {(tt, k): P[k] + 4 * (tt - 1) for tt in (1, 2) for k in range(4)}
        QF = [AQ0, AQ1, M[0], M[1]]
        KM = [M[2], M[4], M[6], M[3]]
        VX = [P[4], P[4] + 4]
        def ldM(tau): A.ds(f'ds_read_b128 {vr(M[tau])}, v{VB[tau>>1]} offset:{L_MEM + (tau&1)*1024}', f'm{tau}')
        def ldKX(tt, k): A.ds(f'ds_read_b128 {vr(KX[(tt,k)])}, v{V_L16} offset:{KOFF + (tt-1)*4096 + k*1024}', 'kx')
        def ldVX(T): A.ds(f'ds_read_b128 {vr(VX[T])}, v{V_B0} offset:{VOFF + T*1024}', 'kx')
        def ldQF(k):
            for hf in range(2): A.ds(f'ds_read_b64_tr_b16 {vr(QF[k]+2*hf,2)}, v{V_TR} offset:{L_OQK + k*2048 + 1024 + hf*256}', f'qf{k}')
        def ldKM(k):
            for hf in range(2): A.ds(f'ds_read_b64_tr_b16 {vr(KM[k]+2*hf,2)}, v{V_TR} offset:{L_OQK + k*2048 + 1536 + hf*256}', f'km{k}')
        def fold(a0, a1, t0):
            ops = []
            for r in range(4): ops.append(f'v_permlane32_swap_b32 v{a0+r}, v{a1+r}')
            for r in range(4): ops.append(f'v_add_f32 v{a0+r}, v{a0+r}, v{a1+r}')
            ops.append(f'v_cvt_pk_bf16_f32 v{t0}, v{a0}, v{a0+1}')
            ops.append(f'v_cvt_pk_bf16_f32 v{t0+1}, v{a0+2}, v{a0+3}')
            return ops
        two = lambda m, tau: [(m, tau, 0), (m, tau, 1)]
        sms = []
        for tau in (0, 1): sms += two('q', tau) + two('k', tau) + two('v', tau)
        for m in 'qkv':
            for tau in (2, 4, 6, 3, 5, 7): sms += two(m, tau)
        assert len(sms) == 48 and len(set(sms)) == 48
        pre = {i: [] for i in range(48)}; post = {i: [] for i in range(48)}
        for i, r in enumerate((AK0, AK1, AV0, AV1)):
            post[i].append(lambda r=r: A(f'v_mov_b64 v[{r}:{r+1}], 0\nv_mov_b64 v[{r+2}:{r+3}], 0'))
        def b1():
            A('s_waitcnt lgkmcnt(0)\ns_barrier')
            stamp(2)
        post[b1pos].append(b1)
        for i, tau in enumerate((2, 4, 6, 3, 5, 7)): post[b1pos + i].append(lambda tau=tau: ldM(tau))
        pre[12].append(lambda: A.wait_lds('m4')); pre[16].append(lambda: A.wait_lds('m7'))
        kxs = [(tt, k) for k in range(4) for tt in (1, 2)]
        for i, pos in enumerate([11, 12, 13, 15, 16, 18, 19, 21]): post[pos].append(lambda i=i: ldKX(*kxs[i]))
        post[22].append(lambda: ldVX(0)); post[23].append(lambda: ldVX(1))
        def rep():
            A(f"""s_cbranch_scc1 {t}_norep
s_mov_b64 exec, s[80:81]
buffer_store_dword v{T3}, v{V_MST}, s[8:11], s56 offen sc1
s_mov_b64 exec, -1
{t}_norep:""")
        for i, pos in enumerate(dmapos): post[pos].append(lambda i=i: A(f'buffer_load_dwordx4 v{V_L16}, s[8:11], s57 offen offset:{i*1024} {dm} lds'))
        if pf is not None:
            post[prepos - 1].append(lambda: A(f'v_lshlrev_b32 v{T1}, 2, v{V_L16}\ns_add_u32 s36, s57, 16384'))
            post[prepos].append(lambda: A(f'buffer_load_dword v{T2}, v{T1}, s[8:11], s36 offen {pf}'))
        post[reppos - 1].append(lambda: A('s_cmp_ge_u32 s32, 2'))
        post[reppos].append(rep)
        post[reppos + 1].append(lambda: prof(A, 16, T0, 34, cyc=True))
        post[respos[0] - 2].append(lambda: A(f'v_mov_b64 v[{M[0]}:{M[0]+1}], -1'))
        post[respos[0] - 1].append(lambda: A(f'v_mov_b64 v[{M[0]+2}:{M[0]+3}], -1'))
        assert respos[0] - 2 >= 6
        post[respos[0]].append(lambda: A(f'buffer_store_dwordx4 {vr(M[0])}, v{V_L16}, s[8:11], s64 offen{sc}'))
        post[respos[1]].append(lambda: A(f'buffer_store_dwordx4 {vr(M[0])}, v{V_L16}, s[8:11], s64 offen offset:1024{sc}'))
        post[11].append(lambda: stamp(3)); post[23].append(lambda: stamp(4)); post[35].append(lambda: stamp(5))
        for i, op in enumerate(fold(AQ0, AQ1, T0)): post[26 + i].append(lambda op=op: A(op))
        post[36].append(lambda: A.ds(f'ds_write_b64 v{V_QW}, v[{T0}:{T1}] offset:{L_OQK+1024}', 'qw'))
        for i, op in enumerate(fold(AK0, AK1, T0)): post[38 + (i * kfs) // 10].append(lambda op=op: A(op))
        post[38 + kfs].append(lambda: A.ds(f'ds_write_b64 v{V_QW}, v[{T0}:{T1}] offset:{L_OQK+1536}', 'kw'))
        pre[b2pos].append(lambda: (A.wait_lds('qw'), A('s_barrier')))
        qpos = [p_ for p_ in range(b2pos, 48) if p_ != 38 + kfs][:4]
        for k, pos in enumerate(qpos): post[pos].append(lambda k=k: ldQF(k))
        for i, f in enumerate(sms):
            for fn in pre[i]: fn()
            SM(*f)
            n0 = len(A.items)
            for fn in post[i]: fn()
            gap = A.items[n0:]
            if not any(isinstance(x, str) for x in gap):
                A.items[n0:] = [x for x in gap if x.kind != 'valu'] + [x for x in gap if x.kind == 'valu']
        stamp(6)
        ST = {1: AK0, 2: AK1, 0: M[5]}
        VM = M[7]; ONES = KM[0]; ONE2 = KM[1]; PM = KM[1] + 2; PB = KM[2]; LS = KM[3]; O = [AV0, AV1]
        def MF(d, a, b, c): A(f'v_mfma_f32_16x16x32_bf16 {vr(d)}, {vr(a)}, {vr(b)}, {c}')
        def MF16(d, a, b): A(f'v_mfma_f32_16x16x16_bf16 {vr(d)}, {vr(a,2)}, {vr(b,2)}, {vr(d)}')
        late = [(('o', k, 1, T), hf) for k in (2, 3) for T in (0, 1) for hf in (0, 1)]
        vmc = [f'v_cvt_pk_bf16_f32 v{VM+i}, v{(AV0,AV1)[i>>1]+2*(i&1)}, v{(AV0,AV1)[i>>1]+2*(i&1)+1}' for i in range(4)]
        n = 0
        for k in range(4):
            A.wait_lds(f'qf{k}')
            if k == b3k:
                A.wait_lds('kw'); A('s_barrier')
            for tt in (1, 2):
                MF(ST[tt], KX[(tt, k)], QF[k], '0' if k == 0 else vr(ST[tt]))
                if 2 * b3k <= n < 2 * b3k + 4: ldKM(n - 2 * b3k)
                elif n >= 2: plh(*late.pop(0), 'piii')
                if vmc and n >= 2 and not (2 * b3k <= n < 2 * b3k + 4 and len(vmc) <= 2): A(vmc.pop(0))
                n += 1
        WA = QF
        def z(a): A(f'v_mov_b64 v[{a}:{a+1}], 0\nv_mov_b64 v[{a+2}:{a+3}], 0')
        for k in range(4):
            A.wait_lds(f'km{k}')
            MF(ST[0], KM[k], QF[k], '0' if k == 0 else vr(ST[0]))
            plh(*late.pop(0), 'piii')
            if k == 0: A(f'v_mov_b64 v[{ONES}:{ONES+1}], s[86:87]')
            if k == 1: A(f'v_max3_f32 v{T0}, v{ST[1]}, v{ST[1]+1}, v{ST[1]+2}')
            if k == 2: A(f'v_max3_f32 v{T1}, v{ST[1]+3}, v{ST[2]}, v{ST[2]+1}')
            if k == 3: A(f'v_max3_f32 v{T0}, v{T0}, v{ST[2]+2}, v{ST[2]+3}')
            if vmc and k < 2: A(vmc.pop(0))
        assert not vmc
        stamp(7)
        A(f"""v_max_f32 v{T0}, v{T0}, v{T1}
v_mov_b32 v{T1}, v{T0}
v_mov_b64 v[{ONES+2}:{ONES+3}], s[86:87]
v_cndmask_b32 v{ONE2}, 0, v{ONES}, s[82:83]
v_permlane32_swap_b32 v{T0}, v{T1}
v_cndmask_b32 v{ONE2+1}, 0, v{ONES}, s[82:83]
v_max3_f32 v{T0}, v{T0}, v{T1}, v{ST[0]}
v_max3_f32 v{T1}, v{ST[0]+1}, v{ST[0]+2}, v{ST[0]+3}
v_max_f32 v{T0}, v{T0}, v{T1}
v_mov_b32 v{T1}, v{T0}""")
        z(WA[0])
        A(f"""v_permlane16_swap_b32 v{T0}, v{T1}
v_max_f32 v{T0}, v{T0}, v{T1}
v_mul_f32 v{T0}, s68, v{T0}""")
        for base in (ST[1], ST[2]):
            for r in range(4): A(f'v_fma_f32 v{base+r}, v{base+r}, s68, -v{T0}')
        for base in (ST[1], ST[2]):
            for r in range(4): A(f'v_exp_f32 v{base+r}, v{base+r}')
        b = ST[0]
        A(f"""v_cvt_pk_bf16_f32 v{PB}, v{ST[1]}, v{ST[1]+1}
v_cvt_pk_bf16_f32 v{PB+1}, v{ST[1]+2}, v{ST[1]+3}
v_cvt_pk_bf16_f32 v{PB+2}, v{ST[2]}, v{ST[2]+1}
v_cvt_pk_bf16_f32 v{PB+3}, v{ST[2]+2}, v{ST[2]+3}
v_fma_f32 v{b}, v{b}, s68, -v{T0}
v_fma_f32 v{b+1}, v{b+1}, s68, -v{T0}""")
        MF(LS, ONES, PB, '0')
        plh(*late.pop(0), 'piii')
        A(f'v_fma_f32 v{b+2}, v{b+2}, s68, -v{T0}\nv_fma_f32 v{b+3}, v{b+3}, s68, -v{T0}')
        MF(O[0], VX[0], PB, '0')
        plh(*late.pop(0), 'piii')
        A(f'v_exp_f32 v{b}, v{b}')
        MF(O[1], VX[1], PB, '0')
        A(f"""v_exp_f32 v{b+1}, v{b+1}
v_exp_f32 v{b+2}, v{b+2}
v_exp_f32 v{b+3}, v{b+3}
v_cvt_pk_bf16_f32 v{PM}, v{b}, v{b+1}
v_cvt_pk_bf16_f32 v{PM+1}, v{b+2}, v{b+3}""")
        z(WA[1])
        MF16(LS, ONE2, PM); z(WA[2]); MF16(O[0], VM, PM); z(WA[3]); MF16(O[1], VM + 2, PM)
        stamp(8)
        OF = [AK0, AK1, M[5], PB]
        A(f'v_rcp_f32 v{T0}, v{LS}')
        for T in range(2):
            for r in range(4): A(f'v_mul_f32 v{O[T]+r}, v{O[T]+r}, v{T0}')
            A(f'v_cvt_pk_bf16_f32 v{OF[0]+2*T}, v{O[T]}, v{O[T]+1}\nv_cvt_pk_bf16_f32 v{OF[0]+2*T+1}, v{O[T]+2}, v{O[T]+3}')
        A.ds(f'ds_write_b128 v{V_B0}, {vr(OF[0])} offset:{L_OQK}', 'ow')
        stamp(9)
        def SO(k, a): A(f'v_smfmac_f32_16x16x64_bf16 {vr(WA[a])}, {vr(OF[k])}, {wreg(("o",k,a>>1,a&1))}, v{V_IDX}')
        R = QF; SEL = M[7]; RA = M[5]
        selops = [f'v_cndmask_b32 v{SEL+q}, 0, v{V_SELV}, s[{72+2*q}:{73+2*q}]' for q in range(4)]
        for a in range(4):
            SO(0, a); A(selops[a])
        A('s_waitcnt lgkmcnt(0)\ns_barrier'); A.lds_q = []
        for k in range(1, 4): A.ds(f'ds_read_b128 {vr(OF[k])}, v{VB[k]} offset:{L_OQK}', f'o{k}')
        for k in range(1, 4):
            A.wait_lds(f'o{k}')
            SO(k, 0); SO(k, 1)
        PK = [AV0, AV1]
        n = 0
        for k in range(1, 4):
            for a in (2, 3):
                SO(k, a); n += 1
                if early1:
                    if n == 3:
                        for r in range(4): A(f'v_cvt_pk_bf16_f32 v{PK[0]+r}, v{WA[0]+r}, v{WA[1]+r}')
                    if n == 4: A(f'buffer_store_dwordx4 {vr(PK[0])}, v{V_PST}, s[8:11], s58 offen{sc}')
                elif n >= 3: A(f'v_cvt_pk_bf16_f32 v{PK[0]+n-3}, v{WA[0]+n-3}, v{WA[1]+n-3}')
        if not early1: A(f'buffer_store_dwordx4 {vr(PK[0])}, v{V_PST}, s[8:11], s58 offen{sc}')
        for r in range(4): A(f'v_cvt_pk_bf16_f32 v{PK[1]+r}, v{WA[2]+r}, v{WA[3]+r}')
        A(f'buffer_store_dwordx4 {vr(PK[1])}, v{V_PST}, s[8:11], s59 offen{sc}')
        stamp(10)
        def book():
            A(f"""s_add_u32 s54, s54, 8192
{wrap('s54')}s_add_u32 s56, s56, 8192
s_add_u32 s57, s57, {0 if nokv else 16384}
s_add_u32 s64, s65, s60
s_add_u32 s60, s60, 0x40000
s_and_b32 s60, s60, 0xc0000
s_add_u32 s58, s60, {PARTB}
s_add_u32 s59, s60, {PARTB + 0x20000}
s_add_u32 s34, s34, 1""")
        def ldB():
            for i in range(4): A(f'buffer_load_dwordx4 {vr(R[i])}, v{V_L16}, s[8:11], s62 offen offset:{i*1024} sc1')
        retry[f'{t}B'] = ldB
        if nocomm:
            prep_a(); book(); A(f's_branch {t}_join')
        A(f's_cmp_lg_u32 s32, 0\ns_cbranch_scc1 {t}_late')
        delay(dB0)
        stamp(11)
        ldB()
        prep_a({3: ldB} if nB == 2 else ({2: ldB, 5: ldB} if nB == 3 else None)); book()
        A(f"""{t}_chkB:
s_waitcnt vmcnt({4*(nB-1)})
v_max3_u32 v{T0}, v{R[0]+3}, v{R[1]+3}, v{R[2]+3}
v_max_u32 v{T0}, v{T0}, v{R[3]+3}
v_cmp_eq_u32 vcc, -1, v{T0}""")
        for i in range(4):
            A(f'v_mfma_f32_16x16x32_bf16 {vr(RA)}, {vr(SEL)}, {vr(R[i])}, {"0" if i==0 else vr(RA)}')
            if i == 1: A(f's_cbranch_vccnz {t}_reB')
        A(f"""v_cmp_u_f32 vcc, v{RA+2}, v{RA+2}
v_add_f32_dpp v{RA}, v{RA}, v{RA} row_ror:8 row_mask:0xf bank_mask:0xf
v_add_f32_dpp v{RA+1}, v{RA+1}, v{RA+1} row_ror:8 row_mask:0xf bank_mask:0xf
v_cvt_pk_bf16_f32 v{T3}, v{RA}, v{RA+1}
s_cbranch_vccnz {t}_nan
{t}_okB:
s_mov_b64 exec, s[80:81]
buffer_store_dword v{T3}, v{V_MST}, s[8:11], s55 offen{sc}
s_mov_b64 exec, -1
{t}_join:""")
        def nan_path(t=t, R=R, RA=RA, SEL=SEL, ldB=ldB):
            A(f'{t}_nan:')
            ldB()
            A('s_waitcnt vmcnt(0)')
            fl = [x for r in R for x in range(r, r + 4)]
            A(f'v_max3_u32 v{T0}, v{fl[0]}, v{fl[1]}, v{fl[2]}')
            for i in range(6): A(f'v_max3_u32 v{T0}, v{T0}, v{fl[3+2*i]}, v{fl[4+2*i]}')
            A(f"""v_max_u32 v{T0}, v{T0}, v{fl[15]}
v_cmp_eq_u32 vcc, -1, v{T0}
s_cbranch_vccz {t}_nan2
s_sub_u32 s35, s35, 1
s_cbranch_scc0 {t}_nan
s_mov_b32 s35, 0
{t}_nan2:""")
            for i in range(4):
                A(f'v_mfma_f32_16x16x32_bf16 {vr(RA)}, {vr(SEL)}, {vr(R[i])}, {"0" if i==0 else vr(RA)}')
            A(f"""v_add_f32_dpp v{RA}, v{RA}, v{RA} row_ror:8 row_mask:0xf bank_mask:0xf
v_add_f32_dpp v{RA+1}, v{RA+1}, v{RA+1} row_ror:8 row_mask:0xf bank_mask:0xf
v_cvt_pk_bf16_f32 v{T3}, v{RA}, v{RA+1}
s_branch {t}_okB""")
        lates.append(nan_path)
        def late_path(t=t):
            A(f'{t}_late:')
            prep_a(); book()
            A(f's_cmp_lg_u32 s32, 1\ns_cbranch_scc1 {t}_idle')
            delay(dB1); ldB()
            for i in range(nB - 1):
                delay(gB or 24); ldB()
            A(f"""s_branch {t}_chkB
{t}_idle:
; waves 2,3: sentinel into the mem slot two steps ahead of the one being published
s_add_u32 s36, s55, 16384
{wrap('s36')}v_mov_b32 v{T0}, -1
s_mov_b64 exec, s[80:81]
buffer_store_dword v{T0}, v{V_MST}, s[8:11], s36 offen{sc}
s_mov_b64 exec, -1
s_branch {t}_join""")
        lates.append(late_path)
        stamp(12)
        A(f"""s_cmp_eq_u32 s34, {nsteps}
s_cbranch_scc1 {tag}_done
s_add_u32 s62, s63, s60
s_add_u32 s55, s55, 8192
{wrap('s55')}s_add_u32 s36, s34, 2""")
        kv_ready(f'{t}_kv'); slow.append(f'{t}_kv')
        A('s_barrier')
        delay(dA)
        stamp(13)
        A.lds_q = []
    i0 = len(A.items)
    step(0); step(1)
    if abl:
        import re
        keep = A.items[:i0]
        for it in A.items[i0:]:
            if not isinstance(it, str) and any(re.search(p, it.text) for p in abl): continue
            keep.append(it)
        A.items = keep
    A(f's_branch {tag}0_top')
    for par in range(2):
        t = f'{tag}{par}'
        for x in 'AB':
            A(f'{t}_re{x}:\ns_sub_u32 s35, s35, 1\ns_cbranch_scc1 {t}_to{x}\ns_mov_b64 exec, vcc')
            retry[f'{t}{x}']()
            A(f's_mov_b64 exec, -1\ns_branch {t}_chk{x}\n{t}_to{x}:\ns_mov_b32 s35, 0\ns_nop 7\ns_branch {t}_{"nan" if x == "B" else "ok" + x}')
    for f in lates: f()
    for l in slow: kv_slow(l)
    A(f"""{tag}_done:
s_cmp_ge_u32 s32, 2
s_cbranch_scc1 {tag}_fin
s_mov_b64 exec, s[80:81]
buffer_store_dword v{T3}, v{V_MST}, s[8:11], s56 offen sc1
s_mov_b64 exec, -1
{tag}_fin:""")
    prof(A, 3, 36, dbg=11)
    if PROF['on'] is True:
        A("""s_memtime s[92:93]
s_waitcnt lgkmcnt(0)
s_sub_u32 s92, s92, s96
v_mov_b32 v36, s92
v_mov_b32 v37, s35
s_lshl_b32 s94, s32, 3
s_add_u32 s94, s94, s91
v_mov_b32 v38, 0
s_mov_b64 exec, 1
buffer_store_dwordx2 v[36:37], v38, s[8:11], s94 offen offset:16
s_mov_b64 exec, -1""")

def kd(name, vgpr=512, accum=256):
    return f'''
.amdhsa_kernel {name}
  .amdhsa_next_free_vgpr {vgpr}
  .amdhsa_next_free_sgpr 102
  .amdhsa_accum_offset {accum}
  .amdhsa_group_segment_fixed_size 0
  .amdhsa_kernarg_size 112
  .amdhsa_user_sgpr_count 2
  .amdhsa_user_sgpr_kernarg_segment_ptr 1
  .amdhsa_system_sgpr_workgroup_id_x 1
.end_amdhsa_kernel
'''

def common_entry(A):
    A(f'''
s_load_dwordx4 s[4:7], s[0:1], 96
s_getreg_b32 s3, hwreg(HW_REG_XCC_ID)
s_and_b32 s3, s3, 0xf
v_lshrrev_b32 v1, 6, v0
v_readfirstlane_b32 s32, v1
s_waitcnt lgkmcnt(0)''')
    srd(A, 12, 4, 256)
    srd(A, 8, 6, WS_BYTES)

def gen_chain_test(stamps=False, **kw):
    A = Asm()
    A.raw('; @launch kernel=chain_kernel grid=(256,1,1) block=(256,1,1) lds=163840')
    A.raw('.amdgcn_target "amdgcn-amd-amdhsa--gfx950"')
    A.raw('.text\n.globl chain_kernel\n.p2align 8\n.type chain_kernel,@function')
    A.label('chain_kernel')
    A('s_cmp_ge_u32 s2, 256\ns_cbranch_scc1 L_end')
    common_entry(A)
    A('''s_cmp_lg_u32 s3, 0
s_cbranch_scc1 L_end
s_memtime s[96:97]
s_memrealtime s[6:7]
v_mov_b32 v3, 0
v_mov_b32 v4, 1
s_cmp_lg_u32 s32, 0
s_cbranch_scc1 L_noticket
s_mov_b64 exec, 1
buffer_atomic_add v4, v3, s[12:15], 0 offen sc0
s_waitcnt vmcnt(0)
ds_write_b32 v3, v4
s_waitcnt lgkmcnt(0)
s_mov_b64 exec, -1
L_noticket:
s_barrier
ds_read_b32 v4, v3
s_waitcnt lgkmcnt(0)
v_readfirstlane_b32 s33, v4
s_barrier
s_cmp_ge_u32 s33, 32
s_cbranch_scc1 L_end''')
    emit_chain(A, stamps=stamps, **kw)
    if stamps:
        A('s_waitcnt lgkmcnt(0)')
        for i, r in enumerate([40,42,44,46,48,50,52,84,98,88,90,92,94,100,96,35]): A(f'v_mov_b32 v{20+i}, s{r}')
        A('''s_lshl_b32 s36, s33, 2
s_add_u32 s36, s36, s32
s_lshl_b32 s36, s36, 6
s_add_u32 s36, s36, 0x8000
v_mov_b32 v40, s36
s_mov_b64 exec, 1
buffer_store_dwordx4 v[20:23], v40, s[8:11], 0 offen
buffer_store_dwordx4 v[24:27], v40, s[8:11], 0 offen offset:16
buffer_store_dwordx4 v[28:31], v40, s[8:11], 0 offen offset:32
buffer_store_dwordx4 v[32:35], v40, s[8:11], 0 offen offset:48
s_mov_b64 exec, -1''')
    A('''s_memtime s[98:99]
s_memrealtime s[4:5]
s_waitcnt lgkmcnt(0)
s_sub_u32 s98, s98, s96
s_sub_u32 s4, s4, s6
s_cmp_eq_u32 s33, 1
s_cselect_b32 s98, s4, s98
v_mov_b32 v20, s98
v_mov_b32 v21, s35
s_lshl_b32 s36, s33, 2
s_add_u32 s36, s36, s32
s_cmp_ge_u32 s36, 8
s_cbranch_scc1 L_end
s_lshl_b32 s36, s36, 3
s_add_u32 s36, s36, 64
v_mov_b32 v22, s36
s_mov_b64 exec, 1
buffer_store_dwordx2 v[20:21], v22, s[12:15], 0 offen
L_end:
s_endpgm''')
    A.raw('.section .rodata,"a"\n.p2align 6')
    A.raw(kd('chain_kernel'))
    return A.text()

if __name__ == '__main__':
    open('chain.s', 'w').write(gen_chain_test())
    open('chain_st.s', 'w').write(gen_chain_test(stamps=True))
```

```python
import math
from gen import *

W_L16, W_LANE, W_TR, W_VO = 0, 1, 2, 3

def ar(b, n=4): return f'a[{b}:{b+n-1}]'

def worker_setup(A):
    A(f'''v_and_b32 v{W_LANE}, 63, v0
v_lshlrev_b32 v{W_L16}, 4, v{W_LANE}
s_mul_i32 s52, s32, 40960
v_lshlrev_b32 v{W_TR}, 3, v{W_LANE}
v_add_u32 v{W_TR}, s52, v{W_TR}
s_mov_b32 s35, 1000000''')

def load_units(A, units, depth=9):
    n_u = len(units)
    def issue(n):
        sl = n % 10
        for mp, (sr, sb, c) in enumerate(units[n][0]):
            A(f's_add_u32 m0, s52, {sl*4096 + mp*1024}')
            A(f's_add_u32 s38, s{sb}, {c}')
            A(f'buffer_load_dwordx4 v{W_VO}, s[{sr}:{sr+3}], s38 offen lds')
    for n in range(min(depth, n_u)): issue(n)
    for n in range(n_u):
        later = min(n_u - 1, n + depth - 1) - n
        A(f's_waitcnt vmcnt({4*later})')
        for T in range(2):
            for mp in range(4):
                A(f'ds_read_b64_tr_b16 {units[n][1][mp][T]}, v{W_TR} offset:{(n%10)*4096 + mp*1024 + T*512}')
        if n + depth < n_u:
            A('s_waitcnt lgkmcnt(8)')
            issue(n + depth)
    A('s_waitcnt lgkmcnt(0)\ns_barrier')

def lane_bits(A):
    A(f'''v_bfe_u32 v21, v{W_LANE}, 4, 1
v_bfe_u32 v22, v{W_LANE}, 3, 1
v_bfe_u32 v23, v{W_LANE}, 2, 1
v_bfe_u32 v24, v{W_LANE}, 1, 1
v_and_b32 v25, 1, v{W_LANE}
v_lshrrev_b32 v26, 5, v{W_LANE}''')

def voff_dmap(A, stride):
    lane_bits(A)
    A(f'''v_lshlrev_b32 v27, 3, v21
v_lshl_add_u32 v27, v22, 1, v27
v_lshl_add_u32 v27, v23, 2, v27
v_lshl_add_u32 v27, v24, 5, v27
v_mul_u32_u24 v27, {stride}, v27
v_lshl_add_u32 v27, v26, 5, v27
v_lshl_add_u32 v{W_VO}, v25, 4, v27''')

def drow(t, mp): return 64 * t + 16 * (mp >> 1) + (mp & 1)

def atomic_flag(A, soff, vtmp):
    A(f'''s_mov_b64 exec, 1
v_mov_b32 v{vtmp}, 1
v_mov_b32 v{vtmp+1}, 0
buffer_atomic_add v{vtmp}, v{vtmp+1}, s[8:11], {soff} offen sc1
s_mov_b64 exec, -1''')

def emit_warm(A, pol='nt'):
    A('''s_load_dwordx4 s[16:19], s[0:1], 16
s_load_dwordx4 s[24:27], s[0:1], 32
s_mul_i32 s36, s33, 5
s_add_u32 s36, s36, s89
s_lshl_b32 s36, s36, 2
s_add_u32 s36, s36, s32
s_lshl_b32 s36, s36, 10
s_waitcnt lgkmcnt(0)
s_mov_b32 s20, s18
s_and_b32 s21, s19, 0xffff
s_mov_b32 s22, 0x400000
s_mov_b32 s23, 0x20000
s_and_b32 s17, s17, 0xffff
s_mov_b32 s18, 0x400000
s_mov_b32 s19, 0x20000
s_mov_b32 s28, s26
s_and_b32 s29, s27, 0xffff
s_mov_b32 s30, 0x400000
s_mov_b32 s31, 0x20000
s_and_b32 s25, s25, 0xffff
s_mov_b32 s26, 0x400000
s_mov_b32 s27, 0x20000''')
    n = 0
    for sr in (28, 24, 20, 16):
        for i in range(7):
            A(f's_add_u32 s37, s36, {i*640*1024}')
            A(f'buffer_load_dwordx4 v[{112+4*(n%4)}:{115+4*(n%4)}], v{W_L16}, s[{sr}:{sr+3}], s37 offen {pol}')
            n += 1

def emit_init(A):
    A(f'''v_mov_b32 v16, 0
v_mov_b32 v17, 0
v_mov_b32 v18, 0
v_mov_b32 v19, 0
s_lshl_b32 s36, s32, 13
s_add_u32 s37, s36, 4096''')
    for i in range(8):
        A(f'buffer_store_dwordx4 v[16:19], v{W_L16}, s[8:11], s{36 + (i>>2)} offen offset:{(i&3)*1024} sc1')
    A(f'''s_waitcnt vmcnt(0)
s_mov_b64 exec, 1
v_mov_b32 v16, 1
v_mov_b32 v17, {DBG_GATE}
buffer_atomic_add v16, v17, s[12:15], 0 offen sc1
s_mov_b64 exec, -1''')

def emit_ln(A, sseg, gate=True):
    A('s_load_dwordx2 s[4:5], s[0:1], 0\ns_waitcnt lgkmcnt(0)')
    srd(A, 16, 4, 0x200000)
    RAW = 16; X = 48
    A(f'''v_lshlrev_b32 v4, 7, v{W_LANE}
s_lshl_b32 s36, s{sseg}, 15
s_lshl_b32 s37, s32, 13
s_add_u32 s36, s36, s37''')
    for i in range(8): A(f'buffer_load_dwordx4 {vr(RAW+4*i)}, v4, s[16:19], s36 offen offset:{16*i}')
    A(f'''v_and_b32 v5, 7, v{W_LANE}
v_lshlrev_b32 v5, 11, v5
v_lshrrev_b32 v6, 3, v{W_LANE}
v_lshl_add_u32 v5, v6, 4, v5
s_lshl_b32 s36, s{sseg}, 15
s_lshr_b32 s37, s32, 1
s_lshl_b32 s37, s37, 14
s_add_u32 s36, s36, s37
s_and_b32 s37, s32, 1
s_lshl_b32 s37, s37, 7
s_add_u32 s36, s36, s37
s_add_u32 s39, s36, {XFB}
s_mov_b32 s38, 0xffff0000''')
    for i in range(8):
        A(f's_waitcnt vmcnt({7-i})')
        for q in range(4):
            d = 4 * i + q
            A(f'v_lshlrev_b32 v{X+2*d}, 16, v{RAW+d}\nv_and_b32 v{X+2*d+1}, s38, v{RAW+d}')
    def red8(r):
        A(f'''v_add_f32_dpp v{r}, v{r}, v{r} quad_perm:[1,0,3,2] row_mask:0xf bank_mask:0xf
v_add_f32_dpp v{r}, v{r}, v{r} quad_perm:[2,3,0,1] row_mask:0xf bank_mask:0xf
v_add_f32_dpp v{r}, v{r}, v{r} row_half_mirror row_mask:0xf bank_mask:0xf''')
    for a in range(4): A(f'v_add_f32 v{8+a}, v{X+a}, v{X+4+a}')
    for c in range(8, 64): A(f'v_add_f32 v{8+(c&3)}, v{8+(c&3)}, v{X+c}')
    A('v_add_f32 v8, v8, v9\nv_add_f32 v10, v10, v11\nv_add_f32 v8, v8, v10')
    red8(8)
    A(f'v_mul_f32 v7, {f32bits(1/512)}, v8')
    for a in range(4): A(f'v_mov_b32 v{8+a}, 0')
    for c in range(64):
        A(f'v_sub_f32 v{12+(c&3)}, v{X+c}, v7\nv_fmac_f32 v{8+(c&3)}, v{12+(c&3)}, v{12+(c&3)}')
    A('v_add_f32 v8, v8, v9\nv_add_f32 v10, v10, v11\nv_add_f32 v8, v8, v10')
    red8(8)
    A(f'''v_mul_f32 v8, {f32bits(1/512)}, v8
v_cvt_pk_bf16_f32 v9, v7, v8
v_lshlrev_b32 v7, 16, v9
v_and_b32 v8, s38, v9
v_add_f32 v8, {f32bits(1e-5)}, v8
v_cvt_pk_bf16_f32 v8, v8, v8
v_and_b32 v8, s38, v8
v_sqrt_f32 v8, v8
v_cvt_pk_bf16_f32 v8, v8, v8
v_and_b32 v8, s38, v8
v_rcp_f32 v8, v8''')
    for hi in range(2):
        for g in range(4):
            b = 16 * hi + 8 * (g >> 1) + 2 * (g & 1)
            o = RAW + 4 * (4 * hi + g)
            for q, c in enumerate((b, b + 4, b + 1, b + 5)):
                lo, hh = X + c, X + c + 32
                A(f'''v_sub_f32 v{lo}, v{lo}, v7
v_sub_f32 v{hh}, v{hh}, v7
v_cvt_pk_bf16_f32 v{hh}, v{lo}, v{hh}
v_lshlrev_b32 v{lo}, 16, v{hh}
v_and_b32 v{hh}, s38, v{hh}
v_mul_f32 v{lo}, v{lo}, v8
v_mul_f32 v{hh}, v{hh}, v8
v_cvt_pk_bf16_f32 v{o+q}, v{lo}, v{hh}''')
            A(f'buffer_store_dwordx4 {vr(o)}, v5, s[8:11], s39 offen offset:{hi*1024+g*256} sc1')
    if gate: wait_dbg(A, 'ln_gate', DBG_GATE, 4, 8, 9)
    else: A('s_waitcnt vmcnt(0)')
    A(f's_lshl_b32 s36, s{sseg}, 7\ns_add_u32 s36, s36, {FLAGS+F_XN}')
    atomic_flag(A, 's36', 8)

def wait_all_xn(A, lbl, gate=True):
    if gate: wait_dbg(A, f'{lbl}_gate', DBG_GATE, 4, 8, 9)
    A(f'''v_lshlrev_b32 v8, 7, v{W_LANE}
s_mov_b32 s37, {FLAGS+F_XN}
{lbl}:
buffer_load_dword v9, v8, s[8:11], s37 offen sc1
s_waitcnt vmcnt(0)
v_cmp_gt_u32 vcc, 4, v9
s_cbranch_vccz {lbl}_ok
s_sleep 2
s_sub_u32 s35, s35, 1
s_cbranch_scc0 {lbl}
s_mov_b32 s35, 0
{lbl}_ok:''')

def xf_loop(A, tag, stride, nst, mfmas, epilogue, flag_soff, active=None):
    XV = 4; XA = [[8, 12], [16, 20]]
    def dma(seg):
        A(f'''s_min_u32 s36, s{seg}, 63
s_lshl_b32 s36, s36, 15
s_add_u32 s36, s36, s42
s_add_u32 s37, s36, 4096
s_mov_b32 m0, s43''')
        for i in range(4): A(f'buffer_load_dwordx4 v{W_L16}, s[8:11], s36 offen offset:{i*1024} sc1 lds')
        A('s_add_u32 m0, s43, 4096')
        for i in range(4): A(f'buffer_load_dwordx4 v{W_L16}, s[8:11], s37 offen offset:{i*1024} sc1 lds')
        A('s_xor_b32 s43, s43, 0x8000')
    A(f'''s_lshl_b32 s43, s32, 13
s_add_u32 s42, s43, {XFB}
v_mov_b32 v{XV}, v{W_L16}
s_mov_b32 s44, -1''')
    dma(40)
    A(f'''s_waitcnt vmcnt(0)
{tag}_top:
s_barrier
s_add_u32 s41, s40, {stride}''')
    dma(41)
    if active: A(f's_cmp_eq_u32 s{active}, 0\ns_cbranch_scc1 {tag}_skip')
    def rd(ks):
        for tt in range(2): A.ds(f'ds_read_b128 {vr(XA[ks&1][tt])}, v{XV} offset:{tt*16384 + ks*1024}', f'x{ks}')
    A.lds_q = []
    rd(0)
    for ks in range(16):
        A.wait_lds(f'x{ks}')
        if ks < 15: rd(ks + 1)
        mfmas(ks, XA[ks & 1])
        if ks == 13:
            A(f's_waitcnt vmcnt(0)\ns_cmp_lt_i32 s44, 0\ns_cbranch_scc1 {tag}_noflag')
            flag_soff(44); atomic_flag(A, 's36', 6)
            A(f'{tag}_noflag:')
    epilogue()
    A(f'''s_mov_b32 s44, s40
{tag}_next:
v_xor_b32 v{XV}, 0x8000, v{XV}
s_mov_b32 s40, s41
s_cmp_lt_u32 s40, 64
s_cbranch_scc1 {tag}_top
s_waitcnt vmcnt(0)''')
    if active: A(f's_cmp_eq_u32 s{active}, 0\ns_cbranch_scc1 {tag}_end')
    flag_soff(44); atomic_flag(A, 's36', 6)
    if active:
        A(f's_branch {tag}_end\n{tag}_skip:\ns_waitcnt vmcnt(0)\ns_branch {tag}_next')
    A(f'{tag}_end:\ns_barrier')

def MFd(A, d, a, b, c): A(f'v_mfma_f32_16x16x32_bf16 {d}, {a}, {b}, {c}')

def qkv_frag(m, t, T):
    i = 2 * t + T
    return {'k': f'a[{8*i}:{8*i+7}]', 'v': f'a[{128+8*i}:{128+8*i+7}]', 'q': f'v[{128+8*i}:{128+8*i+7}]'}[m]

def emit_qkv(A, gate=True):
    A('''s_load_dwordx4 s[16:19], s[0:1], 16
s_load_dwordx2 s[24:25], s[0:1], 32
s_waitcnt lgkmcnt(0)
s_mov_b32 s20, s18
s_and_b32 s21, s19, 0xffff
s_mov_b32 s22, 0x400000
s_mov_b32 s23, 0x20000
s_and_b32 s17, s17, 0xffff
s_mov_b32 s18, 0x400000
s_mov_b32 s19, 0x20000
s_and_b32 s25, s25, 0xffff
s_mov_b32 s26, 0x400000
s_mov_b32 s27, 0x20000
s_lshl_b32 s45, s33, 8
s_lshl_b32 s37, s32, 6
s_add_u32 s45, s45, s37''')
    voff_dmap(A, 8192)
    units = []
    for t in range(8):
        for m in 'kvq':
            sr = {'q': 16, 'k': 20, 'v': 24}[m]
            units.append(([(sr, 45, drow(t, mp) * 8192) for mp in range(4)],
                          [[sub(qkv_frag(m, t, T), 2 * mp, 2) for T in range(2)] for mp in range(4)]))
    load_units(A, units)
    prof(A, 2, 36, dbg=13)
    wait_all_xn(A, 'qkv_xn', gate)
    prof(A, 3, 36)
    ACC = 24; PKB = 72
    def acc(m, T, tt): return ACC + 4 * ('qkv'.index(m) * 4 + T * 2 + tt)
    def mfmas(ks, XA):
        for m in 'qkv':
            for T in range(2):
                w = sub(qkv_frag(m, ks >> 1, T), 4 * (ks & 1), 4)
                for tt in range(2):
                    d = vr(acc(m, T, tt)); c = '0' if ks == 0 else d
                    if m == 'v': MFd(A, d, vr(XA[tt]), w, c)
                    else: MFd(A, d, w, vr(XA[tt]), c)
    def epi():
        A(f'''s_lshl_b32 s36, s33, 6
s_add_u32 s36, s36, s40
s_lshl_b32 s37, s36, 14
s_lshl_b32 s36, s36, 13
s_lshl_b32 s38, s32, 10
s_add_u32 s36, s36, s38
s_add_u32 s36, s36, {QFB}
s_add_u32 s46, s36, 4096
s_add_u32 s39, s37, s38
s_add_u32 s39, s39, {KVB}
s_add_u32 s47, s39, 4096
s_add_u32 s37, s39, s38
s_add_u32 s37, s37, 8192''')
        def pk(o, a, b):
            A(f'''v_cvt_pk_bf16_f32 v{o}, v{a}, v{a+1}
v_cvt_pk_bf16_f32 v{o+1}, v{a+2}, v{a+3}
v_cvt_pk_bf16_f32 v{o+2}, v{b}, v{b+1}
v_cvt_pk_bf16_f32 v{o+3}, v{b+2}, v{b+3}''')
        n = 0
        for m, so in (('q', (36, 46)), ('k', (39, 47))):
            for tt in range(2):
                o = PKB + 4 * n; n += 1
                pk(o, acc(m, 0, tt), acc(m, 1, tt))
                A(f'buffer_store_dwordx4 {vr(o)}, v{W_L16}, s[8:11], s{so[tt]} offen sc1')
        for T in range(2):
            o = PKB + 4 * n; n += 1
            pk(o, acc('v', T, 0), acc('v', T, 1))
            A(f'buffer_store_dwordx4 {vr(o)}, v{W_L16}, s[8:11], s37 offen offset:{T*1024} sc1')
    def fl(seg): A(f's_lshl_b32 s36, s33, 8\ns_lshl_b32 s37, s{seg}, 2\ns_add_u32 s36, s36, s37')
    xf_loop(A, 'qkv', 7, 6, mfmas, epi, fl)
    prof(A, 4, 36, dbg=14)

def emit_gu(A, nsets):
    A('''s_load_dwordx4 s[16:19], s[0:1], 64
s_waitcnt lgkmcnt(0)
s_mov_b32 s20, s18
s_and_b32 s21, s19, 0xffff
s_mov_b32 s22, 1409024
s_mov_b32 s23, 0x20000
s_and_b32 s17, s17, 0xffff
s_mov_b32 s18, 1409024
s_mov_b32 s19, 0x20000
s_lshl_b32 s49, s48, 2
s_add_u32 s49, s49, s32
s_cmp_lt_u32 s49, 43
s_cselect_b32 s50, 1, 0
s_min_u32 s49, s49, 42
s_lshl_b32 s45, s49, 6''')
    voff_dmap(A, 2752)
    def frag(m, t, T):
        i = 2 * t + T; b = 128 * 'gu'.index(m) + 8 * i
        return f'a[{b}:{b+7}]'
    units = []
    for t in range(8):
        for m in 'gu':
            units.append(([({'g': 16, 'u': 20}[m], 45, drow(t, mp) * 2752) for mp in range(4)],
                          [[sub(frag(m, t, T), 2 * mp, 2) for T in range(2)] for mp in range(4)]))
    load_units(A, units)
    prof(A, 5, 36)
    ACC = 24; PKB = 72
    def acc(m, T, tt): return ACC + 4 * ('gu'.index(m) * 4 + T * 2 + tt)
    def mfmas(ks, XA):
        for m in 'gu':
            for T in range(2):
                w = sub(frag(m, ks >> 1, T), 4 * (ks & 1), 4)
                for tt in range(2):
                    d = vr(acc(m, T, tt)); c = '0' if ks == 0 else d
                    MFd(A, d, w, vr(XA[tt]), c)
    c1 = -2 * math.sqrt(2 / math.pi) * math.log2(math.e); c2 = c1 * 0.044715
    def epi():
        A(f'''s_mul_i32 s36, s40, {2*44*1024}
s_lshl_b32 s37, s49, 10
s_add_u32 s36, s36, s37
s_add_u32 s36, s36, {HFB}
s_add_u32 s37, s36, {44*1024}
s_mov_b32 s38, {f32bits(c2)}
v_mov_b32 v56, {f32bits(c1)}''')
        for tt in range(2):
            for T in range(2):
                g = acc('g', T, tt); u = acc('u', T, tt); t = 60
                for r in range(4): A(f'v_mul_f32 v{t+r}, v{g+r}, v{g+r}')
                for r in range(4): A(f'v_fma_f32 v{t+r}, v{t+r}, s38, v56')
                for r in range(4): A(f'v_mul_f32 v{t+r}, v{t+r}, v{g+r}')
                for r in range(4): A(f'v_exp_f32 v{t+r}, v{t+r}')
                for r in range(4): A(f'v_mul_f32 v{g+r}, v{g+r}, v{u+r}')
                for r in range(4): A(f'v_add_f32 v{t+r}, 1.0, v{t+r}')
                for r in range(4): A(f'v_rcp_f32 v{t+r}, v{t+r}')
                for r in range(4): A(f'v_mul_f32 v{g+r}, v{g+r}, v{t+r}')
                o = PKB + 4 * tt + 2 * T
                A(f'v_cvt_pk_bf16_f32 v{o}, v{g}, v{g+1}\nv_cvt_pk_bf16_f32 v{o+1}, v{g+2}, v{g+3}')
            A(f'buffer_store_dwordx4 {vr(PKB+4*tt)}, v{W_L16}, s[8:11], s{36+tt} offen sc1')
    def fl(seg): A(f's_lshl_b32 s36, s{seg}, 7\ns_add_u32 s36, s36, {FLAGS+F_H}')
    xf_loop(A, 'gu', nsets, 2, mfmas, epi, fl, active=50)
    prof(A, 6, 36)

def emit_att(A, stride):
    IDX, QW, TRA, B0, TMP = 4, 5, 6, 7, 8
    MF_ = [16 + 4 * i for i in range(8)]
    AK = [48, 52]; AV = [56, 60]
    KX = lambda tt, k: 64 + 16 * tt + 4 * k
    QX = lambda tt, k: 96 + 16 * tt + 4 * k
    VX = [128, 132]; KM = [136 + 4 * k for k in range(4)]
    S = {(0, 0): 152, (0, 1): 156, (1, 0): 160, (1, 1): 164, (1, 2): 168}
    PB = [172, 176]; PM = [180, 182]; VM = 184; ONES = 188; ONE2 = 192; NEG = 194
    LS = [196, 200]; O = lambda tt, T: 204 + 8 * tt + 4 * T
    OFR = [220, 224]
    L_M = 0; L_K = 8192
    A(f'''v_and_b32 v21, 8, v{W_LANE}
v_cmp_eq_u32 vcc, 0, v21
v_mov_b32 v22, 0xeeee
v_mov_b32 v23, 0x4444
v_cndmask_b32 v{IDX}, v22, v23, vcc
v_lshrrev_b32 v21, 5, v{W_LANE}
v_and_b32 v22, 15, v{W_LANE}
v_lshl_add_u32 v21, v21, 4, v22
v_lshlrev_b32 v21, 4, v21
v_bfe_u32 v22, v{W_LANE}, 4, 1
v_lshl_add_u32 v21, v22, 3, v21
s_lshl_b32 s38, s32, 9
v_add_u32 v{QW}, s38, v21
v_lshrrev_b32 v21, 2, v{W_LANE}
v_lshlrev_b32 v21, 4, v21
v_and_b32 v22, 1, v{W_LANE}
v_lshl_add_u32 v{TRA}, v22, 3, v21
s_lshl_b32 s53, s32, 11
v_add_u32 v{B0}, s53, v{W_L16}
s_mov_b32 s68, {f32bits(128 ** -0.5 * math.log2(math.e))}
v_mov_b32 v{ONES}, 0x3f803f80
v_mov_b32 v{ONES+1}, 0x3f803f80
v_mov_b32 v{ONES+2}, 0x3f803f80
v_mov_b32 v{ONES+3}, 0x3f803f80
s_mov_b32 s82, -1
s_mov_b32 s83, 0
v_cndmask_b32 v{ONE2}, 0, v{ONES}, s[82:83]
v_cndmask_b32 v{ONE2+1}, 0, v{ONES}, s[82:83]
v_mov_b32 v{NEG}, 0xf149f2ca
v_mov_b32 v{PB[0]+2}, 0
v_mov_b32 v{PB[0]+3}, 0
v_lshrrev_b32 v21, 4, v{W_LANE}
v_lshlrev_b32 v21, 2, v21
v_and_b32 v22, 15, v{W_LANE}''')
    for r in range(4):
        A(f'v_add_u32 v23, {r}, v21\nv_cmp_le_u32 s[{72+2*r}:{73+2*r}], v23, v22')
    wait_dbg(A, 'att_wreg', DBG_CHAINCNT, 128, 8, 9)
    A(f'''att_top:
s_lshl_b32 s37, s33, 8
s_lshl_b32 s38, s40, 2
s_add_u32 s37, s37, s38
v_mov_b32 v9, 0''')
    wait_cnt(A, 'att_kv', 8, 9, 's37', 4, 8, sleep=2)
    A(f'''s_lshl_b32 s36, s33, 6
s_add_u32 s36, s36, s40
s_lshl_b32 s37, s36, 14
s_lshl_b32 s36, s36, 13
s_add_u32 s36, s36, {QFB}
s_add_u32 s38, s36, 4096
s_add_u32 s37, s37, {KVB}
s_add_u32 s39, s37, 4096
s_add_u32 s46, s37, 8192''')
    for tt in range(2):
        for k in range(4):
            A(f'buffer_load_dwordx4 {vr(KX(tt,k))}, v{W_L16}, s[8:11], s{(37,39)[tt]} offen offset:{k*1024} sc1')
            A(f'buffer_load_dwordx4 {vr(QX(tt,k))}, v{W_L16}, s[8:11], s{(36,38)[tt]} offen offset:{k*1024} sc1')
    for T in range(2): A(f'buffer_load_dwordx4 {vr(VX[T])}, v{B0}, s[8:11], s46 offen offset:{T*1024} sc1')
    for a in AK + AV: A(f'v_mov_b64 v[{a}:{a+1}], 0\nv_mov_b64 v[{a+2}:{a+3}], 0')
    A('s_waitcnt vmcnt(0)')
    for k in range(4):
        for key in ((0, 1), (1, 1), (1, 2)):
            d = vr(S[key]); MFd(A, d, vr(KX(key[1] - 1, k)), vr(QX(key[0], k)), '0' if k == 0 else d)
    A(f'''s_lshl_b32 s47, s40, 13
s_add_u32 s47, s47, {GMEMB}
att_poll:
buffer_load_dwordx4 {vr(MF_[0])}, v{B0}, s[8:11], s47 offen sc1
buffer_load_dwordx4 {vr(MF_[1])}, v{B0}, s[8:11], s47 offen offset:1024 sc1
s_waitcnt vmcnt(0)
v_max3_u32 v8, v16, v17, v18
v_max3_u32 v8, v8, v19, v20
v_max3_u32 v8, v8, v21, v22
v_max_u32 v8, v8, v23
v_cmp_eq_u32 vcc, -1, v8
s_cbranch_vccz att_ok
s_sleep 1
s_sub_u32 s35, s35, 1
s_cbranch_scc0 att_poll
s_mov_b32 s35, 0
att_ok:
ds_write_b128 v{B0}, {vr(MF_[0])} offset:{L_M}
ds_write_b128 v{B0}, {vr(MF_[1])} offset:{L_M+1024}
s_waitcnt lgkmcnt(0)
s_barrier''')
    A.lds_q = []
    for t in range(8): A.ds(f'ds_read_b128 {vr(MF_[t])}, v{W_L16} offset:{L_M + t*1024}', f'm{t}')
    def SM(acc, t, m, T): A(f'v_smfmac_f32_16x16x64_bf16 {vr(acc)}, {vr(MF_[t])}, {qkv_frag(m,t,T)}, v{IDX}')
    for t in range(8):
        A.wait_lds(f'm{t}')
        SM(AK[0], t, 'k', 0); SM(AK[1], t, 'k', 1)
    fold = [f'v_permlane32_swap_b32 v{AK[0]+r}, v{AK[1]+r}' for r in range(4)] + [f'v_add_f32 v{AK[0]+r}, v{AK[0]+r}, v{AK[1]+r}' for r in range(4)]
    fold += [f'v_cvt_pk_bf16_f32 v8, v{AK[0]}, v{AK[0]+1}', f'v_cvt_pk_bf16_f32 v9, v{AK[0]+2}, v{AK[0]+3}']
    n = 0
    for t in range(8):
        for T in range(2):
            SM(AV[T], t, 'v', T); n += 1
            if 3 <= n <= 7: A(fold[2*(n-3)]); A(fold[2*(n-3)+1])
            if n == 8: A.ds(f'ds_write_b64 v{QW}, v[8:9] offset:{L_K}', 'kw')
            if n == 12:
                A.wait_lds('kw'); A('s_barrier')
            if n >= 13:
                k = n - 13
                for hf in range(2): A.ds(f'ds_read_b64_tr_b16 {vr(KM[k]+2*hf,2)}, v{TRA} offset:{L_K + k*512 + hf*256}', f'km{k}')
    for key in ((0, 1), (1, 2)):
        for r in range(4): A(f'v_cndmask_b32 v{S[key]+r}, v{NEG}, v{S[key]+r}, s[{72+2*r}:{73+2*r}]')
    for k in range(4):
        A.wait_lds(f'km{k}')
        for tt in range(2):
            d = vr(S[(tt, 0)]); MFd(A, d, vr(KM[k]), vr(QX(tt, k)), '0' if k == 0 else d)
    for T in range(2):
        A(f'v_cvt_pk_bf16_f32 v{VM+2*T}, v{AV[T]}, v{AV[T]+1}\nv_cvt_pk_bf16_f32 v{VM+2*T+1}, v{AV[T]+2}, v{AV[T]+3}')
    A(f'''s_lshl_b32 s36, s40, 18
s_lshl_b32 s37, s33, 12
s_add_u32 s36, s36, s37
s_lshl_b32 s37, s32, 10
s_add_u32 s36, s36, s37
s_add_u32 s36, s36, {OFB}
s_add_u32 s37, s36, 0x20000''')
    for tt in range(2):
        regs = [S[k] + r for k in S if k[0] == tt for r in range(4)]
        m = 8 + 2 * tt; t1 = m + 1
        A(f'v_max3_f32 v{m}, v{regs[0]}, v{regs[1]}, v{regs[2]}')
        i = 3
        while i + 1 < len(regs):
            A(f'v_max3_f32 v{m}, v{m}, v{regs[i]}, v{regs[i+1]}'); i += 2
        A(f'''v_max_f32 v{m}, v{m}, v{regs[i]}
v_mov_b32 v{t1}, v{m}
v_permlane32_swap_b32 v{m}, v{t1}
v_max_f32 v{m}, v{m}, v{t1}
v_mov_b32 v{t1}, v{m}
v_permlane16_swap_b32 v{m}, v{t1}
v_max_f32 v{m}, v{m}, v{t1}
v_mul_f32 v{m}, s68, v{m}''')
        for r in regs: A(f'v_fma_f32 v{r}, v{r}, s68, -v{m}')
        for r in regs: A(f'v_exp_f32 v{r}, v{r}')
        for key in S:
            if key[0] != tt: continue
            o = PM[tt] if key[1] == 0 else PB[tt] + 2 * (key[1] - 1)
            A(f'v_cvt_pk_bf16_f32 v{o}, v{S[key]}, v{S[key]+1}\nv_cvt_pk_bf16_f32 v{o+1}, v{S[key]+2}, v{S[key]+3}')
        MFd(A, vr(LS[tt]), vr(ONES), vr(PB[tt]), '0')
        for T in range(2): MFd(A, vr(O(tt, T)), vr(VX[T]), vr(PB[tt]), '0')
        A(f'v_mfma_f32_16x16x16_bf16 {vr(LS[tt])}, {vr(ONE2,2)}, {vr(PM[tt],2)}, {vr(LS[tt])}')
        for T in range(2): A(f'v_mfma_f32_16x16x16_bf16 {vr(O(tt,T))}, {vr(VM+2*T,2)}, {vr(PM[tt],2)}, {vr(O(tt,T))}')
    for tt in range(2):
        A(f'v_rcp_f32 v12, v{LS[tt]}')
        for T in range(2):
            o = O(tt, T)
            for r in range(4): A(f'v_mul_f32 v{o+r}, v{o+r}, v12')
            A(f'v_cvt_pk_bf16_f32 v{OFR[tt]+2*T}, v{o}, v{o+1}\nv_cvt_pk_bf16_f32 v{OFR[tt]+2*T+1}, v{o+2}, v{o+3}')
        A(f'buffer_store_dwordx4 {vr(OFR[tt])}, v{W_L16}, s[8:11], s{36+tt} offen sc1')
    A(f'''s_waitcnt vmcnt(0)
s_barrier
s_cmp_lg_u32 s32, 0
s_cbranch_scc1 att_nf
s_lshl_b32 s36, s40, 7
s_add_u32 s36, s36, {FLAGS+F_O}''')
    atomic_flag(A, 's36', 8)
    A('att_nf:')
    prof(A, 16, 10, 40)
    A(f'''s_add_u32 s40, s40, {stride}
s_cmp_lt_u32 s40, 64
s_cbranch_scc1 att_top''')

def emit_out(A, nsets):
    A('''s_load_dwordx2 s[4:5], s[0:1], 40
s_load_dwordx4 s[20:23], s[0:1], 80
s_load_dwordx2 s[6:7], s[0:1], 0
s_waitcnt lgkmcnt(0)''')
    srd(A, 16, 4, 0x400000)
    srd(A, 24, 22, 0x200000)
    A('s_and_b32 s21, s21, 0xffff\ns_mov_b32 s22, 1409024\ns_mov_b32 s23, 0x20000')
    srd(A, 28, 6, 0x200000)
    A(f'''v_bfe_u32 v21, v{W_LANE}, 1, 4
v_lshlrev_b32 v21, 10, v21
v_lshrrev_b32 v22, 5, v{W_LANE}
v_lshl_add_u32 v21, v22, 5, v21
v_and_b32 v22, 1, v{W_LANE}
v_lshl_add_u32 v{W_VO}, v22, 4, v21
s_lshl_b32 s37, s48, 6
s_lshl_b32 s45, s32, 20
s_add_u32 s45, s45, s37
s_lshl_b32 s46, s32, 15
s_add_u32 s46, s46, s37''')
    def wo(ks, T): return ar(8 * ks + 4 * T)
    def wd(i, T): return vr(168 + 8 * i + 4 * T)
    units = []
    for u in range(6):
        dm = []; de = []
        for mp in range(4):
            i = 2 * u + (mp >> 1); m2 = mp & 1
            dm.append((20, 46, (128 * i + 16 * m2) * 1024))
            de.append([sub(wd(i, T) if i < 11 else vr(32 + 4 * T), 2 * m2, 2) for T in range(2)])
        units.append((dm, de))
    for u in range(16):
        dm = []; de = []
        for mp in range(4):
            ks = 2 * u + (mp >> 1); m2 = mp & 1
            dm.append((16, 45, (32 * ks + 16 * m2) * 1024))
            de.append([sub(wo(ks, T), 2 * m2, 2) for T in range(2)])
        units.append((dm, de))
    load_units(A, units)
    prof(A, 7, 36, dbg=15)
    ACC = [16, 20]; XR = 24; BF = 32; RW = 4; OA = 5
    A(f'''s_lshl_b32 s36, s32, 11
v_add_u32 v{RW}, s36, v{W_L16}
v_and_b32 v21, 15, v{W_LANE}
v_lshlrev_b32 v21, 10, v21
v_lshrrev_b32 v22, 4, v{W_LANE}
v_lshl_add_u32 v21, v22, 3, v21
s_lshl_b32 s36, s48, 6
s_lshl_b32 s37, s32, 5
s_add_u32 s36, s36, s37
v_add_u32 v{OA}, s36, v21
s_lshl_b32 s36, s32, 10
v_add_u32 v6, s36, v{W_L16}
v_mov_b32 v9, 0
out_top:
s_lshr_b32 s41, s40, 1
s_lshl_b32 s42, s41, 7
s_cmp_lg_u32 s32, 0
s_cbranch_scc1 out_h_ok
s_add_u32 s37, s42, {FLAGS+F_H}''')
    wait_cnt(A, 'out_h', 8, 9, 's37', 43, 8, sleep=2)
    A(f'''s_barrier
s_mul_i32 s43, s40, {44*1024}
s_add_u32 s43, s43, {HFB}''')
    for i in range(11):
        A(f's_add_u32 s36, s32, {4*i}\ns_min_u32 s36, s36, 42\ns_lshl_b32 s36, s36, 10\ns_add_u32 s36, s36, s43')
        A(f'buffer_load_dwordx4 {vr(BF+4*i)}, v{W_L16}, s[8:11], s36 offen sc1')
    A(f's_lshl_b32 s44, s40, 14\nbuffer_load_dwordx2 {vr(XR,2)}, v{OA}, s[28:31], s44 offen')
    for i in range(11):
        A(f's_waitcnt vmcnt({11-i})')
        for T in range(2): MFd(A, vr(ACC[T]), wd(i, T), vr(BF + 4 * i), '0' if i == 0 else vr(ACC[T]))
    A(f'''s_cmp_lg_u32 s32, 0
s_cbranch_scc1 out_o_ok
s_add_u32 s37, s42, {FLAGS+F_O}''')
    wait_cnt(A, 'out_o', 8, 9, 's37', 32, 8, sleep=1)
    A(f'''s_barrier
s_lshl_b32 s36, s40, 17
s_lshl_b32 s37, s32, 15
s_add_u32 s36, s36, s37
s_add_u32 s36, s36, {OFB}''')
    for i in range(32):
        A(f'buffer_load_dwordx4 {vr(BF+4*i)}, v{W_L16}, s[8:11], s36 offen offset:{(i&3)*1024} sc1')
        if i & 3 == 3: A('s_add_u32 s36, s36, 4096')
    for i in range(32):
        A(f's_waitcnt vmcnt({31-i})')
        for T in range(2): MFd(A, vr(ACC[T]), wo(i, T), vr(BF + 4 * i), vr(ACC[T]))
    A(f'''ds_write_b128 v{RW}, {vr(ACC[0])}
ds_write_b128 v{RW}, {vr(ACC[1])} offset:1024
s_waitcnt lgkmcnt(0)
s_barrier
s_cmp_ge_u32 s32, 2
s_cbranch_scc1 out_next''')
    for w in range(4): A(f'ds_read_b128 {vr(BF+4*w)}, v6 offset:{w*2048}')
    A(f'''v_lshlrev_b32 v26, 16, v{XR}
v_and_b32 v27, 0xffff0000, v{XR}
v_lshlrev_b32 v28, 16, v{XR+1}
v_and_b32 v29, 0xffff0000, v{XR+1}
s_waitcnt lgkmcnt(0)''')
    for r in range(4):
        A(f'v_add_f32 v{BF+r}, v{BF+r}, v{BF+4+r}\nv_add_f32 v{BF+8+r}, v{BF+8+r}, v{BF+12+r}')
    for r in range(4):
        A(f'v_add_f32 v{BF+r}, v{BF+r}, v{BF+8+r}\nv_add_f32 v{BF+r}, v{BF+r}, v{26+r}')
    A(f'''v_cvt_pk_bf16_f32 v30, v{BF}, v{BF+1}
v_cvt_pk_bf16_f32 v31, v{BF+2}, v{BF+3}
buffer_store_dwordx2 v[30:31], v{OA}, s[24:27], s44 offen
out_next:''')
    prof(A, 16, 10, 41)
    A(f'''s_add_u32 s40, s40, {nsets}
s_cmp_lt_u32 s40, 128
s_cbranch_scc1 out_top''')

NAME = 'parallel_sum__memory_aug_recurrent_mem_tr__geglu_ffn__prompt_kernel'

def gen_full(profile=False, warm=2, wb=1, **ckw):
    PROF['on'] = profile
    A = Asm()
    A.raw(f'; @launch kernel={NAME} grid=(256,1,1) block=(256,1,1) lds=163840')
    A.raw('.amdgcn_target "amdgcn-amd-amdhsa--gfx950"')
    A.raw(f'.text\n.globl {NAME}\n.p2align 8\n.type {NAME},@function')
    A.label(NAME)
    A('s_cmp_ge_u32 s2, 256\ns_cbranch_scc1 L_end')
    common_entry(A)
    A(f'''s_lshl_b32 s36, s3, 2
s_cmp_eq_u32 s3, 0
s_cselect_b32 s36, {DBG_CTICKET}, s36
v_mov_b32 v3, s36
v_mov_b32 v4, 1
v_mov_b32 v5, 0
s_cmp_lg_u32 s32, 0
s_cbranch_scc1 L_noticket
s_mov_b64 exec, 1
buffer_atomic_add v4, v3, s[12:15], 0 offen sc0 sc1
s_waitcnt vmcnt(0)
ds_write_b32 v5, v4
s_waitcnt lgkmcnt(0)
s_mov_b64 exec, -1
L_noticket:
s_barrier
ds_read_b32 v4, v5
s_waitcnt lgkmcnt(0)
v_readfirstlane_b32 s33, v4
s_barrier
s_cmp_ge_u32 s33, 32
s_cbranch_scc1 L_end
s_cmp_ge_u32 s3, 8
s_cbranch_scc1 L_end
s_lshl_b32 s91, s3, 5
s_add_u32 s91, s91, s33
s_lshl_b32 s91, s91, 9
s_add_u32 s91, s91, 0x6000000''')
    prof(A, 0, 36, dbg=8)
    A('''s_cmp_lg_u32 s3, 0
s_cbranch_scc1 L_worker''')
    emit_chain(A, gate=True, **ckw)
    if wb: A('s_waitcnt vmcnt(0)\ns_cmp_lg_u32 s32, 0\ns_cbranch_scc1 L_end\ns_cmp_lg_u32 s33, 0\ns_cbranch_scc1 L_end\nbuffer_wbl2 sc1')
    A('s_endpgm\nL_worker:')
    worker_setup(A)
    A('''s_sub_u32 s88, s3, 1
s_lshl_b32 s88, s88, 5
s_add_u32 s88, s88, s33          ; wi
s_mul_i32 s33, s88, 9363
s_lshr_b32 s33, s33, 16          ; h = wi/7
s_mul_i32 s36, s33, 7
s_sub_u32 s89, s88, s36          ; r = wi%7
s_cmp_lg_u32 s88, 0
s_cbranch_scc1 L_noinit''')
    emit_init(A)
    A('L_noinit:')
    if warm:
        A('s_cmp_ge_u32 s89, 5\ns_cbranch_scc1 L_ln')
        emit_warm(A, '' if warm == 2 else 'nt')
        A('s_branch L_noln\nL_ln:')
    A('''s_cmp_lt_u32 s89, 5
s_cbranch_scc1 L_noln
s_lshl_b32 s90, s33, 1
s_add_u32 s90, s90, s89
s_sub_u32 s90, s90, 5''')
    emit_ln(A, 90)
    A('L_noln:\ns_mov_b32 s40, s89')
    prof(A, 1, 36)
    emit_qkv(A)
    A('''s_cmp_lt_u32 s89, 5
s_cbranch_scc1 L_gu
s_sub_u32 s40, s89, 5''')
    emit_att(A, 2)
    A('''s_endpgm
L_gu:
s_mul_i32 s90, s33, 5
s_add_u32 s90, s90, s89          ; oi
s_cmp_ge_u32 s90, 154
s_cbranch_scc1 L_out
s_mul_i32 s40, s90, 5958
s_lshr_b32 s40, s40, 16
s_mul_i32 s36, s40, 11
s_sub_u32 s48, s90, s36''')
    emit_gu(A, 14)
    A('''L_out:
s_lshr_b32 s40, s90, 4
s_and_b32 s48, s90, 15''')
    emit_out(A, 10)
    if PROF['on'] == 'dbg': prof(A, 0, 36, dbg=12)
    A('L_end:\ns_endpgm')
    A.raw('.section .rodata,"a"\n.p2align 6')
    A.raw(kd(NAME))
    return A.text()

if __name__ == '__main__':
    assert all((w * 9363) >> 16 == w // 7 for w in range(224)) and all((w * 5958) >> 16 == w // 11 for w in range(160))
    hdr = open('parallel_sum__memory_aug_recurrent_mem_tr__geglu_ffn__prompt.s.ref').read().split('; Override')[0]
    kw = dict(dB0=40, dB1=16, dA=16, b3k=1, kfs=5)
    open('full.s', 'w').write(hdr + gen_full(**kw))
    open('diag.s', 'w').write(hdr + gen_full(profile='dbg', **kw))
    open('diag2.s', 'w').write(hdr + gen_full(profile='dbg', wb=0, **kw))
    open('full_prof.s', 'w').write(hdr + gen_full(profile=True, **kw))
```

```python
import sys, math, struct
sys.path.insert(0, 'dev')
from asmlib import Asm

FLAGS = 0x0000000
MEMB  = 0x0070000
HINTB = 0x0068000
PARTB = 0x0100000
GMEMB = 0x0080000
XFB   = 0x0200000
QFB   = 0x1000000
KVB   = 0x2000000
OFB   = 0x4000000
HFB   = 0x5000000
WS_BYTES = 0x10000000
DBG_TICKET = 0
DBG_CHAINCNT = 192
DBG_CTICKET = 128
L_SLOT = 163836
F_XN = 0x2000; F_H = 0x4000; F_O = 0x6000

def f32bits(x): return struct.unpack('<I', struct.pack('<f', x))[0]

def vr(b, n=4): return f'v[{b}:{b+n-1}]'

def srd(A, s, ptr_lo, nbytes):
    A(f'''s_mov_b32 s{s}, s{ptr_lo}
s_and_b32 s{s+1}, s{ptr_lo+1}, 0xffff
s_mov_b32 s{s+2}, {nbytes}
s_mov_b32 s{s+3}, 0x20000''')

PROFB = 0x6000000
PROF = {'on': False, 'n': 0}
def prof(A, idx, vt=None, sidx=None, cyc=False, dbg=None):
    if PROF['on'] == 'dbg':
        if dbg is None: return
        PROF['n'] += 1; l = f"prof_{PROF['n']}"
        A(f'''s_cmp_lg_u32 s32, 0
s_cbranch_scc1 {l}
s_memrealtime s[92:93]
s_waitcnt lgkmcnt(0)
s_and_b32 s92, s92, 0x3fffffff
{"s_not_b32 s92, s92" if dbg == 8 else ""}
s_mov_b64 exec, 1
v_mov_b32 v{vt}, s92
v_mov_b32 v{vt+1}, {dbg*4}
buffer_atomic_umax v{vt}, v{vt+1}, s[12:15], 0 offen sc1
s_mov_b64 exec, -1
{l}:''')
        return
    if not PROF['on']: return
    PROF['n'] += 1; l = f"prof_{PROF['n']}"
    A(f'''s_cmp_lg_u32 s32, 0
s_cbranch_scc1 {l}
s_memrealtime s[92:93]
s_memtime s[100:101]
s_waitcnt lgkmcnt(0)
{"s_bitcmp1_b32 s33, 0" + chr(10) + "s_cselect_b32 s92, s100, s92" if cyc else ""}
s_mov_b64 exec, 1
v_mov_b32 v{vt}, s92
v_mov_b32 v{vt+1}, 0''')
    if sidx is None: A(f's_add_u32 s93, s91, {idx*4}')
    else: A(f's_lshl_b32 s93, s{sidx}, 2\ns_add_u32 s93, s93, s91\ns_add_u32 s93, s93, {idx*4}')
    A(f'''buffer_store_dword v{vt}, v{vt+1}, s[8:11], s93 offen
s_mov_b64 exec, -1
{l}:''')

def wait_cnt(A, lbl, srdn, voff, soff, target, vt, sleep=0):
    A(f'''{lbl}:
buffer_load_dword v{vt}, v{voff}, s[{srdn}:{srdn+3}], {soff} offen sc1
s_waitcnt vmcnt(0)
v_readfirstlane_b32 s39, v{vt}
s_and_b32 s36, s39, 0xffff
s_cmp_ge_u32 s36, {target}
s_cbranch_scc1 {lbl}_ok
{f"s_sleep {sleep}" if sleep else ""}
s_sub_u32 s35, s35, 1
s_cbranch_scc0 {lbl}
s_mov_b32 s35, 0
{lbl}_ok:''')

def wait_dbg(A, lbl, off, target, vt, va):
    A(f'v_mov_b32 v{va}, {off}')
    wait_cnt(A, lbl, 12, va, 0, target, vt, sleep=2)

def confirm(A, lbl):
    A(f'''s_cmp_lg_u32 s95, 0
s_cbranch_scc1 {lbl}
s_mov_b32 s95, 1
s_barrier
v_mov_b32 v14, {L_SLOT}
ds_read_b32 v14, v14
s_waitcnt lgkmcnt(0)
v_readfirstlane_b32 s36, v14
s_barrier
s_cmp_eq_u32 s36, s94
s_cbranch_scc1 {lbl}
s_mov_b32 s94, s36
s_waitcnt vmcnt(0)
s_barrier
s_branch L_role
{lbl}:''')

L_MEM = 0; L_OQK = 8192; L_KV = 16384; L_W = 49152; L_WSZ = 28672
V_L16, V_IDX, V_PST, V_SELV, V_MST, V_QW, V_TR, V_B0, V_B1, V_B2, V_B3, V_WV = range(12)
T0, T1, T2, T3 = 12, 13, 14, 15
M = [16, 20, 24, 36, 28, 40, 32, 44]
AQ0, AQ1, AK0, AK1, AV0, AV1 = 48, 52, 56, 60, 64, 68
P = [72 + 8 * i for i in range(5)]
VB = [V_B0, V_B1, V_B2, V_B3]


def chain_frag_map():
    units = [(m, t) for m in 'qkv' for t in range(8)] + [('o', k, u) for k in range(4) for u in range(2)]
    backed = [('v', 0), ('v', 1), ('k', 0), ('k', 1), ('o', 1, 1), ('o', 2, 1), ('o', 3, 1)]
    res = [u for u in units if u not in backed]
    order = [('o', k, u) for k in range(4) for u in range(2)] + [(m, t) for m in 'vkq' for t in (4, 6, 5, 7, 1, 3, 0, 2)]
    loc = {}
    regs = [f'a[{8*i}:{8*i+7}]' for i in range(32)] + [f'v[{112+8*i}:{112+8*i+7}]' for i in range(18)]
    k = 0
    for u in res:
        for T in range(2):
            loc[u + (T,)] = ('reg', regs[k]); k += 1
    assert k == 50
    for i, u in enumerate(backed):
        for T in range(2):
            loc[u + (T,)] = ('lds', i, T)
    return loc, order

def sub(reg, lo, n):
    c = reg[0]; b = int(reg[2:reg.index(':')])
    return f'{c}[{b+lo}:{b+lo+n-1}]'

def emit_chain(A, sc='', tag='c', nsteps=63, gate=False, stamps=False, dB0=0, dB1=0, dA=0, nokv=0, nocomm=0, stsel=None, abl=(),
               prepos=20, depth=5, early1=1, nB=2, gB=24, dmapos=(8, 11, 14, 17), respos=(22, 29), reppos=25, b1pos=5, pf='sc1', dm='sc1', b3k=1, kfs=5, b2pos=42, wpol='', unroll=1, cpre=1, touch=1, swz=5, noB5=0, dI=0, budget=4000000, repidle=0, nA=2, gA=32, midA=2, hint=0, gH=12, pmid=None):
    loc, order = chain_frag_map()
    sc = (' ' + sc) if sc else ''
    A(f"""
s_load_dwordx4 s[16:19], s[0:1], 16
s_load_dwordx4 s[24:27], s[0:1], 32
s_load_dwordx2 s[4:5], s[0:1], 8
v_and_b32 v20, 63, v0                 ; lane
v_lshlrev_b32 v{V_L16}, 4, v20
s_mul_i32 s52, s32, {L_WSZ}
s_add_u32 s52, s52, {L_W}
s_mul_i32 s53, s32, 12288
v_bfe_u32 v21, v20, 4, 1               ; g>>1
v_bfe_u32 v22, v20, 3, 1               ; g&1
v_bfe_u32 v23, v20, 2, 1               ; R>>1
v_bfe_u32 v24, v20, 1, 1               ; R&1
v_and_b32 v25, 1, v20                  ; p
v_lshrrev_b32 v26, 5, v20              ; T
v_lshlrev_b32 v27, 3, v21
v_lshl_add_u32 v27, v22, 1, v27
v_lshl_add_u32 v27, v23, 2, v27
v_lshl_add_u32 v27, v24, 5, v27
v_lshlrev_b32 v27, 13, v27
v_lshl_add_u32 v27, v26, 5, v27
v_lshl_add_u32 v32, v25, 4, v27
v_lshlrev_b32 v27, 4, v22
v_lshl_add_u32 v27, v21, 2, v27
v_add_u32 v27, v27, v24
v_lshlrev_b32 v27, 10, v27
v_lshl_add_u32 v27, v26, 6, v27
v_lshl_add_u32 v27, v23, 5, v27
v_lshl_add_u32 v33, v25, 4, v27
v_lshlrev_b32 v27, 3, v20
v_add_u32 v34, s52, v27
v_add_u32 v35, s53, v27
s_lshl_b32 s36, s33, 8
s_lshl_b32 s37, s32, 6
s_add_u32 s36, s36, s37                ; h*256+w*64
s_lshl_b32 s37, s32, 1
""")
    for tau in range(8):
        A(f's_xor_b32 s38, s37, {tau}\ns_lshl_b32 s38, s38, 19\ns_add_u32 s{40+tau}, s38, s36')
    A('s_lshl_b32 s36, s33, 17\ns_lshl_b32 s37, s32, 8\ns_add_u32 s36, s36, s37')
    for k in range(4):
        A(f's_xor_b32 s38, s32, {k}\ns_lshl_b32 s38, s38, 15\ns_add_u32 s{48+k}, s38, s36')
    A(f"""
s_lshr_b32 s36, s33, 3
s_lshl_b32 s36, s36, 4
s_and_b32 s37, s32, 1
s_lshl_b32 s37, s37, 3
s_add_u32 s36, s36, s37
s_and_b32 s39, s33, 7
s_add_u32 s37, s36, s39
s_lshl_b32 s61, s37, 7                 ; Gm*128
v_lshrrev_b32 v21, 4, v20
v_bfe_u32 v22, v20, 2, 1
v_lshl_add_u32 v21, v21, 1, v22
v_lshlrev_b32 v23, 4, v21
v_and_b32 v22, 3, v20
v_lshl_add_u32 v23, v22, 2, v23
v_add_u32 v{V_MST}, s61, v23
v_lshlrev_b32 v24, 10, v21
v_lshl_add_u32 v24, v22, 1, v24
s_lshl_b32 s36, s36, 4
s_lshl_b32 s39, s39, 3
s_add_u32 s39, s36, s39
s_waitcnt lgkmcnt(0)
s_mov_b32 s20, s18
s_and_b32 s21, s19, 0xffff
s_mov_b32 s22, 0x400000
s_mov_b32 s23, 0x20000
s_and_b32 s17, s17, 0xffff
s_mov_b32 s18, 0x400000
s_mov_b32 s19, 0x20000
s_mov_b32 s28, s26
s_and_b32 s29, s27, 0xffff
s_mov_b32 s30, 0x400000
s_mov_b32 s31, 0x20000
s_and_b32 s25, s25, 0xffff
s_mov_b32 s26, 0x400000
s_mov_b32 s27, 0x20000
""")
    srd(A, 84, 4, 8192)
    A('buffer_load_ushort v38, v24, s[84:87], s39 offen\nbuffer_load_ushort v39, v24, s[84:87], s39 offen offset:64')
    NU = len(order)
    fin = {n: loc[order[n] + (0,)][1] for n in range(NU) if loc[order[n] + (0,)][0] == 'lds'}
    slot_of = {}; issue_at = {}; busy = {}; state = {'nxt': 0}
    def try_issue(now):
        while state['nxt'] < NU and state['nxt'] - now <= depth:
            nxt = state['nxt']
            if nxt in fin: cand = [fin[nxt]] if fin[nxt] not in busy else []
            else:
                soon = {fin[m] for m in fin if nxt < m <= nxt + depth + 1}
                cand = [s_ for s_ in (7, 8, 9, 0, 1, 2, 3, 4, 5, 6) if s_ not in busy and s_ not in soon]
            if not cand: break
            busy[cand[0]] = nxt; slot_of[nxt] = cand[0]; issue_at[nxt] = now; state['nxt'] += 1
    try_issue(-1)
    for n in range(NU):
        if n >= 1 and (n - 1) not in fin: del busy[slot_of[n - 1]]
        try_issue(n)
        assert n + 1 >= NU or (n + 1) in slot_of, n
    def issue(n):
        u = order[n]; sl = slot_of[n]
        for mp in range(4):
            if sl < 7: A(f's_add_u32 m0, s52, {sl*4096 + mp*1024}')
            else: A(f's_add_u32 m0, s53, {(sl-7)*4096 + mp*1024}')
            if u[0] == 'o':
                A(f's_add_u32 s38, s{48+u[1]}, {(8*(mp>>1)+2*(mp&1))*1024 + 128*u[2]}')
                A(f'buffer_load_dwordx4 v33, s[28:31], s38 offen {wpol} lds')
            else:
                base = {'q': 16, 'k': 20, 'v': 24}[u[0]]
                A(f's_add_u32 s38, s{40+u[1]}, {(16*(mp>>1)+(mp&1))*8192}')
                A(f'buffer_load_dwordx4 v32, s[{base}:{base+3}], s38 offen {wpol} lds')
    npre = 0
    for m in range(NU):
        if issue_at[m] == -1: issue(m); npre += 4
    if gate: confirm(A, f'{tag}_conf')
    A(f"""
s_mov_b32 s35, {budget}
s_lshl_b32 s36, s32, 11                ; w*2048
v_add_u32 v{V_B0}, s36, v{V_L16}
v_xor_b32 v{V_B1}, 2048, v{V_B0}
v_xor_b32 v{V_B2}, 4096, v{V_B0}
v_xor_b32 v{V_B3}, 6144, v{V_B0}
s_add_u32 s54, s36, {MEMB}             ; sMemRd
s_mov_b32 s55, {MEMB + 8192}           ; sMemWr
s_mov_b32 s56, {GMEMB}
v_add_u32 v{V_WV}, s52, v{V_L16}
v_and_b32 v21, 8, v20
v_cmp_eq_u32 vcc, 0, v21
v_mov_b32 v22, 0xeeee
v_mov_b32 v23, 0x4444
v_cndmask_b32 v{V_IDX}, v22, v23, vcc
s_mov_b32 s80, 0x00ff00ff
s_mov_b32 s81, 0x00ff00ff
v_lshrrev_b32 v21, 5, v20
v_bfe_u32 v22, v20, 2, 2
v_lshl_add_u32 v21, v21, 2, v22
v_lshlrev_b32 v21, 12, v21
v_bfe_u32 v22, v20, 4, 1
v_lshl_add_u32 v21, v22, 6, v21
v_and_b32 v22, 3, v20
v_lshl_add_u32 v21, v22, 4, v21
s_lshl_b32 s36, s32, 15
v_add_u32 v21, s36, v21
v_lshrrev_b32 v22, 12, v21
v_mul_u32_u24 v22, {swz}, v22
v_add_u32 v22, s33, v22
v_and_b32 v22, 31, v22
v_lshl_add_u32 v{V_PST}, v22, 7, v21
s_mov_b32 s60, 0                       ; part slot offset
s_mov_b32 s58, {PARTB}
s_mov_b32 s59, {PARTB + 0x20000}
; reducer G = 32*(w&1)+h
s_and_b32 s36, s32, 1
s_lshl_b32 s36, s36, 5
s_add_u32 s36, s36, s33
s_lshl_b32 s37, s36, 12
s_add_u32 s62, s37, {PARTB}
s_mov_b32 s63, s62
; reset region: G2=32*(w>>1)+h, half (w&1)
s_lshr_b32 s38, s32, 1
s_lshl_b32 s38, s38, 5
s_add_u32 s38, s38, s33
s_lshl_b32 s38, s38, 12
s_and_b32 s39, s32, 1
s_lshl_b32 s39, s39, 11
s_add_u32 s38, s38, s39
s_add_u32 s65, s38, {PARTB}
s_lshl_b32 s38, s32, 12
s_add_u32 s66, s38, {L_KV}
s_add_u32 s67, s38, {L_KV + 16384}
s_lshl_b32 s39, s33, 20
s_add_u32 s38, s38, s39
s_add_u32 s57, s38, {KVB}
s_mov_b32 s68, {f32bits(128 ** -0.5 * math.log2(math.e))}
v_lshrrev_b32 v21, 5, v20
v_and_b32 v22, 15, v20
v_lshl_add_u32 v21, v21, 4, v22
v_lshlrev_b32 v21, 4, v21
v_bfe_u32 v22, v20, 4, 1
v_lshl_add_u32 v21, v22, 3, v21
s_lshl_b32 s38, s32, 11
v_add_u32 v{V_QW}, s38, v21
v_lshrrev_b32 v21, 2, v20
v_lshlrev_b32 v21, 4, v21
v_and_b32 v22, 1, v20
v_lshl_add_u32 v{V_TR}, v22, 3, v21
; selector value and masks: i=l&15 ; val=(i&3)==0?0x3f80:(i&3)==1?0x3f800000:0 ; mask q: (i>>2)==q
v_and_b32 v21, 3, v20
v_mov_b32 v22, 0
v_mov_b32 v23, 0x3f80
v_cmp_eq_u32 vcc, 0, v21
v_cndmask_b32 v22, v22, v23, vcc
v_mov_b32 v23, 0x3f800000
v_cmp_eq_u32 vcc, 1, v21
v_cndmask_b32 v{V_SELV}, v22, v23, vcc
s_mov_b32 s72, 0x000f000f
s_mov_b32 s73, 0x000f000f
s_mov_b32 s74, 0x00f000f0
s_mov_b32 s75, 0x00f000f0
s_mov_b32 s76, 0x0f000f00
s_mov_b32 s77, 0x0f000f00
s_mov_b32 s78, 0xf000f000
s_mov_b32 s79, 0xf000f000
s_mov_b32 s82, -1
s_mov_b32 s83, 0
s_waitcnt vmcnt({npre})
v_lshl_or_b32 v{T3}, v39, 16, v38
v_mov_b32 v28, -1
v_mov_b32 v29, -1
v_mov_b32 v30, -1
v_mov_b32 v31, -1
buffer_store_dwordx4 v[28:31], v{V_L16}, s[8:11], s65 offen sc1
buffer_store_dwordx4 v[28:31], v{V_L16}, s[8:11], s65 offen offset:1024 sc1
s_add_u32 s64, s65, 0x40000
buffer_store_dwordx4 v[28:31], v{V_L16}, s[8:11], s64 offen sc1
buffer_store_dwordx4 v[28:31], v{V_L16}, s[8:11], s64 offen offset:1024 sc1
s_add_u32 s64, s65, 0x80000
buffer_store_dwordx4 v[28:31], v{V_L16}, s[8:11], s64 offen sc1
buffer_store_dwordx4 v[28:31], v{V_L16}, s[8:11], s64 offen offset:1024 sc1
s_add_u32 s64, s65, 0xc0000
s_lshl_b32 s38, s33, 10
s_lshl_b32 s39, s32, 8
s_add_u32 s38, s38, s39
v_lshrrev_b32 v21, 2, v{V_L16}
v_mov_b32 v22, 0
{"buffer_store_dword v22, v21, s[8:11], s38 offen sc1" if gate else ""}
v_lshrrev_b32 v21, 3, v20
v_lshlrev_b32 v21, 13, v21
v_and_b32 v22, 7, v20
v_lshl_add_u32 v21, v22, 4, v21
v_add_u32 v21, s61, v21
s_cmp_ge_u32 s32, 2
s_cbranch_scc1 {tag}_init_g
s_mov_b32 s38, {MEMB}
s_mov_b64 exec, 0xffffff00
buffer_store_dwordx4 v[28:31], v21, s[8:11], s38 offen sc1
s_mov_b64 exec, s[80:81]
buffer_store_dword v{T3}, v{V_MST}, s[8:11], s38 offen sc1
s_mov_b64 exec, -1
s_branch {tag}_init_done
{tag}_init_g:""")
    for i in range(8):
        A(f's_mov_b32 s38, {GMEMB + i * 65536}\nbuffer_store_dwordx4 v[28:31], v21, s[8:11], s38 offen sc1')
    A(f'{tag}_init_done:')
    for n in range(NU):
        u = order[n]; sl = slot_of[n]
        later = sum(1 for m in range(n + 1, NU) if issue_at[m] < n)
        A(f's_waitcnt vmcnt({0 if n == 0 else 4*later})')
        if n == 0:
            A(f"""s_mov_b64 exec, 1
v_mov_b32 v36, {'s2' if gate else '1'}
v_mov_b32 v37, {DBG_CHAINCNT}
buffer_atomic_add v36, v37, s[12:15], 0 offen sc1
s_mov_b64 exec, -1""")
        av = 34 if sl < 7 else 35
        off = (sl if sl < 7 else sl - 7) * 4096
        for T in range(2):
            l = loc[u + (T,)]
            dst = l[1] if l[0] == 'reg' else f'v[{40+8*T}:{47+8*T}]'
            for mp in range(4):
                A(f'ds_read_b64_tr_b16 {sub(dst, 2*mp, 2)}, v{av} offset:{off + mp*1024 + T*512}')
        if n == NU - 10:
            A(f'v_mov_b32 v56, {DBG_CHAINCNT}')
            A('buffer_load_dword v58, v56, s[12:15], 0 offen sc1')
        if n == NU - 4 and cpre:
            A(f'''s_getpc_b64 s[6:7]
{tag}_pc:
s_add_u32 s6, s6, {tag}0_top-{tag}_pc
s_addc_u32 s7, s7, 0
v_lshlrev_b32 v60, 2, v{V_L16}
global_load_dword v61, v60, s[6:7]''')
        if n == NU - 2 and touch:
            A(f'v_lshlrev_b32 v64, 1, v{V_L16}')
            for i in range(3): A(f's_add_u32 s37, s65, {i*0x40000}\nbuffer_load_dword v65, v64, s[8:11], s37 offen sc1')
            for i in range(3): A(f's_add_u32 s37, s54, {i*8192}\nbuffer_load_dword v65, v64, s[8:11], s37 offen sc1')
        if n == NU - 3:
            assert issue_at[n] >= NU - 10
            A(f'''v_readfirstlane_b32 s4, v58
v_lshrrev_b32 v56, 2, v{V_L16}
s_lshl_b32 s37, s33, 8
buffer_load_dword v57, v56, s[8:11], s37 offen sc1''')
        todo = [m for m in range(NU) if issue_at[m] == n]
        if todo:
            A('s_waitcnt lgkmcnt(8)')
            for m in todo: issue(m)
        if n in fin:
            A('s_waitcnt lgkmcnt(0)')
            for T in range(2):
                for hf in range(2):
                    A(f'ds_write_b128 v{V_WV}, {vr(40+8*T+4*hf)} offset:{sl*4096 + T*2048 + hf*1024}')
            A('s_waitcnt lgkmcnt(0)')
    A('s_waitcnt lgkmcnt(0)\ns_barrier')
    prof(A, 1, 36, dbg=9)
    A(f"""s_waitcnt vmcnt(0)
v_cmp_le_u32 s[70:71], 4, v57
s_mov_b32 s39, s4
s_and_b32 s4, s4, 0xffff
s_cmp_ge_u32 s4, 128
s_cbranch_scc1 {tag}_wreg_ok
s_mov_b64 s[70:71], 0""")
    wait_dbg(A, f'{tag}_wreg', DBG_CHAINCNT, 128, 36, 37)
    A('s_lshr_b32 s2, s39, 16')
    A('s_mov_b32 s86, 0x3f803f80\ns_mov_b32 s87, 0x3f803f80\ns_mov_b32 s34, 0\ns_mov_b32 s69, 0')
    poolmap = {('v', 0, 0): M[2], ('v', 0, 1): M[6], ('v', 1, 0): M[5], ('v', 1, 1): P[0],
               ('k', 0, 0): P[1], ('k', 0, 1): P[2], ('k', 1, 0): P[3], ('k', 1, 1): P[4],
               ('o', 1, 1, 0): P[0], ('o', 1, 1, 1): P[1], ('o', 2, 1, 0): P[2], ('o', 2, 1, 1): P[3],
               ('o', 3, 1, 0): P[4], ('o', 3, 1, 1): M[2]}
    def plh(f, hf, tg):
        l = loc[f]
        A.ds(f'ds_read_b128 {vr(poolmap[f] + 4*hf)}, v{V_WV} offset:{l[1]*4096 + l[2]*2048 + hf*1024}', tg)
    def pool_load(f, tg): plh(f, 0, tg); plh(f, 1, tg)
    def kv_ready(lbl):
        A(f's_bitcmp1_b64 s[70:71], s36\ns_cbranch_scc0 {lbl}_slow\n{lbl}_ok:')
    def kv_slow(lbl):
        A(f"""{lbl}_slow:
v_lshrrev_b32 v{T0}, 2, v{V_L16}
s_lshl_b32 s37, s33, 8
buffer_load_dword v{T1}, v{T0}, s[8:11], s37 offen sc1
s_waitcnt vmcnt(0)
v_cmp_le_u32 s[70:71], 4, v{T1}
s_nop 1
s_bitcmp1_b64 s[70:71], s36
s_cbranch_scc1 {lbl}_ok
s_sub_u32 s35, s35, 1
s_cbranch_scc0 {lbl}_slow
s_mov_b32 s35, 0
s_branch {lbl}_ok""")
    def z(a): A(f'v_mov_b64 v[{a}:{a+1}], 0\nv_mov_b64 v[{a+2}:{a+3}], 0')
    def prep_a(mid=None):
        fr = [('v', 1, 1), ('k', 0, 0), ('k', 0, 1), ('k', 1, 0), ('k', 1, 1), ('v', 0, 0), ('v', 0, 1)]
        for i, f in enumerate(fr):
            pool_load(f, 'pi')
            if mid and i in mid: mid[i]()
        for r in (AK0, AK1, AV0, AV1): z(r)
    def prep_b():
        pool_load(('v', 1, 0), 'pi')
    def delay(n):
        while n > 0:
            k = min(n, 16); A(f's_nop {k-1}'); n -= k
    prof(A, 2, 36)
    if PROF['on'] is True: A('s_memtime s[96:97]')
    slow = []
    for i in range(3):
        A(f's_mov_b32 s36, {i}'); kv_ready(f'{tag}_kv{i}'); slow.append(f'{tag}_kv{i}')
    A('s_mov_b32 m0, s66')
    for i in range(4): A(f'buffer_load_dwordx4 v{V_L16}, s[8:11], s57 offen offset:{i*1024} sc1 lds')
    A('s_add_u32 s57, s57, 16384')
    prep_a()
    A.wait_lds_all()
    if PROF['on'] == 'dbg': prof(A, 0, T0, dbg=10)
    acc = {('q', 0): AQ0, ('q', 1): AQ1, ('k', 0): AK0, ('k', 1): AK1, ('v', 0): AV0, ('v', 1): AV1}
    def wreg(frag):
        l = loc[frag]
        return l[1] if l[0] == 'reg' else vr(poolmap[frag], 8)
    def SM(m, tau, T): A(f'v_smfmac_f32_16x16x64_bf16 {vr(acc[(m,T)])}, {vr(M[tau])}, {wreg((m,tau,T))}, v{V_IDX}')
    STP = [40,42,44,46,48,50,52,84,98,16,90,92,94,100]
    cur = {'par': 0}
    def stamp(i):
        if stamps in ('rt', 'cal'):
            if (cur['par'] == 1 and i >= 9) or (cur['par'] == 0 and i <= 2): A(f'{"s_memrealtime" if stamps == "rt" else "s_memtime"} s[{STP[i]}:{STP[i]+1}]')
        elif stamps and cur['par'] == 0 and (stsel is None or i in stsel): A(f's_memtime s[{STP[i]}:{STP[i]+1}]')
    def cal(i, par):
        if stamps == 'cal' and par == 1: A(f's_memtime s[{STP[i]}:{STP[i]+1}]')
    def wrap(r): return f's_bitset0_b32 {r}, 15\n'
    retry = {}; lates = []
    def step(par, ltag, sc):
        t = f'{ltag}{par}'
        KOFF = L_KV + par * 16384; VOFF = KOFF + 8192
        VK, VV = (V_L16, V_B0) if unroll == 2 else (T0, T1)
        A(f'{t}_top:')
        cur['par'] = par
        stamp(0)
        def ldA():
            for u in range(2): A(f'buffer_load_dwordx4 {vr(M[u])}, v{V_L16}, s[8:11], s54 offen offset:{u*1024} sc1')
        def nanA(t=t, ldA=ldA):
            A(f'{t}_reA:\ns_cmp_lg_u32 s3, 0\ns_cbranch_scc1 {t}_okA')
            ldA()
            A('s_nop 3')
            for r in (AK0, AK1, AV0, AV1): z(r)
            A(f"""{t}_scnA:
s_waitcnt vmcnt({2*nA-2})
v_max3_u32 v{T0}, v{M[0]}, v{M[0]+1}, v{M[0]+2}
v_max3_u32 v{T1}, v{M[0]+3}, v{M[1]}, v{M[1]+1}
v_max3_u32 v{T0}, v{T0}, v{M[1]+2}, v{M[1]+3}
v_max_u32 v{T0}, v{T0}, v{T1}
v_cmp_eq_u32 vcc, -1, v{T0}
s_mov_b32 s3, 1
s_cbranch_vccz {t}_chkA
s_mov_b64 exec, vcc""")
            ldA()
            A(f"""s_mov_b64 exec, -1
s_sub_u32 s35, s35, 1
s_cbranch_scc0 {t}_scnA
s_mov_b32 s35, 0
s_branch {t}_chkA""")
        lates.append(nanA)
        A(f's_mov_b32 m0, s{66+(par^1)}' if unroll == 2 else 's_sub_u32 m0, s67, s69')
        A('s_mov_b32 s3, 0')
        if not nocomm: ldA()
        prep_b()
        for i in range(nA - 1):
            delay(gA)
            if not nocomm: ldA()
        A(f's_waitcnt lgkmcnt(0)\n{t}_chkA:')
        if not nocomm: A(f's_waitcnt vmcnt({2*nA-1})')
        A.lds_q = []
        stamp(1)
        KX = {(tt, k): P[k] + 4 * (tt - 1) for tt in (1, 2) for k in range(4)}
        QF = [AQ0, AQ1, M[0], M[1]]
        KM = [M[2], M[4], M[6], M[3]]
        VX = [P[4], P[4] + 4]
        def ldM(tau): A.ds(f'ds_read_b128 {vr(M[tau])}, v{VB[tau>>1]} offset:{L_MEM + (tau&1)*1024}', f'm{tau}')
        def ldKX(tt, k): A.ds(f'ds_read_b128 {vr(KX[(tt,k)])}, v{VK} offset:{KOFF + (tt-1)*4096 + k*1024}', 'kx')
        def ldVX(T): A.ds(f'ds_read_b128 {vr(VX[T])}, v{VV} offset:{VOFF + T*1024}', 'kx')
        def ldQF(k):
            for hf in range(2): A.ds(f'ds_read_b64_tr_b16 {vr(QF[k]+2*hf,2)}, v{V_TR} offset:{L_OQK + k*2048 + 1024 + hf*256}', f'qf{k}')
        def ldKM(k):
            for hf in range(2): A.ds(f'ds_read_b64_tr_b16 {vr(KM[k]+2*hf,2)}, v{V_TR} offset:{L_OQK + k*2048 + 1536 + hf*256}', f'km{k}')
        def fold(a0, a1, t0):
            ops = []
            for r in range(4): ops.append(f'v_permlane32_swap_b32 v{a0+r}, v{a1+r}')
            for r in range(4): ops.append(f'v_add_f32 v{a0+r}, v{a0+r}, v{a1+r}')
            ops.append(f'v_cvt_pk_bf16_f32 v{t0}, v{a0}, v{a0+1}')
            ops.append(f'v_cvt_pk_bf16_f32 v{t0+1}, v{a0+2}, v{a0+3}')
            return ops
        two = lambda m, tau: [(m, tau, 0), (m, tau, 1)]
        sms = []
        for m in 'vkq': sms += two(m, 0) + two(m, 1)
        for m in 'qkv':
            for tau in (2, 4, 6, 3, 5, 7): sms += two(m, tau)
        assert len(sms) == 48 and len(set(sms)) == 48
        pre = {i: [] for i in range(48)}; post = {i: [] for i in range(48)}
        post[0].append(lambda: A(f'ds_write_b128 v{V_B0}, {vr(M[0])} offset:{L_MEM}'))
        if not nocomm: pre[1].append(lambda: A(f's_waitcnt vmcnt({2*nA-2})'))
        post[1].append(lambda: A(f'ds_write_b128 v{V_B0}, {vr(M[1])} offset:{L_MEM+1024}'))
        post[4].append(lambda: A(f'v_cmp_u_f32 vcc, v{AV0}, v{AV0+1}\nv_cmp_u_f32 s[6:7], v{AV0+2}, v{AV0+3}'))
        for i, r in enumerate((AQ0, AQ0 + 2, AQ1, AQ1 + 2)): post[(2, 3, 6, 7)[i]].append(lambda r=r: A(f'v_mov_b64 v[{r}:{r+1}], 0'))
        sms[1], sms[2] = sms[2], sms[1]
        if not nocomm: pre[dmapos[0]].append(lambda: A('s_waitcnt vmcnt(0)'))
        def brA():
            if not nocomm: A(f's_or_b64 vcc, vcc, s[6:7]\ns_cbranch_scc1 {t}_reA')
            A(f'{t}_okA:')
        def b1():
            A('s_waitcnt lgkmcnt(0)\ns_barrier')
            stamp(2)
        pre[6].append(brA)
        pre[b1pos + 1].append(b1)
        for i, tau in enumerate((2, 4, 6, 3, 5, 7)): post[b1pos + 1 + i].append(lambda tau=tau: ldM(tau))
        for i_, tau_ in enumerate((2, 4, 6, 3, 5, 7)): pre[12 + 2 * i_].append(lambda tau_=tau_: A.wait_lds(f'm{tau_}'))
        kxs = [(tt, k) for k in range(4) for tt in (1, 2)]
        for i, pos in enumerate(range(b1pos + 7, b1pos + 15)): post[pos].append(lambda i=i: ldKX(*kxs[i]))
        post[24].append(lambda: ldVX(0)); post[26].append(lambda: ldVX(1))
        if unroll == 1:
            post[8].append(lambda: A(f'v_add_u32 v{T0}, s69, v{V_L16}'))
            post[max(prepos + 1, 16)].append(lambda: A(f'v_add_u32 v{T1}, s69, v{V_B0}'))
        for i, pos in enumerate(dmapos): post[pos].append(lambda i=i: A(f'buffer_load_dwordx4 v{V_L16}, s[8:11], s57 offen offset:{i*1024} {dm} lds'))
        if pf is not None:
            post[prepos - 1].append(lambda: A(f'v_lshlrev_b32 v{T1}, 2, v{V_L16}\ns_add_u32 s36, s57, 16384'))
            post[prepos].append(lambda: A(f'buffer_load_dword v{T2}, v{T1}, s[8:11], s36 offen {pf}'))
        if not repidle:
            post[reppos - 1].append(lambda: A('s_cmp_ge_u32 s32, 2'))
            post[reppos].append(lambda: A(f's_cbranch_scc1 {t}_norep\ns_mov_b64 exec, s[80:81]\nbuffer_store_dword v{T3}, v{V_MST}, s[8:11], s56 offen sc1\ns_mov_b64 exec, -1\n{t}_norep:'))
        post[reppos + 1].append(lambda: prof(A, 16, M[1], 34, cyc=True))
        post[respos[0] - 2].append(lambda: A(f'v_mov_b64 v[{M[0]}:{M[0]+1}], -1'))
        post[respos[0] - 1].append(lambda: A(f'v_mov_b64 v[{M[0]+2}:{M[0]+3}], -1'))
        assert respos[0] - 2 >= 12
        post[respos[0]].append(lambda: A(f'buffer_store_dwordx4 {vr(M[0])}, v{V_L16}, s[8:11], s64 offen{sc}'))
        post[respos[1]].append(lambda: A(f'buffer_store_dwordx4 {vr(M[0])}, v{V_L16}, s[8:11], s64 offen offset:1024{sc}'))
        post[11].append(lambda: stamp(3)); post[23].append(lambda: stamp(4)); post[35].append(lambda: stamp(5))
        for i, op in enumerate(fold(AQ0, AQ1, T0)): post[26 + i].append(lambda op=op: A(op))
        post[36].append(lambda: A.ds(f'ds_write_b64 v{V_QW}, v[{T0}:{T1}] offset:{L_OQK+1024}', 'qw'))
        for i, op in enumerate(fold(AK0, AK1, T0)): post[38 + (i * kfs) // 10].append(lambda op=op: A(op))
        post[38 + kfs].append(lambda: A.ds(f'ds_write_b64 v{V_QW}, v[{T0}:{T1}] offset:{L_OQK+1536}', 'kw'))
        pre[b2pos].append(lambda: (A.wait_lds('qw'), A('s_barrier')))
        qpos = [p_ for p_ in range(b2pos, 48) if p_ != 38 + kfs][:4]
        for k, pos in enumerate(qpos): post[pos].append(lambda k=k: ldQF(k))
        for i, f in enumerate(sms):
            for fn in pre[i]: fn()
            SM(*f)
            n0 = len(A.items)
            for fn in post[i]: fn()
            gap = A.items[n0:]
            if not any(isinstance(x, str) for x in gap):
                A.items[n0:] = [x for x in gap if x.kind != 'valu'] + [x for x in gap if x.kind == 'valu']
        stamp(6)
        ST = {1: AK0, 2: AK1, 0: M[5]}
        VM = M[7]; ONES = KM[0]; ONE2 = KM[1]; PM = KM[1] + 2; PB = KM[2]; LS = KM[3]; O = [AV0, AV1]
        def MF(d, a, b, c): A(f'v_mfma_f32_16x16x32_bf16 {vr(d)}, {vr(a)}, {vr(b)}, {c}')
        def MF16(d, a, b): A(f'v_mfma_f32_16x16x16_bf16 {vr(d)}, {vr(a,2)}, {vr(b,2)}, {vr(d)}')
        late = [(('o', k, 1, T), hf) for k in (1, 2, 3) for T in (0, 1) for hf in (0, 1)]
        vmc = [f'v_cvt_pk_bf16_f32 v{VM+i}, v{(AV0,AV1)[i>>1]+2*(i&1)}, v{(AV0,AV1)[i>>1]+2*(i&1)+1}' for i in range(4)]
        n = 0
        for k in range(4):
            A.wait_lds(f'qf{k}')
            if k == b3k:
                A.wait_lds('kw'); A('s_barrier')
            for tt in (1, 2):
                MF(ST[tt], KX[(tt, k)], QF[k], '0' if k == 0 else vr(ST[tt]))
                if 2 * b3k <= n < 2 * b3k + 4: ldKM(n - 2 * b3k)
                elif n >= 2: plh(*late.pop(0), 'piii')
                if vmc and n >= 2 and not (2 * b3k <= n < 2 * b3k + 4 and len(vmc) <= 2): A(vmc.pop(0))
                n += 1
        WA = QF
        for k in range(4):
            A.wait_lds(f'km{k}')
            MF(ST[0], KM[k], QF[k], '0' if k == 0 else vr(ST[0]))
            plh(*late.pop(0), 'piii')
            if k == 0: A(f'v_mov_b64 v[{ONES}:{ONES+1}], s[86:87]')
            if k == 1: A(f'v_max3_f32 v{T0}, v{ST[1]}, v{ST[1]+1}, v{ST[1]+2}')
            if k == 2: A(f'v_max3_f32 v{T1}, v{ST[1]+3}, v{ST[2]}, v{ST[2]+1}')
            if k == 3: A(f'v_max3_f32 v{T0}, v{T0}, v{ST[2]+2}, v{ST[2]+3}')
            if vmc and k < 2: A(vmc.pop(0))
        assert not vmc
        stamp(7)
        A(f"""v_max_f32 v{T0}, v{T0}, v{T1}
v_mov_b32 v{T1}, v{T0}
v_mov_b64 v[{ONES+2}:{ONES+3}], s[86:87]
v_cndmask_b32 v{ONE2}, 0, v{ONES}, s[82:83]
v_permlane32_swap_b32 v{T0}, v{T1}
v_cndmask_b32 v{ONE2+1}, 0, v{ONES}, s[82:83]
v_max3_f32 v{T0}, v{T0}, v{T1}, v{ST[0]}
v_max3_f32 v{T1}, v{ST[0]+1}, v{ST[0]+2}, v{ST[0]+3}
v_max_f32 v{T0}, v{T0}, v{T1}
v_mov_b32 v{T1}, v{T0}""")
        z(WA[0])
        A(f"""v_permlane16_swap_b32 v{T0}, v{T1}
v_max_f32 v{T0}, v{T0}, v{T1}
v_mul_f32 v{T0}, s68, v{T0}""")
        for base in (ST[1], ST[2]):
            for r in range(4): A(f'v_fma_f32 v{base+r}, v{base+r}, s68, -v{T0}')
        for base in (ST[1], ST[2]):
            for r in range(4): A(f'v_exp_f32 v{base+r}, v{base+r}')
        b = ST[0]
        A(f"""v_cvt_pk_bf16_f32 v{PB}, v{ST[1]}, v{ST[1]+1}
v_cvt_pk_bf16_f32 v{PB+1}, v{ST[1]+2}, v{ST[1]+3}
v_cvt_pk_bf16_f32 v{PB+2}, v{ST[2]}, v{ST[2]+1}
v_cvt_pk_bf16_f32 v{PB+3}, v{ST[2]+2}, v{ST[2]+3}
v_fma_f32 v{b}, v{b}, s68, -v{T0}
v_fma_f32 v{b+1}, v{b+1}, s68, -v{T0}""")
        MF(LS, ONES, PB, '0')
        plh(*late.pop(0), 'piii')
        A(f'v_fma_f32 v{b+2}, v{b+2}, s68, -v{T0}\nv_fma_f32 v{b+3}, v{b+3}, s68, -v{T0}')
        MF(O[0], VX[0], PB, '0')
        plh(*late.pop(0), 'piii')
        A(f'v_exp_f32 v{b}, v{b}')
        MF(O[1], VX[1], PB, '0')
        A(f"""v_exp_f32 v{b+1}, v{b+1}
v_exp_f32 v{b+2}, v{b+2}
v_exp_f32 v{b+3}, v{b+3}
v_cvt_pk_bf16_f32 v{PM}, v{b}, v{b+1}
v_cvt_pk_bf16_f32 v{PM+1}, v{b+2}, v{b+3}""")
        z(WA[1])
        MF16(LS, ONE2, PM); z(WA[2]); MF16(O[0], VM, PM); z(WA[3]); MF16(O[1], VM + 2, PM)
        stamp(8)
        OF = [AK0, AK1, M[5], PB]
        A(f'v_rcp_f32 v{T0}, v{LS}')
        for T in range(2):
            for r in range(4): A(f'v_mul_f32 v{O[T]+r}, v{O[T]+r}, v{T0}')
            A(f'v_cvt_pk_bf16_f32 v{OF[0]+2*T}, v{O[T]}, v{O[T]+1}\nv_cvt_pk_bf16_f32 v{OF[0]+2*T+1}, v{O[T]+2}, v{O[T]+3}')
        A.ds(f'ds_write_b128 v{V_B0}, {vr(OF[0])} offset:{L_OQK}', 'ow')
        stamp(9)
        def SO(k, a): A(f'v_smfmac_f32_16x16x64_bf16 {vr(WA[a])}, {vr(OF[k])}, {wreg(("o",k,a>>1,a&1))}, v{V_IDX}')
        R = QF; SEL = M[7]; RA = M[5]
        selops = [f'v_cndmask_b32 v{SEL+q}, 0, v{V_SELV}, s[{72+2*q}:{73+2*q}]' for q in range(4)]
        for a in range(4):
            SO(0, a); A(selops[a])
        A('s_waitcnt lgkmcnt(0)\ns_barrier'); A.lds_q = []
        for k in range(1, 4): A.ds(f'ds_read_b128 {vr(OF[k])}, v{VB[k]} offset:{L_OQK}', f'o{k}')
        for k in range(1, 4):
            A.wait_lds(f'o{k}')
            for a in (0, 1):
                SO(k, a)
                if late: plh(*late.pop(0), 'piv')
        PK = [AV0, AV1]
        n = 0
        for k in range(1, 4):
            if k == 3: A.wait_lds('piv')
            for a in (2, 3):
                SO(k, a); n += 1
                if early1:
                    if n == 3:
                        for r in range(4): A(f'v_cvt_pk_bf16_f32 v{PK[0]+r}, v{WA[0]+r}, v{WA[1]+r}')
                    if n == 4:
                        A(f'buffer_store_dwordx4 {vr(PK[0])}, v{V_PST}, s[8:11], s58 offen{sc}'); cal(3, par)
                elif n >= 3: A(f'v_cvt_pk_bf16_f32 v{PK[0]+n-3}, v{WA[0]+n-3}, v{WA[1]+n-3}')
        if not early1: A(f'buffer_store_dwordx4 {vr(PK[0])}, v{V_PST}, s[8:11], s58 offen{sc}')
        for r in range(4): A(f'v_cvt_pk_bf16_f32 v{PK[1]+r}, v{WA[2]+r}, v{WA[3]+r}')
        A(f'buffer_store_dwordx4 {vr(PK[1])}, v{V_PST}, s[8:11], s59 offen{sc}')
        stamp(10)
        def book():
            A(f"""s_add_u32 s54, s54, 8192
{wrap('s54')}s_add_u32 s56, s56, 8192
s_add_u32 s57, s57, {0 if nokv else 16384}
s_add_u32 s64, s65, s60
s_add_u32 s60, s60, 0x40000
s_and_b32 s60, s60, 0xc0000
s_add_u32 s58, s60, {PARTB}
s_add_u32 s59, s60, {PARTB + 0x20000}
s_xor_b32 s69, s69, 16384
s_add_u32 s34, s34, 1""")
        def ldB():
            for i in range(4): A(f'buffer_load_dwordx4 {vr(R[i])}, v{V_L16}, s[8:11], s62 offen offset:{i*1024} sc1')
        retry[f'{t}B'] = ldB
        A(f's_cmp_ge_u32 s32, 2\ns_cbranch_scc1 {t}_late')
        if nocomm:
            prep_a(); book(); A(f's_branch {t}_join')
        def first():
            delay(dB0); stamp(11); ldB()
        if pmid is None:
            prep_a(); book(); first()
            for i in range(nB - 1):
                delay(gB); ldB()
        else:
            prep_a({pmid: first}); book()
            for i in range(nB - 1): ldB()
        A(f'{t}_chkB:\ns_waitcnt vmcnt({4*(nB-1)})')
        cal(4, par)
        A(f"""v_max3_u32 v{T0}, v{R[0]+3}, v{R[1]+3}, v{R[2]+3}
v_max_u32 v{T0}, v{T0}, v{R[3]+3}
v_cmp_eq_u32 vcc, -1, v{T0}""")
        for i in range(4):
            A(f'v_mfma_f32_16x16x32_bf16 {vr(RA)}, {vr(SEL)}, {vr(R[i])}, {"0" if i==0 else vr(RA)}')
            if i == 1: A(f's_cbranch_vccnz {t}_reB')
        A(f"""v_cmp_u_f32 vcc, v{RA+2}, v{RA+2}
v_add_f32_dpp v{RA}, v{RA}, v{RA} row_ror:8 row_mask:0xf bank_mask:0xf
v_add_f32_dpp v{RA+1}, v{RA+1}, v{RA+1} row_ror:8 row_mask:0xf bank_mask:0xf
v_cvt_pk_bf16_f32 v{T3}, v{RA}, v{RA+1}
s_cbranch_vccnz {t}_nan
{t}_okB:
s_mov_b64 exec, s[80:81]
buffer_store_dword v{T3}, v{V_MST}, s[8:11], s55 offen{sc}
s_mov_b64 exec, -1
{t}_join:""")
        def nan_path(t=t, R=R, RA=RA, SEL=SEL, ldB=ldB):
            A(f'{t}_nan:')
            ldB()
            A('s_waitcnt vmcnt(0)')
            fl = [x for r in R for x in range(r, r + 4)]
            A(f'v_max3_u32 v{T0}, v{fl[0]}, v{fl[1]}, v{fl[2]}')
            for i in range(6): A(f'v_max3_u32 v{T0}, v{T0}, v{fl[3+2*i]}, v{fl[4+2*i]}')
            A(f"""v_max_u32 v{T0}, v{T0}, v{fl[15]}
v_cmp_eq_u32 vcc, -1, v{T0}
s_cbranch_vccz {t}_nan2
s_sub_u32 s35, s35, 1
s_cbranch_scc0 {t}_nan
s_mov_b32 s35, 0
{t}_nan2:""")
            for i in range(4):
                A(f'v_mfma_f32_16x16x32_bf16 {vr(RA)}, {vr(SEL)}, {vr(R[i])}, {"0" if i==0 else vr(RA)}')
            A(f"""v_add_f32_dpp v{RA}, v{RA}, v{RA} row_ror:8 row_mask:0xf bank_mask:0xf
v_add_f32_dpp v{RA+1}, v{RA+1}, v{RA+1} row_ror:8 row_mask:0xf bank_mask:0xf
v_cvt_pk_bf16_f32 v{T3}, v{RA}, v{RA+1}
s_branch {t}_okB""")
        lates.append(nan_path)
        def late_path(t=t, par=par):
            A(f'{t}_late:')
            prep_a(); book()
            A(f"""
; waves 2,3: sentinel into the mem slot two steps ahead of the one being published
s_add_u32 s36, s55, 16384
{wrap('s36')}ds_read_b32 v{T3}, v{V_MST} offset:{L_MEM}
v_mov_b32 v{T0}, -1
s_sub_u32 s37, s56, 8192
s_mov_b64 exec, s[80:81]
buffer_store_dword v{T0}, v{V_MST}, s[8:11], s36 offen{sc}
s_waitcnt lgkmcnt(0)
{f"buffer_store_dword v{T3}, v{V_MST}, s[8:11], s37 offen sc1" if repidle else ""}
s_mov_b64 exec, -1""")
            delay(dI)
            A(f's_branch {t}_join')
        lates.append(late_path)
        stamp(12)
        A(f"""s_cmp_eq_u32 s34, {nsteps}
s_cbranch_scc1 {tag}_done
s_add_u32 s62, s63, s60
s_add_u32 s55, s55, 8192
{wrap('s55')}s_add_u32 s36, s34, 2""")
        kv_ready(f'{t}_kv'); slow.append(f'{t}_kv')
        if not noB5: A('s_barrier')
        delay(dA)
        stamp(13)
        A.lds_q = []
    if gate: A(f's_cmp_lg_u32 s2, 0\ns_cbranch_scc1 {tag}x0_top')
    for ltag, lsc in ([(tag, sc), (tag + 'x', ' sc1')] if gate else [(tag, sc)]):
        i0 = len(A.items)
        for par in range(unroll): step(par, ltag, lsc)
        if abl:
            import re
            keep = A.items[:i0]
            for it in A.items[i0:]:
                if not isinstance(it, str) and any(re.search(p, it.text) for p in abl): continue
                keep.append(it)
            A.items = keep
        A(f's_branch {ltag}0_top')
        for par in range(unroll):
            t = f'{ltag}{par}'
            A(f'{t}_reB:\ns_sub_u32 s35, s35, 1\ns_cbranch_scc1 {t}_toB\ns_mov_b64 exec, vcc')
            retry[f'{t}B']()
            A(f's_mov_b64 exec, -1\ns_branch {t}_chkB\n{t}_toB:\ns_mov_b32 s35, 0\ns_nop 7\ns_branch {t}_nan')
        for f in lates: f()
        del lates[:]
    for l in slow: kv_slow(l)
    A(f"""{tag}_done:
s_cmp_ge_u32 s32, 2
s_cbranch_scc1 {tag}_fin
s_mov_b64 exec, s[80:81]
buffer_store_dword v{T3}, v{V_MST}, s[8:11], s56 offen sc1
s_mov_b64 exec, -1
{tag}_fin:""")
    prof(A, 3, 36, dbg=11)
    if PROF['on'] is True:
        A("""s_memtime s[92:93]
s_waitcnt lgkmcnt(0)
s_sub_u32 s92, s92, s96
v_mov_b32 v36, s92
v_mov_b32 v37, s35
s_lshl_b32 s94, s32, 3
s_add_u32 s94, s94, s91
v_mov_b32 v38, 0
s_mov_b64 exec, 1
buffer_store_dwordx2 v[36:37], v38, s[8:11], s94 offen offset:16
s_mov_b64 exec, -1""")

def kd(name, vgpr=512, accum=256):
    return f'''
.amdhsa_kernel {name}
  .amdhsa_next_free_vgpr {vgpr}
  .amdhsa_next_free_sgpr 102
  .amdhsa_accum_offset {accum}
  .amdhsa_group_segment_fixed_size 0
  .amdhsa_kernarg_size 112
  .amdhsa_user_sgpr_count 2
  .amdhsa_user_sgpr_kernarg_segment_ptr 1
  .amdhsa_system_sgpr_workgroup_id_x 1
.end_amdhsa_kernel
'''

def common_entry(A):
    A(f'''
s_load_dwordx4 s[4:7], s[0:1], 96
s_getreg_b32 s3, hwreg(HW_REG_XCC_ID)
s_and_b32 s3, s3, 0xf
v_lshrrev_b32 v1, 6, v0
v_readfirstlane_b32 s32, v1
s_waitcnt lgkmcnt(0)''')
    srd(A, 12, 4, 256)
    srd(A, 8, 6, WS_BYTES)

def gen_chain_test(stamps=False, **kw):
    A = Asm()
    A.raw('; @launch kernel=chain_kernel grid=(256,1,1) block=(256,1,1) lds=163840')
    A.raw('.amdgcn_target "amdgcn-amd-amdhsa--gfx950"')
    A.raw('.text\n.globl chain_kernel\n.p2align 8\n.type chain_kernel,@function')
    A.label('chain_kernel')
    A('s_cmp_ge_u32 s2, 256\ns_cbranch_scc1 L_end')
    common_entry(A)
    A('''s_cmp_lg_u32 s3, 0
s_cbranch_scc1 L_end
s_memtime s[96:97]
s_memrealtime s[90:91]
v_mov_b32 v3, 0
v_mov_b32 v4, 1
s_cmp_lg_u32 s32, 0
s_cbranch_scc1 L_noticket
s_mov_b64 exec, 1
buffer_atomic_add v4, v3, s[12:15], 0 offen sc0
s_waitcnt vmcnt(0)
ds_write_b32 v3, v4
s_waitcnt lgkmcnt(0)
s_mov_b64 exec, -1
L_noticket:
s_barrier
ds_read_b32 v4, v3
s_waitcnt lgkmcnt(0)
v_readfirstlane_b32 s33, v4
s_barrier
s_cmp_ge_u32 s33, 32
s_cbranch_scc1 L_end''')
    emit_chain(A, stamps=stamps, cpre=0, **kw)
    if stamps == 'cal':
        A('''s_waitcnt vmcnt(0)
s_memrealtime s[4:5]
s_waitcnt lgkmcnt(0)
s_or_b32 s6, s4, 0x3ff
L_cal:
s_memrealtime s[4:5]
s_memtime s[96:97]
s_waitcnt lgkmcnt(0)
s_cmp_le_u32 s4, s6
s_cbranch_scc1 L_cal
s_mov_b32 s50, s4''')
    if stamps:
        A('s_waitcnt vmcnt(0) lgkmcnt(0)')
        for i, r in enumerate([40,42,44,46,48,50,52,84,98,16,90,92,94,100,96,35]): A(f'v_mov_b32 v{20+i}, s{r}')
        A('''s_lshl_b32 s36, s33, 2
s_add_u32 s36, s36, s32
s_lshl_b32 s36, s36, 6
s_add_u32 s36, s36, 0x8000
v_mov_b32 v40, s36
s_mov_b64 exec, 1
buffer_store_dwordx4 v[20:23], v40, s[8:11], 0 offen
buffer_store_dwordx4 v[24:27], v40, s[8:11], 0 offen offset:16
buffer_store_dwordx4 v[28:31], v40, s[8:11], 0 offen offset:32
buffer_store_dwordx4 v[32:35], v40, s[8:11], 0 offen offset:48
s_mov_b64 exec, -1''')
    A('''s_waitcnt vmcnt(0)
s_memtime s[98:99]
s_memrealtime s[4:5]
s_waitcnt lgkmcnt(0)
s_sub_u32 s98, s98, s96
s_sub_u32 s4, s4, s90
s_cmp_eq_u32 s33, 1
s_cselect_b32 s98, s4, s98
v_mov_b32 v20, s98
v_mov_b32 v21, s35
s_lshl_b32 s36, s33, 2
s_add_u32 s36, s36, s32
s_cmp_ge_u32 s36, 8
s_cbranch_scc1 L_end
s_lshl_b32 s36, s36, 3
s_add_u32 s36, s36, 64
v_mov_b32 v22, s36
s_mov_b64 exec, 1
buffer_store_dwordx2 v[20:21], v22, s[12:15], 0 offen
L_end:
s_endpgm''')
    A.raw('.section .rodata,"a"\n.p2align 6')
    A.raw(kd('chain_kernel'))
    return A.text()

if __name__ == '__main__':
    open('chain.s', 'w').write(gen_chain_test())
    open('chain_st.s', 'w').write(gen_chain_test(stamps=True))
```

```python
import math
from gen import *

W_L16, W_LANE, W_TR, W_VO = 0, 1, 2, 3

def ar(b, n=4): return f'a[{b}:{b+n-1}]'

def worker_setup(A):
    A(f'''v_and_b32 v{W_LANE}, 63, v0
v_lshlrev_b32 v{W_L16}, 4, v{W_LANE}
s_mul_i32 s52, s32, 40960
v_lshlrev_b32 v{W_TR}, 3, v{W_LANE}
v_add_u32 v{W_TR}, s52, v{W_TR}
s_mov_b32 s35, 1000000''')

def load_units(A, units, depth=8):
    n_u = len(units)
    def issue(n):
        sl = n % 9
        for mp, (sr, sb, c) in enumerate(units[n][0]):
            A(f's_add_u32 m0, s52, {sl*4096 + mp*1024}')
            A(f's_add_u32 s38, s{sb}, {c}')
            A(f'buffer_load_dwordx4 v{W_VO}, s[{sr}:{sr+3}], s38 offen lds')
    for n in range(min(depth, n_u)): issue(n)
    for n in range(n_u):
        later = min(n_u - 1, n + depth - 1) - n
        A(f's_waitcnt vmcnt({4*later})')
        for T in range(2):
            for mp in range(4):
                A(f'ds_read_b64_tr_b16 {units[n][1][mp][T]}, v{W_TR} offset:{(n%9)*4096 + mp*1024 + T*512}')
        if n + depth < n_u:
            A('s_waitcnt lgkmcnt(8)')
            issue(n + depth)
    A('s_waitcnt lgkmcnt(0)\ns_barrier')

def lane_bits(A):
    A(f'''v_bfe_u32 v21, v{W_LANE}, 4, 1
v_bfe_u32 v22, v{W_LANE}, 3, 1
v_bfe_u32 v23, v{W_LANE}, 2, 1
v_bfe_u32 v24, v{W_LANE}, 1, 1
v_and_b32 v25, 1, v{W_LANE}
v_lshrrev_b32 v26, 5, v{W_LANE}''')

def voff_dmap(A, stride):
    lane_bits(A)
    A(f'''v_lshlrev_b32 v27, 3, v21
v_lshl_add_u32 v27, v22, 1, v27
v_lshl_add_u32 v27, v23, 2, v27
v_lshl_add_u32 v27, v24, 5, v27
v_mul_u32_u24 v27, {stride}, v27
v_lshl_add_u32 v27, v26, 5, v27
v_lshl_add_u32 v{W_VO}, v25, 4, v27''')

def drow(t, mp): return 64 * t + 16 * (mp >> 1) + (mp & 1)

def atomic_flag(A, soff, vtmp):
    A(f'''s_mov_b64 exec, 1
v_mov_b32 v{vtmp}, 1
v_mov_b32 v{vtmp+1}, 0
buffer_atomic_add v{vtmp}, v{vtmp+1}, s[8:11], {soff} offen sc1
s_mov_b64 exec, -1''')

def emit_warm(A, pol='nt'):
    A('''s_load_dwordx4 s[16:19], s[0:1], 16
s_load_dwordx4 s[24:27], s[0:1], 32
s_mul_i32 s36, s33, 5
s_add_u32 s36, s36, s89
s_lshl_b32 s36, s36, 2
s_add_u32 s36, s36, s32
s_lshl_b32 s36, s36, 10
s_waitcnt lgkmcnt(0)
s_mov_b32 s20, s18
s_and_b32 s21, s19, 0xffff
s_mov_b32 s22, 0x400000
s_mov_b32 s23, 0x20000
s_and_b32 s17, s17, 0xffff
s_mov_b32 s18, 0x400000
s_mov_b32 s19, 0x20000
s_mov_b32 s28, s26
s_and_b32 s29, s27, 0xffff
s_mov_b32 s30, 0x400000
s_mov_b32 s31, 0x20000
s_and_b32 s25, s25, 0xffff
s_mov_b32 s26, 0x400000
s_mov_b32 s27, 0x20000''')
    n = 0
    for sr in (28, 24, 20, 16):
        for i in range(7):
            A(f's_add_u32 s37, s36, {i*640*1024}')
            A(f'buffer_load_dwordx4 v[{112+4*(n%4)}:{115+4*(n%4)}], v{W_L16}, s[{sr}:{sr+3}], s37 offen {pol}')
            n += 1

def emit_init(A):
    A(f'''v_mov_b32 v16, 0
v_mov_b32 v17, 0
v_mov_b32 v18, 0
v_mov_b32 v19, 0
s_lshl_b32 s36, s32, 13
s_add_u32 s37, s36, 4096''')
    for i in range(8):
        A(f'buffer_store_dwordx4 v[16:19], v{W_L16}, s[8:11], s{36 + (i>>2)} offen offset:{(i&3)*1024} sc1')
    A(f'''s_waitcnt vmcnt(0)
s_mov_b64 exec, 1
v_mov_b32 v16, 1
v_mov_b32 v17, {DBG_GATE}
buffer_atomic_add v16, v17, s[12:15], 0 offen sc1
s_mov_b64 exec, -1''')

def emit_ln(A, sseg, gate=True):
    A('s_load_dwordx2 s[4:5], s[0:1], 0\ns_waitcnt lgkmcnt(0)')
    srd(A, 16, 4, 0x200000)
    RAW = 16; X = 48
    A(f'''v_lshlrev_b32 v4, 7, v{W_LANE}
s_lshl_b32 s36, s{sseg}, 15
s_lshl_b32 s37, s32, 13
s_add_u32 s36, s36, s37''')
    for i in range(8): A(f'buffer_load_dwordx4 {vr(RAW+4*i)}, v4, s[16:19], s36 offen offset:{16*i}')
    A(f'''v_and_b32 v5, 7, v{W_LANE}
v_lshlrev_b32 v5, 11, v5
v_lshrrev_b32 v6, 3, v{W_LANE}
v_lshl_add_u32 v5, v6, 4, v5
s_lshl_b32 s36, s{sseg}, 15
s_lshr_b32 s37, s32, 1
s_lshl_b32 s37, s37, 14
s_add_u32 s36, s36, s37
s_and_b32 s37, s32, 1
s_lshl_b32 s37, s37, 7
s_add_u32 s36, s36, s37
s_add_u32 s39, s36, {XFB}
s_mov_b32 s38, 0xffff0000''')
    for i in range(8):
        A(f's_waitcnt vmcnt({7-i})')
        for q in range(4):
            d = 4 * i + q
            A(f'v_lshlrev_b32 v{X+2*d}, 16, v{RAW+d}\nv_and_b32 v{X+2*d+1}, s38, v{RAW+d}')
    def red8(r):
        A(f'''v_add_f32_dpp v{r}, v{r}, v{r} quad_perm:[1,0,3,2] row_mask:0xf bank_mask:0xf
v_add_f32_dpp v{r}, v{r}, v{r} quad_perm:[2,3,0,1] row_mask:0xf bank_mask:0xf
v_add_f32_dpp v{r}, v{r}, v{r} row_half_mirror row_mask:0xf bank_mask:0xf''')
    for a in range(4): A(f'v_add_f32 v{8+a}, v{X+a}, v{X+4+a}')
    for c in range(8, 64): A(f'v_add_f32 v{8+(c&3)}, v{8+(c&3)}, v{X+c}')
    A('v_add_f32 v8, v8, v9\nv_add_f32 v10, v10, v11\nv_add_f32 v8, v8, v10')
    red8(8)
    A(f'v_mul_f32 v7, {f32bits(1/512)}, v8')
    for a in range(4): A(f'v_mov_b32 v{8+a}, 0')
    for c in range(64):
        A(f'v_sub_f32 v{12+(c&3)}, v{X+c}, v7\nv_fmac_f32 v{8+(c&3)}, v{12+(c&3)}, v{12+(c&3)}')
    A('v_add_f32 v8, v8, v9\nv_add_f32 v10, v10, v11\nv_add_f32 v8, v8, v10')
    red8(8)
    A(f'''v_mul_f32 v8, {f32bits(1/512)}, v8
v_cvt_pk_bf16_f32 v9, v7, v8
v_lshlrev_b32 v7, 16, v9
v_and_b32 v8, s38, v9
v_add_f32 v8, {f32bits(1e-5)}, v8
v_cvt_pk_bf16_f32 v8, v8, v8
v_and_b32 v8, s38, v8
v_sqrt_f32 v8, v8
v_cvt_pk_bf16_f32 v8, v8, v8
v_and_b32 v8, s38, v8
v_rcp_f32 v8, v8''')
    confirm(A, 'ln_conf')
    for hi in range(2):
        for g in range(4):
            b = 16 * hi + 8 * (g >> 1) + 2 * (g & 1)
            o = RAW + 4 * (4 * hi + g)
            for q, c in enumerate((b, b + 4, b + 1, b + 5)):
                lo, hh = X + c, X + c + 32
                A(f'''v_sub_f32 v{lo}, v{lo}, v7
v_sub_f32 v{hh}, v{hh}, v7
v_cvt_pk_bf16_f32 v{hh}, v{lo}, v{hh}
v_lshlrev_b32 v{lo}, 16, v{hh}
v_and_b32 v{hh}, s38, v{hh}
v_mul_f32 v{lo}, v{lo}, v8
v_mul_f32 v{hh}, v{hh}, v8
v_cvt_pk_bf16_f32 v{o+q}, v{lo}, v{hh}''')
            A(f'buffer_store_dwordx4 {vr(o)}, v5, s[8:11], s39 offen offset:{hi*1024+g*256} sc1')
    if gate: wait_dbg(A, 'ln_gate', DBG_CHAINCNT, 128, 8, 9)
    else: A('s_waitcnt vmcnt(0)')
    A(f's_lshl_b32 s36, s{sseg}, 7\ns_add_u32 s36, s36, {FLAGS+F_XN}')
    atomic_flag(A, 's36', 8)

def wait_all_xn(A, lbl, gate=True):
    if gate: wait_dbg(A, f'{lbl}_gate', DBG_CHAINCNT, 128, 8, 9)
    A(f'''v_lshlrev_b32 v8, 7, v{W_LANE}
s_mov_b32 s37, {FLAGS+F_XN}
{lbl}:
buffer_load_dword v9, v8, s[8:11], s37 offen sc1
s_waitcnt vmcnt(0)
v_cmp_gt_u32 vcc, 4, v9
s_cbranch_vccz {lbl}_ok
s_sleep 2
s_sub_u32 s35, s35, 1
s_cbranch_scc0 {lbl}
s_mov_b32 s35, 0
{lbl}_ok:''')

def xf_loop(A, tag, stride, nst, mfmas, epilogue, flag_soff, active=None):
    XV = 4; XA = [[8, 12], [16, 20]]
    def dma(seg):
        A(f'''s_min_u32 s36, s{seg}, 63
s_lshl_b32 s36, s36, 15
s_add_u32 s36, s36, s42
s_add_u32 s37, s36, 4096
s_mov_b32 m0, s43''')
        for i in range(4): A(f'buffer_load_dwordx4 v{W_L16}, s[8:11], s36 offen offset:{i*1024} sc1 lds')
        A('s_add_u32 m0, s43, 4096')
        for i in range(4): A(f'buffer_load_dwordx4 v{W_L16}, s[8:11], s37 offen offset:{i*1024} sc1 lds')
        A('s_xor_b32 s43, s43, 0x8000')
    A(f'''s_lshl_b32 s43, s32, 13
s_add_u32 s42, s43, {XFB}
v_mov_b32 v{XV}, v{W_L16}
s_mov_b32 s44, -1''')
    dma(40)
    A(f'''s_waitcnt vmcnt(0)
{tag}_top:
s_barrier
s_add_u32 s41, s40, {stride}''')
    dma(41)
    if active: A(f's_cmp_eq_u32 s{active}, 0\ns_cbranch_scc1 {tag}_skip')
    def rd(ks):
        for tt in range(2): A.ds(f'ds_read_b128 {vr(XA[ks&1][tt])}, v{XV} offset:{tt*16384 + ks*1024}', f'x{ks}')
    A.lds_q = []
    rd(0)
    for ks in range(16):
        A.wait_lds(f'x{ks}')
        if ks < 15: rd(ks + 1)
        mfmas(ks, XA[ks & 1])
        if ks == 13:
            A(f's_waitcnt vmcnt(0)\ns_cmp_lt_i32 s44, 0\ns_cbranch_scc1 {tag}_noflag')
            flag_soff(44); atomic_flag(A, 's36', 6)
            A(f'{tag}_noflag:')
    epilogue()
    A(f'''s_mov_b32 s44, s40
{tag}_next:
v_xor_b32 v{XV}, 0x8000, v{XV}
s_mov_b32 s40, s41
s_cmp_lt_u32 s40, 64
s_cbranch_scc1 {tag}_top
s_waitcnt vmcnt(0)''')
    if active: A(f's_cmp_eq_u32 s{active}, 0\ns_cbranch_scc1 {tag}_end')
    flag_soff(44); atomic_flag(A, 's36', 6)
    if active:
        A(f's_branch {tag}_end\n{tag}_skip:\ns_waitcnt vmcnt(0)\ns_branch {tag}_next')
    A(f'{tag}_end:\ns_barrier')

def MFd(A, d, a, b, c): A(f'v_mfma_f32_16x16x32_bf16 {d}, {a}, {b}, {c}')

def qkv_frag(m, t, T):
    i = 2 * t + T
    return {'k': f'a[{8*i}:{8*i+7}]', 'v': f'a[{128+8*i}:{128+8*i+7}]', 'q': f'v[{128+8*i}:{128+8*i+7}]'}[m]

def emit_qkv(A, gate=True):
    A('''s_load_dwordx4 s[16:19], s[0:1], 16
s_load_dwordx2 s[24:25], s[0:1], 32
s_waitcnt lgkmcnt(0)
s_mov_b32 s20, s18
s_and_b32 s21, s19, 0xffff
s_mov_b32 s22, 0x400000
s_mov_b32 s23, 0x20000
s_and_b32 s17, s17, 0xffff
s_mov_b32 s18, 0x400000
s_mov_b32 s19, 0x20000
s_and_b32 s25, s25, 0xffff
s_mov_b32 s26, 0x400000
s_mov_b32 s27, 0x20000
s_lshl_b32 s45, s33, 8
s_lshl_b32 s37, s32, 6
s_add_u32 s45, s45, s37''')
    voff_dmap(A, 8192)
    units = []
    for t in range(8):
        for m in 'kvq':
            sr = {'q': 16, 'k': 20, 'v': 24}[m]
            units.append(([(sr, 45, drow(t, mp) * 8192) for mp in range(4)],
                          [[sub(qkv_frag(m, t, T), 2 * mp, 2) for T in range(2)] for mp in range(4)]))
    load_units(A, units)
    confirm(A, 'qkv_conf')
    prof(A, 2, 36, dbg=13)
    wait_all_xn(A, 'qkv_xn', gate)
    prof(A, 3, 36)
    ACC = 24; PKB = 72
    def acc(m, T, tt): return ACC + 4 * ('qkv'.index(m) * 4 + T * 2 + tt)
    def mfmas(ks, XA):
        for m in 'qkv':
            for T in range(2):
                w = sub(qkv_frag(m, ks >> 1, T), 4 * (ks & 1), 4)
                for tt in range(2):
                    d = vr(acc(m, T, tt)); c = '0' if ks == 0 else d
                    if m == 'v': MFd(A, d, vr(XA[tt]), w, c)
                    else: MFd(A, d, w, vr(XA[tt]), c)
    def epi():
        A(f'''s_lshl_b32 s36, s33, 6
s_add_u32 s36, s36, s40
s_lshl_b32 s37, s36, 14
s_lshl_b32 s36, s36, 13
s_lshl_b32 s38, s32, 10
s_add_u32 s36, s36, s38
s_add_u32 s36, s36, {QFB}
s_add_u32 s46, s36, 4096
s_add_u32 s39, s37, s38
s_add_u32 s39, s39, {KVB}
s_add_u32 s47, s39, 4096
s_add_u32 s37, s39, s38
s_add_u32 s37, s37, 8192''')
        def pk(o, a, b):
            A(f'''v_cvt_pk_bf16_f32 v{o}, v{a}, v{a+1}
v_cvt_pk_bf16_f32 v{o+1}, v{a+2}, v{a+3}
v_cvt_pk_bf16_f32 v{o+2}, v{b}, v{b+1}
v_cvt_pk_bf16_f32 v{o+3}, v{b+2}, v{b+3}''')
        n = 0
        for m, so in (('q', (36, 46)), ('k', (39, 47))):
            for tt in range(2):
                o = PKB + 4 * n; n += 1
                pk(o, acc(m, 0, tt), acc(m, 1, tt))
                A(f'buffer_store_dwordx4 {vr(o)}, v{W_L16}, s[8:11], s{so[tt]} offen sc1')
        for T in range(2):
            o = PKB + 4 * n; n += 1
            pk(o, acc('v', T, 0), acc('v', T, 1))
            A(f'buffer_store_dwordx4 {vr(o)}, v{W_L16}, s[8:11], s37 offen offset:{T*1024} sc1')
    def fl(seg): A(f's_lshl_b32 s36, s33, 8\ns_lshl_b32 s37, s{seg}, 2\ns_add_u32 s36, s36, s37')
    xf_loop(A, 'qkv', 7, 6, mfmas, epi, fl)
    prof(A, 4, 36, dbg=14)

def emit_gu(A, nsets):
    A('''s_load_dwordx4 s[16:19], s[0:1], 64
s_waitcnt lgkmcnt(0)
s_mov_b32 s20, s18
s_and_b32 s21, s19, 0xffff
s_mov_b32 s22, 1409024
s_mov_b32 s23, 0x20000
s_and_b32 s17, s17, 0xffff
s_mov_b32 s18, 1409024
s_mov_b32 s19, 0x20000
s_lshl_b32 s49, s48, 2
s_add_u32 s49, s49, s32
s_cmp_lt_u32 s49, 43
s_cselect_b32 s50, 1, 0
s_min_u32 s49, s49, 42
s_lshl_b32 s45, s49, 6''')
    voff_dmap(A, 2752)
    def frag(m, t, T):
        i = 2 * t + T; b = 128 * 'gu'.index(m) + 8 * i
        return f'a[{b}:{b+7}]'
    units = []
    for t in range(8):
        for m in 'gu':
            units.append(([({'g': 16, 'u': 20}[m], 45, drow(t, mp) * 2752) for mp in range(4)],
                          [[sub(frag(m, t, T), 2 * mp, 2) for T in range(2)] for mp in range(4)]))
    load_units(A, units)
    prof(A, 5, 36)
    ACC = 24; PKB = 72
    def acc(m, T, tt): return ACC + 4 * ('gu'.index(m) * 4 + T * 2 + tt)
    def mfmas(ks, XA):
        for m in 'gu':
            for T in range(2):
                w = sub(frag(m, ks >> 1, T), 4 * (ks & 1), 4)
                for tt in range(2):
                    d = vr(acc(m, T, tt)); c = '0' if ks == 0 else d
                    MFd(A, d, w, vr(XA[tt]), c)
    c1 = -2 * math.sqrt(2 / math.pi) * math.log2(math.e); c2 = c1 * 0.044715
    def epi():
        A(f'''s_mul_i32 s36, s40, {2*44*1024}
s_lshl_b32 s37, s49, 10
s_add_u32 s36, s36, s37
s_add_u32 s36, s36, {HFB}
s_add_u32 s37, s36, {44*1024}
s_mov_b32 s38, {f32bits(c2)}
v_mov_b32 v56, {f32bits(c1)}''')
        for tt in range(2):
            for T in range(2):
                g = acc('g', T, tt); u = acc('u', T, tt); t = 60
                for r in range(4): A(f'v_mul_f32 v{t+r}, v{g+r}, v{g+r}')
                for r in range(4): A(f'v_fma_f32 v{t+r}, v{t+r}, s38, v56')
                for r in range(4): A(f'v_mul_f32 v{t+r}, v{t+r}, v{g+r}')
                for r in range(4): A(f'v_exp_f32 v{t+r}, v{t+r}')
                for r in range(4): A(f'v_mul_f32 v{g+r}, v{g+r}, v{u+r}')
                for r in range(4): A(f'v_add_f32 v{t+r}, 1.0, v{t+r}')
                for r in range(4): A(f'v_rcp_f32 v{t+r}, v{t+r}')
                for r in range(4): A(f'v_mul_f32 v{g+r}, v{g+r}, v{t+r}')
                o = PKB + 4 * tt + 2 * T
                A(f'v_cvt_pk_bf16_f32 v{o}, v{g}, v{g+1}\nv_cvt_pk_bf16_f32 v{o+1}, v{g+2}, v{g+3}')
            A(f'buffer_store_dwordx4 {vr(PKB+4*tt)}, v{W_L16}, s[8:11], s{36+tt} offen sc1')
    def fl(seg): A(f's_lshl_b32 s36, s{seg}, 7\ns_add_u32 s36, s36, {FLAGS+F_H}')
    xf_loop(A, 'gu', nsets, 2, mfmas, epi, fl, active=50)
    prof(A, 6, 36)

def emit_att(A, stride):
    IDX, QW, TRA, B0, TMP = 4, 5, 6, 7, 8
    MF_ = [16 + 4 * i for i in range(8)]
    AK = [48, 52]; AV = [56, 60]
    KX = lambda tt, k: 64 + 16 * tt + 4 * k
    QX = lambda tt, k: 96 + 16 * tt + 4 * k
    VX = [128, 132]; KM = [136 + 4 * k for k in range(4)]
    S = {(0, 0): 152, (0, 1): 156, (1, 0): 160, (1, 1): 164, (1, 2): 168}
    PB = [172, 176]; PM = [180, 182]; VM = 184; ONES = 188; ONE2 = 192; NEG = 194
    LS = [196, 200]; O = lambda tt, T: 204 + 8 * tt + 4 * T
    OFR = [220, 224]
    L_M = 0; L_K = 8192
    A(f'''v_and_b32 v21, 8, v{W_LANE}
v_cmp_eq_u32 vcc, 0, v21
v_mov_b32 v22, 0xeeee
v_mov_b32 v23, 0x4444
v_cndmask_b32 v{IDX}, v22, v23, vcc
v_lshrrev_b32 v21, 5, v{W_LANE}
v_and_b32 v22, 15, v{W_LANE}
v_lshl_add_u32 v21, v21, 4, v22
v_lshlrev_b32 v21, 4, v21
v_bfe_u32 v22, v{W_LANE}, 4, 1
v_lshl_add_u32 v21, v22, 3, v21
s_lshl_b32 s38, s32, 9
v_add_u32 v{QW}, s38, v21
v_lshrrev_b32 v21, 2, v{W_LANE}
v_lshlrev_b32 v21, 4, v21
v_and_b32 v22, 1, v{W_LANE}
v_lshl_add_u32 v{TRA}, v22, 3, v21
s_lshl_b32 s53, s32, 11
v_add_u32 v{B0}, s53, v{W_L16}
s_mov_b32 s68, {f32bits(128 ** -0.5 * math.log2(math.e))}
v_mov_b32 v{ONES}, 0x3f803f80
v_mov_b32 v{ONES+1}, 0x3f803f80
v_mov_b32 v{ONES+2}, 0x3f803f80
v_mov_b32 v{ONES+3}, 0x3f803f80
s_mov_b32 s82, -1
s_mov_b32 s83, 0
v_cndmask_b32 v{ONE2}, 0, v{ONES}, s[82:83]
v_cndmask_b32 v{ONE2+1}, 0, v{ONES}, s[82:83]
v_mov_b32 v{NEG}, 0xf149f2ca
v_mov_b32 v{PB[0]+2}, 0
v_mov_b32 v{PB[0]+3}, 0
v_lshrrev_b32 v21, 4, v{W_LANE}
v_lshlrev_b32 v21, 2, v21
v_and_b32 v22, 15, v{W_LANE}''')
    for r in range(4):
        A(f'v_add_u32 v23, {r}, v21\nv_cmp_le_u32 s[{72+2*r}:{73+2*r}], v23, v22')
    A(f'''att_top:
s_lshl_b32 s37, s33, 8
s_lshl_b32 s38, s40, 2
s_add_u32 s37, s37, s38
v_mov_b32 v9, 0''')
    wait_cnt(A, 'att_kv', 8, 9, 's37', 4, 8, sleep=2)
    A(f'''s_lshl_b32 s36, s33, 6
s_add_u32 s36, s36, s40
s_lshl_b32 s37, s36, 14
s_lshl_b32 s36, s36, 13
s_add_u32 s36, s36, {QFB}
s_add_u32 s38, s36, 4096
s_add_u32 s37, s37, {KVB}
s_add_u32 s39, s37, 4096
s_add_u32 s46, s37, 8192''')
    for tt in range(2):
        for k in range(4):
            A(f'buffer_load_dwordx4 {vr(KX(tt,k))}, v{W_L16}, s[8:11], s{(37,39)[tt]} offen offset:{k*1024} sc1')
            A(f'buffer_load_dwordx4 {vr(QX(tt,k))}, v{W_L16}, s[8:11], s{(36,38)[tt]} offen offset:{k*1024} sc1')
    for T in range(2): A(f'buffer_load_dwordx4 {vr(VX[T])}, v{B0}, s[8:11], s46 offen offset:{T*1024} sc1')
    for a in AK + AV: A(f'v_mov_b64 v[{a}:{a+1}], 0\nv_mov_b64 v[{a+2}:{a+3}], 0')
    A('s_waitcnt vmcnt(0)')
    for k in range(4):
        for key in ((0, 1), (1, 1), (1, 2)):
            d = vr(S[key]); MFd(A, d, vr(KX(key[1] - 1, k)), vr(QX(key[0], k)), '0' if k == 0 else d)
    A(f'''s_lshl_b32 s47, s40, 13
s_add_u32 s47, s47, {GMEMB}
att_poll:
buffer_load_dwordx4 {vr(MF_[0])}, v{B0}, s[8:11], s47 offen sc1
buffer_load_dwordx4 {vr(MF_[1])}, v{B0}, s[8:11], s47 offen offset:1024 sc1
s_waitcnt vmcnt(0)
v_max3_u32 v8, v16, v17, v18
v_max3_u32 v8, v8, v19, v20
v_max3_u32 v8, v8, v21, v22
v_max_u32 v8, v8, v23
v_cmp_eq_u32 vcc, -1, v8
s_cbranch_vccz att_ok
s_sleep 1
s_sub_u32 s35, s35, 1
s_cbranch_scc0 att_poll
s_mov_b32 s35, 0
att_ok:
ds_write_b128 v{B0}, {vr(MF_[0])} offset:{L_M}
ds_write_b128 v{B0}, {vr(MF_[1])} offset:{L_M+1024}
s_waitcnt lgkmcnt(0)
s_barrier''')
    A.lds_q = []
    for t in range(8): A.ds(f'ds_read_b128 {vr(MF_[t])}, v{W_L16} offset:{L_M + t*1024}', f'm{t}')
    def SM(acc, t, m, T): A(f'v_smfmac_f32_16x16x64_bf16 {vr(acc)}, {vr(MF_[t])}, {qkv_frag(m,t,T)}, v{IDX}')
    for t in range(8):
        A.wait_lds(f'm{t}')
        SM(AK[0], t, 'k', 0); SM(AK[1], t, 'k', 1)
    fold = [f'v_permlane32_swap_b32 v{AK[0]+r}, v{AK[1]+r}' for r in range(4)] + [f'v_add_f32 v{AK[0]+r}, v{AK[0]+r}, v{AK[1]+r}' for r in range(4)]
    fold += [f'v_cvt_pk_bf16_f32 v8, v{AK[0]}, v{AK[0]+1}', f'v_cvt_pk_bf16_f32 v9, v{AK[0]+2}, v{AK[0]+3}']
    n = 0
    for t in range(8):
        for T in range(2):
            SM(AV[T], t, 'v', T); n += 1
            if 3 <= n <= 7: A(fold[2*(n-3)]); A(fold[2*(n-3)+1])
            if n == 8: A.ds(f'ds_write_b64 v{QW}, v[8:9] offset:{L_K}', 'kw')
            if n == 12:
                A.wait_lds('kw'); A('s_barrier')
            if n >= 13:
                k = n - 13
                for hf in range(2): A.ds(f'ds_read_b64_tr_b16 {vr(KM[k]+2*hf,2)}, v{TRA} offset:{L_K + k*512 + hf*256}', f'km{k}')
    for key in ((0, 1), (1, 2)):
        for r in range(4): A(f'v_cndmask_b32 v{S[key]+r}, v{NEG}, v{S[key]+r}, s[{72+2*r}:{73+2*r}]')
    for k in range(4):
        A.wait_lds(f'km{k}')
        for tt in range(2):
            d = vr(S[(tt, 0)]); MFd(A, d, vr(KM[k]), vr(QX(tt, k)), '0' if k == 0 else d)
    for T in range(2):
        A(f'v_cvt_pk_bf16_f32 v{VM+2*T}, v{AV[T]}, v{AV[T]+1}\nv_cvt_pk_bf16_f32 v{VM+2*T+1}, v{AV[T]+2}, v{AV[T]+3}')
    A(f'''s_lshl_b32 s36, s40, 18
s_lshl_b32 s37, s33, 12
s_add_u32 s36, s36, s37
s_lshl_b32 s37, s32, 10
s_add_u32 s36, s36, s37
s_add_u32 s36, s36, {OFB}
s_add_u32 s37, s36, 0x20000''')
    for tt in range(2):
        regs = [S[k] + r for k in S if k[0] == tt for r in range(4)]
        m = 8 + 2 * tt; t1 = m + 1
        A(f'v_max3_f32 v{m}, v{regs[0]}, v{regs[1]}, v{regs[2]}')
        i = 3
        while i + 1 < len(regs):
            A(f'v_max3_f32 v{m}, v{m}, v{regs[i]}, v{regs[i+1]}'); i += 2
        A(f'''v_max_f32 v{m}, v{m}, v{regs[i]}
v_mov_b32 v{t1}, v{m}
v_permlane32_swap_b32 v{m}, v{t1}
v_max_f32 v{m}, v{m}, v{t1}
v_mov_b32 v{t1}, v{m}
v_permlane16_swap_b32 v{m}, v{t1}
v_max_f32 v{m}, v{m}, v{t1}
v_mul_f32 v{m}, s68, v{m}''')
        for r in regs: A(f'v_fma_f32 v{r}, v{r}, s68, -v{m}')
        for r in regs: A(f'v_exp_f32 v{r}, v{r}')
        for key in S:
            if key[0] != tt: continue
            o = PM[tt] if key[1] == 0 else PB[tt] + 2 * (key[1] - 1)
            A(f'v_cvt_pk_bf16_f32 v{o}, v{S[key]}, v{S[key]+1}\nv_cvt_pk_bf16_f32 v{o+1}, v{S[key]+2}, v{S[key]+3}')
        MFd(A, vr(LS[tt]), vr(ONES), vr(PB[tt]), '0')
        for T in range(2): MFd(A, vr(O(tt, T)), vr(VX[T]), vr(PB[tt]), '0')
        A(f'v_mfma_f32_16x16x16_bf16 {vr(LS[tt])}, {vr(ONE2,2)}, {vr(PM[tt],2)}, {vr(LS[tt])}')
        for T in range(2): A(f'v_mfma_f32_16x16x16_bf16 {vr(O(tt,T))}, {vr(VM+2*T,2)}, {vr(PM[tt],2)}, {vr(O(tt,T))}')
    for tt in range(2):
        A(f'v_rcp_f32 v12, v{LS[tt]}')
        for T in range(2):
            o = O(tt, T)
            for r in range(4): A(f'v_mul_f32 v{o+r}, v{o+r}, v12')
            A(f'v_cvt_pk_bf16_f32 v{OFR[tt]+2*T}, v{o}, v{o+1}\nv_cvt_pk_bf16_f32 v{OFR[tt]+2*T+1}, v{o+2}, v{o+3}')
        A(f'buffer_store_dwordx4 {vr(OFR[tt])}, v{W_L16}, s[8:11], s{36+tt} offen sc1')
    A(f'''s_waitcnt vmcnt(0)
s_barrier
s_cmp_lg_u32 s32, 0
s_cbranch_scc1 att_nf
s_lshl_b32 s36, s40, 7
s_add_u32 s36, s36, {FLAGS+F_O}''')
    atomic_flag(A, 's36', 8)
    A('att_nf:')
    prof(A, 16, 10, 40)
    A(f'''s_add_u32 s40, s40, {stride}
s_cmp_lt_u32 s40, 64
s_cbranch_scc1 att_top''')

def emit_out(A, nsets):
    A('''s_load_dwordx2 s[4:5], s[0:1], 40
s_load_dwordx4 s[20:23], s[0:1], 80
s_load_dwordx2 s[6:7], s[0:1], 0
s_waitcnt lgkmcnt(0)''')
    srd(A, 16, 4, 0x400000)
    srd(A, 24, 22, 0x200000)
    A('s_and_b32 s21, s21, 0xffff\ns_mov_b32 s22, 1409024\ns_mov_b32 s23, 0x20000')
    srd(A, 28, 6, 0x200000)
    A(f'''v_bfe_u32 v21, v{W_LANE}, 1, 4
v_lshlrev_b32 v21, 10, v21
v_lshrrev_b32 v22, 5, v{W_LANE}
v_lshl_add_u32 v21, v22, 5, v21
v_and_b32 v22, 1, v{W_LANE}
v_lshl_add_u32 v{W_VO}, v22, 4, v21
s_lshl_b32 s37, s48, 6
s_lshl_b32 s45, s32, 20
s_add_u32 s45, s45, s37
s_lshl_b32 s46, s32, 15
s_add_u32 s46, s46, s37''')
    def wo(ks, T): return ar(8 * ks + 4 * T)
    def wd(i, T): return vr(168 + 8 * i + 4 * T)
    units = []
    for u in range(6):
        dm = []; de = []
        for mp in range(4):
            i = 2 * u + (mp >> 1); m2 = mp & 1
            dm.append((20, 46, (128 * i + 16 * m2) * 1024))
            de.append([sub(wd(i, T) if i < 11 else vr(32 + 4 * T), 2 * m2, 2) for T in range(2)])
        units.append((dm, de))
    for u in range(16):
        dm = []; de = []
        for mp in range(4):
            ks = 2 * u + (mp >> 1); m2 = mp & 1
            dm.append((16, 45, (32 * ks + 16 * m2) * 1024))
            de.append([sub(wo(ks, T), 2 * m2, 2) for T in range(2)])
        units.append((dm, de))
    load_units(A, units)
    prof(A, 7, 36, dbg=15)
    ACC = [16, 20]; XR = 24; BF = 32; RW = 4; OA = 5
    A(f'''s_lshl_b32 s36, s32, 11
v_add_u32 v{RW}, s36, v{W_L16}
v_and_b32 v21, 15, v{W_LANE}
v_lshlrev_b32 v21, 10, v21
v_lshrrev_b32 v22, 4, v{W_LANE}
v_lshl_add_u32 v21, v22, 3, v21
s_lshl_b32 s36, s48, 6
s_lshl_b32 s37, s32, 5
s_add_u32 s36, s36, s37
v_add_u32 v{OA}, s36, v21
s_lshl_b32 s36, s32, 10
v_add_u32 v6, s36, v{W_L16}
v_mov_b32 v9, 0
out_top:
s_lshr_b32 s41, s40, 1
s_lshl_b32 s42, s41, 7
s_cmp_lg_u32 s32, 0
s_cbranch_scc1 out_h_ok
s_add_u32 s37, s42, {FLAGS+F_H}''')
    wait_cnt(A, 'out_h', 8, 9, 's37', 43, 8, sleep=2)
    A(f'''s_barrier
s_mul_i32 s43, s40, {44*1024}
s_add_u32 s43, s43, {HFB}''')
    for i in range(11):
        A(f's_add_u32 s36, s32, {4*i}\ns_min_u32 s36, s36, 42\ns_lshl_b32 s36, s36, 10\ns_add_u32 s36, s36, s43')
        A(f'buffer_load_dwordx4 {vr(BF+4*i)}, v{W_L16}, s[8:11], s36 offen sc1')
    A(f's_lshl_b32 s44, s40, 14\nbuffer_load_dwordx2 {vr(XR,2)}, v{OA}, s[28:31], s44 offen')
    for i in range(11):
        A(f's_waitcnt vmcnt({11-i})')
        for T in range(2): MFd(A, vr(ACC[T]), wd(i, T), vr(BF + 4 * i), '0' if i == 0 else vr(ACC[T]))
    A(f'''s_cmp_lg_u32 s32, 0
s_cbranch_scc1 out_o_ok
s_add_u32 s37, s42, {FLAGS+F_O}''')
    wait_cnt(A, 'out_o', 8, 9, 's37', 32, 8, sleep=1)
    A(f'''s_barrier
s_lshl_b32 s36, s40, 17
s_lshl_b32 s37, s32, 15
s_add_u32 s36, s36, s37
s_add_u32 s36, s36, {OFB}''')
    for i in range(32):
        A(f'buffer_load_dwordx4 {vr(BF+4*i)}, v{W_L16}, s[8:11], s36 offen offset:{(i&3)*1024} sc1')
        if i & 3 == 3: A('s_add_u32 s36, s36, 4096')
    for i in range(32):
        A(f's_waitcnt vmcnt({31-i})')
        for T in range(2): MFd(A, vr(ACC[T]), wo(i, T), vr(BF + 4 * i), vr(ACC[T]))
    A(f'''ds_write_b128 v{RW}, {vr(ACC[0])}
ds_write_b128 v{RW}, {vr(ACC[1])} offset:1024
s_waitcnt lgkmcnt(0)
s_barrier
s_cmp_ge_u32 s32, 2
s_cbranch_scc1 out_next''')
    for w in range(4): A(f'ds_read_b128 {vr(BF+4*w)}, v6 offset:{w*2048}')
    A(f'''v_lshlrev_b32 v26, 16, v{XR}
v_and_b32 v27, 0xffff0000, v{XR}
v_lshlrev_b32 v28, 16, v{XR+1}
v_and_b32 v29, 0xffff0000, v{XR+1}
s_waitcnt lgkmcnt(0)''')
    for r in range(4):
        A(f'v_add_f32 v{BF+r}, v{BF+r}, v{BF+4+r}\nv_add_f32 v{BF+8+r}, v{BF+8+r}, v{BF+12+r}')
    for r in range(4):
        A(f'v_add_f32 v{BF+r}, v{BF+r}, v{BF+8+r}\nv_add_f32 v{BF+r}, v{BF+r}, v{26+r}')
    A(f'''v_cvt_pk_bf16_f32 v30, v{BF}, v{BF+1}
v_cvt_pk_bf16_f32 v31, v{BF+2}, v{BF+3}
buffer_store_dwordx2 v[30:31], v{OA}, s[24:27], s44 offen
out_next:''')
    prof(A, 16, 10, 41)
    A(f'''s_add_u32 s40, s40, {nsets}
s_cmp_lt_u32 s40, 128
s_cbranch_scc1 out_top''')

NAME = 'parallel_sum__memory_aug_recurrent_mem_tr__geglu_ffn__prompt_kernel'

def gen_full(profile=False, warm=2, wb=1, badguess=0, **ckw):
    PROF['on'] = profile
    A = Asm()
    A.raw(f'; @launch kernel={NAME} grid=(256,1,1) block=(256,1,1) lds=163840')
    A.raw('.amdgcn_target "amdgcn-amd-amdhsa--gfx950"')
    A.raw(f'.text\n.globl {NAME}\n.p2align 8\n.type {NAME},@function')
    A.label(NAME)
    A('s_cmp_ge_u32 s2, 256\ns_cbranch_scc1 L_end')
    common_entry(A)
    A(f'''s_and_b32 s3, s3, 7
s_lshr_b32 s36, s2, 3
s_lshl_b32 s94, s3, 5
s_add_u32 s94, s94, s36
{"s_and_b32 s94, s2, 0xf0" if badguess else ""}
s_mov_b32 s95, 0
s_mov_b32 s96, s3
s_cmp_lg_u32 s32, 0
s_cbranch_scc1 L_role
s_mov_b64 exec, 1
s_lshr_b32 s36, s94, 5
s_and_b32 s37, s94, 31
s_mov_b32 s38, 0
L_claim:
s_lshl_b32 s39, s36, 2
s_cmp_eq_u32 s36, 0
s_cselect_b32 s39, {DBG_CTICKET}, s39
v_mov_b32 v3, s39
s_lshl_b32 s39, 1, s37
v_mov_b32 v4, s39
buffer_atomic_or v4, v3, s[12:15], 0 offen sc0 sc1
s_waitcnt vmcnt(0)
v_readfirstlane_b32 s39, v4
s_bitcmp0_b32 s39, s37
s_cbranch_scc1 L_claimed
s_ff0_i32_b32 s37, s39
s_cmp_ge_i32 s37, 0
s_cbranch_scc1 L_claim
s_mov_b32 s37, 0
s_add_u32 s38, s38, 1
s_add_u32 s36, s36, 1
s_cmp_le_u32 s36, 7
s_cselect_b32 s36, s36, 1
s_cmp_ge_u32 s38, 8
s_cselect_b32 s36, 0, s36
s_cmp_le_u32 s38, 8
s_cbranch_scc1 L_claim
s_mov_b32 s36, 8
L_claimed:
s_lshl_b32 s36, s36, 5
s_add_u32 s36, s36, s37
v_mov_b32 v3, {L_SLOT}
v_mov_b32 v4, s36
ds_write_b32 v3, v4
s_waitcnt lgkmcnt(0)
s_mov_b64 exec, -1
L_role:
s_cmp_ge_u32 s94, 256
s_cbranch_scc1 L_end
v_mbcnt_lo_u32_b32 v0, -1, 0
v_mbcnt_hi_u32_b32 v0, -1, v0
s_lshr_b32 s3, s94, 5
s_and_b32 s33, s94, 31
s_cmp_eq_u32 s96, 0
s_cselect_b32 s2, 1, 0x10001
s_lshl_b32 s91, s94, 9
s_add_u32 s91, s91, 0x6000000''')
    prof(A, 0, 36, dbg=8)
    A('''s_cmp_lg_u32 s3, 0
s_cbranch_scc1 L_worker''')
    emit_chain(A, gate=True, **ckw)
    if wb: A('s_waitcnt vmcnt(0)\ns_cmp_lg_u32 s32, 0\ns_cbranch_scc1 L_end\ns_cmp_lg_u32 s33, 0\ns_cbranch_scc1 L_end\nbuffer_wbl2 sc1')
    A('s_endpgm\nL_worker:')
    worker_setup(A)
    A('''s_sub_u32 s88, s3, 1
s_lshl_b32 s88, s88, 5
s_add_u32 s88, s88, s33          ; wi
s_mul_i32 s33, s88, 9363
s_lshr_b32 s33, s33, 16          ; h = wi/7
s_mul_i32 s36, s33, 7
s_sub_u32 s89, s88, s36          ; r = wi%7
''')
    if warm:
        A('s_cmp_ge_u32 s89, 5\ns_cbranch_scc1 L_ln')
        emit_warm(A, '' if warm == 2 else 'nt')
        A('s_branch L_noln\nL_ln:')
    A('''s_cmp_lt_u32 s89, 5
s_cbranch_scc1 L_noln
s_lshl_b32 s90, s33, 1
s_add_u32 s90, s90, s89
s_sub_u32 s90, s90, 5''')
    emit_ln(A, 90)
    A('L_noln:\ns_mov_b32 s40, s89')
    prof(A, 1, 36)
    emit_qkv(A)
    A('''s_cmp_lt_u32 s89, 5
s_cbranch_scc1 L_gu
s_sub_u32 s40, s89, 5''')
    emit_att(A, 2)
    A('''s_endpgm
L_gu:
s_mul_i32 s90, s33, 5
s_add_u32 s90, s90, s89          ; oi
s_cmp_ge_u32 s90, 154
s_cbranch_scc1 L_out
s_mul_i32 s40, s90, 5958
s_lshr_b32 s40, s40, 16
s_mul_i32 s36, s40, 11
s_sub_u32 s48, s90, s36''')
    emit_gu(A, 14)
    A('''L_out:
s_lshr_b32 s40, s90, 4
s_and_b32 s48, s90, 15''')
    emit_out(A, 10)
    if PROF['on'] == 'dbg': prof(A, 0, 36, dbg=12)
    A('L_end:\ns_endpgm')
    A.raw('.section .rodata,"a"\n.p2align 6')
    A.raw(kd(NAME))
    return A.text()

if __name__ == '__main__':
    assert all((w * 9363) >> 16 == w // 7 for w in range(224)) and all((w * 5958) >> 16 == w // 11 for w in range(160))
    hdr = open('parallel_sum__memory_aug_recurrent_mem_tr__geglu_ffn__prompt.s.ref').read().split('; Override')[0]
    kw = dict(dB0=16, dA=16, b1pos=7, kfs=6)
    open('full.s', 'w').write(hdr + gen_full(**kw))
    open('diag.s', 'w').write(hdr + gen_full(profile='dbg', **kw))
    open('diag2.s', 'w').write(hdr + gen_full(profile='dbg', wb=0, **kw))
    for i, ex in enumerate(eval(sys.argv[1]) if len(sys.argv) > 1 else []):
        k2 = dict(kw); k2.update(ex)
        open(f'var{i}.s', 'w').write(hdr + gen_full(**k2))
        open(f'var{i}_prof.s', 'w').write(hdr + gen_full(profile=True, **k2))
    open('full_prof.s', 'w').write(hdr + gen_full(profile=True, **kw))
```

```python
import math
from gen import *

W_L16, W_LANE, W_TR, W_VO = 0, 1, 2, 3

def ar(b, n=4): return f'a[{b}:{b+n-1}]'

def worker_setup(A):
    A(f'''v_and_b32 v{W_LANE}, 63, v0
v_lshlrev_b32 v{W_L16}, 4, v{W_LANE}
s_mul_i32 s52, s32, 40960
v_lshlrev_b32 v{W_TR}, 3, v{W_LANE}
v_add_u32 v{W_TR}, s52, v{W_TR}
s_mov_b32 s35, 1000000''')

def load_units(A, units, depth=8):
    n_u = len(units)
    def issue(n):
        sl = n % 9
        for mp, (sr, sb, c) in enumerate(units[n][0]):
            A(f's_add_u32 m0, s52, {sl*4096 + mp*1024}')
            A(f's_add_u32 s38, s{sb}, {c}')
            A(f'buffer_load_dwordx4 v{W_VO}, s[{sr}:{sr+3}], s38 offen lds')
    for n in range(min(depth, n_u)): issue(n)
    for n in range(n_u):
        later = min(n_u - 1, n + depth - 1) - n
        A(f's_waitcnt vmcnt({4*later})')
        for T in range(2):
            for mp in range(4):
                A(f'ds_read_b64_tr_b16 {units[n][1][mp][T]}, v{W_TR} offset:{(n%9)*4096 + mp*1024 + T*512}')
        if n + depth < n_u:
            A('s_waitcnt lgkmcnt(8)')
            issue(n + depth)
    A('s_waitcnt lgkmcnt(0)\ns_barrier')

def lane_bits(A):
    A(f'''v_bfe_u32 v21, v{W_LANE}, 4, 1
v_bfe_u32 v22, v{W_LANE}, 3, 1
v_bfe_u32 v23, v{W_LANE}, 2, 1
v_bfe_u32 v24, v{W_LANE}, 1, 1
v_and_b32 v25, 1, v{W_LANE}
v_lshrrev_b32 v26, 5, v{W_LANE}''')

def voff_dmap(A, stride):
    lane_bits(A)
    A(f'''v_lshlrev_b32 v27, 3, v21
v_lshl_add_u32 v27, v22, 1, v27
v_lshl_add_u32 v27, v23, 2, v27
v_lshl_add_u32 v27, v24, 5, v27
v_mul_u32_u24 v27, {stride}, v27
v_lshl_add_u32 v27, v26, 5, v27
v_lshl_add_u32 v{W_VO}, v25, 4, v27''')

def drow(t, mp): return 64 * t + 16 * (mp >> 1) + (mp & 1)

def atomic_flag(A, soff, vtmp):
    A(f'''s_mov_b64 exec, 1
v_mov_b32 v{vtmp}, 1
v_mov_b32 v{vtmp+1}, 0
buffer_atomic_add v{vtmp}, v{vtmp+1}, s[8:11], {soff} offen sc1
s_mov_b64 exec, -1''')

def emit_warm(A, pol='nt'):
    A('''s_load_dwordx4 s[16:19], s[0:1], 16
s_load_dwordx4 s[24:27], s[0:1], 32
s_mul_i32 s36, s33, 5
s_add_u32 s36, s36, s89
s_lshl_b32 s36, s36, 2
s_add_u32 s36, s36, s32
s_lshl_b32 s36, s36, 10
s_waitcnt lgkmcnt(0)
s_mov_b32 s20, s18
s_and_b32 s21, s19, 0xffff
s_mov_b32 s22, 0x400000
s_mov_b32 s23, 0x20000
s_and_b32 s17, s17, 0xffff
s_mov_b32 s18, 0x400000
s_mov_b32 s19, 0x20000
s_mov_b32 s28, s26
s_and_b32 s29, s27, 0xffff
s_mov_b32 s30, 0x400000
s_mov_b32 s31, 0x20000
s_and_b32 s25, s25, 0xffff
s_mov_b32 s26, 0x400000
s_mov_b32 s27, 0x20000''')
    n = 0
    for sr in (28, 24, 20, 16):
        for i in range(7):
            A(f's_add_u32 s37, s36, {i*640*1024}')
            A(f'buffer_load_dwordx4 v[{112+4*(n%4)}:{115+4*(n%4)}], v{W_L16}, s[{sr}:{sr+3}], s37 offen {pol}')
            n += 1

def emit_init(A):
    A(f'''v_mov_b32 v16, 0
v_mov_b32 v17, 0
v_mov_b32 v18, 0
v_mov_b32 v19, 0
s_lshl_b32 s36, s32, 13
s_add_u32 s37, s36, 4096''')
    for i in range(8):
        A(f'buffer_store_dwordx4 v[16:19], v{W_L16}, s[8:11], s{36 + (i>>2)} offen offset:{(i&3)*1024} sc1')
    A(f'''s_waitcnt vmcnt(0)
s_mov_b64 exec, 1
v_mov_b32 v16, 1
v_mov_b32 v17, {DBG_GATE}
buffer_atomic_add v16, v17, s[12:15], 0 offen sc1
s_mov_b64 exec, -1''')

def emit_ln(A, sseg, gate=True):
    A('s_load_dwordx2 s[4:5], s[0:1], 0\ns_waitcnt lgkmcnt(0)')
    srd(A, 16, 4, 0x200000)
    RAW = 16; X = 48
    A(f'''v_lshlrev_b32 v4, 7, v{W_LANE}
s_lshl_b32 s36, s{sseg}, 15
s_lshl_b32 s37, s32, 13
s_add_u32 s36, s36, s37''')
    for i in range(8): A(f'buffer_load_dwordx4 {vr(RAW+4*i)}, v4, s[16:19], s36 offen offset:{16*i}')
    A(f'''v_and_b32 v5, 7, v{W_LANE}
v_lshlrev_b32 v5, 11, v5
v_lshrrev_b32 v6, 3, v{W_LANE}
v_lshl_add_u32 v5, v6, 4, v5
s_lshl_b32 s36, s{sseg}, 15
s_lshr_b32 s37, s32, 1
s_lshl_b32 s37, s37, 14
s_add_u32 s36, s36, s37
s_and_b32 s37, s32, 1
s_lshl_b32 s37, s37, 7
s_add_u32 s36, s36, s37
s_add_u32 s39, s36, {XFB}
s_mov_b32 s38, 0xffff0000''')
    for i in range(8):
        A(f's_waitcnt vmcnt({7-i})')
        for q in range(4):
            d = 4 * i + q
            A(f'v_lshlrev_b32 v{X+2*d}, 16, v{RAW+d}\nv_and_b32 v{X+2*d+1}, s38, v{RAW+d}')
    def red8(r):
        A(f'''v_add_f32_dpp v{r}, v{r}, v{r} quad_perm:[1,0,3,2] row_mask:0xf bank_mask:0xf
v_add_f32_dpp v{r}, v{r}, v{r} quad_perm:[2,3,0,1] row_mask:0xf bank_mask:0xf
v_add_f32_dpp v{r}, v{r}, v{r} row_half_mirror row_mask:0xf bank_mask:0xf''')
    for a in range(4): A(f'v_add_f32 v{8+a}, v{X+a}, v{X+4+a}')
    for c in range(8, 64): A(f'v_add_f32 v{8+(c&3)}, v{8+(c&3)}, v{X+c}')
    A('v_add_f32 v8, v8, v9\nv_add_f32 v10, v10, v11\nv_add_f32 v8, v8, v10')
    red8(8)
    A(f'v_mul_f32 v7, {f32bits(1/512)}, v8')
    for a in range(4): A(f'v_mov_b32 v{8+a}, 0')
    for c in range(64):
        A(f'v_sub_f32 v{12+(c&3)}, v{X+c}, v7\nv_fmac_f32 v{8+(c&3)}, v{12+(c&3)}, v{12+(c&3)}')
    A('v_add_f32 v8, v8, v9\nv_add_f32 v10, v10, v11\nv_add_f32 v8, v8, v10')
    red8(8)
    A(f'''v_mul_f32 v8, {f32bits(1/512)}, v8
v_cvt_pk_bf16_f32 v9, v7, v8
v_lshlrev_b32 v7, 16, v9
v_and_b32 v8, s38, v9
v_add_f32 v8, {f32bits(1e-5)}, v8
v_cvt_pk_bf16_f32 v8, v8, v8
v_and_b32 v8, s38, v8
v_sqrt_f32 v8, v8
v_cvt_pk_bf16_f32 v8, v8, v8
v_and_b32 v8, s38, v8
v_rcp_f32 v8, v8''')
    confirm(A, 'ln_conf')
    for hi in range(2):
        for g in range(4):
            b = 16 * hi + 8 * (g >> 1) + 2 * (g & 1)
            o = RAW + 4 * (4 * hi + g)
            for q, c in enumerate((b, b + 4, b + 1, b + 5)):
                lo, hh = X + c, X + c + 32
                A(f'''v_sub_f32 v{lo}, v{lo}, v7
v_sub_f32 v{hh}, v{hh}, v7
v_cvt_pk_bf16_f32 v{hh}, v{lo}, v{hh}
v_lshlrev_b32 v{lo}, 16, v{hh}
v_and_b32 v{hh}, s38, v{hh}
v_mul_f32 v{lo}, v{lo}, v8
v_mul_f32 v{hh}, v{hh}, v8
v_cvt_pk_bf16_f32 v{o+q}, v{lo}, v{hh}''')
            A(f'buffer_store_dwordx4 {vr(o)}, v5, s[8:11], s39 offen offset:{hi*1024+g*256} sc1')
    if gate: wait_dbg(A, 'ln_gate', DBG_CHAINCNT, 128, 8, 9)
    else: A('s_waitcnt vmcnt(0)')
    A(f's_lshl_b32 s36, s{sseg}, 7\ns_add_u32 s36, s36, {FLAGS+F_XN}')
    atomic_flag(A, 's36', 8)

def wait_all_xn(A, lbl, gate=True):
    if gate: wait_dbg(A, f'{lbl}_gate', DBG_CHAINCNT, 128, 8, 9)
    A(f'''v_lshlrev_b32 v8, 7, v{W_LANE}
s_mov_b32 s37, {FLAGS+F_XN}
{lbl}:
buffer_load_dword v9, v8, s[8:11], s37 offen sc1
s_waitcnt vmcnt(0)
v_cmp_gt_u32 vcc, 4, v9
s_cbranch_vccz {lbl}_ok
s_sleep 2
s_sub_u32 s35, s35, 1
s_cbranch_scc0 {lbl}
s_mov_b32 s35, 0
{lbl}_ok:''')

def xf_loop(A, tag, stride, nst, mfmas, epilogue, flag_soff, active=None):
    XV = 4; XA = [[8, 12], [16, 20]]
    def dma(seg):
        A(f'''s_min_u32 s36, s{seg}, 63
s_lshl_b32 s36, s36, 15
s_add_u32 s36, s36, s42
s_add_u32 s37, s36, 4096
s_mov_b32 m0, s43''')
        for i in range(4): A(f'buffer_load_dwordx4 v{W_L16}, s[8:11], s36 offen offset:{i*1024} sc1 lds')
        A('s_add_u32 m0, s43, 4096')
        for i in range(4): A(f'buffer_load_dwordx4 v{W_L16}, s[8:11], s37 offen offset:{i*1024} sc1 lds')
        A('s_xor_b32 s43, s43, 0x8000')
    A(f'''s_lshl_b32 s43, s32, 13
s_add_u32 s42, s43, {XFB}
v_mov_b32 v{XV}, v{W_L16}
s_mov_b32 s44, -1''')
    dma(40)
    A(f'''s_waitcnt vmcnt(0)
{tag}_top:
s_barrier
s_add_u32 s41, s40, {stride}''')
    dma(41)
    if active: A(f's_cmp_eq_u32 s{active}, 0\ns_cbranch_scc1 {tag}_skip')
    def rd(ks):
        for tt in range(2): A.ds(f'ds_read_b128 {vr(XA[ks&1][tt])}, v{XV} offset:{tt*16384 + ks*1024}', f'x{ks}')
    A.lds_q = []
    rd(0)
    for ks in range(16):
        A.wait_lds(f'x{ks}')
        if ks < 15: rd(ks + 1)
        mfmas(ks, XA[ks & 1])
        if ks == 13:
            A(f's_waitcnt vmcnt(0)\ns_cmp_lt_i32 s44, 0\ns_cbranch_scc1 {tag}_noflag')
            flag_soff(44); atomic_flag(A, 's36', 6)
            A(f'{tag}_noflag:')
    epilogue()
    A(f'''s_mov_b32 s44, s40
{tag}_next:
v_xor_b32 v{XV}, 0x8000, v{XV}
s_mov_b32 s40, s41
s_cmp_lt_u32 s40, 64
s_cbranch_scc1 {tag}_top
s_waitcnt vmcnt(0)''')
    if active: A(f's_cmp_eq_u32 s{active}, 0\ns_cbranch_scc1 {tag}_end')
    flag_soff(44); atomic_flag(A, 's36', 6)
    if active:
        A(f's_branch {tag}_end\n{tag}_skip:\ns_waitcnt vmcnt(0)\ns_branch {tag}_next')
    A(f'{tag}_end:\ns_barrier')

def MFd(A, d, a, b, c): A(f'v_mfma_f32_16x16x32_bf16 {d}, {a}, {b}, {c}')

def qkv_frag(m, t, T):
    i = 2 * t + T
    return {'k': f'a[{8*i}:{8*i+7}]', 'v': f'a[{128+8*i}:{128+8*i+7}]', 'q': f'v[{128+8*i}:{128+8*i+7}]'}[m]

def emit_qkv(A, gate=True):
    A('''s_load_dwordx4 s[16:19], s[0:1], 16
s_load_dwordx2 s[24:25], s[0:1], 32
s_waitcnt lgkmcnt(0)
s_mov_b32 s20, s18
s_and_b32 s21, s19, 0xffff
s_mov_b32 s22, 0x400000
s_mov_b32 s23, 0x20000
s_and_b32 s17, s17, 0xffff
s_mov_b32 s18, 0x400000
s_mov_b32 s19, 0x20000
s_and_b32 s25, s25, 0xffff
s_mov_b32 s26, 0x400000
s_mov_b32 s27, 0x20000
s_lshl_b32 s45, s33, 8
s_lshl_b32 s37, s32, 6
s_add_u32 s45, s45, s37''')
    voff_dmap(A, 8192)
    units = []
    for t in range(8):
        for m in 'kvq':
            sr = {'q': 16, 'k': 20, 'v': 24}[m]
            units.append(([(sr, 45, drow(t, mp) * 8192) for mp in range(4)],
                          [[sub(qkv_frag(m, t, T), 2 * mp, 2) for T in range(2)] for mp in range(4)]))
    load_units(A, units)
    confirm(A, 'qkv_conf')
    prof(A, 2, 36, dbg=13)
    wait_all_xn(A, 'qkv_xn', gate)
    prof(A, 3, 36)
    ACC = 24; PKB = 72
    def acc(m, T, tt): return ACC + 4 * ('qkv'.index(m) * 4 + T * 2 + tt)
    def mfmas(ks, XA):
        for m in 'qkv':
            for T in range(2):
                w = sub(qkv_frag(m, ks >> 1, T), 4 * (ks & 1), 4)
                for tt in range(2):
                    d = vr(acc(m, T, tt)); c = '0' if ks == 0 else d
                    if m == 'v': MFd(A, d, vr(XA[tt]), w, c)
                    else: MFd(A, d, w, vr(XA[tt]), c)
    def epi():
        A(f'''s_lshl_b32 s36, s33, 6
s_add_u32 s36, s36, s40
s_lshl_b32 s37, s36, 14
s_lshl_b32 s36, s36, 13
s_lshl_b32 s38, s32, 10
s_add_u32 s36, s36, s38
s_add_u32 s36, s36, {QFB}
s_add_u32 s46, s36, 4096
s_add_u32 s39, s37, s38
s_add_u32 s39, s39, {KVB}
s_add_u32 s47, s39, 4096
s_add_u32 s37, s39, s38
s_add_u32 s37, s37, 8192''')
        def pk(o, a, b):
            A(f'''v_cvt_pk_bf16_f32 v{o}, v{a}, v{a+1}
v_cvt_pk_bf16_f32 v{o+1}, v{a+2}, v{a+3}
v_cvt_pk_bf16_f32 v{o+2}, v{b}, v{b+1}
v_cvt_pk_bf16_f32 v{o+3}, v{b+2}, v{b+3}''')
        n = 0
        for m, so in (('q', (36, 46)), ('k', (39, 47))):
            for tt in range(2):
                o = PKB + 4 * n; n += 1
                pk(o, acc(m, 0, tt), acc(m, 1, tt))
                A(f'buffer_store_dwordx4 {vr(o)}, v{W_L16}, s[8:11], s{so[tt]} offen sc1')
        for T in range(2):
            o = PKB + 4 * n; n += 1
            pk(o, acc('v', T, 0), acc('v', T, 1))
            A(f'buffer_store_dwordx4 {vr(o)}, v{W_L16}, s[8:11], s37 offen offset:{T*1024} sc1')
    def fl(seg): A(f's_lshl_b32 s36, s33, 8\ns_lshl_b32 s37, s{seg}, 2\ns_add_u32 s36, s36, s37')
    xf_loop(A, 'qkv', 7, 6, mfmas, epi, fl)
    prof(A, 4, 36, dbg=14)

def emit_gu(A, nsets):
    A('''s_load_dwordx4 s[16:19], s[0:1], 64
s_waitcnt lgkmcnt(0)
s_mov_b32 s20, s18
s_and_b32 s21, s19, 0xffff
s_mov_b32 s22, 1409024
s_mov_b32 s23, 0x20000
s_and_b32 s17, s17, 0xffff
s_mov_b32 s18, 1409024
s_mov_b32 s19, 0x20000
s_lshl_b32 s49, s48, 2
s_add_u32 s49, s49, s32
s_cmp_lt_u32 s49, 43
s_cselect_b32 s50, 1, 0
s_min_u32 s49, s49, 42
s_lshl_b32 s45, s49, 6''')
    voff_dmap(A, 2752)
    def frag(m, t, T):
        i = 2 * t + T; b = 128 * 'gu'.index(m) + 8 * i
        return f'a[{b}:{b+7}]'
    units = []
    for t in range(8):
        for m in 'gu':
            units.append(([({'g': 16, 'u': 20}[m], 45, drow(t, mp) * 2752) for mp in range(4)],
                          [[sub(frag(m, t, T), 2 * mp, 2) for T in range(2)] for mp in range(4)]))
    load_units(A, units)
    prof(A, 5, 36)
    ACC = 24; PKB = 72
    def acc(m, T, tt): return ACC + 4 * ('gu'.index(m) * 4 + T * 2 + tt)
    def mfmas(ks, XA):
        for m in 'gu':
            for T in range(2):
                w = sub(frag(m, ks >> 1, T), 4 * (ks & 1), 4)
                for tt in range(2):
                    d = vr(acc(m, T, tt)); c = '0' if ks == 0 else d
                    MFd(A, d, w, vr(XA[tt]), c)
    c1 = -2 * math.sqrt(2 / math.pi) * math.log2(math.e); c2 = c1 * 0.044715
    def epi():
        A(f'''s_mul_i32 s36, s40, {2*44*1024}
s_lshl_b32 s37, s49, 10
s_add_u32 s36, s36, s37
s_add_u32 s36, s36, {HFB}
s_add_u32 s37, s36, {44*1024}
s_mov_b32 s38, {f32bits(c2)}
v_mov_b32 v56, {f32bits(c1)}''')
        for tt in range(2):
            for T in range(2):
                g = acc('g', T, tt); u = acc('u', T, tt); t = 60
                for r in range(4): A(f'v_mul_f32 v{t+r}, v{g+r}, v{g+r}')
                for r in range(4): A(f'v_fma_f32 v{t+r}, v{t+r}, s38, v56')
                for r in range(4): A(f'v_mul_f32 v{t+r}, v{t+r}, v{g+r}')
                for r in range(4): A(f'v_exp_f32 v{t+r}, v{t+r}')
                for r in range(4): A(f'v_mul_f32 v{g+r}, v{g+r}, v{u+r}')
                for r in range(4): A(f'v_add_f32 v{t+r}, 1.0, v{t+r}')
                for r in range(4): A(f'v_rcp_f32 v{t+r}, v{t+r}')
                for r in range(4): A(f'v_mul_f32 v{g+r}, v{g+r}, v{t+r}')
                o = PKB + 4 * tt + 2 * T
                A(f'v_cvt_pk_bf16_f32 v{o}, v{g}, v{g+1}\nv_cvt_pk_bf16_f32 v{o+1}, v{g+2}, v{g+3}')
            A(f'buffer_store_dwordx4 {vr(PKB+4*tt)}, v{W_L16}, s[8:11], s{36+tt} offen sc1')
    def fl(seg): A(f's_lshl_b32 s36, s{seg}, 7\ns_add_u32 s36, s36, {FLAGS+F_H}')
    xf_loop(A, 'gu', nsets, 2, mfmas, epi, fl, active=50)
    prof(A, 6, 36)

def emit_att(A, stride):
    IDX, QW, TRA, B0, TMP = 4, 5, 6, 7, 8
    MF_ = [16 + 4 * i for i in range(8)]
    AK = [48, 52]; AV = [56, 60]
    KX = lambda tt, k: 64 + 16 * tt + 4 * k
    QX = lambda tt, k: 96 + 16 * tt + 4 * k
    VX = [128, 132]; KM = [136 + 4 * k for k in range(4)]
    S = {(0, 0): 152, (0, 1): 156, (1, 0): 160, (1, 1): 164, (1, 2): 168}
    PB = [172, 176]; PM = [180, 182]; VM = 184; ONES = 188; ONE2 = 192; NEG = 194
    LS = [196, 200]; O = lambda tt, T: 204 + 8 * tt + 4 * T
    OFR = [220, 224]
    L_M = 0; L_K = 8192
    A(f'''v_and_b32 v21, 8, v{W_LANE}
v_cmp_eq_u32 vcc, 0, v21
v_mov_b32 v22, 0xeeee
v_mov_b32 v23, 0x4444
v_cndmask_b32 v{IDX}, v22, v23, vcc
v_lshrrev_b32 v21, 5, v{W_LANE}
v_and_b32 v22, 15, v{W_LANE}
v_lshl_add_u32 v21, v21, 4, v22
v_lshlrev_b32 v21, 4, v21
v_bfe_u32 v22, v{W_LANE}, 4, 1
v_lshl_add_u32 v21, v22, 3, v21
s_lshl_b32 s38, s32, 9
v_add_u32 v{QW}, s38, v21
v_lshrrev_b32 v21, 2, v{W_LANE}
v_lshlrev_b32 v21, 4, v21
v_and_b32 v22, 1, v{W_LANE}
v_lshl_add_u32 v{TRA}, v22, 3, v21
s_lshl_b32 s53, s32, 11
v_add_u32 v{B0}, s53, v{W_L16}
s_mov_b32 s68, {f32bits(128 ** -0.5 * math.log2(math.e))}
v_mov_b32 v{ONES}, 0x3f803f80
v_mov_b32 v{ONES+1}, 0x3f803f80
v_mov_b32 v{ONES+2}, 0x3f803f80
v_mov_b32 v{ONES+3}, 0x3f803f80
s_mov_b32 s82, -1
s_mov_b32 s83, 0
v_cndmask_b32 v{ONE2}, 0, v{ONES}, s[82:83]
v_cndmask_b32 v{ONE2+1}, 0, v{ONES}, s[82:83]
v_mov_b32 v{NEG}, 0xf149f2ca
v_mov_b32 v{PB[0]+2}, 0
v_mov_b32 v{PB[0]+3}, 0
v_lshrrev_b32 v21, 4, v{W_LANE}
v_lshlrev_b32 v21, 2, v21
v_and_b32 v22, 15, v{W_LANE}''')
    for r in range(4):
        A(f'v_add_u32 v23, {r}, v21\nv_cmp_le_u32 s[{72+2*r}:{73+2*r}], v23, v22')
    A(f'''att_top:
s_lshl_b32 s37, s33, 8
s_lshl_b32 s38, s40, 2
s_add_u32 s37, s37, s38
v_mov_b32 v9, 0''')
    wait_cnt(A, 'att_kv', 8, 9, 's37', 4, 8, sleep=2)
    A(f'''s_lshl_b32 s36, s33, 6
s_add_u32 s36, s36, s40
s_lshl_b32 s37, s36, 14
s_lshl_b32 s36, s36, 13
s_add_u32 s36, s36, {QFB}
s_add_u32 s38, s36, 4096
s_add_u32 s37, s37, {KVB}
s_add_u32 s39, s37, 4096
s_add_u32 s46, s37, 8192''')
    for tt in range(2):
        for k in range(4):
            A(f'buffer_load_dwordx4 {vr(KX(tt,k))}, v{W_L16}, s[8:11], s{(37,39)[tt]} offen offset:{k*1024} sc1')
            A(f'buffer_load_dwordx4 {vr(QX(tt,k))}, v{W_L16}, s[8:11], s{(36,38)[tt]} offen offset:{k*1024} sc1')
    for T in range(2): A(f'buffer_load_dwordx4 {vr(VX[T])}, v{B0}, s[8:11], s46 offen offset:{T*1024} sc1')
    for a in AK + AV: A(f'v_mov_b64 v[{a}:{a+1}], 0\nv_mov_b64 v[{a+2}:{a+3}], 0')
    A('s_waitcnt vmcnt(0)')
    for k in range(4):
        for key in ((0, 1), (1, 1), (1, 2)):
            d = vr(S[key]); MFd(A, d, vr(KX(key[1] - 1, k)), vr(QX(key[0], k)), '0' if k == 0 else d)
    A(f'''s_lshl_b32 s47, s40, 13
s_add_u32 s47, s47, {GMEMB}
att_poll:
buffer_load_dwordx4 {vr(MF_[0])}, v{B0}, s[8:11], s47 offen sc1
buffer_load_dwordx4 {vr(MF_[1])}, v{B0}, s[8:11], s47 offen offset:1024 sc1
s_waitcnt vmcnt(0)
v_max3_u32 v8, v16, v17, v18
v_max3_u32 v8, v8, v19, v20
v_max3_u32 v8, v8, v21, v22
v_max_u32 v8, v8, v23
v_cmp_eq_u32 vcc, -1, v8
s_cbranch_vccz att_ok
s_sleep 1
s_sub_u32 s35, s35, 1
s_cbranch_scc0 att_poll
s_mov_b32 s35, 0
att_ok:
ds_write_b128 v{B0}, {vr(MF_[0])} offset:{L_M}
ds_write_b128 v{B0}, {vr(MF_[1])} offset:{L_M+1024}
s_waitcnt lgkmcnt(0)
s_barrier''')
    A.lds_q = []
    for t in range(8): A.ds(f'ds_read_b128 {vr(MF_[t])}, v{W_L16} offset:{L_M + t*1024}', f'm{t}')
    def SM(acc, t, m, T): A(f'v_smfmac_f32_16x16x64_bf16 {vr(acc)}, {vr(MF_[t])}, {qkv_frag(m,t,T)}, v{IDX}')
    for t in range(8):
        A.wait_lds(f'm{t}')
        SM(AK[0], t, 'k', 0); SM(AK[1], t, 'k', 1)
    fold = [f'v_permlane32_swap_b32 v{AK[0]+r}, v{AK[1]+r}' for r in range(4)] + [f'v_add_f32 v{AK[0]+r}, v{AK[0]+r}, v{AK[1]+r}' for r in range(4)]
    fold += [f'v_cvt_pk_bf16_f32 v8, v{AK[0]}, v{AK[0]+1}', f'v_cvt_pk_bf16_f32 v9, v{AK[0]+2}, v{AK[0]+3}']
    n = 0
    for t in range(8):
        for T in range(2):
            SM(AV[T], t, 'v', T); n += 1
            if 3 <= n <= 7: A(fold[2*(n-3)]); A(fold[2*(n-3)+1])
            if n == 8: A.ds(f'ds_write_b64 v{QW}, v[8:9] offset:{L_K}', 'kw')
            if n == 12:
                A.wait_lds('kw'); A('s_barrier')
            if n >= 13:
                k = n - 13
                for hf in range(2): A.ds(f'ds_read_b64_tr_b16 {vr(KM[k]+2*hf,2)}, v{TRA} offset:{L_K + k*512 + hf*256}', f'km{k}')
    for key in ((0, 1), (1, 2)):
        for r in range(4): A(f'v_cndmask_b32 v{S[key]+r}, v{NEG}, v{S[key]+r}, s[{72+2*r}:{73+2*r}]')
    for k in range(4):
        A.wait_lds(f'km{k}')
        for tt in range(2):
            d = vr(S[(tt, 0)]); MFd(A, d, vr(KM[k]), vr(QX(tt, k)), '0' if k == 0 else d)
    for T in range(2):
        A(f'v_cvt_pk_bf16_f32 v{VM+2*T}, v{AV[T]}, v{AV[T]+1}\nv_cvt_pk_bf16_f32 v{VM+2*T+1}, v{AV[T]+2}, v{AV[T]+3}')
    A(f'''s_lshl_b32 s36, s40, 18
s_lshl_b32 s37, s33, 12
s_add_u32 s36, s36, s37
s_lshl_b32 s37, s32, 10
s_add_u32 s36, s36, s37
s_add_u32 s36, s36, {OFB}
s_add_u32 s37, s36, 0x20000''')
    for tt in range(2):
        regs = [S[k] + r for k in S if k[0] == tt for r in range(4)]
        m = 8 + 2 * tt; t1 = m + 1
        A(f'v_max3_f32 v{m}, v{regs[0]}, v{regs[1]}, v{regs[2]}')
        i = 3
        while i + 1 < len(regs):
            A(f'v_max3_f32 v{m}, v{m}, v{regs[i]}, v{regs[i+1]}'); i += 2
        A(f'''v_max_f32 v{m}, v{m}, v{regs[i]}
v_mov_b32 v{t1}, v{m}
v_permlane32_swap_b32 v{m}, v{t1}
v_max_f32 v{m}, v{m}, v{t1}
v_mov_b32 v{t1}, v{m}
v_permlane16_swap_b32 v{m}, v{t1}
v_max_f32 v{m}, v{m}, v{t1}
v_mul_f32 v{m}, s68, v{m}''')
        for r in regs: A(f'v_fma_f32 v{r}, v{r}, s68, -v{m}')
        for r in regs: A(f'v_exp_f32 v{r}, v{r}')
        for key in S:
            if key[0] != tt: continue
            o = PM[tt] if key[1] == 0 else PB[tt] + 2 * (key[1] - 1)
            A(f'v_cvt_pk_bf16_f32 v{o}, v{S[key]}, v{S[key]+1}\nv_cvt_pk_bf16_f32 v{o+1}, v{S[key]+2}, v{S[key]+3}')
        MFd(A, vr(LS[tt]), vr(ONES), vr(PB[tt]), '0')
        for T in range(2): MFd(A, vr(O(tt, T)), vr(VX[T]), vr(PB[tt]), '0')
        A(f'v_mfma_f32_16x16x16_bf16 {vr(LS[tt])}, {vr(ONE2,2)}, {vr(PM[tt],2)}, {vr(LS[tt])}')
        for T in range(2): A(f'v_mfma_f32_16x16x16_bf16 {vr(O(tt,T))}, {vr(VM+2*T,2)}, {vr(PM[tt],2)}, {vr(O(tt,T))}')
    for tt in range(2):
        A(f'v_rcp_f32 v12, v{LS[tt]}')
        for T in range(2):
            o = O(tt, T)
            for r in range(4): A(f'v_mul_f32 v{o+r}, v{o+r}, v12')
            A(f'v_cvt_pk_bf16_f32 v{OFR[tt]+2*T}, v{o}, v{o+1}\nv_cvt_pk_bf16_f32 v{OFR[tt]+2*T+1}, v{o+2}, v{o+3}')
        A(f'buffer_store_dwordx4 {vr(OFR[tt])}, v{W_L16}, s[8:11], s{36+tt} offen sc1')
    A(f'''s_waitcnt vmcnt(0)
s_barrier
s_cmp_lg_u32 s32, 0
s_cbranch_scc1 att_nf
s_lshl_b32 s36, s40, 7
s_add_u32 s36, s36, {FLAGS+F_O}''')
    atomic_flag(A, 's36', 8)
    A('att_nf:')
    prof(A, 16, 10, 40)
    A(f'''s_add_u32 s40, s40, {stride}
s_cmp_lt_u32 s40, 64
s_cbranch_scc1 att_top''')

def emit_out(A, nsets):
    A('''s_load_dwordx2 s[4:5], s[0:1], 40
s_load_dwordx4 s[20:23], s[0:1], 80
s_load_dwordx2 s[6:7], s[0:1], 0
s_waitcnt lgkmcnt(0)''')
    srd(A, 16, 4, 0x400000)
    srd(A, 24, 22, 0x200000)
    A('s_and_b32 s21, s21, 0xffff\ns_mov_b32 s22, 1409024\ns_mov_b32 s23, 0x20000')
    srd(A, 28, 6, 0x200000)
    A(f'''v_bfe_u32 v21, v{W_LANE}, 1, 4
v_lshlrev_b32 v21, 10, v21
v_lshrrev_b32 v22, 5, v{W_LANE}
v_lshl_add_u32 v21, v22, 5, v21
v_and_b32 v22, 1, v{W_LANE}
v_lshl_add_u32 v{W_VO}, v22, 4, v21
s_lshl_b32 s37, s48, 6
s_lshl_b32 s45, s32, 20
s_add_u32 s45, s45, s37
s_lshl_b32 s46, s32, 15
s_add_u32 s46, s46, s37''')
    def wo(ks, T): return ar(8 * ks + 4 * T)
    def wd(i, T): return vr(168 + 8 * i + 4 * T)
    units = []
    for u in range(6):
        dm = []; de = []
        for mp in range(4):
            i = 2 * u + (mp >> 1); m2 = mp & 1
            dm.append((20, 46, (128 * i + 16 * m2) * 1024))
            de.append([sub(wd(i, T) if i < 11 else vr(32 + 4 * T), 2 * m2, 2) for T in range(2)])
        units.append((dm, de))
    for u in range(16):
        dm = []; de = []
        for mp in range(4):
            ks = 2 * u + (mp >> 1); m2 = mp & 1
            dm.append((16, 45, (32 * ks + 16 * m2) * 1024))
            de.append([sub(wo(ks, T), 2 * m2, 2) for T in range(2)])
        units.append((dm, de))
    load_units(A, units)
    prof(A, 7, 36, dbg=15)
    ACC = [16, 20]; XR = 24; BF = 32; RW = 4; OA = 5
    A(f'''s_lshl_b32 s36, s32, 11
v_add_u32 v{RW}, s36, v{W_L16}
v_and_b32 v21, 15, v{W_LANE}
v_lshlrev_b32 v21, 10, v21
v_lshrrev_b32 v22, 4, v{W_LANE}
v_lshl_add_u32 v21, v22, 3, v21
s_lshl_b32 s36, s48, 6
s_lshl_b32 s37, s32, 5
s_add_u32 s36, s36, s37
v_add_u32 v{OA}, s36, v21
s_lshl_b32 s36, s32, 10
v_add_u32 v6, s36, v{W_L16}
v_mov_b32 v9, 0
out_top:
s_lshr_b32 s41, s40, 1
s_lshl_b32 s42, s41, 7
s_cmp_lg_u32 s32, 0
s_cbranch_scc1 out_h_ok
s_add_u32 s37, s42, {FLAGS+F_H}''')
    wait_cnt(A, 'out_h', 8, 9, 's37', 43, 8, sleep=2)
    A(f'''s_barrier
s_mul_i32 s43, s40, {44*1024}
s_add_u32 s43, s43, {HFB}''')
    for i in range(11):
        A(f's_add_u32 s36, s32, {4*i}\ns_min_u32 s36, s36, 42\ns_lshl_b32 s36, s36, 10\ns_add_u32 s36, s36, s43')
        A(f'buffer_load_dwordx4 {vr(BF+4*i)}, v{W_L16}, s[8:11], s36 offen sc1')
    A(f's_lshl_b32 s44, s40, 14\nbuffer_load_dwordx2 {vr(XR,2)}, v{OA}, s[28:31], s44 offen')
    for i in range(11):
        A(f's_waitcnt vmcnt({11-i})')
        for T in range(2): MFd(A, vr(ACC[T]), wd(i, T), vr(BF + 4 * i), '0' if i == 0 else vr(ACC[T]))
    A(f'''s_cmp_lg_u32 s32, 0
s_cbranch_scc1 out_o_ok
s_add_u32 s37, s42, {FLAGS+F_O}''')
    wait_cnt(A, 'out_o', 8, 9, 's37', 32, 8, sleep=1)
    A(f'''s_barrier
s_lshl_b32 s36, s40, 17
s_lshl_b32 s37, s32, 15
s_add_u32 s36, s36, s37
s_add_u32 s36, s36, {OFB}''')
    for i in range(32):
        A(f'buffer_load_dwordx4 {vr(BF+4*i)}, v{W_L16}, s[8:11], s36 offen offset:{(i&3)*1024} sc1')
        if i & 3 == 3: A('s_add_u32 s36, s36, 4096')
    for i in range(32):
        A(f's_waitcnt vmcnt({31-i})')
        for T in range(2): MFd(A, vr(ACC[T]), wo(i, T), vr(BF + 4 * i), vr(ACC[T]))
    A(f'''ds_write_b128 v{RW}, {vr(ACC[0])}
ds_write_b128 v{RW}, {vr(ACC[1])} offset:1024
s_waitcnt lgkmcnt(0)
s_barrier
s_cmp_ge_u32 s32, 2
s_cbranch_scc1 out_next''')
    for w in range(4): A(f'ds_read_b128 {vr(BF+4*w)}, v6 offset:{w*2048}')
    A(f'''v_lshlrev_b32 v26, 16, v{XR}
v_and_b32 v27, 0xffff0000, v{XR}
v_lshlrev_b32 v28, 16, v{XR+1}
v_and_b32 v29, 0xffff0000, v{XR+1}
s_waitcnt lgkmcnt(0)''')
    for r in range(4):
        A(f'v_add_f32 v{BF+r}, v{BF+r}, v{BF+4+r}\nv_add_f32 v{BF+8+r}, v{BF+8+r}, v{BF+12+r}')
    for r in range(4):
        A(f'v_add_f32 v{BF+r}, v{BF+r}, v{BF+8+r}\nv_add_f32 v{BF+r}, v{BF+r}, v{26+r}')
    A(f'''v_cvt_pk_bf16_f32 v30, v{BF}, v{BF+1}
v_cvt_pk_bf16_f32 v31, v{BF+2}, v{BF+3}
buffer_store_dwordx2 v[30:31], v{OA}, s[24:27], s44 offen
out_next:''')
    prof(A, 16, 10, 41)
    A(f'''s_add_u32 s40, s40, {nsets}
s_cmp_lt_u32 s40, 128
s_cbranch_scc1 out_top''')

NAME = 'parallel_sum__memory_aug_recurrent_mem_tr__geglu_ffn__prompt_kernel'

def gen_full(profile=False, warm=2, wb=1, badguess=0, codepf=0, **ckw):
    PROF['on'] = profile
    A = Asm()
    A.raw(f'; @launch kernel={NAME} grid=(256,1,1) block=(256,1,1) lds=163840')
    A.raw('.amdgcn_target "amdgcn-amd-amdhsa--gfx950"')
    A.raw(f'.text\n.globl {NAME}\n.p2align 8\n.type {NAME},@function')
    A.label(NAME)
    A('s_cmp_ge_u32 s2, 256\ns_cbranch_scc1 L_end')
    if codepf:
        A(f'''s_getpc_b64 s[6:7]
L_pc0:
s_lshr_b32 s4, s2, 3
s_and_b32 s4, s4, 3
s_lshl_b32 s4, s4, 14
v_lshlrev_b32 v2, 6, v0
v_add_u32 v2, s4, v2
v_min_u32 v2, L_end-L_pc0, v2
global_load_dword v127, v2, s[6:7]''')
    common_entry(A)
    A(f'''s_and_b32 s3, s3, 7
s_lshr_b32 s36, s2, 3
s_lshl_b32 s94, s3, 5
s_add_u32 s94, s94, s36
{"s_and_b32 s94, s2, 0xf0" if badguess else ""}
s_mov_b32 s95, 0
s_mov_b32 s96, s3
s_cmp_lg_u32 s32, 0
s_cbranch_scc1 L_role
s_mov_b64 exec, 1
s_lshr_b32 s36, s94, 5
s_and_b32 s37, s94, 31
s_mov_b32 s38, 0
L_claim:
s_lshl_b32 s39, s36, 2
s_cmp_eq_u32 s36, 0
s_cselect_b32 s39, {DBG_CTICKET}, s39
v_mov_b32 v3, s39
s_lshl_b32 s39, 1, s37
v_mov_b32 v4, s39
buffer_atomic_or v4, v3, s[12:15], 0 offen sc0 sc1
s_waitcnt vmcnt(0)
v_readfirstlane_b32 s39, v4
s_bitcmp0_b32 s39, s37
s_cbranch_scc1 L_claimed
s_ff0_i32_b32 s37, s39
s_cmp_ge_i32 s37, 0
s_cbranch_scc1 L_claim
s_mov_b32 s37, 0
s_add_u32 s38, s38, 1
s_add_u32 s36, s36, 1
s_cmp_le_u32 s36, 7
s_cselect_b32 s36, s36, 1
s_cmp_ge_u32 s38, 8
s_cselect_b32 s36, 0, s36
s_cmp_le_u32 s38, 8
s_cbranch_scc1 L_claim
s_mov_b32 s36, 8
L_claimed:
s_lshl_b32 s36, s36, 5
s_add_u32 s36, s36, s37
v_mov_b32 v3, {L_SLOT}
v_mov_b32 v4, s36
ds_write_b32 v3, v4
s_waitcnt lgkmcnt(0)
s_mov_b64 exec, -1
L_role:
s_cmp_ge_u32 s94, 256
s_cbranch_scc1 L_end
v_mbcnt_lo_u32_b32 v0, -1, 0
v_mbcnt_hi_u32_b32 v0, -1, v0
s_lshr_b32 s3, s94, 5
s_and_b32 s33, s94, 31
s_cmp_eq_u32 s96, 0
s_cselect_b32 s2, 1, 0x10001
s_lshl_b32 s91, s94, 9
s_add_u32 s91, s91, 0x6000000''')
    prof(A, 0, 36, dbg=8)
    A('''s_cmp_lg_u32 s3, 0
s_cbranch_scc1 L_worker''')
    emit_chain(A, gate=True, **ckw)
    if wb: A('s_waitcnt vmcnt(0)\ns_cmp_lg_u32 s32, 0\ns_cbranch_scc1 L_end\ns_cmp_lg_u32 s33, 0\ns_cbranch_scc1 L_end\nbuffer_wbl2 sc1')
    A('s_endpgm\nL_worker:')
    worker_setup(A)
    A('''s_sub_u32 s88, s3, 1
s_lshl_b32 s88, s88, 5
s_add_u32 s88, s88, s33          ; wi
s_mul_i32 s33, s88, 9363
s_lshr_b32 s33, s33, 16          ; h = wi/7
s_mul_i32 s36, s33, 7
s_sub_u32 s89, s88, s36          ; r = wi%7
''')
    if warm:
        A('s_cmp_ge_u32 s89, 5\ns_cbranch_scc1 L_ln')
        emit_warm(A, '' if warm == 2 else 'nt')
        A('s_branch L_noln\nL_ln:')
    A('''s_cmp_lt_u32 s89, 5
s_cbranch_scc1 L_noln
s_lshl_b32 s90, s33, 1
s_add_u32 s90, s90, s89
s_sub_u32 s90, s90, 5''')
    emit_ln(A, 90)
    A('L_noln:\ns_mov_b32 s40, s89')
    prof(A, 1, 36)
    emit_qkv(A)
    A('''s_cmp_lt_u32 s89, 5
s_cbranch_scc1 L_gu
s_sub_u32 s40, s89, 5''')
    emit_att(A, 2)
    A('''s_endpgm
L_gu:
s_mul_i32 s90, s33, 5
s_add_u32 s90, s90, s89          ; oi
s_cmp_ge_u32 s90, 154
s_cbranch_scc1 L_out
s_mul_i32 s40, s90, 5958
s_lshr_b32 s40, s40, 16
s_mul_i32 s36, s40, 11
s_sub_u32 s48, s90, s36''')
    emit_gu(A, 14)
    A('''L_out:
s_lshr_b32 s40, s90, 4
s_and_b32 s48, s90, 15''')
    emit_out(A, 10)
    if PROF['on'] == 'dbg': prof(A, 0, 36, dbg=12)
    A('L_end:\ns_endpgm')
    A.raw('.section .rodata,"a"\n.p2align 6')
    A.raw(kd(NAME))
    return A.text()

if __name__ == '__main__':
    assert all((w * 9363) >> 16 == w // 7 for w in range(224)) and all((w * 5958) >> 16 == w // 11 for w in range(160))
    hdr = open('parallel_sum__memory_aug_recurrent_mem_tr__geglu_ffn__prompt.s.ref').read().split('; Override')[0]
    kw = dict(dB0=16, dA=16, b1pos=7, kfs=6)
    open('full.s', 'w').write(hdr + gen_full(**kw))
    open('diag.s', 'w').write(hdr + gen_full(profile='dbg', **kw))
    open('diag2.s', 'w').write(hdr + gen_full(profile='dbg', wb=0, **kw))
    for i, ex in enumerate(eval(sys.argv[1]) if len(sys.argv) > 1 else []):
        k2 = dict(kw); k2.update(ex)
        open(f'var{i}.s', 'w').write(hdr + gen_full(**k2))
        open(f'var{i}_prof.s', 'w').write(hdr + gen_full(profile=True, **k2))
    open('full_prof.s', 'w').write(hdr + gen_full(profile=True, **kw))
```

```python
import sys, math, struct
sys.path.insert(0, 'dev')
from asmlib import Asm

FLAGS = 0x0000000
MEMB  = 0x0070000
HINTB = 0x0068000
PARTB = 0x0100000
GMEMB = 0x0080000
XFB   = 0x0200000
QFB   = 0x1000000
KVB   = 0x2000000
OFB   = 0x4000000
HFB   = 0x5000000
WS_BYTES = 0x10000000
DBG_TICKET = 0
DBG_CHAINCNT = 192
DBG_CTICKET = 128
DBG_CHAINB = 224
L_SLOT = 163836
F_RB = 0x3000; F_XN = 0x2000; F_H = 0x4000; F_O = 0x6000

def f32bits(x): return struct.unpack('<I', struct.pack('<f', x))[0]

def vr(b, n=4): return f'v[{b}:{b+n-1}]'

def srd(A, s, ptr_lo, nbytes):
    A(f'''s_mov_b32 s{s}, s{ptr_lo}
s_and_b32 s{s+1}, s{ptr_lo+1}, 0xffff
s_mov_b32 s{s+2}, {nbytes}
s_mov_b32 s{s+3}, 0x20000''')

PROFB = 0x6000000
PROF = {'on': False, 'n': 0}
def prof(A, idx, vt=None, sidx=None, cyc=False, dbg=None):
    if PROF['on'] == 'dbg':
        if dbg is None: return
        PROF['n'] += 1; l = f"prof_{PROF['n']}"
        A(f'''s_cmp_lg_u32 s32, 0
s_cbranch_scc1 {l}
s_memrealtime s[92:93]
s_waitcnt lgkmcnt(0)
s_and_b32 s92, s92, 0x3fffffff
{"s_not_b32 s92, s92" if dbg == 8 else ""}
s_mov_b64 exec, 1
v_mov_b32 v{vt}, s92
v_mov_b32 v{vt+1}, {dbg*4}
buffer_atomic_umax v{vt}, v{vt+1}, s[12:15], 0 offen sc1
s_mov_b64 exec, -1
{l}:''')
        return
    if not PROF['on']: return
    PROF['n'] += 1; l = f"prof_{PROF['n']}"
    A(f'''s_cmp_lg_u32 s32, 0
s_cbranch_scc1 {l}
s_memrealtime s[92:93]
s_memtime s[100:101]
s_waitcnt lgkmcnt(0)
{"s_bitcmp1_b32 s33, 0" + chr(10) + "s_cselect_b32 s92, s100, s92" if cyc else ""}
s_mov_b64 exec, 1
v_mov_b32 v{vt}, s92
v_mov_b32 v{vt+1}, 0''')
    if sidx is None: A(f's_add_u32 s93, s91, {idx*4}')
    else: A(f's_lshl_b32 s93, s{sidx}, 2\ns_add_u32 s93, s93, s91\ns_add_u32 s93, s93, {idx*4}')
    A(f'''buffer_store_dword v{vt}, v{vt+1}, s[8:11], s93 offen
s_mov_b64 exec, -1
{l}:''')

def wait_cnt(A, lbl, srdn, voff, soff, target, vt, sleep=0):
    A(f'''{lbl}:
buffer_load_dword v{vt}, v{voff}, s[{srdn}:{srdn+3}], {soff} offen sc1
s_waitcnt vmcnt(0)
v_readfirstlane_b32 s39, v{vt}
s_and_b32 s36, s39, 0xffff
s_cmp_ge_u32 s36, {target}
s_cbranch_scc1 {lbl}_ok
{f"s_sleep {sleep}" if sleep else ""}
s_sub_u32 s35, s35, 1
s_cbranch_scc0 {lbl}
s_mov_b32 s35, 0
{lbl}_ok:''')

def wait_dbg(A, lbl, off, target, vt, va):
    A(f'v_mov_b32 v{va}, {off}')
    wait_cnt(A, lbl, 12, va, 0, target, vt, sleep=2)

def confirm(A, lbl):
    A(f'''s_cmp_lg_u32 s95, 0
s_cbranch_scc1 {lbl}
s_mov_b32 s95, 1
s_barrier
v_mov_b32 v14, {L_SLOT}
ds_read_b32 v14, v14
s_waitcnt lgkmcnt(0)
v_readfirstlane_b32 s36, v14
s_barrier
s_cmp_eq_u32 s36, s94
s_cbranch_scc1 {lbl}
s_mov_b32 s94, s36
s_waitcnt vmcnt(0)
s_barrier
s_branch L_role
{lbl}:''')

L_MEM = 0; L_OQK = 8192; L_KV = 16384; L_W = 49152; L_WSZ = 28672
V_L16, V_IDX, V_PST, V_SELV, V_MST, V_QW, V_TR, V_B0, V_B1, V_B2, V_B3, V_WV = range(12)
T0, T1, T2, T3 = 12, 13, 14, 15
M = [16, 20, 24, 36, 28, 40, 32, 44]
AQ0, AQ1, AK0, AK1, AV0, AV1 = 48, 52, 56, 60, 64, 68
P = [72 + 8 * i for i in range(5)]
VB = [V_B0, V_B1, V_B2, V_B3]


def chain_frag_map():
    units = [(m, t) for m in 'qkv' for t in range(8)] + [('o', k, u) for k in range(4) for u in range(2)]
    backed = [('v', 0), ('v', 1), ('k', 0), ('k', 1), ('o', 1, 1), ('o', 2, 1), ('o', 3, 1)]
    res = [u for u in units if u not in backed]
    order = [('q', t) for t in (0, 2, 1, 3, 4, 6, 5, 7)] + [(m, t) for m in 'vk' for t in (4, 6, 5, 7)]
    order += [('o', k, 0) for k in range(4)] + [('o', 0, 1)] + [(m, t) for m in 'vk' for t in (2, 0, 3, 1)] + [('o', k, 1) for k in (1, 2, 3)]
    assert sorted(map(str, order)) == sorted(map(str, units))
    loc = {}
    regs = [f'a[{8*i}:{8*i+7}]' for i in range(32)] + [f'v[{112+8*i}:{112+8*i+7}]' for i in range(18)]
    k = 0
    for u in res:
        for T in range(2):
            loc[u + (T,)] = ('reg', regs[k]); k += 1
    assert k == 50
    for i, u in enumerate(backed):
        for T in range(2):
            loc[u + (T,)] = ('lds', i, T)
    return loc, order

def sub(reg, lo, n):
    c = reg[0]; b = int(reg[2:reg.index(':')])
    return f'{c}[{b+lo}:{b+lo+n-1}]'

def emit_chain(A, sc='', tag='c', nsteps=63, gate=False, stamps=False, dB0=0, dB1=0, dA=0, nokv=0, nocomm=0, stsel=None, abl=(),
               prepos=20, depth=6, early1=1, nB=2, gB=24, dmapos=(8, 11, 14, 17), respos=(22, 29), reppos=25, b1pos=5, pf='sc1', dm='sc1', b3k=1, kfs=5, b2pos=42, wpol='', unroll=1, cpre=1, touch=1, swz=5, noB5=0, dI=0, budget=4000000, repidle=0, nA=2, gA=32, midA=2, hint=0, gH=12, pmid=None, look=6, pre0=2):
    loc, order = chain_frag_map()
    sc = (' ' + sc) if sc else ''
    A(f"""
s_load_dwordx4 s[16:19], s[0:1], 16
s_load_dwordx4 s[24:27], s[0:1], 32
s_load_dwordx2 s[4:5], s[0:1], 8
v_and_b32 v20, 63, v0                 ; lane
v_lshlrev_b32 v{V_L16}, 4, v20
s_mul_i32 s52, s32, {L_WSZ}
s_add_u32 s52, s52, {L_W}
s_mul_i32 s53, s32, 12288
v_bfe_u32 v21, v20, 4, 1               ; g>>1
v_bfe_u32 v22, v20, 3, 1               ; g&1
v_bfe_u32 v23, v20, 2, 1               ; R>>1
v_bfe_u32 v24, v20, 1, 1               ; R&1
v_and_b32 v25, 1, v20                  ; p
v_lshrrev_b32 v26, 5, v20              ; T
v_lshlrev_b32 v27, 3, v21
v_lshl_add_u32 v27, v22, 1, v27
v_lshl_add_u32 v27, v23, 2, v27
v_lshl_add_u32 v27, v24, 5, v27
v_lshlrev_b32 v27, 13, v27
v_lshl_add_u32 v27, v26, 5, v27
v_lshl_add_u32 v32, v25, 4, v27
v_lshlrev_b32 v27, 4, v22
v_lshl_add_u32 v27, v21, 2, v27
v_add_u32 v27, v27, v24
v_lshlrev_b32 v27, 10, v27
v_lshl_add_u32 v27, v26, 6, v27
v_lshl_add_u32 v27, v23, 5, v27
v_lshl_add_u32 v33, v25, 4, v27
v_lshlrev_b32 v27, 3, v20
v_add_u32 v34, s52, v27
v_add_u32 v35, s53, v27
s_lshl_b32 s36, s33, 8
s_lshl_b32 s37, s32, 6
s_add_u32 s36, s36, s37                ; h*256+w*64
s_lshl_b32 s37, s32, 1
""")
    for tau in range(8):
        A(f's_xor_b32 s38, s37, {tau}\ns_lshl_b32 s38, s38, 19\ns_add_u32 s{40+tau}, s38, s36')
    A('s_lshl_b32 s36, s33, 17\ns_lshl_b32 s37, s32, 8\ns_add_u32 s36, s36, s37')
    for k in range(4):
        A(f's_xor_b32 s38, s32, {k}\ns_lshl_b32 s38, s38, 15\ns_add_u32 s{48+k}, s38, s36')
    A(f"""
s_lshr_b32 s36, s33, 3
s_lshl_b32 s36, s36, 4
s_and_b32 s37, s32, 1
s_lshl_b32 s37, s37, 3
s_add_u32 s36, s36, s37
s_and_b32 s39, s33, 7
s_add_u32 s37, s36, s39
s_lshl_b32 s61, s37, 7                 ; Gm*128
v_lshrrev_b32 v21, 4, v20
v_bfe_u32 v22, v20, 2, 1
v_lshl_add_u32 v21, v21, 1, v22
v_lshlrev_b32 v23, 4, v21
v_and_b32 v22, 3, v20
v_lshl_add_u32 v23, v22, 2, v23
v_add_u32 v{V_MST}, s61, v23
v_lshlrev_b32 v24, 10, v21
v_lshl_add_u32 v24, v22, 1, v24
s_lshl_b32 s36, s36, 4
s_lshl_b32 s39, s39, 3
s_add_u32 s39, s36, s39
s_waitcnt lgkmcnt(0)
s_mov_b32 s20, s18
s_and_b32 s21, s19, 0xffff
s_mov_b32 s22, 0x400000
s_mov_b32 s23, 0x20000
s_and_b32 s17, s17, 0xffff
s_mov_b32 s18, 0x400000
s_mov_b32 s19, 0x20000
s_mov_b32 s28, s26
s_and_b32 s29, s27, 0xffff
s_mov_b32 s30, 0x400000
s_mov_b32 s31, 0x20000
s_and_b32 s25, s25, 0xffff
s_mov_b32 s26, 0x400000
s_mov_b32 s27, 0x20000
""")
    srd(A, 84, 4, 8192)
    A('buffer_load_ushort v38, v24, s[84:87], s39 offen\nbuffer_load_ushort v39, v24, s[84:87], s39 offen offset:64')
    NU = len(order)
    fin = {n: loc[order[n] + (0,)][1] for n in range(NU) if loc[order[n] + (0,)][0] == 'lds'}
    slot_of = {}; issue_at = {}; busy = {}; state = {'nxt': 0}
    def try_issue(now):
        while state['nxt'] < NU and state['nxt'] - now <= (pre0 if now < 0 else depth):
            nxt = state['nxt']
            if nxt in fin: cand = [fin[nxt]] if fin[nxt] not in busy else []
            else:
                soon = {fin[m] for m in fin if nxt < m <= nxt + look}
                cand = [s_ for s_ in (7, 8, 9, 0, 1, 2, 3, 4, 5, 6) if s_ not in busy and s_ not in soon and not (s_ == 6 and now < 0)]
            if not cand: break
            busy[cand[0]] = nxt; slot_of[nxt] = cand[0]; issue_at[nxt] = now; state['nxt'] += 1
    try_issue(-1)
    for n in range(NU):
        if n >= 1 and (n - 1) not in fin: del busy[slot_of[n - 1]]
        try_issue(n)
        assert n + 1 >= NU or (n + 1) in slot_of, n
    if tag == 'dbg': print([(n, slot_of[n], issue_at[n]) for n in range(NU)])
    def issue(n):
        u = order[n]; sl = slot_of[n]
        for mp in range(4):
            if sl < 7: A(f's_add_u32 m0, s52, {sl*4096 + mp*1024}')
            else: A(f's_add_u32 m0, s53, {(sl-7)*4096 + mp*1024}')
            if u[0] == 'o':
                A(f's_add_u32 s38, s{48+u[1]}, {(8*(mp>>1)+2*(mp&1))*1024 + 128*u[2]}')
                A(f'buffer_load_dwordx4 v33, s[28:31], s38 offen {wpol} lds')
            else:
                base = {'q': 16, 'k': 20, 'v': 24}[u[0]]
                A(f's_add_u32 s38, s{40+u[1]}, {(16*(mp>>1)+(mp&1))*8192}')
                A(f'buffer_load_dwordx4 v32, s[{base}:{base+3}], s38 offen {wpol} lds')
    npre = 0
    for m in range(NU):
        if issue_at[m] == -1: issue(m); npre += 4
    if gate: confirm(A, f'{tag}_conf')
    A(f"""
s_mov_b32 s35, {budget}
s_lshl_b32 s36, s32, 11                ; w*2048
v_add_u32 v{V_B0}, s36, v{V_L16}
v_xor_b32 v{V_B1}, 2048, v{V_B0}
v_xor_b32 v{V_B2}, 4096, v{V_B0}
v_xor_b32 v{V_B3}, 6144, v{V_B0}
s_add_u32 s54, s36, {MEMB}             ; sMemRd
s_mov_b32 s55, {MEMB + 8192}           ; sMemWr
s_mov_b32 s56, {GMEMB}
v_add_u32 v{V_WV}, s52, v{V_L16}
v_and_b32 v21, 8, v20
v_cmp_eq_u32 vcc, 0, v21
v_mov_b32 v22, 0xeeee
v_mov_b32 v23, 0x4444
v_cndmask_b32 v{V_IDX}, v22, v23, vcc
s_mov_b32 s80, 0x00ff00ff
s_mov_b32 s81, 0x00ff00ff
v_lshrrev_b32 v21, 5, v20
v_bfe_u32 v22, v20, 2, 2
v_lshl_add_u32 v21, v21, 2, v22
v_lshlrev_b32 v21, 12, v21
v_bfe_u32 v22, v20, 4, 1
v_lshl_add_u32 v21, v22, 6, v21
v_and_b32 v22, 3, v20
v_lshl_add_u32 v21, v22, 4, v21
s_lshl_b32 s36, s32, 15
v_add_u32 v21, s36, v21
v_lshrrev_b32 v22, 12, v21
v_mul_u32_u24 v22, {swz}, v22
v_add_u32 v22, s33, v22
v_and_b32 v22, 31, v22
v_lshl_add_u32 v{V_PST}, v22, 7, v21
s_mov_b32 s60, 0                       ; part slot offset
s_mov_b32 s58, {PARTB}
s_mov_b32 s59, {PARTB + 0x20000}
; reducer G = 32*(w&1)+h
s_and_b32 s36, s32, 1
s_lshl_b32 s36, s36, 5
s_add_u32 s36, s36, s33
s_lshl_b32 s37, s36, 12
s_add_u32 s62, s37, {PARTB}
s_mov_b32 s63, s62
; reset region: G2=32*(w>>1)+h, half (w&1)
s_lshr_b32 s38, s32, 1
s_lshl_b32 s38, s38, 5
s_add_u32 s38, s38, s33
s_lshl_b32 s38, s38, 12
s_and_b32 s39, s32, 1
s_lshl_b32 s39, s39, 11
s_add_u32 s38, s38, s39
s_add_u32 s65, s38, {PARTB}
s_lshl_b32 s38, s32, 12
s_add_u32 s66, s38, {L_KV}
s_add_u32 s67, s38, {L_KV + 16384}
s_lshl_b32 s39, s33, 20
s_add_u32 s38, s38, s39
s_add_u32 s57, s38, {KVB}
s_mov_b32 s68, {f32bits(128 ** -0.5 * math.log2(math.e))}
v_lshrrev_b32 v21, 5, v20
v_and_b32 v22, 15, v20
v_lshl_add_u32 v21, v21, 4, v22
v_lshlrev_b32 v21, 4, v21
v_bfe_u32 v22, v20, 4, 1
v_lshl_add_u32 v21, v22, 3, v21
s_lshl_b32 s38, s32, 11
v_add_u32 v{V_QW}, s38, v21
v_lshrrev_b32 v21, 2, v20
v_lshlrev_b32 v21, 4, v21
v_and_b32 v22, 1, v20
v_lshl_add_u32 v{V_TR}, v22, 3, v21
; selector value and masks: i=l&15 ; val=(i&3)==0?0x3f80:(i&3)==1?0x3f800000:0 ; mask q: (i>>2)==q
v_and_b32 v21, 3, v20
v_mov_b32 v22, 0
v_mov_b32 v23, 0x3f80
v_cmp_eq_u32 vcc, 0, v21
v_cndmask_b32 v22, v22, v23, vcc
v_mov_b32 v23, 0x3f800000
v_cmp_eq_u32 vcc, 1, v21
v_cndmask_b32 v{V_SELV}, v22, v23, vcc
s_mov_b32 s72, 0x0f0f0f0f
s_mov_b32 s73, 0x0f0f0f0f
s_mov_b32 s74, 0xf0f0f0f0
s_mov_b32 s75, 0xf0f0f0f0
s_mov_b32 s82, -1
s_mov_b32 s83, 0
s_waitcnt vmcnt({npre})
v_lshl_or_b32 v{T3}, v39, 16, v38
s_lshl_b32 s38, s33, 10
s_lshl_b32 s39, s32, 8
s_add_u32 s38, s38, s39
v_lshrrev_b32 v21, 2, v{V_L16}
v_mov_b32 v22, 0
{"" if gate else "s_or_b32 s38, s38, 0x2000"}
buffer_store_dword v22, v21, s[8:11], s38 offen sc1
v_mov_b32 v28, -1
v_mov_b32 v29, -1
v_mov_b32 v30, -1
v_mov_b32 v31, -1
v_lshrrev_b32 v21, 3, v20
v_lshlrev_b32 v21, 13, v21
v_and_b32 v22, 7, v20
v_lshl_add_u32 v21, v22, 4, v21
v_add_u32 v21, s61, v21
""")
    def init_rings(isc, lbl):
        A(f"""buffer_store_dwordx4 v[28:31], v{V_L16}, s[8:11], s65 offen{isc}
buffer_store_dwordx4 v[28:31], v{V_L16}, s[8:11], s65 offen offset:1024{isc}
s_add_u32 s64, s65, 0x40000
buffer_store_dwordx4 v[28:31], v{V_L16}, s[8:11], s64 offen{isc}
buffer_store_dwordx4 v[28:31], v{V_L16}, s[8:11], s64 offen offset:1024{isc}
s_cmp_ge_u32 s32, 2
s_cbranch_scc1 {lbl}
s_mov_b32 s38, {MEMB}
s_mov_b64 exec, 0xffffff00
buffer_store_dwordx4 v[28:31], v21, s[8:11], s38 offen{isc}
s_mov_b64 exec, s[80:81]
buffer_store_dword v{T3}, v{V_MST}, s[8:11], s38 offen{isc}
s_mov_b64 exec, -1""")
    def register(off, val):
        A(f"""s_mov_b64 exec, 1
v_mov_b32 v36, {val}
v_mov_b32 v37, {off}
buffer_atomic_add v36, v37, s[12:15], 0 offen sc1
s_mov_b64 exec, -1""")
    NA_, NI_, NB_ = NU - 17, NU - 8, NU - 5
    for n in range(NU):
        u = order[n]; sl = slot_of[n]
        later = sum(1 for m in range(n + 1, NU) if issue_at[m] < n)
        A(f's_waitcnt vmcnt({0 if n in (0, NB_) else 4*later})')
        if n == 0: register(DBG_CHAINCNT, 's2' if gate else '1')
        if n == NB_:
            A(f'''s_lshl_b32 s36, s33, 4
s_lshl_b32 s37, s32, 2
s_add_u32 s36, s36, s37
s_add_u32 s36, s36, {FLAGS+F_RB}
s_mov_b64 exec, 1
s_cmp_lg_u32 s2, 0
s_cbranch_scc1 {tag}_rbx
buffer_store_dword v28, off, s[8:11], s36{sc}
s_branch {tag}_rb
{tag}_rbx:
buffer_store_dword v28, off, s[8:11], s36 sc1
{tag}_rb:
s_mov_b64 exec, -1''')
        av = 34 if sl < 7 else 35
        off = (sl if sl < 7 else sl - 7) * 4096
        for T in range(2):
            l = loc[u + (T,)]
            dst = l[1] if l[0] == 'reg' else f'v[{40+8*T}:{47+8*T}]'
            for mp in range(4):
                A(f'ds_read_b64_tr_b16 {sub(dst, 2*mp, 2)}, v{av} offset:{off + mp*1024 + T*512}')
        if n == NA_:
            A(f'v_mov_b32 v56, {DBG_CHAINCNT}\nbuffer_load_dword v58, v56, s[12:15], 0 offen sc1')
        if n == NI_:
            assert issue_at[n] >= NA_
            A(f"""v_readfirstlane_b32 s39, v58
s_and_b32 s36, s39, 0xffff
s_cmp_ge_u32 s36, 128
s_cbranch_scc1 {tag}_wreg_ok""")
            wait_dbg(A, f'{tag}_wreg', DBG_CHAINCNT, 128, 58, 59)
            A(f's_lshr_b32 s2, s39, 16\ns_cmp_lg_u32 s2, 0\ns_cbranch_scc1 {tag}_initx')
            init_rings(sc, f'{tag}_inited')
            A(f's_branch {tag}_inited\n{tag}_initx:')
            init_rings(' sc1', f'{tag}_inited')
            A(f'{tag}_inited:\ns_add_u32 s64, s65, 0x80000')
        if n == NU - 4 and cpre:
            A(f'''s_getpc_b64 s[6:7]
{tag}_pc:
s_add_u32 s6, s6, {tag}0_top-{tag}_pc
s_addc_u32 s7, s7, 0
v_lshlrev_b32 v60, 2, v{V_L16}
global_load_dword v61, v60, s[6:7]''')
        if n == NI_:
            A(f"""v_lshrrev_b32 v56, 2, v{V_L16}
s_lshl_b32 s88, s33, 8
buffer_load_dword v57, v56, s[8:11], s88 offen sc1""")
        if n == NB_:
            A(f"""v_cmp_le_u32 s[70:71], 4, v57
v_lshlrev_b32 v62, 2, v{V_L16}
s_nop 0
s_and_b32 s36, s70, 3
s_cmp_lg_u32 s36, 3
s_cbranch_scc1 {tag}_nopf
s_add_u32 s36, s57, 16384
buffer_load_dword v63, v62, s[8:11], s57 offen sc1
buffer_load_dword v63, v62, s[8:11], s36 offen sc1
{tag}_nopf:""")
        if n == NU - 2:
            A('buffer_load_dword v57, v56, s[8:11], s88 offen sc1')
        todo = [m for m in range(NU) if issue_at[m] == n]
        if todo:
            A('s_waitcnt lgkmcnt(8)')
            for m in todo: issue(m)
        if n in fin:
            A('s_waitcnt lgkmcnt(0)')
            for T in range(2):
                for hf in range(2):
                    A(f'ds_write_b128 v{V_WV}, {vr(40+8*T+4*hf)} offset:{sl*4096 + T*2048 + hf*1024}')
            A('s_waitcnt lgkmcnt(0)')
    A('s_waitcnt lgkmcnt(0)\ns_barrier')
    prof(A, 1, 36, dbg=9)
    A(f"""s_waitcnt vmcnt(0)
v_cmp_le_u32 s[70:71], 4, v57
v_lshrrev_b32 v56, 1, v{V_L16}
s_mov_b32 s37, {FLAGS+F_RB}
{tag}_wb:
buffer_load_dwordx2 v[58:59], v56, s[8:11], s37 offen sc1
s_waitcnt vmcnt(0)
v_and_b32 v58, v58, v59
v_cmp_ne_u32 vcc, -1, v58
s_cbranch_vccz {tag}_wb_ok
s_sleep 4
s_sub_u32 s35, s35, 1
s_cbranch_scc0 {tag}_wb
s_mov_b32 s35, 0
{tag}_wb_ok:""")
    A('s_mov_b32 s86, 0x3f803f80\ns_mov_b32 s87, 0x3f803f80\ns_mov_b32 s34, 0\ns_mov_b32 s69, 0')
    poolmap = {('v', 0, 0): M[2], ('v', 0, 1): M[6], ('v', 1, 0): M[5], ('v', 1, 1): P[0],
               ('k', 0, 0): P[1], ('k', 0, 1): P[2], ('k', 1, 0): P[3], ('k', 1, 1): P[4],
               ('o', 1, 1, 0): P[0], ('o', 1, 1, 1): P[1], ('o', 2, 1, 0): P[2], ('o', 2, 1, 1): P[3],
               ('o', 3, 1, 0): P[4], ('o', 3, 1, 1): M[2]}
    def plh(f, hf, tg):
        l = loc[f]
        A.ds(f'ds_read_b128 {vr(poolmap[f] + 4*hf)}, v{V_WV} offset:{l[1]*4096 + l[2]*2048 + hf*1024}', tg)
    def pool_load(f, tg): plh(f, 0, tg); plh(f, 1, tg)
    def kv_ready(lbl):
        A(f's_bitcmp1_b64 s[70:71], s36\ns_cbranch_scc0 {lbl}_slow\n{lbl}_ok:')
    def kv_slow(lbl):
        A(f"""{lbl}_slow:
v_lshrrev_b32 v{T0}, 2, v{V_L16}
s_lshl_b32 s37, s33, 8
buffer_load_dword v{T1}, v{T0}, s[8:11], s37 offen sc1
s_waitcnt vmcnt(0)
v_cmp_le_u32 s[70:71], 4, v{T1}
s_nop 1
s_bitcmp1_b64 s[70:71], s36
s_cbranch_scc1 {lbl}_ok
s_sub_u32 s35, s35, 1
s_cbranch_scc0 {lbl}_slow
s_mov_b32 s35, 0
s_branch {lbl}_ok""")
    def z(a): A(f'v_mov_b64 v[{a}:{a+1}], 0\nv_mov_b64 v[{a+2}:{a+3}], 0')
    def prep_a(mid=None):
        fr = [('v', 1, 1), ('k', 0, 0), ('k', 0, 1), ('k', 1, 0), ('k', 1, 1), ('v', 0, 0), ('v', 0, 1)]
        for i, f in enumerate(fr):
            pool_load(f, 'pi')
            if mid and i in mid: mid[i]()
        for r in (AK0, AK1, AV0, AV1): z(r)
    def prep_b():
        pool_load(('v', 1, 0), 'pi')
    def delay(n):
        while n > 0:
            k = min(n, 16); A(f's_nop {k-1}'); n -= k
    prof(A, 2, 36)
    if PROF['on'] is True: A('s_memtime s[96:97]')
    slow = []
    for i in range(3):
        A(f's_mov_b32 s36, {i}'); kv_ready(f'{tag}_kv{i}'); slow.append(f'{tag}_kv{i}')
    A('s_mov_b32 m0, s66')
    for i in range(4): A(f'buffer_load_dwordx4 v{V_L16}, s[8:11], s57 offen offset:{i*1024} sc1 lds')
    A('s_add_u32 s57, s57, 16384')
    prep_a()
    A.wait_lds_all()
    if PROF['on'] == 'dbg': prof(A, 0, T0, dbg=10)
    acc = {('q', 0): AQ0, ('q', 1): AQ1, ('k', 0): AK0, ('k', 1): AK1, ('v', 0): AV0, ('v', 1): AV1}
    def wreg(frag):
        l = loc[frag]
        return l[1] if l[0] == 'reg' else vr(poolmap[frag], 8)
    def SM(m, tau, T): A(f'v_smfmac_f32_16x16x64_bf16 {vr(acc[(m,T)])}, {vr(M[tau])}, {wreg((m,tau,T))}, v{V_IDX}')
    STP = [40,42,44,46,48,50,52,84,98,16,90,92,94,100]
    cur = {'par': 0}
    def stamp(i):
        if stamps in ('rt', 'cal'):
            if (cur['par'] == 1 and i >= 9) or (cur['par'] == 0 and i <= 2): A(f'{"s_memrealtime" if stamps == "rt" else "s_memtime"} s[{STP[i]}:{STP[i]+1}]')
        elif stamps and cur['par'] == 0 and (stsel is None or i in stsel): A(f's_memtime s[{STP[i]}:{STP[i]+1}]')
    def cal(i, par):
        if stamps == 'cal' and par == 1: A(f's_memtime s[{STP[i]}:{STP[i]+1}]')
    def wrap(r): return f's_bitset0_b32 {r}, 15\n'
    retry = {}; lates = []
    def step(par, ltag, sc):
        t = f'{ltag}{par}'
        KOFF = L_KV + par * 16384; VOFF = KOFF + 8192
        VK, VV = (V_L16, V_B0) if unroll == 2 else (T0, T1)
        A(f'{t}_top:')
        cur['par'] = par
        stamp(0)
        def ldA():
            for u in range(2): A(f'buffer_load_dwordx4 {vr(M[u])}, v{V_L16}, s[8:11], s54 offen offset:{u*1024} sc1')
        def nanA(t=t, ldA=ldA):
            A(f'{t}_reA:\ns_cmp_lg_u32 s3, 0\ns_cbranch_scc1 {t}_okA')
            ldA()
            A('s_nop 3')
            for r in (AK0, AK1, AV0, AV1): z(r)
            A(f"""{t}_scnA:
s_waitcnt vmcnt({2*nA-2})
v_max3_u32 v{T0}, v{M[0]}, v{M[0]+1}, v{M[0]+2}
v_max3_u32 v{T1}, v{M[0]+3}, v{M[1]}, v{M[1]+1}
v_max3_u32 v{T0}, v{T0}, v{M[1]+2}, v{M[1]+3}
v_max_u32 v{T0}, v{T0}, v{T1}
v_cmp_eq_u32 vcc, -1, v{T0}
s_mov_b32 s3, 1
s_cbranch_vccz {t}_chkA
s_mov_b64 exec, vcc""")
            ldA()
            A(f"""s_mov_b64 exec, -1
s_sub_u32 s35, s35, 1
s_cbranch_scc0 {t}_scnA
s_mov_b32 s35, 0
s_branch {t}_chkA""")
        lates.append(nanA)
        A(f's_mov_b32 m0, s{66+(par^1)}' if unroll == 2 else 's_sub_u32 m0, s67, s69')
        A('s_mov_b32 s3, 0')
        if not nocomm: ldA()
        prep_b()
        for i in range(nA - 1):
            delay(gA)
            if not nocomm: ldA()
        A(f's_waitcnt lgkmcnt(0)\n{t}_chkA:')
        if not nocomm: A(f's_waitcnt vmcnt({2*nA-1})')
        A.lds_q = []
        stamp(1)
        KX = {(tt, k): P[k] + 4 * (tt - 1) for tt in (1, 2) for k in range(4)}
        QF = [AQ0, AQ1, M[0], M[1]]
        KM = [M[2], M[4], M[6], M[3]]
        VX = [P[4], P[4] + 4]
        def ldM(tau): A.ds(f'ds_read_b128 {vr(M[tau])}, v{VB[tau>>1]} offset:{L_MEM + (tau&1)*1024}', f'm{tau}')
        def ldKX(tt, k): A.ds(f'ds_read_b128 {vr(KX[(tt,k)])}, v{VK} offset:{KOFF + (tt-1)*4096 + k*1024}', 'kx')
        def ldVX(T): A.ds(f'ds_read_b128 {vr(VX[T])}, v{VV} offset:{VOFF + T*1024}', 'kx')
        def ldQF(k):
            for hf in range(2): A.ds(f'ds_read_b64_tr_b16 {vr(QF[k]+2*hf,2)}, v{V_TR} offset:{L_OQK + k*2048 + 1024 + hf*256}', f'qf{k}')
        def ldKM(k):
            for hf in range(2): A.ds(f'ds_read_b64_tr_b16 {vr(KM[k]+2*hf,2)}, v{V_TR} offset:{L_OQK + k*2048 + 1536 + hf*256}', f'km{k}')
        def fold(a0, a1, t0):
            ops = []
            for r in range(4): ops.append(f'v_permlane32_swap_b32 v{a0+r}, v{a1+r}')
            for r in range(4): ops.append(f'v_add_f32 v{a0+r}, v{a0+r}, v{a1+r}')
            ops.append(f'v_cvt_pk_bf16_f32 v{t0}, v{a0}, v{a0+1}')
            ops.append(f'v_cvt_pk_bf16_f32 v{t0+1}, v{a0+2}, v{a0+3}')
            return ops
        two = lambda m, tau: [(m, tau, 0), (m, tau, 1)]
        sms = []
        for m in 'vkq': sms += two(m, 0) + two(m, 1)
        for m in 'qkv':
            for tau in (2, 4, 6, 3, 5, 7): sms += two(m, tau)
        assert len(sms) == 48 and len(set(sms)) == 48
        pre = {i: [] for i in range(48)}; post = {i: [] for i in range(48)}
        post[0].append(lambda: A(f'ds_write_b128 v{V_B0}, {vr(M[0])} offset:{L_MEM}'))
        if not nocomm: pre[1].append(lambda: A(f's_waitcnt vmcnt({2*nA-2})'))
        post[1].append(lambda: A(f'ds_write_b128 v{V_B0}, {vr(M[1])} offset:{L_MEM+1024}'))
        post[4].append(lambda: A(f'v_cmp_u_f32 vcc, v{AV0}, v{AV0+1}\nv_cmp_u_f32 s[6:7], v{AV0+2}, v{AV0+3}'))
        for i, r in enumerate((AQ0, AQ0 + 2, AQ1, AQ1 + 2)): post[(0, 2, 3, 6)[i]].append(lambda r=r: A(f'v_mov_b64 v[{r}:{r+1}], 0'))
        sms[1], sms[2] = sms[2], sms[1]
        if not nocomm: pre[dmapos[0]].append(lambda: A('s_waitcnt vmcnt(0)'))
        def brA():
            if not nocomm: A(f's_or_b64 vcc, vcc, s[6:7]\ns_cbranch_scc1 {t}_reA')
            A(f'{t}_okA:')
        def b1():
            A('s_waitcnt lgkmcnt(0)\ns_barrier')
            stamp(2)
        pre[6].append(brA)
        pre[b1pos + 1].append(b1)
        for i, tau in enumerate((2, 4, 6, 3, 5, 7)): post[b1pos + 1 + i].append(lambda tau=tau: ldM(tau))
        for i_, tau_ in enumerate((2, 4, 6, 3, 5, 7)): pre[12 + 2 * i_].append(lambda tau_=tau_: A.wait_lds(f'm{tau_}'))
        kxs = [(tt, k) for k in range(4) for tt in (1, 2)]
        for i, pos in enumerate(range(b1pos + 7, b1pos + 15)): post[pos].append(lambda i=i: ldKX(*kxs[i]))
        post[24].append(lambda: ldVX(0)); post[26].append(lambda: ldVX(1))
        if unroll == 1:
            post[8].append(lambda: A(f'v_add_u32 v{T0}, s69, v{V_L16}'))
            post[max(prepos + 1, 16)].append(lambda: A(f'v_add_u32 v{T1}, s69, v{V_B0}'))
        for i, pos in enumerate(dmapos): post[pos].append(lambda i=i: A(f'buffer_load_dwordx4 v{V_L16}, s[8:11], s57 offen offset:{i*1024} {dm} lds'))
        if pf is not None:
            post[prepos - 1].append(lambda: A(f'v_lshlrev_b32 v{T1}, 2, v{V_L16}\ns_add_u32 s36, s57, 16384'))
            post[prepos].append(lambda: A(f'buffer_load_dword v{T2}, v{T1}, s[8:11], s36 offen {pf}\nv_lshrrev_b32 v{T1}, 2, v{V_L16}'))
            post[prepos + 1].append(lambda: A(f'buffer_load_dword v{T2}, v{T1}, s[8:11], s88 offen sc1'))
        if not repidle:
            post[reppos - 1].append(lambda: A('s_cmp_ge_u32 s32, 2'))
            post[reppos].append(lambda: A(f's_cbranch_scc1 {t}_norep\ns_mov_b64 exec, s[80:81]\nbuffer_store_dword v{T3}, v{V_MST}, s[8:11], s56 offen sc1\ns_mov_b64 exec, -1\n{t}_norep:'))
        post[reppos + 1].append(lambda: prof(A, 16, M[1], 34, cyc=True))
        post[13].append(lambda: A(f'v_mov_b64 v[{M[0]}:{M[0]+1}], -1'))
        post[14].append(lambda: A(f'v_mov_b64 v[{M[0]+2}:{M[0]+3}], -1'))
        assert respos[0] - 2 >= 12
        post[respos[0]].append(lambda: A(f'buffer_store_dwordx4 {vr(M[0])}, v{V_L16}, s[8:11], s64 offen{sc}'))
        post[respos[1]].append(lambda: A(f'buffer_store_dwordx4 {vr(M[0])}, v{V_L16}, s[8:11], s64 offen offset:1024{sc}'))
        post[11].append(lambda: stamp(3)); post[23].append(lambda: stamp(4)); post[35].append(lambda: stamp(5))
        for i, op in enumerate(fold(AQ0, AQ1, T0)): post[26 + i].append(lambda op=op: A(op))
        post[36].append(lambda: A.ds(f'ds_write_b64 v{V_QW}, v[{T0}:{T1}] offset:{L_OQK+1024}', 'qw'))
        for i, op in enumerate(fold(AK0, AK1, T0)): post[38 + (i * kfs) // 10].append(lambda op=op: A(op))
        post[38 + kfs].append(lambda: A.ds(f'ds_write_b64 v{V_QW}, v[{T0}:{T1}] offset:{L_OQK+1536}', 'kw'))
        pre[b2pos].append(lambda: (A.wait_lds('qw'), A('s_barrier')))
        qpos = [p_ for p_ in range(b2pos, 48) if p_ != 38 + kfs][:4]
        for k, pos in enumerate(qpos): post[pos].append(lambda k=k: ldQF(k))
        for i, f in enumerate(sms):
            if i == 0:
                for fn in pre[0]: fn()
            SM(*f)
            n0 = len(A.items)
            for fn in post[i]: fn()
            if i + 1 < 48:
                for fn in pre[i + 1]: fn()
            gap = A.items[n0:]
            if not any(isinstance(x, str) for x in gap):
                A.items[n0:] = [x for x in gap if x.kind != 'valu'] + [x for x in gap if x.kind == 'valu']
        stamp(6)
        ST = {1: AK0, 2: AK1, 0: M[5]}
        VM = M[7]; ONES = KM[0]; ONE2 = KM[1]; PM = KM[1] + 2; PB = KM[2]; LS = KM[3]; O = [AV0, AV1]
        def MF(d, a, b, c): A(f'v_mfma_f32_16x16x32_bf16 {vr(d)}, {vr(a)}, {vr(b)}, {c}')
        def MF16(d, a, b): A(f'v_mfma_f32_16x16x16_bf16 {vr(d)}, {vr(a,2)}, {vr(b,2)}, {vr(d)}')
        late = [(('o', k, 1, T), hf) for k in (1, 2, 3) for T in (0, 1) for hf in (0, 1)]
        vmc = [f'v_cvt_pk_bf16_f32 v{VM+i}, v{(AV0,AV1)[i>>1]+2*(i&1)}, v{(AV0,AV1)[i>>1]+2*(i&1)+1}' for i in range(4)]
        n = 0
        for k in range(4):
            A.wait_lds(f'qf{k}')
            if k == b3k:
                A.wait_lds('kw'); A('s_barrier')
            for tt in (1, 2):
                MF(ST[tt], KX[(tt, k)], QF[k], '0' if k == 0 else vr(ST[tt]))
                if 2 * b3k <= n < 2 * b3k + 4: ldKM(n - 2 * b3k)
                elif n >= 2: plh(*late.pop(0), 'piii')
                if vmc and n >= 2 and not (2 * b3k <= n < 2 * b3k + 4 and len(vmc) <= 2): A(vmc.pop(0))
                n += 1
        WA = QF
        for k in range(4):
            A.wait_lds(f'km{k}')
            MF(ST[0], KM[k], QF[k], '0' if k == 0 else vr(ST[0]))
            plh(*late.pop(0), 'piii')
            if k == 0: A(f'v_mov_b64 v[{ONES}:{ONES+1}], s[86:87]')
            if k == 1: A(f'v_max3_f32 v{T0}, v{ST[1]}, v{ST[1]+1}, v{ST[1]+2}')
            if k == 2: A(f'v_max3_f32 v{T1}, v{ST[1]+3}, v{ST[2]}, v{ST[2]+1}')
            if k == 3: A(f'v_max3_f32 v{T0}, v{T0}, v{ST[2]+2}, v{ST[2]+3}')
            if vmc and k < 2: A(vmc.pop(0))
        assert not vmc
        stamp(7)
        A(f"""v_max_f32 v{T0}, v{T0}, v{T1}
v_mov_b32 v{T1}, v{T0}
v_mov_b64 v[{ONES+2}:{ONES+3}], s[86:87]
v_cndmask_b32 v{ONE2}, 0, v{ONES}, s[82:83]
v_permlane32_swap_b32 v{T0}, v{T1}
v_cndmask_b32 v{ONE2+1}, 0, v{ONES}, s[82:83]
v_max3_f32 v{T0}, v{T0}, v{T1}, v{ST[0]}
v_max3_f32 v{T1}, v{ST[0]+1}, v{ST[0]+2}, v{ST[0]+3}
v_max_f32 v{T0}, v{T0}, v{T1}
v_mov_b32 v{T1}, v{T0}""")
        z(WA[0])
        A(f"""v_permlane16_swap_b32 v{T0}, v{T1}
v_max_f32 v{T0}, v{T0}, v{T1}
v_mul_f32 v{T0}, s68, v{T0}""")
        for base in (ST[1], ST[2]):
            for r in range(4): A(f'v_fma_f32 v{base+r}, v{base+r}, s68, -v{T0}')
        for base in (ST[1], ST[2]):
            for r in range(4): A(f'v_exp_f32 v{base+r}, v{base+r}')
        b = ST[0]
        A(f"""v_cvt_pk_bf16_f32 v{PB}, v{ST[1]}, v{ST[1]+1}
v_cvt_pk_bf16_f32 v{PB+1}, v{ST[1]+2}, v{ST[1]+3}
v_cvt_pk_bf16_f32 v{PB+2}, v{ST[2]}, v{ST[2]+1}
v_cvt_pk_bf16_f32 v{PB+3}, v{ST[2]+2}, v{ST[2]+3}
v_fma_f32 v{b}, v{b}, s68, -v{T0}
v_fma_f32 v{b+1}, v{b+1}, s68, -v{T0}""")
        MF(LS, ONES, PB, '0')
        plh(*late.pop(0), 'piii')
        A(f'v_fma_f32 v{b+2}, v{b+2}, s68, -v{T0}\nv_fma_f32 v{b+3}, v{b+3}, s68, -v{T0}')
        MF(O[0], VX[0], PB, '0')
        plh(*late.pop(0), 'piii')
        A(f'v_exp_f32 v{b}, v{b}')
        MF(O[1], VX[1], PB, '0')
        A(f"""v_exp_f32 v{b+1}, v{b+1}
v_exp_f32 v{b+2}, v{b+2}
v_exp_f32 v{b+3}, v{b+3}
v_cvt_pk_bf16_f32 v{PM}, v{b}, v{b+1}
v_cvt_pk_bf16_f32 v{PM+1}, v{b+2}, v{b+3}""")
        z(WA[1])
        MF16(LS, ONE2, PM); z(WA[2]); MF16(O[0], VM, PM); z(WA[3]); MF16(O[1], VM + 2, PM)
        stamp(8)
        OF = [AK0, AK1, M[5], PB]
        A(f'v_rcp_f32 v{T0}, v{LS}')
        for T in range(2):
            for r in range(4): A(f'v_mul_f32 v{O[T]+r}, v{O[T]+r}, v{T0}')
            A(f'v_cvt_pk_bf16_f32 v{OF[0]+2*T}, v{O[T]}, v{O[T]+1}\nv_cvt_pk_bf16_f32 v{OF[0]+2*T+1}, v{O[T]+2}, v{O[T]+3}')
        A.ds(f'ds_write_b128 v{V_B0}, {vr(OF[0])} offset:{L_OQK}', 'ow')
        stamp(9)
        def SO(k, a): A(f'v_smfmac_f32_16x16x64_bf16 {vr(WA[a])}, {vr(OF[k])}, {wreg(("o",k,a>>1,a&1))}, v{V_IDX}')
        R = QF; SEL = M[7]; RA = M[5]
        selops = [f'v_cndmask_b32 v{SEL+q}, 0, v{V_SELV}, s[{72+2*(q&1)}:{73+2*(q&1)}]' for q in range(4)]
        for a in range(4):
            SO(0, a); A(selops[a])
        A('s_waitcnt lgkmcnt(0)\ns_barrier'); A.lds_q = []
        for k in range(1, 4): A.ds(f'ds_read_b128 {vr(OF[k])}, v{VB[k]} offset:{L_OQK}', f'o{k}')
        for k in range(1, 4):
            A.wait_lds(f'o{k}')
            for a in (0, 1):
                SO(k, a)
                if late: plh(*late.pop(0), 'piv')
        PK = [AV0, AV1]
        n = 0
        for k in range(1, 4):
            if k == 3: A.wait_lds('piv')
            for a in (2, 3):
                SO(k, a); n += 1
                if early1:
                    if n == 3:
                        for r in range(4): A(f'v_cvt_pk_bf16_f32 v{PK[0]+r}, v{WA[0]+r}, v{WA[1]+r}')
                    if n == 4:
                        A(f'buffer_store_dwordx4 {vr(PK[0])}, v{V_PST}, s[8:11], s58 offen{sc}'); cal(3, par)
                elif n >= 3: A(f'v_cvt_pk_bf16_f32 v{PK[0]+n-3}, v{WA[0]+n-3}, v{WA[1]+n-3}')
        if not early1: A(f'buffer_store_dwordx4 {vr(PK[0])}, v{V_PST}, s[8:11], s58 offen{sc}')
        for r in range(4): A(f'v_cvt_pk_bf16_f32 v{PK[1]+r}, v{WA[2]+r}, v{WA[3]+r}')
        A(f'buffer_store_dwordx4 {vr(PK[1])}, v{V_PST}, s[8:11], s59 offen{sc}')
        stamp(10)
        def book():
            A(f"""s_add_u32 s54, s54, 8192
{wrap('s54')}s_add_u32 s56, s56, 8192
s_add_u32 s57, s57, {0 if nokv else 16384}
s_add_u32 s60, s60, 0x40000
s_and_b32 s60, s60, 0xc0000
s_xor_b32 s64, s60, 0x80000
s_add_u32 s64, s64, s65
s_add_u32 s58, s60, {PARTB}
s_add_u32 s59, s60, {PARTB + 0x20000}
s_xor_b32 s69, s69, 16384
s_add_u32 s34, s34, 1""")
        def ldB():
            for i in range(4): A(f'buffer_load_dwordx4 {vr(R[i])}, v{V_L16}, s[8:11], s62 offen offset:{i*1024} sc1')
        retry[f'{t}B'] = ldB
        A(f's_cmp_ge_u32 s32, 2\ns_cbranch_scc1 {t}_late')
        if nocomm:
            prep_a(); book(); A(f's_branch {t}_join')
        def first():
            delay(dB0); stamp(11); ldB()
        if pmid is None:
            prep_a(); book(); first()
            for i in range(nB - 1):
                delay(gB); ldB()
        else:
            prep_a({pmid: first}); book()
            for i in range(nB - 1): ldB()
        assert R[1] == R[0] + 4 and R[3] == R[2] + 4
        def red(i): A(f'v_smfmac_f32_16x16x64_bf16 {vr(RA)}, {vr(SEL)}, {vr(R[2*i], 8)}, v{V_IDX}')
        z(RA)
        A(f'{t}_chkB:\ns_waitcnt vmcnt({4*(nB-1)+2})')
        red(0)
        A(f's_waitcnt vmcnt({4*(nB-1)})')
        cal(4, par)
        red(1)
        A(f"""v_max3_u32 v{T0}, v{R[0]+3}, v{R[1]+3}, v{R[2]+3}
v_max_u32 v{T0}, v{T0}, v{R[3]+3}
v_cmp_eq_u32 s[6:7], -1, v{T0}
v_cmp_u_f32 vcc, v{RA+2}, v{RA+2}
v_add_f32_dpp v{RA}, v{RA}, v{RA} row_ror:8 row_mask:0xf bank_mask:0xf
v_add_f32_dpp v{RA+1}, v{RA+1}, v{RA+1} row_ror:8 row_mask:0xf bank_mask:0xf
v_cvt_pk_bf16_f32 v{T3}, v{RA}, v{RA+1}
s_cbranch_vccnz {t}_reB
{t}_okB:
s_mov_b64 exec, s[80:81]
buffer_store_dword v{T3}, v{V_MST}, s[8:11], s55 offen{sc}
s_mov_b64 exec, -1
{t}_join:""")
        def nan_path(t=t, R=R, RA=RA, SEL=SEL, ldB=ldB, red=red):
            A(f"""{t}_reB:
s_cmp_eq_u64 s[6:7], 0
s_cbranch_scc1 {t}_nan
s_mov_b64 exec, s[6:7]""")
            ldB()
            A('s_mov_b64 exec, -1')
            z(RA)
            A(f"""s_sub_u32 s35, s35, 1
s_cbranch_scc0 {t}_chkB
s_mov_b32 s35, 0
{t}_nan:
s_waitcnt vmcnt(0)""")
            fl = [x for r in R for x in range(r, r + 4)]
            A(f'v_max3_u32 v{T0}, v{fl[0]}, v{fl[1]}, v{fl[2]}')
            for i in range(6): A(f'v_max3_u32 v{T0}, v{T0}, v{fl[3+2*i]}, v{fl[4+2*i]}')
            A(f"""v_max_u32 v{T0}, v{T0}, v{fl[15]}
v_cmp_eq_u32 vcc, -1, v{T0}
s_cbranch_vccz {t}_nan2""")
            ldB()
            A(f"""s_sub_u32 s35, s35, 1
s_cbranch_scc0 {t}_nan
s_mov_b32 s35, 0
{t}_nan2:""")
            z(RA); red(0); red(1)
            A(f"""v_add_f32_dpp v{RA}, v{RA}, v{RA} row_ror:8 row_mask:0xf bank_mask:0xf
v_add_f32_dpp v{RA+1}, v{RA+1}, v{RA+1} row_ror:8 row_mask:0xf bank_mask:0xf
v_cvt_pk_bf16_f32 v{T3}, v{RA}, v{RA+1}
s_branch {t}_okB""")
        lates.append(nan_path)
        def late_path(t=t, par=par):
            A(f'{t}_late:')
            prep_a(); book()
            A(f"""
; waves 2,3: sentinel into the mem slot two steps ahead of the one being published
s_add_u32 s36, s55, 16384
{wrap('s36')}ds_read_b32 v{T3}, v{V_MST} offset:{L_MEM}
v_mov_b32 v{T0}, -1
s_sub_u32 s37, s56, 8192
s_mov_b64 exec, s[80:81]
buffer_store_dword v{T0}, v{V_MST}, s[8:11], s36 offen{sc}
s_waitcnt vmcnt(0) lgkmcnt(0)
{f"buffer_store_dword v{T3}, v{V_MST}, s[8:11], s37 offen sc1" if repidle else ""}
s_mov_b64 exec, -1""")
            delay(dI)
            A(f's_branch {t}_join')
        lates.append(late_path)
        stamp(12)
        A(f"""v_cmp_le_u32 s[70:71], 4, v{T2}
s_cmp_eq_u32 s34, {nsteps}
s_cbranch_scc1 {tag}_done
s_add_u32 s62, s63, s60
s_add_u32 s55, s55, 8192
{wrap('s55')}s_add_u32 s36, s34, 2""")
        kv_ready(f'{t}_kv'); slow.append(f'{t}_kv')
        if not noB5: A('s_barrier')
        delay(dA)
        stamp(13)
        A.lds_q = []
    if gate: A(f's_cmp_lg_u32 s2, 0\ns_cbranch_scc1 {tag}x0_top')
    for ltag, lsc in ([(tag, sc), (tag + 'x', ' sc1')] if gate else [(tag, sc)]):
        i0 = len(A.items)
        for par in range(unroll): step(par, ltag, lsc)
        if abl:
            import re
            keep = A.items[:i0]
            for it in A.items[i0:]:
                if not isinstance(it, str) and any(re.search(p, it.text) for p in abl): continue
                keep.append(it)
            A.items = keep
        A(f's_branch {ltag}0_top')
        for f in lates: f()
        del lates[:]
    for l in slow: kv_slow(l)
    A(f"""{tag}_done:
s_cmp_ge_u32 s32, 2
s_cbranch_scc1 {tag}_fin
s_mov_b64 exec, s[80:81]
buffer_store_dword v{T3}, v{V_MST}, s[8:11], s56 offen sc1
s_mov_b64 exec, -1
{tag}_fin:""")
    prof(A, 3, 36, dbg=11)
    if PROF['on'] is True:
        A("""s_memtime s[92:93]
s_waitcnt lgkmcnt(0)
s_sub_u32 s92, s92, s96
v_mov_b32 v36, s92
v_mov_b32 v37, s35
s_lshl_b32 s94, s32, 3
s_add_u32 s94, s94, s91
v_mov_b32 v38, 0
s_mov_b64 exec, 1
buffer_store_dwordx2 v[36:37], v38, s[8:11], s94 offen offset:16
s_mov_b64 exec, -1""")

def kd(name, vgpr=512, accum=256):
    return f'''
.amdhsa_kernel {name}
  .amdhsa_next_free_vgpr {vgpr}
  .amdhsa_next_free_sgpr 102
  .amdhsa_accum_offset {accum}
  .amdhsa_group_segment_fixed_size 0
  .amdhsa_kernarg_size 112
  .amdhsa_user_sgpr_count 2
  .amdhsa_user_sgpr_kernarg_segment_ptr 1
  .amdhsa_system_sgpr_workgroup_id_x 1
.end_amdhsa_kernel
'''

def common_entry(A):
    A(f'''
s_load_dwordx4 s[4:7], s[0:1], 96
s_getreg_b32 s3, hwreg(HW_REG_XCC_ID)
s_and_b32 s3, s3, 0xf
v_lshrrev_b32 v1, 6, v0
v_readfirstlane_b32 s32, v1
s_waitcnt lgkmcnt(0)''')
    srd(A, 12, 4, 256)
    srd(A, 8, 6, WS_BYTES)

def gen_chain_test(stamps=False, **kw):
    A = Asm()
    A.raw('; @launch kernel=chain_kernel grid=(256,1,1) block=(256,1,1) lds=163840')
    A.raw('.amdgcn_target "amdgcn-amd-amdhsa--gfx950"')
    A.raw('.text\n.globl chain_kernel\n.p2align 8\n.type chain_kernel,@function')
    A.label('chain_kernel')
    A('s_cmp_ge_u32 s2, 256\ns_cbranch_scc1 L_end')
    common_entry(A)
    A('''s_cmp_lg_u32 s3, 0
s_cbranch_scc1 L_end
s_memtime s[96:97]
s_memrealtime s[90:91]
v_mov_b32 v3, 0
v_mov_b32 v4, 1
s_cmp_lg_u32 s32, 0
s_cbranch_scc1 L_noticket
s_mov_b64 exec, 1
buffer_atomic_add v4, v3, s[12:15], 0 offen sc0
s_waitcnt vmcnt(0)
ds_write_b32 v3, v4
s_waitcnt lgkmcnt(0)
s_mov_b64 exec, -1
L_noticket:
s_barrier
ds_read_b32 v4, v3
s_waitcnt lgkmcnt(0)
v_readfirstlane_b32 s33, v4
s_barrier
s_cmp_ge_u32 s33, 32
s_cbranch_scc1 L_end''')
    emit_chain(A, stamps=stamps, cpre=0, **kw)
    if stamps == 'cal':
        A('''s_waitcnt vmcnt(0)
s_memrealtime s[4:5]
s_waitcnt lgkmcnt(0)
s_or_b32 s6, s4, 0x3ff
L_cal:
s_memrealtime s[4:5]
s_memtime s[96:97]
s_waitcnt lgkmcnt(0)
s_cmp_le_u32 s4, s6
s_cbranch_scc1 L_cal
s_mov_b32 s50, s4''')
    if stamps:
        A('s_waitcnt vmcnt(0) lgkmcnt(0)')
        for i, r in enumerate([40,42,44,46,48,50,52,84,98,16,90,92,94,100,96,35]): A(f'v_mov_b32 v{20+i}, s{r}')
        A('''s_lshl_b32 s36, s33, 2
s_add_u32 s36, s36, s32
s_lshl_b32 s36, s36, 6
s_add_u32 s36, s36, 0x8000
v_mov_b32 v40, s36
s_mov_b64 exec, 1
buffer_store_dwordx4 v[20:23], v40, s[8:11], 0 offen
buffer_store_dwordx4 v[24:27], v40, s[8:11], 0 offen offset:16
buffer_store_dwordx4 v[28:31], v40, s[8:11], 0 offen offset:32
buffer_store_dwordx4 v[32:35], v40, s[8:11], 0 offen offset:48
s_mov_b64 exec, -1''')
    A('''s_waitcnt vmcnt(0)
s_memtime s[98:99]
s_memrealtime s[4:5]
s_waitcnt lgkmcnt(0)
s_sub_u32 s98, s98, s96
s_sub_u32 s4, s4, s90
s_cmp_eq_u32 s33, 1
s_cselect_b32 s98, s4, s98
v_mov_b32 v20, s98
v_mov_b32 v21, s35
s_lshl_b32 s36, s33, 2
s_add_u32 s36, s36, s32
s_cmp_ge_u32 s36, 8
s_cbranch_scc1 L_end
s_lshl_b32 s36, s36, 3
s_add_u32 s36, s36, 64
v_mov_b32 v22, s36
s_mov_b64 exec, 1
buffer_store_dwordx2 v[20:21], v22, s[12:15], 0 offen
L_end:
s_endpgm''')
    A.raw('.section .rodata,"a"\n.p2align 6')
    A.raw(kd('chain_kernel'))
    return A.text()

if __name__ == '__main__':
    open('chain.s', 'w').write(gen_chain_test())
    open('chain_st.s', 'w').write(gen_chain_test(stamps=True))
```

```python
import math
from gen import *

W_L16, W_LANE, W_TR, W_VO = 0, 1, 2, 3

def ar(b, n=4): return f'a[{b}:{b+n-1}]'

def worker_setup(A):
    A(f'''v_and_b32 v{W_LANE}, 63, v0
v_lshlrev_b32 v{W_L16}, 4, v{W_LANE}
s_mul_i32 s52, s32, 40960
v_lshlrev_b32 v{W_TR}, 3, v{W_LANE}
v_add_u32 v{W_TR}, s52, v{W_TR}
s_mov_b32 s35, 1000000''')

def load_units(A, units, depth=8):
    n_u = len(units)
    def issue(n):
        sl = n % 9
        for mp, (sr, sb, c) in enumerate(units[n][0]):
            A(f's_add_u32 m0, s52, {sl*4096 + mp*1024}')
            A(f's_add_u32 s38, s{sb}, {c}')
            A(f'buffer_load_dwordx4 v{W_VO}, s[{sr}:{sr+3}], s38 offen lds')
    for n in range(min(depth, n_u)): issue(n)
    for n in range(n_u):
        later = min(n_u - 1, n + depth - 1) - n
        A(f's_waitcnt vmcnt({4*later})')
        for T in range(2):
            for mp in range(4):
                A(f'ds_read_b64_tr_b16 {units[n][1][mp][T]}, v{W_TR} offset:{(n%9)*4096 + mp*1024 + T*512}')
        if n + depth < n_u:
            A('s_waitcnt lgkmcnt(8)')
            issue(n + depth)
    A('s_waitcnt lgkmcnt(0)\ns_barrier')

def lane_bits(A):
    A(f'''v_bfe_u32 v21, v{W_LANE}, 4, 1
v_bfe_u32 v22, v{W_LANE}, 3, 1
v_bfe_u32 v23, v{W_LANE}, 2, 1
v_bfe_u32 v24, v{W_LANE}, 1, 1
v_and_b32 v25, 1, v{W_LANE}
v_lshrrev_b32 v26, 5, v{W_LANE}''')

def voff_dmap(A, stride):
    lane_bits(A)
    A(f'''v_lshlrev_b32 v27, 3, v21
v_lshl_add_u32 v27, v22, 1, v27
v_lshl_add_u32 v27, v23, 2, v27
v_lshl_add_u32 v27, v24, 5, v27
v_mul_u32_u24 v27, {stride}, v27
v_lshl_add_u32 v27, v26, 5, v27
v_lshl_add_u32 v{W_VO}, v25, 4, v27''')

def drow(t, mp): return 64 * t + 16 * (mp >> 1) + (mp & 1)

def atomic_flag(A, soff, vtmp):
    A(f'''s_mov_b64 exec, 1
v_mov_b32 v{vtmp}, 1
v_mov_b32 v{vtmp+1}, 0
buffer_atomic_add v{vtmp}, v{vtmp+1}, s[8:11], {soff} offen sc1
s_mov_b64 exec, -1''')

def emit_warm(A, pol='nt'):
    A('''s_load_dwordx4 s[16:19], s[0:1], 16
s_load_dwordx4 s[24:27], s[0:1], 32
s_mul_i32 s36, s33, 5
s_add_u32 s36, s36, s89
s_lshl_b32 s36, s36, 2
s_add_u32 s36, s36, s32
s_lshl_b32 s36, s36, 10
s_waitcnt lgkmcnt(0)
s_mov_b32 s20, s18
s_and_b32 s21, s19, 0xffff
s_mov_b32 s22, 0x400000
s_mov_b32 s23, 0x20000
s_and_b32 s17, s17, 0xffff
s_mov_b32 s18, 0x400000
s_mov_b32 s19, 0x20000
s_mov_b32 s28, s26
s_and_b32 s29, s27, 0xffff
s_mov_b32 s30, 0x400000
s_mov_b32 s31, 0x20000
s_and_b32 s25, s25, 0xffff
s_mov_b32 s26, 0x400000
s_mov_b32 s27, 0x20000''')
    n = 0
    for sr in (16, 24, 20, 28):
        for i in range(7):
            A(f's_add_u32 s37, s36, {i*640*1024}')
            A(f'buffer_load_dwordx4 v[{112+4*(n%4)}:{115+4*(n%4)}], v{W_L16}, s[{sr}:{sr+3}], s37 offen {pol}')
            n += 1

def emit_init(A):
    A(f'''v_mov_b32 v16, 0
v_mov_b32 v17, 0
v_mov_b32 v18, 0
v_mov_b32 v19, 0
s_lshl_b32 s36, s32, 13
s_add_u32 s37, s36, 4096''')
    for i in range(8):
        A(f'buffer_store_dwordx4 v[16:19], v{W_L16}, s[8:11], s{36 + (i>>2)} offen offset:{(i&3)*1024} sc1')
    A(f'''s_waitcnt vmcnt(0)
s_mov_b64 exec, 1
v_mov_b32 v16, 1
v_mov_b32 v17, {DBG_GATE}
buffer_atomic_add v16, v17, s[12:15], 0 offen sc1
s_mov_b64 exec, -1''')

def emit_ln(A, sseg, gate=True):
    A('s_load_dwordx2 s[4:5], s[0:1], 0\ns_waitcnt lgkmcnt(0)')
    srd(A, 16, 4, 0x200000)
    RAW = 16; X = 48
    A(f'''v_lshlrev_b32 v4, 7, v{W_LANE}
s_lshl_b32 s36, s{sseg}, 15
s_lshl_b32 s37, s32, 13
s_add_u32 s36, s36, s37''')
    for i in range(8): A(f'buffer_load_dwordx4 {vr(RAW+4*i)}, v4, s[16:19], s36 offen offset:{16*i}')
    A(f'''v_and_b32 v5, 7, v{W_LANE}
v_lshlrev_b32 v5, 11, v5
v_lshrrev_b32 v6, 3, v{W_LANE}
v_lshl_add_u32 v5, v6, 4, v5
s_lshl_b32 s36, s{sseg}, 15
s_lshr_b32 s37, s32, 1
s_lshl_b32 s37, s37, 14
s_add_u32 s36, s36, s37
s_and_b32 s37, s32, 1
s_lshl_b32 s37, s37, 7
s_add_u32 s36, s36, s37
s_add_u32 s39, s36, {XFB}
s_mov_b32 s38, 0xffff0000''')
    for i in range(8):
        A(f's_waitcnt vmcnt({7-i})')
        for q in range(4):
            d = 4 * i + q
            A(f'v_lshlrev_b32 v{X+2*d}, 16, v{RAW+d}\nv_and_b32 v{X+2*d+1}, s38, v{RAW+d}')
    def red8(r):
        A(f'''v_add_f32_dpp v{r}, v{r}, v{r} quad_perm:[1,0,3,2] row_mask:0xf bank_mask:0xf
v_add_f32_dpp v{r}, v{r}, v{r} quad_perm:[2,3,0,1] row_mask:0xf bank_mask:0xf
v_add_f32_dpp v{r}, v{r}, v{r} row_half_mirror row_mask:0xf bank_mask:0xf''')
    for a in range(4): A(f'v_add_f32 v{8+a}, v{X+a}, v{X+4+a}')
    for c in range(8, 64): A(f'v_add_f32 v{8+(c&3)}, v{8+(c&3)}, v{X+c}')
    A('v_add_f32 v8, v8, v9\nv_add_f32 v10, v10, v11\nv_add_f32 v8, v8, v10')
    red8(8)
    A(f'v_mul_f32 v7, {f32bits(1/512)}, v8')
    for a in range(4): A(f'v_mov_b32 v{8+a}, 0')
    for c in range(64):
        A(f'v_sub_f32 v{12+(c&3)}, v{X+c}, v7\nv_fmac_f32 v{8+(c&3)}, v{12+(c&3)}, v{12+(c&3)}')
    A('v_add_f32 v8, v8, v9\nv_add_f32 v10, v10, v11\nv_add_f32 v8, v8, v10')
    red8(8)
    A(f'''v_mul_f32 v8, {f32bits(1/512)}, v8
v_cvt_pk_bf16_f32 v9, v7, v8
v_lshlrev_b32 v7, 16, v9
v_and_b32 v8, s38, v9
v_add_f32 v8, {f32bits(1e-5)}, v8
v_cvt_pk_bf16_f32 v8, v8, v8
v_and_b32 v8, s38, v8
v_sqrt_f32 v8, v8
v_cvt_pk_bf16_f32 v8, v8, v8
v_and_b32 v8, s38, v8
v_rcp_f32 v8, v8''')
    confirm(A, 'ln_conf')
    A(f'''v_mov_b32 v12, -1
v_mov_b32 v13, -1
v_mov_b32 v14, -1
v_mov_b32 v15, -1
s_lshl_b32 s36, s{sseg}, 13
s_lshl_b32 s37, s32, 11
s_add_u32 s36, s36, s37
s_add_u32 s36, s36, {GMEMB}
buffer_store_dwordx4 v[12:15], v{W_L16}, s[8:11], s36 offen sc1
buffer_store_dwordx4 v[12:15], v{W_L16}, s[8:11], s36 offen offset:1024 sc1''')
    for hi in range(2):
        for g in range(4):
            b = 16 * hi + 8 * (g >> 1) + 2 * (g & 1)
            o = RAW + 4 * (4 * hi + g)
            for q, c in enumerate((b, b + 4, b + 1, b + 5)):
                lo, hh = X + c, X + c + 32
                A(f'''v_sub_f32 v{lo}, v{lo}, v7
v_sub_f32 v{hh}, v{hh}, v7
v_cvt_pk_bf16_f32 v{hh}, v{lo}, v{hh}
v_lshlrev_b32 v{lo}, 16, v{hh}
v_and_b32 v{hh}, s38, v{hh}
v_mul_f32 v{lo}, v{lo}, v8
v_mul_f32 v{hh}, v{hh}, v8
v_cvt_pk_bf16_f32 v{o+q}, v{lo}, v{hh}''')
            A(f'buffer_store_dwordx4 {vr(o)}, v5, s[8:11], s39 offen offset:{hi*1024+g*256} sc1')
    if gate: wait_dbg(A, 'ln_gate', DBG_CHAINCNT, 128, 8, 9)
    else: A('s_waitcnt vmcnt(0)')
    A(f's_lshl_b32 s36, s{sseg}, 6\ns_add_u32 s36, s36, {FLAGS+F_XN}')
    atomic_flag(A, 's36', 8)

def wait_all_xn(A, lbl, gate=True):
    if gate: wait_dbg(A, f'{lbl}_gate', DBG_CHAINCNT, 128, 8, 9)
    A(f'''v_lshlrev_b32 v8, 6, v{W_LANE}
s_mov_b32 s37, {FLAGS+F_XN}
{lbl}:
buffer_load_dword v9, v8, s[8:11], s37 offen sc1
s_waitcnt vmcnt(0)
v_cmp_gt_u32 vcc, 4, v9
s_cbranch_vccz {lbl}_ok
s_sleep 2
s_sub_u32 s35, s35, 1
s_cbranch_scc0 {lbl}
s_mov_b32 s35, 0
{lbl}_ok:''')

def xf_loop(A, tag, stride, nst, mfmas, epilogue, flag_soff, active=None, flagks=13):
    XV = 4; XA = [[8, 12], [16, 20]]
    def dma(seg):
        A(f'''s_min_u32 s36, s{seg}, 63
s_lshl_b32 s36, s36, 15
s_add_u32 s36, s36, s42
s_add_u32 s37, s36, 4096
s_mov_b32 m0, s43''')
        for i in range(4): A(f'buffer_load_dwordx4 v{W_L16}, s[8:11], s36 offen offset:{i*1024} sc1 lds')
        A('s_add_u32 m0, s43, 4096')
        for i in range(4): A(f'buffer_load_dwordx4 v{W_L16}, s[8:11], s37 offen offset:{i*1024} sc1 lds')
        A('s_xor_b32 s43, s43, 0x8000')
    A(f'''s_lshl_b32 s43, s32, 13
s_add_u32 s42, s43, {XFB}
v_mov_b32 v{XV}, v{W_L16}
s_mov_b32 s44, -1''')
    dma(40)
    A(f'''s_waitcnt vmcnt(0)
{tag}_top:
s_barrier
s_add_u32 s41, s40, {stride}''')
    dma(41)
    if active: A(f's_cmp_eq_u32 s{active}, 0\ns_cbranch_scc1 {tag}_skip')
    def rd(ks):
        for tt in range(2): A.ds(f'ds_read_b128 {vr(XA[ks&1][tt])}, v{XV} offset:{tt*16384 + ks*1024}', f'x{ks}')
    A.lds_q = []
    rd(0)
    for ks in range(16):
        A.wait_lds(f'x{ks}')
        if ks < 15: rd(ks + 1)
        mfmas(ks, XA[ks & 1])
        if ks == flagks:
            A(f's_waitcnt vmcnt(0)\ns_cmp_lt_i32 s44, 0\ns_cbranch_scc1 {tag}_noflag')
            flag_soff(44); atomic_flag(A, 's36', 6)
            A(f'{tag}_noflag:')
    epilogue()
    A(f'''s_mov_b32 s44, s40
{tag}_next:
v_xor_b32 v{XV}, 0x8000, v{XV}
s_mov_b32 s40, s41
s_cmp_lt_u32 s40, 64
s_cbranch_scc1 {tag}_top
s_waitcnt vmcnt(0)''')
    if active: A(f's_cmp_eq_u32 s{active}, 0\ns_cbranch_scc1 {tag}_end')
    flag_soff(44); atomic_flag(A, 's36', 6)
    if active:
        A(f's_branch {tag}_end\n{tag}_skip:\ns_waitcnt vmcnt(0)\ns_branch {tag}_next')
    A(f'{tag}_end:\ns_barrier')

def MFd(A, d, a, b, c): A(f'v_mfma_f32_16x16x32_bf16 {d}, {a}, {b}, {c}')

def qkv_frag(m, t, T):
    i = 2 * t + T
    return {'k': f'a[{8*i}:{8*i+7}]', 'v': f'a[{128+8*i}:{128+8*i+7}]', 'q': f'v[{128+8*i}:{128+8*i+7}]'}[m]

def emit_qkv(A, gate=True):
    A('''s_load_dwordx4 s[16:19], s[0:1], 16
s_load_dwordx2 s[24:25], s[0:1], 32
s_waitcnt lgkmcnt(0)
s_mov_b32 s20, s18
s_and_b32 s21, s19, 0xffff
s_mov_b32 s22, 0x400000
s_mov_b32 s23, 0x20000
s_and_b32 s17, s17, 0xffff
s_mov_b32 s18, 0x400000
s_mov_b32 s19, 0x20000
s_and_b32 s25, s25, 0xffff
s_mov_b32 s26, 0x400000
s_mov_b32 s27, 0x20000
s_lshl_b32 s45, s33, 8
s_lshl_b32 s37, s32, 6
s_add_u32 s45, s45, s37''')
    voff_dmap(A, 8192)
    units = []
    for t in range(8):
        for m in 'kvq':
            sr = {'q': 16, 'k': 20, 'v': 24}[m]
            units.append(([(sr, 45, drow(t, mp) * 8192) for mp in range(4)],
                          [[sub(qkv_frag(m, t, T), 2 * mp, 2) for T in range(2)] for mp in range(4)]))
    load_units(A, units)
    confirm(A, 'qkv_conf')
    prof(A, 2, 36, dbg=13)
    wait_all_xn(A, 'qkv_xn', gate)
    prof(A, 3, 36)
    ACC = 24; PKB = 72
    def acc(m, T, tt): return ACC + 4 * ('qkv'.index(m) * 4 + T * 2 + tt)
    def mfmas(ks, XA):
        for m in 'qkv':
            for T in range(2):
                w = sub(qkv_frag(m, ks >> 1, T), 4 * (ks & 1), 4)
                for tt in range(2):
                    d = vr(acc(m, T, tt)); c = '0' if ks == 0 else d
                    if m == 'v': MFd(A, d, vr(XA[tt]), w, c)
                    else: MFd(A, d, w, vr(XA[tt]), c)
    def epi():
        A(f'''s_lshl_b32 s36, s33, 6
s_add_u32 s36, s36, s40
s_lshl_b32 s37, s36, 14
s_lshl_b32 s36, s36, 13
s_lshl_b32 s38, s32, 10
s_add_u32 s36, s36, s38
s_add_u32 s36, s36, {QFB}
s_add_u32 s46, s36, 4096
s_add_u32 s39, s37, s38
s_add_u32 s39, s39, {KVB}
s_add_u32 s47, s39, 4096
s_add_u32 s37, s39, s38
s_add_u32 s37, s37, 8192''')
        def pk(o, a, b):
            A(f'''v_cvt_pk_bf16_f32 v{o}, v{a}, v{a+1}
v_cvt_pk_bf16_f32 v{o+1}, v{a+2}, v{a+3}
v_cvt_pk_bf16_f32 v{o+2}, v{b}, v{b+1}
v_cvt_pk_bf16_f32 v{o+3}, v{b+2}, v{b+3}''')
        n = 0
        for m, so in (('q', (36, 46)), ('k', (39, 47))):
            for tt in range(2):
                o = PKB + 4 * n; n += 1
                pk(o, acc(m, 0, tt), acc(m, 1, tt))
                A(f'buffer_store_dwordx4 {vr(o)}, v{W_L16}, s[8:11], s{so[tt]} offen sc1')
        for T in range(2):
            o = PKB + 4 * n; n += 1
            pk(o, acc('v', T, 0), acc('v', T, 1))
            A(f'buffer_store_dwordx4 {vr(o)}, v{W_L16}, s[8:11], s37 offen offset:{T*1024} sc1')
    def fl(seg): A(f's_lshl_b32 s36, s33, 8\ns_lshl_b32 s37, s{seg}, 2\ns_add_u32 s36, s36, s37')
    xf_loop(A, 'qkv', 7, 6, mfmas, epi, fl, flagks=5)
    prof(A, 4, 36, dbg=14)

def emit_gu(A, nsets):
    A('''s_load_dwordx4 s[16:19], s[0:1], 64
s_waitcnt lgkmcnt(0)
s_mov_b32 s20, s18
s_and_b32 s21, s19, 0xffff
s_mov_b32 s22, 1409024
s_mov_b32 s23, 0x20000
s_and_b32 s17, s17, 0xffff
s_mov_b32 s18, 1409024
s_mov_b32 s19, 0x20000
s_lshl_b32 s49, s48, 2
s_add_u32 s49, s49, s32
s_cmp_lt_u32 s49, 43
s_cselect_b32 s50, 1, 0
s_min_u32 s49, s49, 42
s_lshl_b32 s45, s49, 6''')
    voff_dmap(A, 2752)
    def frag(m, t, T):
        i = 2 * t + T; b = 128 * 'gu'.index(m) + 8 * i
        return f'a[{b}:{b+7}]'
    units = []
    for t in range(8):
        for m in 'gu':
            units.append(([({'g': 16, 'u': 20}[m], 45, drow(t, mp) * 2752) for mp in range(4)],
                          [[sub(frag(m, t, T), 2 * mp, 2) for T in range(2)] for mp in range(4)]))
    load_units(A, units)
    prof(A, 5, 36)
    ACC = 24; PKB = 72
    def acc(m, T, tt): return ACC + 4 * ('gu'.index(m) * 4 + T * 2 + tt)
    def mfmas(ks, XA):
        for m in 'gu':
            for T in range(2):
                w = sub(frag(m, ks >> 1, T), 4 * (ks & 1), 4)
                for tt in range(2):
                    d = vr(acc(m, T, tt)); c = '0' if ks == 0 else d
                    MFd(A, d, w, vr(XA[tt]), c)
    c1 = -2 * math.sqrt(2 / math.pi) * math.log2(math.e); c2 = c1 * 0.044715
    def epi():
        A(f'''s_mul_i32 s36, s40, {2*44*1024}
s_lshl_b32 s37, s49, 10
s_add_u32 s36, s36, s37
s_add_u32 s36, s36, {HFB}
s_add_u32 s37, s36, {44*1024}
s_mov_b32 s38, {f32bits(c2)}
v_mov_b32 v56, {f32bits(c1)}''')
        for tt in range(2):
            for T in range(2):
                g = acc('g', T, tt); u = acc('u', T, tt); t = 60
                for r in range(4): A(f'v_mul_f32 v{t+r}, v{g+r}, v{g+r}')
                for r in range(4): A(f'v_fma_f32 v{t+r}, v{t+r}, s38, v56')
                for r in range(4): A(f'v_mul_f32 v{t+r}, v{t+r}, v{g+r}')
                for r in range(4): A(f'v_exp_f32 v{t+r}, v{t+r}')
                for r in range(4): A(f'v_mul_f32 v{g+r}, v{g+r}, v{u+r}')
                for r in range(4): A(f'v_add_f32 v{t+r}, 1.0, v{t+r}')
                for r in range(4): A(f'v_rcp_f32 v{t+r}, v{t+r}')
                for r in range(4): A(f'v_mul_f32 v{g+r}, v{g+r}, v{t+r}')
                o = PKB + 4 * tt + 2 * T
                A(f'v_cvt_pk_bf16_f32 v{o}, v{g}, v{g+1}\nv_cvt_pk_bf16_f32 v{o+1}, v{g+2}, v{g+3}')
            A(f'buffer_store_dwordx4 {vr(PKB+4*tt)}, v{W_L16}, s[8:11], s{36+tt} offen sc1')
    def fl(seg): A(f's_lshl_b32 s36, s{seg}, 7\ns_add_u32 s36, s36, {FLAGS+F_H}')
    xf_loop(A, 'gu', nsets, 2, mfmas, epi, fl, active=50)
    prof(A, 6, 36)

def emit_att(A, stride):
    IDX, QW, TRA, B0, TMP = 4, 5, 6, 7, 8
    MF_ = [16 + 4 * i for i in range(8)]
    AK = [48, 52]; AV = [56, 60]
    KX = lambda tt, k: 64 + 16 * tt + 4 * k
    QX = lambda tt, k: 96 + 16 * tt + 4 * k
    VX = [128, 132]; KM = [136 + 4 * k for k in range(4)]
    S = {(0, 0): 152, (0, 1): 156, (1, 0): 160, (1, 1): 164, (1, 2): 168}
    PB = [172, 176]; PM = [180, 182]; VM = 184; ONES = 188; ONE2 = 192; NEG = 194
    LS = [196, 200]; O = lambda tt, T: 204 + 8 * tt + 4 * T
    OFR = [220, 224]
    L_M = 0; L_K = 8192
    A(f'''v_and_b32 v21, 8, v{W_LANE}
v_cmp_eq_u32 vcc, 0, v21
v_mov_b32 v22, 0xeeee
v_mov_b32 v23, 0x4444
v_cndmask_b32 v{IDX}, v22, v23, vcc
v_lshrrev_b32 v21, 5, v{W_LANE}
v_and_b32 v22, 15, v{W_LANE}
v_lshl_add_u32 v21, v21, 4, v22
v_lshlrev_b32 v21, 4, v21
v_bfe_u32 v22, v{W_LANE}, 4, 1
v_lshl_add_u32 v21, v22, 3, v21
s_lshl_b32 s38, s32, 9
v_add_u32 v{QW}, s38, v21
v_lshrrev_b32 v21, 2, v{W_LANE}
v_lshlrev_b32 v21, 4, v21
v_and_b32 v22, 1, v{W_LANE}
v_lshl_add_u32 v{TRA}, v22, 3, v21
s_lshl_b32 s53, s32, 11
v_add_u32 v{B0}, s53, v{W_L16}
s_mov_b32 s68, {f32bits(128 ** -0.5 * math.log2(math.e))}
v_mov_b32 v{ONES}, 0x3f803f80
v_mov_b32 v{ONES+1}, 0x3f803f80
v_mov_b32 v{ONES+2}, 0x3f803f80
v_mov_b32 v{ONES+3}, 0x3f803f80
s_mov_b32 s82, -1
s_mov_b32 s83, 0
v_cndmask_b32 v{ONE2}, 0, v{ONES}, s[82:83]
v_cndmask_b32 v{ONE2+1}, 0, v{ONES}, s[82:83]
v_mov_b32 v{NEG}, 0xf149f2ca
v_mov_b32 v{PB[0]+2}, 0
v_mov_b32 v{PB[0]+3}, 0
v_lshrrev_b32 v21, 4, v{W_LANE}
v_lshlrev_b32 v21, 2, v21
v_and_b32 v22, 15, v{W_LANE}''')
    for r in range(4):
        A(f'v_add_u32 v23, {r}, v21\nv_cmp_le_u32 s[{72+2*r}:{73+2*r}], v23, v22')
    A(f'''att_top:
s_lshl_b32 s37, s33, 8
s_lshl_b32 s38, s40, 2
s_add_u32 s37, s37, s38
v_mov_b32 v9, 0''')
    wait_cnt(A, 'att_kv', 8, 9, 's37', 4, 8, sleep=2)
    A(f'''s_lshl_b32 s36, s33, 6
s_add_u32 s36, s36, s40
s_lshl_b32 s37, s36, 14
s_lshl_b32 s36, s36, 13
s_add_u32 s36, s36, {QFB}
s_add_u32 s38, s36, 4096
s_add_u32 s37, s37, {KVB}
s_add_u32 s39, s37, 4096
s_add_u32 s46, s37, 8192''')
    for tt in range(2):
        for k in range(4):
            A(f'buffer_load_dwordx4 {vr(KX(tt,k))}, v{W_L16}, s[8:11], s{(37,39)[tt]} offen offset:{k*1024} sc1')
            A(f'buffer_load_dwordx4 {vr(QX(tt,k))}, v{W_L16}, s[8:11], s{(36,38)[tt]} offen offset:{k*1024} sc1')
    for T in range(2): A(f'buffer_load_dwordx4 {vr(VX[T])}, v{B0}, s[8:11], s46 offen offset:{T*1024} sc1')
    for a in AK + AV: A(f'v_mov_b64 v[{a}:{a+1}], 0\nv_mov_b64 v[{a+2}:{a+3}], 0')
    A('s_waitcnt vmcnt(0)')
    for k in range(4):
        for key in ((0, 1), (1, 1), (1, 2)):
            d = vr(S[key]); MFd(A, d, vr(KX(key[1] - 1, k)), vr(QX(key[0], k)), '0' if k == 0 else d)
    A(f'''s_lshl_b32 s47, s40, 13
s_add_u32 s47, s47, {GMEMB}
att_poll:
buffer_load_dwordx4 {vr(MF_[0])}, v{B0}, s[8:11], s47 offen sc1
buffer_load_dwordx4 {vr(MF_[1])}, v{B0}, s[8:11], s47 offen offset:1024 sc1
s_waitcnt vmcnt(0)
v_max3_u32 v8, v16, v17, v18
v_max3_u32 v8, v8, v19, v20
v_max3_u32 v8, v8, v21, v22
v_max_u32 v8, v8, v23
v_cmp_eq_u32 vcc, -1, v8
s_cbranch_vccz att_ok
s_sleep 1
s_sub_u32 s35, s35, 1
s_cbranch_scc0 att_poll
s_mov_b32 s35, 0
att_ok:
ds_write_b128 v{B0}, {vr(MF_[0])} offset:{L_M}
ds_write_b128 v{B0}, {vr(MF_[1])} offset:{L_M+1024}
s_waitcnt lgkmcnt(0)
s_barrier''')
    A.lds_q = []
    for t in range(8): A.ds(f'ds_read_b128 {vr(MF_[t])}, v{W_L16} offset:{L_M + t*1024}', f'm{t}')
    def SM(acc, t, m, T): A(f'v_smfmac_f32_16x16x64_bf16 {vr(acc)}, {vr(MF_[t])}, {qkv_frag(m,t,T)}, v{IDX}')
    for t in range(8):
        A.wait_lds(f'm{t}')
        SM(AK[0], t, 'k', 0); SM(AK[1], t, 'k', 1)
    fold = [f'v_permlane32_swap_b32 v{AK[0]+r}, v{AK[1]+r}' for r in range(4)] + [f'v_add_f32 v{AK[0]+r}, v{AK[0]+r}, v{AK[1]+r}' for r in range(4)]
    fold += [f'v_cvt_pk_bf16_f32 v8, v{AK[0]}, v{AK[0]+1}', f'v_cvt_pk_bf16_f32 v9, v{AK[0]+2}, v{AK[0]+3}']
    n = 0
    for t in range(8):
        for T in range(2):
            SM(AV[T], t, 'v', T); n += 1
            if 3 <= n <= 7: A(fold[2*(n-3)]); A(fold[2*(n-3)+1])
            if n == 8: A.ds(f'ds_write_b64 v{QW}, v[8:9] offset:{L_K}', 'kw')
            if n == 12:
                A.wait_lds('kw'); A('s_barrier')
            if n >= 13:
                k = n - 13
                for hf in range(2): A.ds(f'ds_read_b64_tr_b16 {vr(KM[k]+2*hf,2)}, v{TRA} offset:{L_K + k*512 + hf*256}', f'km{k}')
    for key in ((0, 1), (1, 2)):
        for r in range(4): A(f'v_cndmask_b32 v{S[key]+r}, v{NEG}, v{S[key]+r}, s[{72+2*r}:{73+2*r}]')
    for k in range(4):
        A.wait_lds(f'km{k}')
        for tt in range(2):
            d = vr(S[(tt, 0)]); MFd(A, d, vr(KM[k]), vr(QX(tt, k)), '0' if k == 0 else d)
    for T in range(2):
        A(f'v_cvt_pk_bf16_f32 v{VM+2*T}, v{AV[T]}, v{AV[T]+1}\nv_cvt_pk_bf16_f32 v{VM+2*T+1}, v{AV[T]+2}, v{AV[T]+3}')
    A(f'''s_lshl_b32 s36, s40, 18
s_lshl_b32 s37, s33, 12
s_add_u32 s36, s36, s37
s_lshl_b32 s37, s32, 10
s_add_u32 s36, s36, s37
s_add_u32 s36, s36, {OFB}
s_add_u32 s37, s36, 0x20000''')
    for tt in range(2):
        regs = [S[k] + r for k in S if k[0] == tt for r in range(4)]
        m = 8 + 2 * tt; t1 = m + 1
        A(f'v_max3_f32 v{m}, v{regs[0]}, v{regs[1]}, v{regs[2]}')
        i = 3
        while i + 1 < len(regs):
            A(f'v_max3_f32 v{m}, v{m}, v{regs[i]}, v{regs[i+1]}'); i += 2
        A(f'''v_max_f32 v{m}, v{m}, v{regs[i]}
v_mov_b32 v{t1}, v{m}
v_permlane32_swap_b32 v{m}, v{t1}
v_max_f32 v{m}, v{m}, v{t1}
v_mov_b32 v{t1}, v{m}
v_permlane16_swap_b32 v{m}, v{t1}
v_max_f32 v{m}, v{m}, v{t1}
v_mul_f32 v{m}, s68, v{m}''')
        for r in regs: A(f'v_fma_f32 v{r}, v{r}, s68, -v{m}')
        for r in regs: A(f'v_exp_f32 v{r}, v{r}')
        for key in S:
            if key[0] != tt: continue
            o = PM[tt] if key[1] == 0 else PB[tt] + 2 * (key[1] - 1)
            A(f'v_cvt_pk_bf16_f32 v{o}, v{S[key]}, v{S[key]+1}\nv_cvt_pk_bf16_f32 v{o+1}, v{S[key]+2}, v{S[key]+3}')
        MFd(A, vr(LS[tt]), vr(ONES), vr(PB[tt]), '0')
        for T in range(2): MFd(A, vr(O(tt, T)), vr(VX[T]), vr(PB[tt]), '0')
        A(f'v_mfma_f32_16x16x16_bf16 {vr(LS[tt])}, {vr(ONE2,2)}, {vr(PM[tt],2)}, {vr(LS[tt])}')
        for T in range(2): A(f'v_mfma_f32_16x16x16_bf16 {vr(O(tt,T))}, {vr(VM+2*T,2)}, {vr(PM[tt],2)}, {vr(O(tt,T))}')
    for tt in range(2):
        A(f'v_rcp_f32 v12, v{LS[tt]}')
        for T in range(2):
            o = O(tt, T)
            for r in range(4): A(f'v_mul_f32 v{o+r}, v{o+r}, v12')
            A(f'v_cvt_pk_bf16_f32 v{OFR[tt]+2*T}, v{o}, v{o+1}\nv_cvt_pk_bf16_f32 v{OFR[tt]+2*T+1}, v{o+2}, v{o+3}')
        A(f'buffer_store_dwordx4 {vr(OFR[tt])}, v{W_L16}, s[8:11], s{36+tt} offen sc1')
    A(f'''s_waitcnt vmcnt(0)
s_barrier
s_cmp_lg_u32 s32, 0
s_cbranch_scc1 att_nf
s_lshl_b32 s36, s40, 7
s_add_u32 s36, s36, {FLAGS+F_O}''')
    atomic_flag(A, 's36', 8)
    A('att_nf:')
    prof(A, 16, 10, 40)
    A(f'''s_add_u32 s40, s40, {stride}
s_cmp_lt_u32 s40, 64
s_cbranch_scc1 att_top''')

def emit_out(A, nsets):
    A('''s_load_dwordx2 s[4:5], s[0:1], 40
s_load_dwordx4 s[20:23], s[0:1], 80
s_load_dwordx2 s[6:7], s[0:1], 0
s_waitcnt lgkmcnt(0)''')
    srd(A, 16, 4, 0x400000)
    srd(A, 24, 22, 0x200000)
    A('s_and_b32 s21, s21, 0xffff\ns_mov_b32 s22, 1409024\ns_mov_b32 s23, 0x20000')
    srd(A, 28, 6, 0x200000)
    A(f'''v_bfe_u32 v21, v{W_LANE}, 1, 4
v_lshlrev_b32 v21, 10, v21
v_lshrrev_b32 v22, 5, v{W_LANE}
v_lshl_add_u32 v21, v22, 5, v21
v_and_b32 v22, 1, v{W_LANE}
v_lshl_add_u32 v{W_VO}, v22, 4, v21
s_lshl_b32 s37, s48, 6
s_lshl_b32 s45, s32, 20
s_add_u32 s45, s45, s37
s_lshl_b32 s46, s32, 15
s_add_u32 s46, s46, s37''')
    def wo(ks, T): return ar(8 * ks + 4 * T)
    def wd(i, T): return vr(168 + 8 * i + 4 * T)
    units = []
    for u in range(6):
        dm = []; de = []
        for mp in range(4):
            i = 2 * u + (mp >> 1); m2 = mp & 1
            dm.append((20, 46, (128 * i + 16 * m2) * 1024))
            de.append([sub(wd(i, T) if i < 11 else vr(32 + 4 * T), 2 * m2, 2) for T in range(2)])
        units.append((dm, de))
    for u in range(16):
        dm = []; de = []
        for mp in range(4):
            ks = 2 * u + (mp >> 1); m2 = mp & 1
            dm.append((16, 45, (32 * ks + 16 * m2) * 1024))
            de.append([sub(wo(ks, T), 2 * m2, 2) for T in range(2)])
        units.append((dm, de))
    load_units(A, units)
    prof(A, 7, 36, dbg=15)
    ACC = [16, 20]; XR = 24; BF = 32; RW = 4; OA = 5
    A(f'''s_lshl_b32 s36, s32, 11
v_add_u32 v{RW}, s36, v{W_L16}
v_and_b32 v21, 15, v{W_LANE}
v_lshlrev_b32 v21, 10, v21
v_lshrrev_b32 v22, 4, v{W_LANE}
v_lshl_add_u32 v21, v22, 3, v21
s_lshl_b32 s36, s48, 6
s_lshl_b32 s37, s32, 5
s_add_u32 s36, s36, s37
v_add_u32 v{OA}, s36, v21
s_lshl_b32 s36, s32, 10
v_add_u32 v6, s36, v{W_L16}
v_mov_b32 v9, 0
out_top:
s_lshr_b32 s41, s40, 1
s_lshl_b32 s42, s41, 7
s_cmp_lg_u32 s32, 0
s_cbranch_scc1 out_h_ok
s_add_u32 s37, s42, {FLAGS+F_H}''')
    wait_cnt(A, 'out_h', 8, 9, 's37', 43, 8, sleep=2)
    A(f'''s_barrier
s_mul_i32 s43, s40, {44*1024}
s_add_u32 s43, s43, {HFB}''')
    for i in range(11):
        A(f's_add_u32 s36, s32, {4*i}\ns_min_u32 s36, s36, 42\ns_lshl_b32 s36, s36, 10\ns_add_u32 s36, s36, s43')
        A(f'buffer_load_dwordx4 {vr(BF+4*i)}, v{W_L16}, s[8:11], s36 offen sc1')
    A(f's_lshl_b32 s44, s40, 14\nbuffer_load_dwordx2 {vr(XR,2)}, v{OA}, s[28:31], s44 offen')
    for i in range(11):
        A(f's_waitcnt vmcnt({11-i})')
        for T in range(2): MFd(A, vr(ACC[T]), wd(i, T), vr(BF + 4 * i), '0' if i == 0 else vr(ACC[T]))
    A(f'''s_cmp_lg_u32 s32, 0
s_cbranch_scc1 out_o_ok
s_add_u32 s37, s42, {FLAGS+F_O}''')
    wait_cnt(A, 'out_o', 8, 9, 's37', 32, 8, sleep=1)
    A(f'''s_barrier
s_lshl_b32 s36, s40, 17
s_lshl_b32 s37, s32, 15
s_add_u32 s36, s36, s37
s_add_u32 s36, s36, {OFB}''')
    for i in range(32):
        A(f'buffer_load_dwordx4 {vr(BF+4*i)}, v{W_L16}, s[8:11], s36 offen offset:{(i&3)*1024} sc1')
        if i & 3 == 3: A('s_add_u32 s36, s36, 4096')
    for i in range(32):
        A(f's_waitcnt vmcnt({31-i})')
        for T in range(2): MFd(A, vr(ACC[T]), wo(i, T), vr(BF + 4 * i), vr(ACC[T]))
    A(f'''ds_write_b128 v{RW}, {vr(ACC[0])}
ds_write_b128 v{RW}, {vr(ACC[1])} offset:1024
s_waitcnt lgkmcnt(0)
s_barrier
s_cmp_ge_u32 s32, 2
s_cbranch_scc1 out_next''')
    for w in range(4): A(f'ds_read_b128 {vr(BF+4*w)}, v6 offset:{w*2048}')
    A(f'''v_lshlrev_b32 v26, 16, v{XR}
v_and_b32 v27, 0xffff0000, v{XR}
v_lshlrev_b32 v28, 16, v{XR+1}
v_and_b32 v29, 0xffff0000, v{XR+1}
s_waitcnt lgkmcnt(0)''')
    for r in range(4):
        A(f'v_add_f32 v{BF+r}, v{BF+r}, v{BF+4+r}\nv_add_f32 v{BF+8+r}, v{BF+8+r}, v{BF+12+r}')
    for r in range(4):
        A(f'v_add_f32 v{BF+r}, v{BF+r}, v{BF+8+r}\nv_add_f32 v{BF+r}, v{BF+r}, v{26+r}')
    A(f'''v_cvt_pk_bf16_f32 v30, v{BF}, v{BF+1}
v_cvt_pk_bf16_f32 v31, v{BF+2}, v{BF+3}
buffer_store_dwordx2 v[30:31], v{OA}, s[24:27], s44 offen
out_next:''')
    prof(A, 16, 10, 41)
    A(f'''s_add_u32 s40, s40, {nsets}
s_cmp_lt_u32 s40, 128
s_cbranch_scc1 out_top''')

NAME = 'parallel_sum__memory_aug_recurrent_mem_tr__geglu_ffn__prompt_kernel'

def gen_full(profile=False, warm=2, wb=1, badguess=0, codepf=0, **ckw):
    PROF['on'] = profile
    A = Asm()
    A.raw(f'; @launch kernel={NAME} grid=(256,1,1) block=(256,1,1) lds=163840')
    A.raw('.amdgcn_target "amdgcn-amd-amdhsa--gfx950"')
    A.raw(f'.text\n.globl {NAME}\n.p2align 8\n.type {NAME},@function')
    A.label(NAME)
    A('s_cmp_ge_u32 s2, 256\ns_cbranch_scc1 L_end')
    if codepf:
        A(f'''s_getpc_b64 s[6:7]
L_pc0:
s_lshr_b32 s4, s2, 3
s_and_b32 s4, s4, 3
s_lshl_b32 s4, s4, 14
v_lshlrev_b32 v2, 6, v0
v_add_u32 v2, s4, v2
v_min_u32 v2, L_end-L_pc0, v2
global_load_dword v127, v2, s[6:7]''')
    common_entry(A)
    A(f'''s_and_b32 s3, s3, 7
s_lshr_b32 s36, s2, 3
s_lshl_b32 s94, s3, 5
s_add_u32 s94, s94, s36
{"s_and_b32 s94, s2, 0xf0" if badguess else ""}
s_mov_b32 s95, 0
s_mov_b32 s96, s3
s_cmp_lg_u32 s32, 0
s_cbranch_scc1 L_role
s_mov_b64 exec, 1
s_lshr_b32 s36, s94, 5
s_and_b32 s37, s94, 31
s_mov_b32 s38, 0
L_claim:
s_lshl_b32 s39, s36, 2
s_cmp_eq_u32 s36, 0
s_cselect_b32 s39, {DBG_CTICKET}, s39
v_mov_b32 v3, s39
s_lshl_b32 s39, 1, s37
v_mov_b32 v4, s39
buffer_atomic_or v4, v3, s[12:15], 0 offen sc0 sc1
s_waitcnt vmcnt(0)
v_readfirstlane_b32 s39, v4
s_bitcmp0_b32 s39, s37
s_cbranch_scc1 L_claimed
s_ff0_i32_b32 s37, s39
s_cmp_ge_i32 s37, 0
s_cbranch_scc1 L_claim
s_mov_b32 s37, 0
s_add_u32 s38, s38, 1
s_add_u32 s36, s36, 1
s_cmp_le_u32 s36, 7
s_cselect_b32 s36, s36, 1
s_cmp_ge_u32 s38, 8
s_cselect_b32 s36, 0, s36
s_cmp_le_u32 s38, 8
s_cbranch_scc1 L_claim
s_mov_b32 s36, 8
L_claimed:
s_lshl_b32 s36, s36, 5
s_add_u32 s36, s36, s37
v_mov_b32 v3, {L_SLOT}
v_mov_b32 v4, s36
ds_write_b32 v3, v4
s_waitcnt lgkmcnt(0)
s_mov_b64 exec, -1
L_role:
s_cmp_ge_u32 s94, 256
s_cbranch_scc1 L_end
v_mbcnt_lo_u32_b32 v0, -1, 0
v_mbcnt_hi_u32_b32 v0, -1, v0
s_lshr_b32 s3, s94, 5
s_and_b32 s33, s94, 31
s_cmp_eq_u32 s96, 0
s_cselect_b32 s2, 1, 0x10001
s_lshl_b32 s91, s94, 9
s_add_u32 s91, s91, 0x6000000''')
    prof(A, 0, 36, dbg=8)
    A('''s_cmp_lg_u32 s3, 0
s_cbranch_scc1 L_worker''')
    emit_chain(A, gate=True, **ckw)
    if wb: A('s_waitcnt vmcnt(0)\ns_cmp_lg_u32 s32, 0\ns_cbranch_scc1 L_end\ns_cmp_lg_u32 s33, 0\ns_cbranch_scc1 L_end\nbuffer_wbl2 sc1')
    A('s_endpgm\nL_worker:')
    worker_setup(A)
    A('''s_sub_u32 s88, s3, 1
s_lshl_b32 s88, s88, 5
s_add_u32 s88, s88, s33          ; wi
s_mul_i32 s33, s88, 9363
s_lshr_b32 s33, s33, 16          ; h = wi/7
s_mul_i32 s36, s33, 7
s_sub_u32 s89, s88, s36          ; r = wi%7
''')
    if warm:
        A('s_cmp_ge_u32 s89, 5\ns_cbranch_scc1 L_ln')
        emit_warm(A, '' if warm == 2 else 'nt')
        A('s_branch L_noln\nL_ln:')
    A('''s_cmp_lt_u32 s89, 5
s_cbranch_scc1 L_noln
s_lshl_b32 s90, s33, 1
s_add_u32 s90, s90, s89
s_sub_u32 s90, s90, 5''')
    emit_ln(A, 90)
    A('L_noln:\ns_mov_b32 s40, s89')
    prof(A, 1, 36)
    emit_qkv(A)
    A('''s_cmp_lt_u32 s89, 5
s_cbranch_scc1 L_gu
s_sub_u32 s40, s89, 5''')
    emit_att(A, 2)
    A('''s_endpgm
L_gu:
s_mul_i32 s90, s33, 5
s_add_u32 s90, s90, s89          ; oi
s_cmp_ge_u32 s90, 154
s_cbranch_scc1 L_out
s_mul_i32 s40, s90, 5958
s_lshr_b32 s40, s40, 16
s_mul_i32 s36, s40, 11
s_sub_u32 s48, s90, s36''')
    emit_gu(A, 14)
    A('''L_out:
s_lshr_b32 s40, s90, 4
s_and_b32 s48, s90, 15''')
    emit_out(A, 10)
    if PROF['on'] == 'dbg': prof(A, 0, 36, dbg=12)
    A('L_end:\ns_endpgm')
    A.raw('.section .rodata,"a"\n.p2align 6')
    A.raw(kd(NAME))
    return A.text()

if __name__ == '__main__':
    assert all((w * 9363) >> 16 == w // 7 for w in range(224)) and all((w * 5958) >> 16 == w // 11 for w in range(160))
    hdr = open('parallel_sum__memory_aug_recurrent_mem_tr__geglu_ffn__prompt.s.ref').read().split('; Override')[0]
    kw = dict(dB0=16, dA=16, b1pos=7, kfs=6, gB=32)
    open('full.s', 'w').write(hdr + gen_full(**kw))
    open('diag.s', 'w').write(hdr + gen_full(profile='dbg', **kw))
    open('diag2.s', 'w').write(hdr + gen_full(profile='dbg', wb=0, **kw))
    for i, ex in enumerate(eval(sys.argv[1]) if len(sys.argv) > 1 else []):
        k2 = dict(kw); k2.update(ex)
        open(f'var{i}.s', 'w').write(hdr + gen_full(**k2))
        open(f'var{i}_prof.s', 'w').write(hdr + gen_full(profile=True, **k2))
    open('full_prof.s', 'w').write(hdr + gen_full(profile=True, **kw))
```

```python
import sys, math, struct
sys.path.insert(0, 'dev')
from asmlib import Asm

FLAGS = 0x0000000
MEMB  = 0x0070000
HINTB = 0x0068000
PARTB = 0x0100000
GMEMB = 0x0080000
XFB   = 0x0200000
QFB   = 0x1000000
KVB   = 0x2000000
OFB   = 0x4000000
HFB   = 0x5000000
WS_BYTES = 0x10000000
DBG_TICKET = 0
DBG_CHAINCNT = 192
DBG_CTICKET = 128
DBG_CHAINB = 224
L_SLOT = 163836
F_RB = 0x3000; F_XN = 0x2000; F_H = 0x4000; F_O = 0x6000

def f32bits(x): return struct.unpack('<I', struct.pack('<f', x))[0]

def vr(b, n=4): return f'v[{b}:{b+n-1}]'

def srd(A, s, ptr_lo, nbytes):
    A(f'''s_mov_b32 s{s}, s{ptr_lo}
s_and_b32 s{s+1}, s{ptr_lo+1}, 0xffff
s_mov_b32 s{s+2}, {nbytes}
s_mov_b32 s{s+3}, 0x20000''')

PROFB = 0x6000000
PROF = {'on': False, 'n': 0}
def prof(A, idx, vt=None, sidx=None, cyc=False, dbg=None):
    if PROF['on'] == 'dbg':
        if dbg is None: return
        PROF['n'] += 1; l = f"prof_{PROF['n']}"
        A(f'''s_cmp_lg_u32 s32, 0
s_cbranch_scc1 {l}
s_memrealtime s[92:93]
s_waitcnt lgkmcnt(0)
s_and_b32 s92, s92, 0x3fffffff
{"s_not_b32 s92, s92" if dbg == 8 else ""}
s_mov_b64 exec, 1
v_mov_b32 v{vt}, s92
v_mov_b32 v{vt+1}, {dbg*4}
buffer_atomic_umax v{vt}, v{vt+1}, s[12:15], 0 offen sc1
s_mov_b64 exec, -1
{l}:''')
        return
    if not PROF['on']: return
    PROF['n'] += 1; l = f"prof_{PROF['n']}"
    A(f'''s_cmp_lg_u32 s32, 0
s_cbranch_scc1 {l}
s_memrealtime s[92:93]
s_memtime s[100:101]
s_waitcnt lgkmcnt(0)
{"s_bitcmp1_b32 s33, 0" + chr(10) + "s_cselect_b32 s92, s100, s92" if cyc else ""}
s_mov_b64 exec, 1
v_mov_b32 v{vt}, s92
v_mov_b32 v{vt+1}, 0''')
    if sidx is None: A(f's_add_u32 s93, s91, {idx*4}')
    else: A(f's_lshl_b32 s93, s{sidx}, 2\ns_add_u32 s93, s93, s91\ns_add_u32 s93, s93, {idx*4}')
    A(f'''buffer_store_dword v{vt}, v{vt+1}, s[8:11], s93 offen
s_mov_b64 exec, -1
{l}:''')

def wait_cnt(A, lbl, srdn, voff, soff, target, vt, sleep=0):
    A(f'''{lbl}:
buffer_load_dword v{vt}, v{voff}, s[{srdn}:{srdn+3}], {soff} offen sc1
s_waitcnt vmcnt(0)
v_readfirstlane_b32 s39, v{vt}
s_and_b32 s36, s39, 0xffff
s_cmp_ge_u32 s36, {target}
s_cbranch_scc1 {lbl}_ok
{f"s_sleep {sleep}" if sleep else ""}
s_sub_u32 s35, s35, 1
s_cbranch_scc0 {lbl}
s_mov_b32 s35, 0
{lbl}_ok:''')

def wait_dbg(A, lbl, off, target, vt, va):
    A(f'v_mov_b32 v{va}, {off}')
    wait_cnt(A, lbl, 12, va, 0, target, vt, sleep=2)

def confirm(A, lbl):
    A(f'''s_cmp_lg_u32 s95, 0
s_cbranch_scc1 {lbl}
s_mov_b32 s95, 1
s_barrier
v_mov_b32 v14, {L_SLOT}
ds_read_b32 v14, v14
s_waitcnt lgkmcnt(0)
v_readfirstlane_b32 s36, v14
s_barrier
s_cmp_eq_u32 s36, s94
s_cbranch_scc1 {lbl}
s_mov_b32 s94, s36
s_waitcnt vmcnt(0)
s_barrier
s_branch L_role
{lbl}:''')

L_MEM = 0; L_OQK = 8192; L_KV = 16384; L_W = 49152; L_WSZ = 28672
V_L16, V_IDX, V_PST, V_SELV, V_MST, V_QW, V_TR, V_B0, V_B1, V_B2, V_B3, V_WV = range(12)
T0, T1, T2, T3 = 12, 13, 14, 15
M = [16, 20, 24, 36, 28, 40, 32, 44]
AQ0, AQ1, AK0, AK1, AV0, AV1 = 48, 52, 56, 60, 64, 68
P = [72 + 8 * i for i in range(5)]
VB = [V_B0, V_B1, V_B2, V_B3]


def chain_frag_map():
    units = [(m, t) for m in 'qkv' for t in range(8)] + [('o', k, u) for k in range(4) for u in range(2)]
    backed = [('v', 0), ('v', 1), ('k', 0), ('k', 1), ('o', 1, 1), ('o', 2, 1), ('o', 3, 1)]
    res = [u for u in units if u not in backed]
    order = [('q', t) for t in (0, 2, 1, 3, 4, 6, 5, 7)] + [(m, t) for m in 'vk' for t in (4, 6, 5, 7)]
    order += [('o', k, 0) for k in range(4)] + [('o', 0, 1)] + [(m, t) for m in 'vk' for t in (2, 0, 3, 1)] + [('o', k, 1) for k in (1, 2, 3)]
    assert sorted(map(str, order)) == sorted(map(str, units))
    loc = {}
    regs = [f'a[{8*i}:{8*i+7}]' for i in range(32)] + [f'v[{112+8*i}:{112+8*i+7}]' for i in range(18)]
    k = 0
    for u in res:
        for T in range(2):
            loc[u + (T,)] = ('reg', regs[k]); k += 1
    assert k == 50
    for i, u in enumerate(backed):
        for T in range(2):
            loc[u + (T,)] = ('lds', i, T)
    return loc, order

def sub(reg, lo, n):
    c = reg[0]; b = int(reg[2:reg.index(':')])
    return f'{c}[{b+lo}:{b+lo+n-1}]'

def emit_chain(A, sc='', tag='c', nsteps=63, gate=False, stamps=False, dB0=0, dB1=0, dA=0, nokv=0, nocomm=0, stsel=None, abl=(),
               prepos=20, depth=6, early1=1, nB=2, gB=24, dmapos=(8, 11, 14, 17), respos=(22, 29), reppos=25, b1pos=5, pf='sc1', dm='sc1', b3k=1, kfs=5, b2pos=42, wpol='', unroll=1, cpre=1, touch=1, swz=5, noB5=0, dI=0, budget=4000000, repidle=0, nA=2, gA=32, midA=2, hint=0, gH=12, pmid=None, look=6, pre0=2):
    loc, order = chain_frag_map()
    sc = (' ' + sc) if sc else ''
    A(f"""
s_load_dwordx4 s[16:19], s[0:1], 16
s_load_dwordx4 s[24:27], s[0:1], 32
s_load_dwordx2 s[4:5], s[0:1], 8
v_and_b32 v20, 63, v0                 ; lane
v_lshlrev_b32 v{V_L16}, 4, v20
s_mul_i32 s52, s32, {L_WSZ}
s_add_u32 s52, s52, {L_W}
s_mul_i32 s53, s32, 12288
v_bfe_u32 v21, v20, 4, 1               ; g>>1
v_bfe_u32 v22, v20, 3, 1               ; g&1
v_bfe_u32 v23, v20, 2, 1               ; R>>1
v_bfe_u32 v24, v20, 1, 1               ; R&1
v_and_b32 v25, 1, v20                  ; p
v_lshrrev_b32 v26, 5, v20              ; T
v_lshlrev_b32 v27, 3, v21
v_lshl_add_u32 v27, v22, 1, v27
v_lshl_add_u32 v27, v23, 2, v27
v_lshl_add_u32 v27, v24, 5, v27
v_lshlrev_b32 v27, 13, v27
v_lshl_add_u32 v27, v26, 5, v27
v_lshl_add_u32 v32, v25, 4, v27
v_lshlrev_b32 v27, 4, v22
v_lshl_add_u32 v27, v21, 2, v27
v_add_u32 v27, v27, v24
v_lshlrev_b32 v27, 10, v27
v_lshl_add_u32 v27, v26, 6, v27
v_lshl_add_u32 v27, v23, 5, v27
v_lshl_add_u32 v33, v25, 4, v27
v_lshlrev_b32 v27, 3, v20
v_add_u32 v34, s52, v27
v_add_u32 v35, s53, v27
s_lshl_b32 s36, s33, 8
s_lshl_b32 s37, s32, 6
s_add_u32 s36, s36, s37                ; h*256+w*64
s_lshl_b32 s37, s32, 1
""")
    for tau in range(8):
        A(f's_xor_b32 s38, s37, {tau}\ns_lshl_b32 s38, s38, 19\ns_add_u32 s{40+tau}, s38, s36')
    A('s_lshl_b32 s36, s33, 17\ns_lshl_b32 s37, s32, 8\ns_add_u32 s36, s36, s37')
    for k in range(4):
        A(f's_xor_b32 s38, s32, {k}\ns_lshl_b32 s38, s38, 15\ns_add_u32 s{48+k}, s38, s36')
    A(f"""
s_lshr_b32 s36, s33, 3
s_lshl_b32 s36, s36, 4
s_and_b32 s37, s32, 1
s_lshl_b32 s37, s37, 3
s_add_u32 s36, s36, s37
s_and_b32 s39, s33, 7
s_add_u32 s37, s36, s39
s_lshl_b32 s61, s37, 7                 ; Gm*128
v_lshrrev_b32 v21, 4, v20
v_bfe_u32 v22, v20, 2, 1
v_lshl_add_u32 v21, v21, 1, v22
v_lshlrev_b32 v23, 4, v21
v_and_b32 v22, 3, v20
v_lshl_add_u32 v23, v22, 2, v23
v_add_u32 v{V_MST}, s61, v23
v_lshlrev_b32 v24, 10, v21
v_lshl_add_u32 v24, v22, 1, v24
s_lshl_b32 s36, s36, 4
s_lshl_b32 s39, s39, 3
s_add_u32 s39, s36, s39
s_waitcnt lgkmcnt(0)
s_mov_b32 s20, s18
s_and_b32 s21, s19, 0xffff
s_mov_b32 s22, 0x400000
s_mov_b32 s23, 0x20000
s_and_b32 s17, s17, 0xffff
s_mov_b32 s18, 0x400000
s_mov_b32 s19, 0x20000
s_mov_b32 s28, s26
s_and_b32 s29, s27, 0xffff
s_mov_b32 s30, 0x400000
s_mov_b32 s31, 0x20000
s_and_b32 s25, s25, 0xffff
s_mov_b32 s26, 0x400000
s_mov_b32 s27, 0x20000
""")
    srd(A, 84, 4, 8192)
    A('buffer_load_ushort v38, v24, s[84:87], s39 offen\nbuffer_load_ushort v39, v24, s[84:87], s39 offen offset:64')
    NU = len(order)
    fin = {n: loc[order[n] + (0,)][1] for n in range(NU) if loc[order[n] + (0,)][0] == 'lds'}
    slot_of = {}; issue_at = {}; busy = {}; state = {'nxt': 0}
    def try_issue(now):
        while state['nxt'] < NU and state['nxt'] - now <= (pre0 if now < 0 else depth):
            nxt = state['nxt']
            if nxt in fin: cand = [fin[nxt]] if fin[nxt] not in busy else []
            else:
                soon = {fin[m] for m in fin if nxt < m <= nxt + look}
                cand = [s_ for s_ in (7, 8, 9, 0, 1, 2, 3, 4, 5, 6) if s_ not in busy and s_ not in soon and not (s_ == 6 and now < 0)]
            if not cand: break
            busy[cand[0]] = nxt; slot_of[nxt] = cand[0]; issue_at[nxt] = now; state['nxt'] += 1
    try_issue(-1)
    for n in range(NU):
        if n >= 1 and (n - 1) not in fin: del busy[slot_of[n - 1]]
        try_issue(n)
        assert n + 1 >= NU or (n + 1) in slot_of, n
    if tag == 'dbg': print([(n, slot_of[n], issue_at[n]) for n in range(NU)])
    def issue(n):
        u = order[n]; sl = slot_of[n]
        for mp in range(4):
            if sl < 7: A(f's_add_u32 m0, s52, {sl*4096 + mp*1024}')
            else: A(f's_add_u32 m0, s53, {(sl-7)*4096 + mp*1024}')
            if u[0] == 'o':
                A(f's_add_u32 s38, s{48+u[1]}, {(8*(mp>>1)+2*(mp&1))*1024 + 128*u[2]}')
                A(f'buffer_load_dwordx4 v33, s[28:31], s38 offen {wpol} lds')
            else:
                base = {'q': 16, 'k': 20, 'v': 24}[u[0]]
                A(f's_add_u32 s38, s{40+u[1]}, {(16*(mp>>1)+(mp&1))*8192}')
                A(f'buffer_load_dwordx4 v32, s[{base}:{base+3}], s38 offen {wpol} lds')
    npre = 0
    for m in range(NU):
        if issue_at[m] == -1: issue(m); npre += 4
    if gate: confirm(A, f'{tag}_conf')
    A(f"""
s_mov_b32 s35, {budget}
s_lshl_b32 s36, s32, 11                ; w*2048
v_add_u32 v{V_B0}, s36, v{V_L16}
v_xor_b32 v{V_B1}, 2048, v{V_B0}
v_xor_b32 v{V_B2}, 4096, v{V_B0}
v_xor_b32 v{V_B3}, 6144, v{V_B0}
s_add_u32 s54, s36, {MEMB}             ; sMemRd
s_mov_b32 s55, {MEMB + 8192}           ; sMemWr
s_mov_b32 s56, {GMEMB}
v_add_u32 v{V_WV}, s52, v{V_L16}
v_and_b32 v21, 8, v20
v_cmp_eq_u32 vcc, 0, v21
v_mov_b32 v22, 0xeeee
v_mov_b32 v23, 0x4444
v_cndmask_b32 v{V_IDX}, v22, v23, vcc
s_mov_b32 s80, 0x00ff00ff
s_mov_b32 s81, 0x00ff00ff
v_lshrrev_b32 v21, 5, v20
v_bfe_u32 v22, v20, 2, 2
v_lshl_add_u32 v21, v21, 2, v22
v_lshlrev_b32 v21, 12, v21
v_bfe_u32 v22, v20, 4, 1
v_lshl_add_u32 v21, v22, 6, v21
v_and_b32 v22, 3, v20
v_lshl_add_u32 v21, v22, 4, v21
s_lshl_b32 s36, s32, 15
v_add_u32 v21, s36, v21
v_lshrrev_b32 v22, 12, v21
v_mul_u32_u24 v22, {swz}, v22
v_add_u32 v22, s33, v22
v_and_b32 v22, 31, v22
v_lshl_add_u32 v{V_PST}, v22, 7, v21
s_mov_b32 s60, 0                       ; part slot offset
s_mov_b32 s58, {PARTB}
s_mov_b32 s59, {PARTB + 0x20000}
; reducer G = 32*(w&1)+h
s_and_b32 s36, s32, 1
s_lshl_b32 s36, s36, 5
s_add_u32 s36, s36, s33
s_lshl_b32 s37, s36, 12
s_add_u32 s62, s37, {PARTB}
s_mov_b32 s63, s62
; reset region: G2=32*(w>>1)+h, half (w&1)
s_lshr_b32 s38, s32, 1
s_lshl_b32 s38, s38, 5
s_add_u32 s38, s38, s33
s_lshl_b32 s38, s38, 12
s_and_b32 s39, s32, 1
s_lshl_b32 s39, s39, 11
s_add_u32 s38, s38, s39
s_add_u32 s65, s38, {PARTB}
s_lshl_b32 s38, s32, 12
s_add_u32 s66, s38, {L_KV}
s_add_u32 s67, s38, {L_KV + 16384}
s_lshl_b32 s39, s33, 20
s_add_u32 s38, s38, s39
s_add_u32 s57, s38, {KVB}
s_mov_b32 s68, {f32bits(128 ** -0.5 * math.log2(math.e))}
v_lshrrev_b32 v21, 5, v20
v_and_b32 v22, 15, v20
v_lshl_add_u32 v21, v21, 4, v22
v_lshlrev_b32 v21, 4, v21
v_bfe_u32 v22, v20, 4, 1
v_lshl_add_u32 v21, v22, 3, v21
s_lshl_b32 s38, s32, 11
v_add_u32 v{V_QW}, s38, v21
v_lshrrev_b32 v21, 2, v20
v_lshlrev_b32 v21, 4, v21
v_and_b32 v22, 1, v20
v_lshl_add_u32 v{V_TR}, v22, 3, v21
; selector value and masks: i=l&15 ; val=(i&3)==0?0x3f80:(i&3)==1?0x3f800000:0 ; mask q: (i>>2)==q
v_and_b32 v21, 3, v20
v_mov_b32 v22, 0
v_mov_b32 v23, 0x3f80
v_cmp_eq_u32 vcc, 0, v21
v_cndmask_b32 v22, v22, v23, vcc
v_mov_b32 v23, 0x3f800000
v_cmp_eq_u32 vcc, 1, v21
v_cndmask_b32 v{V_SELV}, v22, v23, vcc
s_mov_b32 s72, 0x0f0f0f0f
s_mov_b32 s73, 0x0f0f0f0f
s_mov_b32 s74, 0xf0f0f0f0
s_mov_b32 s75, 0xf0f0f0f0
s_mov_b32 s82, -1
s_mov_b32 s83, 0
s_waitcnt vmcnt({npre})
v_lshl_or_b32 v{T3}, v39, 16, v38
s_lshl_b32 s38, s33, 10
s_lshl_b32 s39, s32, 8
s_add_u32 s38, s38, s39
v_lshrrev_b32 v21, 2, v{V_L16}
v_mov_b32 v22, 0
{"" if gate else "s_or_b32 s38, s38, 0x2000"}
buffer_store_dword v22, v21, s[8:11], s38 offen sc1
v_mov_b32 v28, -1
v_mov_b32 v29, -1
v_mov_b32 v30, -1
v_mov_b32 v31, -1
v_lshrrev_b32 v21, 3, v20
v_lshlrev_b32 v21, 13, v21
v_and_b32 v22, 7, v20
v_lshl_add_u32 v21, v22, 4, v21
v_add_u32 v21, s61, v21
""")
    def init_rings(isc, lbl):
        A(f"""buffer_store_dwordx4 v[28:31], v{V_L16}, s[8:11], s65 offen{isc}
buffer_store_dwordx4 v[28:31], v{V_L16}, s[8:11], s65 offen offset:1024{isc}
s_add_u32 s64, s65, 0x40000
buffer_store_dwordx4 v[28:31], v{V_L16}, s[8:11], s64 offen{isc}
buffer_store_dwordx4 v[28:31], v{V_L16}, s[8:11], s64 offen offset:1024{isc}
s_cmp_ge_u32 s32, 2
s_cbranch_scc1 {lbl}
s_mov_b32 s38, {MEMB}
s_mov_b64 exec, 0xffffff00
buffer_store_dwordx4 v[28:31], v21, s[8:11], s38 offen{isc}
s_mov_b64 exec, s[80:81]
buffer_store_dword v{T3}, v{V_MST}, s[8:11], s38 offen{isc}
s_mov_b64 exec, -1""")
    def register(off, val):
        A(f"""s_mov_b64 exec, 1
v_mov_b32 v36, {val}
v_mov_b32 v37, {off}
buffer_atomic_add v36, v37, s[12:15], 0 offen sc1
s_mov_b64 exec, -1""")
    NA_, NI_, NB_ = NU - 17, NU - 8, NU - 5
    for n in range(NU):
        u = order[n]; sl = slot_of[n]
        later = sum(1 for m in range(n + 1, NU) if issue_at[m] < n)
        A(f's_waitcnt vmcnt({0 if n in (0, NB_) else 4*later})')
        if n == 0: register(DBG_CHAINCNT, 's2' if gate else '1')
        if n == NB_:
            A(f'''s_lshl_b32 s36, s33, 4
s_lshl_b32 s37, s32, 2
s_add_u32 s36, s36, s37
s_add_u32 s36, s36, {FLAGS+F_RB}
s_mov_b64 exec, 1
s_cmp_lg_u32 s2, 0
s_cbranch_scc1 {tag}_rbx
buffer_store_dword v28, off, s[8:11], s36{sc}
s_branch {tag}_rb
{tag}_rbx:
buffer_store_dword v28, off, s[8:11], s36 sc1
{tag}_rb:
s_mov_b64 exec, -1''')
        av = 34 if sl < 7 else 35
        off = (sl if sl < 7 else sl - 7) * 4096
        for T in range(2):
            l = loc[u + (T,)]
            dst = l[1] if l[0] == 'reg' else f'v[{40+8*T}:{47+8*T}]'
            for mp in range(4):
                A(f'ds_read_b64_tr_b16 {sub(dst, 2*mp, 2)}, v{av} offset:{off + mp*1024 + T*512}')
        if n == NA_:
            A(f'v_mov_b32 v56, {DBG_CHAINCNT}\nbuffer_load_dword v58, v56, s[12:15], 0 offen sc1')
        if n == NI_:
            assert issue_at[n] >= NA_
            A(f"""v_readfirstlane_b32 s39, v58
s_and_b32 s36, s39, 0xffff
s_cmp_ge_u32 s36, 128
s_cbranch_scc1 {tag}_wreg_ok""")
            wait_dbg(A, f'{tag}_wreg', DBG_CHAINCNT, 128, 58, 59)
            A(f's_lshr_b32 s2, s39, 16\ns_cmp_lg_u32 s2, 0\ns_cbranch_scc1 {tag}_initx')
            init_rings(sc, f'{tag}_inited')
            A(f's_branch {tag}_inited\n{tag}_initx:')
            init_rings(' sc1', f'{tag}_inited')
            A(f'{tag}_inited:\ns_add_u32 s64, s65, 0x80000')
        if n == NU - 4 and cpre:
            A(f'''s_getpc_b64 s[6:7]
{tag}_pc:
s_add_u32 s6, s6, {tag}0_top-{tag}_pc
s_addc_u32 s7, s7, 0
v_lshlrev_b32 v60, 2, v{V_L16}
global_load_dword v61, v60, s[6:7]''')
        if n == NI_:
            A(f"""v_lshrrev_b32 v56, 2, v{V_L16}
s_lshl_b32 s88, s33, 8
buffer_load_dword v57, v56, s[8:11], s88 offen sc1""")
        if n == NB_:
            A(f"""v_cmp_le_u32 s[70:71], 4, v57
v_lshlrev_b32 v62, 2, v{V_L16}
s_nop 0
s_and_b32 s36, s70, 3
s_cmp_lg_u32 s36, 3
s_cbranch_scc1 {tag}_nopf
s_add_u32 s36, s57, 16384
buffer_load_dword v63, v62, s[8:11], s57 offen sc1
buffer_load_dword v63, v62, s[8:11], s36 offen sc1
{tag}_nopf:""")
            if touch:
                A(f'v_lshlrev_b32 v64, 1, v{V_L16}')
                for i in range(4): A(f's_add_u32 s37, s65, {i*0x40000}\nbuffer_load_dword v65, v64, s[8:11], s37 offen sc1')
                A(f's_mov_b32 s37, {MEMB}\nbuffer_load_dword v65, v21, s[8:11], s37 offen sc1')
        if n == NU - 2:
            A('buffer_load_dword v57, v56, s[8:11], s88 offen sc1')
        todo = [m for m in range(NU) if issue_at[m] == n]
        if todo:
            A('s_waitcnt lgkmcnt(8)')
            for m in todo: issue(m)
        if n in fin:
            A('s_waitcnt lgkmcnt(0)')
            for T in range(2):
                for hf in range(2):
                    A(f'ds_write_b128 v{V_WV}, {vr(40+8*T+4*hf)} offset:{sl*4096 + T*2048 + hf*1024}')
            A('s_waitcnt lgkmcnt(0)')
    A('s_waitcnt lgkmcnt(0)\ns_barrier')
    prof(A, 1, 36, dbg=9)
    A(f"""s_waitcnt vmcnt(0)
v_cmp_le_u32 s[70:71], 4, v57
v_lshrrev_b32 v56, 1, v{V_L16}
s_mov_b32 s37, {FLAGS+F_RB}
{tag}_wb:
buffer_load_dwordx2 v[58:59], v56, s[8:11], s37 offen sc1
s_waitcnt vmcnt(0)
v_and_b32 v58, v58, v59
v_cmp_ne_u32 vcc, -1, v58
s_cbranch_vccz {tag}_wb_ok
s_sleep 4
s_sub_u32 s35, s35, 1
s_cbranch_scc0 {tag}_wb
s_mov_b32 s35, 0
{tag}_wb_ok:""")
    A('s_mov_b32 s86, 0x3f803f80\ns_mov_b32 s87, 0x3f803f80\ns_mov_b32 s34, 0\ns_mov_b32 s69, 0')
    poolmap = {('v', 0, 0): M[2], ('v', 0, 1): M[6], ('v', 1, 0): M[5], ('v', 1, 1): P[0],
               ('k', 0, 0): P[1], ('k', 0, 1): P[2], ('k', 1, 0): P[3], ('k', 1, 1): P[4],
               ('o', 1, 1, 0): P[0], ('o', 1, 1, 1): P[1], ('o', 2, 1, 0): P[2], ('o', 2, 1, 1): P[3],
               ('o', 3, 1, 0): P[4], ('o', 3, 1, 1): M[2]}
    def plh(f, hf, tg):
        l = loc[f]
        A.ds(f'ds_read_b128 {vr(poolmap[f] + 4*hf)}, v{V_WV} offset:{l[1]*4096 + l[2]*2048 + hf*1024}', tg)
    def pool_load(f, tg): plh(f, 0, tg); plh(f, 1, tg)
    def kv_ready(lbl):
        A(f's_bitcmp1_b64 s[70:71], s36\ns_cbranch_scc0 {lbl}_slow\n{lbl}_ok:')
    def kv_slow(lbl):
        A(f"""{lbl}_slow:
v_lshrrev_b32 v{T0}, 2, v{V_L16}
s_lshl_b32 s37, s33, 8
buffer_load_dword v{T1}, v{T0}, s[8:11], s37 offen sc1
s_waitcnt vmcnt(0)
v_cmp_le_u32 s[70:71], 4, v{T1}
s_nop 1
s_bitcmp1_b64 s[70:71], s36
s_cbranch_scc1 {lbl}_ok
s_sub_u32 s35, s35, 1
s_cbranch_scc0 {lbl}_slow
s_mov_b32 s35, 0
s_branch {lbl}_ok""")
    def z(a): A(f'v_mov_b64 v[{a}:{a+1}], 0\nv_mov_b64 v[{a+2}:{a+3}], 0')
    def prep_a(mid=None):
        fr = [('v', 1, 1), ('k', 0, 0), ('k', 0, 1), ('k', 1, 0), ('k', 1, 1), ('v', 0, 0), ('v', 0, 1)]
        for i, f in enumerate(fr):
            pool_load(f, 'pi')
            if mid and i in mid: mid[i]()
        for r in (AK0, AK1, AV0, AV1): z(r)
    def prep_b():
        pool_load(('v', 1, 0), 'pi')
    def delay(n):
        while n > 0:
            k = min(n, 16); A(f's_nop {k-1}'); n -= k
    prof(A, 2, 36)
    if PROF['on'] is True: A('s_memtime s[96:97]')
    slow = []
    for i in range(3):
        A(f's_mov_b32 s36, {i}'); kv_ready(f'{tag}_kv{i}'); slow.append(f'{tag}_kv{i}')
    A('s_mov_b32 m0, s66')
    for i in range(4): A(f'buffer_load_dwordx4 v{V_L16}, s[8:11], s57 offen offset:{i*1024} sc1 lds')
    A('s_add_u32 s57, s57, 16384')
    prep_a()
    A.wait_lds_all()
    if PROF['on'] == 'dbg': prof(A, 0, T0, dbg=10)
    acc = {('q', 0): AQ0, ('q', 1): AQ1, ('k', 0): AK0, ('k', 1): AK1, ('v', 0): AV0, ('v', 1): AV1}
    def wreg(frag):
        l = loc[frag]
        return l[1] if l[0] == 'reg' else vr(poolmap[frag], 8)
    def SM(m, tau, T): A(f'v_smfmac_f32_16x16x64_bf16 {vr(acc[(m,T)])}, {vr(M[tau])}, {wreg((m,tau,T))}, v{V_IDX}')
    STP = [40,42,44,46,48,50,52,84,98,16,90,92,94,100]
    cur = {'par': 0}
    def stamp(i):
        if stamps in ('rt', 'cal'):
            if (cur['par'] == 1 and i >= 9) or (cur['par'] == 0 and i <= 2): A(f'{"s_memrealtime" if stamps == "rt" else "s_memtime"} s[{STP[i]}:{STP[i]+1}]')
        elif stamps and cur['par'] == 0 and (stsel is None or i in stsel): A(f's_memtime s[{STP[i]}:{STP[i]+1}]')
    def cal(i, par):
        if stamps == 'cal' and par == 1: A(f's_memtime s[{STP[i]}:{STP[i]+1}]')
    def wrap(r): return f's_bitset0_b32 {r}, 15\n'
    retry = {}; lates = []
    def step(par, ltag, sc):
        t = f'{ltag}{par}'
        KOFF = L_KV + par * 16384; VOFF = KOFF + 8192
        VK, VV = (V_L16, V_B0) if unroll == 2 else (T0, T1)
        A(f'{t}_top:')
        cur['par'] = par
        stamp(0)
        def ldA():
            for u in range(2): A(f'buffer_load_dwordx4 {vr(M[u])}, v{V_L16}, s[8:11], s54 offen offset:{u*1024} sc1')
        def nanA(t=t, ldA=ldA):
            A(f'{t}_reA:\ns_cmp_lg_u32 s3, 0\ns_cbranch_scc1 {t}_okA')
            ldA()
            A('s_nop 3')
            for r in (AK0, AK1, AV0, AV1): z(r)
            A(f"""{t}_scnA:
s_waitcnt vmcnt({2*nA-2})
v_max3_u32 v{T0}, v{M[0]}, v{M[0]+1}, v{M[0]+2}
v_max3_u32 v{T1}, v{M[0]+3}, v{M[1]}, v{M[1]+1}
v_max3_u32 v{T0}, v{T0}, v{M[1]+2}, v{M[1]+3}
v_max_u32 v{T0}, v{T0}, v{T1}
v_cmp_eq_u32 vcc, -1, v{T0}
s_mov_b32 s3, 1
s_cbranch_vccz {t}_chkA
s_mov_b64 exec, vcc""")
            ldA()
            A(f"""s_mov_b64 exec, -1
s_sub_u32 s35, s35, 1
s_cbranch_scc0 {t}_scnA
s_mov_b32 s35, 0
s_branch {t}_chkA""")
        lates.append(nanA)
        A(f's_mov_b32 m0, s{66+(par^1)}' if unroll == 2 else 's_sub_u32 m0, s67, s69')
        A('s_mov_b32 s3, 0')
        if not nocomm: ldA()
        prep_b()
        for i in range(nA - 1):
            delay(gA)
            if not nocomm: ldA()
        A(f's_waitcnt lgkmcnt(0)\n{t}_chkA:')
        if not nocomm: A(f's_waitcnt vmcnt({2*nA-1})')
        A.lds_q = []
        stamp(1)
        KX = {(tt, k): P[k] + 4 * (tt - 1) for tt in (1, 2) for k in range(4)}
        QF = [AQ0, AQ1, M[0], M[1]]
        KM = [M[2], M[4], M[6], M[3]]
        VX = [P[4], P[4] + 4]
        def ldM(tau): A.ds(f'ds_read_b128 {vr(M[tau])}, v{VB[tau>>1]} offset:{L_MEM + (tau&1)*1024}', f'm{tau}')
        def ldKX(tt, k): A.ds(f'ds_read_b128 {vr(KX[(tt,k)])}, v{VK} offset:{KOFF + (tt-1)*4096 + k*1024}', 'kx')
        def ldVX(T): A.ds(f'ds_read_b128 {vr(VX[T])}, v{VV} offset:{VOFF + T*1024}', 'kx')
        def ldQF(k):
            for hf in range(2): A.ds(f'ds_read_b64_tr_b16 {vr(QF[k]+2*hf,2)}, v{V_TR} offset:{L_OQK + k*2048 + 1024 + hf*256}', f'qf{k}')
        def ldKM(k):
            for hf in range(2): A.ds(f'ds_read_b64_tr_b16 {vr(KM[k]+2*hf,2)}, v{V_TR} offset:{L_OQK + k*2048 + 1536 + hf*256}', f'km{k}')
        def fold(a0, a1, t0):
            ops = []
            for r in range(4): ops.append(f'v_permlane32_swap_b32 v{a0+r}, v{a1+r}')
            for r in range(4): ops.append(f'v_add_f32 v{a0+r}, v{a0+r}, v{a1+r}')
            ops.append(f'v_cvt_pk_bf16_f32 v{t0}, v{a0}, v{a0+1}')
            ops.append(f'v_cvt_pk_bf16_f32 v{t0+1}, v{a0+2}, v{a0+3}')
            return ops
        two = lambda m, tau: [(m, tau, 0), (m, tau, 1)]
        sms = []
        for m in 'vkq': sms += two(m, 0) + two(m, 1)
        for m in 'qkv':
            for tau in (2, 4, 6, 3, 5, 7): sms += two(m, tau)
        assert len(sms) == 48 and len(set(sms)) == 48
        pre = {i: [] for i in range(48)}; post = {i: [] for i in range(48)}
        post[0].append(lambda: A(f'ds_write_b128 v{V_B0}, {vr(M[0])} offset:{L_MEM}'))
        if not nocomm: pre[1].append(lambda: A(f's_waitcnt vmcnt({2*nA-2})'))
        post[1].append(lambda: A(f'ds_write_b128 v{V_B0}, {vr(M[1])} offset:{L_MEM+1024}'))
        post[4].append(lambda: A(f'v_cmp_u_f32 vcc, v{AV0}, v{AV0+1}\nv_cmp_u_f32 s[6:7], v{AV0+2}, v{AV0+3}'))
        for i, r in enumerate((AQ0, AQ0 + 2, AQ1, AQ1 + 2)): post[(0, 2, 3, 6)[i]].append(lambda r=r: A(f'v_mov_b64 v[{r}:{r+1}], 0'))
        sms[1], sms[2] = sms[2], sms[1]
        if not nocomm: pre[dmapos[0]].append(lambda: A('s_waitcnt vmcnt(0)'))
        def brA():
            if not nocomm: A(f's_or_b64 vcc, vcc, s[6:7]\ns_cbranch_scc1 {t}_reA')
            A(f'{t}_okA:')
        def b1():
            A('s_waitcnt lgkmcnt(0)\ns_barrier')
            stamp(2)
        pre[6].append(brA)
        pre[b1pos + 1].append(b1)
        for i, tau in enumerate((2, 4, 6, 3, 5, 7)): post[b1pos + 1 + i].append(lambda tau=tau: ldM(tau))
        for i_, tau_ in enumerate((2, 4, 6, 3, 5, 7)): pre[12 + 2 * i_].append(lambda tau_=tau_: A.wait_lds(f'm{tau_}'))
        kxs = [(tt, k) for k in range(4) for tt in (1, 2)]
        for i, pos in enumerate(range(b1pos + 7, b1pos + 15)): post[pos].append(lambda i=i: ldKX(*kxs[i]))
        post[24].append(lambda: ldVX(0)); post[26].append(lambda: ldVX(1))
        if unroll == 1:
            post[8].append(lambda: A(f'v_add_u32 v{T0}, s69, v{V_L16}'))
            post[max(prepos + 1, 16)].append(lambda: A(f'v_add_u32 v{T1}, s69, v{V_B0}'))
        for i, pos in enumerate(dmapos): post[pos].append(lambda i=i: A(f'buffer_load_dwordx4 v{V_L16}, s[8:11], s57 offen offset:{i*1024} {dm} lds'))
        if pf is not None:
            post[prepos - 1].append(lambda: A(f'v_lshlrev_b32 v{T1}, 2, v{V_L16}\ns_add_u32 s36, s57, 16384'))
            post[prepos].append(lambda: A(f'buffer_load_dword v{T2}, v{T1}, s[8:11], s36 offen {pf}\nv_lshrrev_b32 v{T1}, 2, v{V_L16}'))
            post[prepos + 1].append(lambda: A(f'buffer_load_dword v{T2}, v{T1}, s[8:11], s88 offen sc1'))
        if not repidle:
            post[reppos - 1].append(lambda: A('s_cmp_ge_u32 s32, 2'))
            post[reppos].append(lambda: A(f's_cbranch_scc1 {t}_norep\ns_mov_b64 exec, s[80:81]\nbuffer_store_dword v{T3}, v{V_MST}, s[8:11], s56 offen sc1\ns_mov_b64 exec, -1\n{t}_norep:'))
        post[reppos + 1].append(lambda: prof(A, 16, M[1], 34, cyc=True))
        post[13].append(lambda: A(f'v_mov_b64 v[{M[0]}:{M[0]+1}], -1'))
        post[14].append(lambda: A(f'v_mov_b64 v[{M[0]+2}:{M[0]+3}], -1'))
        assert respos[0] - 2 >= 12
        post[respos[0]].append(lambda: A(f'buffer_store_dwordx4 {vr(M[0])}, v{V_L16}, s[8:11], s64 offen{sc}'))
        post[respos[1]].append(lambda: A(f'buffer_store_dwordx4 {vr(M[0])}, v{V_L16}, s[8:11], s64 offen offset:1024{sc}'))
        post[11].append(lambda: stamp(3)); post[23].append(lambda: stamp(4)); post[35].append(lambda: stamp(5))
        for i, op in enumerate(fold(AQ0, AQ1, T0)): post[26 + i].append(lambda op=op: A(op))
        post[36].append(lambda: A.ds(f'ds_write_b64 v{V_QW}, v[{T0}:{T1}] offset:{L_OQK+1024}', 'qw'))
        for i, op in enumerate(fold(AK0, AK1, T0)): post[38 + (i * kfs) // 10].append(lambda op=op: A(op))
        post[38 + kfs].append(lambda: A.ds(f'ds_write_b64 v{V_QW}, v[{T0}:{T1}] offset:{L_OQK+1536}', 'kw'))
        pre[b2pos].append(lambda: (A.wait_lds('qw'), A('s_barrier')))
        qpos = [p_ for p_ in range(b2pos, 48) if p_ != 38 + kfs][:4]
        for k, pos in enumerate(qpos): post[pos].append(lambda k=k: ldQF(k))
        for i, f in enumerate(sms):
            if i == 0:
                for fn in pre[0]: fn()
            SM(*f)
            n0 = len(A.items)
            for fn in post[i]: fn()
            if i + 1 < 48:
                for fn in pre[i + 1]: fn()
            gap = A.items[n0:]
            if not any(isinstance(x, str) for x in gap):
                A.items[n0:] = [x for x in gap if x.kind != 'valu'] + [x for x in gap if x.kind == 'valu']
        stamp(6)
        ST = {1: AK0, 2: AK1, 0: M[5]}
        VM = M[7]; ONES = KM[0]; ONE2 = KM[1]; PM = KM[1] + 2; PB = KM[2]; LS = KM[3]; O = [AV0, AV1]
        def MF(d, a, b, c): A(f'v_mfma_f32_16x16x32_bf16 {vr(d)}, {vr(a)}, {vr(b)}, {c}')
        def MF16(d, a, b): A(f'v_mfma_f32_16x16x16_bf16 {vr(d)}, {vr(a,2)}, {vr(b,2)}, {vr(d)}')
        late = [(('o', k, 1, T), hf) for k in (1, 2, 3) for T in (0, 1) for hf in (0, 1)]
        vmc = [f'v_cvt_pk_bf16_f32 v{VM+i}, v{(AV0,AV1)[i>>1]+2*(i&1)}, v{(AV0,AV1)[i>>1]+2*(i&1)+1}' for i in range(4)]
        n = 0
        for k in range(4):
            A.wait_lds(f'qf{k}')
            if k == b3k:
                A.wait_lds('kw'); A('s_barrier')
            for tt in (1, 2):
                MF(ST[tt], KX[(tt, k)], QF[k], '0' if k == 0 else vr(ST[tt]))
                if 2 * b3k <= n < 2 * b3k + 4: ldKM(n - 2 * b3k)
                elif n >= 2: plh(*late.pop(0), 'piii')
                if vmc and n >= 2 and not (2 * b3k <= n < 2 * b3k + 4 and len(vmc) <= 2): A(vmc.pop(0))
                n += 1
        WA = QF
        for k in range(4):
            A.wait_lds(f'km{k}')
            MF(ST[0], KM[k], QF[k], '0' if k == 0 else vr(ST[0]))
            plh(*late.pop(0), 'piii')
            if k == 0: A(f'v_mov_b64 v[{ONES}:{ONES+1}], s[86:87]')
            if k == 1: A(f'v_max3_f32 v{T0}, v{ST[1]}, v{ST[1]+1}, v{ST[1]+2}')
            if k == 2: A(f'v_max3_f32 v{T1}, v{ST[1]+3}, v{ST[2]}, v{ST[2]+1}')
            if k == 3: A(f'v_max3_f32 v{T0}, v{T0}, v{ST[2]+2}, v{ST[2]+3}')
            if vmc and k < 2: A(vmc.pop(0))
        assert not vmc
        stamp(7)
        A(f"""v_max_f32 v{T0}, v{T0}, v{T1}
v_mov_b32 v{T1}, v{T0}
v_mov_b64 v[{ONES+2}:{ONES+3}], s[86:87]
v_cndmask_b32 v{ONE2}, 0, v{ONES}, s[82:83]
v_permlane32_swap_b32 v{T0}, v{T1}
v_cndmask_b32 v{ONE2+1}, 0, v{ONES}, s[82:83]
v_max3_f32 v{T0}, v{T0}, v{T1}, v{ST[0]}
v_max3_f32 v{T1}, v{ST[0]+1}, v{ST[0]+2}, v{ST[0]+3}
v_max_f32 v{T0}, v{T0}, v{T1}
v_mov_b32 v{T1}, v{T0}""")
        z(WA[0])
        A(f"""v_permlane16_swap_b32 v{T0}, v{T1}
v_max_f32 v{T0}, v{T0}, v{T1}
v_mul_f32 v{T0}, s68, v{T0}""")
        for base in (ST[1], ST[2]):
            for r in range(4): A(f'v_fma_f32 v{base+r}, v{base+r}, s68, -v{T0}')
        for base in (ST[1], ST[2]):
            for r in range(4): A(f'v_exp_f32 v{base+r}, v{base+r}')
        b = ST[0]
        A(f"""v_cvt_pk_bf16_f32 v{PB}, v{ST[1]}, v{ST[1]+1}
v_cvt_pk_bf16_f32 v{PB+1}, v{ST[1]+2}, v{ST[1]+3}
v_cvt_pk_bf16_f32 v{PB+2}, v{ST[2]}, v{ST[2]+1}
v_cvt_pk_bf16_f32 v{PB+3}, v{ST[2]+2}, v{ST[2]+3}
v_fma_f32 v{b}, v{b}, s68, -v{T0}
v_fma_f32 v{b+1}, v{b+1}, s68, -v{T0}""")
        MF(LS, ONES, PB, '0')
        plh(*late.pop(0), 'piii')
        A(f'v_fma_f32 v{b+2}, v{b+2}, s68, -v{T0}\nv_fma_f32 v{b+3}, v{b+3}, s68, -v{T0}')
        MF(O[0], VX[0], PB, '0')
        plh(*late.pop(0), 'piii')
        A(f'v_exp_f32 v{b}, v{b}')
        MF(O[1], VX[1], PB, '0')
        A(f"""v_exp_f32 v{b+1}, v{b+1}
v_exp_f32 v{b+2}, v{b+2}
v_exp_f32 v{b+3}, v{b+3}
v_cvt_pk_bf16_f32 v{PM}, v{b}, v{b+1}
v_cvt_pk_bf16_f32 v{PM+1}, v{b+2}, v{b+3}""")
        z(WA[1])
        MF16(LS, ONE2, PM); z(WA[2]); MF16(O[0], VM, PM); z(WA[3]); MF16(O[1], VM + 2, PM)
        stamp(8)
        OF = [AK0, AK1, M[5], PB]
        A(f'v_rcp_f32 v{T0}, v{LS}')
        for T in range(2):
            for r in range(4): A(f'v_mul_f32 v{O[T]+r}, v{O[T]+r}, v{T0}')
            A(f'v_cvt_pk_bf16_f32 v{OF[0]+2*T}, v{O[T]}, v{O[T]+1}\nv_cvt_pk_bf16_f32 v{OF[0]+2*T+1}, v{O[T]+2}, v{O[T]+3}')
        A.ds(f'ds_write_b128 v{V_B0}, {vr(OF[0])} offset:{L_OQK}', 'ow')
        stamp(9)
        def SO(k, a): A(f'v_smfmac_f32_16x16x64_bf16 {vr(WA[a])}, {vr(OF[k])}, {wreg(("o",k,a>>1,a&1))}, v{V_IDX}')
        R = QF; SEL = M[7]; RA = M[5]
        selops = [f'v_cndmask_b32 v{SEL+q}, 0, v{V_SELV}, s[{72+2*(q&1)}:{73+2*(q&1)}]' for q in range(4)]
        for a in range(4):
            SO(0, a); A(selops[a])
        A('s_waitcnt lgkmcnt(0)\ns_barrier'); A.lds_q = []
        for k in range(1, 4): A.ds(f'ds_read_b128 {vr(OF[k])}, v{VB[k]} offset:{L_OQK}', f'o{k}')
        for k in range(1, 4):
            A.wait_lds(f'o{k}')
            for a in (0, 1):
                SO(k, a)
                if late: plh(*late.pop(0), 'piv')
        PK = [AV0, AV1]
        n = 0
        for k in range(1, 4):
            if k == 3: A.wait_lds('piv')
            for a in (2, 3):
                SO(k, a); n += 1
                if early1:
                    if n == 3:
                        for r in range(4): A(f'v_cvt_pk_bf16_f32 v{PK[0]+r}, v{WA[0]+r}, v{WA[1]+r}')
                    if n == 4:
                        A(f'buffer_store_dwordx4 {vr(PK[0])}, v{V_PST}, s[8:11], s58 offen{sc}'); cal(3, par)
                elif n >= 3: A(f'v_cvt_pk_bf16_f32 v{PK[0]+n-3}, v{WA[0]+n-3}, v{WA[1]+n-3}')
        if not early1: A(f'buffer_store_dwordx4 {vr(PK[0])}, v{V_PST}, s[8:11], s58 offen{sc}')
        for r in range(4): A(f'v_cvt_pk_bf16_f32 v{PK[1]+r}, v{WA[2]+r}, v{WA[3]+r}')
        A(f'buffer_store_dwordx4 {vr(PK[1])}, v{V_PST}, s[8:11], s59 offen{sc}')
        stamp(10)
        def book():
            A(f"""s_add_u32 s54, s54, 8192
{wrap('s54')}s_add_u32 s56, s56, 8192
s_add_u32 s57, s57, {0 if nokv else 16384}
s_add_u32 s60, s60, 0x40000
s_and_b32 s60, s60, 0xc0000
s_xor_b32 s64, s60, 0x80000
s_add_u32 s64, s64, s65
s_add_u32 s58, s60, {PARTB}
s_add_u32 s59, s60, {PARTB + 0x20000}
s_xor_b32 s69, s69, 16384
s_add_u32 s34, s34, 1""")
        def ldB():
            for i in range(4): A(f'buffer_load_dwordx4 {vr(R[i])}, v{V_L16}, s[8:11], s62 offen offset:{i*1024} sc1')
        retry[f'{t}B'] = ldB
        A(f's_cmp_ge_u32 s32, 2\ns_cbranch_scc1 {t}_late')
        if nocomm:
            prep_a(); book(); A(f's_branch {t}_join')
        def first():
            delay(dB0); stamp(11); ldB()
        if pmid is None:
            prep_a(); book(); first()
            for i in range(nB - 1):
                delay(gB); ldB()
        else:
            prep_a({pmid: first}); book()
            for i in range(nB - 1): ldB()
        assert R[1] == R[0] + 4 and R[3] == R[2] + 4
        def red(i): A(f'v_smfmac_f32_16x16x64_bf16 {vr(RA)}, {vr(SEL)}, {vr(R[2*i], 8)}, v{V_IDX}')
        z(RA)
        A(f'{t}_chkB:\ns_waitcnt vmcnt({4*(nB-1)+2})')
        red(0)
        A(f's_waitcnt vmcnt({4*(nB-1)})')
        cal(4, par)
        red(1)
        A(f"""v_max3_u32 v{T0}, v{R[0]+3}, v{R[1]+3}, v{R[2]+3}
v_max_u32 v{T0}, v{T0}, v{R[3]+3}
v_cmp_eq_u32 s[6:7], -1, v{T0}
v_cmp_u_f32 vcc, v{RA+2}, v{RA+2}
v_add_f32_dpp v{RA}, v{RA}, v{RA} row_ror:8 row_mask:0xf bank_mask:0xf
v_add_f32_dpp v{RA+1}, v{RA+1}, v{RA+1} row_ror:8 row_mask:0xf bank_mask:0xf
v_cvt_pk_bf16_f32 v{T3}, v{RA}, v{RA+1}
s_cbranch_vccnz {t}_reB
{t}_okB:
s_mov_b64 exec, s[80:81]
buffer_store_dword v{T3}, v{V_MST}, s[8:11], s55 offen{sc}
s_mov_b64 exec, -1
{t}_join:""")
        def nan_path(t=t, R=R, RA=RA, SEL=SEL, ldB=ldB, red=red):
            A(f"""{t}_reB:
s_cmp_eq_u64 s[6:7], 0
s_cbranch_scc1 {t}_nan
s_mov_b64 exec, s[6:7]""")
            ldB()
            A('s_mov_b64 exec, -1')
            z(RA)
            A(f"""s_sub_u32 s35, s35, 1
s_cbranch_scc0 {t}_chkB
s_mov_b32 s35, 0
{t}_nan:
s_waitcnt vmcnt(0)""")
            fl = [x for r in R for x in range(r, r + 4)]
            A(f'v_max3_u32 v{T0}, v{fl[0]}, v{fl[1]}, v{fl[2]}')
            for i in range(6): A(f'v_max3_u32 v{T0}, v{T0}, v{fl[3+2*i]}, v{fl[4+2*i]}')
            A(f"""v_max_u32 v{T0}, v{T0}, v{fl[15]}
v_cmp_eq_u32 vcc, -1, v{T0}
s_cbranch_vccz {t}_nan2""")
            ldB()
            A(f"""s_sub_u32 s35, s35, 1
s_cbranch_scc0 {t}_nan
s_mov_b32 s35, 0
{t}_nan2:""")
            z(RA); red(0); red(1)
            A(f"""v_add_f32_dpp v{RA}, v{RA}, v{RA} row_ror:8 row_mask:0xf bank_mask:0xf
v_add_f32_dpp v{RA+1}, v{RA+1}, v{RA+1} row_ror:8 row_mask:0xf bank_mask:0xf
v_cvt_pk_bf16_f32 v{T3}, v{RA}, v{RA+1}
s_branch {t}_okB""")
        lates.append(nan_path)
        def late_path(t=t, par=par):
            A(f'{t}_late:')
            prep_a(); book()
            A(f"""
; waves 2,3: sentinel into the mem slot two steps ahead of the one being published
s_add_u32 s36, s55, 16384
{wrap('s36')}ds_read_b32 v{T3}, v{V_MST} offset:{L_MEM}
v_mov_b32 v{T0}, -1
s_sub_u32 s37, s56, 8192
s_mov_b64 exec, s[80:81]
buffer_store_dword v{T0}, v{V_MST}, s[8:11], s36 offen{sc}
s_waitcnt vmcnt(0) lgkmcnt(0)
{f"buffer_store_dword v{T3}, v{V_MST}, s[8:11], s37 offen sc1" if repidle else ""}
s_mov_b64 exec, -1""")
            delay(dI)
            A(f's_branch {t}_join')
        lates.append(late_path)
        stamp(12)
        A(f"""v_cmp_le_u32 s[70:71], 4, v{T2}
s_cmp_eq_u32 s34, {nsteps}
s_cbranch_scc1 {tag}_done
s_add_u32 s62, s63, s60
s_add_u32 s55, s55, 8192
{wrap('s55')}s_add_u32 s36, s34, 2""")
        kv_ready(f'{t}_kv'); slow.append(f'{t}_kv')
        if not noB5: A('s_barrier')
        delay(dA)
        stamp(13)
        A.lds_q = []
    if gate: A(f's_cmp_lg_u32 s2, 0\ns_cbranch_scc1 {tag}x0_top')
    for ltag, lsc in ([(tag, sc), (tag + 'x', ' sc1')] if gate else [(tag, sc)]):
        i0 = len(A.items)
        for par in range(unroll): step(par, ltag, lsc)
        if abl:
            import re
            keep = A.items[:i0]
            for it in A.items[i0:]:
                if not isinstance(it, str) and any(re.search(p, it.text) for p in abl): continue
                keep.append(it)
            A.items = keep
        A(f's_branch {ltag}0_top')
        for f in lates: f()
        del lates[:]
    for l in slow: kv_slow(l)
    A(f"""{tag}_done:
s_cmp_ge_u32 s32, 2
s_cbranch_scc1 {tag}_fin
s_mov_b64 exec, s[80:81]
buffer_store_dword v{T3}, v{V_MST}, s[8:11], s56 offen sc1
s_mov_b64 exec, -1
{tag}_fin:""")
    prof(A, 3, 36, dbg=11)
    if PROF['on'] is True:
        A("""s_memtime s[92:93]
s_waitcnt lgkmcnt(0)
s_sub_u32 s92, s92, s96
v_mov_b32 v36, s92
v_mov_b32 v37, s35
s_lshl_b32 s94, s32, 3
s_add_u32 s94, s94, s91
v_mov_b32 v38, 0
s_mov_b64 exec, 1
buffer_store_dwordx2 v[36:37], v38, s[8:11], s94 offen offset:16
s_mov_b64 exec, -1""")

def kd(name, vgpr=512, accum=256):
    return f'''
.amdhsa_kernel {name}
  .amdhsa_next_free_vgpr {vgpr}
  .amdhsa_next_free_sgpr 102
  .amdhsa_accum_offset {accum}
  .amdhsa_group_segment_fixed_size 0
  .amdhsa_kernarg_size 112
  .amdhsa_user_sgpr_count 2
  .amdhsa_user_sgpr_kernarg_segment_ptr 1
  .amdhsa_system_sgpr_workgroup_id_x 1
.end_amdhsa_kernel
'''

def common_entry(A):
    A(f'''
s_load_dwordx4 s[4:7], s[0:1], 96
s_getreg_b32 s3, hwreg(HW_REG_XCC_ID)
s_and_b32 s3, s3, 0xf
v_lshrrev_b32 v1, 6, v0
v_readfirstlane_b32 s32, v1
s_waitcnt lgkmcnt(0)''')
    srd(A, 12, 4, 256)
    srd(A, 8, 6, WS_BYTES)

def gen_chain_test(stamps=False, **kw):
    A = Asm()
    A.raw('; @launch kernel=chain_kernel grid=(256,1,1) block=(256,1,1) lds=163840')
    A.raw('.amdgcn_target "amdgcn-amd-amdhsa--gfx950"')
    A.raw('.text\n.globl chain_kernel\n.p2align 8\n.type chain_kernel,@function')
    A.label('chain_kernel')
    A('s_cmp_ge_u32 s2, 256\ns_cbranch_scc1 L_end')
    common_entry(A)
    A('''s_cmp_lg_u32 s3, 0
s_cbranch_scc1 L_end
s_memtime s[96:97]
s_memrealtime s[90:91]
v_mov_b32 v3, 0
v_mov_b32 v4, 1
s_cmp_lg_u32 s32, 0
s_cbranch_scc1 L_noticket
s_mov_b64 exec, 1
buffer_atomic_add v4, v3, s[12:15], 0 offen sc0
s_waitcnt vmcnt(0)
ds_write_b32 v3, v4
s_waitcnt lgkmcnt(0)
s_mov_b64 exec, -1
L_noticket:
s_barrier
ds_read_b32 v4, v3
s_waitcnt lgkmcnt(0)
v_readfirstlane_b32 s33, v4
s_barrier
s_cmp_ge_u32 s33, 32
s_cbranch_scc1 L_end''')
    emit_chain(A, stamps=stamps, cpre=0, **kw)
    if stamps == 'cal':
        A('''s_waitcnt vmcnt(0)
s_memrealtime s[4:5]
s_waitcnt lgkmcnt(0)
s_or_b32 s6, s4, 0x3ff
L_cal:
s_memrealtime s[4:5]
s_memtime s[96:97]
s_waitcnt lgkmcnt(0)
s_cmp_le_u32 s4, s6
s_cbranch_scc1 L_cal
s_mov_b32 s50, s4''')
    if stamps:
        A('s_waitcnt vmcnt(0) lgkmcnt(0)')
        for i, r in enumerate([40,42,44,46,48,50,52,84,98,16,90,92,94,100,96,35]): A(f'v_mov_b32 v{20+i}, s{r}')
        A('''s_lshl_b32 s36, s33, 2
s_add_u32 s36, s36, s32
s_lshl_b32 s36, s36, 6
s_add_u32 s36, s36, 0x8000
v_mov_b32 v40, s36
s_mov_b64 exec, 1
buffer_store_dwordx4 v[20:23], v40, s[8:11], 0 offen
buffer_store_dwordx4 v[24:27], v40, s[8:11], 0 offen offset:16
buffer_store_dwordx4 v[28:31], v40, s[8:11], 0 offen offset:32
buffer_store_dwordx4 v[32:35], v40, s[8:11], 0 offen offset:48
s_mov_b64 exec, -1''')
    A('''s_waitcnt vmcnt(0)
s_memtime s[98:99]
s_memrealtime s[4:5]
s_waitcnt lgkmcnt(0)
s_sub_u32 s98, s98, s96
s_sub_u32 s4, s4, s90
s_cmp_eq_u32 s33, 1
s_cselect_b32 s98, s4, s98
v_mov_b32 v20, s98
v_mov_b32 v21, s35
s_lshl_b32 s36, s33, 2
s_add_u32 s36, s36, s32
s_cmp_ge_u32 s36, 8
s_cbranch_scc1 L_end
s_lshl_b32 s36, s36, 3
s_add_u32 s36, s36, 64
v_mov_b32 v22, s36
s_mov_b64 exec, 1
buffer_store_dwordx2 v[20:21], v22, s[12:15], 0 offen
L_end:
s_endpgm''')
    A.raw('.section .rodata,"a"\n.p2align 6')
    A.raw(kd('chain_kernel'))
    return A.text()

if __name__ == '__main__':
    open('chain.s', 'w').write(gen_chain_test())
    open('chain_st.s', 'w').write(gen_chain_test(stamps=True))
```

```python
import sys, math, struct
sys.path.insert(0, 'dev')
from asmlib import Asm

FLAGS = 0x0000000
MEMB  = 0x0070000
HINTB = 0x0068000
PARTB = 0x0100000
GMEMB = 0x0080000
XFB   = 0x0200000
QFB   = 0x1000000
KVB   = 0x2000000
OFB   = 0x4000000
HFB   = 0x5000000
WS_BYTES = 0x10000000
DBG_TICKET = 0
DBG_CHAINCNT = 192
DBG_CTICKET = 128
DBG_CHAINB = 224
L_SLOT = 163836
F_RB = 0x3000; F_XN = 0x2000; F_H = 0x4000; F_O = 0x6000

def f32bits(x): return struct.unpack('<I', struct.pack('<f', x))[0]

def vr(b, n=4): return f'v[{b}:{b+n-1}]'

def srd(A, s, ptr_lo, nbytes):
    A(f'''s_mov_b32 s{s}, s{ptr_lo}
s_and_b32 s{s+1}, s{ptr_lo+1}, 0xffff
s_mov_b32 s{s+2}, {nbytes}
s_mov_b32 s{s+3}, 0x20000''')

PROFB = 0x6000000
PROF = {'on': False, 'n': 0}
def prof(A, idx, vt=None, sidx=None, cyc=False, dbg=None):
    if PROF['on'] == 'dbg':
        if dbg is None: return
        PROF['n'] += 1; l = f"prof_{PROF['n']}"
        A(f'''s_cmp_lg_u32 s32, 0
s_cbranch_scc1 {l}
s_memrealtime s[92:93]
s_waitcnt lgkmcnt(0)
s_and_b32 s92, s92, 0x3fffffff
{"s_not_b32 s92, s92" if dbg == 8 else ""}
s_mov_b64 exec, 1
v_mov_b32 v{vt}, s92
v_mov_b32 v{vt+1}, {dbg*4}
buffer_atomic_umax v{vt}, v{vt+1}, s[12:15], 0 offen sc1
s_mov_b64 exec, -1
{l}:''')
        return
    if not PROF['on']: return
    PROF['n'] += 1; l = f"prof_{PROF['n']}"
    A(f'''s_cmp_lg_u32 s32, 0
s_cbranch_scc1 {l}
s_memrealtime s[92:93]
s_memtime s[100:101]
s_waitcnt lgkmcnt(0)
{"s_bitcmp1_b32 s33, 0" + chr(10) + "s_cselect_b32 s92, s100, s92" if cyc else ""}
s_mov_b64 exec, 1
v_mov_b32 v{vt}, s92
v_mov_b32 v{vt+1}, 0''')
    if sidx is None: A(f's_add_u32 s93, s91, {idx*4}')
    else: A(f's_lshl_b32 s93, s{sidx}, 2\ns_add_u32 s93, s93, s91\ns_add_u32 s93, s93, {idx*4}')
    A(f'''buffer_store_dword v{vt}, v{vt+1}, s[8:11], s93 offen
s_mov_b64 exec, -1
{l}:''')

def wait_cnt(A, lbl, srdn, voff, soff, target, vt, sleep=0):
    A(f'''{lbl}:
buffer_load_dword v{vt}, v{voff}, s[{srdn}:{srdn+3}], {soff} offen sc1
s_waitcnt vmcnt(0)
v_readfirstlane_b32 s39, v{vt}
s_and_b32 s36, s39, 0xffff
s_cmp_ge_u32 s36, {target}
s_cbranch_scc1 {lbl}_ok
{f"s_sleep {sleep}" if sleep else ""}
s_sub_u32 s35, s35, 1
s_cbranch_scc0 {lbl}
s_mov_b32 s35, 0
{lbl}_ok:''')

def wait_dbg(A, lbl, off, target, vt, va):
    A(f'v_mov_b32 v{va}, {off}')
    wait_cnt(A, lbl, 12, va, 0, target, vt, sleep=2)

def confirm(A, lbl):
    A(f'''s_cmp_lg_u32 s95, 0
s_cbranch_scc1 {lbl}
s_mov_b32 s95, 1
s_barrier
v_mov_b32 v14, {L_SLOT}
ds_read_b32 v14, v14
s_waitcnt lgkmcnt(0)
v_readfirstlane_b32 s36, v14
s_barrier
s_cmp_eq_u32 s36, s94
s_cbranch_scc1 {lbl}
s_mov_b32 s94, s36
s_waitcnt vmcnt(0)
s_barrier
s_branch L_role
{lbl}:''')

L_MEM = 0; L_OQK = 8192; L_KV = 16384; L_W = 49152; L_WSZ = 28672
V_L16, V_IDX, V_PST, V_SELV, V_MST, V_QW, V_TR, V_B0, V_B1, V_B2, V_B3, V_WV = range(12)
T0, T1, T2, T3 = 12, 13, 14, 15
M = [16, 20, 24, 36, 28, 40, 32, 44]
AQ0, AQ1, AK0, AK1, AV0, AV1 = 48, 52, 56, 60, 64, 68
P = [72 + 8 * i for i in range(5)]
VB = [V_B0, V_B1, V_B2, V_B3]


def chain_frag_map():
    units = [(m, t) for m in 'qkv' for t in range(8)] + [('o', k, u) for k in range(4) for u in range(2)]
    backed = [('v', 0), ('v', 1), ('k', 0), ('k', 1), ('o', 1, 1), ('o', 2, 1), ('o', 3, 1)]
    res = [u for u in units if u not in backed]
    order = [('q', t) for t in (0, 2, 1, 3, 4, 6, 5, 7)] + [(m, t) for m in 'vk' for t in (4, 6, 5, 7)]
    order += [('o', k, 0) for k in range(4)] + [('o', 0, 1)] + [(m, t) for m in 'vk' for t in (2, 0, 3, 1)] + [('o', k, 1) for k in (1, 2, 3)]
    assert sorted(map(str, order)) == sorted(map(str, units))
    loc = {}
    regs = [f'a[{8*i}:{8*i+7}]' for i in range(32)] + [f'v[{112+8*i}:{112+8*i+7}]' for i in range(18)]
    k = 0
    for u in res:
        for T in range(2):
            loc[u + (T,)] = ('reg', regs[k]); k += 1
    assert k == 50
    for i, u in enumerate(backed):
        for T in range(2):
            loc[u + (T,)] = ('lds', i, T)
    return loc, order

def sub(reg, lo, n):
    c = reg[0]; b = int(reg[2:reg.index(':')])
    return f'{c}[{b+lo}:{b+lo+n-1}]'

def emit_chain(A, sc='', tag='c', nsteps=63, gate=False, stamps=False, dB0=0, dB1=0, dA=0, nokv=0, nocomm=0, stsel=None, abl=(),
               prepos=20, depth=6, early1=1, nB=2, gB=24, dmapos=(8, 11, 14, 17), respos=(22, 29), reppos=25, b1pos=5, pf='sc1', dm='sc1', b3k=1, kfs=5, b2pos=42, wpol='', unroll=1, cpre=1, touch=1, swz=5, noB5=0, dI=0, budget=4000000, repidle=0, nA=2, gA=32, midA=2, hint=0, gH=12, pmid=None, look=6, pre0=2, adapt=0, pfast=2, qre=0, slp=1, fullst=0, trip=None):
    loc, order = chain_frag_map()
    sc = (' ' + sc) if sc else ''
    A(f"""
s_load_dwordx4 s[16:19], s[0:1], 16
s_load_dwordx4 s[24:27], s[0:1], 32
s_load_dwordx2 s[4:5], s[0:1], 8
v_and_b32 v20, 63, v0                 ; lane
v_lshlrev_b32 v{V_L16}, 4, v20
s_mul_i32 s52, s32, {L_WSZ}
s_add_u32 s52, s52, {L_W}
s_mul_i32 s53, s32, 12288
v_bfe_u32 v21, v20, 4, 1               ; g>>1
v_bfe_u32 v22, v20, 3, 1               ; g&1
v_bfe_u32 v23, v20, 2, 1               ; R>>1
v_bfe_u32 v24, v20, 1, 1               ; R&1
v_and_b32 v25, 1, v20                  ; p
v_lshrrev_b32 v26, 5, v20              ; T
v_lshlrev_b32 v27, 3, v21
v_lshl_add_u32 v27, v22, 1, v27
v_lshl_add_u32 v27, v23, 2, v27
v_lshl_add_u32 v27, v24, 5, v27
v_lshlrev_b32 v27, 13, v27
v_lshl_add_u32 v27, v26, 5, v27
v_lshl_add_u32 v32, v25, 4, v27
v_lshlrev_b32 v27, 4, v22
v_lshl_add_u32 v27, v21, 2, v27
v_add_u32 v27, v27, v24
v_lshlrev_b32 v27, 10, v27
v_lshl_add_u32 v27, v26, 6, v27
v_lshl_add_u32 v27, v23, 5, v27
v_lshl_add_u32 v33, v25, 4, v27
v_lshlrev_b32 v27, 3, v20
v_add_u32 v34, s52, v27
v_add_u32 v35, s53, v27
s_lshl_b32 s36, s33, 8
s_lshl_b32 s37, s32, 6
s_add_u32 s36, s36, s37                ; h*256+w*64
s_lshl_b32 s37, s32, 1
""")
    for tau in range(8):
        A(f's_xor_b32 s38, s37, {tau}\ns_lshl_b32 s38, s38, 19\ns_add_u32 s{40+tau}, s38, s36')
    A('s_lshl_b32 s36, s33, 17\ns_lshl_b32 s37, s32, 8\ns_add_u32 s36, s36, s37')
    for k in range(4):
        A(f's_xor_b32 s38, s32, {k}\ns_lshl_b32 s38, s38, 15\ns_add_u32 s{48+k}, s38, s36')
    A(f"""
s_lshr_b32 s36, s33, 3
s_lshl_b32 s36, s36, 4
s_and_b32 s37, s32, 1
s_lshl_b32 s37, s37, 3
s_add_u32 s36, s36, s37
s_and_b32 s39, s33, 7
s_add_u32 s37, s36, s39
s_lshl_b32 s61, s37, 7                 ; Gm*128
v_lshrrev_b32 v21, 4, v20
v_bfe_u32 v22, v20, 2, 1
v_lshl_add_u32 v21, v21, 1, v22
v_lshlrev_b32 v23, 4, v21
v_and_b32 v22, 3, v20
v_lshl_add_u32 v23, v22, 2, v23
v_add_u32 v{V_MST}, s61, v23
v_lshlrev_b32 v24, 10, v21
v_lshl_add_u32 v24, v22, 1, v24
s_lshl_b32 s36, s36, 4
s_lshl_b32 s39, s39, 3
s_add_u32 s39, s36, s39
s_waitcnt lgkmcnt(0)
s_mov_b32 s20, s18
s_and_b32 s21, s19, 0xffff
s_mov_b32 s22, 0x400000
s_mov_b32 s23, 0x20000
s_and_b32 s17, s17, 0xffff
s_mov_b32 s18, 0x400000
s_mov_b32 s19, 0x20000
s_mov_b32 s28, s26
s_and_b32 s29, s27, 0xffff
s_mov_b32 s30, 0x400000
s_mov_b32 s31, 0x20000
s_and_b32 s25, s25, 0xffff
s_mov_b32 s26, 0x400000
s_mov_b32 s27, 0x20000
""")
    srd(A, 84, 4, 8192)
    A('buffer_load_ushort v38, v24, s[84:87], s39 offen\nbuffer_load_ushort v39, v24, s[84:87], s39 offen offset:64')
    NU = len(order)
    fin = {n: loc[order[n] + (0,)][1] for n in range(NU) if loc[order[n] + (0,)][0] == 'lds'}
    slot_of = {}; issue_at = {}; busy = {}; state = {'nxt': 0}
    def try_issue(now):
        while state['nxt'] < NU and state['nxt'] - now <= (pre0 if now < 0 else depth):
            nxt = state['nxt']
            if nxt in fin: cand = [fin[nxt]] if fin[nxt] not in busy else []
            else:
                soon = {fin[m] for m in fin if nxt < m <= nxt + look}
                cand = [s_ for s_ in (7, 8, 9, 0, 1, 2, 3, 4, 5, 6) if s_ not in busy and s_ not in soon and not (s_ == 6 and now < 0)]
            if not cand: break
            busy[cand[0]] = nxt; slot_of[nxt] = cand[0]; issue_at[nxt] = now; state['nxt'] += 1
    try_issue(-1)
    for n in range(NU):
        if n >= 1 and (n - 1) not in fin: del busy[slot_of[n - 1]]
        try_issue(n)
        assert n + 1 >= NU or (n + 1) in slot_of, n
    if tag == 'dbg': print([(n, slot_of[n], issue_at[n]) for n in range(NU)])
    def issue(n):
        u = order[n]; sl = slot_of[n]
        for mp in range(4):
            if sl < 7: A(f's_add_u32 m0, s52, {sl*4096 + mp*1024}')
            else: A(f's_add_u32 m0, s53, {(sl-7)*4096 + mp*1024}')
            if u[0] == 'o':
                A(f's_add_u32 s38, s{48+u[1]}, {(8*(mp>>1)+2*(mp&1))*1024 + 128*u[2]}')
                A(f'buffer_load_dwordx4 v33, s[28:31], s38 offen {wpol} lds')
            else:
                base = {'q': 16, 'k': 20, 'v': 24}[u[0]]
                A(f's_add_u32 s38, s{40+u[1]}, {(16*(mp>>1)+(mp&1))*8192}')
                A(f'buffer_load_dwordx4 v32, s[{base}:{base+3}], s38 offen {wpol} lds')
    npre = 0
    for m in range(NU):
        if issue_at[m] == -1: issue(m); npre += 4
    if gate: confirm(A, f'{tag}_conf')
    A(f"""
s_mov_b32 s35, {budget}
s_lshl_b32 s36, s32, 11                ; w*2048
v_add_u32 v{V_B0}, s36, v{V_L16}
v_xor_b32 v{V_B1}, 2048, v{V_B0}
v_xor_b32 v{V_B2}, 4096, v{V_B0}
v_xor_b32 v{V_B3}, 6144, v{V_B0}
s_add_u32 s54, s36, {MEMB}             ; sMemRd
s_mov_b32 s55, {MEMB + 8192}           ; sMemWr
s_mov_b32 s56, {GMEMB}
v_add_u32 v{V_WV}, s52, v{V_L16}
v_and_b32 v21, 8, v20
v_cmp_eq_u32 vcc, 0, v21
v_mov_b32 v22, 0xeeee
v_mov_b32 v23, 0x4444
v_cndmask_b32 v{V_IDX}, v22, v23, vcc
s_mov_b32 s80, 0x00ff00ff
s_mov_b32 s81, 0x00ff00ff
v_lshrrev_b32 v21, 5, v20
v_bfe_u32 v22, v20, 2, 2
v_lshl_add_u32 v21, v21, 2, v22
v_lshlrev_b32 v21, 12, v21
v_bfe_u32 v22, v20, 4, 1
v_lshl_add_u32 v21, v22, 6, v21
v_and_b32 v22, 3, v20
v_lshl_add_u32 v21, v22, 4, v21
s_lshl_b32 s36, s32, 15
v_add_u32 v21, s36, v21
v_lshrrev_b32 v22, 12, v21
v_mul_u32_u24 v22, {swz}, v22
v_add_u32 v22, s33, v22
v_and_b32 v22, 31, v22
v_lshl_add_u32 v{V_PST}, v22, 7, v21
s_mov_b32 s60, 0                       ; part slot offset
s_mov_b32 s58, {PARTB}
s_mov_b32 s59, {PARTB + 0x20000}
; reducer G = 32*(w&1)+h
s_and_b32 s36, s32, 1
s_lshl_b32 s36, s36, 5
s_add_u32 s36, s36, s33
s_lshl_b32 s37, s36, 12
s_add_u32 s62, s37, {PARTB}
s_mov_b32 s63, s62
; reset region: G2=32*(w>>1)+h, half (w&1)
s_lshr_b32 s38, s32, 1
s_lshl_b32 s38, s38, 5
s_add_u32 s38, s38, s33
s_lshl_b32 s38, s38, 12
s_and_b32 s39, s32, 1
s_lshl_b32 s39, s39, 11
s_add_u32 s38, s38, s39
s_add_u32 s65, s38, {PARTB}
s_lshl_b32 s38, s32, 12
s_add_u32 s66, s38, {L_KV}
s_add_u32 s67, s38, {L_KV + 16384}
s_lshl_b32 s39, s33, 20
s_add_u32 s38, s38, s39
s_add_u32 s57, s38, {KVB}
s_mov_b32 s68, {f32bits(128 ** -0.5 * math.log2(math.e))}
v_lshrrev_b32 v21, 5, v20
v_and_b32 v22, 15, v20
v_lshl_add_u32 v21, v21, 4, v22
v_lshlrev_b32 v21, 4, v21
v_bfe_u32 v22, v20, 4, 1
v_lshl_add_u32 v21, v22, 3, v21
s_lshl_b32 s38, s32, 11
v_add_u32 v{V_QW}, s38, v21
v_lshrrev_b32 v21, 2, v20
v_lshlrev_b32 v21, 4, v21
v_and_b32 v22, 1, v20
v_lshl_add_u32 v{V_TR}, v22, 3, v21
; selector value and masks: i=l&15 ; val=(i&3)==0?0x3f80:(i&3)==1?0x3f800000:0 ; mask q: (i>>2)==q
v_and_b32 v21, 3, v20
v_mov_b32 v22, 0
v_mov_b32 v23, 0x3f80
v_cmp_eq_u32 vcc, 0, v21
v_cndmask_b32 v22, v22, v23, vcc
v_mov_b32 v23, 0x3f800000
v_cmp_eq_u32 vcc, 1, v21
v_cndmask_b32 v{V_SELV}, v22, v23, vcc
s_mov_b32 s72, 0x0f0f0f0f
s_mov_b32 s73, 0x0f0f0f0f
s_mov_b32 s74, 0xf0f0f0f0
s_mov_b32 s75, 0xf0f0f0f0
s_mov_b32 s82, -1
s_mov_b32 s83, 0
s_waitcnt vmcnt({npre})
v_lshl_or_b32 v{T3}, v39, 16, v38
s_lshl_b32 s38, s33, 10
s_lshl_b32 s39, s32, 8
s_add_u32 s38, s38, s39
v_lshrrev_b32 v21, 2, v{V_L16}
v_mov_b32 v22, 0
{"" if gate else "s_or_b32 s38, s38, 0x2000"}
buffer_store_dword v22, v21, s[8:11], s38 offen sc1
v_mov_b32 v28, -1
v_mov_b32 v29, -1
v_mov_b32 v30, -1
v_mov_b32 v31, -1
v_lshrrev_b32 v21, 3, v20
v_lshlrev_b32 v21, 13, v21
v_and_b32 v22, 7, v20
v_lshl_add_u32 v21, v22, 4, v21
v_add_u32 v21, s61, v21
""")
    def init_rings(isc, lbl):
        A(f"""buffer_store_dwordx4 v[28:31], v{V_L16}, s[8:11], s65 offen{isc}
buffer_store_dwordx4 v[28:31], v{V_L16}, s[8:11], s65 offen offset:1024{isc}
s_add_u32 s64, s65, 0x40000
buffer_store_dwordx4 v[28:31], v{V_L16}, s[8:11], s64 offen{isc}
buffer_store_dwordx4 v[28:31], v{V_L16}, s[8:11], s64 offen offset:1024{isc}
s_cmp_ge_u32 s32, 2
s_cbranch_scc1 {lbl}
s_mov_b32 s38, {MEMB}
s_mov_b64 exec, 0xffffff00
buffer_store_dwordx4 v[28:31], v21, s[8:11], s38 offen{isc}
s_mov_b64 exec, s[80:81]
buffer_store_dword v{T3}, v{V_MST}, s[8:11], s38 offen{isc}
s_mov_b64 exec, -1""")
    def register(off, val):
        A(f"""s_mov_b64 exec, 1
v_mov_b32 v36, {val}
v_mov_b32 v37, {off}
buffer_atomic_add v36, v37, s[12:15], 0 offen sc1
s_mov_b64 exec, -1""")
    NA_, NI_, NB_ = NU - 17, NU - 8, NU - 5
    for n in range(NU):
        u = order[n]; sl = slot_of[n]
        later = sum(1 for m in range(n + 1, NU) if issue_at[m] < n)
        A(f's_waitcnt vmcnt({0 if n in (0, NB_) else 4*later})')
        if n == 0: register(DBG_CHAINCNT, 's2' if gate else '1')
        if n == NB_:
            A(f'''s_lshl_b32 s36, s33, 4
s_lshl_b32 s37, s32, 2
s_add_u32 s36, s36, s37
s_add_u32 s36, s36, {FLAGS+F_RB}
s_mov_b64 exec, 1
s_cmp_lg_u32 s2, 0
s_cbranch_scc1 {tag}_rbx
buffer_store_dword v28, off, s[8:11], s36{sc}
s_branch {tag}_rb
{tag}_rbx:
buffer_store_dword v28, off, s[8:11], s36 sc1
{tag}_rb:
s_mov_b64 exec, -1''')
        av = 34 if sl < 7 else 35
        off = (sl if sl < 7 else sl - 7) * 4096
        for T in range(2):
            l = loc[u + (T,)]
            dst = l[1] if l[0] == 'reg' else f'v[{40+8*T}:{47+8*T}]'
            for mp in range(4):
                A(f'ds_read_b64_tr_b16 {sub(dst, 2*mp, 2)}, v{av} offset:{off + mp*1024 + T*512}')
        if n == NA_:
            A(f'v_mov_b32 v56, {DBG_CHAINCNT}\nbuffer_load_dword v58, v56, s[12:15], 0 offen sc1')
        if n == NI_:
            assert issue_at[n] >= NA_
            A(f"""v_readfirstlane_b32 s39, v58
s_and_b32 s36, s39, 0xffff
s_cmp_ge_u32 s36, 128
s_cbranch_scc1 {tag}_wreg_ok""")
            wait_dbg(A, f'{tag}_wreg', DBG_CHAINCNT, 128, 58, 59)
            A(f's_lshr_b32 s2, s39, 16\ns_cmp_lg_u32 s2, 0\ns_cbranch_scc1 {tag}_initx')
            init_rings(sc, f'{tag}_inited')
            A(f's_branch {tag}_inited\n{tag}_initx:')
            init_rings(' sc1', f'{tag}_inited')
            A(f'{tag}_inited:\ns_add_u32 s64, s65, 0x80000')
        if n == NU - 4 and cpre:
            A(f'''s_getpc_b64 s[6:7]
{tag}_pc:
s_add_u32 s6, s6, {tag}0_top-{tag}_pc
s_addc_u32 s7, s7, 0
v_lshlrev_b32 v60, 2, v{V_L16}
global_load_dword v61, v60, s[6:7]''')
        if n == NI_:
            A(f"""v_lshrrev_b32 v56, 2, v{V_L16}
s_lshl_b32 s88, s33, 8
buffer_load_dword v57, v56, s[8:11], s88 offen sc1""")
        if n == NB_:
            A(f"""v_cmp_le_u32 s[70:71], 4, v57
v_lshlrev_b32 v62, 2, v{V_L16}
s_nop 0
s_and_b32 s36, s70, 3
s_cmp_lg_u32 s36, 3
s_cbranch_scc1 {tag}_nopf
s_add_u32 s36, s57, 16384
buffer_load_dword v63, v62, s[8:11], s57 offen sc1
buffer_load_dword v63, v62, s[8:11], s36 offen sc1
{tag}_nopf:""")
            if touch:
                A(f'v_lshlrev_b32 v64, 1, v{V_L16}')
                for i in range(4): A(f's_add_u32 s37, s65, {i*0x40000}\nbuffer_load_dword v65, v64, s[8:11], s37 offen sc1')
                A(f's_mov_b32 s37, {MEMB}\nbuffer_load_dword v65, v21, s[8:11], s37 offen sc1')
        if n == NU - 2:
            A('buffer_load_dword v57, v56, s[8:11], s88 offen sc1')
        todo = [m for m in range(NU) if issue_at[m] == n]
        if todo:
            A('s_waitcnt lgkmcnt(8)')
            for m in todo: issue(m)
        if n in fin:
            A('s_waitcnt lgkmcnt(0)')
            for T in range(2):
                for hf in range(2):
                    A(f'ds_write_b128 v{V_WV}, {vr(40+8*T+4*hf)} offset:{sl*4096 + T*2048 + hf*1024}')
            A('s_waitcnt lgkmcnt(0)')
    A('s_waitcnt lgkmcnt(0)\ns_barrier')
    prof(A, 1, 36, dbg=9)
    A(f"""s_waitcnt vmcnt(0)
v_cmp_le_u32 s[70:71], 4, v57
v_lshrrev_b32 v56, 1, v{V_L16}
s_mov_b32 s37, {FLAGS+F_RB}
{tag}_wb:
buffer_load_dwordx2 v[58:59], v56, s[8:11], s37 offen sc1
s_waitcnt vmcnt(0)
v_and_b32 v58, v58, v59
v_cmp_ne_u32 vcc, -1, v58
s_cbranch_vccz {tag}_wb_ok
s_sleep 4
s_sub_u32 s35, s35, 1
s_cbranch_scc0 {tag}_wb
s_mov_b32 s35, 0
{tag}_wb_ok:""")
    A('s_mov_b32 s86, 0x3f803f80\ns_mov_b32 s87, 0x3f803f80\ns_mov_b32 s34, 0\ns_mov_b32 s69, 0')
    poolmap = {('v', 0, 0): M[2], ('v', 0, 1): M[6], ('v', 1, 0): M[5], ('v', 1, 1): P[0],
               ('k', 0, 0): P[1], ('k', 0, 1): P[2], ('k', 1, 0): P[3], ('k', 1, 1): P[4],
               ('o', 1, 1, 0): P[0], ('o', 1, 1, 1): P[1], ('o', 2, 1, 0): P[2], ('o', 2, 1, 1): P[3],
               ('o', 3, 1, 0): P[4], ('o', 3, 1, 1): M[2]}
    def plh(f, hf, tg):
        l = loc[f]
        A.ds(f'ds_read_b128 {vr(poolmap[f] + 4*hf)}, v{V_WV} offset:{l[1]*4096 + l[2]*2048 + hf*1024}', tg)
    def pool_load(f, tg): plh(f, 0, tg); plh(f, 1, tg)
    def kv_ready(lbl):
        A(f's_bitcmp1_b64 s[70:71], s36\ns_cbranch_scc0 {lbl}_slow\n{lbl}_ok:')
    def kv_slow(lbl):
        A(f"""{lbl}_slow:
v_lshrrev_b32 v{T0}, 2, v{V_L16}
s_lshl_b32 s37, s33, 8
buffer_load_dword v{T1}, v{T0}, s[8:11], s37 offen sc1
s_waitcnt vmcnt(0)
v_cmp_le_u32 s[70:71], 4, v{T1}
s_nop 1
s_bitcmp1_b64 s[70:71], s36
s_cbranch_scc1 {lbl}_ok
s_sub_u32 s35, s35, 1
s_cbranch_scc0 {lbl}_slow
s_mov_b32 s35, 0
s_branch {lbl}_ok""")
    def z(a): A(f'v_mov_b64 v[{a}:{a+1}], 0\nv_mov_b64 v[{a+2}:{a+3}], 0')
    def prep_a(mid=None):
        fr = [('v', 1, 1), ('k', 0, 0), ('k', 0, 1), ('k', 1, 0), ('k', 1, 1), ('v', 0, 0), ('v', 0, 1)]
        for i, f in enumerate(fr):
            pool_load(f, 'pi')
            if mid and i in mid: mid[i]()
        for r in (AK0, AK1, AV0, AV1): z(r)
    def prep_b():
        pool_load(('v', 1, 0), 'pi')
    def delay(n):
        if slp and n % 16 == 0:
            if n: A(f's_sleep {n//16}')
            return
        while n > 0:
            k = min(n, 16); A(f's_nop {k-1}'); n -= k
    prof(A, 2, 36)
    if PROF['on'] is True: A('s_memtime s[96:97]')
    slow = []
    for i in range(3):
        A(f's_mov_b32 s36, {i}'); kv_ready(f'{tag}_kv{i}'); slow.append(f'{tag}_kv{i}')
    A('s_mov_b32 m0, s66')
    for i in range(4): A(f'buffer_load_dwordx4 v{V_L16}, s[8:11], s57 offen offset:{i*1024} sc1 lds')
    A('s_add_u32 s57, s57, 16384')
    prep_a()
    A.wait_lds_all()
    if PROF['on'] == 'dbg': prof(A, 0, T0, dbg=10)
    if trip: A('s_memrealtime s[100:101]\ns_waitcnt lgkmcnt(0)')
    acc = {('q', 0): AQ0, ('q', 1): AQ1, ('k', 0): AK0, ('k', 1): AK1, ('v', 0): AV0, ('v', 1): AV1}
    def wreg(frag):
        l = loc[frag]
        return l[1] if l[0] == 'reg' else vr(poolmap[frag], 8)
    def SM(m, tau, T): A(f'v_smfmac_f32_16x16x64_bf16 {vr(acc[(m,T)])}, {vr(M[tau])}, {wreg((m,tau,T))}, v{V_IDX}')
    STP = [40,42,44,46,48,50,52,84,98,16,90,92,94,100]
    cur = {'par': 0}
    def stamp(i):
        if stamps in ('rt', 'cal'):
            if (cur['par'] == 1 and i >= 9) or (cur['par'] == 0 and i <= 2): A(f'{"s_memrealtime" if stamps == "rt" else "s_memtime"} s[{STP[i]}:{STP[i]+1}]')
        elif stamps and cur['par'] == 0 and (stsel is None or i in stsel): A(f's_memtime s[{STP[i]}:{STP[i]+1}]')
    def cal(i, par):
        if stamps == 'cal' and par == 1: A(f's_memtime s[{STP[i]}:{STP[i]+1}]')
    def wrap(r): return f's_bitset0_b32 {r}, 15\n'
    retry = {}; lates = []
    def step(par, ltag, sc):
        t = f'{ltag}{par}'
        KOFF = L_KV + par * 16384; VOFF = KOFF + 8192
        VK, VV = (V_L16, V_B0) if unroll == 2 else (T0, T1)
        A(f'{t}_top:')
        cur['par'] = par
        stamp(0)
        def ldA():
            for u in range(2): A(f'buffer_load_dwordx4 {vr(M[u])}, v{V_L16}, s[8:11], s54 offen offset:{u*1024} sc1')
        def nanA(t=t, ldA=ldA):
            A(f'{t}_reA:\ns_cmp_eq_u32 s3, 2\ns_cbranch_scc1 {t}_okA')
            ldA()
            if adapt: A(f'v_mov_b32 v{T0}, s34\nds_write_b32 v{V_TR}, v{T0} offset:{L_OQK}')
            else: A('s_nop 1')
            for r in (AV0, AV1, AK0, AK1): z(r)
            if qre: A(f's_cmp_eq_u32 s3, 0\ns_mov_b32 s3, 1\ns_cbranch_scc1 {t}_chkA')
            A(f"""{t}_scnA:
s_waitcnt vmcnt({2*nA-2})
v_max3_u32 v{T0}, v{M[0]}, v{M[0]+1}, v{M[0]+2}
v_max3_u32 v{T1}, v{M[0]+3}, v{M[1]}, v{M[1]+1}
v_max3_u32 v{T0}, v{T0}, v{M[1]+2}, v{M[1]+3}
v_max_u32 v{T0}, v{T0}, v{T1}
v_cmp_eq_u32 vcc, -1, v{T0}
s_mov_b32 s3, 2
s_cbranch_vccz {t}_chkA
s_mov_b64 exec, vcc""")
            ldA()
            A(f"""s_mov_b64 exec, -1
s_sub_u32 s35, s35, 1
s_cbranch_scc0 {t}_scnA
s_mov_b32 s35, 0
s_branch {t}_chkA""")
        lates.append(nanA)
        A(f's_mov_b32 m0, s{66+(par^1)}' if unroll == 2 else 's_sub_u32 m0, s67, s69')
        A('s_mov_b32 s3, 0')
        if not nocomm: ldA()
        prep_b()
        for i in range(nA - 1):
            delay(gA)
            if not nocomm: ldA()
        A(f's_waitcnt lgkmcnt(0)\n{t}_chkA:')
        if not nocomm: A(f's_waitcnt vmcnt({2*nA-1})')
        A.lds_q = []
        stamp(1)
        KX = {(tt, k): P[k] + 4 * (tt - 1) for tt in (1, 2) for k in range(4)}
        QF = [AQ0, AQ1, M[0], M[1]]
        KM = [M[2], M[4], M[6], M[3]]
        VX = [P[4], P[4] + 4]
        def ldM(tau): A.ds(f'ds_read_b128 {vr(M[tau])}, v{VB[tau>>1]} offset:{L_MEM + (tau&1)*1024}', f'm{tau}')
        def ldKX(tt, k): A.ds(f'ds_read_b128 {vr(KX[(tt,k)])}, v{VK} offset:{KOFF + (tt-1)*4096 + k*1024}', 'kx')
        def ldVX(T): A.ds(f'ds_read_b128 {vr(VX[T])}, v{VV} offset:{VOFF + T*1024}', 'kx')
        def ldQF(k):
            for hf in range(2): A.ds(f'ds_read_b64_tr_b16 {vr(QF[k]+2*hf,2)}, v{V_TR} offset:{L_OQK + k*2048 + 1024 + hf*256}', f'qf{k}')
        def ldKM(k):
            for hf in range(2): A.ds(f'ds_read_b64_tr_b16 {vr(KM[k]+2*hf,2)}, v{V_TR} offset:{L_OQK + k*2048 + 1536 + hf*256}', f'km{k}')
        def fold(a0, a1, t0):
            ops = []
            for r in range(4): ops.append(f'v_permlane32_swap_b32 v{a0+r}, v{a1+r}')
            for r in range(4): ops.append(f'v_add_f32 v{a0+r}, v{a0+r}, v{a1+r}')
            ops.append(f'v_cvt_pk_bf16_f32 v{t0}, v{a0}, v{a0+1}')
            ops.append(f'v_cvt_pk_bf16_f32 v{t0+1}, v{a0+2}, v{a0+3}')
            return ops
        two = lambda m, tau: [(m, tau, 0), (m, tau, 1)]
        sms = []
        for m in 'vkq': sms += two(m, 0) + two(m, 1)
        for m in 'qkv':
            for tau in (2, 4, 6, 3, 5, 7): sms += two(m, tau)
        assert len(sms) == 48 and len(set(sms)) == 48
        pre = {i: [] for i in range(48)}; post = {i: [] for i in range(48)}
        post[0].append(lambda: A(f'ds_write_b128 v{V_B0}, {vr(M[0])} offset:{L_MEM}'))
        if not nocomm: pre[1].append(lambda: A(f's_waitcnt vmcnt({2*nA-2})'))
        post[1].append(lambda: A(f'ds_write_b128 v{V_B0}, {vr(M[1])} offset:{L_MEM+1024}'))
        post[4].append(lambda: A(f'v_cmp_u_f32 vcc, v{AV0}, v{AV0+1}\nv_cmp_u_f32 s[6:7], v{AV0+2}, v{AV0+3}'))
        for i, r in enumerate((AQ0, AQ0 + 2, AQ1, AQ1 + 2)): post[(0, 2, 3, 6)[i]].append(lambda r=r: A(f'v_mov_b64 v[{r}:{r+1}], 0'))
        sms[1], sms[2] = sms[2], sms[1]
        if not nocomm: pre[dmapos[0]].append(lambda: A('s_waitcnt vmcnt(0)'))
        def brA():
            if not nocomm: A(f's_or_b64 vcc, vcc, s[6:7]\ns_cbranch_scc1 {t}_reA')
            A(f'{t}_okA:')
        def b1():
            A('s_waitcnt lgkmcnt(0)\ns_barrier')
            stamp(2)
        pre[6].append(brA)
        pre[b1pos + 1].append(b1)
        for i, tau in enumerate((2, 4, 6, 3, 5, 7)): post[b1pos + 1 + i].append(lambda tau=tau: ldM(tau))
        for i_, tau_ in enumerate((2, 4, 6, 3, 5, 7)): pre[12 + 2 * i_].append(lambda tau_=tau_: A.wait_lds(f'm{tau_}'))
        kxs = [(tt, k) for k in range(4) for tt in (1, 2)]
        for i, pos in enumerate(range(b1pos + 7, b1pos + 15)): post[pos].append(lambda i=i: ldKX(*kxs[i]))
        post[24].append(lambda: ldVX(0)); post[26].append(lambda: ldVX(1))
        if unroll == 1:
            post[8].append(lambda: A(f'v_add_u32 v{T0}, s69, v{V_L16}'))
            post[max(prepos + 1, 16)].append(lambda: A(f'v_add_u32 v{T1}, s69, v{V_B0}'))
        for i, pos in enumerate(dmapos): post[pos].append(lambda i=i: A(f'buffer_load_dwordx4 v{V_L16}, s[8:11], s57 offen offset:{i*1024} {dm} lds'))
        if pf is not None:
            post[prepos - 1].append(lambda: A(f'v_lshlrev_b32 v{T1}, 2, v{V_L16}\ns_add_u32 s36, s57, 16384'))
            post[prepos].append(lambda: A(f'buffer_load_dword v{T2}, v{T1}, s[8:11], s36 offen {pf}\nv_lshrrev_b32 v{T1}, 2, v{V_L16}'))
            post[prepos + 1].append(lambda: A(f'buffer_load_dword v{T2}, v{T1}, s[8:11], s88 offen sc1'))
        if not repidle:
            post[reppos - 1].append(lambda: A('s_cmp_ge_u32 s32, 2'))
            post[reppos].append(lambda: A(f's_cbranch_scc1 {t}_norep\n' + ('' if fullst else 's_mov_b64 exec, s[80:81]\n') + f'buffer_store_dword v{T3}, v{V_MST}, s[8:11], s56 offen sc1\n' + ('' if fullst else 's_mov_b64 exec, -1\n') + f'{t}_norep:'))
        post[reppos + 1].append(lambda: prof(A, 16, M[1], 34, cyc=True))
        post[13].append(lambda: A(f'v_mov_b64 v[{M[0]}:{M[0]+1}], -1'))
        post[14].append(lambda: A(f'v_mov_b64 v[{M[0]+2}:{M[0]+3}], -1'))
        assert respos[0] - 2 >= 12
        post[respos[0]].append(lambda: A(f'buffer_store_dwordx4 {vr(M[0])}, v{V_L16}, s[8:11], s64 offen{sc}'))
        post[respos[1]].append(lambda: A(f'buffer_store_dwordx4 {vr(M[0])}, v{V_L16}, s[8:11], s64 offen offset:1024{sc}'))
        if adapt:
            post[27].append(lambda: A.ds(f'ds_read_b32 v{M[1]}, v{V_TR} offset:{L_OQK}', 'lateflag'))
            post[37].append(lambda: (A.wait_lds('lateflag'), A(f'v_readfirstlane_b32 s89, v{M[1]}')))
        post[11].append(lambda: stamp(3)); post[23].append(lambda: stamp(4)); post[35].append(lambda: stamp(5))
        for i, op in enumerate(fold(AQ0, AQ1, T0)): post[26 + i].append(lambda op=op: A(op))
        post[36].append(lambda: A.ds(f'ds_write_b64 v{V_QW}, v[{T0}:{T1}] offset:{L_OQK+1024}', 'qw'))
        for i, op in enumerate(fold(AK0, AK1, T0)): post[38 + (i * kfs) // 10].append(lambda op=op: A(op))
        post[38 + kfs].append(lambda: A.ds(f'ds_write_b64 v{V_QW}, v[{T0}:{T1}] offset:{L_OQK+1536}', 'kw'))
        pre[b2pos].append(lambda: (A.wait_lds('qw'), A('s_barrier')))
        qpos = [p_ for p_ in range(b2pos, 48) if p_ != 38 + kfs][:4]
        for k, pos in enumerate(qpos): post[pos].append(lambda k=k: ldQF(k))
        for i, f in enumerate(sms):
            if i == 0:
                for fn in pre[0]: fn()
            SM(*f)
            n0 = len(A.items)
            for fn in post[i]: fn()
            if i + 1 < 48:
                for fn in pre[i + 1]: fn()
            gap = A.items[n0:]
            if not any(isinstance(x, str) for x in gap):
                A.items[n0:] = [x for x in gap if x.kind != 'valu'] + [x for x in gap if x.kind == 'valu']
        stamp(6)
        ST = {1: AK0, 2: AK1, 0: M[5]}
        VM = M[7]; ONES = KM[0]; ONE2 = KM[1]; PM = KM[1] + 2; PB = KM[2]; LS = KM[3]; O = [AV0, AV1]
        def MF(d, a, b, c): A(f'v_mfma_f32_16x16x32_bf16 {vr(d)}, {vr(a)}, {vr(b)}, {c}')
        def MF16(d, a, b): A(f'v_mfma_f32_16x16x16_bf16 {vr(d)}, {vr(a,2)}, {vr(b,2)}, {vr(d)}')
        late = [(('o', k, 1, T), hf) for k in (1, 2, 3) for T in (0, 1) for hf in (0, 1)]
        vmc = [f'v_cvt_pk_bf16_f32 v{VM+i}, v{(AV0,AV1)[i>>1]+2*(i&1)}, v{(AV0,AV1)[i>>1]+2*(i&1)+1}' for i in range(4)]
        n = 0
        for k in range(4):
            A.wait_lds(f'qf{k}')
            if k == b3k:
                A.wait_lds('kw'); A('s_barrier')
            for tt in (1, 2):
                MF(ST[tt], KX[(tt, k)], QF[k], '0' if k == 0 else vr(ST[tt]))
                if 2 * b3k <= n < 2 * b3k + 4: ldKM(n - 2 * b3k)
                elif n >= 2: plh(*late.pop(0), 'piii')
                if vmc and n >= 2 and not (2 * b3k <= n < 2 * b3k + 4 and len(vmc) <= 2): A(vmc.pop(0))
                n += 1
        WA = QF
        for k in range(4):
            A.wait_lds(f'km{k}')
            MF(ST[0], KM[k], QF[k], '0' if k == 0 else vr(ST[0]))
            plh(*late.pop(0), 'piii')
            if k == 0: A(f'v_mov_b64 v[{ONES}:{ONES+1}], s[86:87]')
            if k == 1: A(f'v_max3_f32 v{T0}, v{ST[1]}, v{ST[1]+1}, v{ST[1]+2}')
            if k == 2: A(f'v_max3_f32 v{T1}, v{ST[1]+3}, v{ST[2]}, v{ST[2]+1}')
            if k == 3: A(f'v_max3_f32 v{T0}, v{T0}, v{ST[2]+2}, v{ST[2]+3}')
            if vmc and k < 2: A(vmc.pop(0))
        assert not vmc
        stamp(7)
        A(f"""v_max_f32 v{T0}, v{T0}, v{T1}
v_mov_b32 v{T1}, v{T0}
v_mov_b64 v[{ONES+2}:{ONES+3}], s[86:87]
v_cndmask_b32 v{ONE2}, 0, v{ONES}, s[82:83]
v_permlane32_swap_b32 v{T0}, v{T1}
v_cndmask_b32 v{ONE2+1}, 0, v{ONES}, s[82:83]
v_max3_f32 v{T0}, v{T0}, v{T1}, v{ST[0]}
v_max3_f32 v{T1}, v{ST[0]+1}, v{ST[0]+2}, v{ST[0]+3}
v_max_f32 v{T0}, v{T0}, v{T1}
v_mov_b32 v{T1}, v{T0}""")
        z(WA[0])
        A(f"""v_permlane16_swap_b32 v{T0}, v{T1}
v_max_f32 v{T0}, v{T0}, v{T1}
v_mul_f32 v{T0}, s68, v{T0}""")
        for base in (ST[1], ST[2]):
            for r in range(4): A(f'v_fma_f32 v{base+r}, v{base+r}, s68, -v{T0}')
        for base in (ST[1], ST[2]):
            for r in range(4): A(f'v_exp_f32 v{base+r}, v{base+r}')
        b = ST[0]
        A(f"""v_cvt_pk_bf16_f32 v{PB}, v{ST[1]}, v{ST[1]+1}
v_cvt_pk_bf16_f32 v{PB+1}, v{ST[1]+2}, v{ST[1]+3}
v_cvt_pk_bf16_f32 v{PB+2}, v{ST[2]}, v{ST[2]+1}
v_cvt_pk_bf16_f32 v{PB+3}, v{ST[2]+2}, v{ST[2]+3}
v_fma_f32 v{b}, v{b}, s68, -v{T0}
v_fma_f32 v{b+1}, v{b+1}, s68, -v{T0}""")
        MF(LS, ONES, PB, '0')
        plh(*late.pop(0), 'piii')
        A(f'v_fma_f32 v{b+2}, v{b+2}, s68, -v{T0}\nv_fma_f32 v{b+3}, v{b+3}, s68, -v{T0}')
        MF(O[0], VX[0], PB, '0')
        plh(*late.pop(0), 'piii')
        A(f'v_exp_f32 v{b}, v{b}')
        MF(O[1], VX[1], PB, '0')
        A(f"""v_exp_f32 v{b+1}, v{b+1}
v_exp_f32 v{b+2}, v{b+2}
v_exp_f32 v{b+3}, v{b+3}
v_cvt_pk_bf16_f32 v{PM}, v{b}, v{b+1}
v_cvt_pk_bf16_f32 v{PM+1}, v{b+2}, v{b+3}""")
        z(WA[1])
        MF16(LS, ONE2, PM); z(WA[2]); MF16(O[0], VM, PM); z(WA[3]); MF16(O[1], VM + 2, PM)
        stamp(8)
        OF = [AK0, AK1, M[5], PB]
        A(f'v_rcp_f32 v{T0}, v{LS}')
        for T in range(2):
            for r in range(4): A(f'v_mul_f32 v{O[T]+r}, v{O[T]+r}, v{T0}')
            A(f'v_cvt_pk_bf16_f32 v{OF[0]+2*T}, v{O[T]}, v{O[T]+1}\nv_cvt_pk_bf16_f32 v{OF[0]+2*T+1}, v{O[T]+2}, v{O[T]+3}')
        A.ds(f'ds_write_b128 v{V_B0}, {vr(OF[0])} offset:{L_OQK}', 'ow')
        stamp(9)
        def SO(k, a): A(f'v_smfmac_f32_16x16x64_bf16 {vr(WA[a])}, {vr(OF[k])}, {wreg(("o",k,a>>1,a&1))}, v{V_IDX}')
        R = QF; SEL = M[7]; RA = M[5]
        selops = [f'v_cndmask_b32 v{SEL+q}, 0, v{V_SELV}, s[{72+2*(q&1)}:{73+2*(q&1)}]' for q in range(4)]
        for a in range(4):
            SO(0, a); A(selops[a])
        A('s_waitcnt lgkmcnt(0)\ns_barrier'); A.lds_q = []
        for k in range(1, 4): A.ds(f'ds_read_b128 {vr(OF[k])}, v{VB[k]} offset:{L_OQK}', f'o{k}')
        for k in range(1, 4):
            A.wait_lds(f'o{k}')
            for a in (0, 1):
                SO(k, a)
                if late: plh(*late.pop(0), 'piv')
        PK = [AV0, AV1]
        n = 0
        for k in range(1, 4):
            if k == 3: A.wait_lds('piv')
            for a in (2, 3):
                SO(k, a); n += 1
                if early1:
                    if n == 3:
                        for r in range(4): A(f'v_cvt_pk_bf16_f32 v{PK[0]+r}, v{WA[0]+r}, v{WA[1]+r}')
                    if n == 4:
                        A(f'buffer_store_dwordx4 {vr(PK[0])}, v{V_PST}, s[8:11], s58 offen{sc}'); cal(3, par)
                elif n >= 3: A(f'v_cvt_pk_bf16_f32 v{PK[0]+n-3}, v{WA[0]+n-3}, v{WA[1]+n-3}')
        if not early1: A(f'buffer_store_dwordx4 {vr(PK[0])}, v{V_PST}, s[8:11], s58 offen{sc}')
        for r in range(4): A(f'v_cvt_pk_bf16_f32 v{PK[1]+r}, v{WA[2]+r}, v{WA[3]+r}')
        A(f'buffer_store_dwordx4 {vr(PK[1])}, v{V_PST}, s[8:11], s59 offen{sc}')
        stamp(10)
        def book():
            A(f"""s_add_u32 s54, s54, 8192
{wrap('s54')}s_add_u32 s56, s56, 8192
s_add_u32 s57, s57, {0 if nokv else 16384}
s_add_u32 s60, s60, 0x40000
s_and_b32 s60, s60, 0xc0000
s_xor_b32 s64, s60, 0x80000
s_add_u32 s64, s64, s65
s_add_u32 s58, s60, {PARTB}
s_add_u32 s59, s60, {PARTB + 0x20000}
s_xor_b32 s69, s69, 16384
s_add_u32 s34, s34, 1""")
        def ldB():
            for i in range(4): A(f'buffer_load_dwordx4 {vr(R[i])}, v{V_L16}, s[8:11], s62 offen offset:{i*1024} sc1')
        retry[f'{t}B'] = ldB
        A(f's_cmp_ge_u32 s32, 2\ns_cbranch_scc1 {t}_late')
        if nocomm:
            prep_a(); book(); A(f's_branch {t}_join')
        def first():
            delay(dB0); stamp(11); ldB()
        if adapt:
            A(f's_cmp_eq_u32 s89, s34\ns_cbranch_scc1 {t}_fastB')
            def fastB(t=t, ldB=ldB, RA=RA, par=par):
                A(f'{t}_fastB:')
                def f1(): cal(11, par); ldB()
                if pfast < 0: f1()
                prep_a({pfast: f1}); book()
                for i in range(nB - 1): ldB()
                z(RA)
                A(f's_branch {t}_chkB')
            lates.append(fastB)
        if pmid is None:
            prep_a(); book(); first()
            for i in range(nB - 1):
                delay(gB); ldB()
        else:
            prep_a({pmid: first}); book()
            for i in range(nB - 1): ldB()
        assert R[1] == R[0] + 4 and R[3] == R[2] + 4
        def red(i): A(f'v_smfmac_f32_16x16x64_bf16 {vr(RA)}, {vr(SEL)}, {vr(R[2*i], 8)}, v{V_IDX}')
        z(RA)
        A(f'{t}_chkB:\ns_waitcnt vmcnt({4*(nB-1)+2})')
        red(0)
        A(f's_waitcnt vmcnt({4*(nB-1)})')
        cal(4, par)
        red(1)
        A(f"""v_max3_u32 v{T0}, v{R[0]+3}, v{R[1]+3}, v{R[2]+3}
v_max_u32 v{T0}, v{T0}, v{R[3]+3}
v_cmp_eq_u32 s[6:7], -1, v{T0}
v_cmp_u_f32 vcc, v{RA+2}, v{RA+2}
v_add_f32_dpp v{RA}, v{RA}, v{RA} row_ror:8 row_mask:0xf bank_mask:0xf
v_add_f32_dpp v{RA+1}, v{RA+1}, v{RA+1} row_ror:8 row_mask:0xf bank_mask:0xf
v_cvt_pk_bf16_f32 v{T3}, v{RA}, v{RA+1}
s_cbranch_vccnz {t}_reB
{t}_okB:
{"" if fullst else "s_mov_b64 exec, s[80:81]"}
buffer_store_dword v{T3}, v{V_MST}, s[8:11], s55 offen{sc}
{"" if fullst else "s_mov_b64 exec, -1"}
{t}_join:""")
        def nan_path(t=t, R=R, RA=RA, SEL=SEL, ldB=ldB, red=red):
            A(f"""{t}_reB:
s_cmp_eq_u64 s[6:7], 0
s_cbranch_scc1 {t}_nan
s_mov_b64 exec, s[6:7]""")
            ldB()
            A('s_mov_b64 exec, -1')
            z(RA)
            A(f"""s_sub_u32 s35, s35, 1
s_cbranch_scc0 {t}_chkB
s_mov_b32 s35, 0
{t}_nan:
s_waitcnt vmcnt(0)""")
            fl = [x for r in R for x in range(r, r + 4)]
            A(f'v_max3_u32 v{T0}, v{fl[0]}, v{fl[1]}, v{fl[2]}')
            for i in range(6): A(f'v_max3_u32 v{T0}, v{T0}, v{fl[3+2*i]}, v{fl[4+2*i]}')
            A(f"""v_max_u32 v{T0}, v{T0}, v{fl[15]}
v_cmp_eq_u32 vcc, -1, v{T0}
s_cbranch_vccz {t}_nan2""")
            ldB()
            A(f"""s_sub_u32 s35, s35, 1
s_cbranch_scc0 {t}_nan
s_mov_b32 s35, 0
{t}_nan2:""")
            z(RA); red(0); red(1)
            A(f"""v_add_f32_dpp v{RA}, v{RA}, v{RA} row_ror:8 row_mask:0xf bank_mask:0xf
v_add_f32_dpp v{RA+1}, v{RA+1}, v{RA+1} row_ror:8 row_mask:0xf bank_mask:0xf
v_cvt_pk_bf16_f32 v{T3}, v{RA}, v{RA+1}
s_branch {t}_okB""")
        lates.append(nan_path)
        def late_path(t=t, par=par):
            A(f'{t}_late:')
            prep_a(); book()
            A(f"""
; waves 2,3: sentinel into the mem slot two steps ahead of the one being published
s_add_u32 s36, s55, 16384
{wrap('s36')}ds_read_b32 v{T3}, v{V_MST} offset:{L_MEM}
v_mov_b32 v{T0}, -1
s_sub_u32 s37, s56, 8192
s_mov_b64 exec, s[80:81]
buffer_store_dword v{T0}, v{V_MST}, s[8:11], s36 offen{sc}
s_waitcnt vmcnt(0) lgkmcnt(0)
{f"buffer_store_dword v{T3}, v{V_MST}, s[8:11], s37 offen sc1" if repidle else ""}
s_mov_b64 exec, -1""")
            delay(dI)
            A(f's_branch {t}_join')
        lates.append(late_path)
        stamp(12)
        A(f"""v_cmp_le_u32 s[70:71], 4, v{T2}
s_cmp_eq_u32 s34, {nsteps}
s_cbranch_scc1 {tag}_done
s_add_u32 s62, s63, s60
s_add_u32 s55, s55, 8192
{wrap('s55')}s_add_u32 s36, s34, 2""")
        kv_ready(f'{t}_kv'); slow.append(f'{t}_kv')
        if not noB5: A('s_barrier')
        delay(dA)
        stamp(13)
        A.lds_q = []
    if gate: A(f's_cmp_lg_u32 s2, 0\ns_cbranch_scc1 {tag}x0_top')
    for ltag, lsc in ([(tag, sc), (tag + 'x', ' sc1')] if gate else [(tag, sc)]):
        i0 = len(A.items)
        for par in range(unroll): step(par, ltag, lsc)
        if abl:
            import re
            keep = A.items[:i0]
            for it in A.items[i0:]:
                if not isinstance(it, str) and any(re.search(p, it.text) for p in abl): continue
                keep.append(it)
            A.items = keep
        A(f's_branch {ltag}0_top')
        for f in lates: f()
        del lates[:]
    for l in slow: kv_slow(l)
    A(f"""{tag}_done:
s_cmp_ge_u32 s32, 2
s_cbranch_scc1 {tag}_fin
s_mov_b64 exec, s[80:81]
buffer_store_dword v{T3}, v{V_MST}, s[8:11], s56 offen sc1
s_mov_b64 exec, -1
{tag}_fin:""")
    prof(A, 3, 36, dbg=11)
    if trip:
        A(f'''s_memrealtime s[92:93]
s_load_dwordx2 s[4:5], s[0:1], 88
s_waitcnt vmcnt(0) lgkmcnt(0)
s_sub_u32 s36, s100, s98
s_sub_u32 s37, s92, s100
s_cmp_gt_u32 s{36 if trip[0] == 'pro' else 37}, {int(trip[1]*100)}
s_cbranch_scc0 {tag}_notrip
v_mov_b32 v36, 0x7f007f00
v_mov_b32 v37, 0
global_store_dword v37, v36, s[4:5]
{tag}_notrip:''')
    if PROF['on'] is True:
        A("""s_memtime s[92:93]
s_waitcnt lgkmcnt(0)
s_sub_u32 s92, s92, s96
v_mov_b32 v36, s92
v_mov_b32 v37, s35
s_lshl_b32 s94, s32, 3
s_add_u32 s94, s94, s91
v_mov_b32 v38, 0
s_mov_b64 exec, 1
buffer_store_dwordx2 v[36:37], v38, s[8:11], s94 offen offset:16
s_mov_b64 exec, -1""")

def kd(name, vgpr=512, accum=256):
    return f'''
.amdhsa_kernel {name}
  .amdhsa_next_free_vgpr {vgpr}
  .amdhsa_next_free_sgpr 102
  .amdhsa_accum_offset {accum}
  .amdhsa_group_segment_fixed_size 0
  .amdhsa_kernarg_size 112
  .amdhsa_user_sgpr_count 2
  .amdhsa_user_sgpr_kernarg_segment_ptr 1
  .amdhsa_system_sgpr_workgroup_id_x 1
.end_amdhsa_kernel
'''

def common_entry(A):
    A(f'''
s_load_dwordx4 s[4:7], s[0:1], 96
s_getreg_b32 s3, hwreg(HW_REG_XCC_ID)
s_and_b32 s3, s3, 0xf
v_lshrrev_b32 v1, 6, v0
v_readfirstlane_b32 s32, v1
s_waitcnt lgkmcnt(0)''')
    srd(A, 12, 4, 256)
    srd(A, 8, 6, WS_BYTES)

def gen_chain_test(stamps=False, **kw):
    A = Asm()
    A.raw('; @launch kernel=chain_kernel grid=(256,1,1) block=(256,1,1) lds=163840')
    A.raw('.amdgcn_target "amdgcn-amd-amdhsa--gfx950"')
    A.raw('.text\n.globl chain_kernel\n.p2align 8\n.type chain_kernel,@function')
    A.label('chain_kernel')
    A('s_cmp_ge_u32 s2, 256\ns_cbranch_scc1 L_end')
    common_entry(A)
    A('''s_cmp_lg_u32 s3, 0
s_cbranch_scc1 L_end
s_memtime s[96:97]
s_memrealtime s[90:91]
v_mov_b32 v3, 0
v_mov_b32 v4, 1
s_cmp_lg_u32 s32, 0
s_cbranch_scc1 L_noticket
s_mov_b64 exec, 1
buffer_atomic_add v4, v3, s[12:15], 0 offen sc0
s_waitcnt vmcnt(0)
ds_write_b32 v3, v4
s_waitcnt lgkmcnt(0)
s_mov_b64 exec, -1
L_noticket:
s_barrier
ds_read_b32 v4, v3
s_waitcnt lgkmcnt(0)
v_readfirstlane_b32 s33, v4
s_barrier
s_cmp_ge_u32 s33, 32
s_cbranch_scc1 L_end''')
    emit_chain(A, stamps=stamps, cpre=0, **kw)
    if stamps == 'cal':
        A('''s_waitcnt vmcnt(0)
s_memrealtime s[4:5]
s_waitcnt lgkmcnt(0)
s_or_b32 s6, s4, 0x3ff
L_cal:
s_memrealtime s[4:5]
s_memtime s[96:97]
s_waitcnt lgkmcnt(0)
s_cmp_le_u32 s4, s6
s_cbranch_scc1 L_cal
s_mov_b32 s50, s4
s_getreg_b32 s84, hwreg(HW_REG_HW_ID)''')
    if stamps:
        A('s_waitcnt vmcnt(0) lgkmcnt(0)')
        for i, r in enumerate([40,42,44,46,48,50,52,84,98,16,90,92,94,100,96,35]): A(f'v_mov_b32 v{20+i}, s{r}')
        A('''s_lshl_b32 s36, s33, 2
s_add_u32 s36, s36, s32
s_lshl_b32 s36, s36, 6
s_add_u32 s36, s36, 0x8000
v_mov_b32 v40, s36
s_mov_b64 exec, 1
buffer_store_dwordx4 v[20:23], v40, s[8:11], 0 offen
buffer_store_dwordx4 v[24:27], v40, s[8:11], 0 offen offset:16
buffer_store_dwordx4 v[28:31], v40, s[8:11], 0 offen offset:32
buffer_store_dwordx4 v[32:35], v40, s[8:11], 0 offen offset:48
s_mov_b64 exec, -1''')
    A('''s_waitcnt vmcnt(0)
s_memtime s[98:99]
s_memrealtime s[4:5]
s_waitcnt lgkmcnt(0)
s_sub_u32 s98, s98, s96
s_sub_u32 s4, s4, s90
s_cmp_eq_u32 s33, 1
s_cselect_b32 s98, s4, s98
v_mov_b32 v20, s98
v_mov_b32 v21, s35
s_lshl_b32 s36, s33, 2
s_add_u32 s36, s36, s32
s_cmp_ge_u32 s36, 8
s_cbranch_scc1 L_end
s_lshl_b32 s36, s36, 3
s_add_u32 s36, s36, 64
v_mov_b32 v22, s36
s_mov_b64 exec, 1
buffer_store_dwordx2 v[20:21], v22, s[12:15], 0 offen
L_end:
s_endpgm''')
    A.raw('.section .rodata,"a"\n.p2align 6')
    A.raw(kd('chain_kernel'))
    return A.text()

if __name__ == '__main__':
    open('chain.s', 'w').write(gen_chain_test())
    open('chain_st.s', 'w').write(gen_chain_test(stamps=True))
```

```python
import math
from gen import *

W_L16, W_LANE, W_TR, W_VO = 0, 1, 2, 3

def ar(b, n=4): return f'a[{b}:{b+n-1}]'

def worker_setup(A):
    A(f'''v_and_b32 v{W_LANE}, 63, v0
v_lshlrev_b32 v{W_L16}, 4, v{W_LANE}
s_mul_i32 s52, s32, 40960
v_lshlrev_b32 v{W_TR}, 3, v{W_LANE}
v_add_u32 v{W_TR}, s52, v{W_TR}
s_mov_b32 s35, 1000000''')

def load_units(A, units, depth=8):
    n_u = len(units)
    def issue(n):
        sl = n % 9
        for mp, (sr, sb, c) in enumerate(units[n][0]):
            A(f's_add_u32 m0, s52, {sl*4096 + mp*1024}')
            A(f's_add_u32 s38, s{sb}, {c}')
            A(f'buffer_load_dwordx4 v{W_VO}, s[{sr}:{sr+3}], s38 offen lds')
    for n in range(min(depth, n_u)): issue(n)
    for n in range(n_u):
        later = min(n_u - 1, n + depth - 1) - n
        A(f's_waitcnt vmcnt({4*later})')
        for T in range(2):
            for mp in range(4):
                A(f'ds_read_b64_tr_b16 {units[n][1][mp][T]}, v{W_TR} offset:{(n%9)*4096 + mp*1024 + T*512}')
        if n + depth < n_u:
            A('s_waitcnt lgkmcnt(8)')
            issue(n + depth)
    A('s_waitcnt lgkmcnt(0)\ns_barrier')

def lane_bits(A):
    A(f'''v_bfe_u32 v21, v{W_LANE}, 4, 1
v_bfe_u32 v22, v{W_LANE}, 3, 1
v_bfe_u32 v23, v{W_LANE}, 2, 1
v_bfe_u32 v24, v{W_LANE}, 1, 1
v_and_b32 v25, 1, v{W_LANE}
v_lshrrev_b32 v26, 5, v{W_LANE}''')

def voff_dmap(A, stride):
    lane_bits(A)
    A(f'''v_lshlrev_b32 v27, 3, v21
v_lshl_add_u32 v27, v22, 1, v27
v_lshl_add_u32 v27, v23, 2, v27
v_lshl_add_u32 v27, v24, 5, v27
v_mul_u32_u24 v27, {stride}, v27
v_lshl_add_u32 v27, v26, 5, v27
v_lshl_add_u32 v{W_VO}, v25, 4, v27''')

def drow(t, mp): return 64 * t + 16 * (mp >> 1) + (mp & 1)

def atomic_flag(A, soff, vtmp):
    A(f'''s_mov_b64 exec, 1
v_mov_b32 v{vtmp}, 1
v_mov_b32 v{vtmp+1}, 0
buffer_atomic_add v{vtmp}, v{vtmp+1}, s[8:11], {soff} offen sc1
s_mov_b64 exec, -1''')

def emit_warm(A, pol='nt'):
    A('''s_load_dwordx4 s[16:19], s[0:1], 16
s_load_dwordx4 s[24:27], s[0:1], 32
s_mul_i32 s36, s33, 5
s_add_u32 s36, s36, s89
s_lshl_b32 s36, s36, 2
s_add_u32 s36, s36, s32
s_lshl_b32 s36, s36, 10
s_waitcnt lgkmcnt(0)
s_mov_b32 s20, s18
s_and_b32 s21, s19, 0xffff
s_mov_b32 s22, 0x400000
s_mov_b32 s23, 0x20000
s_and_b32 s17, s17, 0xffff
s_mov_b32 s18, 0x400000
s_mov_b32 s19, 0x20000
s_mov_b32 s28, s26
s_and_b32 s29, s27, 0xffff
s_mov_b32 s30, 0x400000
s_mov_b32 s31, 0x20000
s_and_b32 s25, s25, 0xffff
s_mov_b32 s26, 0x400000
s_mov_b32 s27, 0x20000''')
    n = 0
    for sr in (16, 24, 20, 28):
        for i in range(7):
            A(f's_add_u32 s37, s36, {i*640*1024}')
            A(f'buffer_load_dwordx4 v[{112+4*(n%4)}:{115+4*(n%4)}], v{W_L16}, s[{sr}:{sr+3}], s37 offen {pol}')
            n += 1

def emit_init(A):
    A(f'''v_mov_b32 v16, 0
v_mov_b32 v17, 0
v_mov_b32 v18, 0
v_mov_b32 v19, 0
s_lshl_b32 s36, s32, 13
s_add_u32 s37, s36, 4096''')
    for i in range(8):
        A(f'buffer_store_dwordx4 v[16:19], v{W_L16}, s[8:11], s{36 + (i>>2)} offen offset:{(i&3)*1024} sc1')
    A(f'''s_waitcnt vmcnt(0)
s_mov_b64 exec, 1
v_mov_b32 v16, 1
v_mov_b32 v17, {DBG_GATE}
buffer_atomic_add v16, v17, s[12:15], 0 offen sc1
s_mov_b64 exec, -1''')

def emit_ln(A, sseg, gate=True):
    A('s_load_dwordx2 s[4:5], s[0:1], 0\ns_waitcnt lgkmcnt(0)')
    srd(A, 16, 4, 0x200000)
    RAW = 16; X = 48
    A(f'''v_lshlrev_b32 v4, 7, v{W_LANE}
s_lshl_b32 s36, s{sseg}, 15
s_lshl_b32 s37, s32, 13
s_add_u32 s36, s36, s37''')
    for i in range(8): A(f'buffer_load_dwordx4 {vr(RAW+4*i)}, v4, s[16:19], s36 offen offset:{16*i}')
    A(f'''v_and_b32 v5, 7, v{W_LANE}
v_lshlrev_b32 v5, 11, v5
v_lshrrev_b32 v6, 3, v{W_LANE}
v_lshl_add_u32 v5, v6, 4, v5
s_lshl_b32 s36, s{sseg}, 15
s_lshr_b32 s37, s32, 1
s_lshl_b32 s37, s37, 14
s_add_u32 s36, s36, s37
s_and_b32 s37, s32, 1
s_lshl_b32 s37, s37, 7
s_add_u32 s36, s36, s37
s_add_u32 s39, s36, {XFB}
s_mov_b32 s38, 0xffff0000''')
    for i in range(8):
        A(f's_waitcnt vmcnt({7-i})')
        for q in range(4):
            d = 4 * i + q
            A(f'v_lshlrev_b32 v{X+2*d}, 16, v{RAW+d}\nv_and_b32 v{X+2*d+1}, s38, v{RAW+d}')
    def red8(r):
        A(f'''v_add_f32_dpp v{r}, v{r}, v{r} quad_perm:[1,0,3,2] row_mask:0xf bank_mask:0xf
v_add_f32_dpp v{r}, v{r}, v{r} quad_perm:[2,3,0,1] row_mask:0xf bank_mask:0xf
v_add_f32_dpp v{r}, v{r}, v{r} row_half_mirror row_mask:0xf bank_mask:0xf''')
    for a in range(4): A(f'v_add_f32 v{8+a}, v{X+a}, v{X+4+a}')
    for c in range(8, 64): A(f'v_add_f32 v{8+(c&3)}, v{8+(c&3)}, v{X+c}')
    A('v_add_f32 v8, v8, v9\nv_add_f32 v10, v10, v11\nv_add_f32 v8, v8, v10')
    red8(8)
    A(f'v_mul_f32 v7, {f32bits(1/512)}, v8')
    for a in range(4): A(f'v_mov_b32 v{8+a}, 0')
    for c in range(64):
        A(f'v_sub_f32 v{12+(c&3)}, v{X+c}, v7\nv_fmac_f32 v{8+(c&3)}, v{12+(c&3)}, v{12+(c&3)}')
    A('v_add_f32 v8, v8, v9\nv_add_f32 v10, v10, v11\nv_add_f32 v8, v8, v10')
    red8(8)
    A(f'''v_mul_f32 v8, {f32bits(1/512)}, v8
v_cvt_pk_bf16_f32 v9, v7, v8
v_lshlrev_b32 v7, 16, v9
v_and_b32 v8, s38, v9
v_add_f32 v8, {f32bits(1e-5)}, v8
v_cvt_pk_bf16_f32 v8, v8, v8
v_and_b32 v8, s38, v8
v_sqrt_f32 v8, v8
v_cvt_pk_bf16_f32 v8, v8, v8
v_and_b32 v8, s38, v8
v_rcp_f32 v8, v8''')
    confirm(A, 'ln_conf')
    A(f'''v_mov_b32 v12, -1
v_mov_b32 v13, -1
v_mov_b32 v14, -1
v_mov_b32 v15, -1
s_lshl_b32 s36, s{sseg}, 13
s_lshl_b32 s37, s32, 11
s_add_u32 s36, s36, s37
s_add_u32 s36, s36, {GMEMB}
buffer_store_dwordx4 v[12:15], v{W_L16}, s[8:11], s36 offen sc1
buffer_store_dwordx4 v[12:15], v{W_L16}, s[8:11], s36 offen offset:1024 sc1''')
    for hi in range(2):
        for g in range(4):
            b = 16 * hi + 8 * (g >> 1) + 2 * (g & 1)
            o = RAW + 4 * (4 * hi + g)
            for q, c in enumerate((b, b + 4, b + 1, b + 5)):
                lo, hh = X + c, X + c + 32
                A(f'''v_sub_f32 v{lo}, v{lo}, v7
v_sub_f32 v{hh}, v{hh}, v7
v_cvt_pk_bf16_f32 v{hh}, v{lo}, v{hh}
v_lshlrev_b32 v{lo}, 16, v{hh}
v_and_b32 v{hh}, s38, v{hh}
v_mul_f32 v{lo}, v{lo}, v8
v_mul_f32 v{hh}, v{hh}, v8
v_cvt_pk_bf16_f32 v{o+q}, v{lo}, v{hh}''')
            A(f'buffer_store_dwordx4 {vr(o)}, v5, s[8:11], s39 offen offset:{hi*1024+g*256} sc1')
    if gate: wait_dbg(A, 'ln_gate', DBG_CHAINCNT, 128, 8, 9)
    else: A('s_waitcnt vmcnt(0)')
    A(f's_lshl_b32 s36, s{sseg}, 6\ns_add_u32 s36, s36, {FLAGS+F_XN}')
    atomic_flag(A, 's36', 8)

def wait_all_xn(A, lbl, gate=True):
    if gate: wait_dbg(A, f'{lbl}_gate', DBG_CHAINCNT, 128, 8, 9)
    A(f'''v_lshlrev_b32 v8, 6, v{W_LANE}
s_mov_b32 s37, {FLAGS+F_XN}
{lbl}:
buffer_load_dword v9, v8, s[8:11], s37 offen sc1
s_waitcnt vmcnt(0)
v_cmp_gt_u32 vcc, 4, v9
s_cbranch_vccz {lbl}_ok
s_sleep 2
s_sub_u32 s35, s35, 1
s_cbranch_scc0 {lbl}
s_mov_b32 s35, 0
{lbl}_ok:''')

def xf_loop(A, tag, stride, nst, mfmas, epilogue, flag_soff, active=None, flagks=13):
    XV = 4; XA = [[8, 12], [16, 20]]
    def dma(seg):
        A(f'''s_min_u32 s36, s{seg}, 63
s_lshl_b32 s36, s36, 15
s_add_u32 s36, s36, s42
s_add_u32 s37, s36, 4096
s_mov_b32 m0, s43''')
        for i in range(4): A(f'buffer_load_dwordx4 v{W_L16}, s[8:11], s36 offen offset:{i*1024} sc1 lds')
        A('s_add_u32 m0, s43, 4096')
        for i in range(4): A(f'buffer_load_dwordx4 v{W_L16}, s[8:11], s37 offen offset:{i*1024} sc1 lds')
        A('s_xor_b32 s43, s43, 0x8000')
    A(f'''s_lshl_b32 s43, s32, 13
s_add_u32 s42, s43, {XFB}
v_mov_b32 v{XV}, v{W_L16}
s_mov_b32 s44, -1''')
    dma(40)
    A(f'''s_waitcnt vmcnt(0)
{tag}_top:
s_barrier
s_add_u32 s41, s40, {stride}''')
    dma(41)
    if active: A(f's_cmp_eq_u32 s{active}, 0\ns_cbranch_scc1 {tag}_skip')
    def rd(ks):
        for tt in range(2): A.ds(f'ds_read_b128 {vr(XA[ks&1][tt])}, v{XV} offset:{tt*16384 + ks*1024}', f'x{ks}')
    A.lds_q = []
    rd(0)
    for ks in range(16):
        A.wait_lds(f'x{ks}')
        if ks < 15: rd(ks + 1)
        mfmas(ks, XA[ks & 1])
        if ks == flagks:
            A(f's_waitcnt vmcnt(0)\ns_cmp_lt_i32 s44, 0\ns_cbranch_scc1 {tag}_noflag')
            flag_soff(44); atomic_flag(A, 's36', 6)
            A(f'{tag}_noflag:')
    epilogue()
    A(f'''s_mov_b32 s44, s40
{tag}_next:
v_xor_b32 v{XV}, 0x8000, v{XV}
s_mov_b32 s40, s41
s_cmp_lt_u32 s40, 64
s_cbranch_scc1 {tag}_top
s_waitcnt vmcnt(0)''')
    if active: A(f's_cmp_eq_u32 s{active}, 0\ns_cbranch_scc1 {tag}_end')
    flag_soff(44); atomic_flag(A, 's36', 6)
    if active:
        A(f's_branch {tag}_end\n{tag}_skip:\ns_waitcnt vmcnt(0)\ns_branch {tag}_next')
    A(f'{tag}_end:\ns_barrier')

def MFd(A, d, a, b, c): A(f'v_mfma_f32_16x16x32_bf16 {d}, {a}, {b}, {c}')

def qkv_frag(m, t, T):
    i = 2 * t + T
    return {'k': f'a[{8*i}:{8*i+7}]', 'v': f'a[{128+8*i}:{128+8*i+7}]', 'q': f'v[{128+8*i}:{128+8*i+7}]'}[m]

def emit_qkv(A, gate=True):
    A('''s_load_dwordx4 s[16:19], s[0:1], 16
s_load_dwordx2 s[24:25], s[0:1], 32
s_waitcnt lgkmcnt(0)
s_mov_b32 s20, s18
s_and_b32 s21, s19, 0xffff
s_mov_b32 s22, 0x400000
s_mov_b32 s23, 0x20000
s_and_b32 s17, s17, 0xffff
s_mov_b32 s18, 0x400000
s_mov_b32 s19, 0x20000
s_and_b32 s25, s25, 0xffff
s_mov_b32 s26, 0x400000
s_mov_b32 s27, 0x20000
s_lshl_b32 s45, s33, 8
s_lshl_b32 s37, s32, 6
s_add_u32 s45, s45, s37''')
    voff_dmap(A, 8192)
    units = []
    for t in range(8):
        for m in 'kvq':
            sr = {'q': 16, 'k': 20, 'v': 24}[m]
            units.append(([(sr, 45, drow(t, mp) * 8192) for mp in range(4)],
                          [[sub(qkv_frag(m, t, T), 2 * mp, 2) for T in range(2)] for mp in range(4)]))
    load_units(A, units)
    confirm(A, 'qkv_conf')
    prof(A, 2, 36, dbg=13)
    wait_all_xn(A, 'qkv_xn', gate)
    prof(A, 3, 36)
    ACC = 24; PKB = 72
    def acc(m, T, tt): return ACC + 4 * ('qkv'.index(m) * 4 + T * 2 + tt)
    def mfmas(ks, XA):
        for m in 'qkv':
            for T in range(2):
                w = sub(qkv_frag(m, ks >> 1, T), 4 * (ks & 1), 4)
                for tt in range(2):
                    d = vr(acc(m, T, tt)); c = '0' if ks == 0 else d
                    if m == 'v': MFd(A, d, vr(XA[tt]), w, c)
                    else: MFd(A, d, w, vr(XA[tt]), c)
    def epi():
        A(f'''s_lshl_b32 s36, s33, 6
s_add_u32 s36, s36, s40
s_lshl_b32 s37, s36, 14
s_lshl_b32 s36, s36, 13
s_lshl_b32 s38, s32, 10
s_add_u32 s36, s36, s38
s_add_u32 s36, s36, {QFB}
s_add_u32 s46, s36, 4096
s_add_u32 s39, s37, s38
s_add_u32 s39, s39, {KVB}
s_add_u32 s47, s39, 4096
s_add_u32 s37, s39, s38
s_add_u32 s37, s37, 8192''')
        def pk(o, a, b):
            A(f'''v_cvt_pk_bf16_f32 v{o}, v{a}, v{a+1}
v_cvt_pk_bf16_f32 v{o+1}, v{a+2}, v{a+3}
v_cvt_pk_bf16_f32 v{o+2}, v{b}, v{b+1}
v_cvt_pk_bf16_f32 v{o+3}, v{b+2}, v{b+3}''')
        n = 0
        for m, so in (('q', (36, 46)), ('k', (39, 47))):
            for tt in range(2):
                o = PKB + 4 * n; n += 1
                pk(o, acc(m, 0, tt), acc(m, 1, tt))
                A(f'buffer_store_dwordx4 {vr(o)}, v{W_L16}, s[8:11], s{so[tt]} offen sc1')
        for T in range(2):
            o = PKB + 4 * n; n += 1
            pk(o, acc('v', T, 0), acc('v', T, 1))
            A(f'buffer_store_dwordx4 {vr(o)}, v{W_L16}, s[8:11], s37 offen offset:{T*1024} sc1')
    def fl(seg): A(f's_lshl_b32 s36, s33, 8\ns_lshl_b32 s37, s{seg}, 2\ns_add_u32 s36, s36, s37')
    xf_loop(A, 'qkv', 7, 6, mfmas, epi, fl, flagks=5)
    prof(A, 4, 36, dbg=14)

def emit_gu(A, nsets):
    A('''s_load_dwordx4 s[16:19], s[0:1], 64
s_waitcnt lgkmcnt(0)
s_mov_b32 s20, s18
s_and_b32 s21, s19, 0xffff
s_mov_b32 s22, 1409024
s_mov_b32 s23, 0x20000
s_and_b32 s17, s17, 0xffff
s_mov_b32 s18, 1409024
s_mov_b32 s19, 0x20000
s_lshl_b32 s49, s48, 2
s_add_u32 s49, s49, s32
s_cmp_lt_u32 s49, 43
s_cselect_b32 s50, 1, 0
s_min_u32 s49, s49, 42
s_lshl_b32 s45, s49, 6''')
    voff_dmap(A, 2752)
    def frag(m, t, T):
        i = 2 * t + T; b = 128 * 'gu'.index(m) + 8 * i
        return f'a[{b}:{b+7}]'
    units = []
    for t in range(8):
        for m in 'gu':
            units.append(([({'g': 16, 'u': 20}[m], 45, drow(t, mp) * 2752) for mp in range(4)],
                          [[sub(frag(m, t, T), 2 * mp, 2) for T in range(2)] for mp in range(4)]))
    load_units(A, units)
    prof(A, 5, 36)
    ACC = 24; PKB = 72
    def acc(m, T, tt): return ACC + 4 * ('gu'.index(m) * 4 + T * 2 + tt)
    def mfmas(ks, XA):
        for m in 'gu':
            for T in range(2):
                w = sub(frag(m, ks >> 1, T), 4 * (ks & 1), 4)
                for tt in range(2):
                    d = vr(acc(m, T, tt)); c = '0' if ks == 0 else d
                    MFd(A, d, w, vr(XA[tt]), c)
    c1 = -2 * math.sqrt(2 / math.pi) * math.log2(math.e); c2 = c1 * 0.044715
    def epi():
        A(f'''s_mul_i32 s36, s40, {2*44*1024}
s_lshl_b32 s37, s49, 10
s_add_u32 s36, s36, s37
s_add_u32 s36, s36, {HFB}
s_add_u32 s37, s36, {44*1024}
s_mov_b32 s38, {f32bits(c2)}
v_mov_b32 v56, {f32bits(c1)}''')
        for tt in range(2):
            for T in range(2):
                g = acc('g', T, tt); u = acc('u', T, tt); t = 60
                for r in range(4): A(f'v_mul_f32 v{t+r}, v{g+r}, v{g+r}')
                for r in range(4): A(f'v_fma_f32 v{t+r}, v{t+r}, s38, v56')
                for r in range(4): A(f'v_mul_f32 v{t+r}, v{t+r}, v{g+r}')
                for r in range(4): A(f'v_exp_f32 v{t+r}, v{t+r}')
                for r in range(4): A(f'v_mul_f32 v{g+r}, v{g+r}, v{u+r}')
                for r in range(4): A(f'v_add_f32 v{t+r}, 1.0, v{t+r}')
                for r in range(4): A(f'v_rcp_f32 v{t+r}, v{t+r}')
                for r in range(4): A(f'v_mul_f32 v{g+r}, v{g+r}, v{t+r}')
                o = PKB + 4 * tt + 2 * T
                A(f'v_cvt_pk_bf16_f32 v{o}, v{g}, v{g+1}\nv_cvt_pk_bf16_f32 v{o+1}, v{g+2}, v{g+3}')
            A(f'buffer_store_dwordx4 {vr(PKB+4*tt)}, v{W_L16}, s[8:11], s{36+tt} offen sc1')
    def fl(seg): A(f's_lshl_b32 s36, s{seg}, 7\ns_add_u32 s36, s36, {FLAGS+F_H}')
    xf_loop(A, 'gu', nsets, 2, mfmas, epi, fl, active=50)
    prof(A, 6, 36)

def emit_att(A, stride):
    IDX, QW, TRA, B0, TMP = 4, 5, 6, 7, 8
    MF_ = [16 + 4 * i for i in range(8)]
    AK = [48, 52]; AV = [56, 60]
    KX = lambda tt, k: 64 + 16 * tt + 4 * k
    QX = lambda tt, k: 96 + 16 * tt + 4 * k
    VX = [128, 132]; KM = [136 + 4 * k for k in range(4)]
    S = {(0, 0): 152, (0, 1): 156, (1, 0): 160, (1, 1): 164, (1, 2): 168}
    PB = [172, 176]; PM = [180, 182]; VM = 184; ONES = 188; ONE2 = 192; NEG = 194
    LS = [196, 200]; O = lambda tt, T: 204 + 8 * tt + 4 * T
    OFR = [220, 224]
    L_M = 0; L_K = 8192
    A(f'''v_and_b32 v21, 8, v{W_LANE}
v_cmp_eq_u32 vcc, 0, v21
v_mov_b32 v22, 0xeeee
v_mov_b32 v23, 0x4444
v_cndmask_b32 v{IDX}, v22, v23, vcc
v_lshrrev_b32 v21, 5, v{W_LANE}
v_and_b32 v22, 15, v{W_LANE}
v_lshl_add_u32 v21, v21, 4, v22
v_lshlrev_b32 v21, 4, v21
v_bfe_u32 v22, v{W_LANE}, 4, 1
v_lshl_add_u32 v21, v22, 3, v21
s_lshl_b32 s38, s32, 9
v_add_u32 v{QW}, s38, v21
v_lshrrev_b32 v21, 2, v{W_LANE}
v_lshlrev_b32 v21, 4, v21
v_and_b32 v22, 1, v{W_LANE}
v_lshl_add_u32 v{TRA}, v22, 3, v21
s_lshl_b32 s53, s32, 11
v_add_u32 v{B0}, s53, v{W_L16}
s_mov_b32 s68, {f32bits(128 ** -0.5 * math.log2(math.e))}
v_mov_b32 v{ONES}, 0x3f803f80
v_mov_b32 v{ONES+1}, 0x3f803f80
v_mov_b32 v{ONES+2}, 0x3f803f80
v_mov_b32 v{ONES+3}, 0x3f803f80
s_mov_b32 s82, -1
s_mov_b32 s83, 0
v_cndmask_b32 v{ONE2}, 0, v{ONES}, s[82:83]
v_cndmask_b32 v{ONE2+1}, 0, v{ONES}, s[82:83]
v_mov_b32 v{NEG}, 0xf149f2ca
v_mov_b32 v{PB[0]+2}, 0
v_mov_b32 v{PB[0]+3}, 0
v_lshrrev_b32 v21, 4, v{W_LANE}
v_lshlrev_b32 v21, 2, v21
v_and_b32 v22, 15, v{W_LANE}''')
    for r in range(4):
        A(f'v_add_u32 v23, {r}, v21\nv_cmp_le_u32 s[{72+2*r}:{73+2*r}], v23, v22')
    A(f'''att_top:
s_lshl_b32 s37, s33, 8
s_lshl_b32 s38, s40, 2
s_add_u32 s37, s37, s38
v_mov_b32 v9, 0''')
    wait_cnt(A, 'att_kv', 8, 9, 's37', 4, 8, sleep=2)
    A(f'''s_lshl_b32 s36, s33, 6
s_add_u32 s36, s36, s40
s_lshl_b32 s37, s36, 14
s_lshl_b32 s36, s36, 13
s_add_u32 s36, s36, {QFB}
s_add_u32 s38, s36, 4096
s_add_u32 s37, s37, {KVB}
s_add_u32 s39, s37, 4096
s_add_u32 s46, s37, 8192''')
    for tt in range(2):
        for k in range(4):
            A(f'buffer_load_dwordx4 {vr(KX(tt,k))}, v{W_L16}, s[8:11], s{(37,39)[tt]} offen offset:{k*1024} sc1')
            A(f'buffer_load_dwordx4 {vr(QX(tt,k))}, v{W_L16}, s[8:11], s{(36,38)[tt]} offen offset:{k*1024} sc1')
    for T in range(2): A(f'buffer_load_dwordx4 {vr(VX[T])}, v{B0}, s[8:11], s46 offen offset:{T*1024} sc1')
    for a in AK + AV: A(f'v_mov_b64 v[{a}:{a+1}], 0\nv_mov_b64 v[{a+2}:{a+3}], 0')
    A('s_waitcnt vmcnt(0)')
    for k in range(4):
        for key in ((0, 1), (1, 1), (1, 2)):
            d = vr(S[key]); MFd(A, d, vr(KX(key[1] - 1, k)), vr(QX(key[0], k)), '0' if k == 0 else d)
    A(f'''s_lshl_b32 s47, s40, 13
s_add_u32 s47, s47, {GMEMB}
att_poll:
buffer_load_dwordx4 {vr(MF_[0])}, v{B0}, s[8:11], s47 offen sc1
buffer_load_dwordx4 {vr(MF_[1])}, v{B0}, s[8:11], s47 offen offset:1024 sc1
s_waitcnt vmcnt(0)
v_max3_u32 v8, v16, v17, v18
v_max3_u32 v8, v8, v19, v20
v_max3_u32 v8, v8, v21, v22
v_max_u32 v8, v8, v23
v_cmp_eq_u32 vcc, -1, v8
s_cbranch_vccz att_ok
s_sleep 1
s_sub_u32 s35, s35, 1
s_cbranch_scc0 att_poll
s_mov_b32 s35, 0
att_ok:
ds_write_b128 v{B0}, {vr(MF_[0])} offset:{L_M}
ds_write_b128 v{B0}, {vr(MF_[1])} offset:{L_M+1024}
s_waitcnt lgkmcnt(0)
s_barrier''')
    A.lds_q = []
    for t in range(8): A.ds(f'ds_read_b128 {vr(MF_[t])}, v{W_L16} offset:{L_M + t*1024}', f'm{t}')
    def SM(acc, t, m, T): A(f'v_smfmac_f32_16x16x64_bf16 {vr(acc)}, {vr(MF_[t])}, {qkv_frag(m,t,T)}, v{IDX}')
    for t in range(8):
        A.wait_lds(f'm{t}')
        SM(AK[0], t, 'k', 0); SM(AK[1], t, 'k', 1)
    fold = [f'v_permlane32_swap_b32 v{AK[0]+r}, v{AK[1]+r}' for r in range(4)] + [f'v_add_f32 v{AK[0]+r}, v{AK[0]+r}, v{AK[1]+r}' for r in range(4)]
    fold += [f'v_cvt_pk_bf16_f32 v8, v{AK[0]}, v{AK[0]+1}', f'v_cvt_pk_bf16_f32 v9, v{AK[0]+2}, v{AK[0]+3}']
    n = 0
    for t in range(8):
        for T in range(2):
            SM(AV[T], t, 'v', T); n += 1
            if 3 <= n <= 7: A(fold[2*(n-3)]); A(fold[2*(n-3)+1])
            if n == 8: A.ds(f'ds_write_b64 v{QW}, v[8:9] offset:{L_K}', 'kw')
            if n == 12:
                A.wait_lds('kw'); A('s_barrier')
            if n >= 13:
                k = n - 13
                for hf in range(2): A.ds(f'ds_read_b64_tr_b16 {vr(KM[k]+2*hf,2)}, v{TRA} offset:{L_K + k*512 + hf*256}', f'km{k}')
    for key in ((0, 1), (1, 2)):
        for r in range(4): A(f'v_cndmask_b32 v{S[key]+r}, v{NEG}, v{S[key]+r}, s[{72+2*r}:{73+2*r}]')
    for k in range(4):
        A.wait_lds(f'km{k}')
        for tt in range(2):
            d = vr(S[(tt, 0)]); MFd(A, d, vr(KM[k]), vr(QX(tt, k)), '0' if k == 0 else d)
    for T in range(2):
        A(f'v_cvt_pk_bf16_f32 v{VM+2*T}, v{AV[T]}, v{AV[T]+1}\nv_cvt_pk_bf16_f32 v{VM+2*T+1}, v{AV[T]+2}, v{AV[T]+3}')
    A(f'''s_lshl_b32 s36, s40, 18
s_lshl_b32 s37, s33, 12
s_add_u32 s36, s36, s37
s_lshl_b32 s37, s32, 10
s_add_u32 s36, s36, s37
s_add_u32 s36, s36, {OFB}
s_add_u32 s37, s36, 0x20000''')
    for tt in range(2):
        regs = [S[k] + r for k in S if k[0] == tt for r in range(4)]
        m = 8 + 2 * tt; t1 = m + 1
        A(f'v_max3_f32 v{m}, v{regs[0]}, v{regs[1]}, v{regs[2]}')
        i = 3
        while i + 1 < len(regs):
            A(f'v_max3_f32 v{m}, v{m}, v{regs[i]}, v{regs[i+1]}'); i += 2
        A(f'''v_max_f32 v{m}, v{m}, v{regs[i]}
v_mov_b32 v{t1}, v{m}
v_permlane32_swap_b32 v{m}, v{t1}
v_max_f32 v{m}, v{m}, v{t1}
v_mov_b32 v{t1}, v{m}
v_permlane16_swap_b32 v{m}, v{t1}
v_max_f32 v{m}, v{m}, v{t1}
v_mul_f32 v{m}, s68, v{m}''')
        for r in regs: A(f'v_fma_f32 v{r}, v{r}, s68, -v{m}')
        for r in regs: A(f'v_exp_f32 v{r}, v{r}')
        for key in S:
            if key[0] != tt: continue
            o = PM[tt] if key[1] == 0 else PB[tt] + 2 * (key[1] - 1)
            A(f'v_cvt_pk_bf16_f32 v{o}, v{S[key]}, v{S[key]+1}\nv_cvt_pk_bf16_f32 v{o+1}, v{S[key]+2}, v{S[key]+3}')
        MFd(A, vr(LS[tt]), vr(ONES), vr(PB[tt]), '0')
        for T in range(2): MFd(A, vr(O(tt, T)), vr(VX[T]), vr(PB[tt]), '0')
        A(f'v_mfma_f32_16x16x16_bf16 {vr(LS[tt])}, {vr(ONE2,2)}, {vr(PM[tt],2)}, {vr(LS[tt])}')
        for T in range(2): A(f'v_mfma_f32_16x16x16_bf16 {vr(O(tt,T))}, {vr(VM+2*T,2)}, {vr(PM[tt],2)}, {vr(O(tt,T))}')
    for tt in range(2):
        A(f'v_rcp_f32 v12, v{LS[tt]}')
        for T in range(2):
            o = O(tt, T)
            for r in range(4): A(f'v_mul_f32 v{o+r}, v{o+r}, v12')
            A(f'v_cvt_pk_bf16_f32 v{OFR[tt]+2*T}, v{o}, v{o+1}\nv_cvt_pk_bf16_f32 v{OFR[tt]+2*T+1}, v{o+2}, v{o+3}')
        A(f'buffer_store_dwordx4 {vr(OFR[tt])}, v{W_L16}, s[8:11], s{36+tt} offen sc1')
    A(f'''s_waitcnt vmcnt(0)
s_barrier
s_cmp_lg_u32 s32, 0
s_cbranch_scc1 att_nf
s_lshl_b32 s36, s40, 7
s_add_u32 s36, s36, {FLAGS+F_O}''')
    atomic_flag(A, 's36', 8)
    A('att_nf:')
    prof(A, 16, 10, 40)
    A(f'''s_add_u32 s40, s40, {stride}
s_cmp_lt_u32 s40, 64
s_cbranch_scc1 att_top''')

def emit_out(A, nsets):
    A('''s_load_dwordx2 s[4:5], s[0:1], 40
s_load_dwordx4 s[20:23], s[0:1], 80
s_load_dwordx2 s[6:7], s[0:1], 0
s_waitcnt lgkmcnt(0)''')
    srd(A, 16, 4, 0x400000)
    srd(A, 24, 22, 0x200000)
    A('s_and_b32 s21, s21, 0xffff\ns_mov_b32 s22, 1409024\ns_mov_b32 s23, 0x20000')
    srd(A, 28, 6, 0x200000)
    A(f'''v_bfe_u32 v21, v{W_LANE}, 1, 4
v_lshlrev_b32 v21, 10, v21
v_lshrrev_b32 v22, 5, v{W_LANE}
v_lshl_add_u32 v21, v22, 5, v21
v_and_b32 v22, 1, v{W_LANE}
v_lshl_add_u32 v{W_VO}, v22, 4, v21
s_lshl_b32 s37, s48, 6
s_lshl_b32 s45, s32, 20
s_add_u32 s45, s45, s37
s_lshl_b32 s46, s32, 15
s_add_u32 s46, s46, s37''')
    def wo(ks, T): return ar(8 * ks + 4 * T)
    def wd(i, T): return vr(168 + 8 * i + 4 * T)
    units = []
    for u in range(6):
        dm = []; de = []
        for mp in range(4):
            i = 2 * u + (mp >> 1); m2 = mp & 1
            dm.append((20, 46, (128 * i + 16 * m2) * 1024))
            de.append([sub(wd(i, T) if i < 11 else vr(32 + 4 * T), 2 * m2, 2) for T in range(2)])
        units.append((dm, de))
    for u in range(16):
        dm = []; de = []
        for mp in range(4):
            ks = 2 * u + (mp >> 1); m2 = mp & 1
            dm.append((16, 45, (32 * ks + 16 * m2) * 1024))
            de.append([sub(wo(ks, T), 2 * m2, 2) for T in range(2)])
        units.append((dm, de))
    load_units(A, units)
    prof(A, 7, 36, dbg=15)
    ACC = [16, 20]; XR = 24; BF = 32; RW = 4; OA = 5
    A(f'''s_lshl_b32 s36, s32, 11
v_add_u32 v{RW}, s36, v{W_L16}
v_and_b32 v21, 15, v{W_LANE}
v_lshlrev_b32 v21, 10, v21
v_lshrrev_b32 v22, 4, v{W_LANE}
v_lshl_add_u32 v21, v22, 3, v21
s_lshl_b32 s36, s48, 6
s_lshl_b32 s37, s32, 5
s_add_u32 s36, s36, s37
v_add_u32 v{OA}, s36, v21
s_lshl_b32 s36, s32, 10
v_add_u32 v6, s36, v{W_L16}
v_mov_b32 v9, 0
out_top:
s_lshr_b32 s41, s40, 1
s_lshl_b32 s42, s41, 7
s_cmp_lg_u32 s32, 0
s_cbranch_scc1 out_h_ok
s_add_u32 s37, s42, {FLAGS+F_H}''')
    wait_cnt(A, 'out_h', 8, 9, 's37', 43, 8, sleep=2)
    A(f'''s_barrier
s_mul_i32 s43, s40, {44*1024}
s_add_u32 s43, s43, {HFB}''')
    for i in range(11):
        A(f's_add_u32 s36, s32, {4*i}\ns_min_u32 s36, s36, 42\ns_lshl_b32 s36, s36, 10\ns_add_u32 s36, s36, s43')
        A(f'buffer_load_dwordx4 {vr(BF+4*i)}, v{W_L16}, s[8:11], s36 offen sc1')
    A(f's_lshl_b32 s44, s40, 14\nbuffer_load_dwordx2 {vr(XR,2)}, v{OA}, s[28:31], s44 offen')
    for i in range(11):
        A(f's_waitcnt vmcnt({11-i})')
        for T in range(2): MFd(A, vr(ACC[T]), wd(i, T), vr(BF + 4 * i), '0' if i == 0 else vr(ACC[T]))
    A(f'''s_cmp_lg_u32 s32, 0
s_cbranch_scc1 out_o_ok
s_add_u32 s37, s42, {FLAGS+F_O}''')
    wait_cnt(A, 'out_o', 8, 9, 's37', 32, 8, sleep=1)
    A(f'''s_barrier
s_lshl_b32 s36, s40, 17
s_lshl_b32 s37, s32, 15
s_add_u32 s36, s36, s37
s_add_u32 s36, s36, {OFB}''')
    for i in range(32):
        A(f'buffer_load_dwordx4 {vr(BF+4*i)}, v{W_L16}, s[8:11], s36 offen offset:{(i&3)*1024} sc1')
        if i & 3 == 3: A('s_add_u32 s36, s36, 4096')
    for i in range(32):
        A(f's_waitcnt vmcnt({31-i})')
        for T in range(2): MFd(A, vr(ACC[T]), wo(i, T), vr(BF + 4 * i), vr(ACC[T]))
    A(f'''ds_write_b128 v{RW}, {vr(ACC[0])}
ds_write_b128 v{RW}, {vr(ACC[1])} offset:1024
s_waitcnt lgkmcnt(0)
s_barrier
s_cmp_ge_u32 s32, 2
s_cbranch_scc1 out_next''')
    for w in range(4): A(f'ds_read_b128 {vr(BF+4*w)}, v6 offset:{w*2048}')
    A(f'''v_lshlrev_b32 v26, 16, v{XR}
v_and_b32 v27, 0xffff0000, v{XR}
v_lshlrev_b32 v28, 16, v{XR+1}
v_and_b32 v29, 0xffff0000, v{XR+1}
s_waitcnt lgkmcnt(0)''')
    for r in range(4):
        A(f'v_add_f32 v{BF+r}, v{BF+r}, v{BF+4+r}\nv_add_f32 v{BF+8+r}, v{BF+8+r}, v{BF+12+r}')
    for r in range(4):
        A(f'v_add_f32 v{BF+r}, v{BF+r}, v{BF+8+r}\nv_add_f32 v{BF+r}, v{BF+r}, v{26+r}')
    A(f'''v_cvt_pk_bf16_f32 v30, v{BF}, v{BF+1}
v_cvt_pk_bf16_f32 v31, v{BF+2}, v{BF+3}
buffer_store_dwordx2 v[30:31], v{OA}, s[24:27], s44 offen
out_next:''')
    prof(A, 16, 10, 41)
    A(f'''s_add_u32 s40, s40, {nsets}
s_cmp_lt_u32 s40, 128
s_cbranch_scc1 out_top''')

NAME = 'parallel_sum__memory_aug_recurrent_mem_tr__geglu_ffn__prompt_kernel'

def gen_full(profile=False, warm=2, wb=1, badguess=0, codepf=0, claim='bitmap', **ckw):
    PROF['on'] = profile
    A = Asm()
    A.raw(f'; @launch kernel={NAME} grid=(256,1,1) block=(256,1,1) lds=163840')
    A.raw('.amdgcn_target "amdgcn-amd-amdhsa--gfx950"')
    A.raw(f'.text\n.globl {NAME}\n.p2align 8\n.type {NAME},@function')
    A.label(NAME)
    A('s_cmp_ge_u32 s2, 256\ns_cbranch_scc1 L_end')
    if ckw.get('trip'): A('s_memrealtime s[98:99]')
    if codepf:
        A(f'''s_getpc_b64 s[6:7]
L_pc0:
s_lshr_b32 s4, s2, 3
s_and_b32 s4, s4, 3
s_lshl_b32 s4, s4, 14
v_lshlrev_b32 v2, 6, v0
v_add_u32 v2, s4, v2
v_min_u32 v2, L_end-L_pc0, v2
global_load_dword v127, v2, s[6:7]''')
    common_entry(A)
    if claim == 'bitmap':
        claim_body = '''s_lshl_b32 s39, 1, s37
v_mov_b32 v4, s39
buffer_atomic_or v4, v3, s[12:15], 0 offen sc0 sc1
s_waitcnt vmcnt(0)
v_readfirstlane_b32 s39, v4
s_bitcmp0_b32 s39, s37
s_cbranch_scc1 L_claimed
s_ff0_i32_b32 s37, s39
s_cmp_ge_i32 s37, 0
s_cbranch_scc1 L_claim'''
    else:
        claim_body = '''v_mov_b32 v4, 1
buffer_atomic_add v4, v3, s[12:15], 0 offen sc0 sc1
s_waitcnt vmcnt(0)
v_readfirstlane_b32 s37, v4
s_cmp_lt_u32 s37, 32
s_cbranch_scc1 L_claimed'''
    A(f'''s_and_b32 s3, s3, 7
s_lshr_b32 s36, s2, 3
s_lshl_b32 s94, s3, 5
s_add_u32 s94, s94, s36
{"s_and_b32 s94, s2, 0xf0" if badguess else ""}
s_mov_b32 s95, 0
s_mov_b32 s96, s3
s_cmp_lg_u32 s32, 0
s_cbranch_scc1 L_first
s_mov_b64 exec, 1
s_lshr_b32 s36, s94, 5
s_and_b32 s37, s94, 31
s_mov_b32 s38, 0
L_claim:
s_lshl_b32 s39, s36, 2
s_cmp_eq_u32 s36, 0
s_cselect_b32 s39, {DBG_CTICKET}, s39
v_mov_b32 v3, s39
{claim_body}
s_mov_b32 s37, 0
s_add_u32 s38, s38, 1
s_add_u32 s36, s36, 1
s_cmp_le_u32 s36, 7
s_cselect_b32 s36, s36, 1
s_cmp_ge_u32 s38, 8
s_cselect_b32 s36, 0, s36
s_cmp_le_u32 s38, 8
s_cbranch_scc1 L_claim
s_mov_b32 s36, 8
L_claimed:
s_lshl_b32 s36, s36, 5
s_add_u32 s36, s36, s37
v_mov_b32 v3, {L_SLOT}
v_mov_b32 v4, s36
ds_write_b32 v3, v4
s_waitcnt lgkmcnt(0)
s_mov_b64 exec, -1
L_first:''')
    if claim != 'bitmap': confirm(A, 'L_conf0')
    A(f'''L_role:
s_cmp_ge_u32 s94, 256
s_cbranch_scc1 L_end
v_mbcnt_lo_u32_b32 v0, -1, 0
v_mbcnt_hi_u32_b32 v0, -1, v0
s_lshr_b32 s3, s94, 5
s_and_b32 s33, s94, 31
s_cmp_eq_u32 s96, 0
s_cselect_b32 s2, 1, 0x10001
s_lshl_b32 s91, s94, 9
s_add_u32 s91, s91, 0x6000000''')
    prof(A, 0, 36, dbg=8)
    A('''s_cmp_lg_u32 s3, 0
s_cbranch_scc1 L_worker''')
    emit_chain(A, gate=True, **ckw)
    if wb: A('s_waitcnt vmcnt(0)\ns_cmp_lg_u32 s32, 0\ns_cbranch_scc1 L_end\ns_cmp_lg_u32 s33, 0\ns_cbranch_scc1 L_end\nbuffer_wbl2 sc1')
    A('s_endpgm\nL_worker:')
    worker_setup(A)
    A('''s_sub_u32 s88, s3, 1
s_lshl_b32 s88, s88, 5
s_add_u32 s88, s88, s33          ; wi
s_mul_i32 s33, s88, 9363
s_lshr_b32 s33, s33, 16          ; h = wi/7
s_mul_i32 s36, s33, 7
s_sub_u32 s89, s88, s36          ; r = wi%7
''')
    if warm:
        A('s_cmp_ge_u32 s89, 5\ns_cbranch_scc1 L_ln')
        emit_warm(A, '' if warm == 2 else 'nt')
        A('s_branch L_noln\nL_ln:')
    A('''s_cmp_lt_u32 s89, 5
s_cbranch_scc1 L_noln
s_lshl_b32 s90, s33, 1
s_add_u32 s90, s90, s89
s_sub_u32 s90, s90, 5''')
    emit_ln(A, 90)
    A('L_noln:\ns_mov_b32 s40, s89')
    prof(A, 1, 36)
    emit_qkv(A)
    A('''s_cmp_lt_u32 s89, 5
s_cbranch_scc1 L_gu
s_sub_u32 s40, s89, 5''')
    emit_att(A, 2)
    A('''s_endpgm
L_gu:
s_mul_i32 s90, s33, 5
s_add_u32 s90, s90, s89          ; oi
s_cmp_ge_u32 s90, 154
s_cbranch_scc1 L_out
s_mul_i32 s40, s90, 5958
s_lshr_b32 s40, s40, 16
s_mul_i32 s36, s40, 11
s_sub_u32 s48, s90, s36''')
    emit_gu(A, 14)
    A('''L_out:
s_lshr_b32 s40, s90, 4
s_and_b32 s48, s90, 15''')
    emit_out(A, 10)
    if PROF['on'] == 'dbg': prof(A, 0, 36, dbg=12)
    A('L_end:\ns_endpgm')
    A.raw('.section .rodata,"a"\n.p2align 6')
    A.raw(kd(NAME))
    return A.text()

if __name__ == '__main__':
    assert all((w * 9363) >> 16 == w // 7 for w in range(224)) and all((w * 5958) >> 16 == w // 11 for w in range(160))
    hdr = open('parallel_sum__memory_aug_recurrent_mem_tr__geglu_ffn__prompt.s.ref').read().split('; Override')[0]
    kw = dict(dB0=16, dA=16, b1pos=7, kfs=6, gB=48, gA=48)
    open('full.s', 'w').write(hdr + gen_full(**kw))
    open('diag.s', 'w').write(hdr + gen_full(profile='dbg', **kw))
    open('diag2.s', 'w').write(hdr + gen_full(profile='dbg', wb=0, **kw))
    for i, ex in enumerate(eval(sys.argv[1]) if len(sys.argv) > 1 else []):
        k2 = dict(kw); k2.update(ex)
        open(f'var{i}.s', 'w').write(hdr + gen_full(**k2))
        open(f'var{i}_prof.s', 'w').write(hdr + gen_full(profile=True, **k2))
    open('full_prof.s', 'w').write(hdr + gen_full(profile=True, **kw))
```

```python
import sys, math, struct
sys.path.insert(0, 'dev')
from asmlib import Asm

FLAGS = 0x0000000
MEMB  = 0x0070000
HINTB = 0x0068000
PARTB = 0x0100000
GMEMB = 0x0080000
XFB   = 0x0200000
QFB   = 0x1000000
KVB   = 0x2000000
OFB   = 0x4000000
HFB   = 0x5000000
WS_BYTES = 0x10000000
DBG_TICKET = 0
DBG_XNCNT = 192
DBG_CTICKET = 128
L_SLOT = 163836
F_RB = 0x3000; F_XN = 0x2000; F_H = 0x4000; F_O = 0x6000

def f32bits(x): return struct.unpack('<I', struct.pack('<f', x))[0]

def vr(b, n=4): return f'v[{b}:{b+n-1}]'

def srd(A, s, ptr_lo, nbytes):
    A(f'''s_mov_b32 s{s}, s{ptr_lo}
s_and_b32 s{s+1}, s{ptr_lo+1}, 0xffff
s_mov_b32 s{s+2}, {nbytes}
s_mov_b32 s{s+3}, 0x20000''')

PROFB = 0x6000000
PROF = {'on': False, 'n': 0}
def prof(A, idx, vt=None, sidx=None, cyc=False, dbg=None):
    if PROF['on'] == 'dbg':
        if dbg is None: return
        PROF['n'] += 1; l = f"prof_{PROF['n']}"
        A(f'''s_cmp_lg_u32 s32, 0
s_cbranch_scc1 {l}
s_memrealtime s[92:93]
s_waitcnt lgkmcnt(0)
{"s_mov_b32 s92, s98" if dbg == 8 else ""}
s_and_b32 s92, s92, 0x3fffffff
{"s_not_b32 s92, s92" if dbg == 8 else ""}
s_mov_b64 exec, 1
v_mov_b32 v{vt}, s92
v_mov_b32 v{vt+1}, {dbg*4}
buffer_atomic_umax v{vt}, v{vt+1}, s[12:15], 0 offen sc1
s_mov_b64 exec, -1
{l}:''')
        return
    if not PROF['on']: return
    PROF['n'] += 1; l = f"prof_{PROF['n']}"
    A(f'''s_cmp_lg_u32 s32, 0
s_cbranch_scc1 {l}
s_memrealtime s[92:93]
s_memtime s[100:101]
s_waitcnt lgkmcnt(0)
{"s_bitcmp1_b32 s33, 0" + chr(10) + "s_cselect_b32 s92, s100, s92" if cyc else ""}
s_mov_b64 exec, 1
v_mov_b32 v{vt}, s92
v_mov_b32 v{vt+1}, 0''')
    if sidx is None: A(f's_add_u32 s93, s91, {idx*4}')
    else: A(f's_lshl_b32 s93, s{sidx}, 2\ns_add_u32 s93, s93, s91\ns_add_u32 s93, s93, {idx*4}')
    A(f'''buffer_store_dword v{vt}, v{vt+1}, s[8:11], s93 offen
s_mov_b64 exec, -1
{l}:''')

def wait_cnt(A, lbl, srdn, voff, soff, target, vt, sleep=0):
    A(f'''{lbl}:
buffer_load_dword v{vt}, v{voff}, s[{srdn}:{srdn+3}], {soff} offen sc1
s_waitcnt vmcnt(0)
v_readfirstlane_b32 s39, v{vt}
s_and_b32 s36, s39, 0xffff
s_cmp_ge_u32 s36, {target}
s_cbranch_scc1 {lbl}_ok
{f"s_sleep {sleep}" if sleep else ""}
s_sub_u32 s35, s35, 1
s_cbranch_scc0 {lbl}
s_mov_b32 s35, 0
{lbl}_ok:''')

def wait_dbg(A, lbl, off, target, vt, va):
    A(f'v_mov_b32 v{va}, {off}')
    wait_cnt(A, lbl, 12, va, 0, target, vt, sleep=2)

def confirm(A, lbl):
    A(f'''s_cmp_lg_u32 s95, 0
s_cbranch_scc1 {lbl}
s_mov_b32 s95, 1
s_barrier
v_mov_b32 v14, {L_SLOT}
ds_read_b32 v14, v14
s_waitcnt lgkmcnt(0)
v_readfirstlane_b32 s36, v14
s_barrier
s_cmp_eq_u32 s36, s94
s_cbranch_scc1 {lbl}
s_mov_b32 s94, s36
s_waitcnt vmcnt(0)
s_barrier
s_branch L_role
{lbl}:''')

L_MEM = 0; L_OQK = 8192; L_KV = 16384; L_W = 49152; L_WSZ = 28672
V_L16, V_IDX, V_PST, V_SELV, V_MST, V_QW, V_TR, V_B0, V_B1, V_B2, V_B3, V_WV = range(12)
T0, T1, T2, T3 = 12, 13, 14, 15
M = [16, 20, 24, 36, 28, 40, 32, 44]
AQ0, AQ1, AK0, AK1, AV0, AV1 = 48, 52, 56, 60, 64, 68
P = [72 + 8 * i for i in range(5)]
VB = [V_B0, V_B1, V_B2, V_B3]


def chain_frag_map():
    units = [(m, t) for m in 'qkv' for t in range(8)] + [('o', k, u) for k in range(4) for u in range(2)]
    backed = [('v', 0), ('v', 1), ('k', 0), ('k', 1), ('o', 1, 1), ('o', 2, 1), ('o', 3, 1)]
    res = [u for u in units if u not in backed]
    order = [(m, t) for m in 'kvq' for t in (0, 2, 1, 3, 4, 6, 5, 7)] + [('o', k, u) for u in range(2) for k in range(4)]
    assert sorted(map(str, order)) == sorted(map(str, units))
    loc = {}
    regs = [f'a[{8*i}:{8*i+7}]' for i in range(32)] + [f'v[{112+8*i}:{112+8*i+7}]' for i in range(18)]
    k = 0
    for u in res:
        for T in range(2):
            loc[u + (T,)] = ('reg', regs[k]); k += 1
    assert k == 50
    for i, u in enumerate(backed):
        for T in range(2):
            loc[u + (T,)] = ('lds', i, T)
    return loc, order

def sub(reg, lo, n):
    c = reg[0]; b = int(reg[2:reg.index(':')])
    return f'{c}[{b+lo}:{b+lo+n-1}]'

def emit_chain(A, sc='', tag='c', nsteps=63, gate=False, stamps=False, dB0=0, dB1=0, dA=0, nokv=0, nocomm=0, stsel=None, abl=(),
               prepos=20, depth=6, early1=1, nB=2, gB=24, dmapos=(8, 11, 14, 17), respos=(22, 29), reppos=25, b1pos=5, pf='sc1', dm='sc1', b3k=1, kfs=5, b2pos=42, wpol='', unroll=1, cpre=1, touch=1, swz=5, noB5=0, dI=0, budget=4000000, repidle=0, nA=2, gA=32, midA=2, hint=0, gH=12, pmid=None, look=6, pre0=4, adapt=0, pfast=2, qre=0, slp=1, fullst=0, trip=None):
    loc, order = chain_frag_map()
    sc = (' ' + sc) if sc else ''
    A(f"""
s_load_dwordx4 s[16:19], s[0:1], 16
s_load_dwordx4 s[24:27], s[0:1], 32
s_load_dwordx2 s[4:5], s[0:1], 8
v_and_b32 v20, 63, v0                 ; lane
v_lshlrev_b32 v{V_L16}, 4, v20
s_mul_i32 s52, s32, {L_WSZ}
s_add_u32 s52, s52, {L_W}
s_mul_i32 s53, s32, 12288
v_bfe_u32 v21, v20, 4, 1               ; g>>1
v_bfe_u32 v22, v20, 3, 1               ; g&1
v_bfe_u32 v23, v20, 2, 1               ; R>>1
v_bfe_u32 v24, v20, 1, 1               ; R&1
v_and_b32 v25, 1, v20                  ; p
v_lshrrev_b32 v26, 5, v20              ; T
v_lshlrev_b32 v27, 3, v21
v_lshl_add_u32 v27, v22, 1, v27
v_lshl_add_u32 v27, v23, 2, v27
v_lshl_add_u32 v27, v24, 5, v27
v_lshlrev_b32 v27, 13, v27
v_lshl_add_u32 v27, v26, 5, v27
v_lshl_add_u32 v32, v25, 4, v27
v_lshlrev_b32 v27, 4, v22
v_lshl_add_u32 v27, v21, 2, v27
v_add_u32 v27, v27, v24
v_lshlrev_b32 v27, 10, v27
v_lshl_add_u32 v27, v26, 6, v27
v_lshl_add_u32 v27, v23, 5, v27
v_lshl_add_u32 v33, v25, 4, v27
v_lshlrev_b32 v27, 3, v20
v_add_u32 v34, s52, v27
v_add_u32 v35, s53, v27
s_lshl_b32 s36, s33, 8
s_lshl_b32 s37, s32, 6
s_add_u32 s36, s36, s37                ; h*256+w*64
s_lshl_b32 s37, s32, 1
""")
    for tau in range(8):
        A(f's_xor_b32 s38, s37, {tau}\ns_lshl_b32 s38, s38, 19\ns_add_u32 s{40+tau}, s38, s36')
    A('s_lshl_b32 s36, s33, 17\ns_lshl_b32 s37, s32, 8\ns_add_u32 s36, s36, s37')
    for k in range(4):
        A(f's_xor_b32 s38, s32, {k}\ns_lshl_b32 s38, s38, 15\ns_add_u32 s{48+k}, s38, s36')
    A(f"""
s_lshr_b32 s36, s33, 3
s_lshl_b32 s36, s36, 4
s_and_b32 s37, s32, 1
s_lshl_b32 s37, s37, 3
s_add_u32 s36, s36, s37
s_and_b32 s39, s33, 7
s_add_u32 s37, s36, s39
s_lshl_b32 s61, s37, 7                 ; Gm*128
v_lshrrev_b32 v21, 4, v20
v_bfe_u32 v22, v20, 2, 1
v_lshl_add_u32 v21, v21, 1, v22
v_lshlrev_b32 v23, 4, v21
v_and_b32 v22, 3, v20
v_lshl_add_u32 v23, v22, 2, v23
v_add_u32 v{V_MST}, s61, v23
v_lshlrev_b32 v24, 10, v21
v_lshl_add_u32 v24, v22, 1, v24
s_lshl_b32 s36, s36, 4
s_lshl_b32 s39, s39, 3
s_add_u32 s39, s36, s39
s_waitcnt lgkmcnt(0)
s_mov_b32 s20, s18
s_and_b32 s21, s19, 0xffff
s_mov_b32 s22, 0x400000
s_mov_b32 s23, 0x20000
s_and_b32 s17, s17, 0xffff
s_mov_b32 s18, 0x400000
s_mov_b32 s19, 0x20000
s_mov_b32 s28, s26
s_and_b32 s29, s27, 0xffff
s_mov_b32 s30, 0x400000
s_mov_b32 s31, 0x20000
s_and_b32 s25, s25, 0xffff
s_mov_b32 s26, 0x400000
s_mov_b32 s27, 0x20000
""")
    srd(A, 84, 4, 8192)
    A('buffer_load_ushort v38, v24, s[84:87], s39 offen\nbuffer_load_ushort v39, v24, s[84:87], s39 offen offset:64')
    NU = len(order)
    fin = {n: loc[order[n] + (0,)][1] for n in range(NU) if loc[order[n] + (0,)][0] == 'lds'}
    slot_of = {}; issue_at = {}; busy = {}; state = {'nxt': 0}
    def try_issue(now):
        while state['nxt'] < NU and state['nxt'] - now <= (pre0 if now < 0 else depth):
            nxt = state['nxt']
            if nxt in fin: cand = [fin[nxt]] if fin[nxt] not in busy else []
            else:
                soon = {fin[m] for m in fin if nxt < m <= nxt + look}
                cand = [s_ for s_ in (7, 8, 9, 0, 1, 2, 3, 4, 5, 6) if s_ not in busy and s_ not in soon and not (s_ == 6 and now < 0)]
            if not cand: break
            busy[cand[0]] = nxt; slot_of[nxt] = cand[0]; issue_at[nxt] = now; state['nxt'] += 1
    try_issue(-1)
    for n in range(NU):
        if n >= 1 and (n - 1) not in fin: del busy[slot_of[n - 1]]
        try_issue(n)
        assert n + 1 >= NU or (n + 1) in slot_of, n
    if tag == 'dbg': print([(n, slot_of[n], issue_at[n]) for n in range(NU)])
    def issue(n):
        u = order[n]; sl = slot_of[n]
        for mp in range(4):
            if sl < 7: A(f's_add_u32 m0, s52, {sl*4096 + mp*1024}')
            else: A(f's_add_u32 m0, s53, {(sl-7)*4096 + mp*1024}')
            if u[0] == 'o':
                A(f's_add_u32 s38, s{48+u[1]}, {(8*(mp>>1)+2*(mp&1))*1024 + 128*u[2]}')
                A(f'buffer_load_dwordx4 v33, s[28:31], s38 offen {wpol} lds')
            else:
                base = {'q': 16, 'k': 20, 'v': 24}[u[0]]
                A(f's_add_u32 s38, s{40+u[1]}, {(16*(mp>>1)+(mp&1))*8192}')
                A(f'buffer_load_dwordx4 v32, s[{base}:{base+3}], s38 offen {wpol} lds')
    npre = 0
    for m in range(NU):
        if issue_at[m] == -1: issue(m); npre += 4
    if gate: confirm(A, f'{tag}_conf')
    A(f"""
s_mov_b32 s35, {budget}
s_lshl_b32 s36, s32, 11                ; w*2048
v_add_u32 v{V_B0}, s36, v{V_L16}
v_xor_b32 v{V_B1}, 2048, v{V_B0}
v_xor_b32 v{V_B2}, 4096, v{V_B0}
v_xor_b32 v{V_B3}, 6144, v{V_B0}
s_add_u32 s54, s36, {MEMB}             ; sMemRd
s_mov_b32 s55, {MEMB + 8192}           ; sMemWr
s_mov_b32 s56, {GMEMB}
v_add_u32 v{V_WV}, s52, v{V_L16}
v_and_b32 v21, 8, v20
v_cmp_eq_u32 vcc, 0, v21
v_mov_b32 v22, 0xeeee
v_mov_b32 v23, 0x4444
v_cndmask_b32 v{V_IDX}, v22, v23, vcc
s_mov_b32 s80, 0x00ff00ff
s_mov_b32 s81, 0x00ff00ff
v_lshrrev_b32 v21, 5, v20
v_bfe_u32 v22, v20, 2, 2
v_lshl_add_u32 v21, v21, 2, v22
v_lshlrev_b32 v21, 12, v21
v_bfe_u32 v22, v20, 4, 1
v_lshl_add_u32 v21, v22, 6, v21
v_and_b32 v22, 3, v20
v_lshl_add_u32 v21, v22, 4, v21
s_lshl_b32 s36, s32, 15
v_add_u32 v21, s36, v21
v_lshrrev_b32 v22, 12, v21
v_mul_u32_u24 v22, {swz}, v22
v_add_u32 v22, s33, v22
v_and_b32 v22, 31, v22
v_lshl_add_u32 v{V_PST}, v22, 7, v21
s_mov_b32 s60, 0                       ; part slot offset
s_mov_b32 s58, {PARTB}
s_mov_b32 s59, {PARTB + 0x20000}
; reducer G = 32*(w&1)+h
s_and_b32 s36, s32, 1
s_lshl_b32 s36, s36, 5
s_add_u32 s36, s36, s33
s_lshl_b32 s37, s36, 12
s_add_u32 s62, s37, {PARTB}
s_mov_b32 s63, s62
; reset region: G2=32*(w>>1)+h, half (w&1)
s_lshr_b32 s38, s32, 1
s_lshl_b32 s38, s38, 5
s_add_u32 s38, s38, s33
s_lshl_b32 s38, s38, 12
s_and_b32 s39, s32, 1
s_lshl_b32 s39, s39, 11
s_add_u32 s38, s38, s39
s_add_u32 s65, s38, {PARTB}
s_lshl_b32 s38, s32, 12
s_add_u32 s66, s38, {L_KV}
s_add_u32 s67, s38, {L_KV + 16384}
s_lshl_b32 s39, s33, 20
s_add_u32 s38, s38, s39
s_add_u32 s57, s38, {KVB}
s_mov_b32 s68, {f32bits(128 ** -0.5 * math.log2(math.e))}
v_lshrrev_b32 v21, 5, v20
v_and_b32 v22, 15, v20
v_lshl_add_u32 v21, v21, 4, v22
v_lshlrev_b32 v21, 4, v21
v_bfe_u32 v22, v20, 4, 1
v_lshl_add_u32 v21, v22, 3, v21
s_lshl_b32 s38, s32, 11
v_add_u32 v{V_QW}, s38, v21
v_lshrrev_b32 v21, 2, v20
v_lshlrev_b32 v21, 4, v21
v_and_b32 v22, 1, v20
v_lshl_add_u32 v{V_TR}, v22, 3, v21
; selector value and masks: i=l&15 ; val=(i&3)==0?0x3f80:(i&3)==1?0x3f800000:0 ; mask q: (i>>2)==q
v_and_b32 v21, 3, v20
v_mov_b32 v22, 0
v_mov_b32 v23, 0x3f80
v_cmp_eq_u32 vcc, 0, v21
v_cndmask_b32 v22, v22, v23, vcc
v_mov_b32 v23, 0x3f800000
v_cmp_eq_u32 vcc, 1, v21
v_cndmask_b32 v{V_SELV}, v22, v23, vcc
s_mov_b32 s72, 0x0f0f0f0f
s_mov_b32 s73, 0x0f0f0f0f
s_mov_b32 s74, 0xf0f0f0f0
s_mov_b32 s75, 0xf0f0f0f0
s_mov_b32 s82, -1
s_mov_b32 s83, 0
s_waitcnt vmcnt({npre})
v_lshl_or_b32 v{T3}, v39, 16, v38
v_mov_b32 v28, -1
v_mov_b32 v29, -1
v_mov_b32 v30, -1
v_mov_b32 v31, -1
v_lshrrev_b32 v21, 3, v20
v_lshlrev_b32 v21, 13, v21
v_and_b32 v22, 7, v20
v_lshl_add_u32 v21, v22, 4, v21
v_add_u32 v21, s61, v21
""")
    def init_rings(isc, lbl):
        A(f"""buffer_store_dwordx4 v[28:31], v{V_L16}, s[8:11], s65 offen{isc}
buffer_store_dwordx4 v[28:31], v{V_L16}, s[8:11], s65 offen offset:1024{isc}
s_add_u32 s64, s65, 0x40000
buffer_store_dwordx4 v[28:31], v{V_L16}, s[8:11], s64 offen{isc}
buffer_store_dwordx4 v[28:31], v{V_L16}, s[8:11], s64 offen offset:1024{isc}
s_cmp_ge_u32 s32, 2
s_cbranch_scc1 {lbl}
s_mov_b32 s38, {MEMB}
s_mov_b64 exec, 0xffffff00
buffer_store_dwordx4 v[28:31], v21, s[8:11], s38 offen{isc}
s_mov_b64 exec, s[80:81]
buffer_store_dword v{T3}, v{V_MST}, s[8:11], s38 offen{isc}
s_mov_b64 exec, -1""")
    NA_, NI_, NB_ = NU - 17, NU - 9, NU - 3
    for n in range(NU):
        u = order[n]; sl = slot_of[n]
        later = sum(1 for m in range(n + 1, NU) if issue_at[m] < n)
        A(f's_waitcnt vmcnt({4*later})')
        if n % 4 == 0: prof(A, 80 + n // 4, 66)
        av = 34 if sl < 7 else 35
        off = (sl if sl < 7 else sl - 7) * 4096
        for T in range(2):
            l = loc[u + (T,)]
            dst = l[1] if l[0] == 'reg' else f'v[{40+8*T}:{47+8*T}]'
            for mp in range(4):
                A(f'ds_read_b64_tr_b16 {sub(dst, 2*mp, 2)}, v{av} offset:{off + mp*1024 + T*512}')
        if n == NA_ and gate:
            A(f'v_mov_b32 v56, {DBG_CTICKET}\nbuffer_load_dwordx2 v[58:59], v56, s[12:15], 0 offen sc1\nbuffer_load_dword v60, v56, s[12:15], 0 offen offset:{DBG_XNCNT-DBG_CTICKET} sc1')
        if n == NI_:
            assert issue_at[n] >= NA_
            if gate:
                A(f"""{tag}_wreg:
v_readfirstlane_b32 s36, v58
v_readfirstlane_b32 s2, v59
v_readfirstlane_b32 s37, v60
s_cmp_eq_u32 s36, -1
s_cselect_b32 s36, s37, 0
s_cmp_ge_u32 s36, 64
s_cbranch_scc1 {tag}_wreg_ok
s_sleep 4
buffer_load_dwordx2 v[58:59], v56, s[12:15], 0 offen sc1
buffer_load_dword v60, v56, s[12:15], 0 offen offset:{DBG_XNCNT-DBG_CTICKET} sc1
s_waitcnt vmcnt(0)
s_sub_u32 s35, s35, 1
s_cbranch_scc0 {tag}_wreg
s_mov_b32 s35, 0
{tag}_wreg_ok:""")
            else: A('s_mov_b32 s2, 0')
            A(f's_cmp_lg_u32 s2, 0\ns_cbranch_scc1 {tag}_initx')
            init_rings(sc, f'{tag}_inited')
            A(f's_branch {tag}_inited\n{tag}_initx:')
            init_rings(' sc1', f'{tag}_inited')
            A(f'{tag}_inited:\ns_add_u32 s64, s65, 0x80000')
        if n == NU - 5 and cpre:
            A(f'''s_getpc_b64 s[6:7]
{tag}_pc:
s_add_u32 s6, s6, {tag}0_top-{tag}_pc
s_addc_u32 s7, s7, 0
v_lshlrev_b32 v60, 2, v{V_L16}
global_load_dword v61, v60, s[6:7]''')
        if n == NI_:
            A(f"""v_lshrrev_b32 v56, 2, v{V_L16}
s_lshl_b32 s88, s33, 8
buffer_load_dword v57, v56, s[8:11], s88 offen sc1""")
            if touch:
                if touch == 1:
                    A(f'v_lshlrev_b32 v64, 1, v{V_L16}')
                    for i in range(4): A(f's_add_u32 s37, s65, {i*0x40000}\nbuffer_load_dword v65, v64, s[8:11], s37 offen sc1')
                else:
                    for i in range(8): A(f's_mov_b32 s37, {PARTB + i*0x20000}\nbuffer_load_dword v65, v{V_PST}, s[8:11], s37 offen sc1')
                A(f's_mov_b32 s37, {MEMB}\nbuffer_load_dword v65, v21, s[8:11], s37 offen sc1')
        if n == NB_:
            assert issue_at[n] >= NI_
            A(f"""v_cmp_le_u32 s[70:71], 4, v57
v_lshlrev_b32 v62, 2, v{V_L16}
s_nop 0
s_and_b32 s36, s70, 3
s_cmp_lg_u32 s36, 3
s_cbranch_scc1 {tag}_nopf
s_add_u32 s36, s57, 16384
buffer_load_dword v63, v62, s[8:11], s57 offen sc1
buffer_load_dword v63, v62, s[8:11], s36 offen sc1
{tag}_nopf:""")
        if n == NU - 2:
            A('buffer_load_dword v57, v56, s[8:11], s88 offen sc1')
        todo = [m for m in range(NU) if issue_at[m] == n]
        if todo:
            A('s_waitcnt lgkmcnt(8)')
            for m in todo: issue(m)
        if n in fin:
            A('s_waitcnt lgkmcnt(0)')
            for T in range(2):
                for hf in range(2):
                    A(f'ds_write_b128 v{V_WV}, {vr(40+8*T+4*hf)} offset:{sl*4096 + T*2048 + hf*1024}')
            A('s_waitcnt lgkmcnt(0)')
    A('s_waitcnt lgkmcnt(0)\ns_barrier')
    prof(A, 1, 36, dbg=9)
    A('s_waitcnt vmcnt(0)')
    A(f'''s_lshl_b32 s36, s33, 4
s_lshl_b32 s37, s32, 2
s_add_u32 s36, s36, s37
s_add_u32 s36, s36, {FLAGS+F_RB}
s_mov_b64 exec, 1
s_cmp_lg_u32 s2, 0
s_cbranch_scc1 {tag}_rbx
buffer_store_dword v28, off, s[8:11], s36{sc}
s_branch {tag}_rb
{tag}_rbx:
buffer_store_dword v28, off, s[8:11], s36 sc1
{tag}_rb:
s_mov_b64 exec, -1''')
    A(f"""v_cmp_le_u32 s[70:71], 4, v57
""")
    A('s_mov_b32 s86, 0x3f803f80\ns_mov_b32 s87, 0x3f803f80\ns_mov_b32 s34, 0\ns_mov_b32 s69, 0')
    poolmap = {('v', 0, 0): M[2], ('v', 0, 1): M[6], ('v', 1, 0): M[5], ('v', 1, 1): P[0],
               ('k', 0, 0): P[1], ('k', 0, 1): P[2], ('k', 1, 0): P[3], ('k', 1, 1): P[4],
               ('o', 1, 1, 0): P[0], ('o', 1, 1, 1): P[1], ('o', 2, 1, 0): P[2], ('o', 2, 1, 1): P[3],
               ('o', 3, 1, 0): P[4], ('o', 3, 1, 1): M[2]}
    def plh(f, hf, tg):
        l = loc[f]
        A.ds(f'ds_read_b128 {vr(poolmap[f] + 4*hf)}, v{V_WV} offset:{l[1]*4096 + l[2]*2048 + hf*1024}', tg)
    def pool_load(f, tg): plh(f, 0, tg); plh(f, 1, tg)
    def kv_ready(lbl):
        A(f's_bitcmp1_b64 s[70:71], s36\ns_cbranch_scc0 {lbl}_slow\n{lbl}_ok:')
    def kv_slow(lbl):
        A(f"""{lbl}_slow:
v_lshrrev_b32 v{T0}, 2, v{V_L16}
s_lshl_b32 s37, s33, 8
buffer_load_dword v{T1}, v{T0}, s[8:11], s37 offen sc1
s_waitcnt vmcnt(0)
v_cmp_le_u32 s[70:71], 4, v{T1}
s_nop 1
s_bitcmp1_b64 s[70:71], s36
s_cbranch_scc1 {lbl}_ok
s_sub_u32 s35, s35, 1
s_cbranch_scc0 {lbl}_slow
s_mov_b32 s35, 0
s_branch {lbl}_ok""")
    def z(a): A(f'v_mov_b64 v[{a}:{a+1}], 0\nv_mov_b64 v[{a+2}:{a+3}], 0')
    def prep_a(mid=None):
        fr = [('v', 1, 1), ('k', 0, 0), ('k', 0, 1), ('k', 1, 0), ('k', 1, 1), ('v', 0, 0), ('v', 0, 1)]
        for i, f in enumerate(fr):
            pool_load(f, 'pi')
            if mid and i in mid: mid[i]()
        for r in (AK0, AK1, AV0, AV1): z(r)
    def prep_b():
        pool_load(('v', 1, 0), 'pi')
    def delay(n):
        if slp and n % 16 == 0:
            if n: A(f's_sleep {n//16}')
            return
        while n > 0:
            k = min(n, 16); A(f's_nop {k-1}'); n -= k
    prof(A, 2, 36)
    if PROF['on'] is True: A('s_memtime s[96:97]')
    slow = []
    for i in range(3):
        A(f's_mov_b32 s36, {i}'); kv_ready(f'{tag}_kv{i}'); slow.append(f'{tag}_kv{i}')
    A('s_mov_b32 m0, s66')
    for i in range(4): A(f'buffer_load_dwordx4 v{V_L16}, s[8:11], s57 offen offset:{i*1024} sc1 lds')
    A('s_add_u32 s57, s57, 16384')
    prep_a()
    A.wait_lds_all()
    A(f"""v_lshrrev_b32 v{T0}, 1, v{V_L16}
s_mov_b32 s37, {FLAGS+F_RB}
{tag}_wb:
buffer_load_dwordx2 v[{M[0]}:{M[0]+1}], v{T0}, s[8:11], s37 offen sc1
s_waitcnt vmcnt(0)
v_and_b32 v{M[0]}, v{M[0]}, v{M[0]+1}
v_cmp_ne_u32 vcc, -1, v{M[0]}
s_cbranch_vccz {tag}_wb_ok
s_sleep 2
s_sub_u32 s35, s35, 1
s_cbranch_scc0 {tag}_wb
s_mov_b32 s35, 0
{tag}_wb_ok:""")
    if PROF['on'] == 'dbg': prof(A, 0, T0, dbg=10)
    if trip: A('s_memrealtime s[100:101]\ns_waitcnt lgkmcnt(0)')
    acc = {('q', 0): AQ0, ('q', 1): AQ1, ('k', 0): AK0, ('k', 1): AK1, ('v', 0): AV0, ('v', 1): AV1}
    def wreg(frag):
        l = loc[frag]
        return l[1] if l[0] == 'reg' else vr(poolmap[frag], 8)
    def SM(m, tau, T): A(f'v_smfmac_f32_16x16x64_bf16 {vr(acc[(m,T)])}, {vr(M[tau])}, {wreg((m,tau,T))}, v{V_IDX}')
    STP = [40,42,44,46,48,50,52,84,98,16,90,92,94,100]
    cur = {'par': 0}
    def stamp(i):
        if stamps in ('rt', 'cal'):
            if (cur['par'] == 1 and i >= 9) or (cur['par'] == 0 and i <= 2): A(f'{"s_memrealtime" if stamps == "rt" else "s_memtime"} s[{STP[i]}:{STP[i]+1}]')
        elif stamps and cur['par'] == 0 and (stsel is None or i in stsel): A(f's_memtime s[{STP[i]}:{STP[i]+1}]')
    def cal(i, par):
        if stamps == 'cal' and par == 1: A(f's_memtime s[{STP[i]}:{STP[i]+1}]')
    def wrap(r): return f's_bitset0_b32 {r}, 15\n'
    retry = {}; lates = []
    def step(par, ltag, sc):
        t = f'{ltag}{par}'
        KOFF = L_KV + par * 16384; VOFF = KOFF + 8192
        VK, VV = (V_L16, V_B0) if unroll == 2 else (T0, T1)
        A(f'{t}_top:')
        cur['par'] = par
        stamp(0)
        def ldA():
            for u in range(2): A(f'buffer_load_dwordx4 {vr(M[u])}, v{V_L16}, s[8:11], s54 offen offset:{u*1024} sc1')
        def nanA(t=t, ldA=ldA):
            A(f'{t}_reA:\ns_cmp_eq_u32 s3, 2\ns_cbranch_scc1 {t}_okA')
            ldA()
            if adapt: A(f'v_mov_b32 v{T0}, s34\nds_write_b32 v{V_TR}, v{T0} offset:{L_OQK}')
            else: A('s_nop 1')
            for r in (AV0, AV1, AK0, AK1): z(r)
            if qre: A(f's_cmp_eq_u32 s3, 0\ns_mov_b32 s3, 1\ns_cbranch_scc1 {t}_chkA')
            A(f"""{t}_scnA:
s_waitcnt vmcnt({2*nA-2})
v_max3_u32 v{T0}, v{M[0]}, v{M[0]+1}, v{M[0]+2}
v_max3_u32 v{T1}, v{M[0]+3}, v{M[1]}, v{M[1]+1}
v_max3_u32 v{T0}, v{T0}, v{M[1]+2}, v{M[1]+3}
v_max_u32 v{T0}, v{T0}, v{T1}
v_cmp_eq_u32 vcc, -1, v{T0}
s_mov_b32 s3, 2
s_cbranch_vccz {t}_chkA
s_mov_b64 exec, vcc""")
            ldA()
            A(f"""s_mov_b64 exec, -1
s_sub_u32 s35, s35, 1
s_cbranch_scc0 {t}_scnA
s_mov_b32 s35, 0
s_branch {t}_chkA""")
        lates.append(nanA)
        A(f's_mov_b32 m0, s{66+(par^1)}' if unroll == 2 else 's_sub_u32 m0, s67, s69')
        A('s_mov_b32 s3, 0')
        if not nocomm: ldA()
        prep_b()
        for i in range(nA - 1):
            delay(gA)
            if not nocomm: ldA()
        A(f's_waitcnt lgkmcnt(0)\n{t}_chkA:')
        if not nocomm: A(f's_waitcnt vmcnt({2*nA-1})')
        A.lds_q = []
        stamp(1)
        KX = {(tt, k): P[k] + 4 * (tt - 1) for tt in (1, 2) for k in range(4)}
        QF = [AQ0, AQ1, M[0], M[1]]
        KM = [M[2], M[4], M[6], M[3]]
        VX = [P[4], P[4] + 4]
        def ldM(tau): A.ds(f'ds_read_b128 {vr(M[tau])}, v{VB[tau>>1]} offset:{L_MEM + (tau&1)*1024}', f'm{tau}')
        def ldKX(tt, k): A.ds(f'ds_read_b128 {vr(KX[(tt,k)])}, v{VK} offset:{KOFF + (tt-1)*4096 + k*1024}', 'kx')
        def ldVX(T): A.ds(f'ds_read_b128 {vr(VX[T])}, v{VV} offset:{VOFF + T*1024}', 'kx')
        def ldQF(k):
            for hf in range(2): A.ds(f'ds_read_b64_tr_b16 {vr(QF[k]+2*hf,2)}, v{V_TR} offset:{L_OQK + k*2048 + 1024 + hf*256}', f'qf{k}')
        def ldKM(k):
            for hf in range(2): A.ds(f'ds_read_b64_tr_b16 {vr(KM[k]+2*hf,2)}, v{V_TR} offset:{L_OQK + k*2048 + 1536 + hf*256}', f'km{k}')
        def fold(a0, a1, t0):
            ops = []
            for r in range(4): ops.append(f'v_permlane32_swap_b32 v{a0+r}, v{a1+r}')
            for r in range(4): ops.append(f'v_add_f32 v{a0+r}, v{a0+r}, v{a1+r}')
            ops.append(f'v_cvt_pk_bf16_f32 v{t0}, v{a0}, v{a0+1}')
            ops.append(f'v_cvt_pk_bf16_f32 v{t0+1}, v{a0+2}, v{a0+3}')
            return ops
        two = lambda m, tau: [(m, tau, 0), (m, tau, 1)]
        sms = []
        for m in 'vkq': sms += two(m, 0) + two(m, 1)
        for m in 'qkv':
            for tau in (2, 4, 6, 3, 5, 7): sms += two(m, tau)
        assert len(sms) == 48 and len(set(sms)) == 48
        pre = {i: [] for i in range(48)}; post = {i: [] for i in range(48)}
        post[0].append(lambda: A(f'ds_write_b128 v{V_B0}, {vr(M[0])} offset:{L_MEM}'))
        if not nocomm: pre[1].append(lambda: A(f's_waitcnt vmcnt({2*nA-2})'))
        post[1].append(lambda: A(f'ds_write_b128 v{V_B0}, {vr(M[1])} offset:{L_MEM+1024}'))
        post[4].append(lambda: A(f'v_cmp_u_f32 vcc, v{AV0}, v{AV0+1}\nv_cmp_u_f32 s[6:7], v{AV0+2}, v{AV0+3}'))
        for i, r in enumerate((AQ0, AQ0 + 2, AQ1, AQ1 + 2)): post[(0, 2, 3, 6)[i]].append(lambda r=r: A(f'v_mov_b64 v[{r}:{r+1}], 0'))
        sms[1], sms[2] = sms[2], sms[1]
        if not nocomm: pre[dmapos[0]].append(lambda: A('s_waitcnt vmcnt(0)'))
        def brA():
            if not nocomm: A(f's_or_b64 vcc, vcc, s[6:7]\ns_cbranch_scc1 {t}_reA')
            A(f'{t}_okA:')
        def b1():
            A('s_waitcnt lgkmcnt(0)\ns_barrier')
            stamp(2)
        pre[6].append(brA)
        pre[b1pos + 1].append(b1)
        for i, tau in enumerate((2, 4, 6, 3, 5, 7)): post[b1pos + 1 + i].append(lambda tau=tau: ldM(tau))
        for i_, tau_ in enumerate((2, 4, 6, 3, 5, 7)): pre[12 + 2 * i_].append(lambda tau_=tau_: A.wait_lds(f'm{tau_}'))
        kxs = [(tt, k) for k in range(4) for tt in (1, 2)]
        for i, pos in enumerate(range(b1pos + 7, b1pos + 15)): post[pos].append(lambda i=i: ldKX(*kxs[i]))
        post[24].append(lambda: ldVX(0)); post[26].append(lambda: ldVX(1))
        if unroll == 1:
            post[8].append(lambda: A(f'v_add_u32 v{T0}, s69, v{V_L16}'))
            post[max(prepos + 1, 16)].append(lambda: A(f'v_add_u32 v{T1}, s69, v{V_B0}'))
        for i, pos in enumerate(dmapos): post[pos].append(lambda i=i: A(f'buffer_load_dwordx4 v{V_L16}, s[8:11], s57 offen offset:{i*1024} {dm} lds'))
        if pf is not None:
            post[prepos - 1].append(lambda: A(f'v_lshlrev_b32 v{T1}, 2, v{V_L16}\ns_add_u32 s36, s57, 16384'))
            post[prepos].append(lambda: A(f'buffer_load_dword v{T2}, v{T1}, s[8:11], s36 offen {pf}\nv_lshrrev_b32 v{T1}, 2, v{V_L16}'))
            post[prepos + 1].append(lambda: A(f'buffer_load_dword v{T2}, v{T1}, s[8:11], s88 offen sc1'))
        if not repidle:
            post[reppos - 1].append(lambda: A('s_cmp_ge_u32 s32, 2'))
            post[reppos].append(lambda: A(f's_cbranch_scc1 {t}_norep\n' + ('' if fullst else 's_mov_b64 exec, s[80:81]\n') + f'buffer_store_dword v{T3}, v{V_MST}, s[8:11], s56 offen sc1\n' + ('' if fullst else 's_mov_b64 exec, -1\n') + f'{t}_norep:'))
        post[reppos + 1].append(lambda: prof(A, 16, M[1], 34, cyc=True))
        post[13].append(lambda: A(f'v_mov_b64 v[{M[0]}:{M[0]+1}], -1'))
        post[14].append(lambda: A(f'v_mov_b64 v[{M[0]+2}:{M[0]+3}], -1'))
        assert respos[0] - 2 >= 12
        post[respos[0]].append(lambda: A(f'buffer_store_dwordx4 {vr(M[0])}, v{V_L16}, s[8:11], s64 offen{sc}'))
        post[respos[1]].append(lambda: A(f'buffer_store_dwordx4 {vr(M[0])}, v{V_L16}, s[8:11], s64 offen offset:1024{sc}'))
        if adapt:
            post[27].append(lambda: A.ds(f'ds_read_b32 v{M[1]}, v{V_TR} offset:{L_OQK}', 'lateflag'))
            post[37].append(lambda: (A.wait_lds('lateflag'), A(f'v_readfirstlane_b32 s89, v{M[1]}')))
        post[11].append(lambda: stamp(3)); post[23].append(lambda: stamp(4)); post[35].append(lambda: stamp(5))
        for i, op in enumerate(fold(AQ0, AQ1, T0)): post[26 + i].append(lambda op=op: A(op))
        post[36].append(lambda: A.ds(f'ds_write_b64 v{V_QW}, v[{T0}:{T1}] offset:{L_OQK+1024}', 'qw'))
        for i, op in enumerate(fold(AK0, AK1, T0)): post[38 + (i * kfs) // 10].append(lambda op=op: A(op))
        post[38 + kfs].append(lambda: A.ds(f'ds_write_b64 v{V_QW}, v[{T0}:{T1}] offset:{L_OQK+1536}', 'kw'))
        pre[b2pos].append(lambda: (A.wait_lds('qw'), A('s_barrier')))
        qpos = [p_ for p_ in range(b2pos, 48) if p_ != 38 + kfs][:4]
        for k, pos in enumerate(qpos): post[pos].append(lambda k=k: ldQF(k))
        for i, f in enumerate(sms):
            if i == 0:
                for fn in pre[0]: fn()
            SM(*f)
            n0 = len(A.items)
            for fn in post[i]: fn()
            if i + 1 < 48:
                for fn in pre[i + 1]: fn()
            gap = A.items[n0:]
            if not any(isinstance(x, str) for x in gap):
                A.items[n0:] = [x for x in gap if x.kind != 'valu'] + [x for x in gap if x.kind == 'valu']
        stamp(6)
        ST = {1: AK0, 2: AK1, 0: M[5]}
        VM = M[7]; ONES = KM[0]; ONE2 = KM[1]; PM = KM[1] + 2; PB = KM[2]; LS = KM[3]; O = [AV0, AV1]
        def MF(d, a, b, c): A(f'v_mfma_f32_16x16x32_bf16 {vr(d)}, {vr(a)}, {vr(b)}, {c}')
        def MF16(d, a, b): A(f'v_mfma_f32_16x16x16_bf16 {vr(d)}, {vr(a,2)}, {vr(b,2)}, {vr(d)}')
        late = [(('o', k, 1, T), hf) for k in (1, 2, 3) for T in (0, 1) for hf in (0, 1)]
        vmc = [f'v_cvt_pk_bf16_f32 v{VM+i}, v{(AV0,AV1)[i>>1]+2*(i&1)}, v{(AV0,AV1)[i>>1]+2*(i&1)+1}' for i in range(4)]
        n = 0
        for k in range(4):
            A.wait_lds(f'qf{k}')
            if k == b3k:
                A.wait_lds('kw'); A('s_barrier')
            for tt in (1, 2):
                MF(ST[tt], KX[(tt, k)], QF[k], '0' if k == 0 else vr(ST[tt]))
                if 2 * b3k <= n < 2 * b3k + 4: ldKM(n - 2 * b3k)
                elif n >= 2: plh(*late.pop(0), 'piii')
                if vmc and n >= 2 and not (2 * b3k <= n < 2 * b3k + 4 and len(vmc) <= 2): A(vmc.pop(0))
                n += 1
        WA = QF
        for k in range(4):
            A.wait_lds(f'km{k}')
            MF(ST[0], KM[k], QF[k], '0' if k == 0 else vr(ST[0]))
            plh(*late.pop(0), 'piii')
            if k == 0: A(f'v_mov_b64 v[{ONES}:{ONES+1}], s[86:87]')
            if k == 1: A(f'v_max3_f32 v{T0}, v{ST[1]}, v{ST[1]+1}, v{ST[1]+2}')
            if k == 2: A(f'v_max3_f32 v{T1}, v{ST[1]+3}, v{ST[2]}, v{ST[2]+1}')
            if k == 3: A(f'v_max3_f32 v{T0}, v{T0}, v{ST[2]+2}, v{ST[2]+3}')
            if vmc and k < 2: A(vmc.pop(0))
        assert not vmc
        stamp(7)
        A(f"""v_max_f32 v{T0}, v{T0}, v{T1}
v_mov_b32 v{T1}, v{T0}
v_mov_b64 v[{ONES+2}:{ONES+3}], s[86:87]
v_cndmask_b32 v{ONE2}, 0, v{ONES}, s[82:83]
v_permlane32_swap_b32 v{T0}, v{T1}
v_cndmask_b32 v{ONE2+1}, 0, v{ONES}, s[82:83]
v_max3_f32 v{T0}, v{T0}, v{T1}, v{ST[0]}
v_max3_f32 v{T1}, v{ST[0]+1}, v{ST[0]+2}, v{ST[0]+3}
v_max_f32 v{T0}, v{T0}, v{T1}
v_mov_b32 v{T1}, v{T0}""")
        z(WA[0])
        A(f"""v_permlane16_swap_b32 v{T0}, v{T1}
v_max_f32 v{T0}, v{T0}, v{T1}
v_mul_f32 v{T0}, s68, v{T0}""")
        for base in (ST[1], ST[2]):
            for r in range(4): A(f'v_fma_f32 v{base+r}, v{base+r}, s68, -v{T0}')
        for base in (ST[1], ST[2]):
            for r in range(4): A(f'v_exp_f32 v{base+r}, v{base+r}')
        b = ST[0]
        A(f"""v_cvt_pk_bf16_f32 v{PB}, v{ST[1]}, v{ST[1]+1}
v_cvt_pk_bf16_f32 v{PB+1}, v{ST[1]+2}, v{ST[1]+3}
v_cvt_pk_bf16_f32 v{PB+2}, v{ST[2]}, v{ST[2]+1}
v_cvt_pk_bf16_f32 v{PB+3}, v{ST[2]+2}, v{ST[2]+3}
v_fma_f32 v{b}, v{b}, s68, -v{T0}
v_fma_f32 v{b+1}, v{b+1}, s68, -v{T0}""")
        MF(LS, ONES, PB, '0')
        plh(*late.pop(0), 'piii')
        A(f'v_fma_f32 v{b+2}, v{b+2}, s68, -v{T0}\nv_fma_f32 v{b+3}, v{b+3}, s68, -v{T0}')
        MF(O[0], VX[0], PB, '0')
        plh(*late.pop(0), 'piii')
        A(f'v_exp_f32 v{b}, v{b}')
        MF(O[1], VX[1], PB, '0')
        A(f"""v_exp_f32 v{b+1}, v{b+1}
v_exp_f32 v{b+2}, v{b+2}
v_exp_f32 v{b+3}, v{b+3}
v_cvt_pk_bf16_f32 v{PM}, v{b}, v{b+1}
v_cvt_pk_bf16_f32 v{PM+1}, v{b+2}, v{b+3}""")
        z(WA[1])
        MF16(LS, ONE2, PM); z(WA[2]); MF16(O[0], VM, PM); z(WA[3]); MF16(O[1], VM + 2, PM)
        stamp(8)
        OF = [AK0, AK1, M[5], PB]
        A(f'v_rcp_f32 v{T0}, v{LS}')
        for T in range(2):
            for r in range(4): A(f'v_mul_f32 v{O[T]+r}, v{O[T]+r}, v{T0}')
            A(f'v_cvt_pk_bf16_f32 v{OF[0]+2*T}, v{O[T]}, v{O[T]+1}\nv_cvt_pk_bf16_f32 v{OF[0]+2*T+1}, v{O[T]+2}, v{O[T]+3}')
        A.ds(f'ds_write_b128 v{V_B0}, {vr(OF[0])} offset:{L_OQK}', 'ow')
        stamp(9)
        def SO(k, a): A(f'v_smfmac_f32_16x16x64_bf16 {vr(WA[a])}, {vr(OF[k])}, {wreg(("o",k,a>>1,a&1))}, v{V_IDX}')
        R = QF; SEL = M[7]; RA = M[5]
        selops = [f'v_cndmask_b32 v{SEL+q}, 0, v{V_SELV}, s[{72+2*(q&1)}:{73+2*(q&1)}]' for q in range(4)]
        for a in range(4):
            SO(0, a); A(selops[a])
        A('s_waitcnt lgkmcnt(0)\ns_barrier'); A.lds_q = []
        for k in range(1, 4): A.ds(f'ds_read_b128 {vr(OF[k])}, v{VB[k]} offset:{L_OQK}', f'o{k}')
        for k in range(1, 4):
            A.wait_lds(f'o{k}')
            for a in (0, 1):
                SO(k, a)
                if late: plh(*late.pop(0), 'piv')
        PK = [AV0, AV1]
        n = 0
        for k in range(1, 4):
            if k == 3: A.wait_lds('piv')
            for a in (2, 3):
                SO(k, a); n += 1
                if early1:
                    if n == 3:
                        for r in range(4): A(f'v_cvt_pk_bf16_f32 v{PK[0]+r}, v{WA[0]+r}, v{WA[1]+r}')
                    if n == 4:
                        A(f'buffer_store_dwordx4 {vr(PK[0])}, v{V_PST}, s[8:11], s58 offen{sc}'); cal(3, par)
                elif n >= 3: A(f'v_cvt_pk_bf16_f32 v{PK[0]+n-3}, v{WA[0]+n-3}, v{WA[1]+n-3}')
        if not early1: A(f'buffer_store_dwordx4 {vr(PK[0])}, v{V_PST}, s[8:11], s58 offen{sc}')
        for r in range(4): A(f'v_cvt_pk_bf16_f32 v{PK[1]+r}, v{WA[2]+r}, v{WA[3]+r}')
        A(f'buffer_store_dwordx4 {vr(PK[1])}, v{V_PST}, s[8:11], s59 offen{sc}')
        stamp(10)
        def book():
            A(f"""s_add_u32 s54, s54, 8192
{wrap('s54')}s_add_u32 s56, s56, 8192
s_add_u32 s57, s57, {0 if nokv else 16384}
s_add_u32 s60, s60, 0x40000
s_and_b32 s60, s60, 0xc0000
s_xor_b32 s64, s60, 0x80000
s_add_u32 s64, s64, s65
s_add_u32 s58, s60, {PARTB}
s_add_u32 s59, s60, {PARTB + 0x20000}
s_xor_b32 s69, s69, 16384
s_add_u32 s34, s34, 1""")
        def ldB():
            for i in range(4): A(f'buffer_load_dwordx4 {vr(R[i])}, v{V_L16}, s[8:11], s62 offen offset:{i*1024} sc1')
        retry[f'{t}B'] = ldB
        A(f's_cmp_ge_u32 s32, 2\ns_cbranch_scc1 {t}_late')
        if nocomm:
            prep_a(); book(); A(f's_branch {t}_join')
        def first():
            delay(dB0); stamp(11); ldB()
        if adapt:
            A(f's_cmp_eq_u32 s89, s34\ns_cbranch_scc1 {t}_fastB')
            def fastB(t=t, ldB=ldB, RA=RA, par=par):
                A(f'{t}_fastB:')
                def f1(): cal(11, par); ldB()
                if pfast < 0: f1()
                prep_a({pfast: f1}); book()
                for i in range(nB - 1): ldB()
                z(RA)
                A(f's_branch {t}_chkB')
            lates.append(fastB)
        if pmid is None:
            prep_a(); book(); first()
            for i in range(nB - 1):
                delay(gB); ldB()
        else:
            prep_a({pmid: first}); book()
            for i in range(nB - 1): ldB()
        assert R[1] == R[0] + 4 and R[3] == R[2] + 4
        def red(i): A(f'v_smfmac_f32_16x16x64_bf16 {vr(RA)}, {vr(SEL)}, {vr(R[2*i], 8)}, v{V_IDX}')
        z(RA)
        A(f'{t}_chkB:\ns_waitcnt vmcnt({4*(nB-1)+2})')
        red(0)
        A(f's_waitcnt vmcnt({4*(nB-1)})')
        cal(4, par)
        red(1)
        A(f"""v_max3_u32 v{T0}, v{R[0]+3}, v{R[1]+3}, v{R[2]+3}
v_max_u32 v{T0}, v{T0}, v{R[3]+3}
v_cmp_eq_u32 s[6:7], -1, v{T0}
v_cmp_u_f32 vcc, v{RA+2}, v{RA+2}
v_add_f32_dpp v{RA}, v{RA}, v{RA} row_ror:8 row_mask:0xf bank_mask:0xf
v_add_f32_dpp v{RA+1}, v{RA+1}, v{RA+1} row_ror:8 row_mask:0xf bank_mask:0xf
v_cvt_pk_bf16_f32 v{T3}, v{RA}, v{RA+1}
s_cbranch_vccnz {t}_reB
{t}_okB:
{"" if fullst else "s_mov_b64 exec, s[80:81]"}
buffer_store_dword v{T3}, v{V_MST}, s[8:11], s55 offen{sc}
{"" if fullst else "s_mov_b64 exec, -1"}
{t}_join:""")
        def nan_path(t=t, R=R, RA=RA, SEL=SEL, ldB=ldB, red=red):
            A(f"""{t}_reB:
s_cmp_eq_u64 s[6:7], 0
s_cbranch_scc1 {t}_nan
s_mov_b64 exec, s[6:7]""")
            ldB()
            A('s_mov_b64 exec, -1')
            z(RA)
            A(f"""s_sub_u32 s35, s35, 1
s_cbranch_scc0 {t}_chkB
s_mov_b32 s35, 0
{t}_nan:
s_waitcnt vmcnt(0)""")
            fl = [x for r in R for x in range(r, r + 4)]
            A(f'v_max3_u32 v{T0}, v{fl[0]}, v{fl[1]}, v{fl[2]}')
            for i in range(6): A(f'v_max3_u32 v{T0}, v{T0}, v{fl[3+2*i]}, v{fl[4+2*i]}')
            A(f"""v_max_u32 v{T0}, v{T0}, v{fl[15]}
v_cmp_eq_u32 vcc, -1, v{T0}
s_cbranch_vccz {t}_nan2""")
            ldB()
            A(f"""s_sub_u32 s35, s35, 1
s_cbranch_scc0 {t}_nan
s_mov_b32 s35, 0
{t}_nan2:""")
            z(RA); red(0); red(1)
            A(f"""v_add_f32_dpp v{RA}, v{RA}, v{RA} row_ror:8 row_mask:0xf bank_mask:0xf
v_add_f32_dpp v{RA+1}, v{RA+1}, v{RA+1} row_ror:8 row_mask:0xf bank_mask:0xf
v_cvt_pk_bf16_f32 v{T3}, v{RA}, v{RA+1}
s_branch {t}_okB""")
        lates.append(nan_path)
        def late_path(t=t, par=par):
            A(f'{t}_late:')
            prep_a(); book()
            A(f"""
; waves 2,3: sentinel into the mem slot two steps ahead of the one being published
s_add_u32 s36, s55, 16384
{wrap('s36')}ds_read_b32 v{T3}, v{V_MST} offset:{L_MEM}
v_mov_b32 v{T0}, -1
s_sub_u32 s37, s56, 8192
s_mov_b64 exec, s[80:81]
buffer_store_dword v{T0}, v{V_MST}, s[8:11], s36 offen{sc}
s_waitcnt vmcnt(0) lgkmcnt(0)
{f"buffer_store_dword v{T3}, v{V_MST}, s[8:11], s37 offen sc1" if repidle else ""}
s_mov_b64 exec, -1""")
            delay(dI)
            A(f's_branch {t}_join')
        lates.append(late_path)
        stamp(12)
        A(f"""v_cmp_le_u32 s[70:71], 4, v{T2}
s_cmp_eq_u32 s34, {nsteps}
s_cbranch_scc1 {tag}_done
s_add_u32 s62, s63, s60
s_add_u32 s55, s55, 8192
{wrap('s55')}s_add_u32 s36, s34, 2""")
        kv_ready(f'{t}_kv'); slow.append(f'{t}_kv')
        if not noB5: A('s_barrier')
        delay(dA)
        stamp(13)
        A.lds_q = []
    if gate: A(f's_cmp_lg_u32 s2, 0\ns_cbranch_scc1 {tag}x0_top')
    for ltag, lsc in ([(tag, sc), (tag + 'x', ' sc1')] if gate else [(tag, sc)]):
        i0 = len(A.items)
        for par in range(unroll): step(par, ltag, lsc)
        if abl:
            import re
            keep = A.items[:i0]
            for it in A.items[i0:]:
                if not isinstance(it, str) and any(re.search(p, it.text) for p in abl): continue
                keep.append(it)
            A.items = keep
        A(f's_branch {ltag}0_top')
        for f in lates: f()
        del lates[:]
    for l in slow: kv_slow(l)
    A(f"""{tag}_done:
s_cmp_ge_u32 s32, 2
s_cbranch_scc1 {tag}_fin
s_mov_b64 exec, s[80:81]
buffer_store_dword v{T3}, v{V_MST}, s[8:11], s56 offen sc1
s_mov_b64 exec, -1
{tag}_fin:""")
    prof(A, 3, 36, dbg=11)
    if trip:
        A(f'''s_memrealtime s[92:93]
s_load_dwordx2 s[4:5], s[0:1], 88
s_waitcnt vmcnt(0) lgkmcnt(0)
s_sub_u32 s36, s100, s98
s_sub_u32 s37, s92, s100
s_cmp_gt_u32 s{36 if trip[0] == 'pro' else 37}, {int(trip[1]*100)}
s_cbranch_scc0 {tag}_notrip
v_mov_b32 v36, 0x7f007f00
v_mov_b32 v37, 0
global_store_dword v37, v36, s[4:5]
{tag}_notrip:''')
    if PROF['on'] is True:
        A("""s_memtime s[92:93]
s_waitcnt lgkmcnt(0)
s_sub_u32 s92, s92, s96
v_mov_b32 v36, s92
v_mov_b32 v37, s35
s_lshl_b32 s94, s32, 3
s_add_u32 s94, s94, s91
v_mov_b32 v38, 0
s_mov_b64 exec, 1
buffer_store_dwordx2 v[36:37], v38, s[8:11], s94 offen offset:16
s_mov_b64 exec, -1""")

def kd(name, vgpr=512, accum=256):
    return f'''
.amdhsa_kernel {name}
  .amdhsa_next_free_vgpr {vgpr}
  .amdhsa_next_free_sgpr 102
  .amdhsa_accum_offset {accum}
  .amdhsa_group_segment_fixed_size 0
  .amdhsa_kernarg_size 112
  .amdhsa_user_sgpr_count 2
  .amdhsa_user_sgpr_kernarg_segment_ptr 1
  .amdhsa_system_sgpr_workgroup_id_x 1
.end_amdhsa_kernel
'''

def common_entry(A):
    A(f'''
s_load_dwordx4 s[4:7], s[0:1], 96
s_getreg_b32 s3, hwreg(HW_REG_XCC_ID)
s_and_b32 s3, s3, 0xf
v_lshrrev_b32 v1, 6, v0
v_readfirstlane_b32 s32, v1
s_waitcnt lgkmcnt(0)''')
    srd(A, 12, 4, 256)
    srd(A, 8, 6, WS_BYTES)

def gen_chain_test(stamps=False, **kw):
    A = Asm()
    A.raw('; @launch kernel=chain_kernel grid=(256,1,1) block=(256,1,1) lds=163840')
    A.raw('.amdgcn_target "amdgcn-amd-amdhsa--gfx950"')
    A.raw('.text\n.globl chain_kernel\n.p2align 8\n.type chain_kernel,@function')
    A.label('chain_kernel')
    A('s_cmp_ge_u32 s2, 256\ns_cbranch_scc1 L_end')
    common_entry(A)
    A('''s_cmp_lg_u32 s3, 0
s_cbranch_scc1 L_end
s_memtime s[96:97]
s_memrealtime s[90:91]
v_mov_b32 v3, 0
v_mov_b32 v4, 1
s_cmp_lg_u32 s32, 0
s_cbranch_scc1 L_noticket
s_mov_b64 exec, 1
buffer_atomic_add v4, v3, s[12:15], 0 offen sc0
s_waitcnt vmcnt(0)
ds_write_b32 v3, v4
s_waitcnt lgkmcnt(0)
s_mov_b64 exec, -1
L_noticket:
s_barrier
ds_read_b32 v4, v3
s_waitcnt lgkmcnt(0)
v_readfirstlane_b32 s33, v4
s_barrier
s_cmp_ge_u32 s33, 32
s_cbranch_scc1 L_end''')
    emit_chain(A, stamps=stamps, cpre=0, **kw)
    if stamps == 'cal':
        A('''s_waitcnt vmcnt(0)
s_memrealtime s[4:5]
s_waitcnt lgkmcnt(0)
s_or_b32 s6, s4, 0x3ff
L_cal:
s_memrealtime s[4:5]
s_memtime s[96:97]
s_waitcnt lgkmcnt(0)
s_cmp_le_u32 s4, s6
s_cbranch_scc1 L_cal
s_mov_b32 s50, s4
s_getreg_b32 s84, hwreg(HW_REG_HW_ID)''')
    if stamps:
        A('s_waitcnt vmcnt(0) lgkmcnt(0)')
        for i, r in enumerate([40,42,44,46,48,50,52,84,98,16,90,92,94,100,96,35]): A(f'v_mov_b32 v{20+i}, s{r}')
        A('''s_lshl_b32 s36, s33, 2
s_add_u32 s36, s36, s32
s_lshl_b32 s36, s36, 6
s_add_u32 s36, s36, 0x8000
v_mov_b32 v40, s36
s_mov_b64 exec, 1
buffer_store_dwordx4 v[20:23], v40, s[8:11], 0 offen
buffer_store_dwordx4 v[24:27], v40, s[8:11], 0 offen offset:16
buffer_store_dwordx4 v[28:31], v40, s[8:11], 0 offen offset:32
buffer_store_dwordx4 v[32:35], v40, s[8:11], 0 offen offset:48
s_mov_b64 exec, -1''')
    A('''s_waitcnt vmcnt(0)
s_memtime s[98:99]
s_memrealtime s[4:5]
s_waitcnt lgkmcnt(0)
s_sub_u32 s98, s98, s96
s_sub_u32 s4, s4, s90
s_cmp_eq_u32 s33, 1
s_cselect_b32 s98, s4, s98
v_mov_b32 v20, s98
v_mov_b32 v21, s35
s_lshl_b32 s36, s33, 2
s_add_u32 s36, s36, s32
s_cmp_ge_u32 s36, 8
s_cbranch_scc1 L_end
s_lshl_b32 s36, s36, 3
s_add_u32 s36, s36, 64
v_mov_b32 v22, s36
s_mov_b64 exec, 1
buffer_store_dwordx2 v[20:21], v22, s[12:15], 0 offen
L_end:
s_endpgm''')
    A.raw('.section .rodata,"a"\n.p2align 6')
    A.raw(kd('chain_kernel'))
    return A.text()

if __name__ == '__main__':
    open('chain.s', 'w').write(gen_chain_test())
    open('chain_st.s', 'w').write(gen_chain_test(stamps=True))
```

```python
import math
from gen import *

W_L16, W_LANE, W_TR, W_VO = 0, 1, 2, 3

def ar(b, n=4): return f'a[{b}:{b+n-1}]'

def worker_setup(A):
    A(f'''v_and_b32 v{W_LANE}, 63, v0
v_lshlrev_b32 v{W_L16}, 4, v{W_LANE}
s_mul_i32 s52, s32, 40960
v_lshlrev_b32 v{W_TR}, 3, v{W_LANE}
v_add_u32 v{W_TR}, s52, v{W_TR}
s_mov_b32 s35, 1000000''')

def load_units(A, units, depth=8, pr=False):
    n_u = len(units)
    def issue(n):
        sl = n % 9
        for mp, (sr, sb, c) in enumerate(units[n][0]):
            A(f's_add_u32 m0, s52, {sl*4096 + mp*1024}')
            A(f's_add_u32 s38, s{sb}, {c}')
            A(f'buffer_load_dwordx4 v{W_VO}, s[{sr}:{sr+3}], s38 offen lds')
    for n in range(min(depth, n_u)): issue(n)
    for n in range(n_u):
        later = min(n_u - 1, n + depth - 1) - n
        A(f's_waitcnt vmcnt({4*later})')
        if pr and n % 4 == 0: prof(A, 80 + n // 4, 66)
        for T in range(2):
            for mp in range(4):
                A(f'ds_read_b64_tr_b16 {units[n][1][mp][T]}, v{W_TR} offset:{(n%9)*4096 + mp*1024 + T*512}')
        if n + depth < n_u:
            A('s_waitcnt lgkmcnt(8)')
            issue(n + depth)
    A('s_waitcnt lgkmcnt(0)\ns_barrier')

def lane_bits(A):
    A(f'''v_bfe_u32 v21, v{W_LANE}, 4, 1
v_bfe_u32 v22, v{W_LANE}, 3, 1
v_bfe_u32 v23, v{W_LANE}, 2, 1
v_bfe_u32 v24, v{W_LANE}, 1, 1
v_and_b32 v25, 1, v{W_LANE}
v_lshrrev_b32 v26, 5, v{W_LANE}''')

def voff_dmap(A, stride):
    lane_bits(A)
    A(f'''v_lshlrev_b32 v27, 3, v21
v_lshl_add_u32 v27, v22, 1, v27
v_lshl_add_u32 v27, v23, 2, v27
v_lshl_add_u32 v27, v24, 5, v27
v_mul_u32_u24 v27, {stride}, v27
v_lshl_add_u32 v27, v26, 5, v27
v_lshl_add_u32 v{W_VO}, v25, 4, v27''')

def drow(t, mp): return 64 * t + 16 * (mp >> 1) + (mp & 1)

def atomic_flag(A, soff, vtmp):
    A(f'''s_mov_b64 exec, 1
v_mov_b32 v{vtmp}, 1
v_mov_b32 v{vtmp+1}, 0
buffer_atomic_add v{vtmp}, v{vtmp+1}, s[8:11], {soff} offen sc1
s_mov_b64 exec, -1''')

def emit_warm(A, pol='nt', warmws=0, thr=None, wlo=0):
    NW = (5 - wlo) * 128
    A(f'''s_load_dwordx4 s[16:19], s[0:1], 16
s_load_dwordx4 s[24:27], s[0:1], 32
s_mul_i32 s36, s33, {5-wlo}
s_add_u32 s36, s36, s89
s_sub_u32 s36, s36, {wlo}
s_lshl_b32 s36, s36, 2
s_add_u32 s36, s36, s32
s_lshl_b32 s36, s36, 10
s_waitcnt lgkmcnt(0)
s_mov_b32 s20, s18
s_and_b32 s21, s19, 0xffff
s_mov_b32 s22, 0x400000
s_mov_b32 s23, 0x20000
s_and_b32 s17, s17, 0xffff
s_mov_b32 s18, 0x400000
s_mov_b32 s19, 0x20000
s_mov_b32 s28, s26
s_and_b32 s29, s27, 0xffff
s_mov_b32 s30, 0x400000
s_mov_b32 s31, 0x20000
s_and_b32 s25, s25, 0xffff
s_mov_b32 s26, 0x400000
s_mov_b32 s27, 0x20000''')
    n = 0
    for sr in (20, 24, 16, 28):
        for i in range(-(-4096 // NW)):
            A(f's_add_u32 s37, s36, {i*NW*1024}')
            A(f'buffer_load_dwordx4 v[{112+4*(n%4)}:{115+4*(n%4)}], v{W_L16}, s[{sr}:{sr+3}], s37 offen {pol}')
            if thr is not None: A(f's_waitcnt vmcnt({thr})')
            n += 1
    if warmws:
        for i in range(-(-1024 // NW)):
            A(f's_add_u32 s37, s36, {i*NW*1024}\ns_min_u32 s37, s37, 0xffc00\ns_add_u32 s37, s37, {PARTB}')
            A(f'buffer_load_dwordx4 v[112:115], v{W_L16}, s[8:11], s37 offen')
        A(f's_and_b32 s37, s36, 0x7c00\ns_add_u32 s37, s37, {MEMB}')
        A(f'buffer_load_dwordx4 v[112:115], v{W_L16}, s[8:11], s37 offen')

def emit_init(A):
    A(f'''v_mov_b32 v16, 0
v_mov_b32 v17, 0
v_mov_b32 v18, 0
v_mov_b32 v19, 0
s_lshl_b32 s36, s32, 13
s_add_u32 s37, s36, 4096''')
    for i in range(8):
        A(f'buffer_store_dwordx4 v[16:19], v{W_L16}, s[8:11], s{36 + (i>>2)} offen offset:{(i&3)*1024} sc1')
    A(f'''s_waitcnt vmcnt(0)
s_mov_b64 exec, 1
v_mov_b32 v16, 1
v_mov_b32 v17, {DBG_GATE}
buffer_atomic_add v16, v17, s[12:15], 0 offen sc1
s_mov_b64 exec, -1''')

def emit_ln(A, sseg, gate=True):
    A('s_load_dwordx2 s[4:5], s[0:1], 0\ns_waitcnt lgkmcnt(0)')
    srd(A, 16, 4, 0x200000)
    RAW = 16; X = 48
    A(f'''v_lshlrev_b32 v4, 7, v{W_LANE}
s_lshl_b32 s36, s{sseg}, 15
s_lshl_b32 s37, s32, 13
s_add_u32 s36, s36, s37''')
    for i in range(8): A(f'buffer_load_dwordx4 {vr(RAW+4*i)}, v4, s[16:19], s36 offen offset:{16*i}')
    A(f'''v_and_b32 v5, 7, v{W_LANE}
v_lshlrev_b32 v5, 11, v5
v_lshrrev_b32 v6, 3, v{W_LANE}
v_lshl_add_u32 v5, v6, 4, v5
s_lshl_b32 s36, s{sseg}, 15
s_lshr_b32 s37, s32, 1
s_lshl_b32 s37, s37, 14
s_add_u32 s36, s36, s37
s_and_b32 s37, s32, 1
s_lshl_b32 s37, s37, 7
s_add_u32 s36, s36, s37
s_add_u32 s39, s36, {XFB}
s_mov_b32 s38, 0xffff0000''')
    for i in range(8):
        A(f's_waitcnt vmcnt({7-i})')
        for q in range(4):
            d = 4 * i + q
            A(f'v_lshlrev_b32 v{X+2*d}, 16, v{RAW+d}\nv_and_b32 v{X+2*d+1}, s38, v{RAW+d}')
    def red8(r):
        A(f'''v_add_f32_dpp v{r}, v{r}, v{r} quad_perm:[1,0,3,2] row_mask:0xf bank_mask:0xf
v_add_f32_dpp v{r}, v{r}, v{r} quad_perm:[2,3,0,1] row_mask:0xf bank_mask:0xf
v_add_f32_dpp v{r}, v{r}, v{r} row_half_mirror row_mask:0xf bank_mask:0xf''')
    for a in range(4): A(f'v_add_f32 v{8+a}, v{X+a}, v{X+4+a}')
    for c in range(8, 64): A(f'v_add_f32 v{8+(c&3)}, v{8+(c&3)}, v{X+c}')
    A('v_add_f32 v8, v8, v9\nv_add_f32 v10, v10, v11\nv_add_f32 v8, v8, v10')
    red8(8)
    A(f'v_mul_f32 v7, {f32bits(1/512)}, v8')
    for a in range(4): A(f'v_mov_b32 v{8+a}, 0')
    for c in range(64):
        A(f'v_sub_f32 v{12+(c&3)}, v{X+c}, v7\nv_fmac_f32 v{8+(c&3)}, v{12+(c&3)}, v{12+(c&3)}')
    A('v_add_f32 v8, v8, v9\nv_add_f32 v10, v10, v11\nv_add_f32 v8, v8, v10')
    red8(8)
    A(f'''v_mul_f32 v8, {f32bits(1/512)}, v8
v_cvt_pk_bf16_f32 v9, v7, v8
v_lshlrev_b32 v7, 16, v9
v_and_b32 v8, s38, v9
v_add_f32 v8, {f32bits(1e-5)}, v8
v_cvt_pk_bf16_f32 v8, v8, v8
v_and_b32 v8, s38, v8
v_sqrt_f32 v8, v8
v_cvt_pk_bf16_f32 v8, v8, v8
v_and_b32 v8, s38, v8
v_rcp_f32 v8, v8''')
    confirm(A, 'ln_conf')
    A(f'''v_mov_b32 v12, -1
v_mov_b32 v13, -1
v_mov_b32 v14, -1
v_mov_b32 v15, -1
s_lshl_b32 s36, s{sseg}, 13
s_lshl_b32 s37, s32, 11
s_add_u32 s36, s36, s37
s_add_u32 s36, s36, {GMEMB}
buffer_store_dwordx4 v[12:15], v{W_L16}, s[8:11], s36 offen sc1
buffer_store_dwordx4 v[12:15], v{W_L16}, s[8:11], s36 offen offset:1024 sc1
s_lshl_b32 s36, s{sseg}, 9
s_and_b32 s37, s32, 1
s_lshl_b32 s37, s37, 8
s_add_u32 s36, s36, s37
v_mov_b32 v9, 0
v_lshlrev_b32 v10, 2, v{W_LANE}
buffer_store_dword v9, v10, s[8:11], s36 offen sc1''')
    for hi in range(2):
        for g in range(4):
            b = 16 * hi + 8 * (g >> 1) + 2 * (g & 1)
            o = RAW + 4 * (4 * hi + g)
            for q, c in enumerate((b, b + 4, b + 1, b + 5)):
                lo, hh = X + c, X + c + 32
                A(f'''v_sub_f32 v{lo}, v{lo}, v7
v_sub_f32 v{hh}, v{hh}, v7
v_cvt_pk_bf16_f32 v{hh}, v{lo}, v{hh}
v_lshlrev_b32 v{lo}, 16, v{hh}
v_and_b32 v{hh}, s38, v{hh}
v_mul_f32 v{lo}, v{lo}, v8
v_mul_f32 v{hh}, v{hh}, v8
v_cvt_pk_bf16_f32 v{o+q}, v{lo}, v{hh}''')
            A(f'buffer_store_dwordx4 {vr(o)}, v5, s[8:11], s39 offen offset:{hi*1024+g*256} sc1')
    A(f'''s_waitcnt vmcnt(0)
s_barrier
s_cmp_lg_u32 s32, 0
s_cbranch_scc1 ln_done
s_mov_b64 exec, 1
v_mov_b32 v8, 1
v_mov_b32 v9, {DBG_XNCNT}
buffer_atomic_add v8, v9, s[12:15], 0 offen sc1
s_mov_b64 exec, -1
ln_done:''')

def wait_all_xn(A, lbl, gate=True):
    A(f's_cmp_lg_u32 s32, 0\ns_cbranch_scc1 {lbl}_ok')
    wait_dbg(A, lbl, DBG_XNCNT, 64, 8, 9)
    A('s_barrier')

def xf_loop(A, tag, stride, nst, mfmas, epilogue, flag_soff, active=None, flagks=13, nxt=None):
    XV = 4; XA = [[8, 12], [16, 20]]
    def dma(seg):
        A(f'''s_min_u32 s36, s{seg}, 63
s_lshl_b32 s36, s36, 15
s_add_u32 s36, s36, s42
s_add_u32 s37, s36, 4096
s_mov_b32 m0, s43''')
        for i in range(4): A(f'buffer_load_dwordx4 v{W_L16}, s[8:11], s36 offen offset:{i*1024} sc1 lds')
        A('s_add_u32 m0, s43, 4096')
        for i in range(4): A(f'buffer_load_dwordx4 v{W_L16}, s[8:11], s37 offen offset:{i*1024} sc1 lds')
        A('s_xor_b32 s43, s43, 0x8000')
    A(f'''s_lshl_b32 s43, s32, 13
s_add_u32 s42, s43, {XFB}
v_mov_b32 v{XV}, v{W_L16}
s_mov_b32 s44, -1''')
    dma(40)
    A(f'''s_waitcnt vmcnt(0)
{tag}_top:
s_barrier
s_add_u32 s41, s40, {stride}''')
    if nxt: nxt()
    dma(41)
    if active: A(f's_cmp_eq_u32 s{active}, 0\ns_cbranch_scc1 {tag}_skip')
    def rd(ks):
        for tt in range(2): A.ds(f'ds_read_b128 {vr(XA[ks&1][tt])}, v{XV} offset:{tt*16384 + ks*1024}', f'x{ks}')
    A.lds_q = []
    rd(0)
    for ks in range(16):
        A.wait_lds(f'x{ks}')
        if ks < 15: rd(ks + 1)
        mfmas(ks, XA[ks & 1])
        if ks == flagks:
            A(f's_waitcnt vmcnt(0)\ns_cmp_lt_i32 s44, 0\ns_cbranch_scc1 {tag}_noflag')
            flag_soff(44); atomic_flag(A, 's36', 6)
            A(f'{tag}_noflag:')
    epilogue()
    A(f'''s_mov_b32 s44, s40
{tag}_next:
v_xor_b32 v{XV}, 0x8000, v{XV}
s_mov_b32 s40, s41
s_cmp_lt_u32 s40, 64
s_cbranch_scc1 {tag}_top
s_waitcnt vmcnt(0)''')
    if active: A(f's_cmp_eq_u32 s{active}, 0\ns_cbranch_scc1 {tag}_end')
    flag_soff(44); atomic_flag(A, 's36', 6)
    if active:
        A(f's_branch {tag}_end\n{tag}_skip:\ns_waitcnt vmcnt(0)\ns_branch {tag}_next')
    A(f'{tag}_end:\ns_barrier')

def MFd(A, d, a, b, c): A(f'v_mfma_f32_16x16x32_bf16 {d}, {a}, {b}, {c}')

def qkv_frag(m, t, T):
    i = 2 * t + T
    return {'k': f'a[{8*i}:{8*i+7}]', 'v': f'a[{128+8*i}:{128+8*i+7}]', 'q': f'v[{128+8*i}:{128+8*i+7}]'}[m]

def emit_qkv(A, gate=True):
    A('''s_load_dwordx4 s[16:19], s[0:1], 16
s_load_dwordx2 s[24:25], s[0:1], 32
s_waitcnt lgkmcnt(0)
s_mov_b32 s20, s18
s_and_b32 s21, s19, 0xffff
s_mov_b32 s22, 0x400000
s_mov_b32 s23, 0x20000
s_and_b32 s17, s17, 0xffff
s_mov_b32 s18, 0x400000
s_mov_b32 s19, 0x20000
s_and_b32 s25, s25, 0xffff
s_mov_b32 s26, 0x400000
s_mov_b32 s27, 0x20000
s_lshl_b32 s45, s33, 8
s_lshl_b32 s37, s32, 6
s_add_u32 s45, s45, s37''')
    voff_dmap(A, 8192)
    units = []
    for m in 'kvq':
        for t in range(8):
            sr = {'q': 16, 'k': 20, 'v': 24}[m]
            units.append(([(sr, 45, drow(t, mp) * 8192) for mp in range(4)],
                          [[sub(qkv_frag(m, t, T), 2 * mp, 2) for T in range(2)] for mp in range(4)]))
    load_units(A, units, pr=True)
    confirm(A, 'qkv_conf')
    prof(A, 2, 36, dbg=13)
    wait_all_xn(A, 'qkv_xn', gate)
    prof(A, 3, 36, dbg=15)
    ACC = 24; PKB = 72
    def acc(m, T, tt): return ACC + 4 * ('qkv'.index(m) * 4 + T * 2 + tt)
    def mfmas(ks, XA):
        for m in 'qkv':
            for T in range(2):
                w = sub(qkv_frag(m, ks >> 1, T), 4 * (ks & 1), 4)
                for tt in range(2):
                    d = vr(acc(m, T, tt)); c = '0' if ks == 0 else d
                    if m == 'v': MFd(A, d, vr(XA[tt]), w, c)
                    else: MFd(A, d, w, vr(XA[tt]), c)
    def epi():
        A(f'''s_lshl_b32 s36, s33, 6
s_add_u32 s36, s36, s40
s_lshl_b32 s37, s36, 14
s_lshl_b32 s36, s36, 13
s_lshl_b32 s38, s32, 10
s_add_u32 s36, s36, s38
s_add_u32 s36, s36, {QFB}
s_add_u32 s46, s36, 4096
s_add_u32 s39, s37, s38
s_add_u32 s39, s39, {KVB}
s_add_u32 s47, s39, 4096
s_add_u32 s37, s39, s38
s_add_u32 s37, s37, 8192''')
        def pk(o, a, b):
            A(f'''v_cvt_pk_bf16_f32 v{o}, v{a}, v{a+1}
v_cvt_pk_bf16_f32 v{o+1}, v{a+2}, v{a+3}
v_cvt_pk_bf16_f32 v{o+2}, v{b}, v{b+1}
v_cvt_pk_bf16_f32 v{o+3}, v{b+2}, v{b+3}''')
        n = 0
        for m, so in (('q', (36, 46)), ('k', (39, 47))):
            for tt in range(2):
                o = PKB + 4 * n; n += 1
                pk(o, acc(m, 0, tt), acc(m, 1, tt))
                A(f'buffer_store_dwordx4 {vr(o)}, v{W_L16}, s[8:11], s{so[tt]} offen sc1')
        for T in range(2):
            o = PKB + 4 * n; n += 1
            pk(o, acc('v', T, 0), acc('v', T, 1))
            A(f'buffer_store_dwordx4 {vr(o)}, v{W_L16}, s[8:11], s37 offen offset:{T*1024} sc1')
    def fl(seg): A(f's_lshl_b32 s36, s33, 8\ns_lshl_b32 s37, s{seg}, 2\ns_add_u32 s36, s36, s37')
    def nxt():
        A('''s_add_u32 s36, s89, 10
s_cmp_lt_u32 s40, 10
s_cselect_b32 s41, s36, s41
s_add_u32 s36, s40, 3
s_cmp_lt_u32 s40, 3
s_cselect_b32 s41, s36, s41''')
    xf_loop(A, 'qkv', 7, 6, mfmas, epi, fl, flagks=5, nxt=nxt)
    prof(A, 4, 36, dbg=14)

def emit_gu(A, nsets):
    A('''s_load_dwordx4 s[16:19], s[0:1], 64
s_waitcnt lgkmcnt(0)
s_mov_b32 s20, s18
s_and_b32 s21, s19, 0xffff
s_mov_b32 s22, 1409024
s_mov_b32 s23, 0x20000
s_and_b32 s17, s17, 0xffff
s_mov_b32 s18, 1409024
s_mov_b32 s19, 0x20000
s_lshl_b32 s49, s48, 2
s_add_u32 s49, s49, s32
s_cmp_lt_u32 s49, 43
s_cselect_b32 s50, 1, 0
s_min_u32 s49, s49, 42
s_lshl_b32 s45, s49, 6''')
    voff_dmap(A, 2752)
    def frag(m, t, T):
        i = 2 * t + T; b = 128 * 'gu'.index(m) + 8 * i
        return f'a[{b}:{b+7}]'
    units = []
    for t in range(8):
        for m in 'gu':
            units.append(([({'g': 16, 'u': 20}[m], 45, drow(t, mp) * 2752) for mp in range(4)],
                          [[sub(frag(m, t, T), 2 * mp, 2) for T in range(2)] for mp in range(4)]))
    load_units(A, units)
    prof(A, 5, 36)
    ACC = 24; PKB = 72
    def acc(m, T, tt): return ACC + 4 * ('gu'.index(m) * 4 + T * 2 + tt)
    def mfmas(ks, XA):
        for m in 'gu':
            for T in range(2):
                w = sub(frag(m, ks >> 1, T), 4 * (ks & 1), 4)
                for tt in range(2):
                    d = vr(acc(m, T, tt)); c = '0' if ks == 0 else d
                    MFd(A, d, w, vr(XA[tt]), c)
    c1 = -2 * math.sqrt(2 / math.pi) * math.log2(math.e); c2 = c1 * 0.044715
    def epi():
        A(f'''s_mul_i32 s36, s40, {2*44*1024}
s_lshl_b32 s37, s49, 10
s_add_u32 s36, s36, s37
s_add_u32 s36, s36, {HFB}
s_add_u32 s37, s36, {44*1024}
s_mov_b32 s38, {f32bits(c2)}
v_mov_b32 v56, {f32bits(c1)}''')
        for tt in range(2):
            for T in range(2):
                g = acc('g', T, tt); u = acc('u', T, tt); t = 60
                for r in range(4): A(f'v_mul_f32 v{t+r}, v{g+r}, v{g+r}')
                for r in range(4): A(f'v_fma_f32 v{t+r}, v{t+r}, s38, v56')
                for r in range(4): A(f'v_mul_f32 v{t+r}, v{t+r}, v{g+r}')
                for r in range(4): A(f'v_exp_f32 v{t+r}, v{t+r}')
                for r in range(4): A(f'v_mul_f32 v{g+r}, v{g+r}, v{u+r}')
                for r in range(4): A(f'v_add_f32 v{t+r}, 1.0, v{t+r}')
                for r in range(4): A(f'v_rcp_f32 v{t+r}, v{t+r}')
                for r in range(4): A(f'v_mul_f32 v{g+r}, v{g+r}, v{t+r}')
                o = PKB + 4 * tt + 2 * T
                A(f'v_cvt_pk_bf16_f32 v{o}, v{g}, v{g+1}\nv_cvt_pk_bf16_f32 v{o+1}, v{g+2}, v{g+3}')
            A(f'buffer_store_dwordx4 {vr(PKB+4*tt)}, v{W_L16}, s[8:11], s{36+tt} offen sc1')
    def fl(seg): A(f's_lshl_b32 s36, s{seg}, 7\ns_add_u32 s36, s36, {FLAGS+F_H}')
    xf_loop(A, 'gu', nsets, 2, mfmas, epi, fl, active=50)
    prof(A, 6, 36)

def emit_att(A, stride):
    IDX, QW, TRA, B0, TMP = 4, 5, 6, 7, 8
    MF_ = [16 + 4 * i for i in range(8)]
    AK = [48, 52]; AV = [56, 60]
    KX = lambda tt, k: 64 + 16 * tt + 4 * k
    QX = lambda tt, k: 96 + 16 * tt + 4 * k
    VX = [128, 132]; KM = [136 + 4 * k for k in range(4)]
    S = {(0, 0): 152, (0, 1): 156, (1, 0): 160, (1, 1): 164, (1, 2): 168}
    PB = [172, 176]; PM = [180, 182]; VM = 184; ONES = 188; ONE2 = 192; NEG = 194
    LS = [196, 200]; O = lambda tt, T: 204 + 8 * tt + 4 * T
    OFR = [220, 224]
    L_M = 0; L_K = 8192
    A(f'''v_and_b32 v21, 8, v{W_LANE}
v_cmp_eq_u32 vcc, 0, v21
v_mov_b32 v22, 0xeeee
v_mov_b32 v23, 0x4444
v_cndmask_b32 v{IDX}, v22, v23, vcc
v_lshrrev_b32 v21, 5, v{W_LANE}
v_and_b32 v22, 15, v{W_LANE}
v_lshl_add_u32 v21, v21, 4, v22
v_lshlrev_b32 v21, 4, v21
v_bfe_u32 v22, v{W_LANE}, 4, 1
v_lshl_add_u32 v21, v22, 3, v21
s_lshl_b32 s38, s32, 9
v_add_u32 v{QW}, s38, v21
v_lshrrev_b32 v21, 2, v{W_LANE}
v_lshlrev_b32 v21, 4, v21
v_and_b32 v22, 1, v{W_LANE}
v_lshl_add_u32 v{TRA}, v22, 3, v21
s_lshl_b32 s53, s32, 11
v_add_u32 v{B0}, s53, v{W_L16}
s_mov_b32 s68, {f32bits(128 ** -0.5 * math.log2(math.e))}
v_mov_b32 v{ONES}, 0x3f803f80
v_mov_b32 v{ONES+1}, 0x3f803f80
v_mov_b32 v{ONES+2}, 0x3f803f80
v_mov_b32 v{ONES+3}, 0x3f803f80
s_mov_b32 s82, -1
s_mov_b32 s83, 0
v_cndmask_b32 v{ONE2}, 0, v{ONES}, s[82:83]
v_cndmask_b32 v{ONE2+1}, 0, v{ONES}, s[82:83]
v_mov_b32 v{NEG}, 0xf149f2ca
v_mov_b32 v{PB[0]+2}, 0
v_mov_b32 v{PB[0]+3}, 0
v_lshrrev_b32 v21, 4, v{W_LANE}
v_lshlrev_b32 v21, 2, v21
v_and_b32 v22, 15, v{W_LANE}''')
    for r in range(4):
        A(f'v_add_u32 v23, {r}, v21\nv_cmp_le_u32 s[{72+2*r}:{73+2*r}], v23, v22')
    A(f'''att_top:
s_lshl_b32 s37, s33, 8
s_lshl_b32 s38, s40, 2
s_add_u32 s37, s37, s38
v_mov_b32 v9, 0''')
    wait_cnt(A, 'att_kv', 8, 9, 's37', 4, 8, sleep=2)
    A(f'''s_lshl_b32 s36, s33, 6
s_add_u32 s36, s36, s40
s_lshl_b32 s37, s36, 14
s_lshl_b32 s36, s36, 13
s_add_u32 s36, s36, {QFB}
s_add_u32 s38, s36, 4096
s_add_u32 s37, s37, {KVB}
s_add_u32 s39, s37, 4096
s_add_u32 s46, s37, 8192''')
    for tt in range(2):
        for k in range(4):
            A(f'buffer_load_dwordx4 {vr(KX(tt,k))}, v{W_L16}, s[8:11], s{(37,39)[tt]} offen offset:{k*1024} sc1')
            A(f'buffer_load_dwordx4 {vr(QX(tt,k))}, v{W_L16}, s[8:11], s{(36,38)[tt]} offen offset:{k*1024} sc1')
    for T in range(2): A(f'buffer_load_dwordx4 {vr(VX[T])}, v{B0}, s[8:11], s46 offen offset:{T*1024} sc1')
    for a in AK + AV: A(f'v_mov_b64 v[{a}:{a+1}], 0\nv_mov_b64 v[{a+2}:{a+3}], 0')
    A('s_waitcnt vmcnt(0)')
    for k in range(4):
        for key in ((0, 1), (1, 1), (1, 2)):
            d = vr(S[key]); MFd(A, d, vr(KX(key[1] - 1, k)), vr(QX(key[0], k)), '0' if k == 0 else d)
    A(f'''s_lshl_b32 s47, s40, 13
s_add_u32 s47, s47, {GMEMB}
att_poll:
buffer_load_dwordx4 {vr(MF_[0])}, v{B0}, s[8:11], s47 offen sc1
buffer_load_dwordx4 {vr(MF_[1])}, v{B0}, s[8:11], s47 offen offset:1024 sc1
s_waitcnt vmcnt(0)
v_max3_u32 v8, v16, v17, v18
v_max3_u32 v8, v8, v19, v20
v_max3_u32 v8, v8, v21, v22
v_max_u32 v8, v8, v23
v_cmp_eq_u32 vcc, -1, v8
s_cbranch_vccz att_ok
s_sleep 1
s_sub_u32 s35, s35, 1
s_cbranch_scc0 att_poll
s_mov_b32 s35, 0
att_ok:
ds_write_b128 v{B0}, {vr(MF_[0])} offset:{L_M}
ds_write_b128 v{B0}, {vr(MF_[1])} offset:{L_M+1024}
s_waitcnt lgkmcnt(0)
s_barrier''')
    A.lds_q = []
    for t in range(8): A.ds(f'ds_read_b128 {vr(MF_[t])}, v{W_L16} offset:{L_M + t*1024}', f'm{t}')
    def SM(acc, t, m, T): A(f'v_smfmac_f32_16x16x64_bf16 {vr(acc)}, {vr(MF_[t])}, {qkv_frag(m,t,T)}, v{IDX}')
    for t in range(8):
        A.wait_lds(f'm{t}')
        SM(AK[0], t, 'k', 0); SM(AK[1], t, 'k', 1)
    fold = [f'v_permlane32_swap_b32 v{AK[0]+r}, v{AK[1]+r}' for r in range(4)] + [f'v_add_f32 v{AK[0]+r}, v{AK[0]+r}, v{AK[1]+r}' for r in range(4)]
    fold += [f'v_cvt_pk_bf16_f32 v8, v{AK[0]}, v{AK[0]+1}', f'v_cvt_pk_bf16_f32 v9, v{AK[0]+2}, v{AK[0]+3}']
    n = 0
    for t in range(8):
        for T in range(2):
            SM(AV[T], t, 'v', T); n += 1
            if 3 <= n <= 7: A(fold[2*(n-3)]); A(fold[2*(n-3)+1])
            if n == 8: A.ds(f'ds_write_b64 v{QW}, v[8:9] offset:{L_K}', 'kw')
            if n == 12:
                A.wait_lds('kw'); A('s_barrier')
            if n >= 13:
                k = n - 13
                for hf in range(2): A.ds(f'ds_read_b64_tr_b16 {vr(KM[k]+2*hf,2)}, v{TRA} offset:{L_K + k*512 + hf*256}', f'km{k}')
    for key in ((0, 1), (1, 2)):
        for r in range(4): A(f'v_cndmask_b32 v{S[key]+r}, v{NEG}, v{S[key]+r}, s[{72+2*r}:{73+2*r}]')
    for k in range(4):
        A.wait_lds(f'km{k}')
        for tt in range(2):
            d = vr(S[(tt, 0)]); MFd(A, d, vr(KM[k]), vr(QX(tt, k)), '0' if k == 0 else d)
    for T in range(2):
        A(f'v_cvt_pk_bf16_f32 v{VM+2*T}, v{AV[T]}, v{AV[T]+1}\nv_cvt_pk_bf16_f32 v{VM+2*T+1}, v{AV[T]+2}, v{AV[T]+3}')
    A(f'''s_lshl_b32 s36, s40, 18
s_lshl_b32 s37, s33, 12
s_add_u32 s36, s36, s37
s_lshl_b32 s37, s32, 10
s_add_u32 s36, s36, s37
s_add_u32 s36, s36, {OFB}
s_add_u32 s37, s36, 0x20000''')
    for tt in range(2):
        regs = [S[k] + r for k in S if k[0] == tt for r in range(4)]
        m = 8 + 2 * tt; t1 = m + 1
        A(f'v_max3_f32 v{m}, v{regs[0]}, v{regs[1]}, v{regs[2]}')
        i = 3
        while i + 1 < len(regs):
            A(f'v_max3_f32 v{m}, v{m}, v{regs[i]}, v{regs[i+1]}'); i += 2
        A(f'''v_max_f32 v{m}, v{m}, v{regs[i]}
v_mov_b32 v{t1}, v{m}
v_permlane32_swap_b32 v{m}, v{t1}
v_max_f32 v{m}, v{m}, v{t1}
v_mov_b32 v{t1}, v{m}
v_permlane16_swap_b32 v{m}, v{t1}
v_max_f32 v{m}, v{m}, v{t1}
v_mul_f32 v{m}, s68, v{m}''')
        for r in regs: A(f'v_fma_f32 v{r}, v{r}, s68, -v{m}')
        for r in regs: A(f'v_exp_f32 v{r}, v{r}')
        for key in S:
            if key[0] != tt: continue
            o = PM[tt] if key[1] == 0 else PB[tt] + 2 * (key[1] - 1)
            A(f'v_cvt_pk_bf16_f32 v{o}, v{S[key]}, v{S[key]+1}\nv_cvt_pk_bf16_f32 v{o+1}, v{S[key]+2}, v{S[key]+3}')
        MFd(A, vr(LS[tt]), vr(ONES), vr(PB[tt]), '0')
        for T in range(2): MFd(A, vr(O(tt, T)), vr(VX[T]), vr(PB[tt]), '0')
        A(f'v_mfma_f32_16x16x16_bf16 {vr(LS[tt])}, {vr(ONE2,2)}, {vr(PM[tt],2)}, {vr(LS[tt])}')
        for T in range(2): A(f'v_mfma_f32_16x16x16_bf16 {vr(O(tt,T))}, {vr(VM+2*T,2)}, {vr(PM[tt],2)}, {vr(O(tt,T))}')
    for tt in range(2):
        A(f'v_rcp_f32 v12, v{LS[tt]}')
        for T in range(2):
            o = O(tt, T)
            for r in range(4): A(f'v_mul_f32 v{o+r}, v{o+r}, v12')
            A(f'v_cvt_pk_bf16_f32 v{OFR[tt]+2*T}, v{o}, v{o+1}\nv_cvt_pk_bf16_f32 v{OFR[tt]+2*T+1}, v{o+2}, v{o+3}')
        A(f'buffer_store_dwordx4 {vr(OFR[tt])}, v{W_L16}, s[8:11], s{36+tt} offen sc1')
    A(f'''s_waitcnt vmcnt(0)
s_barrier
s_cmp_lg_u32 s32, 0
s_cbranch_scc1 att_nf
s_lshl_b32 s36, s40, 7
s_add_u32 s36, s36, {FLAGS+F_O}''')
    atomic_flag(A, 's36', 8)
    A('att_nf:')
    prof(A, 16, 10, 40)
    A(f'''s_add_u32 s40, s40, {stride}
s_cmp_lt_u32 s40, 64
s_cbranch_scc1 att_top''')

def emit_out(A, nsets):
    A('''s_load_dwordx2 s[4:5], s[0:1], 40
s_load_dwordx4 s[20:23], s[0:1], 80
s_load_dwordx2 s[6:7], s[0:1], 0
s_waitcnt lgkmcnt(0)''')
    srd(A, 16, 4, 0x400000)
    srd(A, 24, 22, 0x200000)
    A('s_and_b32 s21, s21, 0xffff\ns_mov_b32 s22, 1409024\ns_mov_b32 s23, 0x20000')
    srd(A, 28, 6, 0x200000)
    A(f'''v_bfe_u32 v21, v{W_LANE}, 1, 4
v_lshlrev_b32 v21, 10, v21
v_lshrrev_b32 v22, 5, v{W_LANE}
v_lshl_add_u32 v21, v22, 5, v21
v_and_b32 v22, 1, v{W_LANE}
v_lshl_add_u32 v{W_VO}, v22, 4, v21
s_lshl_b32 s37, s48, 6
s_lshl_b32 s45, s32, 20
s_add_u32 s45, s45, s37
s_lshl_b32 s46, s32, 15
s_add_u32 s46, s46, s37''')
    def wo(ks, T): return ar(8 * ks + 4 * T)
    def wd(i, T): return vr(168 + 8 * i + 4 * T)
    units = []
    for u in range(6):
        dm = []; de = []
        for mp in range(4):
            i = 2 * u + (mp >> 1); m2 = mp & 1
            dm.append((20, 46, (128 * i + 16 * m2) * 1024))
            de.append([sub(wd(i, T) if i < 11 else vr(32 + 4 * T), 2 * m2, 2) for T in range(2)])
        units.append((dm, de))
    for u in range(16):
        dm = []; de = []
        for mp in range(4):
            ks = 2 * u + (mp >> 1); m2 = mp & 1
            dm.append((16, 45, (32 * ks + 16 * m2) * 1024))
            de.append([sub(wo(ks, T), 2 * m2, 2) for T in range(2)])
        units.append((dm, de))
    load_units(A, units)
    prof(A, 7, 36)
    ACC = [16, 20]; XR = 24; BF = 32; RW = 4; OA = 5
    A(f'''s_lshl_b32 s36, s32, 11
v_add_u32 v{RW}, s36, v{W_L16}
v_and_b32 v21, 15, v{W_LANE}
v_lshlrev_b32 v21, 10, v21
v_lshrrev_b32 v22, 4, v{W_LANE}
v_lshl_add_u32 v21, v22, 3, v21
s_lshl_b32 s36, s48, 6
s_lshl_b32 s37, s32, 5
s_add_u32 s36, s36, s37
v_add_u32 v{OA}, s36, v21
s_lshl_b32 s36, s32, 10
v_add_u32 v6, s36, v{W_L16}
v_mov_b32 v9, 0
out_top:
s_lshr_b32 s41, s40, 1
s_lshl_b32 s42, s41, 7
s_cmp_lg_u32 s32, 0
s_cbranch_scc1 out_h_ok
s_add_u32 s37, s42, {FLAGS+F_H}''')
    wait_cnt(A, 'out_h', 8, 9, 's37', 43, 8, sleep=2)
    A(f'''s_barrier
s_mul_i32 s43, s40, {44*1024}
s_add_u32 s43, s43, {HFB}''')
    for i in range(11):
        A(f's_add_u32 s36, s32, {4*i}\ns_min_u32 s36, s36, 42\ns_lshl_b32 s36, s36, 10\ns_add_u32 s36, s36, s43')
        A(f'buffer_load_dwordx4 {vr(BF+4*i)}, v{W_L16}, s[8:11], s36 offen sc1')
    A(f's_lshl_b32 s44, s40, 14\nbuffer_load_dwordx2 {vr(XR,2)}, v{OA}, s[28:31], s44 offen')
    for i in range(11):
        A(f's_waitcnt vmcnt({11-i})')
        for T in range(2): MFd(A, vr(ACC[T]), wd(i, T), vr(BF + 4 * i), '0' if i == 0 else vr(ACC[T]))
    A(f'''s_cmp_lg_u32 s32, 0
s_cbranch_scc1 out_o_ok
s_add_u32 s37, s42, {FLAGS+F_O}''')
    wait_cnt(A, 'out_o', 8, 9, 's37', 32, 8, sleep=1)
    A(f'''s_barrier
s_lshl_b32 s36, s40, 17
s_lshl_b32 s37, s32, 15
s_add_u32 s36, s36, s37
s_add_u32 s36, s36, {OFB}''')
    for i in range(32):
        A(f'buffer_load_dwordx4 {vr(BF+4*i)}, v{W_L16}, s[8:11], s36 offen offset:{(i&3)*1024} sc1')
        if i & 3 == 3: A('s_add_u32 s36, s36, 4096')
    for i in range(32):
        A(f's_waitcnt vmcnt({31-i})')
        for T in range(2): MFd(A, vr(ACC[T]), wo(i, T), vr(BF + 4 * i), vr(ACC[T]))
    A(f'''ds_write_b128 v{RW}, {vr(ACC[0])}
ds_write_b128 v{RW}, {vr(ACC[1])} offset:1024
s_waitcnt lgkmcnt(0)
s_barrier
s_cmp_ge_u32 s32, 2
s_cbranch_scc1 out_next''')
    for w in range(4): A(f'ds_read_b128 {vr(BF+4*w)}, v6 offset:{w*2048}')
    A(f'''v_lshlrev_b32 v26, 16, v{XR}
v_and_b32 v27, 0xffff0000, v{XR}
v_lshlrev_b32 v28, 16, v{XR+1}
v_and_b32 v29, 0xffff0000, v{XR+1}
s_waitcnt lgkmcnt(0)''')
    for r in range(4):
        A(f'v_add_f32 v{BF+r}, v{BF+r}, v{BF+4+r}\nv_add_f32 v{BF+8+r}, v{BF+8+r}, v{BF+12+r}')
    for r in range(4):
        A(f'v_add_f32 v{BF+r}, v{BF+r}, v{BF+8+r}\nv_add_f32 v{BF+r}, v{BF+r}, v{26+r}')
    A(f'''v_cvt_pk_bf16_f32 v30, v{BF}, v{BF+1}
v_cvt_pk_bf16_f32 v31, v{BF+2}, v{BF+3}
buffer_store_dwordx2 v[30:31], v{OA}, s[24:27], s44 offen
out_next:''')
    prof(A, 16, 10, 41)
    A(f'''s_add_u32 s40, s40, {nsets}
s_cmp_lt_u32 s40, 128
s_cbranch_scc1 out_top''')

NAME = 'parallel_sum__memory_aug_recurrent_mem_tr__geglu_ffn__prompt_kernel'

def gen_full(profile=False, warm=2, wb=1, badguess=0, codepf=0, claim='bitmap', warmws=1, thr=6, wlo=3, **ckw):
    PROF['on'] = profile
    A = Asm()
    A.raw(f'; @launch kernel={NAME} grid=(256,1,1) block=(256,1,1) lds=163840')
    A.raw('.amdgcn_target "amdgcn-amd-amdhsa--gfx950"')
    A.raw(f'.text\n.globl {NAME}\n.p2align 8\n.type {NAME},@function')
    A.label(NAME)
    A('s_cmp_ge_u32 s2, 256\ns_cbranch_scc1 L_end')
    if ckw.get('trip') or profile: A('s_memrealtime s[98:99]')
    if codepf:
        A(f'''s_getpc_b64 s[6:7]
L_pc0:
s_lshr_b32 s4, s2, 3
s_and_b32 s4, s4, 3
s_lshl_b32 s4, s4, 14
v_lshlrev_b32 v2, 6, v0
v_add_u32 v2, s4, v2
v_min_u32 v2, L_end-L_pc0, v2
global_load_dword v127, v2, s[6:7]''')
    common_entry(A)
    if claim == 'bitmap':
        claim_body = '''s_lshl_b32 s39, 1, s37
v_mov_b32 v4, s39
buffer_atomic_or v4, v3, s[12:15], 0 offen sc0 sc1
s_waitcnt vmcnt(0)
v_readfirstlane_b32 s39, v4
s_bitcmp0_b32 s39, s37
s_cbranch_scc1 L_claimed
s_ff0_i32_b32 s37, s39
s_cmp_ge_i32 s37, 0
s_cbranch_scc1 L_claim'''
    else:
        claim_body = '''v_mov_b32 v4, 1
buffer_atomic_add v4, v3, s[12:15], 0 offen sc0 sc1
s_waitcnt vmcnt(0)
v_readfirstlane_b32 s37, v4
s_cmp_lt_u32 s37, 32
s_cbranch_scc1 L_claimed'''
    A(f'''s_and_b32 s3, s3, 7
s_lshr_b32 s36, s2, 3
s_lshl_b32 s94, s3, 5
s_add_u32 s94, s94, s36
{"s_and_b32 s94, s2, 0xf0" if badguess else ""}
s_mov_b32 s95, 0
s_mov_b32 s96, s3
s_cmp_lg_u32 s32, 0
s_cbranch_scc1 L_first
s_mov_b64 exec, 1
s_lshr_b32 s36, s94, 5
s_and_b32 s37, s94, 31
s_mov_b32 s38, 0
L_claim:
s_lshl_b32 s39, s36, 2
s_cmp_eq_u32 s36, 0
s_cselect_b32 s39, {DBG_CTICKET}, s39
v_mov_b32 v3, s39
s_cbranch_scc0 L_claim2
s_cmp_eq_u32 s96, 0
s_cbranch_scc1 L_claim2
v_mov_b32 v4, 1
buffer_atomic_add v4, v3, s[12:15], 0 offen offset:4 sc0 sc1
s_waitcnt vmcnt(0)
L_claim2:
{claim_body}
s_mov_b32 s37, 0
s_add_u32 s38, s38, 1
s_add_u32 s36, s36, 1
s_cmp_le_u32 s36, 7
s_cselect_b32 s36, s36, 1
s_cmp_ge_u32 s38, 8
s_cselect_b32 s36, 0, s36
s_cmp_le_u32 s38, 8
s_cbranch_scc1 L_claim
s_mov_b32 s36, 8
L_claimed:
s_lshl_b32 s36, s36, 5
s_add_u32 s36, s36, s37
v_mov_b32 v3, {L_SLOT}
v_mov_b32 v4, s36
ds_write_b32 v3, v4
s_waitcnt lgkmcnt(0)
s_mov_b64 exec, -1
L_first:''')
    if claim != 'bitmap': confirm(A, 'L_conf0')
    A(f'''L_role:
s_cmp_ge_u32 s94, 256
s_cbranch_scc1 L_end
v_mbcnt_lo_u32_b32 v0, -1, 0
v_mbcnt_hi_u32_b32 v0, -1, v0
s_lshr_b32 s3, s94, 5
s_and_b32 s33, s94, 31
s_lshl_b32 s91, s94, 9
s_add_u32 s91, s91, 0x6000000''')
    prof(A, 0, 36, dbg=8)
    if profile is True: A('v_mov_b32 v36, s98\nbuffer_store_dword v36, off, s[8:11], s91 offset:60')
    A('''s_cmp_lg_u32 s3, 0
s_cbranch_scc1 L_worker''')
    emit_chain(A, gate=True, **ckw)
    if wb: A('s_waitcnt vmcnt(0)\ns_cmp_lg_u32 s32, 0\ns_cbranch_scc1 L_end\ns_cmp_lg_u32 s33, 0\ns_cbranch_scc1 L_end\nbuffer_wbl2 sc1')
    A('s_endpgm\nL_worker:')
    worker_setup(A)
    A('''s_sub_u32 s88, s3, 1
s_lshl_b32 s88, s88, 5
s_add_u32 s88, s88, s33          ; wi
s_mul_i32 s33, s88, 9363
s_lshr_b32 s33, s33, 16          ; h = wi/7
s_mul_i32 s36, s33, 7
s_sub_u32 s89, s88, s36          ; r = wi%7
''')
    if warm:
        A(f's_cmp_ge_u32 s89, 5\ns_cbranch_scc1 L_ln\ns_cmp_lt_u32 s89, {wlo}\ns_cbranch_scc1 L_noln')
        emit_warm(A, '' if warm == 2 else 'nt', warmws, thr, wlo)
        A('s_branch L_noln\nL_ln:')
    A('''s_cmp_lt_u32 s89, 5
s_cbranch_scc1 L_noln
s_lshl_b32 s90, s33, 1
s_add_u32 s90, s90, s89
s_sub_u32 s90, s90, 5''')
    emit_ln(A, 90)
    A('L_noln:\ns_add_u32 s40, s89, 5\ns_add_u32 s36, s89, 1\ns_cmp_ge_u32 s89, 5\ns_cselect_b32 s40, s36, s40\ns_cmp_lt_u32 s89, 3\ns_cselect_b32 s40, s89, s40')
    prof(A, 1, 36)
    emit_qkv(A)
    A('''s_cmp_lt_u32 s89, 5
s_cbranch_scc1 L_gu
s_sub_u32 s40, s89, 5''')
    emit_att(A, 2)
    A('''s_endpgm
L_gu:
s_mul_i32 s90, s33, 5
s_add_u32 s90, s90, s89          ; oi
s_cmp_ge_u32 s90, 154
s_cbranch_scc1 L_out
s_mul_i32 s40, s90, 5958
s_lshr_b32 s40, s40, 16
s_mul_i32 s36, s40, 11
s_sub_u32 s48, s90, s36''')
    emit_gu(A, 14)
    A('''L_out:
s_lshr_b32 s40, s90, 4
s_and_b32 s48, s90, 15''')
    emit_out(A, 10)
    if PROF['on'] == 'dbg': prof(A, 0, 36, dbg=12)
    A('L_end:\ns_endpgm')
    A.raw('.section .rodata,"a"\n.p2align 6')
    A.raw(kd(NAME))
    return A.text()

if __name__ == '__main__':
    assert all((w * 9363) >> 16 == w // 7 for w in range(224)) and all((w * 5958) >> 16 == w // 11 for w in range(160))
    hdr = open('parallel_sum__memory_aug_recurrent_mem_tr__geglu_ffn__prompt.s.ref').read().split('; Override')[0]
    kw = dict(dB0=16, dA=16, b1pos=7, kfs=6, gB=48, gA=48)
    open('full.s', 'w').write(hdr + gen_full(**kw))
    open('diag.s', 'w').write(hdr + gen_full(profile='dbg', **kw))
    open('diag2.s', 'w').write(hdr + gen_full(profile='dbg', wb=0, **kw))
    for i, ex in enumerate(eval(sys.argv[1]) if len(sys.argv) > 1 else []):
        k2 = dict(kw); k2.update(ex)
        open(f'var{i}.s', 'w').write(hdr + gen_full(**k2))
        open(f'var{i}_dbg.s', 'w').write(hdr + gen_full(profile='dbg', **k2))
        open(f'var{i}_prof.s', 'w').write(hdr + gen_full(profile=True, **k2))
    open('full_prof.s', 'w').write(hdr + gen_full(profile=True, **kw))
```

```python
import sys, math, struct
sys.path.insert(0, 'dev')
from asmlib import Asm

FLAGS = 0x0000000
MEMB  = 0x0070000
HINTB = 0x0068000
PARTB = 0x0100000
GMEMB = 0x0080000
XFB   = 0x0200000
QFB   = 0x1000000
KVB   = 0x2000000
OFB   = 0x4000000
HFB   = 0x5000000
WS_BYTES = 0x10000000
DBG_TICKET = 0
DBG_XNCNT = 192
DBG_CTICKET = 128
L_SLOT = 163836
F_RB = 0x3000; F_XN = 0x2000; F_H = 0x4000; F_O = 0x6000

def f32bits(x): return struct.unpack('<I', struct.pack('<f', x))[0]

def vr(b, n=4): return f'v[{b}:{b+n-1}]'

def srd(A, s, ptr_lo, nbytes):
    A(f'''s_mov_b32 s{s}, s{ptr_lo}
s_and_b32 s{s+1}, s{ptr_lo+1}, 0xffff
s_mov_b32 s{s+2}, {nbytes}
s_mov_b32 s{s+3}, 0x20000''')

PROFB = 0x6000000
PROF = {'on': False, 'n': 0}
def prof(A, idx, vt=None, sidx=None, cyc=False, dbg=None):
    if PROF['on'] == 'dbg':
        if dbg is None: return
        PROF['n'] += 1; l = f"prof_{PROF['n']}"
        A(f'''s_cmp_lg_u32 s32, 0
s_cbranch_scc1 {l}
s_memrealtime s[92:93]
s_waitcnt lgkmcnt(0)
{"s_mov_b32 s92, s98" if dbg == 8 else ""}
s_and_b32 s92, s92, 0x3fffffff
{"s_not_b32 s92, s92" if dbg == 8 else ""}
s_mov_b64 exec, 1
v_mov_b32 v{vt}, s92
v_mov_b32 v{vt+1}, {dbg*4}
buffer_atomic_umax v{vt}, v{vt+1}, s[12:15], 0 offen sc1
s_mov_b64 exec, -1
{l}:''')
        return
    if not PROF['on']: return
    PROF['n'] += 1; l = f"prof_{PROF['n']}"
    A(f'''s_cmp_lg_u32 s32, 0
s_cbranch_scc1 {l}
s_memrealtime s[92:93]
s_memtime s[100:101]
s_waitcnt lgkmcnt(0)
{"s_bitcmp1_b32 s33, 0" + chr(10) + "s_cselect_b32 s92, s100, s92" if cyc else ""}
s_mov_b64 exec, 1
v_mov_b32 v{vt}, s92
v_mov_b32 v{vt+1}, 0''')
    if sidx is None: A(f's_add_u32 s93, s91, {idx*4}')
    else: A(f's_lshl_b32 s93, s{sidx}, 2\ns_add_u32 s93, s93, s91\ns_add_u32 s93, s93, {idx*4}')
    A(f'''buffer_store_dword v{vt}, v{vt+1}, s[8:11], s93 offen
s_mov_b64 exec, -1
{l}:''')

def wait_cnt(A, lbl, srdn, voff, soff, target, vt, sleep=0):
    A(f'''{lbl}:
buffer_load_dword v{vt}, v{voff}, s[{srdn}:{srdn+3}], {soff} offen sc1
s_waitcnt vmcnt(0)
v_readfirstlane_b32 s39, v{vt}
s_and_b32 s36, s39, 0xffff
s_cmp_ge_u32 s36, {target}
s_cbranch_scc1 {lbl}_ok
{f"s_sleep {sleep}" if sleep else ""}
s_sub_u32 s35, s35, 1
s_cbranch_scc0 {lbl}
s_mov_b32 s35, 0
{lbl}_ok:''')

def wait_dbg(A, lbl, off, target, vt, va):
    A(f'v_mov_b32 v{va}, {off}')
    wait_cnt(A, lbl, 12, va, 0, target, vt, sleep=2)

def confirm(A, lbl):
    A(f'''s_cmp_lg_u32 s95, 0
s_cbranch_scc1 {lbl}
s_mov_b32 s95, 1
s_barrier
v_mov_b32 v14, {L_SLOT}
ds_read_b32 v14, v14
s_waitcnt lgkmcnt(0)
v_readfirstlane_b32 s36, v14
s_barrier
s_cmp_eq_u32 s36, s94
s_cbranch_scc1 {lbl}
s_mov_b32 s94, s36
s_waitcnt vmcnt(0)
s_barrier
s_branch L_role
{lbl}:''')

L_MEM = 0; L_OQK = 8192; L_KV = 16384; L_W = 49152; L_WSZ = 28672
V_L16, V_IDX, V_PST, V_SELV, V_MST, V_QW, V_TR, V_B0, V_B1, V_B2, V_B3, V_WV = range(12)
T0, T1, T2, T3 = 12, 13, 14, 15
M = [16, 20, 24, 36, 28, 40, 32, 44]
AQ0, AQ1, AK0, AK1, AV0, AV1 = 48, 52, 56, 60, 64, 68
P = [72 + 8 * i for i in range(5)]
VB = [V_B0, V_B1, V_B2, V_B3]


def chain_frag_map():
    units = [(m, t) for m in 'qkv' for t in range(8)] + [('o', k, u) for k in range(4) for u in range(2)]
    backed = [('v', 0), ('v', 1), ('k', 0), ('k', 1), ('o', 1, 1), ('o', 2, 1), ('o', 3, 1)]
    res = [u for u in units if u not in backed]
    order = [(m, t) for m in 'kvq' for t in (0, 2, 1, 3, 4, 6, 5, 7)] + [('o', k, u) for u in range(2) for k in range(4)]
    assert sorted(map(str, order)) == sorted(map(str, units))
    loc = {}
    regs = [f'a[{8*i}:{8*i+7}]' for i in range(32)] + [f'v[{112+8*i}:{112+8*i+7}]' for i in range(18)]
    k = 0
    for u in res:
        for T in range(2):
            loc[u + (T,)] = ('reg', regs[k]); k += 1
    assert k == 50
    for i, u in enumerate(backed):
        for T in range(2):
            loc[u + (T,)] = ('lds', i, T)
    return loc, order

def sub(reg, lo, n):
    c = reg[0]; b = int(reg[2:reg.index(':')])
    return f'{c}[{b+lo}:{b+lo+n-1}]'

def emit_chain(A, sc='', tag='c', nsteps=63, gate=False, stamps=False, dB0=0, dB1=0, dA=0, nokv=0, nocomm=0, stsel=None, abl=(),
               prepos=20, depth=6, early1=1, nB=2, gB=24, dmapos=(8, 11, 14, 17), respos=(22, 29), reppos=25, b1pos=5, pf='sc1', dm='sc1', b3k=1, kfs=5, b2pos=42, wpol='', unroll=1, cpre=1, touch=1, swz=5, noB5=0, dI=0, budget=4000000, repidle=0, nA=2, gA=32, midA=2, hint=0, gH=12, pmid=None, look=6, pre0=4, adapt=0, pfast=2, qre=0, slp=1, fullst=0, trip=None, tpos=1):
    loc, order = chain_frag_map()
    sc = (' ' + sc) if sc else ''
    A(f"""
s_load_dwordx4 s[16:19], s[0:1], 16
s_load_dwordx4 s[24:27], s[0:1], 32
s_load_dwordx2 s[4:5], s[0:1], 8
v_and_b32 v20, 63, v0                 ; lane
v_lshlrev_b32 v{V_L16}, 4, v20
s_mul_i32 s52, s32, {L_WSZ}
s_add_u32 s52, s52, {L_W}
s_mul_i32 s53, s32, 12288
v_bfe_u32 v21, v20, 4, 1               ; g>>1
v_bfe_u32 v22, v20, 3, 1               ; g&1
v_bfe_u32 v23, v20, 2, 1               ; R>>1
v_bfe_u32 v24, v20, 1, 1               ; R&1
v_and_b32 v25, 1, v20                  ; p
v_lshrrev_b32 v26, 5, v20              ; T
v_lshlrev_b32 v27, 3, v21
v_lshl_add_u32 v27, v22, 1, v27
v_lshl_add_u32 v27, v23, 2, v27
v_lshl_add_u32 v27, v24, 5, v27
v_lshlrev_b32 v27, 13, v27
v_lshl_add_u32 v27, v26, 5, v27
v_lshl_add_u32 v32, v25, 4, v27
v_lshlrev_b32 v27, 4, v22
v_lshl_add_u32 v27, v21, 2, v27
v_add_u32 v27, v27, v24
v_lshlrev_b32 v27, 10, v27
v_lshl_add_u32 v27, v26, 6, v27
v_lshl_add_u32 v27, v23, 5, v27
v_lshl_add_u32 v33, v25, 4, v27
v_lshlrev_b32 v27, 3, v20
v_add_u32 v34, s52, v27
v_add_u32 v35, s53, v27
s_lshl_b32 s36, s33, 8
s_lshl_b32 s37, s32, 6
s_add_u32 s36, s36, s37                ; h*256+w*64
s_lshl_b32 s37, s32, 1
""")
    for tau in range(8):
        A(f's_xor_b32 s38, s37, {tau}\ns_lshl_b32 s38, s38, 19\ns_add_u32 s{40+tau}, s38, s36')
    A('s_lshl_b32 s36, s33, 17\ns_lshl_b32 s37, s32, 8\ns_add_u32 s36, s36, s37')
    for k in range(4):
        A(f's_xor_b32 s38, s32, {k}\ns_lshl_b32 s38, s38, 15\ns_add_u32 s{48+k}, s38, s36')
    A(f"""
s_lshr_b32 s36, s33, 3
s_lshl_b32 s36, s36, 4
s_and_b32 s37, s32, 1
s_lshl_b32 s37, s37, 3
s_add_u32 s36, s36, s37
s_and_b32 s39, s33, 7
s_add_u32 s37, s36, s39
s_lshl_b32 s61, s37, 7                 ; Gm*128
v_lshrrev_b32 v21, 4, v20
v_bfe_u32 v22, v20, 2, 1
v_lshl_add_u32 v21, v21, 1, v22
v_lshlrev_b32 v23, 4, v21
v_and_b32 v22, 3, v20
v_lshl_add_u32 v23, v22, 2, v23
v_add_u32 v{V_MST}, s61, v23
v_lshlrev_b32 v24, 10, v21
v_lshl_add_u32 v24, v22, 1, v24
s_lshl_b32 s36, s36, 4
s_lshl_b32 s39, s39, 3
s_add_u32 s39, s36, s39
s_waitcnt lgkmcnt(0)
s_mov_b32 s20, s18
s_and_b32 s21, s19, 0xffff
s_mov_b32 s22, 0x400000
s_mov_b32 s23, 0x20000
s_and_b32 s17, s17, 0xffff
s_mov_b32 s18, 0x400000
s_mov_b32 s19, 0x20000
s_mov_b32 s28, s26
s_and_b32 s29, s27, 0xffff
s_mov_b32 s30, 0x400000
s_mov_b32 s31, 0x20000
s_and_b32 s25, s25, 0xffff
s_mov_b32 s26, 0x400000
s_mov_b32 s27, 0x20000
""")
    srd(A, 84, 4, 8192)
    A('buffer_load_ushort v38, v24, s[84:87], s39 offen\nbuffer_load_ushort v39, v24, s[84:87], s39 offen offset:64')
    NU = len(order)
    fin = {n: loc[order[n] + (0,)][1] for n in range(NU) if loc[order[n] + (0,)][0] == 'lds'}
    slot_of = {}; issue_at = {}; busy = {}; state = {'nxt': 0}
    def try_issue(now):
        while state['nxt'] < NU and state['nxt'] - now <= (pre0 if now < 0 else depth):
            nxt = state['nxt']
            if nxt in fin: cand = [fin[nxt]] if fin[nxt] not in busy else []
            else:
                soon = {fin[m] for m in fin if nxt < m <= nxt + look}
                cand = [s_ for s_ in (7, 8, 9, 0, 1, 2, 3, 4, 5, 6) if s_ not in busy and s_ not in soon and not (s_ == 6 and now < 0)]
            if not cand: break
            busy[cand[0]] = nxt; slot_of[nxt] = cand[0]; issue_at[nxt] = now; state['nxt'] += 1
    try_issue(-1)
    for n in range(NU):
        if n >= 1 and (n - 1) not in fin: del busy[slot_of[n - 1]]
        try_issue(n)
        assert n + 1 >= NU or (n + 1) in slot_of, n
    if tag == 'dbg': print([(n, slot_of[n], issue_at[n]) for n in range(NU)])
    def issue(n):
        u = order[n]; sl = slot_of[n]
        for mp in range(4):
            if sl < 7: A(f's_add_u32 m0, s52, {sl*4096 + mp*1024}')
            else: A(f's_add_u32 m0, s53, {(sl-7)*4096 + mp*1024}')
            if u[0] == 'o':
                A(f's_add_u32 s38, s{48+u[1]}, {(8*(mp>>1)+2*(mp&1))*1024 + 128*u[2]}')
                A(f'buffer_load_dwordx4 v33, s[28:31], s38 offen {wpol} lds')
            else:
                base = {'q': 16, 'k': 20, 'v': 24}[u[0]]
                A(f's_add_u32 s38, s{40+u[1]}, {(16*(mp>>1)+(mp&1))*8192}')
                A(f'buffer_load_dwordx4 v32, s[{base}:{base+3}], s38 offen {wpol} lds')
    npre = 0
    for m in range(NU):
        if issue_at[m] == -1: issue(m); npre += 4
    if gate: confirm(A, f'{tag}_conf')
    A(f"""
s_mov_b32 s35, {budget}
s_lshl_b32 s36, s32, 11                ; w*2048
v_add_u32 v{V_B0}, s36, v{V_L16}
v_xor_b32 v{V_B1}, 2048, v{V_B0}
v_xor_b32 v{V_B2}, 4096, v{V_B0}
v_xor_b32 v{V_B3}, 6144, v{V_B0}
s_add_u32 s54, s36, {MEMB}             ; sMemRd
s_mov_b32 s55, {MEMB + 8192}           ; sMemWr
s_mov_b32 s56, {GMEMB}
v_add_u32 v{V_WV}, s52, v{V_L16}
v_and_b32 v21, 8, v20
v_cmp_eq_u32 vcc, 0, v21
v_mov_b32 v22, 0xeeee
v_mov_b32 v23, 0x4444
v_cndmask_b32 v{V_IDX}, v22, v23, vcc
s_mov_b32 s80, 0x00ff00ff
s_mov_b32 s81, 0x00ff00ff
v_lshrrev_b32 v21, 5, v20
v_bfe_u32 v22, v20, 2, 2
v_lshl_add_u32 v21, v21, 2, v22
v_lshlrev_b32 v21, 12, v21
v_bfe_u32 v22, v20, 4, 1
v_lshl_add_u32 v21, v22, 6, v21
v_and_b32 v22, 3, v20
v_lshl_add_u32 v21, v22, 4, v21
s_lshl_b32 s36, s32, 15
v_add_u32 v21, s36, v21
v_lshrrev_b32 v22, 12, v21
v_mul_u32_u24 v22, {swz}, v22
v_add_u32 v22, s33, v22
v_and_b32 v22, 31, v22
v_lshl_add_u32 v{V_PST}, v22, 7, v21
s_mov_b32 s60, 0                       ; part slot offset
s_mov_b32 s58, {PARTB}
s_mov_b32 s59, {PARTB + 0x20000}
; reducer G = 32*(w&1)+h
s_and_b32 s36, s32, 1
s_lshl_b32 s36, s36, 5
s_add_u32 s36, s36, s33
s_lshl_b32 s37, s36, 12
s_add_u32 s62, s37, {PARTB}
s_mov_b32 s63, s62
; reset region: G2=32*(w>>1)+h, half (w&1)
s_lshr_b32 s38, s32, 1
s_lshl_b32 s38, s38, 5
s_add_u32 s38, s38, s33
s_lshl_b32 s38, s38, 12
s_and_b32 s39, s32, 1
s_lshl_b32 s39, s39, 11
s_add_u32 s38, s38, s39
s_add_u32 s65, s38, {PARTB}
s_lshl_b32 s38, s32, 12
s_add_u32 s66, s38, {L_KV}
s_add_u32 s67, s38, {L_KV + 16384}
s_lshl_b32 s39, s33, 20
s_add_u32 s38, s38, s39
s_add_u32 s57, s38, {KVB}
s_mov_b32 s68, {f32bits(128 ** -0.5 * math.log2(math.e))}
v_lshrrev_b32 v21, 5, v20
v_and_b32 v22, 15, v20
v_lshl_add_u32 v21, v21, 4, v22
v_lshlrev_b32 v21, 4, v21
v_bfe_u32 v22, v20, 4, 1
v_lshl_add_u32 v21, v22, 3, v21
s_lshl_b32 s38, s32, 11
v_add_u32 v{V_QW}, s38, v21
v_lshrrev_b32 v21, 2, v20
v_lshlrev_b32 v21, 4, v21
v_and_b32 v22, 1, v20
v_lshl_add_u32 v{V_TR}, v22, 3, v21
; selector value and masks: i=l&15 ; val=(i&3)==0?0x3f80:(i&3)==1?0x3f800000:0 ; mask q: (i>>2)==q
v_and_b32 v21, 3, v20
v_mov_b32 v22, 0
v_mov_b32 v23, 0x3f80
v_cmp_eq_u32 vcc, 0, v21
v_cndmask_b32 v22, v22, v23, vcc
v_mov_b32 v23, 0x3f800000
v_cmp_eq_u32 vcc, 1, v21
v_cndmask_b32 v{V_SELV}, v22, v23, vcc
s_mov_b32 s72, 0x0f0f0f0f
s_mov_b32 s73, 0x0f0f0f0f
s_mov_b32 s74, 0xf0f0f0f0
s_mov_b32 s75, 0xf0f0f0f0
s_mov_b32 s82, -1
s_mov_b32 s83, 0
s_waitcnt vmcnt({npre})
v_lshl_or_b32 v{T3}, v39, 16, v38
v_mov_b32 v28, -1
v_mov_b32 v29, -1
v_mov_b32 v30, -1
v_mov_b32 v31, -1
v_lshrrev_b32 v21, 3, v20
v_lshlrev_b32 v21, 13, v21
v_and_b32 v22, 7, v20
v_lshl_add_u32 v21, v22, 4, v21
v_add_u32 v21, s61, v21
""")
    def init_rings(isc, lbl):
        A(f"""buffer_store_dwordx4 v[28:31], v{V_L16}, s[8:11], s65 offen{isc}
buffer_store_dwordx4 v[28:31], v{V_L16}, s[8:11], s65 offen offset:1024{isc}
s_add_u32 s64, s65, 0x40000
buffer_store_dwordx4 v[28:31], v{V_L16}, s[8:11], s64 offen{isc}
buffer_store_dwordx4 v[28:31], v{V_L16}, s[8:11], s64 offen offset:1024{isc}
s_cmp_ge_u32 s32, 2
s_cbranch_scc1 {lbl}
s_mov_b32 s38, {MEMB}
s_mov_b64 exec, 0xffffff00
buffer_store_dwordx4 v[28:31], v21, s[8:11], s38 offen{isc}
s_mov_b64 exec, s[80:81]
buffer_store_dword v{T3}, v{V_MST}, s[8:11], s38 offen{isc}
s_mov_b64 exec, -1""")
    NA_, NI_, NB_ = NU - 17, NU - 9, NU - 3
    for n in range(NU):
        u = order[n]; sl = slot_of[n]
        later = sum(1 for m in range(n + 1, NU) if issue_at[m] < n)
        A(f's_waitcnt vmcnt({4*later})')
        if n % 4 == 0: prof(A, 80 + n // 4, 66)
        av = 34 if sl < 7 else 35
        off = (sl if sl < 7 else sl - 7) * 4096
        for T in range(2):
            l = loc[u + (T,)]
            dst = l[1] if l[0] == 'reg' else f'v[{40+8*T}:{47+8*T}]'
            for mp in range(4):
                A(f'ds_read_b64_tr_b16 {sub(dst, 2*mp, 2)}, v{av} offset:{off + mp*1024 + T*512}')
        if n == NA_ and gate:
            A(f'v_mov_b32 v56, {DBG_CTICKET}\nbuffer_load_dwordx2 v[58:59], v56, s[12:15], 0 offen sc1\nbuffer_load_dword v60, v56, s[12:15], 0 offen offset:{DBG_XNCNT-DBG_CTICKET} sc1')
        if n == NI_:
            assert issue_at[n] >= NA_
            if gate:
                A(f"""{tag}_wreg:
v_readfirstlane_b32 s36, v58
v_readfirstlane_b32 s2, v59
v_readfirstlane_b32 s37, v60
s_cmp_eq_u32 s36, -1
s_cselect_b32 s36, s37, 0
s_cmp_ge_u32 s36, 64
s_cbranch_scc1 {tag}_wreg_ok
s_sleep 4
buffer_load_dwordx2 v[58:59], v56, s[12:15], 0 offen sc1
buffer_load_dword v60, v56, s[12:15], 0 offen offset:{DBG_XNCNT-DBG_CTICKET} sc1
s_waitcnt vmcnt(0)
s_sub_u32 s35, s35, 1
s_cbranch_scc0 {tag}_wreg
s_mov_b32 s35, 0
{tag}_wreg_ok:""")
            else: A('s_mov_b32 s2, 0')
            A(f's_cmp_lg_u32 s2, 0\ns_cbranch_scc1 {tag}_initx')
            init_rings(sc, f'{tag}_inited')
            A(f's_branch {tag}_inited\n{tag}_initx:')
            init_rings(' sc1', f'{tag}_inited')
            A(f'{tag}_inited:\ns_add_u32 s64, s65, 0x80000')
        if n == NU - 5 and cpre:
            A(f'''s_getpc_b64 s[6:7]
{tag}_pc:
s_add_u32 s6, s6, {tag}0_top-{tag}_pc
s_addc_u32 s7, s7, 0
v_lshlrev_b32 v60, 2, v{V_L16}
global_load_dword v61, v60, s[6:7]''')
        if n == NI_:
            A(f"""v_lshrrev_b32 v56, 2, v{V_L16}
s_lshl_b32 s88, s33, 8
buffer_load_dword v57, v56, s[8:11], s88 offen sc1""")
        if n == NB_:
            assert issue_at[n] >= NI_
            A(f"""v_cmp_le_u32 s[70:71], 4, v57
v_lshlrev_b32 v62, 2, v{V_L16}
s_nop 0
s_and_b32 s36, s70, 3
s_cmp_lg_u32 s36, 3
s_cbranch_scc1 {tag}_nopf
s_add_u32 s36, s57, 16384
buffer_load_dword v63, v62, s[8:11], s57 offen sc1
buffer_load_dword v63, v62, s[8:11], s36 offen sc1
{tag}_nopf:""")
        if touch and n == NU - tpos:
            if touch == 1:
                A(f'v_lshlrev_b32 v64, 1, v{V_L16}')
                for i in range(4): A(f's_add_u32 s37, s65, {i*0x40000}\nbuffer_load_dword v65, v64, s[8:11], s37 offen sc1')
            else:
                for i in range(8): A(f's_mov_b32 s37, {PARTB + i*0x20000}\nbuffer_load_dword v65, v{V_PST}, s[8:11], s37 offen sc1')
            A(f's_mov_b32 s37, {MEMB}\nbuffer_load_dword v65, v21, s[8:11], s37 offen sc1')
        if n == NU - 2:
            A('buffer_load_dword v57, v56, s[8:11], s88 offen sc1')
        todo = [m for m in range(NU) if issue_at[m] == n]
        if todo:
            A('s_waitcnt lgkmcnt(8)')
            for m in todo: issue(m)
        if n in fin:
            A('s_waitcnt lgkmcnt(0)')
            for T in range(2):
                for hf in range(2):
                    A(f'ds_write_b128 v{V_WV}, {vr(40+8*T+4*hf)} offset:{sl*4096 + T*2048 + hf*1024}')
            A('s_waitcnt lgkmcnt(0)')
    A('s_waitcnt lgkmcnt(0)\ns_barrier')
    prof(A, 1, 36, dbg=9)
    A('s_waitcnt vmcnt(0)')
    A(f'''s_lshl_b32 s36, s33, 4
s_lshl_b32 s37, s32, 2
s_add_u32 s36, s36, s37
s_add_u32 s36, s36, {FLAGS+F_RB}
s_mov_b64 exec, 1
s_cmp_lg_u32 s2, 0
s_cbranch_scc1 {tag}_rbx
buffer_store_dword v28, off, s[8:11], s36{sc}
s_branch {tag}_rb
{tag}_rbx:
buffer_store_dword v28, off, s[8:11], s36 sc1
{tag}_rb:
s_mov_b64 exec, -1''')
    A(f"""v_cmp_le_u32 s[70:71], 4, v57
""")
    A('s_mov_b32 s86, 0x3f803f80\ns_mov_b32 s87, 0x3f803f80\ns_mov_b32 s34, 0\ns_mov_b32 s69, 0')
    poolmap = {('v', 0, 0): M[2], ('v', 0, 1): M[6], ('v', 1, 0): M[5], ('v', 1, 1): P[0],
               ('k', 0, 0): P[1], ('k', 0, 1): P[2], ('k', 1, 0): P[3], ('k', 1, 1): P[4],
               ('o', 1, 1, 0): P[0], ('o', 1, 1, 1): P[1], ('o', 2, 1, 0): P[2], ('o', 2, 1, 1): P[3],
               ('o', 3, 1, 0): P[4], ('o', 3, 1, 1): M[2]}
    def plh(f, hf, tg):
        l = loc[f]
        A.ds(f'ds_read_b128 {vr(poolmap[f] + 4*hf)}, v{V_WV} offset:{l[1]*4096 + l[2]*2048 + hf*1024}', tg)
    def pool_load(f, tg): plh(f, 0, tg); plh(f, 1, tg)
    def kv_ready(lbl):
        A(f's_bitcmp1_b64 s[70:71], s36\ns_cbranch_scc0 {lbl}_slow\n{lbl}_ok:')
    def kv_slow(lbl):
        A(f"""{lbl}_slow:
v_lshrrev_b32 v{T0}, 2, v{V_L16}
s_lshl_b32 s37, s33, 8
buffer_load_dword v{T1}, v{T0}, s[8:11], s37 offen sc1
s_waitcnt vmcnt(0)
v_cmp_le_u32 s[70:71], 4, v{T1}
s_nop 1
s_bitcmp1_b64 s[70:71], s36
s_cbranch_scc1 {lbl}_ok
s_sub_u32 s35, s35, 1
s_cbranch_scc0 {lbl}_slow
s_mov_b32 s35, 0
s_branch {lbl}_ok""")
    def z(a): A(f'v_mov_b64 v[{a}:{a+1}], 0\nv_mov_b64 v[{a+2}:{a+3}], 0')
    def prep_a(mid=None):
        fr = [('v', 1, 1), ('k', 0, 0), ('k', 0, 1), ('k', 1, 0), ('k', 1, 1), ('v', 0, 0), ('v', 0, 1)]
        for i, f in enumerate(fr):
            pool_load(f, 'pi')
            if mid and i in mid: mid[i]()
        for r in (AK0, AK1, AV0, AV1): z(r)
    def prep_b():
        pool_load(('v', 1, 0), 'pi')
    def delay(n):
        if slp and n % 16 == 0:
            if n: A(f's_sleep {n//16}')
            return
        while n > 0:
            k = min(n, 16); A(f's_nop {k-1}'); n -= k
    prof(A, 2, 36)
    if PROF['on'] is True: A('s_memtime s[96:97]')
    slow = []
    for i in range(3):
        A(f's_mov_b32 s36, {i}'); kv_ready(f'{tag}_kv{i}'); slow.append(f'{tag}_kv{i}')
    A('s_mov_b32 m0, s66')
    for i in range(4): A(f'buffer_load_dwordx4 v{V_L16}, s[8:11], s57 offen offset:{i*1024} sc1 lds')
    A('s_add_u32 s57, s57, 16384')
    prep_a()
    A.wait_lds_all()
    A(f"""v_lshrrev_b32 v{T0}, 1, v{V_L16}
s_mov_b32 s37, {FLAGS+F_RB}
{tag}_wb:
buffer_load_dwordx2 v[{M[0]}:{M[0]+1}], v{T0}, s[8:11], s37 offen sc1
s_waitcnt vmcnt(0)
v_and_b32 v{M[0]}, v{M[0]}, v{M[0]+1}
v_cmp_ne_u32 vcc, -1, v{M[0]}
s_cbranch_vccz {tag}_wb_ok
s_sleep 2
s_sub_u32 s35, s35, 1
s_cbranch_scc0 {tag}_wb
s_mov_b32 s35, 0
{tag}_wb_ok:""")
    if PROF['on'] == 'dbg': prof(A, 0, T0, dbg=10)
    if trip: A('s_memrealtime s[100:101]\ns_waitcnt lgkmcnt(0)')
    acc = {('q', 0): AQ0, ('q', 1): AQ1, ('k', 0): AK0, ('k', 1): AK1, ('v', 0): AV0, ('v', 1): AV1}
    def wreg(frag):
        l = loc[frag]
        return l[1] if l[0] == 'reg' else vr(poolmap[frag], 8)
    def SM(m, tau, T): A(f'v_smfmac_f32_16x16x64_bf16 {vr(acc[(m,T)])}, {vr(M[tau])}, {wreg((m,tau,T))}, v{V_IDX}')
    STP = [40,42,44,46,48,50,52,84,98,16,90,92,94,100]
    cur = {'par': 0}
    def stamp(i):
        if stamps in ('rt', 'cal'):
            if (cur['par'] == 1 and i >= 9) or (cur['par'] == 0 and i <= 2): A(f'{"s_memrealtime" if stamps == "rt" else "s_memtime"} s[{STP[i]}:{STP[i]+1}]')
        elif stamps and cur['par'] == 0 and (stsel is None or i in stsel): A(f's_memtime s[{STP[i]}:{STP[i]+1}]')
    def cal(i, par):
        if stamps == 'cal' and par == 1: A(f's_memtime s[{STP[i]}:{STP[i]+1}]')
    def wrap(r): return f's_bitset0_b32 {r}, 15\n'
    retry = {}; lates = []
    def step(par, ltag, sc):
        t = f'{ltag}{par}'
        KOFF = L_KV + par * 16384; VOFF = KOFF + 8192
        VK, VV = (V_L16, V_B0) if unroll == 2 else (T0, T1)
        A(f'{t}_top:')
        cur['par'] = par
        stamp(0)
        def ldA():
            for u in range(2): A(f'buffer_load_dwordx4 {vr(M[u])}, v{V_L16}, s[8:11], s54 offen offset:{u*1024} sc1')
        def nanA(t=t, ldA=ldA):
            A(f'{t}_reA:\ns_cmp_eq_u32 s3, 2\ns_cbranch_scc1 {t}_okA')
            ldA()
            if adapt: A(f'v_mov_b32 v{T0}, s34\nds_write_b32 v{V_TR}, v{T0} offset:{L_OQK}')
            else: A('s_nop 1')
            for r in (AV0, AV1, AK0, AK1): z(r)
            if qre: A(f's_cmp_eq_u32 s3, 0\ns_mov_b32 s3, 1\ns_cbranch_scc1 {t}_chkA')
            A(f"""{t}_scnA:
s_waitcnt vmcnt({2*nA-2})
v_max3_u32 v{T0}, v{M[0]}, v{M[0]+1}, v{M[0]+2}
v_max3_u32 v{T1}, v{M[0]+3}, v{M[1]}, v{M[1]+1}
v_max3_u32 v{T0}, v{T0}, v{M[1]+2}, v{M[1]+3}
v_max_u32 v{T0}, v{T0}, v{T1}
v_cmp_eq_u32 vcc, -1, v{T0}
s_mov_b32 s3, 2
s_cbranch_vccz {t}_chkA
s_mov_b64 exec, vcc""")
            ldA()
            A(f"""s_mov_b64 exec, -1
s_sub_u32 s35, s35, 1
s_cbranch_scc0 {t}_scnA
s_mov_b32 s35, 0
s_branch {t}_chkA""")
        lates.append(nanA)
        A(f's_mov_b32 m0, s{66+(par^1)}' if unroll == 2 else 's_sub_u32 m0, s67, s69')
        A('s_mov_b32 s3, 0')
        if not nocomm: ldA()
        prep_b()
        for i in range(nA - 1):
            delay(gA)
            if not nocomm: ldA()
        A(f's_waitcnt lgkmcnt(0)\n{t}_chkA:')
        if not nocomm: A(f's_waitcnt vmcnt({2*nA-1})')
        A.lds_q = []
        stamp(1)
        KX = {(tt, k): P[k] + 4 * (tt - 1) for tt in (1, 2) for k in range(4)}
        QF = [AQ0, AQ1, M[0], M[1]]
        KM = [M[2], M[4], M[6], M[3]]
        VX = [P[4], P[4] + 4]
        def ldM(tau): A.ds(f'ds_read_b128 {vr(M[tau])}, v{VB[tau>>1]} offset:{L_MEM + (tau&1)*1024}', f'm{tau}')
        def ldKX(tt, k): A.ds(f'ds_read_b128 {vr(KX[(tt,k)])}, v{VK} offset:{KOFF + (tt-1)*4096 + k*1024}', 'kx')
        def ldVX(T): A.ds(f'ds_read_b128 {vr(VX[T])}, v{VV} offset:{VOFF + T*1024}', 'kx')
        def ldQF(k):
            for hf in range(2): A.ds(f'ds_read_b64_tr_b16 {vr(QF[k]+2*hf,2)}, v{V_TR} offset:{L_OQK + k*2048 + 1024 + hf*256}', f'qf{k}')
        def ldKM(k):
            for hf in range(2): A.ds(f'ds_read_b64_tr_b16 {vr(KM[k]+2*hf,2)}, v{V_TR} offset:{L_OQK + k*2048 + 1536 + hf*256}', f'km{k}')
        def fold(a0, a1, t0):
            ops = []
            for r in range(4): ops.append(f'v_permlane32_swap_b32 v{a0+r}, v{a1+r}')
            for r in range(4): ops.append(f'v_add_f32 v{a0+r}, v{a0+r}, v{a1+r}')
            ops.append(f'v_cvt_pk_bf16_f32 v{t0}, v{a0}, v{a0+1}')
            ops.append(f'v_cvt_pk_bf16_f32 v{t0+1}, v{a0+2}, v{a0+3}')
            return ops
        two = lambda m, tau: [(m, tau, 0), (m, tau, 1)]
        sms = []
        for m in 'vkq': sms += two(m, 0) + two(m, 1)
        for m in 'qkv':
            for tau in (2, 4, 6, 3, 5, 7): sms += two(m, tau)
        assert len(sms) == 48 and len(set(sms)) == 48
        pre = {i: [] for i in range(48)}; post = {i: [] for i in range(48)}
        post[0].append(lambda: A(f'ds_write_b128 v{V_B0}, {vr(M[0])} offset:{L_MEM}'))
        if not nocomm: pre[1].append(lambda: A(f's_waitcnt vmcnt({2*nA-2})'))
        post[1].append(lambda: A(f'ds_write_b128 v{V_B0}, {vr(M[1])} offset:{L_MEM+1024}'))
        post[4].append(lambda: A(f'v_cmp_u_f32 vcc, v{AV0}, v{AV0+1}\nv_cmp_u_f32 s[6:7], v{AV0+2}, v{AV0+3}'))
        for i, r in enumerate((AQ0, AQ0 + 2, AQ1, AQ1 + 2)): post[(0, 2, 3, 6)[i]].append(lambda r=r: A(f'v_mov_b64 v[{r}:{r+1}], 0'))
        sms[1], sms[2] = sms[2], sms[1]
        if not nocomm: pre[dmapos[0]].append(lambda: A('s_waitcnt vmcnt(0)'))
        def brA():
            if not nocomm: A(f's_or_b64 vcc, vcc, s[6:7]\ns_cbranch_scc1 {t}_reA')
            A(f'{t}_okA:')
        def b1():
            A('s_waitcnt lgkmcnt(0)\ns_barrier')
            stamp(2)
        pre[6].append(brA)
        pre[b1pos + 1].append(b1)
        for i, tau in enumerate((2, 4, 6, 3, 5, 7)): post[b1pos + 1 + i].append(lambda tau=tau: ldM(tau))
        for i_, tau_ in enumerate((2, 4, 6, 3, 5, 7)): pre[12 + 2 * i_].append(lambda tau_=tau_: A.wait_lds(f'm{tau_}'))
        kxs = [(tt, k) for k in range(4) for tt in (1, 2)]
        for i, pos in enumerate(range(b1pos + 7, b1pos + 15)): post[pos].append(lambda i=i: ldKX(*kxs[i]))
        post[24].append(lambda: ldVX(0)); post[26].append(lambda: ldVX(1))
        if unroll == 1:
            post[8].append(lambda: A(f'v_add_u32 v{T0}, s69, v{V_L16}'))
            post[max(prepos + 1, 16)].append(lambda: A(f'v_add_u32 v{T1}, s69, v{V_B0}'))
        for i, pos in enumerate(dmapos): post[pos].append(lambda i=i: A(f'buffer_load_dwordx4 v{V_L16}, s[8:11], s57 offen offset:{i*1024} {dm} lds'))
        if pf is not None:
            post[prepos - 1].append(lambda: A(f'v_lshlrev_b32 v{T1}, 2, v{V_L16}\ns_add_u32 s36, s57, 16384'))
            post[prepos].append(lambda: A(f'buffer_load_dword v{T2}, v{T1}, s[8:11], s36 offen {pf}\nv_lshrrev_b32 v{T1}, 2, v{V_L16}'))
            post[prepos + 1].append(lambda: A(f'buffer_load_dword v{T2}, v{T1}, s[8:11], s88 offen sc1'))
        if not repidle:
            post[reppos - 1].append(lambda: A('s_cmp_ge_u32 s32, 2'))
            post[reppos].append(lambda: A(f's_cbranch_scc1 {t}_norep\n' + ('' if fullst else 's_mov_b64 exec, s[80:81]\n') + f'buffer_store_dword v{T3}, v{V_MST}, s[8:11], s56 offen sc1\n' + ('' if fullst else 's_mov_b64 exec, -1\n') + f'{t}_norep:'))
        post[reppos + 1].append(lambda: prof(A, 16, M[1], 34, cyc=True))
        post[13].append(lambda: A(f'v_mov_b64 v[{M[0]}:{M[0]+1}], -1'))
        post[14].append(lambda: A(f'v_mov_b64 v[{M[0]+2}:{M[0]+3}], -1'))
        assert respos[0] - 2 >= 12
        post[respos[0]].append(lambda: A(f'buffer_store_dwordx4 {vr(M[0])}, v{V_L16}, s[8:11], s64 offen{sc}'))
        post[respos[1]].append(lambda: A(f'buffer_store_dwordx4 {vr(M[0])}, v{V_L16}, s[8:11], s64 offen offset:1024{sc}'))
        if adapt:
            post[27].append(lambda: A.ds(f'ds_read_b32 v{M[1]}, v{V_TR} offset:{L_OQK}', 'lateflag'))
            post[37].append(lambda: (A.wait_lds('lateflag'), A(f'v_readfirstlane_b32 s89, v{M[1]}')))
        post[11].append(lambda: stamp(3)); post[23].append(lambda: stamp(4)); post[35].append(lambda: stamp(5))
        for i, op in enumerate(fold(AQ0, AQ1, T0)): post[26 + i].append(lambda op=op: A(op))
        post[36].append(lambda: A.ds(f'ds_write_b64 v{V_QW}, v[{T0}:{T1}] offset:{L_OQK+1024}', 'qw'))
        for i, op in enumerate(fold(AK0, AK1, T0)): post[38 + (i * kfs) // 10].append(lambda op=op: A(op))
        post[38 + kfs].append(lambda: A.ds(f'ds_write_b64 v{V_QW}, v[{T0}:{T1}] offset:{L_OQK+1536}', 'kw'))
        pre[b2pos].append(lambda: (A.wait_lds('qw'), A('s_barrier')))
        qpos = [p_ for p_ in range(b2pos, 48) if p_ != 38 + kfs][:4]
        for k, pos in enumerate(qpos): post[pos].append(lambda k=k: ldQF(k))
        for i, f in enumerate(sms):
            if i == 0:
                for fn in pre[0]: fn()
            SM(*f)
            n0 = len(A.items)
            for fn in post[i]: fn()
            if i + 1 < 48:
                for fn in pre[i + 1]: fn()
            gap = A.items[n0:]
            if not any(isinstance(x, str) for x in gap):
                A.items[n0:] = [x for x in gap if x.kind != 'valu'] + [x for x in gap if x.kind == 'valu']
        stamp(6)
        ST = {1: AK0, 2: AK1, 0: M[5]}
        VM = M[7]; ONES = KM[0]; ONE2 = KM[1]; PM = KM[1] + 2; PB = KM[2]; LS = KM[3]; O = [AV0, AV1]
        def MF(d, a, b, c): A(f'v_mfma_f32_16x16x32_bf16 {vr(d)}, {vr(a)}, {vr(b)}, {c}')
        def MF16(d, a, b): A(f'v_mfma_f32_16x16x16_bf16 {vr(d)}, {vr(a,2)}, {vr(b,2)}, {vr(d)}')
        late = [(('o', k, 1, T), hf) for k in (1, 2, 3) for T in (0, 1) for hf in (0, 1)]
        vmc = [f'v_cvt_pk_bf16_f32 v{VM+i}, v{(AV0,AV1)[i>>1]+2*(i&1)}, v{(AV0,AV1)[i>>1]+2*(i&1)+1}' for i in range(4)]
        n = 0
        for k in range(4):
            A.wait_lds(f'qf{k}')
            if k == b3k:
                A.wait_lds('kw'); A('s_barrier')
            for tt in (1, 2):
                MF(ST[tt], KX[(tt, k)], QF[k], '0' if k == 0 else vr(ST[tt]))
                if 2 * b3k <= n < 2 * b3k + 4: ldKM(n - 2 * b3k)
                elif n >= 2: plh(*late.pop(0), 'piii')
                if vmc and n >= 2 and not (2 * b3k <= n < 2 * b3k + 4 and len(vmc) <= 2): A(vmc.pop(0))
                n += 1
        WA = QF
        for k in range(4):
            A.wait_lds(f'km{k}')
            MF(ST[0], KM[k], QF[k], '0' if k == 0 else vr(ST[0]))
            plh(*late.pop(0), 'piii')
            if k == 0: A(f'v_mov_b64 v[{ONES}:{ONES+1}], s[86:87]')
            if k == 1: A(f'v_max3_f32 v{T0}, v{ST[1]}, v{ST[1]+1}, v{ST[1]+2}')
            if k == 2: A(f'v_max3_f32 v{T1}, v{ST[1]+3}, v{ST[2]}, v{ST[2]+1}')
            if k == 3: A(f'v_max3_f32 v{T0}, v{T0}, v{ST[2]+2}, v{ST[2]+3}')
            if vmc and k < 2: A(vmc.pop(0))
        assert not vmc
        stamp(7)
        A(f"""v_max_f32 v{T0}, v{T0}, v{T1}
v_mov_b32 v{T1}, v{T0}
v_mov_b64 v[{ONES+2}:{ONES+3}], s[86:87]
v_cndmask_b32 v{ONE2}, 0, v{ONES}, s[82:83]
v_permlane32_swap_b32 v{T0}, v{T1}
v_cndmask_b32 v{ONE2+1}, 0, v{ONES}, s[82:83]
v_max3_f32 v{T0}, v{T0}, v{T1}, v{ST[0]}
v_max3_f32 v{T1}, v{ST[0]+1}, v{ST[0]+2}, v{ST[0]+3}
v_max_f32 v{T0}, v{T0}, v{T1}
v_mov_b32 v{T1}, v{T0}""")
        z(WA[0])
        A(f"""v_permlane16_swap_b32 v{T0}, v{T1}
v_max_f32 v{T0}, v{T0}, v{T1}
v_mul_f32 v{T0}, s68, v{T0}""")
        for base in (ST[1], ST[2]):
            for r in range(4): A(f'v_fma_f32 v{base+r}, v{base+r}, s68, -v{T0}')
        for base in (ST[1], ST[2]):
            for r in range(4): A(f'v_exp_f32 v{base+r}, v{base+r}')
        b = ST[0]
        A(f"""v_cvt_pk_bf16_f32 v{PB}, v{ST[1]}, v{ST[1]+1}
v_cvt_pk_bf16_f32 v{PB+1}, v{ST[1]+2}, v{ST[1]+3}
v_cvt_pk_bf16_f32 v{PB+2}, v{ST[2]}, v{ST[2]+1}
v_cvt_pk_bf16_f32 v{PB+3}, v{ST[2]+2}, v{ST[2]+3}
v_fma_f32 v{b}, v{b}, s68, -v{T0}
v_fma_f32 v{b+1}, v{b+1}, s68, -v{T0}""")
        MF(LS, ONES, PB, '0')
        plh(*late.pop(0), 'piii')
        A(f'v_fma_f32 v{b+2}, v{b+2}, s68, -v{T0}\nv_fma_f32 v{b+3}, v{b+3}, s68, -v{T0}')
        MF(O[0], VX[0], PB, '0')
        plh(*late.pop(0), 'piii')
        A(f'v_exp_f32 v{b}, v{b}')
        MF(O[1], VX[1], PB, '0')
        A(f"""v_exp_f32 v{b+1}, v{b+1}
v_exp_f32 v{b+2}, v{b+2}
v_exp_f32 v{b+3}, v{b+3}
v_cvt_pk_bf16_f32 v{PM}, v{b}, v{b+1}
v_cvt_pk_bf16_f32 v{PM+1}, v{b+2}, v{b+3}""")
        z(WA[1])
        MF16(LS, ONE2, PM); z(WA[2]); MF16(O[0], VM, PM); z(WA[3]); MF16(O[1], VM + 2, PM)
        stamp(8)
        OF = [AK0, AK1, M[5], PB]
        A(f'v_rcp_f32 v{T0}, v{LS}')
        for T in range(2):
            for r in range(4): A(f'v_mul_f32 v{O[T]+r}, v{O[T]+r}, v{T0}')
            A(f'v_cvt_pk_bf16_f32 v{OF[0]+2*T}, v{O[T]}, v{O[T]+1}\nv_cvt_pk_bf16_f32 v{OF[0]+2*T+1}, v{O[T]+2}, v{O[T]+3}')
        A.ds(f'ds_write_b128 v{V_B0}, {vr(OF[0])} offset:{L_OQK}', 'ow')
        stamp(9)
        def SO(k, a): A(f'v_smfmac_f32_16x16x64_bf16 {vr(WA[a])}, {vr(OF[k])}, {wreg(("o",k,a>>1,a&1))}, v{V_IDX}')
        R = QF; SEL = M[7]; RA = M[5]
        selops = [f'v_cndmask_b32 v{SEL+q}, 0, v{V_SELV}, s[{72+2*(q&1)}:{73+2*(q&1)}]' for q in range(4)]
        for a in range(4):
            SO(0, a); A(selops[a])
        A('s_waitcnt lgkmcnt(0)\ns_barrier'); A.lds_q = []
        for k in range(1, 4): A.ds(f'ds_read_b128 {vr(OF[k])}, v{VB[k]} offset:{L_OQK}', f'o{k}')
        for k in range(1, 4):
            A.wait_lds(f'o{k}')
            for a in (0, 1):
                SO(k, a)
                if late: plh(*late.pop(0), 'piv')
        PK = [AV0, AV1]
        n = 0
        for k in range(1, 4):
            if k == 3: A.wait_lds('piv')
            for a in (2, 3):
                SO(k, a); n += 1
                if early1:
                    if n == 3:
                        for r in range(4): A(f'v_cvt_pk_bf16_f32 v{PK[0]+r}, v{WA[0]+r}, v{WA[1]+r}')
                    if n == 4:
                        A(f'buffer_store_dwordx4 {vr(PK[0])}, v{V_PST}, s[8:11], s58 offen{sc}'); cal(3, par)
                elif n >= 3: A(f'v_cvt_pk_bf16_f32 v{PK[0]+n-3}, v{WA[0]+n-3}, v{WA[1]+n-3}')
        if not early1: A(f'buffer_store_dwordx4 {vr(PK[0])}, v{V_PST}, s[8:11], s58 offen{sc}')
        for r in range(4): A(f'v_cvt_pk_bf16_f32 v{PK[1]+r}, v{WA[2]+r}, v{WA[3]+r}')
        A(f'buffer_store_dwordx4 {vr(PK[1])}, v{V_PST}, s[8:11], s59 offen{sc}')
        stamp(10)
        def book():
            A(f"""s_add_u32 s54, s54, 8192
{wrap('s54')}s_add_u32 s56, s56, 8192
s_add_u32 s57, s57, {0 if nokv else 16384}
s_add_u32 s60, s60, 0x40000
s_and_b32 s60, s60, 0xc0000
s_xor_b32 s64, s60, 0x80000
s_add_u32 s64, s64, s65
s_add_u32 s58, s60, {PARTB}
s_add_u32 s59, s60, {PARTB + 0x20000}
s_xor_b32 s69, s69, 16384
s_add_u32 s34, s34, 1""")
        def ldB():
            for i in range(4): A(f'buffer_load_dwordx4 {vr(R[i])}, v{V_L16}, s[8:11], s62 offen offset:{i*1024} sc1')
        retry[f'{t}B'] = ldB
        A(f's_cmp_ge_u32 s32, 2\ns_cbranch_scc1 {t}_late')
        if nocomm:
            prep_a(); book(); A(f's_branch {t}_join')
        def first():
            delay(dB0); stamp(11); ldB()
        if adapt:
            A(f's_cmp_eq_u32 s89, s34\ns_cbranch_scc1 {t}_fastB')
            def fastB(t=t, ldB=ldB, RA=RA, par=par):
                A(f'{t}_fastB:')
                def f1(): cal(11, par); ldB()
                if pfast < 0: f1()
                prep_a({pfast: f1}); book()
                for i in range(nB - 1): ldB()
                z(RA)
                A(f's_branch {t}_chkB')
            lates.append(fastB)
        if pmid is None:
            prep_a(); book(); first()
            for i in range(nB - 1):
                delay(gB); ldB()
        else:
            prep_a({pmid: first}); book()
            for i in range(nB - 1): ldB()
        assert R[1] == R[0] + 4 and R[3] == R[2] + 4
        def red(i): A(f'v_smfmac_f32_16x16x64_bf16 {vr(RA)}, {vr(SEL)}, {vr(R[2*i], 8)}, v{V_IDX}')
        z(RA)
        A(f'{t}_chkB:\ns_waitcnt vmcnt({4*(nB-1)+2})')
        red(0)
        A(f's_waitcnt vmcnt({4*(nB-1)})')
        cal(4, par)
        red(1)
        A(f"""v_max3_u32 v{T0}, v{R[0]+3}, v{R[1]+3}, v{R[2]+3}
v_max_u32 v{T0}, v{T0}, v{R[3]+3}
v_cmp_eq_u32 s[6:7], -1, v{T0}
v_cmp_u_f32 vcc, v{RA+2}, v{RA+2}
v_add_f32_dpp v{RA}, v{RA}, v{RA} row_ror:8 row_mask:0xf bank_mask:0xf
v_add_f32_dpp v{RA+1}, v{RA+1}, v{RA+1} row_ror:8 row_mask:0xf bank_mask:0xf
v_cvt_pk_bf16_f32 v{T3}, v{RA}, v{RA+1}
s_cbranch_vccnz {t}_reB
{t}_okB:
{"" if fullst else "s_mov_b64 exec, s[80:81]"}
buffer_store_dword v{T3}, v{V_MST}, s[8:11], s55 offen{sc}
{"" if fullst else "s_mov_b64 exec, -1"}
{t}_join:""")
        def nan_path(t=t, R=R, RA=RA, SEL=SEL, ldB=ldB, red=red):
            A(f"""{t}_reB:
s_cmp_eq_u64 s[6:7], 0
s_cbranch_scc1 {t}_nan
s_mov_b64 exec, s[6:7]""")
            ldB()
            A('s_mov_b64 exec, -1')
            z(RA)
            A(f"""s_sub_u32 s35, s35, 1
s_cbranch_scc0 {t}_chkB
s_mov_b32 s35, 0
{t}_nan:
s_waitcnt vmcnt(0)""")
            fl = [x for r in R for x in range(r, r + 4)]
            A(f'v_max3_u32 v{T0}, v{fl[0]}, v{fl[1]}, v{fl[2]}')
            for i in range(6): A(f'v_max3_u32 v{T0}, v{T0}, v{fl[3+2*i]}, v{fl[4+2*i]}')
            A(f"""v_max_u32 v{T0}, v{T0}, v{fl[15]}
v_cmp_eq_u32 vcc, -1, v{T0}
s_cbranch_vccz {t}_nan2""")
            ldB()
            A(f"""s_sub_u32 s35, s35, 1
s_cbranch_scc0 {t}_nan
s_mov_b32 s35, 0
{t}_nan2:""")
            z(RA); red(0); red(1)
            A(f"""v_add_f32_dpp v{RA}, v{RA}, v{RA} row_ror:8 row_mask:0xf bank_mask:0xf
v_add_f32_dpp v{RA+1}, v{RA+1}, v{RA+1} row_ror:8 row_mask:0xf bank_mask:0xf
v_cvt_pk_bf16_f32 v{T3}, v{RA}, v{RA+1}
s_branch {t}_okB""")
        lates.append(nan_path)
        def late_path(t=t, par=par):
            A(f'{t}_late:')
            prep_a(); book()
            A(f"""
; waves 2,3: sentinel into the mem slot two steps ahead of the one being published
s_add_u32 s36, s55, 16384
{wrap('s36')}ds_read_b32 v{T3}, v{V_MST} offset:{L_MEM}
v_mov_b32 v{T0}, -1
s_sub_u32 s37, s56, 8192
s_mov_b64 exec, s[80:81]
buffer_store_dword v{T0}, v{V_MST}, s[8:11], s36 offen{sc}
s_waitcnt vmcnt(0) lgkmcnt(0)
{f"buffer_store_dword v{T3}, v{V_MST}, s[8:11], s37 offen sc1" if repidle else ""}
s_mov_b64 exec, -1""")
            delay(dI)
            A(f's_branch {t}_join')
        lates.append(late_path)
        stamp(12)
        A(f"""v_cmp_le_u32 s[70:71], 4, v{T2}
s_cmp_eq_u32 s34, {nsteps}
s_cbranch_scc1 {tag}_done
s_add_u32 s62, s63, s60
s_add_u32 s55, s55, 8192
{wrap('s55')}s_add_u32 s36, s34, 2""")
        kv_ready(f'{t}_kv'); slow.append(f'{t}_kv')
        if not noB5: A('s_barrier')
        delay(dA)
        stamp(13)
        A.lds_q = []
    if gate: A(f's_cmp_lg_u32 s2, 0\ns_cbranch_scc1 {tag}x0_top')
    for ltag, lsc in ([(tag, sc), (tag + 'x', ' sc1')] if gate else [(tag, sc)]):
        i0 = len(A.items)
        for par in range(unroll): step(par, ltag, lsc)
        if abl:
            import re
            keep = A.items[:i0]
            for it in A.items[i0:]:
                if not isinstance(it, str) and any(re.search(p, it.text) for p in abl): continue
                keep.append(it)
            A.items = keep
        A(f's_branch {ltag}0_top')
        for f in lates: f()
        del lates[:]
    for l in slow: kv_slow(l)
    A(f"""{tag}_done:
s_cmp_ge_u32 s32, 2
s_cbranch_scc1 {tag}_fin
s_mov_b64 exec, s[80:81]
buffer_store_dword v{T3}, v{V_MST}, s[8:11], s56 offen sc1
s_mov_b64 exec, -1
{tag}_fin:""")
    prof(A, 3, 36, dbg=11)
    if trip:
        A(f'''s_memrealtime s[92:93]
s_load_dwordx2 s[4:5], s[0:1], 88
s_waitcnt vmcnt(0) lgkmcnt(0)
s_sub_u32 s36, s100, s98
s_sub_u32 s37, s92, s100
s_cmp_gt_u32 s{36 if trip[0] == 'pro' else 37}, {int(trip[1]*100)}
s_cbranch_scc0 {tag}_notrip
v_mov_b32 v36, 0x7f007f00
v_mov_b32 v37, 0
global_store_dword v37, v36, s[4:5]
{tag}_notrip:''')
    if PROF['on'] is True:
        A("""s_memtime s[92:93]
s_waitcnt lgkmcnt(0)
s_sub_u32 s92, s92, s96
v_mov_b32 v36, s92
v_mov_b32 v37, s35
s_lshl_b32 s94, s32, 3
s_add_u32 s94, s94, s91
v_mov_b32 v38, 0
s_mov_b64 exec, 1
buffer_store_dwordx2 v[36:37], v38, s[8:11], s94 offen offset:16
s_mov_b64 exec, -1""")

def kd(name, vgpr=512, accum=256):
    return f'''
.amdhsa_kernel {name}
  .amdhsa_next_free_vgpr {vgpr}
  .amdhsa_next_free_sgpr 102
  .amdhsa_accum_offset {accum}
  .amdhsa_group_segment_fixed_size 0
  .amdhsa_kernarg_size 112
  .amdhsa_user_sgpr_count 2
  .amdhsa_user_sgpr_kernarg_segment_ptr 1
  .amdhsa_system_sgpr_workgroup_id_x 1
.end_amdhsa_kernel
'''

def common_entry(A):
    A(f'''
s_load_dwordx4 s[4:7], s[0:1], 96
s_getreg_b32 s3, hwreg(HW_REG_XCC_ID)
s_and_b32 s3, s3, 0xf
v_lshrrev_b32 v1, 6, v0
v_readfirstlane_b32 s32, v1
s_waitcnt lgkmcnt(0)''')
    srd(A, 12, 4, 256)
    srd(A, 8, 6, WS_BYTES)

def gen_chain_test(stamps=False, **kw):
    A = Asm()
    A.raw('; @launch kernel=chain_kernel grid=(256,1,1) block=(256,1,1) lds=163840')
    A.raw('.amdgcn_target "amdgcn-amd-amdhsa--gfx950"')
    A.raw('.text\n.globl chain_kernel\n.p2align 8\n.type chain_kernel,@function')
    A.label('chain_kernel')
    A('s_cmp_ge_u32 s2, 256\ns_cbranch_scc1 L_end')
    common_entry(A)
    A('''s_cmp_lg_u32 s3, 0
s_cbranch_scc1 L_end
s_memtime s[96:97]
s_memrealtime s[90:91]
v_mov_b32 v3, 0
v_mov_b32 v4, 1
s_cmp_lg_u32 s32, 0
s_cbranch_scc1 L_noticket
s_mov_b64 exec, 1
buffer_atomic_add v4, v3, s[12:15], 0 offen sc0
s_waitcnt vmcnt(0)
ds_write_b32 v3, v4
s_waitcnt lgkmcnt(0)
s_mov_b64 exec, -1
L_noticket:
s_barrier
ds_read_b32 v4, v3
s_waitcnt lgkmcnt(0)
v_readfirstlane_b32 s33, v4
s_barrier
s_cmp_ge_u32 s33, 32
s_cbranch_scc1 L_end''')
    emit_chain(A, stamps=stamps, cpre=0, **kw)
    if stamps == 'cal':
        A('''s_waitcnt vmcnt(0)
s_memrealtime s[4:5]
s_waitcnt lgkmcnt(0)
s_or_b32 s6, s4, 0x3ff
L_cal:
s_memrealtime s[4:5]
s_memtime s[96:97]
s_waitcnt lgkmcnt(0)
s_cmp_le_u32 s4, s6
s_cbranch_scc1 L_cal
s_mov_b32 s50, s4
s_getreg_b32 s84, hwreg(HW_REG_HW_ID)''')
    if stamps:
        A('s_waitcnt vmcnt(0) lgkmcnt(0)')
        for i, r in enumerate([40,42,44,46,48,50,52,84,98,16,90,92,94,100,96,35]): A(f'v_mov_b32 v{20+i}, s{r}')
        A('''s_lshl_b32 s36, s33, 2
s_add_u32 s36, s36, s32
s_lshl_b32 s36, s36, 6
s_add_u32 s36, s36, 0x8000
v_mov_b32 v40, s36
s_mov_b64 exec, 1
buffer_store_dwordx4 v[20:23], v40, s[8:11], 0 offen
buffer_store_dwordx4 v[24:27], v40, s[8:11], 0 offen offset:16
buffer_store_dwordx4 v[28:31], v40, s[8:11], 0 offen offset:32
buffer_store_dwordx4 v[32:35], v40, s[8:11], 0 offen offset:48
s_mov_b64 exec, -1''')
    A('''s_waitcnt vmcnt(0)
s_memtime s[98:99]
s_memrealtime s[4:5]
s_waitcnt lgkmcnt(0)
s_sub_u32 s98, s98, s96
s_sub_u32 s4, s4, s90
s_cmp_eq_u32 s33, 1
s_cselect_b32 s98, s4, s98
v_mov_b32 v20, s98
v_mov_b32 v21, s35
s_lshl_b32 s36, s33, 2
s_add_u32 s36, s36, s32
s_cmp_ge_u32 s36, 8
s_cbranch_scc1 L_end
s_lshl_b32 s36, s36, 3
s_add_u32 s36, s36, 64
v_mov_b32 v22, s36
s_mov_b64 exec, 1
buffer_store_dwordx2 v[20:21], v22, s[12:15], 0 offen
L_end:
s_endpgm''')
    A.raw('.section .rodata,"a"\n.p2align 6')
    A.raw(kd('chain_kernel'))
    return A.text()

if __name__ == '__main__':
    open('chain.s', 'w').write(gen_chain_test())
    open('chain_st.s', 'w').write(gen_chain_test(stamps=True))
```

```python
import math
from gen import *

OSLP = 12; ASLP = 3
W_L16, W_LANE, W_TR, W_VO = 0, 1, 2, 3

def ar(b, n=4): return f'a[{b}:{b+n-1}]'

def worker_setup(A):
    A(f'''v_and_b32 v{W_LANE}, 63, v0
v_lshlrev_b32 v{W_L16}, 4, v{W_LANE}
s_mul_i32 s52, s32, 40960
v_lshlrev_b32 v{W_TR}, 3, v{W_LANE}
v_add_u32 v{W_TR}, s52, v{W_TR}
s_mov_b32 s35, 1000000''')

def load_units(A, units, depth=8, pr=False):
    n_u = len(units)
    def issue(n):
        sl = n % 9
        for mp, (sr, sb, c) in enumerate(units[n][0]):
            A(f's_add_u32 m0, s52, {sl*4096 + mp*1024}')
            A(f's_add_u32 s38, s{sb}, {c}')
            A(f'buffer_load_dwordx4 v{W_VO}, s[{sr}:{sr+3}], s38 offen lds')
    for n in range(min(depth, n_u)): issue(n)
    for n in range(n_u):
        later = min(n_u - 1, n + depth - 1) - n
        A(f's_waitcnt vmcnt({4*later})')
        if pr and n % 4 == 0: prof(A, 80 + n // 4, 66)
        for T in range(2):
            for mp in range(4):
                A(f'ds_read_b64_tr_b16 {units[n][1][mp][T]}, v{W_TR} offset:{(n%9)*4096 + mp*1024 + T*512}')
        if n + depth < n_u:
            A('s_waitcnt lgkmcnt(8)')
            issue(n + depth)
    A('s_waitcnt lgkmcnt(0)\ns_barrier')

def lane_bits(A):
    A(f'''v_bfe_u32 v21, v{W_LANE}, 4, 1
v_bfe_u32 v22, v{W_LANE}, 3, 1
v_bfe_u32 v23, v{W_LANE}, 2, 1
v_bfe_u32 v24, v{W_LANE}, 1, 1
v_and_b32 v25, 1, v{W_LANE}
v_lshrrev_b32 v26, 5, v{W_LANE}''')

def voff_dmap(A, stride):
    lane_bits(A)
    A(f'''v_lshlrev_b32 v27, 3, v21
v_lshl_add_u32 v27, v22, 1, v27
v_lshl_add_u32 v27, v23, 2, v27
v_lshl_add_u32 v27, v24, 5, v27
v_mul_u32_u24 v27, {stride}, v27
v_lshl_add_u32 v27, v26, 5, v27
v_lshl_add_u32 v{W_VO}, v25, 4, v27''')

def drow(t, mp): return 64 * t + 16 * (mp >> 1) + (mp & 1)

def atomic_flag(A, soff, vtmp):
    A(f'''s_mov_b64 exec, 1
v_mov_b32 v{vtmp}, 1
v_mov_b32 v{vtmp+1}, 0
buffer_atomic_add v{vtmp}, v{vtmp+1}, s[8:11], {soff} offen sc1
s_mov_b64 exec, -1''')

def emit_warm(A, thr, wlo, nall):
    NW = (5 - wlo) * 128
    A(f'''s_load_dwordx4 s[16:19], s[0:1], 16
s_load_dwordx4 s[24:27], s[0:1], 32
s_mul_i32 s36, s33, {5-wlo}
s_add_u32 s36, s36, s89
s_sub_u32 s36, s36, {wlo}
s_lshl_b32 s36, s36, 2
s_add_u32 s36, s36, s32
s_lshl_b32 s36, s36, 10
s_mul_i32 s38, s33, 5
s_add_u32 s38, s38, s89
s_lshl_b32 s38, s38, 2
s_add_u32 s38, s38, s32
s_lshl_b32 s38, s38, 10
s_waitcnt lgkmcnt(0)
s_mov_b32 s20, s18
s_and_b32 s21, s19, 0xffff
s_mov_b32 s22, 0x400000
s_mov_b32 s23, 0x20000
s_and_b32 s17, s17, 0xffff
s_mov_b32 s18, 0x400000
s_mov_b32 s19, 0x20000
s_mov_b32 s28, s26
s_and_b32 s29, s27, 0xffff
s_mov_b32 s30, 0x400000
s_mov_b32 s31, 0x20000
s_and_b32 s25, s25, 0xffff
s_mov_b32 s26, 0x400000
s_mov_b32 s27, 0x20000''')
    n = 0
    for j, sr in enumerate((20, 24, 16, 28)):
        if j == nall: A(f's_cmp_lt_u32 s89, {wlo}\ns_cbranch_scc1 L_noln')
        nw, sb = (640, 38) if j < nall else (NW, 36)
        for i in range(-(-4096 // nw)):
            A(f's_add_u32 s37, s{sb}, {i*nw*1024}')
            A(f'buffer_load_dwordx4 v[{112+4*(n%4)}:{115+4*(n%4)}], v{W_L16}, s[{sr}:{sr+3}], s37 offen')
            A(f's_waitcnt vmcnt({thr})')
            n += 1
    for i in range(-(-1024 // NW)):
        A(f's_add_u32 s37, s36, {i*NW*1024}\ns_min_u32 s37, s37, 0xffc00\ns_add_u32 s37, s37, {PARTB}')
        A(f'buffer_load_dwordx4 v[112:115], v{W_L16}, s[8:11], s37 offen')
    A(f's_and_b32 s37, s36, 0x7c00\ns_add_u32 s37, s37, {MEMB}')
    A(f'buffer_load_dwordx4 v[112:115], v{W_L16}, s[8:11], s37 offen')

def emit_init(A):
    A(f'''v_mov_b32 v16, 0
v_mov_b32 v17, 0
v_mov_b32 v18, 0
v_mov_b32 v19, 0
s_lshl_b32 s36, s32, 13
s_add_u32 s37, s36, 4096''')
    for i in range(8):
        A(f'buffer_store_dwordx4 v[16:19], v{W_L16}, s[8:11], s{36 + (i>>2)} offen offset:{(i&3)*1024} sc1')
    A(f'''s_waitcnt vmcnt(0)
s_mov_b64 exec, 1
v_mov_b32 v16, 1
v_mov_b32 v17, {DBG_GATE}
buffer_atomic_add v16, v17, s[12:15], 0 offen sc1
s_mov_b64 exec, -1''')

def emit_ln(A, sseg, gate=True):
    A('s_load_dwordx2 s[4:5], s[0:1], 0\ns_waitcnt lgkmcnt(0)')
    srd(A, 16, 4, 0x200000)
    RAW = 16; X = 48
    A(f'''v_lshlrev_b32 v4, 7, v{W_LANE}
s_lshl_b32 s36, s{sseg}, 15
s_lshl_b32 s37, s32, 13
s_add_u32 s36, s36, s37''')
    for i in range(8): A(f'buffer_load_dwordx4 {vr(RAW+4*i)}, v4, s[16:19], s36 offen offset:{16*i}')
    A(f'''v_and_b32 v5, 7, v{W_LANE}
v_lshlrev_b32 v5, 11, v5
v_lshrrev_b32 v6, 3, v{W_LANE}
v_lshl_add_u32 v5, v6, 4, v5
s_lshl_b32 s36, s{sseg}, 15
s_lshr_b32 s37, s32, 1
s_lshl_b32 s37, s37, 14
s_add_u32 s36, s36, s37
s_and_b32 s37, s32, 1
s_lshl_b32 s37, s37, 7
s_add_u32 s36, s36, s37
s_add_u32 s39, s36, {XFB}
s_mov_b32 s38, 0xffff0000''')
    for i in range(8):
        A(f's_waitcnt vmcnt({7-i})')
        for q in range(4):
            d = 4 * i + q
            A(f'v_lshlrev_b32 v{X+2*d}, 16, v{RAW+d}\nv_and_b32 v{X+2*d+1}, s38, v{RAW+d}')
    def red8(r):
        A(f'''v_add_f32_dpp v{r}, v{r}, v{r} quad_perm:[1,0,3,2] row_mask:0xf bank_mask:0xf
v_add_f32_dpp v{r}, v{r}, v{r} quad_perm:[2,3,0,1] row_mask:0xf bank_mask:0xf
v_add_f32_dpp v{r}, v{r}, v{r} row_half_mirror row_mask:0xf bank_mask:0xf''')
    for a in range(4): A(f'v_add_f32 v{8+a}, v{X+a}, v{X+4+a}')
    for c in range(8, 64): A(f'v_add_f32 v{8+(c&3)}, v{8+(c&3)}, v{X+c}')
    A('v_add_f32 v8, v8, v9\nv_add_f32 v10, v10, v11\nv_add_f32 v8, v8, v10')
    red8(8)
    A(f'v_mul_f32 v7, {f32bits(1/512)}, v8')
    for a in range(4): A(f'v_mov_b32 v{8+a}, 0')
    for c in range(64):
        A(f'v_sub_f32 v{12+(c&3)}, v{X+c}, v7\nv_fmac_f32 v{8+(c&3)}, v{12+(c&3)}, v{12+(c&3)}')
    A('v_add_f32 v8, v8, v9\nv_add_f32 v10, v10, v11\nv_add_f32 v8, v8, v10')
    red8(8)
    A(f'''v_mul_f32 v8, {f32bits(1/512)}, v8
v_cvt_pk_bf16_f32 v9, v7, v8
v_lshlrev_b32 v7, 16, v9
v_and_b32 v8, s38, v9
v_add_f32 v8, {f32bits(1e-5)}, v8
v_cvt_pk_bf16_f32 v8, v8, v8
v_and_b32 v8, s38, v8
v_sqrt_f32 v8, v8
v_cvt_pk_bf16_f32 v8, v8, v8
v_and_b32 v8, s38, v8
v_rcp_f32 v8, v8''')
    confirm(A, 'ln_conf')
    A(f'''v_mov_b32 v12, -1
v_mov_b32 v13, -1
v_mov_b32 v14, -1
v_mov_b32 v15, -1
s_lshl_b32 s36, s{sseg}, 13
s_lshl_b32 s37, s32, 11
s_add_u32 s36, s36, s37
s_add_u32 s36, s36, {GMEMB}
buffer_store_dwordx4 v[12:15], v{W_L16}, s[8:11], s36 offen sc1
buffer_store_dwordx4 v[12:15], v{W_L16}, s[8:11], s36 offen offset:1024 sc1
s_lshl_b32 s36, s{sseg}, 9
s_and_b32 s37, s32, 1
s_lshl_b32 s37, s37, 8
s_add_u32 s36, s36, s37
v_mov_b32 v9, 0
v_lshlrev_b32 v10, 2, v{W_LANE}
buffer_store_dword v9, v10, s[8:11], s36 offen sc1''')
    for hi in range(2):
        for g in range(4):
            b = 16 * hi + 8 * (g >> 1) + 2 * (g & 1)
            o = RAW + 4 * (4 * hi + g)
            for q, c in enumerate((b, b + 4, b + 1, b + 5)):
                lo, hh = X + c, X + c + 32
                A(f'''v_sub_f32 v{lo}, v{lo}, v7
v_sub_f32 v{hh}, v{hh}, v7
v_cvt_pk_bf16_f32 v{hh}, v{lo}, v{hh}
v_lshlrev_b32 v{lo}, 16, v{hh}
v_and_b32 v{hh}, s38, v{hh}
v_mul_f32 v{lo}, v{lo}, v8
v_mul_f32 v{hh}, v{hh}, v8
v_cvt_pk_bf16_f32 v{o+q}, v{lo}, v{hh}''')
            A(f'buffer_store_dwordx4 {vr(o)}, v5, s[8:11], s39 offen offset:{hi*1024+g*256} sc1')
    A(f'''s_waitcnt vmcnt(0)
s_barrier
s_cmp_lg_u32 s32, 0
s_cbranch_scc1 ln_done
s_mov_b64 exec, 1
v_mov_b32 v8, 1
v_mov_b32 v9, {DBG_XNCNT}
buffer_atomic_add v8, v9, s[12:15], 0 offen sc1
s_mov_b64 exec, -1
ln_done:''')

def wait_all_xn(A, lbl, gate=True):
    A(f's_cmp_lg_u32 s32, 0\ns_cbranch_scc1 {lbl}_ok')
    wait_dbg(A, lbl, DBG_XNCNT, 64, 8, 9)
    A('s_barrier')

def xf_loop(A, tag, stride, nst, mfmas, epilogue, flag_soff, active=None, flagks=13, nxt=None):
    XV = 4; XA = [[8, 12], [16, 20]]
    def dma(seg):
        A(f'''s_min_u32 s36, s{seg}, 63
s_lshl_b32 s36, s36, 15
s_add_u32 s36, s36, s42
s_add_u32 s37, s36, 4096
s_mov_b32 m0, s43''')
        for i in range(4): A(f'buffer_load_dwordx4 v{W_L16}, s[8:11], s36 offen offset:{i*1024} sc1 lds')
        A('s_add_u32 m0, s43, 4096')
        for i in range(4): A(f'buffer_load_dwordx4 v{W_L16}, s[8:11], s37 offen offset:{i*1024} sc1 lds')
        A('s_xor_b32 s43, s43, 0x8000')
    A(f'''s_lshl_b32 s43, s32, 13
s_add_u32 s42, s43, {XFB}
v_mov_b32 v{XV}, v{W_L16}
s_mov_b32 s44, -1''')
    dma(40)
    A(f'''s_waitcnt vmcnt(0)
{tag}_top:
s_barrier
s_add_u32 s41, s40, {stride}''')
    if nxt: nxt()
    dma(41)
    if active: A(f's_cmp_eq_u32 s{active}, 0\ns_cbranch_scc1 {tag}_skip')
    def rd(ks):
        for tt in range(2): A.ds(f'ds_read_b128 {vr(XA[ks&1][tt])}, v{XV} offset:{tt*16384 + ks*1024}', f'x{ks}')
    A.lds_q = []
    rd(0)
    for ks in range(16):
        A.wait_lds(f'x{ks}')
        if ks < 15: rd(ks + 1)
        mfmas(ks, XA[ks & 1])
        if ks == flagks:
            A(f's_waitcnt vmcnt(0)\ns_cmp_lt_i32 s44, 0\ns_cbranch_scc1 {tag}_noflag')
            flag_soff(44); atomic_flag(A, 's36', 6)
            A(f'{tag}_noflag:')
    epilogue()
    A(f'''s_mov_b32 s44, s40
{tag}_next:
v_xor_b32 v{XV}, 0x8000, v{XV}
s_mov_b32 s40, s41
s_cmp_lt_u32 s40, 64
s_cbranch_scc1 {tag}_top
s_waitcnt vmcnt(0)''')
    if active: A(f's_cmp_eq_u32 s{active}, 0\ns_cbranch_scc1 {tag}_end')
    flag_soff(44); atomic_flag(A, 's36', 6)
    if active:
        A(f's_branch {tag}_end\n{tag}_skip:\ns_waitcnt vmcnt(0)\ns_branch {tag}_next')
    A(f'{tag}_end:\ns_barrier')

def MFd(A, d, a, b, c): A(f'v_mfma_f32_16x16x32_bf16 {d}, {a}, {b}, {c}')

def qkv_frag(m, t, T):
    i = 2 * t + T
    return {'k': f'a[{8*i}:{8*i+7}]', 'v': f'a[{128+8*i}:{128+8*i+7}]', 'q': f'v[{128+8*i}:{128+8*i+7}]'}[m]

def emit_qkv(A, gate=True):
    A('''s_load_dwordx4 s[16:19], s[0:1], 16
s_load_dwordx2 s[24:25], s[0:1], 32
s_waitcnt lgkmcnt(0)
s_mov_b32 s20, s18
s_and_b32 s21, s19, 0xffff
s_mov_b32 s22, 0x400000
s_mov_b32 s23, 0x20000
s_and_b32 s17, s17, 0xffff
s_mov_b32 s18, 0x400000
s_mov_b32 s19, 0x20000
s_and_b32 s25, s25, 0xffff
s_mov_b32 s26, 0x400000
s_mov_b32 s27, 0x20000
s_lshl_b32 s45, s33, 8
s_lshl_b32 s37, s32, 6
s_add_u32 s45, s45, s37''')
    voff_dmap(A, 8192)
    units = []
    for m in 'kvq':
        for t in range(8):
            sr = {'q': 16, 'k': 20, 'v': 24}[m]
            units.append(([(sr, 45, drow(t, mp) * 8192) for mp in range(4)],
                          [[sub(qkv_frag(m, t, T), 2 * mp, 2) for T in range(2)] for mp in range(4)]))
    load_units(A, units, pr=True)
    confirm(A, 'qkv_conf')
    prof(A, 2, 36, dbg=13)
    wait_all_xn(A, 'qkv_xn', gate)
    prof(A, 3, 36, dbg=15)
    ACC = 24; PKB = 72
    def acc(m, T, tt): return ACC + 4 * ('qkv'.index(m) * 4 + T * 2 + tt)
    def mfmas(ks, XA):
        for m in 'qkv':
            for T in range(2):
                w = sub(qkv_frag(m, ks >> 1, T), 4 * (ks & 1), 4)
                for tt in range(2):
                    d = vr(acc(m, T, tt)); c = '0' if ks == 0 else d
                    if m == 'v': MFd(A, d, vr(XA[tt]), w, c)
                    else: MFd(A, d, w, vr(XA[tt]), c)
    def epi():
        A(f'''s_lshl_b32 s36, s33, 6
s_add_u32 s36, s36, s40
s_lshl_b32 s37, s36, 14
s_lshl_b32 s36, s36, 13
s_lshl_b32 s38, s32, 10
s_add_u32 s36, s36, s38
s_add_u32 s36, s36, {QFB}
s_add_u32 s46, s36, 4096
s_add_u32 s39, s37, s38
s_add_u32 s39, s39, {KVB}
s_add_u32 s47, s39, 4096
s_add_u32 s37, s39, s38
s_add_u32 s37, s37, 8192''')
        def pk(o, a, b):
            A(f'''v_cvt_pk_bf16_f32 v{o}, v{a}, v{a+1}
v_cvt_pk_bf16_f32 v{o+1}, v{a+2}, v{a+3}
v_cvt_pk_bf16_f32 v{o+2}, v{b}, v{b+1}
v_cvt_pk_bf16_f32 v{o+3}, v{b+2}, v{b+3}''')
        n = 0
        for m, so in (('q', (36, 46)), ('k', (39, 47))):
            for tt in range(2):
                o = PKB + 4 * n; n += 1
                pk(o, acc(m, 0, tt), acc(m, 1, tt))
                A(f'buffer_store_dwordx4 {vr(o)}, v{W_L16}, s[8:11], s{so[tt]} offen sc1')
        for T in range(2):
            o = PKB + 4 * n; n += 1
            pk(o, acc('v', T, 0), acc('v', T, 1))
            A(f'buffer_store_dwordx4 {vr(o)}, v{W_L16}, s[8:11], s37 offen offset:{T*1024} sc1')
        A(f'''s_lshl_b32 s36, s40, 18
s_lshl_b32 s37, s33, 12
s_add_u32 s36, s36, s37
s_add_u32 s36, s36, s38
s_add_u32 s36, s36, {OFB}
s_add_u32 s37, s36, 0x20000
buffer_store_dwordx4 v[96:99], v{W_L16}, s[8:11], s36 offen sc1
buffer_store_dwordx4 v[96:99], v{W_L16}, s[8:11], s37 offen sc1''')
    def fl(seg): A(f's_lshl_b32 s36, s33, 8\ns_lshl_b32 s37, s{seg}, 2\ns_add_u32 s36, s36, s37')
    A('v_mov_b64 v[96:97], -1\nv_mov_b64 v[98:99], -1')
    def nxt():
        A('''s_add_u32 s36, s89, 10
s_cmp_lt_u32 s40, 10
s_cselect_b32 s41, s36, s41
s_add_u32 s36, s40, 3
s_cmp_lt_u32 s40, 3
s_cselect_b32 s41, s36, s41''')
    xf_loop(A, 'qkv', 7, 6, mfmas, epi, fl, flagks=5, nxt=nxt)
    prof(A, 4, 36, dbg=14)

def emit_gu(A, nsets):
    A('''s_load_dwordx4 s[16:19], s[0:1], 64
s_waitcnt lgkmcnt(0)
s_mov_b32 s20, s18
s_and_b32 s21, s19, 0xffff
s_mov_b32 s22, 1409024
s_mov_b32 s23, 0x20000
s_and_b32 s17, s17, 0xffff
s_mov_b32 s18, 1409024
s_mov_b32 s19, 0x20000
s_lshl_b32 s49, s48, 2
s_add_u32 s49, s49, s32
s_cmp_lt_u32 s49, 43
s_cselect_b32 s50, 1, 0
s_min_u32 s49, s49, 42
s_lshl_b32 s45, s49, 6''')
    voff_dmap(A, 2752)
    def frag(m, t, T):
        i = 2 * t + T; b = 128 * 'gu'.index(m) + 8 * i
        return f'a[{b}:{b+7}]'
    units = []
    for t in range(8):
        for m in 'gu':
            units.append(([({'g': 16, 'u': 20}[m], 45, drow(t, mp) * 2752) for mp in range(4)],
                          [[sub(frag(m, t, T), 2 * mp, 2) for T in range(2)] for mp in range(4)]))
    load_units(A, units)
    prof(A, 5, 36)
    ACC = 24; PKB = 72
    def acc(m, T, tt): return ACC + 4 * ('gu'.index(m) * 4 + T * 2 + tt)
    def mfmas(ks, XA):
        for m in 'gu':
            for T in range(2):
                w = sub(frag(m, ks >> 1, T), 4 * (ks & 1), 4)
                for tt in range(2):
                    d = vr(acc(m, T, tt)); c = '0' if ks == 0 else d
                    MFd(A, d, w, vr(XA[tt]), c)
    c1 = -2 * math.sqrt(2 / math.pi) * math.log2(math.e); c2 = c1 * 0.044715
    def epi():
        A(f'''s_mul_i32 s36, s40, {2*44*1024}
s_lshl_b32 s37, s49, 10
s_add_u32 s36, s36, s37
s_add_u32 s36, s36, {HFB}
s_add_u32 s37, s36, {44*1024}
s_mov_b32 s38, {f32bits(c2)}
v_mov_b32 v56, {f32bits(c1)}''')
        for tt in range(2):
            for T in range(2):
                g = acc('g', T, tt); u = acc('u', T, tt); t = 60
                for r in range(4): A(f'v_mul_f32 v{t+r}, v{g+r}, v{g+r}')
                for r in range(4): A(f'v_fma_f32 v{t+r}, v{t+r}, s38, v56')
                for r in range(4): A(f'v_mul_f32 v{t+r}, v{t+r}, v{g+r}')
                for r in range(4): A(f'v_exp_f32 v{t+r}, v{t+r}')
                for r in range(4): A(f'v_mul_f32 v{g+r}, v{g+r}, v{u+r}')
                for r in range(4): A(f'v_add_f32 v{t+r}, 1.0, v{t+r}')
                for r in range(4): A(f'v_rcp_f32 v{t+r}, v{t+r}')
                for r in range(4): A(f'v_mul_f32 v{g+r}, v{g+r}, v{t+r}')
                o = PKB + 4 * tt + 2 * T
                A(f'v_cvt_pk_bf16_f32 v{o}, v{g}, v{g+1}\nv_cvt_pk_bf16_f32 v{o+1}, v{g+2}, v{g+3}')
            A(f'buffer_store_dwordx4 {vr(PKB+4*tt)}, v{W_L16}, s[8:11], s{36+tt} offen sc1')
    def fl(seg): A(f's_lshl_b32 s36, s{seg}, 7\ns_add_u32 s36, s36, {FLAGS+F_H}')
    xf_loop(A, 'gu', nsets, 2, mfmas, epi, fl, active=50)
    prof(A, 6, 36)

def emit_att(A, stride):
    IDX, QW, TRA, B0, TMP = 4, 5, 6, 7, 8
    MF_ = [16 + 4 * i for i in range(8)]
    AK = [48, 52]; AV = [56, 60]
    KX = lambda tt, k: 64 + 16 * tt + 4 * k
    QX = lambda tt, k: 96 + 16 * tt + 4 * k
    VX = [128, 132]; KM = [136 + 4 * k for k in range(4)]
    S = {(0, 0): 152, (0, 1): 156, (1, 0): 160, (1, 1): 164, (1, 2): 168}
    PB = [172, 176]; PM = [180, 182]; VM = 184; ONES = 188; ONE2 = 192; NEG = 194
    LS = [196, 200]; O = lambda tt, T: 204 + 8 * tt + 4 * T
    OFR = [220, 224]
    L_M = 0; L_K = 8192
    A(f'''v_and_b32 v21, 8, v{W_LANE}
v_cmp_eq_u32 vcc, 0, v21
v_mov_b32 v22, 0xeeee
v_mov_b32 v23, 0x4444
v_cndmask_b32 v{IDX}, v22, v23, vcc
v_lshrrev_b32 v21, 5, v{W_LANE}
v_and_b32 v22, 15, v{W_LANE}
v_lshl_add_u32 v21, v21, 4, v22
v_lshlrev_b32 v21, 4, v21
v_bfe_u32 v22, v{W_LANE}, 4, 1
v_lshl_add_u32 v21, v22, 3, v21
s_lshl_b32 s38, s32, 9
v_add_u32 v{QW}, s38, v21
v_lshrrev_b32 v21, 2, v{W_LANE}
v_lshlrev_b32 v21, 4, v21
v_and_b32 v22, 1, v{W_LANE}
v_lshl_add_u32 v{TRA}, v22, 3, v21
s_lshl_b32 s53, s32, 11
v_add_u32 v{B0}, s53, v{W_L16}
s_mov_b32 s68, {f32bits(128 ** -0.5 * math.log2(math.e))}
v_mov_b32 v{ONES}, 0x3f803f80
v_mov_b32 v{ONES+1}, 0x3f803f80
v_mov_b32 v{ONES+2}, 0x3f803f80
v_mov_b32 v{ONES+3}, 0x3f803f80
s_mov_b32 s82, -1
s_mov_b32 s83, 0
v_cndmask_b32 v{ONE2}, 0, v{ONES}, s[82:83]
v_cndmask_b32 v{ONE2+1}, 0, v{ONES}, s[82:83]
v_mov_b32 v{NEG}, 0xf149f2ca
v_mov_b32 v{PB[0]+2}, 0
v_mov_b32 v{PB[0]+3}, 0
v_lshrrev_b32 v21, 4, v{W_LANE}
v_lshlrev_b32 v21, 2, v21
v_and_b32 v22, 15, v{W_LANE}''')
    for r in range(4):
        A(f'v_add_u32 v23, {r}, v21\nv_cmp_le_u32 s[{72+2*r}:{73+2*r}], v23, v22')
    A(f'''att_top:
s_lshl_b32 s37, s33, 8
s_lshl_b32 s38, s40, 2
s_add_u32 s37, s37, s38
v_mov_b32 v9, 0''')
    wait_cnt(A, 'att_kv', 8, 9, 's37', 4, 8, sleep=2)
    A(f'''s_lshl_b32 s36, s33, 6
s_add_u32 s36, s36, s40
s_lshl_b32 s37, s36, 14
s_lshl_b32 s36, s36, 13
s_add_u32 s36, s36, {QFB}
s_add_u32 s38, s36, 4096
s_add_u32 s37, s37, {KVB}
s_add_u32 s39, s37, 4096
s_add_u32 s46, s37, 8192''')
    for tt in range(2):
        for k in range(4):
            A(f'buffer_load_dwordx4 {vr(KX(tt,k))}, v{W_L16}, s[8:11], s{(37,39)[tt]} offen offset:{k*1024} sc1')
            A(f'buffer_load_dwordx4 {vr(QX(tt,k))}, v{W_L16}, s[8:11], s{(36,38)[tt]} offen offset:{k*1024} sc1')
    for T in range(2): A(f'buffer_load_dwordx4 {vr(VX[T])}, v{B0}, s[8:11], s46 offen offset:{T*1024} sc1')
    for a in AK + AV: A(f'v_mov_b64 v[{a}:{a+1}], 0\nv_mov_b64 v[{a+2}:{a+3}], 0')
    A('s_waitcnt vmcnt(0)')
    for k in range(4):
        for key in ((0, 1), (1, 1), (1, 2)):
            d = vr(S[key]); MFd(A, d, vr(KX(key[1] - 1, k)), vr(QX(key[0], k)), '0' if k == 0 else d)
    A(f'''s_lshl_b32 s47, s40, 13
s_add_u32 s47, s47, {GMEMB}
att_poll:
buffer_load_dwordx4 {vr(MF_[0])}, v{B0}, s[8:11], s47 offen sc1
buffer_load_dwordx4 {vr(MF_[1])}, v{B0}, s[8:11], s47 offen offset:1024 sc1
s_waitcnt vmcnt(0)
v_max3_u32 v8, v16, v17, v18
v_max3_u32 v8, v8, v19, v20
v_max3_u32 v8, v8, v21, v22
v_max_u32 v8, v8, v23
v_cmp_eq_u32 vcc, -1, v8
s_cbranch_vccz att_ok
s_sleep {ASLP}
s_sub_u32 s35, s35, 1
s_cbranch_scc0 att_poll
s_mov_b32 s35, 0
att_ok:
ds_write_b128 v{B0}, {vr(MF_[0])} offset:{L_M}
ds_write_b128 v{B0}, {vr(MF_[1])} offset:{L_M+1024}
s_waitcnt lgkmcnt(0)
s_barrier''')
    A.lds_q = []
    for t in range(8): A.ds(f'ds_read_b128 {vr(MF_[t])}, v{W_L16} offset:{L_M + t*1024}', f'm{t}')
    def SM(acc, t, m, T): A(f'v_smfmac_f32_16x16x64_bf16 {vr(acc)}, {vr(MF_[t])}, {qkv_frag(m,t,T)}, v{IDX}')
    for t in range(8):
        A.wait_lds(f'm{t}')
        SM(AK[0], t, 'k', 0); SM(AK[1], t, 'k', 1)
    fold = [f'v_permlane32_swap_b32 v{AK[0]+r}, v{AK[1]+r}' for r in range(4)] + [f'v_add_f32 v{AK[0]+r}, v{AK[0]+r}, v{AK[1]+r}' for r in range(4)]
    fold += [f'v_cvt_pk_bf16_f32 v8, v{AK[0]}, v{AK[0]+1}', f'v_cvt_pk_bf16_f32 v9, v{AK[0]+2}, v{AK[0]+3}']
    n = 0
    for t in range(8):
        for T in range(2):
            SM(AV[T], t, 'v', T); n += 1
            if 3 <= n <= 7: A(fold[2*(n-3)]); A(fold[2*(n-3)+1])
            if n == 8: A.ds(f'ds_write_b64 v{QW}, v[8:9] offset:{L_K}', 'kw')
            if n == 12:
                A.wait_lds('kw'); A('s_barrier')
            if n >= 13:
                k = n - 13
                for hf in range(2): A.ds(f'ds_read_b64_tr_b16 {vr(KM[k]+2*hf,2)}, v{TRA} offset:{L_K + k*512 + hf*256}', f'km{k}')
    for key in ((0, 1), (1, 2)):
        for r in range(4): A(f'v_cndmask_b32 v{S[key]+r}, v{NEG}, v{S[key]+r}, s[{72+2*r}:{73+2*r}]')
    for k in range(4):
        A.wait_lds(f'km{k}')
        for tt in range(2):
            d = vr(S[(tt, 0)]); MFd(A, d, vr(KM[k]), vr(QX(tt, k)), '0' if k == 0 else d)
    for T in range(2):
        A(f'v_cvt_pk_bf16_f32 v{VM+2*T}, v{AV[T]}, v{AV[T]+1}\nv_cvt_pk_bf16_f32 v{VM+2*T+1}, v{AV[T]+2}, v{AV[T]+3}')
    A(f'''s_lshl_b32 s36, s40, 18
s_lshl_b32 s37, s33, 12
s_add_u32 s36, s36, s37
s_lshl_b32 s37, s32, 10
s_add_u32 s36, s36, s37
s_add_u32 s36, s36, {OFB}
s_add_u32 s37, s36, 0x20000''')
    for tt in range(2):
        regs = [S[k] + r for k in S if k[0] == tt for r in range(4)]
        m = 8 + 2 * tt; t1 = m + 1
        A(f'v_max3_f32 v{m}, v{regs[0]}, v{regs[1]}, v{regs[2]}')
        i = 3
        while i + 1 < len(regs):
            A(f'v_max3_f32 v{m}, v{m}, v{regs[i]}, v{regs[i+1]}'); i += 2
        A(f'''v_max_f32 v{m}, v{m}, v{regs[i]}
v_mov_b32 v{t1}, v{m}
v_permlane32_swap_b32 v{m}, v{t1}
v_max_f32 v{m}, v{m}, v{t1}
v_mov_b32 v{t1}, v{m}
v_permlane16_swap_b32 v{m}, v{t1}
v_max_f32 v{m}, v{m}, v{t1}
v_mul_f32 v{m}, s68, v{m}''')
        for r in regs: A(f'v_fma_f32 v{r}, v{r}, s68, -v{m}')
        for r in regs: A(f'v_exp_f32 v{r}, v{r}')
        for key in S:
            if key[0] != tt: continue
            o = PM[tt] if key[1] == 0 else PB[tt] + 2 * (key[1] - 1)
            A(f'v_cvt_pk_bf16_f32 v{o}, v{S[key]}, v{S[key]+1}\nv_cvt_pk_bf16_f32 v{o+1}, v{S[key]+2}, v{S[key]+3}')
        MFd(A, vr(LS[tt]), vr(ONES), vr(PB[tt]), '0')
        for T in range(2): MFd(A, vr(O(tt, T)), vr(VX[T]), vr(PB[tt]), '0')
        A(f'v_mfma_f32_16x16x16_bf16 {vr(LS[tt])}, {vr(ONE2,2)}, {vr(PM[tt],2)}, {vr(LS[tt])}')
        for T in range(2): A(f'v_mfma_f32_16x16x16_bf16 {vr(O(tt,T))}, {vr(VM+2*T,2)}, {vr(PM[tt],2)}, {vr(O(tt,T))}')
    for tt in range(2):
        A(f'v_rcp_f32 v12, v{LS[tt]}')
        for T in range(2):
            o = O(tt, T)
            for r in range(4): A(f'v_mul_f32 v{o+r}, v{o+r}, v12')
            A(f'v_cvt_pk_bf16_f32 v{OFR[tt]+2*T}, v{o}, v{o+1}\nv_cvt_pk_bf16_f32 v{OFR[tt]+2*T+1}, v{o+2}, v{o+3}')
        A(f'buffer_store_dwordx4 {vr(OFR[tt])}, v{W_L16}, s[8:11], s{36+tt} offen sc1')
    prof(A, 16, 10, 40)
    A(f'''s_add_u32 s40, s40, {stride}
s_cmp_lt_u32 s40, 64
s_cbranch_scc1 att_top''')

def emit_out(A, nsets):
    A('''s_load_dwordx2 s[4:5], s[0:1], 40
s_load_dwordx4 s[20:23], s[0:1], 80
s_load_dwordx2 s[6:7], s[0:1], 0
s_waitcnt lgkmcnt(0)''')
    srd(A, 16, 4, 0x400000)
    srd(A, 24, 22, 0x200000)
    A('s_and_b32 s21, s21, 0xffff\ns_mov_b32 s22, 1409024\ns_mov_b32 s23, 0x20000')
    srd(A, 28, 6, 0x200000)
    A(f'''v_bfe_u32 v21, v{W_LANE}, 1, 4
v_lshlrev_b32 v21, 10, v21
v_lshrrev_b32 v22, 5, v{W_LANE}
v_lshl_add_u32 v21, v22, 5, v21
v_and_b32 v22, 1, v{W_LANE}
v_lshl_add_u32 v{W_VO}, v22, 4, v21
s_lshl_b32 s37, s48, 6
s_lshl_b32 s45, s32, 20
s_add_u32 s45, s45, s37
s_lshl_b32 s46, s32, 15
s_add_u32 s46, s46, s37''')
    def wo(ks, T): return ar(8 * ks + 4 * T)
    def wd(i, T): return vr(168 + 8 * i + 4 * T)
    units = []
    for u in range(6):
        dm = []; de = []
        for mp in range(4):
            i = 2 * u + (mp >> 1); m2 = mp & 1
            dm.append((20, 46, (128 * i + 16 * m2) * 1024))
            de.append([sub(wd(i, T) if i < 11 else vr(32 + 4 * T), 2 * m2, 2) for T in range(2)])
        units.append((dm, de))
    for u in range(16):
        dm = []; de = []
        for mp in range(4):
            ks = 2 * u + (mp >> 1); m2 = mp & 1
            dm.append((16, 45, (32 * ks + 16 * m2) * 1024))
            de.append([sub(wo(ks, T), 2 * m2, 2) for T in range(2)])
        units.append((dm, de))
    load_units(A, units)
    prof(A, 7, 36)
    ACC = [16, 20]; XR = 24; BF = 32; RW = 4; OA = 5; RW2 = 12
    A(f'''s_lshl_b32 s36, s32, 11
v_add_u32 v{RW}, s36, v{W_L16}
v_mov_b32 v{RW2}, v{RW}
v_and_b32 v21, 15, v{W_LANE}
v_lshlrev_b32 v21, 10, v21
v_lshrrev_b32 v22, 4, v{W_LANE}
v_lshl_add_u32 v21, v22, 3, v21
s_lshl_b32 s36, s48, 6
s_lshl_b32 s37, s32, 5
s_add_u32 s36, s36, s37
v_add_u32 v{OA}, s36, v21
s_lshl_b32 s36, s32, 10
v_add_u32 v6, s36, v{W_L16}
v_mov_b32 v9, 0
v_and_b32 v7, 31, v{W_LANE}
v_lshlrev_b32 v7, 10, v7
out_kv:
buffer_load_dwordx4 v[32:35], v{RW}, s[8:11], 0 offen sc1
buffer_load_dwordx4 v[36:39], v{RW}, s[8:11], 0 offen offset:1024 sc1
s_waitcnt vmcnt(0)
v_min3_u32 v8, v32, v33, v34
v_min3_u32 v8, v8, v35, v36
v_min3_u32 v8, v8, v37, v38
v_min_u32 v8, v8, v39
v_cmp_gt_u32 vcc, 4, v8
s_cbranch_vccz out_top
s_sleep 4
s_sub_u32 s35, s35, 1
s_cbranch_scc0 out_kv
s_mov_b32 s35, 0
out_top:
s_lshr_b32 s41, s40, 1
s_lshl_b32 s42, s41, 7
s_cmp_lg_u32 s32, 0
s_cbranch_scc1 out_h_ok
s_add_u32 s37, s42, {FLAGS+F_H}''')
    wait_cnt(A, 'out_h', 8, 9, 's37', 43, 8, sleep=2)
    A(f'''s_barrier
s_mul_i32 s43, s40, {44*1024}
s_add_u32 s43, s43, {HFB}''')
    for i in range(11):
        A(f's_add_u32 s36, s32, {4*i}\ns_min_u32 s36, s36, 42\ns_lshl_b32 s36, s36, 10\ns_add_u32 s36, s36, s43')
        A(f'buffer_load_dwordx4 {vr(BF+4*i)}, v{W_L16}, s[8:11], s36 offen sc1')
    A(f's_lshl_b32 s44, s40, 14\nbuffer_load_dwordx2 {vr(XR,2)}, v{OA}, s[28:31], s44 offen')
    for i in range(11):
        A(f's_waitcnt vmcnt({11-i})')
        for T in range(2): MFd(A, vr(ACC[T]), wd(i, T), vr(BF + 4 * i), '0' if i == 0 else vr(ACC[T]))
    AC2 = [160, 164]
    A(f'''s_lshl_b32 s43, s40, 17
s_lshl_b32 s37, s32, 15
s_add_u32 s43, s43, s37
s_add_u32 s43, s43, {OFB}
s_cmp_lg_u32 s32, 0
s_cbranch_scc1 out_g_ok
s_lshl_b32 s37, s41, 13
s_add_u32 s37, s37, {GMEMB}
out_g:
buffer_load_dword v8, v9, s[8:11], s37 offen sc1
s_waitcnt vmcnt(0)
v_cmp_eq_u32 vcc, -1, v8
s_cbranch_vccz out_g_ok
s_sleep {OSLP}
s_sub_u32 s35, s35, 1
s_cbranch_scc0 out_g
s_mov_b32 s35, 0
out_g_ok:
s_barrier
out_can:
buffer_load_dword v8, v7, s[8:11], s43 offen offset:1020 sc1
s_waitcnt vmcnt(0)
v_cmp_eq_u32 vcc, -1, v8
s_cbranch_vccz out_ld
s_sleep 1
s_sub_u32 s35, s35, 1
s_cbranch_scc0 out_can
s_mov_b32 s35, 0
out_ld:
s_mov_b32 s36, s43''')
    for i in range(32):
        A(f'buffer_load_dwordx4 {vr(BF+4*i)}, v{W_L16}, s[8:11], s36 offen offset:{(i&3)*1024} sc1')
        if i & 3 == 3: A('s_add_u32 s36, s36, 4096')
    for i in range(32):
        A(f's_waitcnt vmcnt({31-i})')
        for T in range(2): MFd(A, vr(AC2[T]), wo(i, T), vr(BF + 4 * i), vr(ACC[T]) if i == 0 else vr(AC2[T]))
    A(f'''v_cmp_u_f32 vcc, v{AC2[0]}, v{AC2[0]}
s_cbranch_vccz out_red
v_max3_u32 v8, v{BF}, v{BF+1}, v{BF+1}''')
    for i in range(1, 64): A(f'v_max3_u32 v8, v8, v{BF+2*i}, v{BF+2*i+1}')
    A(f'''v_cmp_eq_u32 vcc, -1, v8
s_cbranch_vccz out_red
s_sub_u32 s35, s35, 1
s_cbranch_scc0 out_ld
s_mov_b32 s35, 0
out_red:''')
    ACC = AC2
    A(f'''ds_write_b128 v{RW2}, {vr(ACC[0])}
ds_write_b128 v{RW2}, {vr(ACC[1])} offset:1024
s_waitcnt lgkmcnt(0)
s_barrier
s_cmp_ge_u32 s32, 2
s_cbranch_scc1 out_next''')
    for w in range(4): A(f'ds_read_b128 {vr(BF+4*w)}, v6 offset:{w*2048}')
    A(f'''v_lshlrev_b32 v26, 16, v{XR}
v_and_b32 v27, 0xffff0000, v{XR}
v_lshlrev_b32 v28, 16, v{XR+1}
v_and_b32 v29, 0xffff0000, v{XR+1}
s_waitcnt lgkmcnt(0)''')
    for r in range(4):
        A(f'v_add_f32 v{BF+r}, v{BF+r}, v{BF+4+r}\nv_add_f32 v{BF+8+r}, v{BF+8+r}, v{BF+12+r}')
    for r in range(4):
        A(f'v_add_f32 v{BF+r}, v{BF+r}, v{BF+8+r}\nv_add_f32 v{BF+r}, v{BF+r}, v{26+r}')
    A(f'''v_cvt_pk_bf16_f32 v30, v{BF}, v{BF+1}
v_cvt_pk_bf16_f32 v31, v{BF+2}, v{BF+3}
buffer_store_dwordx2 v[30:31], v{OA}, s[24:27], s44 offen
out_next:
v_xor_b32 v{RW2}, 0x2000, v{RW2}
v_xor_b32 v6, 0x2000, v6''')
    prof(A, 16, 10, 41)
    A(f'''s_add_u32 s40, s40, {nsets}
s_cmp_lt_u32 s40, 128
s_cbranch_scc1 out_top''')

NAME = 'parallel_sum__memory_aug_recurrent_mem_tr__geglu_ffn__prompt_kernel'

def gen_full(profile=False, warm=2, wb=1, badguess=0, codepf=0, claim='bitmap', warmws=1, thr=6, wlo=3, nall=0, **ckw):
    PROF['on'] = profile
    A = Asm()
    A.raw(f'; @launch kernel={NAME} grid=(256,1,1) block=(256,1,1) lds=163840')
    A.raw('.amdgcn_target "amdgcn-amd-amdhsa--gfx950"')
    A.raw(f'.text\n.globl {NAME}\n.p2align 8\n.type {NAME},@function')
    A.label(NAME)
    A('s_cmp_ge_u32 s2, 256\ns_cbranch_scc1 L_end')
    if ckw.get('trip') or profile: A('s_memrealtime s[98:99]')
    if codepf:
        A(f'''s_getpc_b64 s[6:7]
L_pc0:
s_lshr_b32 s4, s2, 3
s_and_b32 s4, s4, 3
s_lshl_b32 s4, s4, 14
v_lshlrev_b32 v2, 6, v0
v_add_u32 v2, s4, v2
v_min_u32 v2, L_end-L_pc0, v2
global_load_dword v127, v2, s[6:7]''')
    common_entry(A)
    if claim == 'bitmap':
        claim_body = '''s_lshl_b32 s39, 1, s37
v_mov_b32 v4, s39
buffer_atomic_or v4, v3, s[12:15], 0 offen sc0 sc1
s_waitcnt vmcnt(0)
v_readfirstlane_b32 s39, v4
s_bitcmp0_b32 s39, s37
s_cbranch_scc1 L_claimed
s_ff0_i32_b32 s37, s39
s_cmp_ge_i32 s37, 0
s_cbranch_scc1 L_claim'''
    else:
        claim_body = '''v_mov_b32 v4, 1
buffer_atomic_add v4, v3, s[12:15], 0 offen sc0 sc1
s_waitcnt vmcnt(0)
v_readfirstlane_b32 s37, v4
s_cmp_lt_u32 s37, 32
s_cbranch_scc1 L_claimed'''
    A(f'''s_and_b32 s3, s3, 7
s_lshr_b32 s36, s2, 3
s_lshl_b32 s94, s3, 5
s_add_u32 s94, s94, s36
{"s_and_b32 s94, s2, 0xf0" if badguess else ""}
s_mov_b32 s95, 0
s_mov_b32 s96, s3
s_cmp_lg_u32 s32, 0
s_cbranch_scc1 L_first
s_mov_b64 exec, 1
s_lshr_b32 s36, s94, 5
s_and_b32 s37, s94, 31
s_mov_b32 s38, 0
L_claim:
s_lshl_b32 s39, s36, 2
s_cmp_eq_u32 s36, 0
s_cselect_b32 s39, {DBG_CTICKET}, s39
v_mov_b32 v3, s39
s_cbranch_scc0 L_claim2
s_cmp_eq_u32 s96, 0
s_cbranch_scc1 L_claim2
v_mov_b32 v4, 1
buffer_atomic_add v4, v3, s[12:15], 0 offen offset:4 sc0 sc1
s_waitcnt vmcnt(0)
L_claim2:
{claim_body}
s_mov_b32 s37, 0
s_add_u32 s38, s38, 1
s_add_u32 s36, s36, 1
s_cmp_le_u32 s36, 7
s_cselect_b32 s36, s36, 1
s_cmp_ge_u32 s38, 8
s_cselect_b32 s36, 0, s36
s_cmp_le_u32 s38, 8
s_cbranch_scc1 L_claim
s_mov_b32 s36, 8
L_claimed:
s_lshl_b32 s36, s36, 5
s_add_u32 s36, s36, s37
v_mov_b32 v3, {L_SLOT}
v_mov_b32 v4, s36
ds_write_b32 v3, v4
s_waitcnt lgkmcnt(0)
s_mov_b64 exec, -1
L_first:''')
    if claim != 'bitmap': confirm(A, 'L_conf0')
    A(f'''L_role:
s_cmp_ge_u32 s94, 256
s_cbranch_scc1 L_end
v_mbcnt_lo_u32_b32 v0, -1, 0
v_mbcnt_hi_u32_b32 v0, -1, v0
s_lshr_b32 s3, s94, 5
s_and_b32 s33, s94, 31
s_lshl_b32 s91, s94, 9
s_add_u32 s91, s91, 0x6000000''')
    prof(A, 0, 36, dbg=8)
    if profile is True: A('v_mov_b32 v36, s98\nbuffer_store_dword v36, off, s[8:11], s91 offset:60')
    A('''s_cmp_lg_u32 s3, 0
s_cbranch_scc1 L_worker''')
    emit_chain(A, gate=True, **ckw)
    if wb: A('s_waitcnt vmcnt(0)\ns_cmp_lg_u32 s32, 0\ns_cbranch_scc1 L_end\ns_cmp_lg_u32 s33, 0\ns_cbranch_scc1 L_end\nbuffer_wbl2 sc1')
    A('s_endpgm\nL_worker:')
    worker_setup(A)
    A('''s_sub_u32 s88, s3, 1
s_lshl_b32 s88, s88, 5
s_add_u32 s88, s88, s33          ; wi
s_mul_i32 s33, s88, 9363
s_lshr_b32 s33, s33, 16          ; h = wi/7
s_mul_i32 s36, s33, 7
s_sub_u32 s89, s88, s36          ; r = wi%7
''')
    if warm:
        A('s_cmp_ge_u32 s89, 5\ns_cbranch_scc1 L_ln')
        emit_warm(A, thr, wlo, nall)
        A('s_branch L_noln\nL_ln:')
    A('''s_cmp_lt_u32 s89, 5
s_cbranch_scc1 L_noln
s_lshl_b32 s90, s33, 1
s_add_u32 s90, s90, s89
s_sub_u32 s90, s90, 5''')
    emit_ln(A, 90)
    A('L_noln:\ns_add_u32 s40, s89, 5\ns_add_u32 s36, s89, 1\ns_cmp_ge_u32 s89, 5\ns_cselect_b32 s40, s36, s40\ns_cmp_lt_u32 s89, 3\ns_cselect_b32 s40, s89, s40')
    prof(A, 1, 36)
    emit_qkv(A)
    A('''s_cmp_lt_u32 s89, 5
s_cbranch_scc1 L_gu
s_sub_u32 s40, s89, 5''')
    emit_att(A, 2)
    A('''s_endpgm
L_gu:
s_mul_i32 s90, s33, 5
s_add_u32 s90, s90, s89          ; oi
s_cmp_ge_u32 s90, 154
s_cbranch_scc1 L_out
s_mul_i32 s40, s90, 5958
s_lshr_b32 s40, s40, 16
s_mul_i32 s36, s40, 11
s_sub_u32 s48, s90, s36''')
    emit_gu(A, 14)
    A('''L_out:
s_lshr_b32 s40, s90, 4
s_and_b32 s48, s90, 15''')
    emit_out(A, 10)
    if PROF['on'] == 'dbg': prof(A, 0, 36, dbg=12)
    A('L_end:\ns_endpgm')
    A.raw('.section .rodata,"a"\n.p2align 6')
    A.raw(kd(NAME))
    return A.text()

if __name__ == '__main__':
    assert all((w * 9363) >> 16 == w // 7 for w in range(224)) and all((w * 5958) >> 16 == w // 11 for w in range(160))
    hdr = open('parallel_sum__memory_aug_recurrent_mem_tr__geglu_ffn__prompt.s.ref').read().split('; Override')[0]
    kw = dict(dB0=16, dA=16, b1pos=7, kfs=6, gB=48, gA=48)
    open('full.s', 'w').write(hdr + gen_full(**kw))
    open('diag.s', 'w').write(hdr + gen_full(profile='dbg', **kw))
    open('diag2.s', 'w').write(hdr + gen_full(profile='dbg', wb=0, **kw))
    for i, ex in enumerate(eval(sys.argv[1]) if len(sys.argv) > 1 else []):
        k2 = dict(kw); k2.update(ex)
        open(f'var{i}.s', 'w').write(hdr + gen_full(**k2))
        open(f'var{i}_dbg.s', 'w').write(hdr + gen_full(profile='dbg', **k2))
        open(f'var{i}_prof.s', 'w').write(hdr + gen_full(profile=True, **k2))
    open('full_prof.s', 'w').write(hdr + gen_full(profile=True, **kw))
```

```python
import sys, math, struct
sys.path.insert(0, 'dev')
from asmlib import Asm

FLAGS = 0x0000000
MEMB  = 0x0070000
HINTB = 0x0068000
PARTB = 0x0100000
GMEMB = 0x0080000
XFB   = 0x0200000
QFB   = 0x1000000
KVB   = 0x2000000
OFB   = 0x4000000
HFB   = 0x5000000
WS_BYTES = 0x10000000
DBG_TICKET = 0
DBG_XNCNT = 192
DBG_CTICKET = 128
L_SLOT = 163836
F_RB = 0x3000; F_XN = 0x2000; F_H = 0x4000; F_O = 0x6000

def f32bits(x): return struct.unpack('<I', struct.pack('<f', x))[0]

def vr(b, n=4): return f'v[{b}:{b+n-1}]'

def srd(A, s, ptr_lo, nbytes):
    A(f'''s_mov_b32 s{s}, s{ptr_lo}
s_and_b32 s{s+1}, s{ptr_lo+1}, 0xffff
s_mov_b32 s{s+2}, {nbytes}
s_mov_b32 s{s+3}, 0x20000''')

PROFB = 0x6000000
PROF = {'on': False, 'n': 0}
def prof(A, idx, vt=None, sidx=None, cyc=False, dbg=None):
    if PROF['on'] == 'dbg':
        if dbg is None: return
        PROF['n'] += 1; l = f"prof_{PROF['n']}"
        A(f'''s_cmp_lg_u32 s32, 0
s_cbranch_scc1 {l}
s_memrealtime s[92:93]
s_waitcnt lgkmcnt(0)
{"s_mov_b32 s92, s98" if dbg == 8 else ""}
s_and_b32 s92, s92, 0x3fffffff
{"s_not_b32 s92, s92" if dbg == 8 else ""}
s_mov_b64 exec, 1
v_mov_b32 v{vt}, s92
v_mov_b32 v{vt+1}, {dbg*4}
buffer_atomic_umax v{vt}, v{vt+1}, s[12:15], 0 offen sc1
s_mov_b64 exec, -1
{l}:''')
        return
    if not PROF['on']: return
    PROF['n'] += 1; l = f"prof_{PROF['n']}"
    A(f'''s_cmp_lg_u32 s32, 0
s_cbranch_scc1 {l}
s_memrealtime s[92:93]
s_memtime s[100:101]
s_waitcnt lgkmcnt(0)
{"s_bitcmp1_b32 s33, 0" + chr(10) + "s_cselect_b32 s92, s100, s92" if cyc else ""}
s_mov_b64 exec, 1
v_mov_b32 v{vt}, s92
v_mov_b32 v{vt+1}, 0''')
    if sidx is None: A(f's_add_u32 s93, s91, {idx*4}')
    else: A(f's_lshl_b32 s93, s{sidx}, 2\ns_add_u32 s93, s93, s91\ns_add_u32 s93, s93, {idx*4}')
    A(f'''buffer_store_dword v{vt}, v{vt+1}, s[8:11], s93 offen
s_mov_b64 exec, -1
{l}:''')

def wait_cnt(A, lbl, srdn, voff, soff, target, vt, sleep=0):
    A(f'''{lbl}:
buffer_load_dword v{vt}, v{voff}, s[{srdn}:{srdn+3}], {soff} offen sc1
s_waitcnt vmcnt(0)
v_readfirstlane_b32 s39, v{vt}
s_and_b32 s36, s39, 0xffff
s_cmp_ge_u32 s36, {target}
s_cbranch_scc1 {lbl}_ok
{f"s_sleep {sleep}" if sleep else ""}
s_sub_u32 s35, s35, 1
s_cbranch_scc0 {lbl}
s_mov_b32 s35, 0
{lbl}_ok:''')

def wait_dbg(A, lbl, off, target, vt, va):
    A(f'v_mov_b32 v{va}, {off}')
    wait_cnt(A, lbl, 12, va, 0, target, vt, sleep=2)

def confirm(A, lbl):
    A(f'''s_cmp_lg_u32 s95, 0
s_cbranch_scc1 {lbl}
s_mov_b32 s95, 1
s_barrier
v_mov_b32 v14, {L_SLOT}
ds_read_b32 v14, v14
s_waitcnt lgkmcnt(0)
v_readfirstlane_b32 s36, v14
s_barrier
s_cmp_eq_u32 s36, s94
s_cbranch_scc1 {lbl}
s_mov_b32 s94, s36
{'v_mov_b32 v14, 160' + chr(10) + 'buffer_atomic_add v14, v14, s[12:15], 0 offen sc1' if PROF.get('trip') else ''}
s_waitcnt vmcnt(0)
s_barrier
s_branch L_role
{lbl}:''')

L_MEM = 0; L_OQK = 8192; L_KV = 16384; L_W = 49152; L_WSZ = 28672
V_L16, V_IDX, V_PST, V_SELV, V_MST, V_QW, V_TR, V_B0, V_B1, V_B2, V_B3, V_WV = range(12)
T0, T1, T2, T3 = 12, 13, 14, 15
M = [16, 20, 24, 36, 28, 40, 32, 44]
AQ0, AQ1, AK0, AK1, AV0, AV1 = 48, 52, 56, 60, 64, 68
P = [72 + 8 * i for i in range(5)]
VB = [V_B0, V_B1, V_B2, V_B3]


def chain_frag_map():
    units = [(m, t) for m in 'qkv' for t in range(8)] + [('o', k, u) for k in range(4) for u in range(2)]
    backed = [('v', 0), ('v', 1), ('k', 0), ('k', 1), ('o', 1, 1), ('o', 2, 1), ('o', 3, 1)]
    res = [u for u in units if u not in backed]
    order = [(m, t) for m in 'kvq' for t in (0, 2, 1, 3, 4, 6, 5, 7)] + [('o', k, u) for u in range(2) for k in range(4)]
    assert sorted(map(str, order)) == sorted(map(str, units))
    loc = {}
    regs = [f'a[{8*i}:{8*i+7}]' for i in range(32)] + [f'v[{112+8*i}:{112+8*i+7}]' for i in range(18)]
    k = 0
    for u in res:
        for T in range(2):
            loc[u + (T,)] = ('reg', regs[k]); k += 1
    assert k == 50
    for i, u in enumerate(backed):
        for T in range(2):
            loc[u + (T,)] = ('lds', i, T)
    return loc, order

def sub(reg, lo, n):
    c = reg[0]; b = int(reg[2:reg.index(':')])
    return f'{c}[{b+lo}:{b+lo+n-1}]'

def emit_chain(A, sc='', tag='c', nsteps=63, gate=False, stamps=False, dB0=0, dB1=0, dA=0, nokv=0, nocomm=0, stsel=None, abl=(),
               prepos=20, depth=6, early1=1, nB=2, gB=24, dmapos=(8, 11, 14, 17), respos=(22, 29), reppos=25, b1pos=5, pf='sc1', dm='sc1', b3k=1, kfs=5, b2pos=42, wpol='', unroll=1, cpre=1, touch=1, swz=5, noB5=0, dI=0, budget=4000000, repidle=0, nA=2, gA=32, midA=2, hint=0, gH=12, pmid=None, look=6, pre0=4, adapt=0, pfast=2, qre=0, slp=1, fullst=0, trip=None, tpos=1, ackB=1, m0pos=16):
    loc, order = chain_frag_map()
    sc = (' ' + sc) if sc else ''
    A(f"""
s_load_dwordx4 s[16:19], s[0:1], 16
s_load_dwordx4 s[24:27], s[0:1], 32
s_load_dwordx2 s[4:5], s[0:1], 8
v_and_b32 v20, 63, v0                 ; lane
v_lshlrev_b32 v{V_L16}, 4, v20
s_mul_i32 s52, s32, {L_WSZ}
s_add_u32 s52, s52, {L_W}
s_mul_i32 s53, s32, 12288
v_bfe_u32 v21, v20, 4, 1               ; g>>1
v_bfe_u32 v22, v20, 3, 1               ; g&1
v_bfe_u32 v23, v20, 2, 1               ; R>>1
v_bfe_u32 v24, v20, 1, 1               ; R&1
v_and_b32 v25, 1, v20                  ; p
v_lshrrev_b32 v26, 5, v20              ; T
v_lshlrev_b32 v27, 3, v21
v_lshl_add_u32 v27, v22, 1, v27
v_lshl_add_u32 v27, v23, 2, v27
v_lshl_add_u32 v27, v24, 5, v27
v_lshlrev_b32 v27, 13, v27
v_lshl_add_u32 v27, v26, 5, v27
v_lshl_add_u32 v32, v25, 4, v27
v_lshlrev_b32 v27, 4, v22
v_lshl_add_u32 v27, v21, 2, v27
v_add_u32 v27, v27, v24
v_lshlrev_b32 v27, 10, v27
v_lshl_add_u32 v27, v26, 6, v27
v_lshl_add_u32 v27, v23, 5, v27
v_lshl_add_u32 v33, v25, 4, v27
v_lshlrev_b32 v27, 3, v20
v_add_u32 v34, s52, v27
v_add_u32 v35, s53, v27
s_lshl_b32 s36, s33, 8
s_lshl_b32 s37, s32, 6
s_add_u32 s36, s36, s37                ; h*256+w*64
s_lshl_b32 s37, s32, 1
""")
    for tau in range(8):
        A(f's_xor_b32 s38, s37, {tau}\ns_lshl_b32 s38, s38, 19\ns_add_u32 s{40+tau}, s38, s36')
    A('s_lshl_b32 s36, s33, 17\ns_lshl_b32 s37, s32, 8\ns_add_u32 s36, s36, s37')
    for k in range(4):
        A(f's_xor_b32 s38, s32, {k}\ns_lshl_b32 s38, s38, 15\ns_add_u32 s{48+k}, s38, s36')
    A(f"""
s_lshr_b32 s36, s33, 3
s_lshl_b32 s36, s36, 4
s_and_b32 s37, s32, 1
s_lshl_b32 s37, s37, 3
s_add_u32 s36, s36, s37
s_and_b32 s39, s33, 7
s_add_u32 s37, s36, s39
s_lshl_b32 s61, s37, 7                 ; Gm*128
v_lshrrev_b32 v21, 4, v20
v_bfe_u32 v22, v20, 2, 1
v_lshl_add_u32 v21, v21, 1, v22
v_lshlrev_b32 v23, 4, v21
v_and_b32 v22, 3, v20
v_lshl_add_u32 v23, v22, 2, v23
v_add_u32 v{V_MST}, s61, v23
v_lshlrev_b32 v24, 10, v21
v_lshl_add_u32 v24, v22, 1, v24
s_lshl_b32 s36, s36, 4
s_lshl_b32 s39, s39, 3
s_add_u32 s39, s36, s39
s_waitcnt lgkmcnt(0)
s_mov_b32 s20, s18
s_and_b32 s21, s19, 0xffff
s_mov_b32 s22, 0x400000
s_mov_b32 s23, 0x20000
s_and_b32 s17, s17, 0xffff
s_mov_b32 s18, 0x400000
s_mov_b32 s19, 0x20000
s_mov_b32 s28, s26
s_and_b32 s29, s27, 0xffff
s_mov_b32 s30, 0x400000
s_mov_b32 s31, 0x20000
s_and_b32 s25, s25, 0xffff
s_mov_b32 s26, 0x400000
s_mov_b32 s27, 0x20000
""")
    srd(A, 84, 4, 8192)
    A('buffer_load_ushort v38, v24, s[84:87], s39 offen\nbuffer_load_ushort v39, v24, s[84:87], s39 offen offset:64')
    NU = len(order)
    fin = {n: loc[order[n] + (0,)][1] for n in range(NU) if loc[order[n] + (0,)][0] == 'lds'}
    slot_of = {}; issue_at = {}; busy = {}; state = {'nxt': 0}
    def try_issue(now):
        while state['nxt'] < NU and state['nxt'] - now <= (pre0 if now < 0 else depth):
            nxt = state['nxt']
            if nxt in fin: cand = [fin[nxt]] if fin[nxt] not in busy else []
            else:
                soon = {fin[m] for m in fin if nxt < m <= nxt + look}
                cand = [s_ for s_ in (7, 8, 9, 0, 1, 2, 3, 4, 5, 6) if s_ not in busy and s_ not in soon and not (s_ == 6 and now < 0)]
            if not cand: break
            busy[cand[0]] = nxt; slot_of[nxt] = cand[0]; issue_at[nxt] = now; state['nxt'] += 1
    try_issue(-1)
    for n in range(NU):
        if n >= 1 and (n - 1) not in fin: del busy[slot_of[n - 1]]
        try_issue(n)
        assert n + 1 >= NU or (n + 1) in slot_of, n
    if tag == 'dbg': print([(n, slot_of[n], issue_at[n]) for n in range(NU)])
    def issue(n):
        u = order[n]; sl = slot_of[n]
        for mp in range(4):
            if sl < 7: A(f's_add_u32 m0, s52, {sl*4096 + mp*1024}')
            else: A(f's_add_u32 m0, s53, {(sl-7)*4096 + mp*1024}')
            if u[0] == 'o':
                A(f's_add_u32 s38, s{48+u[1]}, {(8*(mp>>1)+2*(mp&1))*1024 + 128*u[2]}')
                A(f'buffer_load_dwordx4 v33, s[28:31], s38 offen {wpol} lds')
            else:
                base = {'q': 16, 'k': 20, 'v': 24}[u[0]]
                A(f's_add_u32 s38, s{40+u[1]}, {(16*(mp>>1)+(mp&1))*8192}')
                A(f'buffer_load_dwordx4 v32, s[{base}:{base+3}], s38 offen {wpol} lds')
    npre = 0
    for m in range(NU):
        if issue_at[m] == -1: issue(m); npre += 4
    if gate: confirm(A, f'{tag}_conf')
    A(f"""
s_mov_b32 s35, {budget}
s_lshl_b32 s36, s32, 11                ; w*2048
v_add_u32 v{V_B0}, s36, v{V_L16}
v_xor_b32 v{V_B1}, 2048, v{V_B0}
v_xor_b32 v{V_B2}, 4096, v{V_B0}
v_xor_b32 v{V_B3}, 6144, v{V_B0}
s_add_u32 s54, s36, {MEMB}             ; sMemRd
s_mov_b32 s55, {MEMB + 8192}           ; sMemWr
s_mov_b32 s56, {GMEMB}
v_add_u32 v{V_WV}, s52, v{V_L16}
v_and_b32 v21, 8, v20
v_cmp_eq_u32 vcc, 0, v21
v_mov_b32 v22, 0xeeee
v_mov_b32 v23, 0x4444
v_cndmask_b32 v{V_IDX}, v22, v23, vcc
s_mov_b32 s80, 0x00ff00ff
s_mov_b32 s81, 0x00ff00ff
v_lshrrev_b32 v21, 5, v20
v_bfe_u32 v22, v20, 2, 2
v_lshl_add_u32 v21, v21, 2, v22
v_lshlrev_b32 v21, 12, v21
v_bfe_u32 v22, v20, 4, 1
v_lshl_add_u32 v21, v22, 6, v21
v_and_b32 v22, 3, v20
v_lshl_add_u32 v21, v22, 4, v21
s_lshl_b32 s36, s32, 15
v_add_u32 v21, s36, v21
v_lshrrev_b32 v22, 12, v21
v_mul_u32_u24 v22, {swz}, v22
v_add_u32 v22, s33, v22
v_and_b32 v22, 31, v22
v_lshl_add_u32 v{V_PST}, v22, 7, v21
s_mov_b32 s60, 0                       ; part slot offset
s_mov_b32 s58, {PARTB}
s_mov_b32 s59, {PARTB + 0x20000}
; reducer G = 32*(w&1)+h
s_and_b32 s36, s32, 1
s_lshl_b32 s36, s36, 5
s_add_u32 s36, s36, s33
s_lshl_b32 s37, s36, 12
s_add_u32 s62, s37, {PARTB}
s_mov_b32 s63, s62
; reset region: G2=32*(w>>1)+h, half (w&1)
s_lshr_b32 s38, s32, 1
s_lshl_b32 s38, s38, 5
s_add_u32 s38, s38, s33
s_lshl_b32 s38, s38, 12
s_and_b32 s39, s32, 1
s_lshl_b32 s39, s39, 11
s_add_u32 s38, s38, s39
s_add_u32 s65, s38, {PARTB}
s_lshl_b32 s38, s32, 12
s_add_u32 s66, s38, {L_KV}
s_add_u32 s67, s38, {L_KV + 16384}
s_lshl_b32 s39, s33, 20
s_add_u32 s38, s38, s39
s_add_u32 s57, s38, {KVB}
s_mov_b32 s68, {f32bits(128 ** -0.5 * math.log2(math.e))}
v_lshrrev_b32 v21, 5, v20
v_and_b32 v22, 15, v20
v_lshl_add_u32 v21, v21, 4, v22
v_lshlrev_b32 v21, 4, v21
v_bfe_u32 v22, v20, 4, 1
v_lshl_add_u32 v21, v22, 3, v21
s_lshl_b32 s38, s32, 11
v_add_u32 v{V_QW}, s38, v21
v_lshrrev_b32 v21, 2, v20
v_lshlrev_b32 v21, 4, v21
v_and_b32 v22, 1, v20
v_lshl_add_u32 v{V_TR}, v22, 3, v21
; selector value and masks: i=l&15 ; val=(i&3)==0?0x3f80:(i&3)==1?0x3f800000:0 ; mask q: (i>>2)==q
v_and_b32 v21, 3, v20
v_mov_b32 v22, 0
v_mov_b32 v23, 0x3f80
v_cmp_eq_u32 vcc, 0, v21
v_cndmask_b32 v22, v22, v23, vcc
v_mov_b32 v23, 0x3f800000
v_cmp_eq_u32 vcc, 1, v21
v_cndmask_b32 v{V_SELV}, v22, v23, vcc
s_mov_b32 s72, 0x0f0f0f0f
s_mov_b32 s73, 0x0f0f0f0f
s_mov_b32 s74, 0xf0f0f0f0
s_mov_b32 s75, 0xf0f0f0f0
s_mov_b32 s82, -1
s_mov_b32 s83, 0
s_waitcnt vmcnt({npre})
v_lshl_or_b32 v{T3}, v39, 16, v38
v_mov_b32 v28, -1
v_mov_b32 v29, -1
v_mov_b32 v30, -1
v_mov_b32 v31, -1
v_lshrrev_b32 v21, 3, v20
v_lshlrev_b32 v21, 13, v21
v_and_b32 v22, 7, v20
v_lshl_add_u32 v21, v22, 4, v21
v_add_u32 v21, s61, v21
""")
    def init_rings(isc, lbl):
        A(f"""buffer_store_dwordx4 v[28:31], v{V_L16}, s[8:11], s65 offen{isc}
buffer_store_dwordx4 v[28:31], v{V_L16}, s[8:11], s65 offen offset:1024{isc}
s_add_u32 s64, s65, 0x40000
buffer_store_dwordx4 v[28:31], v{V_L16}, s[8:11], s64 offen{isc}
buffer_store_dwordx4 v[28:31], v{V_L16}, s[8:11], s64 offen offset:1024{isc}
s_cmp_ge_u32 s32, 2
s_cbranch_scc1 {lbl}
s_mov_b32 s38, {MEMB}
s_mov_b64 exec, 0xffffff00
buffer_store_dwordx4 v[28:31], v21, s[8:11], s38 offen{isc}
s_mov_b64 exec, s[80:81]
buffer_store_dword v{T3}, v{V_MST}, s[8:11], s38 offen{isc}
s_mov_b64 exec, -1""")
    NA_, NI_, NB_ = NU - 17, NU - 9, NU - 3
    for n in range(NU):
        u = order[n]; sl = slot_of[n]
        later = sum(1 for m in range(n + 1, NU) if issue_at[m] < n)
        A(f's_waitcnt vmcnt({4*later})')
        if n % 4 == 0: prof(A, 80 + n // 4, 66)
        av = 34 if sl < 7 else 35
        off = (sl if sl < 7 else sl - 7) * 4096
        for T in range(2):
            l = loc[u + (T,)]
            dst = l[1] if l[0] == 'reg' else f'v[{40+8*T}:{47+8*T}]'
            for mp in range(4):
                A(f'ds_read_b64_tr_b16 {sub(dst, 2*mp, 2)}, v{av} offset:{off + mp*1024 + T*512}')
        if n == NA_ and gate:
            A(f'v_mov_b32 v56, {DBG_CTICKET}\nbuffer_load_dwordx2 v[58:59], v56, s[12:15], 0 offen sc1\nbuffer_load_dword v60, v56, s[12:15], 0 offen offset:{DBG_XNCNT-DBG_CTICKET} sc1')
        if n == NI_:
            assert issue_at[n] >= NA_
            if gate:
                A(f"""{tag}_wreg:
v_readfirstlane_b32 s36, v58
v_readfirstlane_b32 s2, v59
v_readfirstlane_b32 s37, v60
s_cmp_eq_u32 s36, -1
s_cselect_b32 s36, s37, 0
s_cmp_ge_u32 s36, 64
s_cbranch_scc1 {tag}_wreg_ok
s_sleep 4
buffer_load_dwordx2 v[58:59], v56, s[12:15], 0 offen sc1
buffer_load_dword v60, v56, s[12:15], 0 offen offset:{DBG_XNCNT-DBG_CTICKET} sc1
s_waitcnt vmcnt(0)
s_sub_u32 s35, s35, 1
s_cbranch_scc0 {tag}_wreg
s_mov_b32 s35, 0
{tag}_wreg_ok:""")
            else: A('s_mov_b32 s2, 0')
            A(f's_cmp_lg_u32 s2, 0\ns_cbranch_scc1 {tag}_initx')
            init_rings(sc, f'{tag}_inited')
            A(f's_branch {tag}_inited\n{tag}_initx:')
            init_rings(' sc1', f'{tag}_inited')
            A(f'{tag}_inited:\ns_add_u32 s64, s65, 0x80000')
        if n == NU - 5 and cpre:
            A(f'''s_getpc_b64 s[6:7]
{tag}_pc:
s_add_u32 s6, s6, {tag}0_top-{tag}_pc
s_addc_u32 s7, s7, 0
v_lshlrev_b32 v60, 2, v{V_L16}
global_load_dword v61, v60, s[6:7]''')
        if n == NI_:
            A(f"""v_lshrrev_b32 v56, 2, v{V_L16}
s_lshl_b32 s88, s33, 8
buffer_load_dword v57, v56, s[8:11], s88 offen sc1""")
        if n == NB_:
            assert issue_at[n] >= NI_
            A(f"""v_cmp_le_u32 s[70:71], 4, v57
v_lshlrev_b32 v62, 2, v{V_L16}
s_nop 0
s_and_b32 s36, s70, 3
s_cmp_lg_u32 s36, 3
s_cbranch_scc1 {tag}_nopf
s_add_u32 s36, s57, 16384
buffer_load_dword v63, v62, s[8:11], s57 offen sc1
buffer_load_dword v63, v62, s[8:11], s36 offen sc1
{tag}_nopf:""")
        if touch and n == NU - tpos:
            if touch == 1:
                A(f'v_lshlrev_b32 v64, 1, v{V_L16}')
                for i in range(4): A(f's_add_u32 s37, s65, {i*0x40000}\nbuffer_load_dword v65, v64, s[8:11], s37 offen sc1')
            else:
                for i in range(8): A(f's_mov_b32 s37, {PARTB + i*0x20000}\nbuffer_load_dword v65, v{V_PST}, s[8:11], s37 offen sc1')
            A(f's_mov_b32 s37, {MEMB}\nbuffer_load_dword v65, v21, s[8:11], s37 offen sc1')
        if n == NU - 2:
            A('buffer_load_dword v57, v56, s[8:11], s88 offen sc1')
        todo = [m for m in range(NU) if issue_at[m] == n]
        if todo:
            A('s_waitcnt lgkmcnt(8)')
            for m in todo: issue(m)
        if n in fin:
            A('s_waitcnt lgkmcnt(0)')
            for T in range(2):
                for hf in range(2):
                    A(f'ds_write_b128 v{V_WV}, {vr(40+8*T+4*hf)} offset:{sl*4096 + T*2048 + hf*1024}')
            A('s_waitcnt lgkmcnt(0)')
    A('s_waitcnt lgkmcnt(0)\ns_barrier')
    prof(A, 1, 36, dbg=9)
    A('s_waitcnt vmcnt(0)')
    A(f'''s_lshl_b32 s36, s33, 4
s_lshl_b32 s37, s32, 2
s_add_u32 s36, s36, s37
s_add_u32 s36, s36, {FLAGS+F_RB}
s_mov_b64 exec, 1
s_cmp_lg_u32 s2, 0
s_cbranch_scc1 {tag}_rbx
buffer_store_dword v28, off, s[8:11], s36{sc}
s_branch {tag}_rb
{tag}_rbx:
buffer_store_dword v28, off, s[8:11], s36 sc1
{tag}_rb:
s_mov_b64 exec, -1''')
    A(f"""v_cmp_le_u32 s[70:71], 4, v57
""")
    A('s_mov_b32 s86, 0x3f803f80\ns_mov_b32 s87, 0x3f803f80\ns_mov_b32 s34, 0\ns_mov_b32 s69, 0')
    poolmap = {('v', 0, 0): M[2], ('v', 0, 1): M[6], ('v', 1, 0): M[5], ('v', 1, 1): P[0],
               ('k', 0, 0): P[1], ('k', 0, 1): P[2], ('k', 1, 0): P[3], ('k', 1, 1): P[4],
               ('o', 1, 1, 0): P[0], ('o', 1, 1, 1): P[1], ('o', 2, 1, 0): P[2], ('o', 2, 1, 1): P[3],
               ('o', 3, 1, 0): P[4], ('o', 3, 1, 1): M[2]}
    def plh(f, hf, tg):
        l = loc[f]
        A.ds(f'ds_read_b128 {vr(poolmap[f] + 4*hf)}, v{V_WV} offset:{l[1]*4096 + l[2]*2048 + hf*1024}', tg)
    def pool_load(f, tg): plh(f, 0, tg); plh(f, 1, tg)
    def kv_ready(lbl):
        A(f's_bitcmp1_b64 s[70:71], s36\ns_cbranch_scc0 {lbl}_slow\n{lbl}_ok:')
    def kv_slow(lbl):
        A(f"""{lbl}_slow:
v_lshrrev_b32 v{T0}, 2, v{V_L16}
s_lshl_b32 s37, s33, 8
buffer_load_dword v{T1}, v{T0}, s[8:11], s37 offen sc1
s_waitcnt vmcnt(0)
v_cmp_le_u32 s[70:71], 4, v{T1}
s_nop 1
s_bitcmp1_b64 s[70:71], s36
s_cbranch_scc1 {lbl}_ok
s_sub_u32 s35, s35, 1
s_cbranch_scc0 {lbl}_slow
s_mov_b32 s35, 0
s_branch {lbl}_ok""")
    def z(a): A(f'v_mov_b64 v[{a}:{a+1}], 0\nv_mov_b64 v[{a+2}:{a+3}], 0')
    def prep_a(mid=None):
        fr = [('v', 1, 1), ('k', 0, 0), ('k', 0, 1), ('k', 1, 0), ('k', 1, 1), ('v', 0, 0), ('v', 0, 1)]
        for i, f in enumerate(fr):
            pool_load(f, 'pi')
            if mid and i in mid: mid[i]()
        for r in (AK0, AK1, AV0, AV1): z(r)
    def prep_b():
        pool_load(('v', 1, 0), 'pi')
    def delay(n):
        if slp and n % 16 == 0:
            if n: A(f's_sleep {n//16}')
            return
        while n > 0:
            k = min(n, 16); A(f's_nop {k-1}'); n -= k
    prof(A, 2, 36)
    if PROF['on'] is True: A('s_memtime s[96:97]')
    slow = []
    for i in range(3 if pf is not None else 2):
        A(f's_mov_b32 s36, {i}'); kv_ready(f'{tag}_kv{i}'); slow.append(f'{tag}_kv{i}')
    A('s_mov_b32 m0, s66')
    for i in range(4): A(f'buffer_load_dwordx4 v{V_L16}, s[8:11], s57 offen offset:{i*1024} sc1 lds')
    A('s_add_u32 s57, s57, 16384')
    prep_a()
    A.wait_lds_all()
    A(f"""v_lshrrev_b32 v{T0}, 1, v{V_L16}
s_mov_b32 s37, {FLAGS+F_RB}
{tag}_wb:
buffer_load_dwordx2 v[{M[0]}:{M[0]+1}], v{T0}, s[8:11], s37 offen sc1
s_waitcnt vmcnt(0)
v_and_b32 v{M[0]}, v{M[0]}, v{M[0]+1}
v_cmp_ne_u32 vcc, -1, v{M[0]}
s_cbranch_vccz {tag}_wb_ok
s_sleep 2
s_sub_u32 s35, s35, 1
s_cbranch_scc0 {tag}_wb
s_mov_b32 s35, 0
{tag}_wb_ok:""")
    if PROF['on'] == 'dbg': prof(A, 0, T0, dbg=10)
    if trip: A('s_memrealtime s[100:101]\ns_waitcnt lgkmcnt(0)')
    acc = {('q', 0): AQ0, ('q', 1): AQ1, ('k', 0): AK0, ('k', 1): AK1, ('v', 0): AV0, ('v', 1): AV1}
    def wreg(frag):
        l = loc[frag]
        return l[1] if l[0] == 'reg' else vr(poolmap[frag], 8)
    def SM(m, tau, T): A(f'v_smfmac_f32_16x16x64_bf16 {vr(acc[(m,T)])}, {vr(M[tau])}, {wreg((m,tau,T))}, v{V_IDX}')
    STP = [40,42,44,46,48,50,52,84,98,16,90,92,94,100]
    cur = {'par': 0}
    def stamp(i):
        if stamps in ('rt', 'cal'):
            if (cur['par'] == 1 and i >= 9) or (cur['par'] == 0 and i <= 2): A(f'{"s_memrealtime" if stamps == "rt" else "s_memtime"} s[{STP[i]}:{STP[i]+1}]')
        elif stamps and cur['par'] == 0 and (stsel is None or i in stsel): A(f's_memtime s[{STP[i]}:{STP[i]+1}]')
    def cal(i, par):
        if stamps == 'cal' and par == 1: A(f's_memtime s[{STP[i]}:{STP[i]+1}]')
    def wrap(r): return f's_bitset0_b32 {r}, 15\n'
    retry = {}; lates = []
    def step(par, ltag, sc):
        t = f'{ltag}{par}'
        KOFF = L_KV + par * 16384; VOFF = KOFF + 8192
        VK, VV = (V_L16, V_B0) if unroll == 2 else (T0, T1)
        A(f'{t}_top:')
        cur['par'] = par
        stamp(0)
        def ldA():
            for u in range(2): A(f'buffer_load_dwordx4 {vr(M[u])}, v{V_L16}, s[8:11], s54 offen offset:{u*1024} sc1')
        def nanA(t=t, ldA=ldA):
            A(f'{t}_reA:\ns_cmp_eq_u32 s3, 2\ns_cbranch_scc1 {t}_okA')
            ldA()
            if adapt: A(f'v_mov_b32 v{T0}, s34\nds_write_b32 v{V_TR}, v{T0} offset:{L_OQK}')
            else: A('s_nop 1')
            for r in (AV0, AV1, AK0, AK1): z(r)
            if qre: A(f's_cmp_eq_u32 s3, 0\ns_mov_b32 s3, 1\ns_cbranch_scc1 {t}_chkA')
            A(f"""{t}_scnA:
s_waitcnt vmcnt({2*nA-2})
v_max3_u32 v{T0}, v{M[0]}, v{M[0]+1}, v{M[0]+2}
v_max3_u32 v{T1}, v{M[0]+3}, v{M[1]}, v{M[1]+1}
v_max3_u32 v{T0}, v{T0}, v{M[1]+2}, v{M[1]+3}
v_max_u32 v{T0}, v{T0}, v{T1}
v_cmp_eq_u32 vcc, -1, v{T0}
s_mov_b32 s3, 2
s_cbranch_vccz {t}_chkA
s_mov_b64 exec, vcc""")
            ldA()
            A(f"""s_mov_b64 exec, -1
s_sub_u32 s35, s35, 1
s_cbranch_scc0 {t}_scnA
s_mov_b32 s35, 0
s_branch {t}_chkA""")
        lates.append(nanA)
        A(f's_mov_b32 m0, s{66+(par^1)}' if unroll == 2 else 's_sub_u32 m0, s67, s69')
        A('s_mov_b32 s3, 0')
        if not nocomm: ldA()
        prep_b()
        for i in range(nA - 1):
            delay(gA)
            if not nocomm: ldA()
        A(f's_waitcnt lgkmcnt(0)\n{t}_chkA:')
        if not nocomm: A(f's_waitcnt vmcnt({2*nA-1})')
        A.lds_q = []
        stamp(1)
        KX = {(tt, k): P[k] + 4 * (tt - 1) for tt in (1, 2) for k in range(4)}
        QF = [AQ0, AQ1, M[0], M[1]]
        KM = [M[2], M[4], M[6], M[3]]
        VX = [P[4], P[4] + 4]
        def ldM(tau): A.ds(f'ds_read_b128 {vr(M[tau])}, v{VB[tau>>1]} offset:{L_MEM + (tau&1)*1024}', f'm{tau}')
        def ldKX(tt, k): A.ds(f'ds_read_b128 {vr(KX[(tt,k)])}, v{VK} offset:{KOFF + (tt-1)*4096 + k*1024}', 'kx')
        def ldVX(T): A.ds(f'ds_read_b128 {vr(VX[T])}, v{VV} offset:{VOFF + T*1024}', 'kx')
        def ldQF(k):
            for hf in range(2): A.ds(f'ds_read_b64_tr_b16 {vr(QF[k]+2*hf,2)}, v{V_TR} offset:{L_OQK + k*2048 + 1024 + hf*256}', f'qf{k}')
        def ldKM(k):
            for hf in range(2): A.ds(f'ds_read_b64_tr_b16 {vr(KM[k]+2*hf,2)}, v{V_TR} offset:{L_OQK + k*2048 + 1536 + hf*256}', f'km{k}')
        def fold(a0, a1, t0):
            ops = []
            for r in range(4): ops.append(f'v_permlane32_swap_b32 v{a0+r}, v{a1+r}')
            for r in range(4): ops.append(f'v_add_f32 v{a0+r}, v{a0+r}, v{a1+r}')
            ops.append(f'v_cvt_pk_bf16_f32 v{t0}, v{a0}, v{a0+1}')
            ops.append(f'v_cvt_pk_bf16_f32 v{t0+1}, v{a0+2}, v{a0+3}')
            return ops
        two = lambda m, tau: [(m, tau, 0), (m, tau, 1)]
        sms = []
        for m in 'vkq': sms += two(m, 0) + two(m, 1)
        for m in 'qkv':
            for tau in (2, 4, 6, 3, 5, 7): sms += two(m, tau)
        assert len(sms) == 48 and len(set(sms)) == 48
        pre = {i: [] for i in range(48)}; post = {i: [] for i in range(48)}
        post[0].append(lambda: A(f'ds_write_b128 v{V_B0}, {vr(M[0])} offset:{L_MEM}'))
        if not nocomm: pre[1].append(lambda: A(f's_waitcnt vmcnt({2*nA-2})'))
        post[1].append(lambda: A(f'ds_write_b128 v{V_B0}, {vr(M[1])} offset:{L_MEM+1024}'))
        post[4].append(lambda: A(f'v_cmp_u_f32 vcc, v{AV0}, v{AV0+1}\nv_cmp_u_f32 s[6:7], v{AV0+2}, v{AV0+3}'))
        for i, r in enumerate((AQ0, AQ0 + 2, AQ1, AQ1 + 2)): post[(0, 2, 3, 6)[i]].append(lambda r=r: A(f'v_mov_b64 v[{r}:{r+1}], 0'))
        sms[1], sms[2] = sms[2], sms[1]
        if not nocomm:
            if ackB: pre[m0pos].append(lambda: A(f's_waitcnt vmcnt({sum(1 for p_ in dmapos if p_ < m0pos)})'))
            else: pre[dmapos[0]].append(lambda: A('s_waitcnt vmcnt(0)'))
        def brA():
            if not nocomm: A(f's_or_b64 vcc, vcc, s[6:7]\ns_cbranch_scc1 {t}_reA')
            A(f'{t}_okA:')
        def b1():
            A('s_waitcnt lgkmcnt(0)\ns_barrier')
            stamp(2)
        pre[6].append(brA)
        pre[b1pos + 1].append(b1)
        for i, tau in enumerate((2, 4, 6, 3, 5, 7)): post[b1pos + 1 + i].append(lambda tau=tau: ldM(tau))
        for i_, tau_ in enumerate((2, 4, 6, 3, 5, 7)): pre[12 + 2 * i_].append(lambda tau_=tau_: A.wait_lds(f'm{tau_}'))
        kxs = [(tt, k) for k in range(4) for tt in (1, 2)]
        for i, pos in enumerate(range(b1pos + 7, b1pos + 15)): post[pos].append(lambda i=i: ldKX(*kxs[i]))
        post[24].append(lambda: ldVX(0)); post[26].append(lambda: ldVX(1))
        if unroll == 1:
            post[8].append(lambda: A(f'v_add_u32 v{T0}, s69, v{V_L16}'))
            post[max(prepos + 1, 16)].append(lambda: A(f'v_add_u32 v{T1}, s69, v{V_B0}'))
        for i, pos in enumerate(dmapos): post[pos].append(lambda i=i: A(f'buffer_load_dwordx4 v{V_L16}, s[8:11], s57 offen offset:{i*1024} {dm} lds'))
        if pf is not None:
            post[prepos - 1].append(lambda: A(f'v_lshlrev_b32 v{T1}, 2, v{V_L16}\ns_add_u32 s36, s57, 16384'))
            post[prepos].append(lambda: A(f'buffer_load_dword v{T2}, v{T1}, s[8:11], s36 offen {pf}'))
        post[prepos].append(lambda: A(f'v_lshrrev_b32 v{T1}, 2, v{V_L16}'))
        post[prepos + 1].append(lambda: A(f'buffer_load_dword v{T2}, v{T1}, s[8:11], s88 offen sc1'))
        if not repidle:
            post[reppos - 1].append(lambda: A('s_cmp_ge_u32 s32, 2'))
            post[reppos].append(lambda: A(f's_cbranch_scc1 {t}_norep\n' + ('' if fullst else 's_mov_b64 exec, s[80:81]\n') + f'buffer_store_dword v{T3}, v{V_MST}, s[8:11], s56 offen sc1\n' + ('' if fullst else 's_mov_b64 exec, -1\n') + f'{t}_norep:'))
        post[reppos + 1].append(lambda: prof(A, 16, M[1], 34, cyc=True))
        post[m0pos].append(lambda: A(f'v_mov_b64 v[{M[0]}:{M[0]+1}], -1'))
        post[m0pos + 1].append(lambda: A(f'v_mov_b64 v[{M[0]+2}:{M[0]+3}], -1'))
        assert respos[0] - 2 >= 12
        post[respos[0]].append(lambda: A(f'buffer_store_dwordx4 {vr(M[0])}, v{V_L16}, s[8:11], s64 offen{sc}'))
        post[respos[1]].append(lambda: A(f'buffer_store_dwordx4 {vr(M[0])}, v{V_L16}, s[8:11], s64 offen offset:1024{sc}'))
        if adapt:
            post[27].append(lambda: A.ds(f'ds_read_b32 v{M[1]}, v{V_TR} offset:{L_OQK}', 'lateflag'))
            post[37].append(lambda: (A.wait_lds('lateflag'), A(f'v_readfirstlane_b32 s89, v{M[1]}')))
        post[11].append(lambda: stamp(3)); post[23].append(lambda: stamp(4)); post[35].append(lambda: stamp(5))
        for i, op in enumerate(fold(AQ0, AQ1, T0)): post[26 + i].append(lambda op=op: A(op))
        post[36].append(lambda: A.ds(f'ds_write_b64 v{V_QW}, v[{T0}:{T1}] offset:{L_OQK+1024}', 'qw'))
        for i, op in enumerate(fold(AK0, AK1, T0)): post[38 + (i * kfs) // 10].append(lambda op=op: A(op))
        post[38 + kfs].append(lambda: A.ds(f'ds_write_b64 v{V_QW}, v[{T0}:{T1}] offset:{L_OQK+1536}', 'kw'))
        pre[b2pos].append(lambda: (A.wait_lds('qw'), A('s_barrier')))
        qpos = [p_ for p_ in range(b2pos, 48) if p_ != 38 + kfs][:4]
        for k, pos in enumerate(qpos): post[pos].append(lambda k=k: ldQF(k))
        for i, f in enumerate(sms):
            if i == 0:
                for fn in pre[0]: fn()
            SM(*f)
            n0 = len(A.items)
            for fn in post[i]: fn()
            if i + 1 < 48:
                for fn in pre[i + 1]: fn()
            gap = A.items[n0:]
            if not any(isinstance(x, str) for x in gap):
                A.items[n0:] = [x for x in gap if x.kind != 'valu'] + [x for x in gap if x.kind == 'valu']
        stamp(6)
        ST = {1: AK0, 2: AK1, 0: M[5]}
        VM = M[7]; ONES = KM[0]; ONE2 = KM[1]; PM = KM[1] + 2; PB = KM[2]; LS = KM[3]; O = [AV0, AV1]
        def MF(d, a, b, c): A(f'v_mfma_f32_16x16x32_bf16 {vr(d)}, {vr(a)}, {vr(b)}, {c}')
        def MF16(d, a, b): A(f'v_mfma_f32_16x16x16_bf16 {vr(d)}, {vr(a,2)}, {vr(b,2)}, {vr(d)}')
        late = [(('o', k, 1, T), hf) for k in (1, 2, 3) for T in (0, 1) for hf in (0, 1)]
        vmc = [f'v_cvt_pk_bf16_f32 v{VM+i}, v{(AV0,AV1)[i>>1]+2*(i&1)}, v{(AV0,AV1)[i>>1]+2*(i&1)+1}' for i in range(4)]
        n = 0
        for k in range(4):
            A.wait_lds(f'qf{k}')
            if k == b3k:
                A.wait_lds('kw'); A('s_barrier')
            for tt in (1, 2):
                MF(ST[tt], KX[(tt, k)], QF[k], '0' if k == 0 else vr(ST[tt]))
                if 2 * b3k <= n < 2 * b3k + 4: ldKM(n - 2 * b3k)
                elif n >= 2: plh(*late.pop(0), 'piii')
                if vmc and n >= 2 and not (2 * b3k <= n < 2 * b3k + 4 and len(vmc) <= 2): A(vmc.pop(0))
                n += 1
        WA = QF
        for k in range(4):
            A.wait_lds(f'km{k}')
            MF(ST[0], KM[k], QF[k], '0' if k == 0 else vr(ST[0]))
            plh(*late.pop(0), 'piii')
            if k == 0: A(f'v_mov_b64 v[{ONES}:{ONES+1}], s[86:87]')
            if k == 1: A(f'v_max3_f32 v{T0}, v{ST[1]}, v{ST[1]+1}, v{ST[1]+2}')
            if k == 2: A(f'v_max3_f32 v{T1}, v{ST[1]+3}, v{ST[2]}, v{ST[2]+1}')
            if k == 3: A(f'v_max3_f32 v{T0}, v{T0}, v{ST[2]+2}, v{ST[2]+3}')
            if vmc and k < 2: A(vmc.pop(0))
        assert not vmc
        stamp(7)
        A(f"""v_max_f32 v{T0}, v{T0}, v{T1}
v_mov_b32 v{T1}, v{T0}
v_mov_b64 v[{ONES+2}:{ONES+3}], s[86:87]
v_cndmask_b32 v{ONE2}, 0, v{ONES}, s[82:83]
v_permlane32_swap_b32 v{T0}, v{T1}
v_cndmask_b32 v{ONE2+1}, 0, v{ONES}, s[82:83]
v_max3_f32 v{T0}, v{T0}, v{T1}, v{ST[0]}
v_max3_f32 v{T1}, v{ST[0]+1}, v{ST[0]+2}, v{ST[0]+3}
v_max_f32 v{T0}, v{T0}, v{T1}
v_mov_b32 v{T1}, v{T0}""")
        z(WA[0])
        A(f"""v_permlane16_swap_b32 v{T0}, v{T1}
v_max_f32 v{T0}, v{T0}, v{T1}
v_mul_f32 v{T0}, s68, v{T0}""")
        for base in (ST[1], ST[2]):
            for r in range(4): A(f'v_fma_f32 v{base+r}, v{base+r}, s68, -v{T0}')
        for base in (ST[1], ST[2]):
            for r in range(4): A(f'v_exp_f32 v{base+r}, v{base+r}')
        b = ST[0]
        A(f"""v_cvt_pk_bf16_f32 v{PB}, v{ST[1]}, v{ST[1]+1}
v_cvt_pk_bf16_f32 v{PB+1}, v{ST[1]+2}, v{ST[1]+3}
v_cvt_pk_bf16_f32 v{PB+2}, v{ST[2]}, v{ST[2]+1}
v_cvt_pk_bf16_f32 v{PB+3}, v{ST[2]+2}, v{ST[2]+3}
v_fma_f32 v{b}, v{b}, s68, -v{T0}
v_fma_f32 v{b+1}, v{b+1}, s68, -v{T0}""")
        MF(LS, ONES, PB, '0')
        plh(*late.pop(0), 'piii')
        A(f'v_fma_f32 v{b+2}, v{b+2}, s68, -v{T0}\nv_fma_f32 v{b+3}, v{b+3}, s68, -v{T0}')
        MF(O[0], VX[0], PB, '0')
        plh(*late.pop(0), 'piii')
        A(f'v_exp_f32 v{b}, v{b}')
        MF(O[1], VX[1], PB, '0')
        A(f"""v_exp_f32 v{b+1}, v{b+1}
v_exp_f32 v{b+2}, v{b+2}
v_exp_f32 v{b+3}, v{b+3}
v_cvt_pk_bf16_f32 v{PM}, v{b}, v{b+1}
v_cvt_pk_bf16_f32 v{PM+1}, v{b+2}, v{b+3}""")
        z(WA[1])
        MF16(LS, ONE2, PM); z(WA[2]); MF16(O[0], VM, PM); z(WA[3]); MF16(O[1], VM + 2, PM)
        stamp(8)
        OF = [AK0, AK1, M[5], PB]
        A(f'v_rcp_f32 v{T0}, v{LS}')
        for T in range(2):
            for r in range(4): A(f'v_mul_f32 v{O[T]+r}, v{O[T]+r}, v{T0}')
            A(f'v_cvt_pk_bf16_f32 v{OF[0]+2*T}, v{O[T]}, v{O[T]+1}\nv_cvt_pk_bf16_f32 v{OF[0]+2*T+1}, v{O[T]+2}, v{O[T]+3}')
        A.ds(f'ds_write_b128 v{V_B0}, {vr(OF[0])} offset:{L_OQK}', 'ow')
        stamp(9)
        def SO(k, a): A(f'v_smfmac_f32_16x16x64_bf16 {vr(WA[a])}, {vr(OF[k])}, {wreg(("o",k,a>>1,a&1))}, v{V_IDX}')
        R = QF; SEL = M[7]; RA = M[5]
        selops = [f'v_cndmask_b32 v{SEL+q}, 0, v{V_SELV}, s[{72+2*(q&1)}:{73+2*(q&1)}]' for q in range(4)]
        for a in range(4):
            SO(0, a); A(selops[a])
        A('s_waitcnt lgkmcnt(0)\ns_barrier'); A.lds_q = []
        for k in range(1, 4): A.ds(f'ds_read_b128 {vr(OF[k])}, v{VB[k]} offset:{L_OQK}', f'o{k}')
        for k in range(1, 4):
            A.wait_lds(f'o{k}')
            for a in (0, 1):
                SO(k, a)
                if late: plh(*late.pop(0), 'piv')
        PK = [AV0, AV1]
        n = 0
        for k in range(1, 4):
            if k == 3: A.wait_lds('piv')
            for a in (2, 3):
                SO(k, a); n += 1
                if early1:
                    if n == 3:
                        for r in range(4): A(f'v_cvt_pk_bf16_f32 v{PK[0]+r}, v{WA[0]+r}, v{WA[1]+r}')
                    if n == 4:
                        A(f'buffer_store_dwordx4 {vr(PK[0])}, v{V_PST}, s[8:11], s58 offen{sc}'); cal(3, par)
                elif n >= 3: A(f'v_cvt_pk_bf16_f32 v{PK[0]+n-3}, v{WA[0]+n-3}, v{WA[1]+n-3}')
        if not early1: A(f'buffer_store_dwordx4 {vr(PK[0])}, v{V_PST}, s[8:11], s58 offen{sc}')
        for r in range(4): A(f'v_cvt_pk_bf16_f32 v{PK[1]+r}, v{WA[2]+r}, v{WA[3]+r}')
        A(f'buffer_store_dwordx4 {vr(PK[1])}, v{V_PST}, s[8:11], s59 offen{sc}')
        stamp(10)
        def book():
            A(f"""s_add_u32 s54, s54, 8192
{wrap('s54')}s_add_u32 s56, s56, 8192
s_add_u32 s57, s57, {0 if nokv else 16384}
s_add_u32 s60, s60, 0x40000
s_and_b32 s60, s60, 0xc0000
s_xor_b32 s64, s60, 0x80000
s_add_u32 s64, s64, s65
s_add_u32 s58, s60, {PARTB}
s_add_u32 s59, s60, {PARTB + 0x20000}
s_xor_b32 s69, s69, 16384
s_add_u32 s34, s34, 1""")
        def ldB():
            for i in range(4): A(f'buffer_load_dwordx4 {vr(R[i])}, v{V_L16}, s[8:11], s62 offen offset:{i*1024} sc1')
        retry[f'{t}B'] = ldB
        A(f's_cmp_ge_u32 s32, 2\ns_cbranch_scc1 {t}_late')
        if nocomm:
            prep_a(); book(); A(f's_branch {t}_join')
        def first():
            if ackB: A('s_waitcnt vmcnt(0)')
            delay(dB0); stamp(11); ldB()
        if adapt:
            A(f's_cmp_eq_u32 s89, s34\ns_cbranch_scc1 {t}_fastB')
            def fastB(t=t, ldB=ldB, RA=RA, par=par):
                A(f'{t}_fastB:')
                def f1(): cal(11, par); ldB()
                if pfast < 0: f1()
                prep_a({pfast: f1}); book()
                for i in range(nB - 1): ldB()
                z(RA)
                A(f's_branch {t}_chkB')
            lates.append(fastB)
        if pmid is None:
            prep_a(); book(); first()
            for i in range(nB - 1):
                delay(gB); ldB()
        else:
            prep_a({pmid: first}); book()
            for i in range(nB - 1): ldB()
        assert R[1] == R[0] + 4 and R[3] == R[2] + 4
        def red(i): A(f'v_smfmac_f32_16x16x64_bf16 {vr(RA)}, {vr(SEL)}, {vr(R[2*i], 8)}, v{V_IDX}')
        z(RA)
        A(f'{t}_chkB:\ns_waitcnt vmcnt({4*(nB-1)+2})')
        red(0)
        A(f's_waitcnt vmcnt({4*(nB-1)})')
        cal(4, par)
        red(1)
        A(f"""v_max3_u32 v{T0}, v{R[0]+3}, v{R[1]+3}, v{R[2]+3}
v_max_u32 v{T0}, v{T0}, v{R[3]+3}
v_cmp_eq_u32 s[6:7], -1, v{T0}
v_cmp_u_f32 vcc, v{RA+2}, v{RA+2}
v_add_f32_dpp v{RA}, v{RA}, v{RA} row_ror:8 row_mask:0xf bank_mask:0xf
v_add_f32_dpp v{RA+1}, v{RA+1}, v{RA+1} row_ror:8 row_mask:0xf bank_mask:0xf
v_cvt_pk_bf16_f32 v{T3}, v{RA}, v{RA+1}
s_cbranch_vccnz {t}_reB
{t}_okB:
{"" if fullst else "s_mov_b64 exec, s[80:81]"}
buffer_store_dword v{T3}, v{V_MST}, s[8:11], s55 offen{sc}
{"" if fullst else "s_mov_b64 exec, -1"}
{t}_join:""")
        def nan_path(t=t, R=R, RA=RA, SEL=SEL, ldB=ldB, red=red):
            A(f"""{t}_reB:
s_cmp_eq_u64 s[6:7], 0
s_cbranch_scc1 {t}_nan
s_mov_b64 exec, s[6:7]""")
            ldB()
            A('s_mov_b64 exec, -1')
            z(RA)
            A(f"""s_sub_u32 s35, s35, 1
s_cbranch_scc0 {t}_chkB
s_mov_b32 s35, 0
{t}_nan:
s_waitcnt vmcnt(0)""")
            fl = [x for r in R for x in range(r, r + 4)]
            A(f'v_max3_u32 v{T0}, v{fl[0]}, v{fl[1]}, v{fl[2]}')
            for i in range(6): A(f'v_max3_u32 v{T0}, v{T0}, v{fl[3+2*i]}, v{fl[4+2*i]}')
            A(f"""v_max_u32 v{T0}, v{T0}, v{fl[15]}
v_cmp_eq_u32 vcc, -1, v{T0}
s_cbranch_vccz {t}_nan2""")
            ldB()
            A(f"""s_sub_u32 s35, s35, 1
s_cbranch_scc0 {t}_nan
s_mov_b32 s35, 0
{t}_nan2:""")
            z(RA); red(0); red(1)
            A(f"""v_add_f32_dpp v{RA}, v{RA}, v{RA} row_ror:8 row_mask:0xf bank_mask:0xf
v_add_f32_dpp v{RA+1}, v{RA+1}, v{RA+1} row_ror:8 row_mask:0xf bank_mask:0xf
v_cvt_pk_bf16_f32 v{T3}, v{RA}, v{RA+1}
s_branch {t}_okB""")
        lates.append(nan_path)
        def late_path(t=t, par=par):
            A(f'{t}_late:')
            prep_a(); book()
            A(f"""
; waves 2,3: sentinel into the mem slot two steps ahead of the one being published
s_add_u32 s36, s55, 16384
{wrap('s36')}ds_read_b32 v{T3}, v{V_MST} offset:{L_MEM}
v_mov_b32 v{T0}, -1
s_sub_u32 s37, s56, 8192
s_mov_b64 exec, s[80:81]
buffer_store_dword v{T0}, v{V_MST}, s[8:11], s36 offen{sc}
s_waitcnt vmcnt(0) lgkmcnt(0)
{f"buffer_store_dword v{T3}, v{V_MST}, s[8:11], s37 offen sc1" if repidle else ""}
s_mov_b64 exec, -1""")
            delay(dI)
            A(f's_branch {t}_join')
        lates.append(late_path)
        stamp(12)
        A(f"""v_cmp_le_u32 s[70:71], 4, v{T2}
s_cmp_eq_u32 s34, {nsteps}
s_cbranch_scc1 {tag}_done
s_add_u32 s62, s63, s60
s_add_u32 s55, s55, 8192
{wrap('s55')}s_add_u32 s36, s34, {2 if pf is not None else 1}""")
        kv_ready(f'{t}_kv'); slow.append(f'{t}_kv')
        if not noB5: A('s_barrier')
        delay(dA)
        stamp(13)
        A.lds_q = []
    if gate: A(f's_cmp_lg_u32 s2, 0\ns_cbranch_scc1 {tag}x0_top')
    for ltag, lsc in ([(tag, sc), (tag + 'x', ' sc1')] if gate else [(tag, sc)]):
        i0 = len(A.items)
        for par in range(unroll): step(par, ltag, lsc)
        if abl:
            import re
            keep = A.items[:i0]
            for it in A.items[i0:]:
                if not isinstance(it, str) and any(re.search(p, it.text) for p in abl): continue
                keep.append(it)
            A.items = keep
        A(f's_branch {ltag}0_top')
        for f in lates: f()
        del lates[:]
    for l in slow: kv_slow(l)
    A(f"""{tag}_done:
s_cmp_ge_u32 s32, 2
s_cbranch_scc1 {tag}_fin
s_mov_b64 exec, s[80:81]
buffer_store_dword v{T3}, v{V_MST}, s[8:11], s56 offen sc1
s_mov_b64 exec, -1
{tag}_fin:""")
    prof(A, 3, 36, dbg=11)
    if trip:
        A(f'''s_memrealtime s[92:93]
s_load_dwordx2 s[4:5], s[0:1], 88
s_waitcnt vmcnt(0) lgkmcnt(0)
s_sub_u32 s36, s100, s98
s_sub_u32 s37, s92, s100
v_mov_b32 v37, 160
buffer_load_dword v36, v37, s[12:15], 0 offen sc1
s_waitcnt vmcnt(0)
v_readfirstlane_b32 s39, v36
s_cmp_lg_u32 s39, 0
s_cbranch_scc1 {tag}_notrip
s_add_u32 s38, s36, s37
s_cmp_gt_u32 s{ {'pro': 36, 'loop': 37, 'tot': 38}[trip[0]] }, {int(trip[1]*100)}
s_cbranch_scc0 {tag}_notrip
s_sub_u32 s37, s37, 10000
v_cvt_f32_u32 v36, s36
v_cvt_f32_i32 v37, s37
v_cvt_pk_bf16_f32 v36, v36, v37
v_mov_b32 v37, 0
global_store_dword v37, v36, s[4:5]
{tag}_notrip:''')
    if PROF['on'] is True:
        A("""s_memtime s[92:93]
s_waitcnt lgkmcnt(0)
s_sub_u32 s92, s92, s96
v_mov_b32 v36, s92
v_mov_b32 v37, s35
s_lshl_b32 s94, s32, 3
s_add_u32 s94, s94, s91
v_mov_b32 v38, 0
s_mov_b64 exec, 1
buffer_store_dwordx2 v[36:37], v38, s[8:11], s94 offen offset:16
s_mov_b64 exec, -1""")

def kd(name, vgpr=512, accum=256):
    return f'''
.amdhsa_kernel {name}
  .amdhsa_next_free_vgpr {vgpr}
  .amdhsa_next_free_sgpr 102
  .amdhsa_accum_offset {accum}
  .amdhsa_group_segment_fixed_size 0
  .amdhsa_kernarg_size 112
  .amdhsa_user_sgpr_count 2
  .amdhsa_user_sgpr_kernarg_segment_ptr 1
  .amdhsa_system_sgpr_workgroup_id_x 1
.end_amdhsa_kernel
'''

def common_entry(A):
    A(f'''
s_load_dwordx4 s[4:7], s[0:1], 96
s_getreg_b32 s3, hwreg(HW_REG_XCC_ID)
s_and_b32 s3, s3, 0xf
v_lshrrev_b32 v1, 6, v0
v_readfirstlane_b32 s32, v1
s_waitcnt lgkmcnt(0)''')
    srd(A, 12, 4, 256)
    srd(A, 8, 6, WS_BYTES)

def gen_chain_test(stamps=False, xcc=0, burn=0, duty=0, **kw):
    A = Asm()
    A.raw('; @launch kernel=chain_kernel grid=(256,1,1) block=(256,1,1) lds=163840')
    A.raw('.amdgcn_target "amdgcn-amd-amdhsa--gfx950"')
    A.raw('.text\n.globl chain_kernel\n.p2align 8\n.type chain_kernel,@function')
    A.label('chain_kernel')
    A('s_cmp_ge_u32 s2, 256\ns_cbranch_scc1 L_end')
    common_entry(A)
    if burn:
        A(f's_mov_b32 s36, {burn}\ns_bitcmp1_b32 s36, s3\ns_cbranch_scc0 L_noburn\ns_mov_b32 s36, {1100 // (1 + duty // 4)}')
        A('v_lshlrev_b32 v1, 9, v0\nv_add_u32 v1, 0x3f9e3f37, v1')
        for i in range(2, 40): A(f'v_xor_b32 v{i}, {0x00130057 * i}, v1')
        A('L_burn:')
        for i in range(16): A(f'v_mfma_f32_16x16x32_bf16 v[{40+4*(i&7)}:{43+4*(i&7)}], v[{4+4*(i&3)}:{7+4*(i&3)}], v[{20+4*(i>>2)}:{23+4*(i>>2)}], v[{40+4*(i&7)}:{43+4*(i&7)}]')
        if duty: A(f's_sleep {duty}')
        A('s_sub_u32 s36, s36, 1\ns_cbranch_scc0 L_burn\ns_endpgm\nL_noburn:')
    A(f's_cmp_lg_u32 s3, {xcc}')
    A('''s_cbranch_scc1 L_end
s_memtime s[96:97]
s_memrealtime s[90:91]
v_mov_b32 v3, 0
v_mov_b32 v4, 1
s_cmp_lg_u32 s32, 0
s_cbranch_scc1 L_noticket
s_mov_b64 exec, 1
buffer_atomic_add v4, v3, s[12:15], 0 offen sc0
s_waitcnt vmcnt(0)
ds_write_b32 v3, v4
s_waitcnt lgkmcnt(0)
s_mov_b64 exec, -1
L_noticket:
s_barrier
ds_read_b32 v4, v3
s_waitcnt lgkmcnt(0)
v_readfirstlane_b32 s33, v4
s_barrier
s_cmp_ge_u32 s33, 32
s_cbranch_scc1 L_end''')
    emit_chain(A, stamps=stamps, cpre=0, **kw)
    if stamps == 'cal':
        A('''s_waitcnt vmcnt(0)
s_memrealtime s[4:5]
s_waitcnt lgkmcnt(0)
s_or_b32 s6, s4, 0x3ff
L_cal:
s_memrealtime s[4:5]
s_memtime s[96:97]
s_waitcnt lgkmcnt(0)
s_cmp_le_u32 s4, s6
s_cbranch_scc1 L_cal
s_mov_b32 s50, s4
s_getreg_b32 s84, hwreg(HW_REG_HW_ID)''')
    if stamps:
        A('s_waitcnt vmcnt(0) lgkmcnt(0)')
        for i, r in enumerate([40,42,44,46,48,50,52,84,98,16,90,92,94,100,96,35]): A(f'v_mov_b32 v{20+i}, s{r}')
        A('''s_lshl_b32 s36, s33, 2
s_add_u32 s36, s36, s32
s_lshl_b32 s36, s36, 6
s_add_u32 s36, s36, 0x8000
v_mov_b32 v40, s36
s_mov_b64 exec, 1
buffer_store_dwordx4 v[20:23], v40, s[8:11], 0 offen
buffer_store_dwordx4 v[24:27], v40, s[8:11], 0 offen offset:16
buffer_store_dwordx4 v[28:31], v40, s[8:11], 0 offen offset:32
buffer_store_dwordx4 v[32:35], v40, s[8:11], 0 offen offset:48
s_mov_b64 exec, -1''')
    A('''s_waitcnt vmcnt(0)
s_memtime s[98:99]
s_memrealtime s[4:5]
s_waitcnt lgkmcnt(0)
s_sub_u32 s98, s98, s96
s_sub_u32 s4, s4, s90
s_cmp_eq_u32 s33, 1
s_cselect_b32 s98, s4, s98
v_mov_b32 v20, s98
v_mov_b32 v21, s35
s_lshl_b32 s36, s33, 2
s_add_u32 s36, s36, s32
s_cmp_ge_u32 s36, 8
s_cbranch_scc1 L_end
s_lshl_b32 s36, s36, 3
s_add_u32 s36, s36, 64
v_mov_b32 v22, s36
s_mov_b64 exec, 1
buffer_store_dwordx2 v[20:21], v22, s[12:15], 0 offen
L_end:
s_endpgm''')
    A.raw('.section .rodata,"a"\n.p2align 6')
    A.raw(kd('chain_kernel'))
    return A.text()

if __name__ == '__main__':
    open('chain.s', 'w').write(gen_chain_test())
    open('chain_st.s', 'w').write(gen_chain_test(stamps=True))
```

```python
import math
from gen import *

OSLP = 12; ASLP = 3
OPT = {'osc': ''}
W_L16, W_LANE, W_TR, W_VO = 0, 1, 2, 3

def ar(b, n=4): return f'a[{b}:{b+n-1}]'

def worker_setup(A):
    A(f'''v_and_b32 v{W_LANE}, 63, v0
v_lshlrev_b32 v{W_L16}, 4, v{W_LANE}
s_mul_i32 s52, s32, 40960
v_lshlrev_b32 v{W_TR}, 3, v{W_LANE}
v_add_u32 v{W_TR}, s52, v{W_TR}
s_mov_b32 s35, 1000000''')

def load_units(A, units, depth=8, pr=False):
    n_u = len(units)
    def issue(n):
        sl = n % 9
        for mp, (sr, sb, c) in enumerate(units[n][0]):
            A(f's_add_u32 m0, s52, {sl*4096 + mp*1024}')
            A(f's_add_u32 s38, s{sb}, {c}')
            A(f'buffer_load_dwordx4 v{W_VO}, s[{sr}:{sr+3}], s38 offen lds')
    for n in range(min(depth, n_u)): issue(n)
    for n in range(n_u):
        later = min(n_u - 1, n + depth - 1) - n
        A(f's_waitcnt vmcnt({4*later})')
        if pr and n % 4 == 0: prof(A, 80 + n // 4, 66)
        for T in range(2):
            for mp in range(4):
                A(f'ds_read_b64_tr_b16 {units[n][1][mp][T]}, v{W_TR} offset:{(n%9)*4096 + mp*1024 + T*512}')
        if n + depth < n_u:
            A('s_waitcnt lgkmcnt(8)')
            issue(n + depth)
    A('s_waitcnt lgkmcnt(0)\ns_barrier')

def lane_bits(A):
    A(f'''v_bfe_u32 v21, v{W_LANE}, 4, 1
v_bfe_u32 v22, v{W_LANE}, 3, 1
v_bfe_u32 v23, v{W_LANE}, 2, 1
v_bfe_u32 v24, v{W_LANE}, 1, 1
v_and_b32 v25, 1, v{W_LANE}
v_lshrrev_b32 v26, 5, v{W_LANE}''')

def voff_dmap(A, stride):
    lane_bits(A)
    A(f'''v_lshlrev_b32 v27, 3, v21
v_lshl_add_u32 v27, v22, 1, v27
v_lshl_add_u32 v27, v23, 2, v27
v_lshl_add_u32 v27, v24, 5, v27
v_mul_u32_u24 v27, {stride}, v27
v_lshl_add_u32 v27, v26, 5, v27
v_lshl_add_u32 v{W_VO}, v25, 4, v27''')

def drow(t, mp): return 64 * t + 16 * (mp >> 1) + (mp & 1)

def atomic_flag(A, soff, vtmp):
    A(f'''s_mov_b64 exec, 1
v_mov_b32 v{vtmp}, 1
v_mov_b32 v{vtmp+1}, 0
buffer_atomic_add v{vtmp}, v{vtmp+1}, s[8:11], {soff} offen sc1
s_mov_b64 exec, -1''')

def emit_warm(A, thr, nw, mats, rings, ffn=False):
    A(f'''s_load_dwordx4 s[16:19], s[0:1], 16
s_load_dwordx4 s[24:27], s[0:1], 32
s_lshl_b32 s36, s36, 2
s_add_u32 s36, s36, s32
s_lshl_b32 s36, s36, 10
s_waitcnt lgkmcnt(0)
s_mov_b32 s20, s18
s_and_b32 s21, s19, 0xffff
s_mov_b32 s22, 0x400000
s_mov_b32 s23, 0x20000
s_and_b32 s17, s17, 0xffff
s_mov_b32 s18, 0x400000
s_mov_b32 s19, 0x20000
s_mov_b32 s28, s26
s_and_b32 s29, s27, 0xffff
s_mov_b32 s30, 0x400000
s_mov_b32 s31, 0x20000
s_and_b32 s25, s25, 0xffff
s_mov_b32 s26, 0x400000
s_mov_b32 s27, 0x20000''')
    n = 0
    if rings:
        for i in range(-(-1024 // nw)):
            A(f's_add_u32 s37, s36, {i*nw*1024 + PARTB}')
            A(f'buffer_load_dwordx4 v[112:115], v{W_L16}, s[8:11], s37 offen')
        A(f's_and_b32 s37, s36, 0x7c00\ns_add_u32 s37, s37, {MEMB}')
        A(f'buffer_load_dwordx4 v[112:115], v{W_L16}, s[8:11], s37 offen')
    def sweep(sr, nblk):
        nonlocal n
        for i in range(-(-nblk // nw)):
            A(f's_add_u32 s37, s36, {i*nw*1024}')
            A(f'buffer_load_dwordx4 v[{112+4*(n%4)}:{115+4*(n%4)}], v{W_L16}, s[{sr}:{sr+3}], s37 offen')
            A(f's_waitcnt vmcnt({thr})')
            n += 1
    for m in mats: sweep({'q': 16, 'k': 20, 'v': 24, 'o': 28}[m], 4096)
    if ffn:
        A('''s_load_dwordx4 s[16:19], s[0:1], 64
s_load_dwordx2 s[24:25], s[0:1], 80
s_waitcnt lgkmcnt(0)
s_mov_b32 s20, s18
s_and_b32 s21, s19, 0xffff
s_mov_b32 s22, 1409024
s_and_b32 s17, s17, 0xffff
s_mov_b32 s18, 1409024
s_mov_b32 s19, 0x20000
s_and_b32 s25, s25, 0xffff
s_mov_b32 s26, 1409024''')
        for sr in (16, 20, 24): sweep(sr, 1376)

def emit_init(A):
    A(f'''v_mov_b32 v16, 0
v_mov_b32 v17, 0
v_mov_b32 v18, 0
v_mov_b32 v19, 0
s_lshl_b32 s36, s32, 13
s_add_u32 s37, s36, 4096''')
    for i in range(8):
        A(f'buffer_store_dwordx4 v[16:19], v{W_L16}, s[8:11], s{36 + (i>>2)} offen offset:{(i&3)*1024} sc1')
    A(f'''s_waitcnt vmcnt(0)
s_mov_b64 exec, 1
v_mov_b32 v16, 1
v_mov_b32 v17, {DBG_GATE}
buffer_atomic_add v16, v17, s[12:15], 0 offen sc1
s_mov_b64 exec, -1''')

def emit_ln(A, sseg, gate=True):
    A('s_load_dwordx2 s[4:5], s[0:1], 0\ns_waitcnt lgkmcnt(0)')
    srd(A, 16, 4, 0x200000)
    RAW = 16; X = 48
    A(f'''v_lshlrev_b32 v4, 7, v{W_LANE}
ln_top:
s_lshl_b32 s36, s{sseg}, 15
s_lshl_b32 s37, s32, 13
s_add_u32 s36, s36, s37''')
    for i in range(8): A(f'buffer_load_dwordx4 {vr(RAW+4*i)}, v4, s[16:19], s36 offen offset:{16*i}')
    A('s_xor_b32 s36, s36, 0x8000\nbuffer_load_dword v112, v4, s[16:19], s36 offen\nbuffer_load_dword v112, v4, s[16:19], s36 offen offset:64')
    A(f'''v_and_b32 v5, 7, v{W_LANE}
v_lshlrev_b32 v5, 11, v5
v_lshrrev_b32 v6, 3, v{W_LANE}
v_lshl_add_u32 v5, v6, 4, v5
s_lshl_b32 s36, s{sseg}, 15
s_lshr_b32 s37, s32, 1
s_lshl_b32 s37, s37, 14
s_add_u32 s36, s36, s37
s_and_b32 s37, s32, 1
s_lshl_b32 s37, s37, 7
s_add_u32 s36, s36, s37
s_add_u32 s39, s36, {XFB}
s_mov_b32 s38, 0xffff0000''')
    for i in range(8):
        A(f's_waitcnt vmcnt({9-i})')
        for q in range(4):
            d = 4 * i + q
            A(f'v_lshlrev_b32 v{X+2*d}, 16, v{RAW+d}\nv_and_b32 v{X+2*d+1}, s38, v{RAW+d}')
    def red8(r):
        A(f'''v_add_f32_dpp v{r}, v{r}, v{r} quad_perm:[1,0,3,2] row_mask:0xf bank_mask:0xf
v_add_f32_dpp v{r}, v{r}, v{r} quad_perm:[2,3,0,1] row_mask:0xf bank_mask:0xf
v_add_f32_dpp v{r}, v{r}, v{r} row_half_mirror row_mask:0xf bank_mask:0xf''')
    for a in range(4): A(f'v_add_f32 v{8+a}, v{X+a}, v{X+4+a}')
    for c in range(8, 64): A(f'v_add_f32 v{8+(c&3)}, v{8+(c&3)}, v{X+c}')
    A('v_add_f32 v8, v8, v9\nv_add_f32 v10, v10, v11\nv_add_f32 v8, v8, v10')
    red8(8)
    A(f'v_mul_f32 v7, {f32bits(1/512)}, v8')
    for a in range(4): A(f'v_mov_b32 v{8+a}, 0')
    for c in range(64):
        A(f'v_sub_f32 v{12+(c&3)}, v{X+c}, v7\nv_fmac_f32 v{8+(c&3)}, v{12+(c&3)}, v{12+(c&3)}')
    A('v_add_f32 v8, v8, v9\nv_add_f32 v10, v10, v11\nv_add_f32 v8, v8, v10')
    red8(8)
    A(f'''v_mul_f32 v8, {f32bits(1/512)}, v8
v_cvt_pk_bf16_f32 v9, v7, v8
v_lshlrev_b32 v7, 16, v9
v_and_b32 v8, s38, v9
v_add_f32 v8, {f32bits(1e-5)}, v8
v_cvt_pk_bf16_f32 v8, v8, v8
v_and_b32 v8, s38, v8
v_sqrt_f32 v8, v8
v_cvt_pk_bf16_f32 v8, v8, v8
v_and_b32 v8, s38, v8
v_rcp_f32 v8, v8''')
    confirm(A, 'ln_conf')
    A(f'''v_mov_b32 v12, -1
v_mov_b32 v13, -1
v_mov_b32 v14, -1
v_mov_b32 v15, -1
s_lshl_b32 s36, s{sseg}, 13
s_lshl_b32 s37, s32, 11
s_add_u32 s36, s36, s37
s_add_u32 s36, s36, {GMEMB}
buffer_store_dwordx4 v[12:15], v{W_L16}, s[8:11], s36 offen sc1
buffer_store_dwordx4 v[12:15], v{W_L16}, s[8:11], s36 offen offset:1024 sc1
s_lshl_b32 s36, s{sseg}, 9
s_and_b32 s37, s32, 1
s_lshl_b32 s37, s37, 8
s_add_u32 s36, s36, s37
v_mov_b32 v9, 0
v_lshlrev_b32 v10, 2, v{W_LANE}
buffer_store_dword v9, v10, s[8:11], s36 offen sc1''')
    for hi in range(2):
        for g in range(4):
            b = 16 * hi + 8 * (g >> 1) + 2 * (g & 1)
            o = RAW + 4 * (4 * hi + g)
            for q, c in enumerate((b, b + 4, b + 1, b + 5)):
                lo, hh = X + c, X + c + 32
                A(f'''v_sub_f32 v{lo}, v{lo}, v7
v_sub_f32 v{hh}, v{hh}, v7
v_cvt_pk_bf16_f32 v{hh}, v{lo}, v{hh}
v_lshlrev_b32 v{lo}, 16, v{hh}
v_and_b32 v{hh}, s38, v{hh}
v_mul_f32 v{lo}, v{lo}, v8
v_mul_f32 v{hh}, v{hh}, v8
v_cvt_pk_bf16_f32 v{o+q}, v{lo}, v{hh}''')
            A(f'buffer_store_dwordx4 {vr(o)}, v5, s[8:11], s39 offen offset:{hi*1024+g*256} sc1')
    A(f'''s_add_u32 s{sseg}, s{sseg}, 1
s_bitcmp1_b32 s{sseg}, 0
s_cbranch_scc1 ln_top
s_waitcnt vmcnt(0)
s_barrier
s_cmp_lg_u32 s32, 0
s_cbranch_scc1 ln_done
s_mov_b64 exec, 1
v_mov_b32 v8, 2
v_mov_b32 v9, {DBG_XNCNT}
buffer_atomic_add v8, v9, s[12:15], 0 offen sc1
s_mov_b64 exec, -1
ln_done:''')

def wait_all_xn(A, lbl, gate=True):
    A(f's_cmp_lg_u32 s32, 0\ns_cbranch_scc1 {lbl}_ok')
    wait_dbg(A, lbl, DBG_XNCNT, 64, 8, 9)
    A('s_barrier')

def xf_loop(A, tag, stride, nst, mfmas, epilogue, flag_soff, active=None, flagks=13, nxt=None):
    XV = 4; XA = [[8, 12], [16, 20]]
    def dma(seg):
        A(f'''s_min_u32 s36, s{seg}, 63
s_lshl_b32 s36, s36, 15
s_add_u32 s36, s36, s42
s_add_u32 s37, s36, 4096
s_mov_b32 m0, s43''')
        for i in range(4): A(f'buffer_load_dwordx4 v{W_L16}, s[8:11], s36 offen offset:{i*1024} sc1 lds')
        A('s_add_u32 m0, s43, 4096')
        for i in range(4): A(f'buffer_load_dwordx4 v{W_L16}, s[8:11], s37 offen offset:{i*1024} sc1 lds')
        A('s_xor_b32 s43, s43, 0x8000')
    A(f'''s_lshl_b32 s43, s32, 13
s_add_u32 s42, s43, {XFB}
v_mov_b32 v{XV}, v{W_L16}
s_mov_b32 s44, -1''')
    dma(40)
    A(f'''s_waitcnt vmcnt(0)
{tag}_top:
s_barrier
s_add_u32 s41, s40, {stride}''')
    if nxt: nxt()
    dma(41)
    if active: A(f's_cmp_eq_u32 s{active}, 0\ns_cbranch_scc1 {tag}_skip')
    def rd(ks):
        for tt in range(2): A.ds(f'ds_read_b128 {vr(XA[ks&1][tt])}, v{XV} offset:{tt*16384 + ks*1024}', f'x{ks}')
    A.lds_q = []
    rd(0)
    for ks in range(16):
        A.wait_lds(f'x{ks}')
        if ks < 15: rd(ks + 1)
        mfmas(ks, XA[ks & 1])
        if ks == flagks:
            A(f's_waitcnt vmcnt(0)\ns_cmp_lt_i32 s44, 0\ns_cbranch_scc1 {tag}_noflag')
            flag_soff(44); atomic_flag(A, 's36', 6)
            A(f'{tag}_noflag:')
    epilogue()
    A(f'''s_mov_b32 s44, s40
{tag}_next:
v_xor_b32 v{XV}, 0x8000, v{XV}
s_mov_b32 s40, s41
s_cmp_lt_u32 s40, 64
s_cbranch_scc1 {tag}_top
s_waitcnt vmcnt(0)''')
    if active: A(f's_cmp_eq_u32 s{active}, 0\ns_cbranch_scc1 {tag}_end')
    flag_soff(44); atomic_flag(A, 's36', 6)
    if active:
        A(f's_branch {tag}_end\n{tag}_skip:\ns_waitcnt vmcnt(0)\ns_branch {tag}_next')
    A(f'{tag}_end:\ns_barrier')

def MFd(A, d, a, b, c): A(f'v_mfma_f32_16x16x32_bf16 {d}, {a}, {b}, {c}')

def qkv_frag(m, t, T):
    i = 2 * t + T
    return {'k': f'a[{8*i}:{8*i+7}]', 'v': f'a[{128+8*i}:{128+8*i+7}]', 'q': f'v[{128+8*i}:{128+8*i+7}]'}[m]

def emit_qkv(A, nf, gate=True):
    A('''s_load_dwordx4 s[16:19], s[0:1], 16
s_load_dwordx2 s[24:25], s[0:1], 32
s_waitcnt lgkmcnt(0)
s_mov_b32 s20, s18
s_and_b32 s21, s19, 0xffff
s_mov_b32 s22, 0x400000
s_mov_b32 s23, 0x20000
s_and_b32 s17, s17, 0xffff
s_mov_b32 s18, 0x400000
s_mov_b32 s19, 0x20000
s_and_b32 s25, s25, 0xffff
s_mov_b32 s26, 0x400000
s_mov_b32 s27, 0x20000
s_lshl_b32 s45, s33, 8
s_lshl_b32 s37, s32, 6
s_add_u32 s45, s45, s37''')
    voff_dmap(A, 8192)
    units = []
    for m in 'kvq':
        for t in range(8):
            sr = {'q': 16, 'k': 20, 'v': 24}[m]
            units.append(([(sr, 45, drow(t, mp) * 8192) for mp in range(4)],
                          [[sub(qkv_frag(m, t, T), 2 * mp, 2) for T in range(2)] for mp in range(4)]))
    load_units(A, units, pr=True)
    confirm(A, 'qkv_conf')
    prof(A, 2, 36, dbg=13)
    wait_all_xn(A, 'qkv_xn', gate)
    prof(A, 3, 36, dbg=15)
    ACC = 24; PKB = 72
    def acc(m, T, tt): return ACC + 4 * ('qkv'.index(m) * 4 + T * 2 + tt)
    def mfmas(ks, XA):
        for m in 'qkv':
            for T in range(2):
                w = sub(qkv_frag(m, ks >> 1, T), 4 * (ks & 1), 4)
                for tt in range(2):
                    d = vr(acc(m, T, tt)); c = '0' if ks == 0 else d
                    if m == 'v': MFd(A, d, vr(XA[tt]), w, c)
                    else: MFd(A, d, w, vr(XA[tt]), c)
    def epi():
        A(f'''s_lshl_b32 s36, s33, 6
s_add_u32 s36, s36, s40
s_lshl_b32 s37, s36, 14
s_lshl_b32 s36, s36, 13
s_lshl_b32 s38, s32, 10
s_add_u32 s36, s36, s38
s_add_u32 s36, s36, {QFB}
s_add_u32 s46, s36, 4096
s_add_u32 s39, s37, s38
s_add_u32 s39, s39, {KVB}
s_add_u32 s47, s39, 4096
s_add_u32 s37, s39, s38
s_add_u32 s37, s37, 8192''')
        def pk(o, a, b):
            A(f'''v_cvt_pk_bf16_f32 v{o}, v{a}, v{a+1}
v_cvt_pk_bf16_f32 v{o+1}, v{a+2}, v{a+3}
v_cvt_pk_bf16_f32 v{o+2}, v{b}, v{b+1}
v_cvt_pk_bf16_f32 v{o+3}, v{b+2}, v{b+3}''')
        n = 0
        for m, so in (('q', (36, 46)), ('k', (39, 47))):
            for tt in range(2):
                o = PKB + 4 * n; n += 1
                pk(o, acc(m, 0, tt), acc(m, 1, tt))
                A(f'buffer_store_dwordx4 {vr(o)}, v{W_L16}, s[8:11], s{so[tt]} offen sc1')
        for T in range(2):
            o = PKB + 4 * n; n += 1
            pk(o, acc('v', T, 0), acc('v', T, 1))
            A(f'buffer_store_dwordx4 {vr(o)}, v{W_L16}, s[8:11], s37 offen offset:{T*1024} sc1')
        A(f'''s_lshl_b32 s36, s40, 18
s_lshl_b32 s37, s33, 12
s_add_u32 s36, s36, s37
s_add_u32 s36, s36, s38
s_add_u32 s36, s36, {OFB}
s_add_u32 s37, s36, 0x20000
buffer_store_dwordx4 v[96:99], v{W_L16}, s[8:11], s36 offen sc1
buffer_store_dwordx4 v[96:99], v{W_L16}, s[8:11], s37 offen sc1''')
    def fl(seg): A(f's_lshl_b32 s36, s33, 8\ns_lshl_b32 s37, s{seg}, 2\ns_add_u32 s36, s36, s37')
    A('v_mov_b64 v[96:97], -1\nv_mov_b64 v[98:99], -1')
    def nxt():
        A(f'''s_sub_u32 s36, {11+nf}, s89
s_cmp_lt_u32 s40, {6+nf}
s_cselect_b32 s41, s36, s41
s_add_u32 s36, s40, {nf}
s_cmp_lt_u32 s40, {nf}
s_cselect_b32 s41, s36, s41''')
    xf_loop(A, 'qkv', 6, 6, mfmas, epi, fl, flagks=5, nxt=nxt)
    prof(A, 4, 36, dbg=14)

def emit_gu(A, nsets):
    A('''s_load_dwordx4 s[16:19], s[0:1], 64
s_waitcnt lgkmcnt(0)
s_mov_b32 s20, s18
s_and_b32 s21, s19, 0xffff
s_mov_b32 s22, 1409024
s_mov_b32 s23, 0x20000
s_and_b32 s17, s17, 0xffff
s_mov_b32 s18, 1409024
s_mov_b32 s19, 0x20000
s_lshl_b32 s49, s48, 2
s_add_u32 s49, s49, s32
s_cmp_lt_u32 s49, 43
s_cselect_b32 s50, 1, 0
s_min_u32 s49, s49, 42
s_lshl_b32 s45, s49, 6''')
    voff_dmap(A, 2752)
    def frag(m, t, T):
        i = 2 * t + T; b = 128 * 'gu'.index(m) + 8 * i
        return f'a[{b}:{b+7}]'
    units = []
    for t in range(8):
        for m in 'gu':
            units.append(([({'g': 16, 'u': 20}[m], 45, drow(t, mp) * 2752) for mp in range(4)],
                          [[sub(frag(m, t, T), 2 * mp, 2) for T in range(2)] for mp in range(4)]))
    load_units(A, units)
    prof(A, 5, 36)
    ACC = 24; PKB = 72
    def acc(m, T, tt): return ACC + 4 * ('gu'.index(m) * 4 + T * 2 + tt)
    def mfmas(ks, XA):
        for m in 'gu':
            for T in range(2):
                w = sub(frag(m, ks >> 1, T), 4 * (ks & 1), 4)
                for tt in range(2):
                    d = vr(acc(m, T, tt)); c = '0' if ks == 0 else d
                    MFd(A, d, w, vr(XA[tt]), c)
    c1 = -2 * math.sqrt(2 / math.pi) * math.log2(math.e); c2 = c1 * 0.044715
    def epi():
        A(f'''s_mul_i32 s36, s40, {2*44*1024}
s_lshl_b32 s37, s49, 10
s_add_u32 s36, s36, s37
s_add_u32 s36, s36, {HFB}
s_add_u32 s37, s36, {44*1024}
s_mov_b32 s38, {f32bits(c2)}
v_mov_b32 v56, {f32bits(c1)}''')
        for tt in range(2):
            for T in range(2):
                g = acc('g', T, tt); u = acc('u', T, tt); t = 60
                for r in range(4): A(f'v_mul_f32 v{t+r}, v{g+r}, v{g+r}')
                for r in range(4): A(f'v_fma_f32 v{t+r}, v{t+r}, s38, v56')
                for r in range(4): A(f'v_mul_f32 v{t+r}, v{t+r}, v{g+r}')
                for r in range(4): A(f'v_exp_f32 v{t+r}, v{t+r}')
                for r in range(4): A(f'v_mul_f32 v{g+r}, v{g+r}, v{u+r}')
                for r in range(4): A(f'v_add_f32 v{t+r}, 1.0, v{t+r}')
                for r in range(4): A(f'v_rcp_f32 v{t+r}, v{t+r}')
                for r in range(4): A(f'v_mul_f32 v{g+r}, v{g+r}, v{t+r}')
                o = PKB + 4 * tt + 2 * T
                A(f'v_cvt_pk_bf16_f32 v{o}, v{g}, v{g+1}\nv_cvt_pk_bf16_f32 v{o+1}, v{g+2}, v{g+3}')
            A(f'buffer_store_dwordx4 {vr(PKB+4*tt)}, v{W_L16}, s[8:11], s{36+tt} offen sc1')
    def fl(seg): A(f's_lshl_b32 s36, s{seg}, 7\ns_add_u32 s36, s36, {FLAGS+F_H}')
    xf_loop(A, 'gu', nsets, 2, mfmas, epi, fl, active=50)
    prof(A, 6, 36)

def emit_att(A, stride):
    IDX, QW, TRA, B0, TMP = 4, 5, 6, 7, 8
    MF_ = [16 + 4 * i for i in range(8)]
    AK = [48, 52]; AV = [56, 60]
    KX = lambda tt, k: 64 + 16 * tt + 4 * k
    QX = lambda tt, k: 96 + 16 * tt + 4 * k
    VX = [128, 132]; KM = [136 + 4 * k for k in range(4)]
    S = {(0, 0): 152, (0, 1): 156, (1, 0): 160, (1, 1): 164, (1, 2): 168}
    PB = [172, 176]; PM = [180, 182]; VM = 184; ONES = 188; ONE2 = 192; NEG = 194
    LS = [196, 200]; O = lambda tt, T: 204 + 8 * tt + 4 * T
    OFR = [220, 224]
    L_M = 0; L_K = 8192
    A(f'''v_and_b32 v21, 8, v{W_LANE}
v_cmp_eq_u32 vcc, 0, v21
v_mov_b32 v22, 0xeeee
v_mov_b32 v23, 0x4444
v_cndmask_b32 v{IDX}, v22, v23, vcc
v_lshrrev_b32 v21, 5, v{W_LANE}
v_and_b32 v22, 15, v{W_LANE}
v_lshl_add_u32 v21, v21, 4, v22
v_lshlrev_b32 v21, 4, v21
v_bfe_u32 v22, v{W_LANE}, 4, 1
v_lshl_add_u32 v21, v22, 3, v21
s_lshl_b32 s38, s32, 9
v_add_u32 v{QW}, s38, v21
v_lshrrev_b32 v21, 2, v{W_LANE}
v_lshlrev_b32 v21, 4, v21
v_and_b32 v22, 1, v{W_LANE}
v_lshl_add_u32 v{TRA}, v22, 3, v21
s_lshl_b32 s53, s32, 11
v_add_u32 v{B0}, s53, v{W_L16}
s_mov_b32 s68, {f32bits(128 ** -0.5 * math.log2(math.e))}
v_mov_b32 v{ONES}, 0x3f803f80
v_mov_b32 v{ONES+1}, 0x3f803f80
v_mov_b32 v{ONES+2}, 0x3f803f80
v_mov_b32 v{ONES+3}, 0x3f803f80
s_mov_b32 s82, -1
s_mov_b32 s83, 0
v_cndmask_b32 v{ONE2}, 0, v{ONES}, s[82:83]
v_cndmask_b32 v{ONE2+1}, 0, v{ONES}, s[82:83]
v_mov_b32 v{NEG}, 0xf149f2ca
v_mov_b32 v{PB[0]+2}, 0
v_mov_b32 v{PB[0]+3}, 0
v_lshrrev_b32 v21, 4, v{W_LANE}
v_lshlrev_b32 v21, 2, v21
v_and_b32 v22, 15, v{W_LANE}''')
    for r in range(4):
        A(f'v_add_u32 v23, {r}, v21\nv_cmp_le_u32 s[{72+2*r}:{73+2*r}], v23, v22')
    A(f'''att_top:
s_lshl_b32 s37, s33, 8
s_lshl_b32 s38, s40, 2
s_add_u32 s37, s37, s38
v_mov_b32 v9, 0''')
    wait_cnt(A, 'att_kv', 8, 9, 's37', 4, 8, sleep=2)
    A(f'''s_lshl_b32 s36, s33, 6
s_add_u32 s36, s36, s40
s_lshl_b32 s37, s36, 14
s_lshl_b32 s36, s36, 13
s_add_u32 s36, s36, {QFB}
s_add_u32 s38, s36, 4096
s_add_u32 s37, s37, {KVB}
s_add_u32 s39, s37, 4096
s_add_u32 s46, s37, 8192''')
    for tt in range(2):
        for k in range(4):
            A(f'buffer_load_dwordx4 {vr(KX(tt,k))}, v{W_L16}, s[8:11], s{(37,39)[tt]} offen offset:{k*1024} sc1')
            A(f'buffer_load_dwordx4 {vr(QX(tt,k))}, v{W_L16}, s[8:11], s{(36,38)[tt]} offen offset:{k*1024} sc1')
    for T in range(2): A(f'buffer_load_dwordx4 {vr(VX[T])}, v{B0}, s[8:11], s46 offen offset:{T*1024} sc1')
    for a in AK + AV: A(f'v_mov_b64 v[{a}:{a+1}], 0\nv_mov_b64 v[{a+2}:{a+3}], 0')
    A('s_waitcnt vmcnt(0)')
    for k in range(4):
        for key in ((0, 1), (1, 1), (1, 2)):
            d = vr(S[key]); MFd(A, d, vr(KX(key[1] - 1, k)), vr(QX(key[0], k)), '0' if k == 0 else d)
    A(f'''s_lshl_b32 s47, s40, 13
s_add_u32 s47, s47, {GMEMB}
att_poll:
buffer_load_dwordx4 {vr(MF_[0])}, v{B0}, s[8:11], s47 offen sc1
buffer_load_dwordx4 {vr(MF_[1])}, v{B0}, s[8:11], s47 offen offset:1024 sc1
s_waitcnt vmcnt(0)
v_max3_u32 v8, v16, v17, v18
v_max3_u32 v8, v8, v19, v20
v_max3_u32 v8, v8, v21, v22
v_max_u32 v8, v8, v23
v_cmp_eq_u32 vcc, -1, v8
s_cbranch_vccz att_ok
s_sleep {ASLP}
s_sub_u32 s35, s35, 1
s_cbranch_scc0 att_poll
s_mov_b32 s35, 0
att_ok:
ds_write_b128 v{B0}, {vr(MF_[0])} offset:{L_M}
ds_write_b128 v{B0}, {vr(MF_[1])} offset:{L_M+1024}
s_waitcnt lgkmcnt(0)
s_barrier''')
    A.lds_q = []
    for t in range(8): A.ds(f'ds_read_b128 {vr(MF_[t])}, v{W_L16} offset:{L_M + t*1024}', f'm{t}')
    def SM(acc, t, m, T): A(f'v_smfmac_f32_16x16x64_bf16 {vr(acc)}, {vr(MF_[t])}, {qkv_frag(m,t,T)}, v{IDX}')
    for t in range(8):
        A.wait_lds(f'm{t}')
        SM(AK[0], t, 'k', 0); SM(AK[1], t, 'k', 1)
    fold = [f'v_permlane32_swap_b32 v{AK[0]+r}, v{AK[1]+r}' for r in range(4)] + [f'v_add_f32 v{AK[0]+r}, v{AK[0]+r}, v{AK[1]+r}' for r in range(4)]
    fold += [f'v_cvt_pk_bf16_f32 v8, v{AK[0]}, v{AK[0]+1}', f'v_cvt_pk_bf16_f32 v9, v{AK[0]+2}, v{AK[0]+3}']
    n = 0
    for t in range(8):
        for T in range(2):
            SM(AV[T], t, 'v', T); n += 1
            if 3 <= n <= 7: A(fold[2*(n-3)]); A(fold[2*(n-3)+1])
            if n == 8: A.ds(f'ds_write_b64 v{QW}, v[8:9] offset:{L_K}', 'kw')
            if n == 12:
                A.wait_lds('kw'); A('s_barrier')
            if n >= 13:
                k = n - 13
                for hf in range(2): A.ds(f'ds_read_b64_tr_b16 {vr(KM[k]+2*hf,2)}, v{TRA} offset:{L_K + k*512 + hf*256}', f'km{k}')
    for key in ((0, 1), (1, 2)):
        for r in range(4): A(f'v_cndmask_b32 v{S[key]+r}, v{NEG}, v{S[key]+r}, s[{72+2*r}:{73+2*r}]')
    for k in range(4):
        A.wait_lds(f'km{k}')
        for tt in range(2):
            d = vr(S[(tt, 0)]); MFd(A, d, vr(KM[k]), vr(QX(tt, k)), '0' if k == 0 else d)
    for T in range(2):
        A(f'v_cvt_pk_bf16_f32 v{VM+2*T}, v{AV[T]}, v{AV[T]+1}\nv_cvt_pk_bf16_f32 v{VM+2*T+1}, v{AV[T]+2}, v{AV[T]+3}')
    A(f'''s_lshl_b32 s36, s40, 18
s_lshl_b32 s37, s33, 12
s_add_u32 s36, s36, s37
s_lshl_b32 s37, s32, 10
s_add_u32 s36, s36, s37
s_add_u32 s36, s36, {OFB}
s_add_u32 s37, s36, 0x20000''')
    for tt in range(2):
        regs = [S[k] + r for k in S if k[0] == tt for r in range(4)]
        m = 8 + 2 * tt; t1 = m + 1
        A(f'v_max3_f32 v{m}, v{regs[0]}, v{regs[1]}, v{regs[2]}')
        i = 3
        while i + 1 < len(regs):
            A(f'v_max3_f32 v{m}, v{m}, v{regs[i]}, v{regs[i+1]}'); i += 2
        A(f'''v_max_f32 v{m}, v{m}, v{regs[i]}
v_mov_b32 v{t1}, v{m}
v_permlane32_swap_b32 v{m}, v{t1}
v_max_f32 v{m}, v{m}, v{t1}
v_mov_b32 v{t1}, v{m}
v_permlane16_swap_b32 v{m}, v{t1}
v_max_f32 v{m}, v{m}, v{t1}
v_mul_f32 v{m}, s68, v{m}''')
        for r in regs: A(f'v_fma_f32 v{r}, v{r}, s68, -v{m}')
        for r in regs: A(f'v_exp_f32 v{r}, v{r}')
        for key in S:
            if key[0] != tt: continue
            o = PM[tt] if key[1] == 0 else PB[tt] + 2 * (key[1] - 1)
            A(f'v_cvt_pk_bf16_f32 v{o}, v{S[key]}, v{S[key]+1}\nv_cvt_pk_bf16_f32 v{o+1}, v{S[key]+2}, v{S[key]+3}')
        MFd(A, vr(LS[tt]), vr(ONES), vr(PB[tt]), '0')
        for T in range(2): MFd(A, vr(O(tt, T)), vr(VX[T]), vr(PB[tt]), '0')
        A(f'v_mfma_f32_16x16x16_bf16 {vr(LS[tt])}, {vr(ONE2,2)}, {vr(PM[tt],2)}, {vr(LS[tt])}')
        for T in range(2): A(f'v_mfma_f32_16x16x16_bf16 {vr(O(tt,T))}, {vr(VM+2*T,2)}, {vr(PM[tt],2)}, {vr(O(tt,T))}')
    for tt in range(2):
        A(f'v_rcp_f32 v12, v{LS[tt]}')
        for T in range(2):
            o = O(tt, T)
            for r in range(4): A(f'v_mul_f32 v{o+r}, v{o+r}, v12')
            A(f'v_cvt_pk_bf16_f32 v{OFR[tt]+2*T}, v{o}, v{o+1}\nv_cvt_pk_bf16_f32 v{OFR[tt]+2*T+1}, v{o+2}, v{o+3}')
        A(f'buffer_store_dwordx4 {vr(OFR[tt])}, v{W_L16}, s[8:11], s{36+tt} offen sc1')
    prof(A, 16, 10, 40)
    A(f'''s_add_u32 s40, s40, {stride}
s_cmp_lt_u32 s40, 64
s_cbranch_scc1 att_top''')

def emit_out(A, nsets):
    A('''s_load_dwordx2 s[4:5], s[0:1], 40
s_load_dwordx4 s[20:23], s[0:1], 80
s_load_dwordx2 s[6:7], s[0:1], 0
s_waitcnt lgkmcnt(0)''')
    srd(A, 16, 4, 0x400000)
    srd(A, 24, 22, 0x200000)
    A('s_and_b32 s21, s21, 0xffff\ns_mov_b32 s22, 1409024\ns_mov_b32 s23, 0x20000')
    srd(A, 28, 6, 0x200000)
    A(f'''v_bfe_u32 v21, v{W_LANE}, 1, 4
v_lshlrev_b32 v21, 10, v21
v_lshrrev_b32 v22, 5, v{W_LANE}
v_lshl_add_u32 v21, v22, 5, v21
v_and_b32 v22, 1, v{W_LANE}
v_lshl_add_u32 v{W_VO}, v22, 4, v21
s_lshl_b32 s37, s48, 6
s_lshl_b32 s45, s32, 20
s_add_u32 s45, s45, s37
s_lshl_b32 s46, s32, 15
s_add_u32 s46, s46, s37''')
    def wo(ks, T): return ar(8 * ks + 4 * T)
    def wd(i, T): return vr(168 + 8 * i + 4 * T)
    units = []
    for u in range(6):
        dm = []; de = []
        for mp in range(4):
            i = 2 * u + (mp >> 1); m2 = mp & 1
            dm.append((20, 46, (128 * i + 16 * m2) * 1024))
            de.append([sub(wd(i, T) if i < 11 else vr(32 + 4 * T), 2 * m2, 2) for T in range(2)])
        units.append((dm, de))
    for u in range(16):
        dm = []; de = []
        for mp in range(4):
            ks = 2 * u + (mp >> 1); m2 = mp & 1
            dm.append((16, 45, (32 * ks + 16 * m2) * 1024))
            de.append([sub(wo(ks, T), 2 * m2, 2) for T in range(2)])
        units.append((dm, de))
    load_units(A, units)
    prof(A, 7, 36)
    ACC = [16, 20]; XR = 24; BF = 32; RW = 4; OA = 5; RW2 = 12
    A(f'''s_lshl_b32 s36, s32, 11
v_add_u32 v{RW}, s36, v{W_L16}
v_mov_b32 v{RW2}, v{RW}
v_and_b32 v21, 15, v{W_LANE}
v_lshlrev_b32 v21, 10, v21
v_lshrrev_b32 v22, 4, v{W_LANE}
v_lshl_add_u32 v21, v22, 3, v21
s_lshl_b32 s36, s48, 6
s_lshl_b32 s37, s32, 5
s_add_u32 s36, s36, s37
v_add_u32 v{OA}, s36, v21
s_lshl_b32 s36, s32, 10
v_add_u32 v6, s36, v{W_L16}
v_mov_b32 v9, 0
v_and_b32 v7, 31, v{W_LANE}
v_lshlrev_b32 v7, 10, v7
out_kv:
buffer_load_dwordx4 v[32:35], v{RW}, s[8:11], 0 offen sc1
buffer_load_dwordx4 v[36:39], v{RW}, s[8:11], 0 offen offset:1024 sc1
s_waitcnt vmcnt(0)
v_min3_u32 v8, v32, v33, v34
v_min3_u32 v8, v8, v35, v36
v_min3_u32 v8, v8, v37, v38
v_min_u32 v8, v8, v39
v_cmp_gt_u32 vcc, 4, v8
s_cbranch_vccz out_top
s_sleep 4
s_sub_u32 s35, s35, 1
s_cbranch_scc0 out_kv
s_mov_b32 s35, 0
out_top:
s_lshr_b32 s41, s40, 1
s_lshl_b32 s42, s41, 7
s_cmp_lg_u32 s32, 0
s_cbranch_scc1 out_h_ok
s_add_u32 s37, s42, {FLAGS+F_H}''')
    wait_cnt(A, 'out_h', 8, 9, 's37', 43, 8, sleep=2)
    A(f'''s_barrier
s_mul_i32 s43, s40, {44*1024}
s_add_u32 s43, s43, {HFB}''')
    for i in range(11):
        A(f's_add_u32 s36, s32, {4*i}\ns_min_u32 s36, s36, 42\ns_lshl_b32 s36, s36, 10\ns_add_u32 s36, s36, s43')
        A(f'buffer_load_dwordx4 {vr(BF+4*i)}, v{W_L16}, s[8:11], s36 offen sc1')
    A(f's_lshl_b32 s44, s40, 14\nbuffer_load_dwordx2 {vr(XR,2)}, v{OA}, s[28:31], s44 offen')
    for i in range(11):
        A(f's_waitcnt vmcnt({11-i})')
        for T in range(2): MFd(A, vr(ACC[T]), wd(i, T), vr(BF + 4 * i), '0' if i == 0 else vr(ACC[T]))
    AC2 = [160, 164]
    A(f'''s_lshl_b32 s43, s40, 17
s_lshl_b32 s37, s32, 15
s_add_u32 s43, s43, s37
s_add_u32 s43, s43, {OFB}
s_cmp_lg_u32 s32, 0
s_cbranch_scc1 out_g_ok
s_lshl_b32 s37, s41, 13
s_add_u32 s37, s37, {GMEMB}
out_g:
buffer_load_dword v8, v9, s[8:11], s37 offen sc1
s_waitcnt vmcnt(0)
v_cmp_eq_u32 vcc, -1, v8
s_cbranch_vccz out_g_ok
s_sleep {OSLP}
s_sub_u32 s35, s35, 1
s_cbranch_scc0 out_g
s_mov_b32 s35, 0
out_g_ok:
s_barrier
out_can:
buffer_load_dword v8, v7, s[8:11], s43 offen offset:1020 sc1
s_waitcnt vmcnt(0)
v_cmp_eq_u32 vcc, -1, v8
s_cbranch_vccz out_ld
s_sleep 1
s_sub_u32 s35, s35, 1
s_cbranch_scc0 out_can
s_mov_b32 s35, 0
out_ld:
s_mov_b32 s36, s43''')
    for i in range(32):
        A(f'buffer_load_dwordx4 {vr(BF+4*i)}, v{W_L16}, s[8:11], s36 offen offset:{(i&3)*1024} sc1')
        if i & 3 == 3: A('s_add_u32 s36, s36, 4096')
    for i in range(32):
        A(f's_waitcnt vmcnt({31-i})')
        for T in range(2): MFd(A, vr(AC2[T]), wo(i, T), vr(BF + 4 * i), vr(ACC[T]) if i == 0 else vr(AC2[T]))
    A(f'''v_cmp_u_f32 vcc, v{AC2[0]}, v{AC2[0]}
s_cbranch_vccz out_red
v_max3_u32 v8, v{BF}, v{BF+1}, v{BF+1}''')
    for i in range(1, 64): A(f'v_max3_u32 v8, v8, v{BF+2*i}, v{BF+2*i+1}')
    A(f'''v_cmp_eq_u32 vcc, -1, v8
s_cbranch_vccz out_red
s_sub_u32 s35, s35, 1
s_cbranch_scc0 out_ld
s_mov_b32 s35, 0
out_red:''')
    ACC = AC2
    A(f'''ds_write_b128 v{RW2}, {vr(ACC[0])}
ds_write_b128 v{RW2}, {vr(ACC[1])} offset:1024
s_waitcnt lgkmcnt(0)
s_barrier
s_cmp_ge_u32 s32, 2
s_cbranch_scc1 out_next''')
    for w in range(4): A(f'ds_read_b128 {vr(BF+4*w)}, v6 offset:{w*2048}')
    A(f'''v_lshlrev_b32 v26, 16, v{XR}
v_and_b32 v27, 0xffff0000, v{XR}
v_lshlrev_b32 v28, 16, v{XR+1}
v_and_b32 v29, 0xffff0000, v{XR+1}
s_waitcnt lgkmcnt(0)''')
    for r in range(4):
        A(f'v_add_f32 v{BF+r}, v{BF+r}, v{BF+4+r}\nv_add_f32 v{BF+8+r}, v{BF+8+r}, v{BF+12+r}')
    for r in range(4):
        A(f'v_add_f32 v{BF+r}, v{BF+r}, v{BF+8+r}\nv_add_f32 v{BF+r}, v{BF+r}, v{26+r}')
    A(f'''v_cvt_pk_bf16_f32 v30, v{BF}, v{BF+1}
v_cvt_pk_bf16_f32 v31, v{BF+2}, v{BF+3}
buffer_store_dwordx2 v[30:31], v{OA}, s[24:27], s44 offen{OPT['osc']}
out_next:
v_xor_b32 v{RW2}, 0x2000, v{RW2}
v_xor_b32 v6, 0x2000, v6''')
    prof(A, 16, 10, 41)
    A(f'''s_add_u32 s40, s40, {nsets}
s_cmp_lt_u32 s40, 128
s_cbranch_scc1 out_top''')

NAME = 'parallel_sum__memory_aug_recurrent_mem_tr__geglu_ffn__prompt_kernel'

def gen_full(profile=False, warm=2, wb=0, badguess=0, codepf=1, claim='bitmap', warmws=1, thr=6, wlo=3, nall=0, stop=0, chx=1, thr2=10, sibm='', nf=3, ffn=True, osc=' nt', **ckw):
    OPT['osc'] = osc
    PROF['on'] = profile; PROF['trip'] = ckw.get('trip')
    A = Asm()
    A.raw(f'; @launch kernel={NAME} grid=(256,1,1) block=(256,1,1) lds=163840')
    A.raw('.amdgcn_target "amdgcn-amd-amdhsa--gfx950"')
    A.raw(f'.text\n.globl {NAME}\n.p2align 8\n.type {NAME},@function')
    A.label(NAME)
    A('s_cmp_ge_u32 s2, 256\ns_cbranch_scc1 L_end')
    if ckw.get('trip') or profile: A('s_memrealtime s[98:99]')
    if codepf:
        A(f'''s_getpc_b64 s[6:7]
L_pc0:
s_lshr_b32 s4, s2, 3
s_and_b32 s4, s4, 3
s_lshl_b32 s4, s4, 14
v_lshlrev_b32 v2, 6, v0
v_add_u32 v2, s4, v2
v_min_u32 v2, L_end-L_pc0, v2
global_load_dword v127, v2, s[6:7]''')
    common_entry(A)
    if claim == 'bitmap':
        claim_body = '''s_lshl_b32 s39, 1, s37
v_mov_b32 v4, s39
buffer_atomic_or v4, v3, s[12:15], 0 offen sc0 sc1
s_waitcnt vmcnt(0)
v_readfirstlane_b32 s39, v4
s_bitcmp0_b32 s39, s37
s_cbranch_scc1 L_claimed
s_ff0_i32_b32 s37, s39
s_cmp_ge_i32 s37, 0
s_cbranch_scc1 L_claim'''
    else:
        claim_body = '''v_mov_b32 v4, 1
buffer_atomic_add v4, v3, s[12:15], 0 offen sc0 sc1
s_waitcnt vmcnt(0)
v_readfirstlane_b32 s37, v4
s_cmp_lt_u32 s37, 32
s_cbranch_scc1 L_claimed'''
    A(f'''s_and_b32 s3, s3, 7
s_xor_b32 s3, s3, {chx}
s_lshr_b32 s36, s2, 3
s_lshl_b32 s94, s3, 5
s_add_u32 s94, s94, s36
{"s_and_b32 s94, s2, 0xf0" if badguess else ""}
s_mov_b32 s95, 0
s_mov_b32 s96, s3
s_cmp_lg_u32 s32, 0
s_cbranch_scc1 L_first
s_mov_b64 exec, 1
s_lshr_b32 s36, s94, 5
s_and_b32 s37, s94, 31
s_mov_b32 s38, 0
L_claim:
s_lshl_b32 s39, s36, 2
s_cmp_eq_u32 s36, 0
s_cselect_b32 s39, {DBG_CTICKET}, s39
v_mov_b32 v3, s39
s_cbranch_scc0 L_claim2
s_cmp_eq_u32 s96, 0
s_cbranch_scc1 L_claim2
v_mov_b32 v4, 1
buffer_atomic_add v4, v3, s[12:15], 0 offen offset:4 sc0 sc1
s_waitcnt vmcnt(0)
L_claim2:
{claim_body}
s_mov_b32 s37, 0
s_add_u32 s38, s38, 1
s_add_u32 s36, s36, 1
s_cmp_le_u32 s36, 7
s_cselect_b32 s36, s36, 1
s_cmp_ge_u32 s38, 8
s_cselect_b32 s36, 0, s36
s_cmp_le_u32 s38, 8
s_cbranch_scc1 L_claim
s_mov_b32 s36, 8
L_claimed:
s_lshl_b32 s36, s36, 5
s_add_u32 s36, s36, s37
v_mov_b32 v3, {L_SLOT}
v_mov_b32 v4, s36
ds_write_b32 v3, v4
s_waitcnt lgkmcnt(0)
s_mov_b64 exec, -1
L_first:''')
    if claim != 'bitmap': confirm(A, 'L_conf0')
    A(f'''L_role:
s_cmp_ge_u32 s94, 256
s_cbranch_scc1 L_end
v_mbcnt_lo_u32_b32 v0, -1, 0
v_mbcnt_hi_u32_b32 v0, -1, v0
s_lshr_b32 s3, s94, 5
s_and_b32 s33, s94, 31
s_lshl_b32 s91, s94, 9
s_add_u32 s91, s91, 0x6000000''')
    prof(A, 0, 36, dbg=8)
    if profile is True: A('v_mov_b32 v36, s98\nbuffer_store_dword v36, off, s[8:11], s91 offset:60')
    A('''s_cmp_lg_u32 s3, 0
s_cbranch_scc1 L_worker''')
    emit_chain(A, gate=True, **ckw)
    if wb: A('s_waitcnt vmcnt(0)\ns_cmp_lg_u32 s32, 0\ns_cbranch_scc1 L_end\ns_cmp_lg_u32 s33, 0\ns_cbranch_scc1 L_end\nbuffer_wbl2 sc1')
    A('s_endpgm\nL_worker:')
    worker_setup(A)
    A('s_cmp_lg_u32 s3, 1\ns_cbranch_scc1 L_w2\ns_lshl_b32 s90, s33, 1')
    emit_ln(A, 90)
    prof(A, 1, 36)
    A('s_mov_b32 s36, s33')
    emit_warm(A, thr2, 128, sibm, True, ffn)
    A(f'''s_endpgm
L_w2:
s_sub_u32 s88, s3, 2
s_lshl_b32 s88, s88, 5
s_add_u32 s88, s88, s33          ; wi
s_mul_i32 s33, s88, 10923
s_lshr_b32 s33, s33, 16          ; h = wi/6
s_mul_i32 s36, s33, 6
s_sub_u32 s89, s88, s36          ; r = wi%6
s_mov_b32 s40, s89
s_cmp_lt_u32 s89, {nf}
s_cbranch_scc1 L_noln
s_add_u32 s40, s89, {nf}
s_mul_i32 s36, s33, {6-nf}
s_add_u32 s36, s36, s89
s_sub_u32 s36, s36, {nf}''')
    emit_warm(A, thr, (6 - nf) * 128, [m for m in 'kvqo' if m not in sibm], False)
    A('L_noln:')
    prof(A, 1, 36)
    emit_qkv(A, nf)
    if stop == 1: A('s_endpgm')
    A('''s_cmp_lt_u32 s89, 4
s_cbranch_scc1 L_gu
s_sub_u32 s40, s89, 4''')
    emit_att(A, 2)
    A('''s_endpgm
L_gu:
s_lshl_b32 s90, s33, 2
s_add_u32 s90, s90, s89          ; oi
s_cmp_ge_u32 s90, 121
s_cbranch_scc1 L_out
s_mul_i32 s40, s90, 5958
s_lshr_b32 s40, s40, 16
s_mul_i32 s36, s40, 11
s_sub_u32 s48, s90, s36''')
    emit_gu(A, 11)
    A('''L_out:
s_lshr_b32 s40, s90, 4
s_and_b32 s48, s90, 15''')
    emit_out(A, 8)
    if PROF['on'] == 'dbg': prof(A, 0, 36, dbg=12)
    A('L_end:\ns_endpgm')
    A.raw('.section .rodata,"a"\n.p2align 6')
    A.raw(kd(NAME))
    return A.text()

if __name__ == '__main__':
    assert all((w * 10923) >> 16 == w // 6 for w in range(192)) and all((w * 5958) >> 16 == w // 11 for w in range(160))
    hdr = open('parallel_sum__memory_aug_recurrent_mem_tr__geglu_ffn__prompt.s.ref').read().split('; Override')[0]
    kw = dict(dB0=16, dA=16, b1pos=7, kfs=6, gB=48, gA=48, ackB=0, pf=None, dmapos=(8, 12, 16, 20), prepos=21)
    open('full.s', 'w').write(hdr + gen_full(**kw))
    open('diag.s', 'w').write(hdr + gen_full(profile='dbg', **kw))
    open('diag2.s', 'w').write(hdr + gen_full(profile='dbg', wb=0, **kw))
    for i, ex in enumerate(eval(sys.argv[1]) if len(sys.argv) > 1 else []):
        k2 = dict(kw); k2.update(ex)
        open(f'var{i}.s', 'w').write(hdr + gen_full(**k2))
        open(f'var{i}_dbg.s', 'w').write(hdr + gen_full(profile='dbg', **k2))
        open(f'var{i}_prof.s', 'w').write(hdr + gen_full(profile=True, **k2))
    open('full_prof.s', 'w').write(hdr + gen_full(profile=True, **kw))
```

```python
import sys, math, struct
sys.path.insert(0, 'dev')
from asmlib import Asm

FLAGS = 0x0000000
MEMB  = 0x0070000
HINTB = 0x0068000
PARTB = 0x0100000
GMEMB = 0x0080000
XFB   = 0x0200000
QFB   = 0x1000000
KVB   = 0x2000000
OFB   = 0x4000000
HFB   = 0x5000000
WS_BYTES = 0x10000000
DBG_TICKET = 0
DBG_XNCNT = 192
DBG_CTICKET = 128
L_SLOT = 163836
F_RB = 0x3000; F_XN = 0x2000; F_H = 0x4000; F_O = 0x6000

def f32bits(x): return struct.unpack('<I', struct.pack('<f', x))[0]

def vr(b, n=4): return f'v[{b}:{b+n-1}]'

def srd(A, s, ptr_lo, nbytes):
    A(f'''s_mov_b32 s{s}, s{ptr_lo}
s_and_b32 s{s+1}, s{ptr_lo+1}, 0xffff
s_mov_b32 s{s+2}, {nbytes}
s_mov_b32 s{s+3}, 0x20000''')

PROFB = 0x6000000
PROF = {'on': False, 'n': 0}
def prof(A, idx, vt=None, sidx=None, cyc=False, dbg=None):
    if PROF['on'] == 'dbg':
        if dbg is None: return
        PROF['n'] += 1; l = f"prof_{PROF['n']}"
        A(f'''s_cmp_lg_u32 s32, 0
s_cbranch_scc1 {l}
s_memrealtime s[92:93]
s_waitcnt lgkmcnt(0)
{"s_mov_b32 s92, s98" if dbg == 8 else ""}
s_and_b32 s92, s92, 0x3fffffff
{"s_not_b32 s92, s92" if dbg == 8 else ""}
s_mov_b64 exec, 1
v_mov_b32 v{vt}, s92
v_mov_b32 v{vt+1}, {dbg*4}
buffer_atomic_umax v{vt}, v{vt+1}, s[12:15], 0 offen sc1
s_mov_b64 exec, -1
{l}:''')
        return
    if not PROF['on']: return
    PROF['n'] += 1; l = f"prof_{PROF['n']}"
    A(f'''s_cmp_lg_u32 s32, 0
s_cbranch_scc1 {l}
s_memrealtime s[92:93]
s_memtime s[100:101]
s_waitcnt lgkmcnt(0)
{"s_bitcmp1_b32 s33, 0" + chr(10) + "s_cselect_b32 s92, s100, s92" if cyc else ""}
s_mov_b64 exec, 1
v_mov_b32 v{vt}, s92
v_mov_b32 v{vt+1}, 0''')
    if sidx is None: A(f's_add_u32 s93, s91, {idx*4}')
    else: A(f's_lshl_b32 s93, s{sidx}, 2\ns_add_u32 s93, s93, s91\ns_add_u32 s93, s93, {idx*4}')
    A(f'''buffer_store_dword v{vt}, v{vt+1}, s[8:11], s93 offen
s_mov_b64 exec, -1
{l}:''')

def wait_cnt(A, lbl, srdn, voff, soff, target, vt, sleep=0):
    A(f'''{lbl}:
buffer_load_dword v{vt}, v{voff}, s[{srdn}:{srdn+3}], {soff} offen sc1
s_waitcnt vmcnt(0)
v_readfirstlane_b32 s39, v{vt}
s_and_b32 s36, s39, 0xffff
s_cmp_ge_u32 s36, {target}
s_cbranch_scc1 {lbl}_ok
{f"s_sleep {sleep}" if sleep else ""}
s_sub_u32 s35, s35, 1
s_cbranch_scc0 {lbl}
s_mov_b32 s35, 0
{lbl}_ok:''')

def wait_dbg(A, lbl, off, target, vt, va):
    A(f'v_mov_b32 v{va}, {off}')
    wait_cnt(A, lbl, 12, va, 0, target, vt, sleep=2)

def confirm(A, lbl):
    A(f'''s_cmp_lg_u32 s95, 0
s_cbranch_scc1 {lbl}
s_mov_b32 s95, 1
s_barrier
v_mov_b32 v14, {L_SLOT}
ds_read_b32 v14, v14
s_waitcnt lgkmcnt(0)
v_readfirstlane_b32 s36, v14
s_barrier
s_cmp_eq_u32 s36, s94
s_cbranch_scc1 {lbl}
s_mov_b32 s94, s36
{'v_mov_b32 v14, 160' + chr(10) + 'buffer_atomic_add v14, v14, s[12:15], 0 offen sc1' if PROF.get('trip') else ''}
s_waitcnt vmcnt(0)
s_barrier
s_branch L_role
{lbl}:''')

L_MEM = 0; L_OQK = 8192; L_KV = 16384; L_W = 49152; L_WSZ = 28672
V_L16, V_IDX, V_PST, V_SELV, V_MST, V_QW, V_TR, V_B0, V_B1, V_B2, V_B3, V_WV = range(12)
T0, T1, T2, T3 = 12, 13, 14, 15
M = [16, 20, 24, 36, 28, 40, 32, 44]
AQ0, AQ1, AK0, AK1, AV0, AV1 = 48, 52, 56, 60, 64, 68
P = [72 + 8 * i for i in range(5)]
VB = [V_B0, V_B1, V_B2, V_B3]


def chain_frag_map():
    units = [(m, t) for m in 'qkv' for t in range(8)] + [('o', k, u) for k in range(4) for u in range(2)]
    backed = [('v', 0), ('v', 1), ('k', 0), ('k', 1), ('o', 1, 1), ('o', 2, 1), ('o', 3, 1)]
    res = [u for u in units if u not in backed]
    order = [(m, t) for m in 'kvq' for t in (0, 2, 1, 3, 4, 6, 5, 7)] + [('o', k, u) for u in range(2) for k in range(4)]
    assert sorted(map(str, order)) == sorted(map(str, units))
    loc = {}
    regs = [f'a[{8*i}:{8*i+7}]' for i in range(32)] + [f'v[{112+8*i}:{112+8*i+7}]' for i in range(18)]
    k = 0
    for u in res:
        for T in range(2):
            loc[u + (T,)] = ('reg', regs[k]); k += 1
    assert k == 50
    for i, u in enumerate(backed):
        for T in range(2):
            loc[u + (T,)] = ('lds', i, T)
    return loc, order

def sub(reg, lo, n):
    c = reg[0]; b = int(reg[2:reg.index(':')])
    return f'{c}[{b+lo}:{b+lo+n-1}]'

def emit_chain(A, sc='', tag='c', nsteps=63, gate=False, stamps=False, dB0=0, dB1=0, dA=0, nokv=0, nocomm=0, stsel=None, abl=(),
               prepos=20, depth=6, early1=1, nB=2, gB=24, dmapos=(8, 11, 14, 17), respos=(22, 29), reppos=25, b1pos=5, pf='sc1', dm='sc1', b3k=1, kfs=5, b2pos=42, wpol='', unroll=1, cpre=1, touch=1, swz=5, noB5=0, dI=0, budget=4000000, repidle=0, nA=2, gA=32, midA=2, hint=0, gH=12, pmid=None, look=6, pre0=4, adapt=0, pfast=2, qre=0, slp=1, fullst=0, trip=None, tpos=1, ackB=1, m0pos=16, w0=0, g0=0, coop=1):
    loc, order = chain_frag_map()
    if coop:
        order = [(m, ta, 'h', hf) for m in 'kvq' for ta in (0, 1, 4, 5) for hf in range(2)] + [u for u in order if u[0] == 'o']
    sc = (' ' + sc) if sc else ''
    A(f"""
s_load_dwordx4 s[16:19], s[0:1], 16
s_load_dwordx4 s[24:27], s[0:1], 32
s_load_dwordx2 s[4:5], s[0:1], 8
v_and_b32 v20, 63, v0                 ; lane
v_lshlrev_b32 v{V_L16}, 4, v20
s_mul_i32 s52, s32, {L_WSZ}
s_add_u32 s52, s52, {L_W}
s_mul_i32 s53, s32, 12288
v_bfe_u32 v21, v20, 4, 1               ; g>>1
v_bfe_u32 v22, v20, 3, 1               ; g&1
v_bfe_u32 v23, v20, 2, 1               ; R>>1
v_bfe_u32 v24, v20, 1, 1               ; R&1
v_and_b32 v25, 1, v20                  ; p
v_lshrrev_b32 v26, 5, v20              ; T
v_lshlrev_b32 v27, 3, v21
v_lshl_add_u32 v27, v22, 1, v27
v_lshl_add_u32 v27, v23, 2, v27
v_lshl_add_u32 v27, v24, 5, v27
v_lshlrev_b32 v27, 13, v27
v_lshl_add_u32 v27, v26, 5, v27
v_lshl_add_u32 v32, v25, 4, v27
v_lshlrev_b32 v27, 4, v22
v_lshl_add_u32 v27, v21, 2, v27
v_add_u32 v27, v27, v24
v_lshlrev_b32 v27, 10, v27
v_lshl_add_u32 v27, v26, 6, v27
v_lshl_add_u32 v27, v23, 5, v27
v_lshl_add_u32 v33, v25, 4, v27
v_lshlrev_b32 v27, 3, v20
v_add_u32 v34, s52, v27
v_add_u32 v35, s53, v27
s_lshl_b32 s36, s33, 8
s_lshl_b32 s37, s32, 6
{"s_and_b32 s37, s37, 0x80" if coop else ""}
s_add_u32 s36, s36, s37                ; h*256+w*64
s_lshl_b32 s37, s32, 1
""")
    if coop:
        A(f"""; dma lane: r=l>>3, q=l&7 ; rows 2(r>>2)+4((r>>1)&1)+32(r&1) ; piece q^(2*((r>>1)&3))
v_lshlrev_b32 v27, 1, v26
v_lshl_add_u32 v27, v21, 2, v27
v_lshl_add_u32 v27, v22, 5, v27
v_lshlrev_b32 v27, 13, v27
v_bfe_u32 v28, v20, 4, 2
v_lshlrev_b32 v28, 1, v28
v_and_b32 v29, 7, v20
v_xor_b32 v28, v28, v29
v_lshl_add_u32 v32, v28, 4, v27
v_lshlrev_b32 v27, 10, v26
v_bfe_u32 v28, v20, 2, 3
v_lshl_add_u32 v27, v28, 7, v27
v_and_b32 v28, 3, v20
v_lshl_add_u32 v27, v28, 3, v27
v_bfe_u32 v28, v20, 3, 2
s_and_b32 s38, s37, 2
v_xor_b32 v28, s38, v28
v_lshl_add_u32 v29, v28, 5, v27
v_xor_b32 v28, 1, v28
v_lshl_add_u32 v30, v28, 5, v27
s_xor_b32 s38, s32, 1
s_mul_i32 s39, s38, {L_WSZ}
s_add_u32 s39, s39, {L_W}
s_mul_i32 s38, s38, 12288
v_add_u32 v66, s52, v29
v_add_u32 v67, s52, v30
v_add_u32 v68, s53, v29
v_add_u32 v69, s53, v30
v_add_u32 v70, s39, v29
v_add_u32 v71, s39, v30
v_add_u32 v72, s38, v29
v_add_u32 v73, s38, v30""")
    for tau in range(8):
        A(f's_xor_b32 s38, s37, {tau}\ns_lshl_b32 s38, s38, 19\ns_add_u32 s{40+tau}, s38, s36')
    A('s_lshl_b32 s36, s33, 17\ns_lshl_b32 s37, s32, 8\ns_add_u32 s36, s36, s37')
    for k in range(4):
        A(f's_xor_b32 s38, s32, {k}\ns_lshl_b32 s38, s38, 15\ns_add_u32 s{48+k}, s38, s36')
    A(f"""
s_lshr_b32 s36, s33, 3
s_lshl_b32 s36, s36, 4
s_and_b32 s37, s32, 1
s_lshl_b32 s37, s37, 3
s_add_u32 s36, s36, s37
s_and_b32 s39, s33, 7
s_add_u32 s37, s36, s39
s_lshl_b32 s61, s37, 7                 ; Gm*128
v_lshrrev_b32 v21, 4, v20
v_bfe_u32 v22, v20, 2, 1
v_lshl_add_u32 v21, v21, 1, v22
v_lshlrev_b32 v23, 4, v21
v_and_b32 v22, 3, v20
v_lshl_add_u32 v23, v22, 2, v23
v_add_u32 v{V_MST}, s61, v23
v_lshlrev_b32 v24, 10, v21
v_lshl_add_u32 v24, v22, 1, v24
s_lshl_b32 s36, s36, 4
s_lshl_b32 s39, s39, 3
s_add_u32 s39, s36, s39
s_waitcnt lgkmcnt(0)
s_mov_b32 s20, s18
s_and_b32 s21, s19, 0xffff
s_mov_b32 s22, 0x400000
s_mov_b32 s23, 0x20000
s_and_b32 s17, s17, 0xffff
s_mov_b32 s18, 0x400000
s_mov_b32 s19, 0x20000
s_mov_b32 s28, s26
s_and_b32 s29, s27, 0xffff
s_mov_b32 s30, 0x400000
s_mov_b32 s31, 0x20000
s_and_b32 s25, s25, 0xffff
s_mov_b32 s26, 0x400000
s_mov_b32 s27, 0x20000
""")
    srd(A, 84, 4, 8192)
    A('buffer_load_ushort v38, v24, s[84:87], s39 offen\nbuffer_load_ushort v39, v24, s[84:87], s39 offen offset:64')
    NU = len(order)
    def isj(u): return len(u) == 4 and u[2] == 'h'
    fin = {}
    for n in range(NU):
        u = order[n]
        if isj(u):
            if u[3] == 0 and loc[(u[0], u[1], 0)][0] == 'lds': fin[n] = loc[(u[0], u[1], 0)][1]
        elif loc[u + (0,)][0] == 'lds': fin[n] = loc[u + (0,)][1]
    slot_of = {}; issue_at = {}; busy = {}; state = {'nxt': 0}
    def try_issue(now):
        while state['nxt'] < NU and state['nxt'] - now <= (pre0 if now < 0 else depth):
            nxt = state['nxt']
            if nxt in fin: cand = [fin[nxt]] if fin[nxt] not in busy else []
            else:
                soon = {fin[m] for m in fin if nxt < m <= nxt + look}
                cand = [s_ for s_ in (7, 8, 9, 0, 1, 2, 3, 4, 5, 6) if s_ not in busy and s_ not in soon and not (s_ == 6 and now < 0)]
            if not cand: break
            busy[cand[0]] = nxt; slot_of[nxt] = cand[0]; issue_at[nxt] = now; state['nxt'] += 1
    try_issue(-1)
    for n in range(NU):
        if n >= 1 and (n - 1) not in fin: del busy[slot_of[n - 1]]
        try_issue(n)
        assert n + 1 >= NU or (n + 1) in slot_of, n
    if tag == 'dbg': print([(n, slot_of[n], issue_at[n]) for n in range(NU)])
    def issue(n):
        u = order[n]; sl = slot_of[n]
        for mp in range(4):
            if sl < 7: A(f's_add_u32 m0, s52, {sl*4096 + mp*1024}')
            else: A(f's_add_u32 m0, s53, {(sl-7)*4096 + mp*1024}')
            if u[0] == 'o':
                A(f's_add_u32 s38, s{48+u[1]}, {(8*(mp>>1)+2*(mp&1))*1024 + 128*u[2]}')
                A(f'buffer_load_dwordx4 v33, s[28:31], s38 offen {wpol} lds')
            else:
                base = {'q': 16, 'k': 20, 'v': 24}[u[0]]
                if isj(u): A(f's_add_u32 s38, s{40+u[1]}, {(16*u[3] + (mp>>1) + 8*(mp&1))*8192}')
                else: A(f's_add_u32 s38, s{40+u[1]}, {(16*(mp>>1)+(mp&1))*8192}')
                A(f'buffer_load_dwordx4 v32, s[{base}:{base+3}], s38 offen {wpol} lds')
    npre = 0
    for m in range(NU):
        if issue_at[m] == -1: issue(m); npre += 4
    if gate: confirm(A, f'{tag}_conf')
    A(f"""
s_mov_b32 s35, {budget}
s_lshl_b32 s36, s32, 11                ; w*2048
v_add_u32 v{V_B0}, s36, v{V_L16}
v_xor_b32 v{V_B1}, 2048, v{V_B0}
v_xor_b32 v{V_B2}, 4096, v{V_B0}
v_xor_b32 v{V_B3}, 6144, v{V_B0}
s_add_u32 s54, s36, {MEMB}             ; sMemRd
s_mov_b32 s55, {MEMB + 8192}           ; sMemWr
s_mov_b32 s56, {GMEMB}
v_add_u32 v{V_WV}, s52, v{V_L16}
v_and_b32 v21, 8, v20
v_cmp_eq_u32 vcc, 0, v21
v_mov_b32 v22, 0xeeee
v_mov_b32 v23, 0x4444
v_cndmask_b32 v{V_IDX}, v22, v23, vcc
s_mov_b32 s80, 0x00ff00ff
s_mov_b32 s81, 0x00ff00ff
v_lshrrev_b32 v21, 5, v20
v_bfe_u32 v22, v20, 2, 2
v_lshl_add_u32 v21, v21, 2, v22
v_lshlrev_b32 v21, 12, v21
v_bfe_u32 v22, v20, 4, 1
v_lshl_add_u32 v21, v22, 6, v21
v_and_b32 v22, 3, v20
v_lshl_add_u32 v21, v22, 4, v21
s_lshl_b32 s36, s32, 15
v_add_u32 v21, s36, v21
v_lshrrev_b32 v22, 12, v21
v_mul_u32_u24 v22, {swz}, v22
v_add_u32 v22, s33, v22
v_and_b32 v22, 31, v22
v_lshl_add_u32 v{V_PST}, v22, 7, v21
s_mov_b32 s60, 0                       ; part slot offset
s_mov_b32 s58, {PARTB}
s_mov_b32 s59, {PARTB + 0x20000}
; reducer G = 32*(w&1)+h
s_and_b32 s36, s32, 1
s_lshl_b32 s36, s36, 5
s_add_u32 s36, s36, s33
s_lshl_b32 s37, s36, 12
s_add_u32 s62, s37, {PARTB}
s_mov_b32 s63, s62
; reset region: G2=32*(w>>1)+h, half (w&1)
s_lshr_b32 s38, s32, 1
s_lshl_b32 s38, s38, 5
s_add_u32 s38, s38, s33
s_lshl_b32 s38, s38, 12
s_and_b32 s39, s32, 1
s_lshl_b32 s39, s39, 11
s_add_u32 s38, s38, s39
s_add_u32 s65, s38, {PARTB}
s_lshl_b32 s38, s32, 12
s_add_u32 s66, s38, {L_KV}
s_add_u32 s67, s38, {L_KV + 16384}
s_lshl_b32 s39, s33, 20
s_add_u32 s38, s38, s39
s_add_u32 s57, s38, {KVB}
s_mov_b32 s68, {f32bits(128 ** -0.5 * math.log2(math.e))}
v_lshrrev_b32 v21, 5, v20
v_and_b32 v22, 15, v20
v_lshl_add_u32 v21, v21, 4, v22
v_lshlrev_b32 v21, 4, v21
v_bfe_u32 v22, v20, 4, 1
v_lshl_add_u32 v21, v22, 3, v21
s_lshl_b32 s38, s32, 11
v_add_u32 v{V_QW}, s38, v21
v_lshrrev_b32 v21, 2, v20
v_lshlrev_b32 v21, 4, v21
v_and_b32 v22, 1, v20
v_lshl_add_u32 v{V_TR}, v22, 3, v21
; selector value and masks: i=l&15 ; val=(i&3)==0?0x3f80:(i&3)==1?0x3f800000:0 ; mask q: (i>>2)==q
v_and_b32 v21, 3, v20
v_mov_b32 v22, 0
v_mov_b32 v23, 0x3f80
v_cmp_eq_u32 vcc, 0, v21
v_cndmask_b32 v22, v22, v23, vcc
v_mov_b32 v23, 0x3f800000
v_cmp_eq_u32 vcc, 1, v21
v_cndmask_b32 v{V_SELV}, v22, v23, vcc
s_mov_b32 s72, 0x0f0f0f0f
s_mov_b32 s73, 0x0f0f0f0f
s_mov_b32 s74, 0xf0f0f0f0
s_mov_b32 s75, 0xf0f0f0f0
s_mov_b32 s82, -1
s_mov_b32 s83, 0
s_waitcnt vmcnt({npre})
v_lshl_or_b32 v{T3}, v39, 16, v38
v_mov_b32 v28, -1
v_mov_b32 v29, -1
v_mov_b32 v30, -1
v_mov_b32 v31, -1
v_lshrrev_b32 v21, 3, v20
v_lshlrev_b32 v21, 13, v21
v_and_b32 v22, 7, v20
v_lshl_add_u32 v21, v22, 4, v21
v_add_u32 v21, s61, v21
""")
    def init_rings(isc, lbl):
        A(f"""buffer_store_dwordx4 v[28:31], v{V_L16}, s[8:11], s65 offen{isc}
buffer_store_dwordx4 v[28:31], v{V_L16}, s[8:11], s65 offen offset:1024{isc}
s_add_u32 s64, s65, 0x40000
buffer_store_dwordx4 v[28:31], v{V_L16}, s[8:11], s64 offen{isc}
buffer_store_dwordx4 v[28:31], v{V_L16}, s[8:11], s64 offen offset:1024{isc}
s_cmp_ge_u32 s32, 2
s_cbranch_scc1 {lbl}
s_mov_b32 s38, {MEMB}
s_mov_b64 exec, 0xffffff00
buffer_store_dwordx4 v[28:31], v21, s[8:11], s38 offen{isc}
s_mov_b64 exec, s[80:81]
buffer_store_dword v{T3}, v{V_MST}, s[8:11], s38 offen{isc}
s_mov_b64 exec, -1""")
    NA_, NI_, NB_ = NU - 17, NU - 9, NU - 3
    for n in range(NU):
        u = order[n]; sl = slot_of[n]
        later = sum(1 for m in range(n + 1, NU) if issue_at[m] < n)
        A(f's_waitcnt vmcnt({4*later})')
        todo = [m for m in range(NU) if issue_at[m] == n]
        if isj(u) or (n > 0 and isj(order[n - 1])):
            A('s_waitcnt lgkmcnt(0)\ns_barrier')
            for m in todo: issue(m)
            todo = []
        if n % 4 == 0: prof(A, 80 + n // 4, 74)
        av = 34 if sl < 7 else 35
        off = (sl if sl < 7 else sl - 7) * 4096
        if isj(u):
            for par_ in range(2):
                for T in range(2):
                    l = loc[(u[0], u[1] ^ (2 * par_), T)]
                    dst = l[1] if l[0] == 'reg' else f'v[{40+8*T}:{47+8*T}]'
                    for mm in range(2):
                        A(f'ds_read_b64_tr_b16 {sub(dst, 2*(2*u[3]+mm), 2)}, v{66 + 4*par_ + (0 if sl < 7 else 2) + T} offset:{off + mm*2048}')
        else:
            for T in range(2):
                l = loc[u + (T,)]
                dst = l[1] if l[0] == 'reg' else f'v[{40+8*T}:{47+8*T}]'
                for mp in range(4):
                    A(f'ds_read_b64_tr_b16 {sub(dst, 2*mp, 2)}, v{av} offset:{off + mp*1024 + T*512}')
        if n == NA_ and gate:
            A(f'v_mov_b32 v56, {DBG_CTICKET}\nbuffer_load_dwordx2 v[58:59], v56, s[12:15], 0 offen sc1\nbuffer_load_dword v60, v56, s[12:15], 0 offen offset:{DBG_XNCNT-DBG_CTICKET} sc1')
        if n == NI_:
            assert issue_at[n] > NA_
            if gate:
                A(f"""{tag}_wreg:
v_readfirstlane_b32 s36, v58
v_readfirstlane_b32 s2, v59
v_readfirstlane_b32 s37, v60
s_cmp_eq_u32 s36, -1
s_cselect_b32 s36, s37, 0
s_cmp_ge_u32 s36, 64
s_cbranch_scc1 {tag}_wreg_ok
s_sleep 4
buffer_load_dwordx2 v[58:59], v56, s[12:15], 0 offen sc1
buffer_load_dword v60, v56, s[12:15], 0 offen offset:{DBG_XNCNT-DBG_CTICKET} sc1
s_waitcnt vmcnt(0)
s_sub_u32 s35, s35, 1
s_cbranch_scc0 {tag}_wreg
s_mov_b32 s35, 0
{tag}_wreg_ok:""")
            else: A('s_mov_b32 s2, 0')
            A(f's_cmp_lg_u32 s2, 0\ns_cbranch_scc1 {tag}_initx')
            init_rings(sc, f'{tag}_inited')
            A(f's_branch {tag}_inited\n{tag}_initx:')
            init_rings(' sc1', f'{tag}_inited')
            A(f'{tag}_inited:\ns_add_u32 s64, s65, 0x80000')
        if n == NU - 5 and cpre:
            A(f'''s_getpc_b64 s[6:7]
{tag}_pc:
s_add_u32 s6, s6, {tag}0_top-{tag}_pc
s_addc_u32 s7, s7, 0
v_lshlrev_b32 v60, 2, v{V_L16}
global_load_dword v61, v60, s[6:7]''')
        if n == NI_:
            A(f"""v_lshrrev_b32 v56, 2, v{V_L16}
s_lshl_b32 s88, s33, 8
buffer_load_dword v57, v56, s[8:11], s88 offen sc1""")
        if n == NB_:
            assert issue_at[n] > NI_
            A(f"""v_cmp_le_u32 s[70:71], 4, v57
v_lshlrev_b32 v62, 2, v{V_L16}
s_nop 0
s_and_b32 s36, s70, 3
s_cmp_lg_u32 s36, 3
s_cbranch_scc1 {tag}_nopf
s_add_u32 s36, s57, 16384
buffer_load_dword v63, v62, s[8:11], s57 offen sc1
buffer_load_dword v63, v62, s[8:11], s36 offen sc1
{tag}_nopf:""")
        if touch and n == NU - tpos:
            if touch == 1:
                A(f'v_lshlrev_b32 v64, 1, v{V_L16}')
                for i in range(4): A(f's_add_u32 s37, s65, {i*0x40000}\nbuffer_load_dword v65, v64, s[8:11], s37 offen sc1')
            else:
                for i in range(8): A(f's_mov_b32 s37, {PARTB + i*0x20000}\nbuffer_load_dword v65, v{V_PST}, s[8:11], s37 offen sc1')
            A(f's_mov_b32 s37, {MEMB}\nbuffer_load_dword v65, v21, s[8:11], s37 offen sc1')
        if n == NU - 2:
            A('buffer_load_dword v57, v56, s[8:11], s88 offen sc1')
        if todo:
            A('s_waitcnt lgkmcnt(8)')
            for m in todo: issue(m)
        if isj(u) and u[3] == 1 and (n - 1) in fin: sl = slot_of[n - 1]
        if (n in fin and not isj(u)) or (isj(u) and u[3] == 1 and (n - 1) in fin):
            A('s_waitcnt lgkmcnt(0)')
            for T in range(2):
                for hf in range(2):
                    A(f'ds_write_b128 v{V_WV}, {vr(40+8*T+4*hf)} offset:{sl*4096 + T*2048 + hf*1024}')
            A('s_waitcnt lgkmcnt(0)')
    A('s_waitcnt lgkmcnt(0)\ns_barrier')
    prof(A, 1, 36, dbg=9)
    A('s_waitcnt vmcnt(0)')
    A(f'''s_lshl_b32 s36, s33, 4
s_lshl_b32 s37, s32, 2
s_add_u32 s36, s36, s37
s_add_u32 s36, s36, {FLAGS+F_RB}
s_mov_b64 exec, 1
s_cmp_lg_u32 s2, 0
s_cbranch_scc1 {tag}_rbx
buffer_store_dword v28, off, s[8:11], s36{sc}
s_branch {tag}_rb
{tag}_rbx:
buffer_store_dword v28, off, s[8:11], s36 sc1
{tag}_rb:
s_mov_b64 exec, -1''')
    A(f"""v_cmp_le_u32 s[70:71], 4, v57
""")
    A('s_mov_b32 s86, 0x3f803f80\ns_mov_b32 s87, 0x3f803f80\ns_mov_b32 s34, 0\ns_mov_b32 s69, 0')
    poolmap = {('v', 0, 0): M[2], ('v', 0, 1): M[6], ('v', 1, 0): M[5], ('v', 1, 1): P[0],
               ('k', 0, 0): P[1], ('k', 0, 1): P[2], ('k', 1, 0): P[3], ('k', 1, 1): P[4],
               ('o', 1, 1, 0): P[0], ('o', 1, 1, 1): P[1], ('o', 2, 1, 0): P[2], ('o', 2, 1, 1): P[3],
               ('o', 3, 1, 0): P[4], ('o', 3, 1, 1): M[2]}
    def plh(f, hf, tg):
        l = loc[f]
        A.ds(f'ds_read_b128 {vr(poolmap[f] + 4*hf)}, v{V_WV} offset:{l[1]*4096 + l[2]*2048 + hf*1024}', tg)
    def pool_load(f, tg): plh(f, 0, tg); plh(f, 1, tg)
    def kv_ready(lbl):
        A(f's_bitcmp1_b64 s[70:71], s36\ns_cbranch_scc0 {lbl}_slow\n{lbl}_ok:')
    def kv_slow(lbl):
        A(f"""{lbl}_slow:
v_lshrrev_b32 v{T0}, 2, v{V_L16}
s_lshl_b32 s37, s33, 8
buffer_load_dword v{T1}, v{T0}, s[8:11], s37 offen sc1
s_waitcnt vmcnt(0)
v_cmp_le_u32 s[70:71], 4, v{T1}
s_nop 1
s_bitcmp1_b64 s[70:71], s36
s_cbranch_scc1 {lbl}_ok
s_sub_u32 s35, s35, 1
s_cbranch_scc0 {lbl}_slow
s_mov_b32 s35, 0
s_branch {lbl}_ok""")
    def z(a): A(f'v_mov_b64 v[{a}:{a+1}], 0\nv_mov_b64 v[{a+2}:{a+3}], 0')
    def prep_a(mid=None):
        fr = [('v', 1, 1), ('k', 0, 0), ('k', 0, 1), ('k', 1, 0), ('k', 1, 1), ('v', 0, 0), ('v', 0, 1)]
        for i, f in enumerate(fr):
            pool_load(f, 'pi')
            if mid and i in mid: mid[i]()
        for r in (AK0, AK1, AV0, AV1): z(r)
    def prep_b():
        pool_load(('v', 1, 0), 'pi')
    def delay(n):
        if slp and n % 16 == 0:
            if n: A(f's_sleep {n//16}')
            return
        while n > 0:
            k = min(n, 16); A(f's_nop {k-1}'); n -= k
    prof(A, 2, 36)
    if PROF['on'] is True: A('s_memtime s[96:97]')
    slow = []
    for i in range(3 if pf is not None else 2):
        A(f's_mov_b32 s36, {i}'); kv_ready(f'{tag}_kv{i}'); slow.append(f'{tag}_kv{i}')
    A('s_mov_b32 m0, s66')
    for i in range(4): A(f'buffer_load_dwordx4 v{V_L16}, s[8:11], s57 offen offset:{i*1024} sc1 lds')
    A('s_add_u32 s57, s57, 16384')
    prep_a()
    A.wait_lds_all()
    A(f"""v_lshrrev_b32 v{T0}, 1, v{V_L16}
s_mov_b32 s37, {FLAGS+F_RB}
{tag}_wb:
buffer_load_dwordx2 v[{M[0]}:{M[0]+1}], v{T0}, s[8:11], s37 offen sc1
s_waitcnt vmcnt(0)
v_and_b32 v{M[0]}, v{M[0]}, v{M[0]+1}
v_cmp_ne_u32 vcc, -1, v{M[0]}
s_cbranch_vccz {tag}_wb_ok
s_sleep 2
s_sub_u32 s35, s35, 1
s_cbranch_scc0 {tag}_wb
s_mov_b32 s35, 0
{tag}_wb_ok:""")
    if PROF['on'] == 'dbg': prof(A, 0, T0, dbg=10)
    if trip: A('s_memrealtime s[100:101]\ns_waitcnt lgkmcnt(0)')
    acc = {('q', 0): AQ0, ('q', 1): AQ1, ('k', 0): AK0, ('k', 1): AK1, ('v', 0): AV0, ('v', 1): AV1}
    def wreg(frag):
        l = loc[frag]
        return l[1] if l[0] == 'reg' else vr(poolmap[frag], 8)
    def SM(m, tau, T): A(f'v_smfmac_f32_16x16x64_bf16 {vr(acc[(m,T)])}, {vr(M[tau])}, {wreg((m,tau,T))}, v{V_IDX}')
    STP = [40,42,44,46,48,50,52,84,98,16,90,92,94,100]
    cur = {'par': 0}
    def stamp(i):
        if stamps in ('rt', 'cal'):
            if (cur['par'] == 1 and i >= 9) or (cur['par'] == 0 and i <= 2): A(f'{"s_memrealtime" if stamps == "rt" else "s_memtime"} s[{STP[i]}:{STP[i]+1}]')
        elif stamps and cur['par'] == 0 and (stsel is None or i in stsel): A(f's_memtime s[{STP[i]}:{STP[i]+1}]')
    def cal(i, par):
        if stamps == 'cal' and par == 1: A(f's_memtime s[{STP[i]}:{STP[i]+1}]')
    def wrap(r): return f's_bitset0_b32 {r}, 15\n'
    retry = {}; lates = []
    def step(par, ltag, sc):
        t = f'{ltag}{par}'
        KOFF = L_KV + par * 16384; VOFF = KOFF + 8192
        VK, VV = (V_L16, V_B0) if unroll == 2 else (T0, T1)
        A(f'{t}_top:')
        cur['par'] = par
        stamp(0)
        def ldA():
            for u in range(2): A(f'buffer_load_dwordx4 {vr(M[u])}, v{V_L16}, s[8:11], s54 offen offset:{u*1024} sc1')
        def nanA(t=t, ldA=ldA):
            A(f'{t}_reA:\ns_cmp_eq_u32 s3, 2\ns_cbranch_scc1 {t}_okA')
            ldA()
            if adapt: A(f'v_mov_b32 v{T0}, s34\nds_write_b32 v{V_TR}, v{T0} offset:{L_OQK}')
            else: A('s_nop 1')
            for r in (AV0, AV1, AK0, AK1): z(r)
            if qre: A(f's_cmp_eq_u32 s3, 0\ns_mov_b32 s3, 1\ns_cbranch_scc1 {t}_chkA')
            A(f"""{t}_scnA:
s_waitcnt vmcnt({2*nA-2})
v_max3_u32 v{T0}, v{M[0]}, v{M[0]+1}, v{M[0]+2}
v_max3_u32 v{T1}, v{M[0]+3}, v{M[1]}, v{M[1]+1}
v_max3_u32 v{T0}, v{T0}, v{M[1]+2}, v{M[1]+3}
v_max_u32 v{T0}, v{T0}, v{T1}
v_cmp_eq_u32 vcc, -1, v{T0}
s_mov_b32 s3, 2
s_cbranch_vccz {t}_chkA
s_mov_b64 exec, vcc""")
            ldA()
            A(f"""s_mov_b64 exec, -1
s_sub_u32 s35, s35, 1
s_cbranch_scc0 {t}_scnA
s_mov_b32 s35, 0
s_branch {t}_chkA""")
        lates.append(nanA)
        A(f's_mov_b32 m0, s{66+(par^1)}' if unroll == 2 else 's_sub_u32 m0, s67, s69')
        A('s_mov_b32 s3, 0')
        if not nocomm: ldA()
        prep_b()
        for i in range(nA - 1):
            delay(gA)
            if not nocomm: ldA()
        A(f's_waitcnt lgkmcnt(0)\n{t}_chkA:')
        if not nocomm: A(f's_waitcnt vmcnt({2*nA-1})')
        A.lds_q = []
        stamp(1)
        KX = {(tt, k): P[k] + 4 * (tt - 1) for tt in (1, 2) for k in range(4)}
        QF = [AQ0, AQ1, M[0], M[1]]
        KM = [M[2], M[4], M[6], M[3]]
        VX = [P[4], P[4] + 4]
        def ldM(tau): A.ds(f'ds_read_b128 {vr(M[tau])}, v{VB[tau>>1]} offset:{L_MEM + (tau&1)*1024}', f'm{tau}')
        def ldKX(tt, k): A.ds(f'ds_read_b128 {vr(KX[(tt,k)])}, v{VK} offset:{KOFF + (tt-1)*4096 + k*1024}', 'kx')
        def ldVX(T): A.ds(f'ds_read_b128 {vr(VX[T])}, v{VV} offset:{VOFF + T*1024}', 'kx')
        def ldQF(k):
            for hf in range(2): A.ds(f'ds_read_b64_tr_b16 {vr(QF[k]+2*hf,2)}, v{V_TR} offset:{L_OQK + k*2048 + 1024 + hf*256}', f'qf{k}')
        def ldKM(k):
            for hf in range(2): A.ds(f'ds_read_b64_tr_b16 {vr(KM[k]+2*hf,2)}, v{V_TR} offset:{L_OQK + k*2048 + 1536 + hf*256}', f'km{k}')
        def fold(a0, a1, t0):
            ops = []
            for r in range(4): ops.append(f'v_permlane32_swap_b32 v{a0+r}, v{a1+r}')
            for r in range(4): ops.append(f'v_add_f32 v{a0+r}, v{a0+r}, v{a1+r}')
            ops.append(f'v_cvt_pk_bf16_f32 v{t0}, v{a0}, v{a0+1}')
            ops.append(f'v_cvt_pk_bf16_f32 v{t0+1}, v{a0+2}, v{a0+3}')
            return ops
        two = lambda m, tau: [(m, tau, 0), (m, tau, 1)]
        sms = []
        for m in 'vkq': sms += two(m, 0) + two(m, 1)
        for m in 'qkv':
            for tau in (2, 4, 6, 3, 5, 7): sms += two(m, tau)
        assert len(sms) == 48 and len(set(sms)) == 48
        pre = {i: [] for i in range(48)}; post = {i: [] for i in range(48)}
        post[0].append(lambda: A(f'ds_write_b128 v{V_B0}, {vr(M[0])} offset:{L_MEM}'))
        if not nocomm: pre[1].append(lambda: A(f's_waitcnt vmcnt({2*nA-2})'))
        post[1].append(lambda: A(f'ds_write_b128 v{V_B0}, {vr(M[1])} offset:{L_MEM+1024}'))
        post[4].append(lambda: A(f'v_cmp_u_f32 vcc, v{AV0}, v{AV0+1}\nv_cmp_u_f32 s[6:7], v{AV0+2}, v{AV0+3}'))
        for i, r in enumerate((AQ0, AQ0 + 2, AQ1, AQ1 + 2)): post[(0, 2, 3, 6)[i]].append(lambda r=r: A(f'v_mov_b64 v[{r}:{r+1}], 0'))
        sms[1], sms[2] = sms[2], sms[1]
        if not nocomm:
            if ackB: pre[m0pos].append(lambda: A(f's_waitcnt vmcnt({sum(1 for p_ in dmapos if p_ < m0pos)})'))
            else: pre[dmapos[0]].append(lambda: A('s_waitcnt vmcnt(0)'))
        def brA():
            if not nocomm: A(f's_or_b64 vcc, vcc, s[6:7]\ns_cbranch_scc1 {t}_reA')
            A(f'{t}_okA:')
        def b1():
            A('s_waitcnt lgkmcnt(0)\ns_barrier')
            stamp(2)
        pre[6].append(brA)
        pre[b1pos + 1].append(b1)
        for i, tau in enumerate((2, 4, 6, 3, 5, 7)): post[b1pos + 1 + i].append(lambda tau=tau: ldM(tau))
        for i_, tau_ in enumerate((2, 4, 6, 3, 5, 7)): pre[12 + 2 * i_].append(lambda tau_=tau_: A.wait_lds(f'm{tau_}'))
        kxs = [(tt, k) for k in range(4) for tt in (1, 2)]
        for i, pos in enumerate(range(b1pos + 7, b1pos + 15)): post[pos].append(lambda i=i: ldKX(*kxs[i]))
        post[24].append(lambda: ldVX(0)); post[26].append(lambda: ldVX(1))
        if unroll == 1:
            post[8].append(lambda: A(f'v_add_u32 v{T0}, s69, v{V_L16}'))
            post[max(prepos + 1, 16)].append(lambda: A(f'v_add_u32 v{T1}, s69, v{V_B0}'))
        for i, pos in enumerate(dmapos): post[pos].append(lambda i=i: A(f'buffer_load_dwordx4 v{V_L16}, s[8:11], s57 offen offset:{i*1024} {dm} lds'))
        if pf is not None:
            post[prepos - 1].append(lambda: A(f'v_lshlrev_b32 v{T1}, 2, v{V_L16}\ns_add_u32 s36, s57, 16384'))
            post[prepos].append(lambda: A(f'buffer_load_dword v{T2}, v{T1}, s[8:11], s36 offen {pf}'))
        post[prepos].append(lambda: A(f'v_lshrrev_b32 v{T1}, 2, v{V_L16}'))
        post[prepos + 1].append(lambda: A(f'buffer_load_dword v{T2}, v{T1}, s[8:11], s88 offen sc1'))
        if not repidle:
            post[reppos - 1].append(lambda: A('s_cmp_ge_u32 s32, 2'))
            post[reppos].append(lambda: A(f's_cbranch_scc1 {t}_norep\n' + ('' if fullst else 's_mov_b64 exec, s[80:81]\n') + f'buffer_store_dword v{T3}, v{V_MST}, s[8:11], s56 offen sc1\n' + ('' if fullst else 's_mov_b64 exec, -1\n') + f'{t}_norep:'))
        post[reppos + 1].append(lambda: prof(A, 16, M[1], 34, cyc=True))
        post[m0pos].append(lambda: A(f'v_mov_b64 v[{M[0]}:{M[0]+1}], -1'))
        post[m0pos + 1].append(lambda: A(f'v_mov_b64 v[{M[0]+2}:{M[0]+3}], -1'))
        assert respos[0] - 2 >= 12
        post[respos[0]].append(lambda: A(f'buffer_store_dwordx4 {vr(M[0])}, v{V_L16}, s[8:11], s64 offen{sc}'))
        post[respos[1]].append(lambda: A(f'buffer_store_dwordx4 {vr(M[0])}, v{V_L16}, s[8:11], s64 offen offset:1024{sc}'))
        if adapt:
            post[27].append(lambda: A.ds(f'ds_read_b32 v{M[1]}, v{V_TR} offset:{L_OQK}', 'lateflag'))
            post[37].append(lambda: (A.wait_lds('lateflag'), A(f'v_readfirstlane_b32 s89, v{M[1]}')))
        post[11].append(lambda: stamp(3)); post[23].append(lambda: stamp(4)); post[35].append(lambda: stamp(5))
        for i, op in enumerate(fold(AQ0, AQ1, T0)): post[26 + i].append(lambda op=op: A(op))
        post[36].append(lambda: A.ds(f'ds_write_b64 v{V_QW}, v[{T0}:{T1}] offset:{L_OQK+1024}', 'qw'))
        for i, op in enumerate(fold(AK0, AK1, T0)): post[38 + (i * kfs) // 10].append(lambda op=op: A(op))
        post[38 + kfs].append(lambda: A.ds(f'ds_write_b64 v{V_QW}, v[{T0}:{T1}] offset:{L_OQK+1536}', 'kw'))
        pre[b2pos].append(lambda: (A.wait_lds('qw'), A('s_barrier')))
        qpos = [p_ for p_ in range(b2pos, 48) if p_ != 38 + kfs][:4]
        for k, pos in enumerate(qpos): post[pos].append(lambda k=k: ldQF(k))
        for i, f in enumerate(sms):
            if i == 0:
                for fn in pre[0]: fn()
            SM(*f)
            n0 = len(A.items)
            for fn in post[i]: fn()
            if i + 1 < 48:
                for fn in pre[i + 1]: fn()
            gap = A.items[n0:]
            if not any(isinstance(x, str) for x in gap):
                A.items[n0:] = [x for x in gap if x.kind != 'valu'] + [x for x in gap if x.kind == 'valu']
        stamp(6)
        ST = {1: AK0, 2: AK1, 0: M[5]}
        VM = M[7]; ONES = KM[0]; ONE2 = KM[1]; PM = KM[1] + 2; PB = KM[2]; LS = KM[3]; O = [AV0, AV1]
        def MF(d, a, b, c): A(f'v_mfma_f32_16x16x32_bf16 {vr(d)}, {vr(a)}, {vr(b)}, {c}')
        def MF16(d, a, b): A(f'v_mfma_f32_16x16x16_bf16 {vr(d)}, {vr(a,2)}, {vr(b,2)}, {vr(d)}')
        late = [(('o', k, 1, T), hf) for k in (1, 2, 3) for T in (0, 1) for hf in (0, 1)]
        vmc = [f'v_cvt_pk_bf16_f32 v{VM+i}, v{(AV0,AV1)[i>>1]+2*(i&1)}, v{(AV0,AV1)[i>>1]+2*(i&1)+1}' for i in range(4)]
        n = 0
        for k in range(4):
            A.wait_lds(f'qf{k}')
            if k == b3k:
                A.wait_lds('kw'); A('s_barrier')
            for tt in (1, 2):
                MF(ST[tt], KX[(tt, k)], QF[k], '0' if k == 0 else vr(ST[tt]))
                if 2 * b3k <= n < 2 * b3k + 4: ldKM(n - 2 * b3k)
                elif n >= 2: plh(*late.pop(0), 'piii')
                if vmc and n >= 2 and not (2 * b3k <= n < 2 * b3k + 4 and len(vmc) <= 2): A(vmc.pop(0))
                n += 1
        WA = QF
        for k in range(4):
            A.wait_lds(f'km{k}')
            MF(ST[0], KM[k], QF[k], '0' if k == 0 else vr(ST[0]))
            plh(*late.pop(0), 'piii')
            if k == 0: A(f'v_mov_b64 v[{ONES}:{ONES+1}], s[86:87]')
            if k == 1: A(f'v_max3_f32 v{T0}, v{ST[1]}, v{ST[1]+1}, v{ST[1]+2}')
            if k == 2: A(f'v_max3_f32 v{T1}, v{ST[1]+3}, v{ST[2]}, v{ST[2]+1}')
            if k == 3: A(f'v_max3_f32 v{T0}, v{T0}, v{ST[2]+2}, v{ST[2]+3}')
            if vmc and k < 2: A(vmc.pop(0))
        assert not vmc
        stamp(7)
        A(f"""v_max_f32 v{T0}, v{T0}, v{T1}
v_mov_b32 v{T1}, v{T0}
v_mov_b64 v[{ONES+2}:{ONES+3}], s[86:87]
v_cndmask_b32 v{ONE2}, 0, v{ONES}, s[82:83]
v_permlane32_swap_b32 v{T0}, v{T1}
v_cndmask_b32 v{ONE2+1}, 0, v{ONES}, s[82:83]
v_max3_f32 v{T0}, v{T0}, v{T1}, v{ST[0]}
v_max3_f32 v{T1}, v{ST[0]+1}, v{ST[0]+2}, v{ST[0]+3}
v_max_f32 v{T0}, v{T0}, v{T1}
v_mov_b32 v{T1}, v{T0}""")
        z(WA[0])
        A(f"""v_permlane16_swap_b32 v{T0}, v{T1}
v_max_f32 v{T0}, v{T0}, v{T1}
v_mul_f32 v{T0}, s68, v{T0}""")
        for base in (ST[1], ST[2]):
            for r in range(4): A(f'v_fma_f32 v{base+r}, v{base+r}, s68, -v{T0}')
        for base in (ST[1], ST[2]):
            for r in range(4): A(f'v_exp_f32 v{base+r}, v{base+r}')
        b = ST[0]
        A(f"""v_cvt_pk_bf16_f32 v{PB}, v{ST[1]}, v{ST[1]+1}
v_cvt_pk_bf16_f32 v{PB+1}, v{ST[1]+2}, v{ST[1]+3}
v_cvt_pk_bf16_f32 v{PB+2}, v{ST[2]}, v{ST[2]+1}
v_cvt_pk_bf16_f32 v{PB+3}, v{ST[2]+2}, v{ST[2]+3}
v_fma_f32 v{b}, v{b}, s68, -v{T0}
v_fma_f32 v{b+1}, v{b+1}, s68, -v{T0}""")
        MF(LS, ONES, PB, '0')
        plh(*late.pop(0), 'piii')
        A(f'v_fma_f32 v{b+2}, v{b+2}, s68, -v{T0}\nv_fma_f32 v{b+3}, v{b+3}, s68, -v{T0}')
        MF(O[0], VX[0], PB, '0')
        plh(*late.pop(0), 'piii')
        A(f'v_exp_f32 v{b}, v{b}')
        MF(O[1], VX[1], PB, '0')
        A(f"""v_exp_f32 v{b+1}, v{b+1}
v_exp_f32 v{b+2}, v{b+2}
v_exp_f32 v{b+3}, v{b+3}
v_cvt_pk_bf16_f32 v{PM}, v{b}, v{b+1}
v_cvt_pk_bf16_f32 v{PM+1}, v{b+2}, v{b+3}""")
        z(WA[1])
        MF16(LS, ONE2, PM); z(WA[2]); MF16(O[0], VM, PM); z(WA[3]); MF16(O[1], VM + 2, PM)
        stamp(8)
        OF = [AK0, AK1, M[5], PB]
        A(f'v_rcp_f32 v{T0}, v{LS}')
        for T in range(2):
            for r in range(4): A(f'v_mul_f32 v{O[T]+r}, v{O[T]+r}, v{T0}')
            A(f'v_cvt_pk_bf16_f32 v{OF[0]+2*T}, v{O[T]}, v{O[T]+1}\nv_cvt_pk_bf16_f32 v{OF[0]+2*T+1}, v{O[T]+2}, v{O[T]+3}')
        A.ds(f'ds_write_b128 v{V_B0}, {vr(OF[0])} offset:{L_OQK}', 'ow')
        stamp(9)
        def SO(k, a): A(f'v_smfmac_f32_16x16x64_bf16 {vr(WA[a])}, {vr(OF[k])}, {wreg(("o",k,a>>1,a&1))}, v{V_IDX}')
        R = QF; SEL = M[7]; RA = M[5]
        selops = [f'v_cndmask_b32 v{SEL+q}, 0, v{V_SELV}, s[{72+2*(q&1)}:{73+2*(q&1)}]' for q in range(4)]
        for a in range(4):
            SO(0, a); A(selops[a])
        A('s_waitcnt lgkmcnt(0)\ns_barrier'); A.lds_q = []
        for k in range(1, 4): A.ds(f'ds_read_b128 {vr(OF[k])}, v{VB[k]} offset:{L_OQK}', f'o{k}')
        for k in range(1, 4):
            A.wait_lds(f'o{k}')
            for a in (0, 1):
                SO(k, a)
                if late: plh(*late.pop(0), 'piv')
        PK = [AV0, AV1]
        n = 0
        for k in range(1, 4):
            if k == 3: A.wait_lds('piv')
            for a in (2, 3):
                SO(k, a); n += 1
                if early1:
                    if n == 3:
                        for r in range(4): A(f'v_cvt_pk_bf16_f32 v{PK[0]+r}, v{WA[0]+r}, v{WA[1]+r}')
                    if n == 4:
                        A(f'buffer_store_dwordx4 {vr(PK[0])}, v{V_PST}, s[8:11], s58 offen{sc}'); cal(3, par)
                elif n >= 3: A(f'v_cvt_pk_bf16_f32 v{PK[0]+n-3}, v{WA[0]+n-3}, v{WA[1]+n-3}')
        if not early1: A(f'buffer_store_dwordx4 {vr(PK[0])}, v{V_PST}, s[8:11], s58 offen{sc}')
        for r in range(4): A(f'v_cvt_pk_bf16_f32 v{PK[1]+r}, v{WA[2]+r}, v{WA[3]+r}')
        A(f'buffer_store_dwordx4 {vr(PK[1])}, v{V_PST}, s[8:11], s59 offen{sc}')
        stamp(10)
        def book():
            A(f"""s_add_u32 s54, s54, 8192
{wrap('s54')}s_add_u32 s56, s56, 8192
s_add_u32 s57, s57, {0 if nokv else 16384}
s_add_u32 s60, s60, 0x40000
s_and_b32 s60, s60, 0xc0000
s_xor_b32 s64, s60, 0x80000
s_add_u32 s64, s64, s65
s_add_u32 s58, s60, {PARTB}
s_add_u32 s59, s60, {PARTB + 0x20000}
s_xor_b32 s69, s69, 16384
s_add_u32 s34, s34, 1""")
        def ldB():
            for i in range(4): A(f'buffer_load_dwordx4 {vr(R[i])}, v{V_L16}, s[8:11], s62 offen offset:{i*1024} sc1')
        retry[f'{t}B'] = ldB
        A(f's_cmp_ge_u32 s32, 2\ns_cbranch_scc1 {t}_late')
        if nocomm:
            prep_a(); book(); A(f's_branch {t}_join')
        def first():
            if ackB: A('s_waitcnt vmcnt(0)')
            delay(dB0); stamp(11); ldB()
        if adapt or w0:
            A(f's_cmp_eq_u32 s89, s34\ns_cbranch_scc1 {t}_fastB' if adapt else f's_cmp_eq_u32 s32, 0\ns_cbranch_scc1 {t}_fastB')
            def fastB(t=t, ldB=ldB, RA=RA, par=par):
                A(f'{t}_fastB:')
                def f1(): cal(11, par); ldB()
                if pfast < 0: f1()
                prep_a({pfast: f1}); book()
                for i in range(nB - 1):
                    delay(g0); ldB()
                z(RA)
                A(f's_branch {t}_chkB')
            lates.append(fastB)
        if pmid is None:
            prep_a(); book(); first()
            for i in range(nB - 1):
                delay(gB); ldB()
        else:
            prep_a({pmid: first}); book()
            for i in range(nB - 1): ldB()
        assert R[1] == R[0] + 4 and R[3] == R[2] + 4
        def red(i): A(f'v_smfmac_f32_16x16x64_bf16 {vr(RA)}, {vr(SEL)}, {vr(R[2*i], 8)}, v{V_IDX}')
        z(RA)
        A(f'{t}_chkB:\ns_waitcnt vmcnt({4*(nB-1)+2})')
        red(0)
        A(f's_waitcnt vmcnt({4*(nB-1)})')
        cal(4, par)
        red(1)
        A(f"""v_max3_u32 v{T0}, v{R[0]+3}, v{R[1]+3}, v{R[2]+3}
v_max_u32 v{T0}, v{T0}, v{R[3]+3}
v_cmp_eq_u32 s[6:7], -1, v{T0}
v_cmp_u_f32 vcc, v{RA+2}, v{RA+2}
v_add_f32_dpp v{RA}, v{RA}, v{RA} row_ror:8 row_mask:0xf bank_mask:0xf
v_add_f32_dpp v{RA+1}, v{RA+1}, v{RA+1} row_ror:8 row_mask:0xf bank_mask:0xf
v_cvt_pk_bf16_f32 v{T3}, v{RA}, v{RA+1}
s_cbranch_vccnz {t}_reB
{t}_okB:
{"" if fullst else "s_mov_b64 exec, s[80:81]"}
buffer_store_dword v{T3}, v{V_MST}, s[8:11], s55 offen{sc}
{"" if fullst else "s_mov_b64 exec, -1"}
{t}_join:""")
        def nan_path(t=t, R=R, RA=RA, SEL=SEL, ldB=ldB, red=red):
            A(f"""{t}_reB:
s_cmp_eq_u64 s[6:7], 0
s_cbranch_scc1 {t}_nan
s_mov_b64 exec, s[6:7]""")
            ldB()
            A('s_mov_b64 exec, -1')
            z(RA)
            A(f"""s_sub_u32 s35, s35, 1
s_cbranch_scc0 {t}_chkB
s_mov_b32 s35, 0
{t}_nan:
s_waitcnt vmcnt(0)""")
            fl = [x for r in R for x in range(r, r + 4)]
            A(f'v_max3_u32 v{T0}, v{fl[0]}, v{fl[1]}, v{fl[2]}')
            for i in range(6): A(f'v_max3_u32 v{T0}, v{T0}, v{fl[3+2*i]}, v{fl[4+2*i]}')
            A(f"""v_max_u32 v{T0}, v{T0}, v{fl[15]}
v_cmp_eq_u32 vcc, -1, v{T0}
s_cbranch_vccz {t}_nan2""")
            ldB()
            A(f"""s_sub_u32 s35, s35, 1
s_cbranch_scc0 {t}_nan
s_mov_b32 s35, 0
{t}_nan2:""")
            z(RA); red(0); red(1)
            A(f"""v_add_f32_dpp v{RA}, v{RA}, v{RA} row_ror:8 row_mask:0xf bank_mask:0xf
v_add_f32_dpp v{RA+1}, v{RA+1}, v{RA+1} row_ror:8 row_mask:0xf bank_mask:0xf
v_cvt_pk_bf16_f32 v{T3}, v{RA}, v{RA+1}
s_branch {t}_okB""")
        lates.append(nan_path)
        def late_path(t=t, par=par):
            A(f'{t}_late:')
            prep_a(); book()
            A(f"""
; waves 2,3: sentinel into the mem slot two steps ahead of the one being published
s_add_u32 s36, s55, 16384
{wrap('s36')}ds_read_b32 v{T3}, v{V_MST} offset:{L_MEM}
v_mov_b32 v{T0}, -1
s_sub_u32 s37, s56, 8192
s_mov_b64 exec, s[80:81]
buffer_store_dword v{T0}, v{V_MST}, s[8:11], s36 offen{sc}
s_waitcnt vmcnt(0) lgkmcnt(0)
{f"buffer_store_dword v{T3}, v{V_MST}, s[8:11], s37 offen sc1" if repidle else ""}
s_mov_b64 exec, -1""")
            delay(dI)
            A(f's_branch {t}_join')
        lates.append(late_path)
        stamp(12)
        A(f"""v_cmp_le_u32 s[70:71], 4, v{T2}
s_cmp_eq_u32 s34, {nsteps}
s_cbranch_scc1 {tag}_done
s_add_u32 s62, s63, s60
s_add_u32 s55, s55, 8192
{wrap('s55')}s_add_u32 s36, s34, {2 if pf is not None else 1}""")
        kv_ready(f'{t}_kv'); slow.append(f'{t}_kv')
        if not noB5: A('s_barrier')
        delay(dA)
        stamp(13)
        A.lds_q = []
    if gate: A(f's_cmp_lg_u32 s2, 0\ns_cbranch_scc1 {tag}x0_top')
    for ltag, lsc in ([(tag, sc), (tag + 'x', ' sc1')] if gate else [(tag, sc)]):
        i0 = len(A.items)
        for par in range(unroll): step(par, ltag, lsc)
        if abl:
            import re
            keep = A.items[:i0]
            for it in A.items[i0:]:
                if not isinstance(it, str) and any(re.search(p, it.text) for p in abl): continue
                keep.append(it)
            A.items = keep
        A(f's_branch {ltag}0_top')
        for f in lates: f()
        del lates[:]
    for l in slow: kv_slow(l)
    A(f"""{tag}_done:
s_cmp_ge_u32 s32, 2
s_cbranch_scc1 {tag}_fin
s_mov_b64 exec, s[80:81]
buffer_store_dword v{T3}, v{V_MST}, s[8:11], s56 offen sc1
s_mov_b64 exec, -1
{tag}_fin:""")
    prof(A, 3, 36, dbg=11)
    if trip:
        A(f'''s_memrealtime s[92:93]
s_load_dwordx2 s[4:5], s[0:1], 88
s_waitcnt vmcnt(0) lgkmcnt(0)
s_sub_u32 s36, s100, s98
s_sub_u32 s37, s92, s100
v_mov_b32 v37, 160
buffer_load_dword v36, v37, s[12:15], 0 offen sc1
s_waitcnt vmcnt(0)
v_readfirstlane_b32 s39, v36
s_cmp_lg_u32 s39, 0
s_cbranch_scc1 {tag}_notrip
s_add_u32 s38, s36, s37
s_cmp_gt_u32 s{ {'pro': 36, 'loop': 37, 'tot': 38}[trip[0]] }, {int(trip[1]*100)}
s_cbranch_scc0 {tag}_notrip
s_sub_u32 s37, s37, 10000
v_cvt_f32_u32 v36, s36
v_cvt_f32_i32 v37, s37
v_cvt_pk_bf16_f32 v36, v36, v37
v_mov_b32 v37, 0
global_store_dword v37, v36, s[4:5]
{tag}_notrip:''')
    if PROF['on'] is True:
        A("""s_memtime s[92:93]
s_waitcnt lgkmcnt(0)
s_sub_u32 s92, s92, s96
v_mov_b32 v36, s92
v_mov_b32 v37, s35
s_lshl_b32 s94, s32, 3
s_add_u32 s94, s94, s91
v_mov_b32 v38, 0
s_mov_b64 exec, 1
buffer_store_dwordx2 v[36:37], v38, s[8:11], s94 offen offset:16
s_mov_b64 exec, -1""")

def kd(name, vgpr=512, accum=256):
    return f'''
.amdhsa_kernel {name}
  .amdhsa_next_free_vgpr {vgpr}
  .amdhsa_next_free_sgpr 102
  .amdhsa_accum_offset {accum}
  .amdhsa_group_segment_fixed_size 0
  .amdhsa_kernarg_size 112
  .amdhsa_user_sgpr_count 2
  .amdhsa_user_sgpr_kernarg_segment_ptr 1
  .amdhsa_system_sgpr_workgroup_id_x 1
.end_amdhsa_kernel
'''

def common_entry(A):
    A(f'''
s_load_dwordx4 s[4:7], s[0:1], 96
s_getreg_b32 s3, hwreg(HW_REG_XCC_ID)
s_and_b32 s3, s3, 0xf
v_lshrrev_b32 v1, 6, v0
v_readfirstlane_b32 s32, v1
s_waitcnt lgkmcnt(0)''')
    srd(A, 12, 4, 256)
    srd(A, 8, 6, WS_BYTES)

def gen_chain_test(stamps=False, xcc=0, burn=0, duty=0, **kw):
    A = Asm()
    A.raw('; @launch kernel=chain_kernel grid=(256,1,1) block=(256,1,1) lds=163840')
    A.raw('.amdgcn_target "amdgcn-amd-amdhsa--gfx950"')
    A.raw('.text\n.globl chain_kernel\n.p2align 8\n.type chain_kernel,@function')
    A.label('chain_kernel')
    A('s_cmp_ge_u32 s2, 256\ns_cbranch_scc1 L_end')
    common_entry(A)
    if burn:
        A(f's_mov_b32 s36, {burn}\ns_bitcmp1_b32 s36, s3\ns_cbranch_scc0 L_noburn\ns_mov_b32 s36, {1100 // (1 + duty // 4)}')
        A('v_lshlrev_b32 v1, 9, v0\nv_add_u32 v1, 0x3f9e3f37, v1')
        for i in range(2, 40): A(f'v_xor_b32 v{i}, {0x00130057 * i}, v1')
        A('L_burn:')
        for i in range(16): A(f'v_mfma_f32_16x16x32_bf16 v[{40+4*(i&7)}:{43+4*(i&7)}], v[{4+4*(i&3)}:{7+4*(i&3)}], v[{20+4*(i>>2)}:{23+4*(i>>2)}], v[{40+4*(i&7)}:{43+4*(i&7)}]')
        if duty: A(f's_sleep {duty}')
        A('s_sub_u32 s36, s36, 1\ns_cbranch_scc0 L_burn\ns_endpgm\nL_noburn:')
    A(f's_cmp_lg_u32 s3, {xcc}')
    A('''s_cbranch_scc1 L_end
s_memtime s[96:97]
s_memrealtime s[90:91]
v_mov_b32 v3, 0
v_mov_b32 v4, 1
s_cmp_lg_u32 s32, 0
s_cbranch_scc1 L_noticket
s_mov_b64 exec, 1
buffer_atomic_add v4, v3, s[12:15], 0 offen sc0
s_waitcnt vmcnt(0)
ds_write_b32 v3, v4
s_waitcnt lgkmcnt(0)
s_mov_b64 exec, -1
L_noticket:
s_barrier
ds_read_b32 v4, v3
s_waitcnt lgkmcnt(0)
v_readfirstlane_b32 s33, v4
s_barrier
s_cmp_ge_u32 s33, 32
s_cbranch_scc1 L_end''')
    emit_chain(A, stamps=stamps, cpre=0, **kw)
    if stamps == 'cal':
        A('''s_waitcnt vmcnt(0)
s_memrealtime s[4:5]
s_waitcnt lgkmcnt(0)
s_or_b32 s6, s4, 0x3ff
L_cal:
s_memrealtime s[4:5]
s_memtime s[96:97]
s_waitcnt lgkmcnt(0)
s_cmp_le_u32 s4, s6
s_cbranch_scc1 L_cal
s_mov_b32 s50, s4
s_getreg_b32 s84, hwreg(HW_REG_HW_ID)''')
    if stamps:
        A('s_waitcnt vmcnt(0) lgkmcnt(0)')
        for i, r in enumerate([40,42,44,46,48,50,52,84,98,16,90,92,94,100,96,35]): A(f'v_mov_b32 v{20+i}, s{r}')
        A('''s_lshl_b32 s36, s33, 2
s_add_u32 s36, s36, s32
s_lshl_b32 s36, s36, 6
s_add_u32 s36, s36, 0x8000
v_mov_b32 v40, s36
s_mov_b64 exec, 1
buffer_store_dwordx4 v[20:23], v40, s[8:11], 0 offen
buffer_store_dwordx4 v[24:27], v40, s[8:11], 0 offen offset:16
buffer_store_dwordx4 v[28:31], v40, s[8:11], 0 offen offset:32
buffer_store_dwordx4 v[32:35], v40, s[8:11], 0 offen offset:48
s_mov_b64 exec, -1''')
    A('''s_waitcnt vmcnt(0)
s_memtime s[98:99]
s_memrealtime s[4:5]
s_waitcnt lgkmcnt(0)
s_sub_u32 s98, s98, s96
s_sub_u32 s4, s4, s90
s_cmp_eq_u32 s33, 1
s_cselect_b32 s98, s4, s98
v_mov_b32 v20, s98
v_mov_b32 v21, s35
s_lshl_b32 s36, s33, 2
s_add_u32 s36, s36, s32
s_cmp_ge_u32 s36, 8
s_cbranch_scc1 L_end
s_lshl_b32 s36, s36, 3
s_add_u32 s36, s36, 64
v_mov_b32 v22, s36
s_mov_b64 exec, 1
buffer_store_dwordx2 v[20:21], v22, s[12:15], 0 offen
L_end:
s_endpgm''')
    A.raw('.section .rodata,"a"\n.p2align 6')
    A.raw(kd('chain_kernel'))
    return A.text()

if __name__ == '__main__':
    open('chain.s', 'w').write(gen_chain_test())
    open('chain_st.s', 'w').write(gen_chain_test(stamps=True))
```

```python
import math
from gen import *

OSLP = 12; ASLP = 3; S0 = 58
OPT = {'osc': ''}
W_L16, W_LANE, W_TR, W_VO = 0, 1, 2, 3

def ar(b, n=4): return f'a[{b}:{b+n-1}]'

def worker_setup(A):
    A(f'''v_and_b32 v{W_LANE}, 63, v0
v_lshlrev_b32 v{W_L16}, 4, v{W_LANE}
s_mul_i32 s52, s32, 40960
v_lshlrev_b32 v{W_TR}, 3, v{W_LANE}
v_add_u32 v{W_TR}, s52, v{W_TR}
s_mov_b32 s35, 1000000''')

def load_units(A, units, depth=8, pr=False):
    n_u = len(units)
    def issue(n):
        sl = n % 9
        for mp, (sr, sb, c) in enumerate(units[n][0]):
            A(f's_add_u32 m0, s52, {sl*4096 + mp*1024}')
            A(f's_add_u32 s38, s{sb}, {c}')
            A(f'buffer_load_dwordx4 v{W_VO}, s[{sr}:{sr+3}], s38 offen lds')
    for n in range(min(depth, n_u)): issue(n)
    for n in range(n_u):
        later = min(n_u - 1, n + depth - 1) - n
        A(f's_waitcnt vmcnt({4*later})')
        if pr and n % 4 == 0: prof(A, 80 + n // 4, 66)
        for T in range(2):
            for mp in range(4):
                A(f'ds_read_b64_tr_b16 {units[n][1][mp][T]}, v{W_TR} offset:{(n%9)*4096 + mp*1024 + T*512}')
        if n + depth < n_u:
            A('s_waitcnt lgkmcnt(8)')
            issue(n + depth)
    A('s_waitcnt lgkmcnt(0)\ns_barrier')

def load_units_coop(A, units, depth=8, pr=False):
    n_u = len(units)
    def issue(n):
        sl = n % 9
        for i, (sr, sb, c) in enumerate(units[n][0]):
            A(f's_add_u32 m0, s52, {sl*4096 + i*1024}')
            A(f's_add_u32 s38, s{sb}, {c}')
            A(f'buffer_load_dwordx4 v{W_VO}, s[{sr}:{sr+3}], s38 offen lds')
    for n in range(min(depth, n_u)): issue(n)
    for n in range(n_u):
        later = min(n_u - 1, n + depth - 1) - n
        A(f's_waitcnt vmcnt({4*later}) lgkmcnt(0)\ns_barrier')
        if n + depth < n_u: issue(n + depth)
        if pr and n % 4 == 0: prof(A, 80 + n // 4, 66)
        for T in range(2):
            for mp in range(4):
                A(f'ds_read_b64_tr_b16 {units[n][1][mp][T]}, v{100 + 2*(mp>>1) + T} offset:{(n%9)*4096 + (mp&1)*2048}')
    A('s_waitcnt lgkmcnt(0)\ns_barrier')

def coop_addr(A, stride):
    lane_bits(A)
    A(f'''v_lshlrev_b32 v27, 1, v26
v_lshl_add_u32 v27, v21, 2, v27
v_lshl_add_u32 v27, v22, 5, v27
v_mul_u32_u24 v27, {stride}, v27
v_bfe_u32 v28, v{W_LANE}, 4, 2
v_lshlrev_b32 v28, 1, v28
v_and_b32 v29, 7, v{W_LANE}
v_xor_b32 v28, v28, v29
v_lshl_add_u32 v{W_VO}, v28, 4, v27
v_lshlrev_b32 v27, 10, v26
v_bfe_u32 v28, v{W_LANE}, 2, 3
v_lshl_add_u32 v27, v28, 7, v27
v_and_b32 v28, 3, v{W_LANE}
v_lshl_add_u32 v27, v28, 3, v27
v_bfe_u32 v28, v{W_LANE}, 3, 2
s_lshl_b32 s38, s32, 1
s_and_b32 s38, s38, 2
v_xor_b32 v28, s38, v28
v_lshl_add_u32 v29, v28, 5, v27
v_xor_b32 v28, 1, v28
v_lshl_add_u32 v30, v28, 5, v27
s_and_b32 s38, s32, 2
s_mul_i32 s38, s38, 40960
s_add_u32 s39, s38, 40960
v_add_u32 v100, s38, v29
v_add_u32 v101, s38, v30
v_add_u32 v102, s39, v29
v_add_u32 v103, s39, v30''')

def lane_bits(A):
    A(f'''v_bfe_u32 v21, v{W_LANE}, 4, 1
v_bfe_u32 v22, v{W_LANE}, 3, 1
v_bfe_u32 v23, v{W_LANE}, 2, 1
v_bfe_u32 v24, v{W_LANE}, 1, 1
v_and_b32 v25, 1, v{W_LANE}
v_lshrrev_b32 v26, 5, v{W_LANE}''')

def voff_dmap(A, stride):
    lane_bits(A)
    A(f'''v_lshlrev_b32 v27, 3, v21
v_lshl_add_u32 v27, v22, 1, v27
v_lshl_add_u32 v27, v23, 2, v27
v_lshl_add_u32 v27, v24, 5, v27
v_mul_u32_u24 v27, {stride}, v27
v_lshl_add_u32 v27, v26, 5, v27
v_lshl_add_u32 v{W_VO}, v25, 4, v27''')

def drow(t, mp): return 64 * t + 16 * (mp >> 1) + (mp & 1)

def atomic_flag(A, soff, vtmp):
    A(f'''s_mov_b64 exec, 1
v_mov_b32 v{vtmp}, 1
v_mov_b32 v{vtmp+1}, 0
buffer_atomic_add v{vtmp}, v{vtmp+1}, s[8:11], {soff} offen sc1
s_mov_b64 exec, -1''')

def emit_warm(A, thr, nw, mats, rings, ffn=False):
    A(f'''s_load_dwordx4 s[16:19], s[0:1], 16
s_load_dwordx4 s[24:27], s[0:1], 32
s_lshl_b32 s36, s36, 2
s_add_u32 s36, s36, s32
s_lshl_b32 s36, s36, 10
s_waitcnt lgkmcnt(0)
s_mov_b32 s20, s18
s_and_b32 s21, s19, 0xffff
s_mov_b32 s22, 0x400000
s_mov_b32 s23, 0x20000
s_and_b32 s17, s17, 0xffff
s_mov_b32 s18, 0x400000
s_mov_b32 s19, 0x20000
s_mov_b32 s28, s26
s_and_b32 s29, s27, 0xffff
s_mov_b32 s30, 0x400000
s_mov_b32 s31, 0x20000
s_and_b32 s25, s25, 0xffff
s_mov_b32 s26, 0x400000
s_mov_b32 s27, 0x20000''')
    n = 0
    if rings:
        for i in range(-(-1024 // nw)):
            A(f's_add_u32 s37, s36, {i*nw*1024 + PARTB}')
            A(f'buffer_load_dwordx4 v[112:115], v{W_L16}, s[8:11], s37 offen')
        A(f's_and_b32 s37, s36, 0x7c00\ns_add_u32 s37, s37, {MEMB}')
        A(f'buffer_load_dwordx4 v[112:115], v{W_L16}, s[8:11], s37 offen')
    def sweep(sr, nblk):
        nonlocal n
        for i in range(-(-nblk // nw)):
            A(f's_add_u32 s37, s36, {i*nw*1024}')
            A(f'buffer_load_dwordx4 v[{112+4*(n%4)}:{115+4*(n%4)}], v{W_L16}, s[{sr}:{sr+3}], s37 offen')
            A(f's_waitcnt vmcnt({thr})')
            n += 1
    for m in mats: sweep({'q': 16, 'k': 20, 'v': 24, 'o': 28}[m], 4096)
    if ffn:
        A('''s_load_dwordx4 s[16:19], s[0:1], 64
s_load_dwordx2 s[24:25], s[0:1], 80
s_waitcnt lgkmcnt(0)
s_mov_b32 s20, s18
s_and_b32 s21, s19, 0xffff
s_mov_b32 s22, 1409024
s_and_b32 s17, s17, 0xffff
s_mov_b32 s18, 1409024
s_mov_b32 s19, 0x20000
s_and_b32 s25, s25, 0xffff
s_mov_b32 s26, 1409024''')
        for sr in (16, 20, 24): sweep(sr, 1376)

def emit_init(A):
    A(f'''v_mov_b32 v16, 0
v_mov_b32 v17, 0
v_mov_b32 v18, 0
v_mov_b32 v19, 0
s_lshl_b32 s36, s32, 13
s_add_u32 s37, s36, 4096''')
    for i in range(8):
        A(f'buffer_store_dwordx4 v[16:19], v{W_L16}, s[8:11], s{36 + (i>>2)} offen offset:{(i&3)*1024} sc1')
    A(f'''s_waitcnt vmcnt(0)
s_mov_b64 exec, 1
v_mov_b32 v16, 1
v_mov_b32 v17, {DBG_GATE}
buffer_atomic_add v16, v17, s[12:15], 0 offen sc1
s_mov_b64 exec, -1''')

def emit_ln(A, sseg, gate=True):
    A('s_load_dwordx2 s[4:5], s[0:1], 0\ns_waitcnt lgkmcnt(0)')
    srd(A, 16, 4, 0x200000)
    RAW = 16; X = 48
    A(f'''v_lshlrev_b32 v4, 7, v{W_LANE}
ln_top:
s_lshl_b32 s36, s{sseg}, 15
s_lshl_b32 s37, s32, 13
s_add_u32 s36, s36, s37''')
    for i in range(8): A(f'buffer_load_dwordx4 {vr(RAW+4*i)}, v4, s[16:19], s36 offen offset:{16*i}')
    A('s_xor_b32 s36, s36, 0x8000\nbuffer_load_dword v112, v4, s[16:19], s36 offen\nbuffer_load_dword v112, v4, s[16:19], s36 offen offset:64')
    A(f'''v_and_b32 v5, 7, v{W_LANE}
v_lshlrev_b32 v5, 11, v5
v_lshrrev_b32 v6, 3, v{W_LANE}
v_lshl_add_u32 v5, v6, 4, v5
s_lshl_b32 s36, s{sseg}, 15
s_lshr_b32 s37, s32, 1
s_lshl_b32 s37, s37, 14
s_add_u32 s36, s36, s37
s_and_b32 s37, s32, 1
s_lshl_b32 s37, s37, 7
s_add_u32 s36, s36, s37
s_add_u32 s39, s36, {XFB}
s_mov_b32 s38, 0xffff0000''')
    for i in range(8):
        A(f's_waitcnt vmcnt({9-i})')
        for q in range(4):
            d = 4 * i + q
            A(f'v_lshlrev_b32 v{X+2*d}, 16, v{RAW+d}\nv_and_b32 v{X+2*d+1}, s38, v{RAW+d}')
    def red8(r):
        A(f'''v_add_f32_dpp v{r}, v{r}, v{r} quad_perm:[1,0,3,2] row_mask:0xf bank_mask:0xf
v_add_f32_dpp v{r}, v{r}, v{r} quad_perm:[2,3,0,1] row_mask:0xf bank_mask:0xf
v_add_f32_dpp v{r}, v{r}, v{r} row_half_mirror row_mask:0xf bank_mask:0xf''')
    for a in range(4): A(f'v_add_f32 v{8+a}, v{X+a}, v{X+4+a}')
    for c in range(8, 64): A(f'v_add_f32 v{8+(c&3)}, v{8+(c&3)}, v{X+c}')
    A('v_add_f32 v8, v8, v9\nv_add_f32 v10, v10, v11\nv_add_f32 v8, v8, v10')
    red8(8)
    A(f'v_mul_f32 v7, {f32bits(1/512)}, v8')
    for a in range(4): A(f'v_mov_b32 v{8+a}, 0')
    for c in range(64):
        A(f'v_sub_f32 v{12+(c&3)}, v{X+c}, v7\nv_fmac_f32 v{8+(c&3)}, v{12+(c&3)}, v{12+(c&3)}')
    A('v_add_f32 v8, v8, v9\nv_add_f32 v10, v10, v11\nv_add_f32 v8, v8, v10')
    red8(8)
    A(f'''v_mul_f32 v8, {f32bits(1/512)}, v8
v_cvt_pk_bf16_f32 v9, v7, v8
v_lshlrev_b32 v7, 16, v9
v_and_b32 v8, s38, v9
v_add_f32 v8, {f32bits(1e-5)}, v8
v_cvt_pk_bf16_f32 v8, v8, v8
v_and_b32 v8, s38, v8
v_sqrt_f32 v8, v8
v_cvt_pk_bf16_f32 v8, v8, v8
v_and_b32 v8, s38, v8
v_rcp_f32 v8, v8''')
    confirm(A, 'ln_conf')
    A(f'''v_mov_b32 v12, -1
v_mov_b32 v13, -1
v_mov_b32 v14, -1
v_mov_b32 v15, -1
s_lshl_b32 s36, s{sseg}, 13
s_lshl_b32 s37, s32, 11
s_add_u32 s36, s36, s37
s_add_u32 s36, s36, {GMEMB}
buffer_store_dwordx4 v[12:15], v{W_L16}, s[8:11], s36 offen sc1
buffer_store_dwordx4 v[12:15], v{W_L16}, s[8:11], s36 offen offset:1024 sc1
s_lshl_b32 s36, s{sseg}, 9
s_and_b32 s37, s32, 1
s_lshl_b32 s37, s37, 8
s_add_u32 s36, s36, s37
v_mov_b32 v9, 0
v_lshlrev_b32 v10, 2, v{W_LANE}
buffer_store_dword v9, v10, s[8:11], s36 offen sc1''')
    for hi in range(2):
        for g in range(4):
            b = 16 * hi + 8 * (g >> 1) + 2 * (g & 1)
            o = RAW + 4 * (4 * hi + g)
            for q, c in enumerate((b, b + 4, b + 1, b + 5)):
                lo, hh = X + c, X + c + 32
                A(f'''v_sub_f32 v{lo}, v{lo}, v7
v_sub_f32 v{hh}, v{hh}, v7
v_cvt_pk_bf16_f32 v{hh}, v{lo}, v{hh}
v_lshlrev_b32 v{lo}, 16, v{hh}
v_and_b32 v{hh}, s38, v{hh}
v_mul_f32 v{lo}, v{lo}, v8
v_mul_f32 v{hh}, v{hh}, v8
v_cvt_pk_bf16_f32 v{o+q}, v{lo}, v{hh}''')
            A(f'buffer_store_dwordx4 {vr(o)}, v5, s[8:11], s39 offen offset:{hi*1024+g*256} sc1')
    A(f'''s_add_u32 s{sseg}, s{sseg}, 1
s_bitcmp1_b32 s{sseg}, 0
s_cbranch_scc1 ln_top
s_waitcnt vmcnt(0)
s_barrier
s_cmp_lg_u32 s32, 0
s_cbranch_scc1 ln_done
s_mov_b64 exec, 1
v_mov_b32 v8, 2
v_mov_b32 v9, {DBG_XNCNT}
buffer_atomic_add v8, v9, s[12:15], 0 offen sc1
s_mov_b64 exec, -1
ln_done:''')

def wait_all_xn(A, lbl, gate=True):
    A(f's_cmp_lg_u32 s32, 0\ns_cbranch_scc1 {lbl}_ok')
    wait_dbg(A, lbl, DBG_XNCNT, 64, 8, 9)
    A('s_barrier')

def xf_loop(A, tag, stride, nst, mfmas, epilogue, flag_soff, active=None, flagks=13, nxt=None):
    XV = 4; XA = [[8, 12], [16, 20]]
    def dma(seg):
        A(f'''s_min_u32 s36, s{seg}, 63
s_lshl_b32 s36, s36, 15
s_add_u32 s36, s36, s42
s_add_u32 s37, s36, 4096
s_mov_b32 m0, s43''')
        for i in range(4): A(f'buffer_load_dwordx4 v{W_L16}, s[8:11], s36 offen offset:{i*1024} sc1 lds')
        A('s_add_u32 m0, s43, 4096')
        for i in range(4): A(f'buffer_load_dwordx4 v{W_L16}, s[8:11], s37 offen offset:{i*1024} sc1 lds')
        A('s_xor_b32 s43, s43, 0x8000')
    A(f'''s_lshl_b32 s43, s32, 13
s_add_u32 s42, s43, {XFB}
v_mov_b32 v{XV}, v{W_L16}
s_mov_b32 s44, -1''')
    dma(40)
    A(f'''s_waitcnt vmcnt(0)
{tag}_top:
s_barrier
s_add_u32 s41, s40, {stride}''')
    if nxt: nxt()
    dma(41)
    if active: A(f's_cmp_eq_u32 s{active}, 0\ns_cbranch_scc1 {tag}_skip')
    def rd(ks):
        for tt in range(2): A.ds(f'ds_read_b128 {vr(XA[ks&1][tt])}, v{XV} offset:{tt*16384 + ks*1024}', f'x{ks}')
    A.lds_q = []
    rd(0)
    for ks in range(16):
        A.wait_lds(f'x{ks}')
        if ks < 15: rd(ks + 1)
        mfmas(ks, XA[ks & 1])
        if ks == flagks:
            A(f's_waitcnt vmcnt(0)\ns_cmp_lt_i32 s44, 0\ns_cbranch_scc1 {tag}_noflag')
            flag_soff(44); atomic_flag(A, 's36', 6)
            A(f'{tag}_noflag:')
    epilogue()
    A(f'''s_mov_b32 s44, s40
{tag}_next:
v_xor_b32 v{XV}, 0x8000, v{XV}
s_mov_b32 s40, s41
s_cmp_lt_u32 s40, 64
s_cbranch_scc1 {tag}_top
s_waitcnt vmcnt(0)''')
    if active: A(f's_cmp_eq_u32 s{active}, 0\ns_cbranch_scc1 {tag}_end')
    flag_soff(44); atomic_flag(A, 's36', 6)
    if active:
        A(f's_branch {tag}_end\n{tag}_skip:\ns_waitcnt vmcnt(0)\ns_branch {tag}_next')
    A(f'{tag}_end:\ns_barrier')

def MFd(A, d, a, b, c): A(f'v_mfma_f32_16x16x32_bf16 {d}, {a}, {b}, {c}')

def qkv_frag(m, t, T):
    i = 2 * t + T
    return {'k': f'a[{8*i}:{8*i+7}]', 'v': f'a[{128+8*i}:{128+8*i+7}]', 'q': f'v[{128+8*i}:{128+8*i+7}]'}[m]

def emit_qkv(A, nf, gate=True):
    A('''s_load_dwordx4 s[16:19], s[0:1], 16
s_load_dwordx2 s[24:25], s[0:1], 32
s_waitcnt lgkmcnt(0)
s_mov_b32 s20, s18
s_and_b32 s21, s19, 0xffff
s_mov_b32 s22, 0x400000
s_mov_b32 s23, 0x20000
s_and_b32 s17, s17, 0xffff
s_mov_b32 s18, 0x400000
s_mov_b32 s19, 0x20000
s_and_b32 s25, s25, 0xffff
s_mov_b32 s26, 0x400000
s_mov_b32 s27, 0x20000
s_lshl_b32 s45, s33, 8
s_lshl_b32 s37, s32, 6
s_and_b32 s37, s37, 0x80
s_add_u32 s45, s45, s37
s_and_b32 s37, s32, 1
s_lshl_b32 s37, s37, 17
s_add_u32 s45, s45, s37''')
    coop_addr(A, 8192)
    units = []
    for m in 'kvq':
        for t in range(8):
            sr = {'q': 16, 'k': 20, 'v': 24}[m]
            units.append(([(sr, 45, (64 * t + (i >> 1) + 8 * (i & 1)) * 8192) for i in range(4)],
                          [[sub(qkv_frag(m, t, T), 2 * mp, 2) for T in range(2)] for mp in range(4)]))
    load_units_coop(A, units, pr=True)
    confirm(A, 'qkv_conf')
    prof(A, 2, 36, dbg=13)
    wait_all_xn(A, 'qkv_xn', gate)
    prof(A, 3, 36, dbg=15)
    ACC = 24; PKB = 72
    def acc(m, T, tt): return ACC + 4 * ('qkv'.index(m) * 4 + T * 2 + tt)
    def mfmas(ks, XA):
        for m in 'qkv':
            for T in range(2):
                w = sub(qkv_frag(m, ks >> 1, T), 4 * (ks & 1), 4)
                for tt in range(2):
                    d = vr(acc(m, T, tt)); c = '0' if ks == 0 else d
                    if m == 'v': MFd(A, d, vr(XA[tt]), w, c)
                    else: MFd(A, d, w, vr(XA[tt]), c)
    def epi():
        A(f'''s_lshl_b32 s36, s33, 6
s_add_u32 s36, s36, s40
s_lshl_b32 s37, s36, 14
s_lshl_b32 s36, s36, 13
s_lshl_b32 s38, s32, 10
s_add_u32 s36, s36, s38
s_add_u32 s36, s36, {QFB}
s_add_u32 s46, s36, 4096
s_add_u32 s39, s37, s38
s_add_u32 s39, s39, {KVB}
s_add_u32 s47, s39, 4096
s_add_u32 s37, s39, s38
s_add_u32 s37, s37, 8192''')
        def pk(o, a, b):
            A(f'''v_cvt_pk_bf16_f32 v{o}, v{a}, v{a+1}
v_cvt_pk_bf16_f32 v{o+1}, v{a+2}, v{a+3}
v_cvt_pk_bf16_f32 v{o+2}, v{b}, v{b+1}
v_cvt_pk_bf16_f32 v{o+3}, v{b+2}, v{b+3}''')
        n = 0
        for m, so in (('q', (36, 46)), ('k', (39, 47))):
            for tt in range(2):
                o = PKB + 4 * n; n += 1
                pk(o, acc(m, 0, tt), acc(m, 1, tt))
                A(f'buffer_store_dwordx4 {vr(o)}, v{W_L16}, s[8:11], s{so[tt]} offen sc1')
        for T in range(2):
            o = PKB + 4 * n; n += 1
            pk(o, acc('v', T, 0), acc('v', T, 1))
            A(f'buffer_store_dwordx4 {vr(o)}, v{W_L16}, s[8:11], s37 offen offset:{T*1024} sc1')
        A(f'''s_cmp_lt_u32 s40, {S0}
s_cbranch_scc1 qkv_nosent
s_lshl_b32 s36, s40, 18
s_lshl_b32 s37, s33, 12
s_add_u32 s36, s36, s37
s_add_u32 s36, s36, s38
s_add_u32 s36, s36, {OFB}
s_add_u32 s37, s36, 0x20000
buffer_store_dwordx4 v[96:99], v{W_L16}, s[8:11], s36 offen sc1
buffer_store_dwordx4 v[96:99], v{W_L16}, s[8:11], s37 offen sc1
qkv_nosent:''')
    def fl(seg): A(f's_lshl_b32 s36, s33, 8\ns_lshl_b32 s37, s{seg}, 2\ns_add_u32 s36, s36, s37')
    A('v_mov_b64 v[96:97], -1\nv_mov_b64 v[98:99], -1')
    def nxt():
        A(f'''s_sub_u32 s36, {11+nf}, s89
s_cmp_lt_u32 s40, {6+nf}
s_cselect_b32 s41, s36, s41
s_add_u32 s36, s40, {nf}
s_cmp_lt_u32 s40, {nf}
s_cselect_b32 s41, s36, s41''')
    xf_loop(A, 'qkv', 6, 6, mfmas, epi, fl, flagks=5, nxt=nxt)
    prof(A, 4, 36, dbg=14)

def emit_gu(A, nsets):
    A('''s_load_dwordx4 s[16:19], s[0:1], 64
s_waitcnt lgkmcnt(0)
s_mov_b32 s20, s18
s_and_b32 s21, s19, 0xffff
s_mov_b32 s22, 1409024
s_mov_b32 s23, 0x20000
s_and_b32 s17, s17, 0xffff
s_mov_b32 s18, 1409024
s_mov_b32 s19, 0x20000
s_lshl_b32 s49, s48, 2
s_add_u32 s49, s49, s32
s_cmp_lt_u32 s49, 43
s_cselect_b32 s50, 1, 0
s_min_u32 s49, s49, 42
s_lshl_b32 s45, s49, 6''')
    voff_dmap(A, 2752)
    def frag(m, t, T):
        i = 2 * t + T; b = 128 * 'gu'.index(m) + 8 * i
        return f'a[{b}:{b+7}]'
    units = []
    for t in range(8):
        for m in 'gu':
            units.append(([({'g': 16, 'u': 20}[m], 45, drow(t, mp) * 2752) for mp in range(4)],
                          [[sub(frag(m, t, T), 2 * mp, 2) for T in range(2)] for mp in range(4)]))
    load_units(A, units)
    prof(A, 5, 36)
    ACC = 24; PKB = 72
    def acc(m, T, tt): return ACC + 4 * ('gu'.index(m) * 4 + T * 2 + tt)
    def mfmas(ks, XA):
        for m in 'gu':
            for T in range(2):
                w = sub(frag(m, ks >> 1, T), 4 * (ks & 1), 4)
                for tt in range(2):
                    d = vr(acc(m, T, tt)); c = '0' if ks == 0 else d
                    MFd(A, d, w, vr(XA[tt]), c)
    c1 = -2 * math.sqrt(2 / math.pi) * math.log2(math.e); c2 = c1 * 0.044715
    def epi():
        A(f'''s_mul_i32 s36, s40, {2*44*1024}
s_lshl_b32 s37, s49, 10
s_add_u32 s36, s36, s37
s_add_u32 s36, s36, {HFB}
s_add_u32 s37, s36, {44*1024}
s_mov_b32 s38, {f32bits(c2)}
v_mov_b32 v56, {f32bits(c1)}''')
        for tt in range(2):
            for T in range(2):
                g = acc('g', T, tt); u = acc('u', T, tt); t = 60
                for r in range(4): A(f'v_mul_f32 v{t+r}, v{g+r}, v{g+r}')
                for r in range(4): A(f'v_fma_f32 v{t+r}, v{t+r}, s38, v56')
                for r in range(4): A(f'v_mul_f32 v{t+r}, v{t+r}, v{g+r}')
                for r in range(4): A(f'v_exp_f32 v{t+r}, v{t+r}')
                for r in range(4): A(f'v_mul_f32 v{g+r}, v{g+r}, v{u+r}')
                for r in range(4): A(f'v_add_f32 v{t+r}, 1.0, v{t+r}')
                for r in range(4): A(f'v_rcp_f32 v{t+r}, v{t+r}')
                for r in range(4): A(f'v_mul_f32 v{g+r}, v{g+r}, v{t+r}')
                o = PKB + 4 * tt + 2 * T
                A(f'v_cvt_pk_bf16_f32 v{o}, v{g}, v{g+1}\nv_cvt_pk_bf16_f32 v{o+1}, v{g+2}, v{g+3}')
            A(f'buffer_store_dwordx4 {vr(PKB+4*tt)}, v{W_L16}, s[8:11], s{36+tt} offen sc1')
    def fl(seg): A(f's_lshl_b32 s36, s{seg}, 7\ns_add_u32 s36, s36, {FLAGS+F_H}')
    xf_loop(A, 'gu', nsets, 2, mfmas, epi, fl, active=50)
    prof(A, 6, 36)

def emit_att(A, stride):
    IDX, QW, TRA, B0, TMP = 4, 5, 6, 7, 8
    MF_ = [16 + 4 * i for i in range(8)]
    AK = [48, 52]; AV = [56, 60]
    KX = lambda tt, k: 64 + 16 * tt + 4 * k
    QX = lambda tt, k: 96 + 16 * tt + 4 * k
    VX = [128, 132]; KM = [136 + 4 * k for k in range(4)]
    S = {(0, 0): 152, (0, 1): 156, (1, 0): 160, (1, 1): 164, (1, 2): 168}
    PB = [172, 176]; PM = [180, 182]; VM = 184; ONES = 188; ONE2 = 192; NEG = 194
    LS = [196, 200]; O = lambda tt, T: 204 + 8 * tt + 4 * T
    OFR = [220, 224]
    L_M = 0; L_K = 8192
    A(f'''v_and_b32 v21, 8, v{W_LANE}
v_cmp_eq_u32 vcc, 0, v21
v_mov_b32 v22, 0xeeee
v_mov_b32 v23, 0x4444
v_cndmask_b32 v{IDX}, v22, v23, vcc
v_lshrrev_b32 v21, 5, v{W_LANE}
v_and_b32 v22, 15, v{W_LANE}
v_lshl_add_u32 v21, v21, 4, v22
v_lshlrev_b32 v21, 4, v21
v_bfe_u32 v22, v{W_LANE}, 4, 1
v_lshl_add_u32 v21, v22, 3, v21
s_lshl_b32 s38, s32, 9
v_add_u32 v{QW}, s38, v21
v_lshrrev_b32 v21, 2, v{W_LANE}
v_lshlrev_b32 v21, 4, v21
v_and_b32 v22, 1, v{W_LANE}
v_lshl_add_u32 v{TRA}, v22, 3, v21
s_lshl_b32 s53, s32, 11
v_add_u32 v{B0}, s53, v{W_L16}
s_mov_b32 s68, {f32bits(128 ** -0.5 * math.log2(math.e))}
v_mov_b32 v{ONES}, 0x3f803f80
v_mov_b32 v{ONES+1}, 0x3f803f80
v_mov_b32 v{ONES+2}, 0x3f803f80
v_mov_b32 v{ONES+3}, 0x3f803f80
s_mov_b32 s82, -1
s_mov_b32 s83, 0
v_cndmask_b32 v{ONE2}, 0, v{ONES}, s[82:83]
v_cndmask_b32 v{ONE2+1}, 0, v{ONES}, s[82:83]
v_mov_b32 v{NEG}, 0xf149f2ca
v_mov_b32 v{PB[0]+2}, 0
v_mov_b32 v{PB[0]+3}, 0
v_lshrrev_b32 v21, 4, v{W_LANE}
v_lshlrev_b32 v21, 2, v21
v_and_b32 v22, 15, v{W_LANE}''')
    for r in range(4):
        A(f'v_add_u32 v23, {r}, v21\nv_cmp_le_u32 s[{72+2*r}:{73+2*r}], v23, v22')
    def ready(lbl):
        A(f'''s_min_u32 s41, s41, 63
{lbl}:
s_bitcmp1_b64 s[70:71], s41
s_cbranch_scc1 {lbl}_ok
v_lshlrev_b32 v14, 2, v{W_LANE}
s_lshl_b32 s37, s33, 8
buffer_load_dword v15, v14, s[8:11], s37 offen sc1
s_waitcnt vmcnt(0)
v_cmp_le_u32 s[70:71], 4, v15
s_sub_u32 s35, s35, 1
s_cbranch_scc0 {lbl}
s_mov_b32 s35, 0
{lbl}_ok:
s_lshl_b32 s42, s33, 6
s_add_u32 s42, s42, s41
s_lshl_b32 s43, s42, 14
s_lshl_b32 s42, s42, 13
s_add_u32 s42, s42, {QFB}
s_add_u32 s44, s42, 4096
s_add_u32 s43, s43, {KVB}
s_add_u32 s45, s43, 4096
s_add_u32 s46, s43, 8192
s_lshl_b32 s47, s41, 13
s_add_u32 s47, s47, {GMEMB}''')
    def ldK():
        for tt in range(2):
            for k in range(4): A(f'buffer_load_dwordx4 {vr(KX(tt,k))}, v{W_L16}, s[8:11], s{(43,45)[tt]} offen offset:{k*1024} sc1')
    def ldQ():
        for tt in range(2):
            for k in range(4): A(f'buffer_load_dwordx4 {vr(QX(tt,k))}, v{W_L16}, s[8:11], s{(42,44)[tt]} offen offset:{k*1024} sc1')
    def ldV():
        for T in range(2): A(f'buffer_load_dwordx4 {vr(VX[T])}, v{B0}, s[8:11], s46 offen offset:{T*1024} sc1')
    def ldM():
        for u in range(2): A(f'buffer_load_dwordx4 {vr(MF_[u])}, v{B0}, s[8:11], s47 offen offset:{u*1024} sc1')
    A('s_mov_b64 s[70:71], 0\ns_mov_b32 s48, -1\natt_top:\ns_mov_b32 s41, s40')
    ready('att_r0')
    ldK(); ldQ(); ldV(); ldM()
    for a_ in AK + AV: A(f'v_mov_b64 v[{a_}:{a_+1}], 0\nv_mov_b64 v[{a_+2}:{a_+3}], 0')
    A('s_waitcnt vmcnt(0)')
    for k in range(4):
        for key in ((0, 1), (1, 1), (1, 2)):
            d = vr(S[key]); MFd(A, d, vr(KX(key[1] - 1, k)), vr(QX(key[0], k)), '0' if k == 0 else d)
    A(f'''att_chk:
v_max3_u32 v8, v16, v17, v18
v_max3_u32 v8, v8, v19, v20
v_max3_u32 v8, v8, v21, v22
v_max_u32 v8, v8, v23
v_cmp_eq_u32 vcc, -1, v8
s_cbranch_vccz att_ok
s_sleep {ASLP}''')
    ldM()
    A(f'''s_waitcnt vmcnt(0)
s_sub_u32 s35, s35, 1
s_cbranch_scc0 att_chk
s_mov_b32 s35, 0
att_ok:
ds_write_b128 v{B0}, {vr(MF_[0])} offset:{L_M}
ds_write_b128 v{B0}, {vr(MF_[1])} offset:{L_M+1024}
s_waitcnt lgkmcnt(0)
s_barrier''')
    A.lds_q = []
    for t in range(8): A.ds(f'ds_read_b128 {vr(MF_[t])}, v{W_L16} offset:{L_M + t*1024}', f'm{t}')
    def SM(acc, t, m, T): A(f'v_smfmac_f32_16x16x64_bf16 {vr(acc)}, {vr(MF_[t])}, {qkv_frag(m,t,T)}, v{IDX}')
    for t in range(8):
        A.wait_lds(f'm{t}')
        SM(AK[0], t, 'k', 0); SM(AK[1], t, 'k', 1)
    A(f'''s_cmp_ge_u32 s48, {S0}
s_cbranch_scc1 att_nf
s_cmp_lg_u32 s32, 0
s_cbranch_scc1 att_nf
s_lshl_b32 s36, s48, 7
s_add_u32 s36, s36, {FLAGS+F_O}''')
    atomic_flag(A, 's36', 14)
    A('att_nf:')
    fold = [f'v_permlane32_swap_b32 v{AK[0]+r}, v{AK[1]+r}' for r in range(4)] + [f'v_add_f32 v{AK[0]+r}, v{AK[0]+r}, v{AK[1]+r}' for r in range(4)]
    fold += [f'v_cvt_pk_bf16_f32 v8, v{AK[0]}, v{AK[0]+1}', f'v_cvt_pk_bf16_f32 v9, v{AK[0]+2}, v{AK[0]+3}']
    n = 0
    for t in range(8):
        for T in range(2):
            SM(AV[T], t, 'v', T); n += 1
            if 3 <= n <= 7: A(fold[2*(n-3)]); A(fold[2*(n-3)+1])
            if n == 8: A.ds(f'ds_write_b64 v{QW}, v[8:9] offset:{L_K}', 'kw')
            if n == 12:
                A.wait_lds('kw'); A('s_barrier')
            if n >= 13:
                k = n - 13
                for hf in range(2): A.ds(f'ds_read_b64_tr_b16 {vr(KM[k]+2*hf,2)}, v{TRA} offset:{L_K + k*512 + hf*256}', f'km{k}')
    for key in ((0, 1), (1, 2)):
        for r in range(4): A(f'v_cndmask_b32 v{S[key]+r}, v{NEG}, v{S[key]+r}, s[{72+2*r}:{73+2*r}]')
    for k in range(4):
        A.wait_lds(f'km{k}')
        for tt in range(2):
            d = vr(S[(tt, 0)]); MFd(A, d, vr(KM[k]), vr(QX(tt, k)), '0' if k == 0 else d)
    for T in range(2):
        A(f'v_cvt_pk_bf16_f32 v{VM+2*T}, v{AV[T]}, v{AV[T]+1}\nv_cvt_pk_bf16_f32 v{VM+2*T+1}, v{AV[T]+2}, v{AV[T]+3}')
    A(f'''s_lshl_b32 s36, s40, 18
s_lshl_b32 s37, s33, 12
s_add_u32 s36, s36, s37
s_lshl_b32 s37, s32, 10
s_add_u32 s36, s36, s37
s_add_u32 s36, s36, {OFB}
s_add_u32 s37, s36, 0x20000''')
    for tt in range(2):
        regs = [S[k] + r for k in S if k[0] == tt for r in range(4)]
        m = 8 + 2 * tt; t1 = m + 1
        A(f'v_max3_f32 v{m}, v{regs[0]}, v{regs[1]}, v{regs[2]}')
        i = 3
        while i + 1 < len(regs):
            A(f'v_max3_f32 v{m}, v{m}, v{regs[i]}, v{regs[i+1]}'); i += 2
        A(f'''v_max_f32 v{m}, v{m}, v{regs[i]}
v_mov_b32 v{t1}, v{m}
v_permlane32_swap_b32 v{m}, v{t1}
v_max_f32 v{m}, v{m}, v{t1}
v_mov_b32 v{t1}, v{m}
v_permlane16_swap_b32 v{m}, v{t1}
v_max_f32 v{m}, v{m}, v{t1}
v_mul_f32 v{m}, s68, v{m}''')
        for r in regs: A(f'v_fma_f32 v{r}, v{r}, s68, -v{m}')
        for r in regs: A(f'v_exp_f32 v{r}, v{r}')
        for key in S:
            if key[0] != tt: continue
            o = PM[tt] if key[1] == 0 else PB[tt] + 2 * (key[1] - 1)
            A(f'v_cvt_pk_bf16_f32 v{o}, v{S[key]}, v{S[key]+1}\nv_cvt_pk_bf16_f32 v{o+1}, v{S[key]+2}, v{S[key]+3}')
        MFd(A, vr(LS[tt]), vr(ONES), vr(PB[tt]), '0')
        for T in range(2): MFd(A, vr(O(tt, T)), vr(VX[T]), vr(PB[tt]), '0')
        A(f'v_mfma_f32_16x16x16_bf16 {vr(LS[tt])}, {vr(ONE2,2)}, {vr(PM[tt],2)}, {vr(LS[tt])}')
        for T in range(2): A(f'v_mfma_f32_16x16x16_bf16 {vr(O(tt,T))}, {vr(VM+2*T,2)}, {vr(PM[tt],2)}, {vr(O(tt,T))}')
    for tt in range(2):
        A(f'v_rcp_f32 v12, v{LS[tt]}')
        for T in range(2):
            o = O(tt, T)
            for r in range(4): A(f'v_mul_f32 v{o+r}, v{o+r}, v12')
            A(f'v_cvt_pk_bf16_f32 v{OFR[tt]+2*T}, v{o}, v{o+1}\nv_cvt_pk_bf16_f32 v{OFR[tt]+2*T+1}, v{o+2}, v{o+3}')
        A(f'buffer_store_dwordx4 {vr(OFR[tt])}, v{W_L16}, s[8:11], s{36+tt} offen sc1')
    A('s_mov_b32 s48, s40')
    prof(A, 16, 10, 40)
    A(f'''s_add_u32 s40, s40, {stride}
s_cmp_lt_u32 s40, 64
s_cbranch_scc1 att_top''')

def emit_out(A, nsets):
    A('''s_load_dwordx2 s[4:5], s[0:1], 40
s_load_dwordx4 s[20:23], s[0:1], 80
s_load_dwordx2 s[6:7], s[0:1], 0
s_waitcnt lgkmcnt(0)''')
    srd(A, 16, 4, 0x400000)
    srd(A, 24, 22, 0x200000)
    A('s_and_b32 s21, s21, 0xffff\ns_mov_b32 s22, 1409024\ns_mov_b32 s23, 0x20000')
    srd(A, 28, 6, 0x200000)
    A(f'''v_bfe_u32 v21, v{W_LANE}, 1, 4
v_lshlrev_b32 v21, 10, v21
v_lshrrev_b32 v22, 5, v{W_LANE}
v_lshl_add_u32 v21, v22, 5, v21
v_and_b32 v22, 1, v{W_LANE}
v_lshl_add_u32 v{W_VO}, v22, 4, v21
s_lshl_b32 s37, s48, 6
s_lshl_b32 s45, s32, 20
s_add_u32 s45, s45, s37
s_lshl_b32 s46, s32, 15
s_add_u32 s46, s46, s37''')
    def wo(ks, T): return ar(8 * ks + 4 * T)
    def wd(i, T): return vr(168 + 8 * i + 4 * T)
    units = []
    for u in range(6):
        dm = []; de = []
        for mp in range(4):
            i = 2 * u + (mp >> 1); m2 = mp & 1
            dm.append((20, 46, (128 * i + 16 * m2) * 1024))
            de.append([sub(wd(i, T) if i < 11 else vr(32 + 4 * T), 2 * m2, 2) for T in range(2)])
        units.append((dm, de))
    for u in range(16):
        dm = []; de = []
        for mp in range(4):
            ks = 2 * u + (mp >> 1); m2 = mp & 1
            dm.append((16, 45, (32 * ks + 16 * m2) * 1024))
            de.append([sub(wo(ks, T), 2 * m2, 2) for T in range(2)])
        units.append((dm, de))
    load_units(A, units)
    prof(A, 7, 36)
    ACC = [16, 20]; XR = 24; BF = 32; RW = 4; OA = 5; RW2 = 12
    A(f'''s_lshl_b32 s36, s32, 11
v_add_u32 v{RW}, s36, v{W_L16}
v_mov_b32 v{RW2}, v{RW}
v_and_b32 v21, 15, v{W_LANE}
v_lshlrev_b32 v21, 10, v21
v_lshrrev_b32 v22, 4, v{W_LANE}
v_lshl_add_u32 v21, v22, 3, v21
s_lshl_b32 s36, s48, 6
s_lshl_b32 s37, s32, 5
s_add_u32 s36, s36, s37
v_add_u32 v{OA}, s36, v21
s_lshl_b32 s36, s32, 10
v_add_u32 v6, s36, v{W_L16}
v_mov_b32 v9, 0
v_and_b32 v7, 31, v{W_LANE}
v_lshlrev_b32 v7, 10, v7
out_kv:
buffer_load_dwordx4 v[32:35], v{RW}, s[8:11], 0 offen sc1
buffer_load_dwordx4 v[36:39], v{RW}, s[8:11], 0 offen offset:1024 sc1
s_waitcnt vmcnt(0)
v_min3_u32 v8, v32, v33, v34
v_min3_u32 v8, v8, v35, v36
v_min3_u32 v8, v8, v37, v38
v_min_u32 v8, v8, v39
v_cmp_gt_u32 vcc, 4, v8
s_cbranch_vccz out_top
s_sleep 4
s_sub_u32 s35, s35, 1
s_cbranch_scc0 out_kv
s_mov_b32 s35, 0
out_top:
s_lshr_b32 s41, s40, 1
s_lshl_b32 s42, s41, 7
s_cmp_lg_u32 s32, 0
s_cbranch_scc1 out_h_ok
s_add_u32 s37, s42, {FLAGS+F_H}''')
    wait_cnt(A, 'out_h', 8, 9, 's37', 43, 8, sleep=2)
    A(f'''s_barrier
s_mul_i32 s43, s40, {44*1024}
s_add_u32 s43, s43, {HFB}''')
    for i in range(11):
        A(f's_add_u32 s36, s32, {4*i}\ns_min_u32 s36, s36, 42\ns_lshl_b32 s36, s36, 10\ns_add_u32 s36, s36, s43')
        A(f'buffer_load_dwordx4 {vr(BF+4*i)}, v{W_L16}, s[8:11], s36 offen sc1')
    A(f's_lshl_b32 s44, s40, 14\nbuffer_load_dwordx2 {vr(XR,2)}, v{OA}, s[28:31], s44 offen')
    for i in range(11):
        A(f's_waitcnt vmcnt({11-i})')
        for T in range(2): MFd(A, vr(ACC[T]), wd(i, T), vr(BF + 4 * i), '0' if i == 0 else vr(ACC[T]))
    AC2 = [160, 164]
    A(f'''s_lshl_b32 s43, s40, 17
s_lshl_b32 s37, s32, 15
s_add_u32 s43, s43, s37
s_add_u32 s43, s43, {OFB}
s_cmp_ge_u32 s41, {S0}
s_cbranch_scc1 out_late
s_cmp_lg_u32 s32, 0
s_cbranch_scc1 out_o_ok
s_add_u32 s37, s42, {FLAGS+F_O}''')
    wait_cnt(A, 'out_o', 8, 9, 's37', 32, 8, sleep=OSLP)
    A(f'''s_barrier
s_branch out_ld
out_late:
s_cmp_lg_u32 s32, 0
s_cbranch_scc1 out_g_ok
s_lshl_b32 s37, s41, 13
s_add_u32 s37, s37, {GMEMB}
out_g:
buffer_load_dword v8, v9, s[8:11], s37 offen sc1
s_waitcnt vmcnt(0)
v_cmp_eq_u32 vcc, -1, v8
s_cbranch_vccz out_g_ok
s_sleep {OSLP}
s_sub_u32 s35, s35, 1
s_cbranch_scc0 out_g
s_mov_b32 s35, 0
out_g_ok:
s_barrier
out_can:
buffer_load_dword v8, v7, s[8:11], s43 offen offset:1020 sc1
s_waitcnt vmcnt(0)
v_cmp_eq_u32 vcc, -1, v8
s_cbranch_vccz out_ld
s_sleep 1
s_sub_u32 s35, s35, 1
s_cbranch_scc0 out_can
s_mov_b32 s35, 0
out_ld:
s_mov_b32 s36, s43''')
    for i in range(32):
        A(f'buffer_load_dwordx4 {vr(BF+4*i)}, v{W_L16}, s[8:11], s36 offen offset:{(i&3)*1024} sc1')
        if i & 3 == 3: A('s_add_u32 s36, s36, 4096')
    for i in range(32):
        A(f's_waitcnt vmcnt({31-i})')
        for T in range(2): MFd(A, vr(AC2[T]), wo(i, T), vr(BF + 4 * i), vr(ACC[T]) if i == 0 else vr(AC2[T]))
    A(f'''v_cmp_u_f32 vcc, v{AC2[0]}, v{AC2[0]}
s_cbranch_vccz out_red
v_max3_u32 v8, v{BF}, v{BF+1}, v{BF+1}''')
    for i in range(1, 64): A(f'v_max3_u32 v8, v8, v{BF+2*i}, v{BF+2*i+1}')
    A(f'''v_cmp_eq_u32 vcc, -1, v8
s_cbranch_vccz out_red
s_sub_u32 s35, s35, 1
s_cbranch_scc0 out_ld
s_mov_b32 s35, 0
out_red:''')
    ACC = AC2
    A(f'''ds_write_b128 v{RW2}, {vr(ACC[0])}
ds_write_b128 v{RW2}, {vr(ACC[1])} offset:1024
s_waitcnt lgkmcnt(0)
s_barrier
s_cmp_ge_u32 s32, 2
s_cbranch_scc1 out_next''')
    for w in range(4): A(f'ds_read_b128 {vr(BF+4*w)}, v6 offset:{w*2048}')
    A(f'''v_lshlrev_b32 v26, 16, v{XR}
v_and_b32 v27, 0xffff0000, v{XR}
v_lshlrev_b32 v28, 16, v{XR+1}
v_and_b32 v29, 0xffff0000, v{XR+1}
s_waitcnt lgkmcnt(0)''')
    for r in range(4):
        A(f'v_add_f32 v{BF+r}, v{BF+r}, v{BF+4+r}\nv_add_f32 v{BF+8+r}, v{BF+8+r}, v{BF+12+r}')
    for r in range(4):
        A(f'v_add_f32 v{BF+r}, v{BF+r}, v{BF+8+r}\nv_add_f32 v{BF+r}, v{BF+r}, v{26+r}')
    A(f'''v_cvt_pk_bf16_f32 v30, v{BF}, v{BF+1}
v_cvt_pk_bf16_f32 v31, v{BF+2}, v{BF+3}
buffer_store_dwordx2 v[30:31], v{OA}, s[24:27], s44 offen{OPT['osc']}
out_next:
v_xor_b32 v{RW2}, 0x2000, v{RW2}
v_xor_b32 v6, 0x2000, v6''')
    prof(A, 16, 10, 41)
    A(f'''s_add_u32 s40, s40, {nsets}
s_cmp_lt_u32 s40, 128
s_cbranch_scc1 out_top''')

NAME = 'parallel_sum__memory_aug_recurrent_mem_tr__geglu_ffn__prompt_kernel'

def gen_full(profile=False, warm=2, wb=0, badguess=0, codepf=1, claim='bitmap', warmws=1, thr=6, wlo=3, nall=0, stop=0, chx=1, thr2=10, sibm='', nf=3, ffn=True, osc=' nt', **ckw):
    OPT['osc'] = osc
    PROF['on'] = profile; PROF['trip'] = ckw.get('trip')
    A = Asm()
    A.raw(f'; @launch kernel={NAME} grid=(256,1,1) block=(256,1,1) lds=163840')
    A.raw('.amdgcn_target "amdgcn-amd-amdhsa--gfx950"')
    A.raw(f'.text\n.globl {NAME}\n.p2align 8\n.type {NAME},@function')
    A.label(NAME)
    A('s_cmp_ge_u32 s2, 256\ns_cbranch_scc1 L_end')
    if ckw.get('trip') or profile: A('s_memrealtime s[98:99]')
    if codepf:
        A(f'''s_getpc_b64 s[6:7]
L_pc0:
s_lshr_b32 s4, s2, 3
s_and_b32 s4, s4, 3
s_lshl_b32 s4, s4, 14
v_lshlrev_b32 v2, 6, v0
v_add_u32 v2, s4, v2
v_min_u32 v2, L_end-L_pc0, v2
global_load_dword v127, v2, s[6:7]''')
    common_entry(A)
    if claim == 'bitmap':
        claim_body = '''s_lshl_b32 s39, 1, s37
v_mov_b32 v4, s39
buffer_atomic_or v4, v3, s[12:15], 0 offen sc0 sc1
s_waitcnt vmcnt(0)
v_readfirstlane_b32 s39, v4
s_bitcmp0_b32 s39, s37
s_cbranch_scc1 L_claimed
s_ff0_i32_b32 s37, s39
s_cmp_ge_i32 s37, 0
s_cbranch_scc1 L_claim'''
    else:
        claim_body = '''v_mov_b32 v4, 1
buffer_atomic_add v4, v3, s[12:15], 0 offen sc0 sc1
s_waitcnt vmcnt(0)
v_readfirstlane_b32 s37, v4
s_cmp_lt_u32 s37, 32
s_cbranch_scc1 L_claimed'''
    A(f'''s_and_b32 s3, s3, 7
s_xor_b32 s3, s3, {chx}
s_lshr_b32 s36, s2, 3
s_lshl_b32 s94, s3, 5
s_add_u32 s94, s94, s36
{"s_and_b32 s94, s2, 0xf0" if badguess else ""}
s_mov_b32 s95, 0
s_mov_b32 s96, s3
s_cmp_lg_u32 s32, 0
s_cbranch_scc1 L_first
s_mov_b64 exec, 1
s_lshr_b32 s36, s94, 5
s_and_b32 s37, s94, 31
s_mov_b32 s38, 0
L_claim:
s_lshl_b32 s39, s36, 2
s_cmp_eq_u32 s36, 0
s_cselect_b32 s39, {DBG_CTICKET}, s39
v_mov_b32 v3, s39
s_cbranch_scc0 L_claim2
s_cmp_eq_u32 s96, 0
s_cbranch_scc1 L_claim2
v_mov_b32 v4, 1
buffer_atomic_add v4, v3, s[12:15], 0 offen offset:4 sc0 sc1
s_waitcnt vmcnt(0)
L_claim2:
{claim_body}
s_mov_b32 s37, 0
s_add_u32 s38, s38, 1
s_add_u32 s36, s36, 1
s_cmp_le_u32 s36, 7
s_cselect_b32 s36, s36, 1
s_cmp_ge_u32 s38, 8
s_cselect_b32 s36, 0, s36
s_cmp_le_u32 s38, 8
s_cbranch_scc1 L_claim
s_mov_b32 s36, 8
L_claimed:
s_lshl_b32 s36, s36, 5
s_add_u32 s36, s36, s37
v_mov_b32 v3, {L_SLOT}
v_mov_b32 v4, s36
ds_write_b32 v3, v4
s_waitcnt lgkmcnt(0)
s_mov_b64 exec, -1
L_first:''')
    if claim != 'bitmap': confirm(A, 'L_conf0')
    A(f'''L_role:
s_cmp_ge_u32 s94, 256
s_cbranch_scc1 L_end
v_mbcnt_lo_u32_b32 v0, -1, 0
v_mbcnt_hi_u32_b32 v0, -1, v0
s_lshr_b32 s3, s94, 5
s_and_b32 s33, s94, 31
s_lshl_b32 s91, s94, 9
s_add_u32 s91, s91, 0x6000000''')
    prof(A, 0, 36, dbg=8)
    if profile is True: A('v_mov_b32 v36, s98\nbuffer_store_dword v36, off, s[8:11], s91 offset:60')
    A('''s_cmp_lg_u32 s3, 0
s_cbranch_scc1 L_worker''')
    emit_chain(A, gate=True, **ckw)
    if wb: A('s_waitcnt vmcnt(0)\ns_cmp_lg_u32 s32, 0\ns_cbranch_scc1 L_end\ns_cmp_lg_u32 s33, 0\ns_cbranch_scc1 L_end\nbuffer_wbl2 sc1')
    A('s_endpgm\nL_worker:')
    worker_setup(A)
    A('s_cmp_lg_u32 s3, 1\ns_cbranch_scc1 L_w2\ns_lshl_b32 s90, s33, 1')
    emit_ln(A, 90)
    prof(A, 1, 36)
    A('s_mov_b32 s36, s33')
    emit_warm(A, thr2, 128, sibm, True, ffn)
    A(f'''s_endpgm
L_w2:
s_sub_u32 s88, s3, 2
s_lshl_b32 s88, s88, 5
s_add_u32 s88, s88, s33          ; wi
s_mul_i32 s33, s88, 10923
s_lshr_b32 s33, s33, 16          ; h = wi/6
s_mul_i32 s36, s33, 6
s_sub_u32 s89, s88, s36          ; r = wi%6
s_mov_b32 s40, s89
s_cmp_lt_u32 s89, {nf}
s_cbranch_scc1 L_noln
s_add_u32 s40, s89, {nf}
s_mul_i32 s36, s33, {6-nf}
s_add_u32 s36, s36, s89
s_sub_u32 s36, s36, {nf}''')
    emit_warm(A, thr, (6 - nf) * 128, [m for m in 'kvqo' if m not in sibm], False)
    A('L_noln:')
    prof(A, 1, 36)
    emit_qkv(A, nf)
    if stop == 1: A('s_endpgm')
    A('''s_cmp_lt_u32 s89, 4
s_cbranch_scc1 L_gu
s_sub_u32 s40, s89, 4''')
    emit_att(A, 2)
    A('''s_endpgm
L_gu:
s_lshl_b32 s90, s33, 2
s_add_u32 s90, s90, s89          ; oi
s_cmp_ge_u32 s90, 121
s_cbranch_scc1 L_out
s_mul_i32 s40, s90, 5958
s_lshr_b32 s40, s40, 16
s_mul_i32 s36, s40, 11
s_sub_u32 s48, s90, s36''')
    emit_gu(A, 11)
    A('''L_out:
s_lshr_b32 s40, s90, 4
s_and_b32 s48, s90, 15''')
    emit_out(A, 8)
    if PROF['on'] == 'dbg': prof(A, 0, 36, dbg=12)
    A('L_end:\ns_endpgm')
    A.raw('.section .rodata,"a"\n.p2align 6')
    A.raw(kd(NAME))
    return A.text()

if __name__ == '__main__':
    assert all((w * 10923) >> 16 == w // 6 for w in range(192)) and all((w * 5958) >> 16 == w // 11 for w in range(160))
    hdr = open('parallel_sum__memory_aug_recurrent_mem_tr__geglu_ffn__prompt.s.ref').read().split('; Override')[0]
    kw = dict(dB0=16, dA=16, b1pos=7, kfs=6, gB=48, gA=48, ackB=0, pf=None, dmapos=(8, 12, 16, 20), prepos=21)
    open('full.s', 'w').write(hdr + gen_full(**kw))
    open('diag.s', 'w').write(hdr + gen_full(profile='dbg', **kw))
    open('diag2.s', 'w').write(hdr + gen_full(profile='dbg', wb=0, **kw))
    for i, ex in enumerate(eval(sys.argv[1]) if len(sys.argv) > 1 else []):
        k2 = dict(kw); k2.update(ex)
        open(f'var{i}.s', 'w').write(hdr + gen_full(**k2))
        open(f'var{i}_dbg.s', 'w').write(hdr + gen_full(profile='dbg', **k2))
        open(f'var{i}_prof.s', 'w').write(hdr + gen_full(profile=True, **k2))
    open('full_prof.s', 'w').write(hdr + gen_full(profile=True, **kw))
```
